```python
import torch

def _softmax(x, axis=-1):
    return torch.softmax(x, dim=axis)
def _gelu(x):
    return torch.nn.functional.gelu(x, approximate="tanh")
def _silu(x):
    return torch.nn.functional.silu(x)
def _sigmoid(x):
    return torch.sigmoid(x)
def _layernorm(x, axis=-1, eps=1e-5):
    m = x.mean(dim=axis, keepdim=True)
    v = x.var(dim=axis, keepdim=True, unbiased=False)
    return (x - m) / torch.sqrt(v + eps)
def _scatter_add(tgt, idx, src, axis=0):
    return tgt.clone().index_add_(axis, idx, src)
def _segment_sum(src, seg, n):
    out = torch.zeros((n,) + src.shape[1:], dtype=src.dtype)
    return out.index_add_(0, seg, src)
def _pad(x, pw):
    flat = tuple(v for pair in reversed(pw) for v in pair)
    return torch.nn.functional.pad(x, flat)

kernel_name = 'standalone__edge_featured_mpnn_mpnn__graph'

def setup_inputs():

    _w = (lambda a: (lambda t: t.to(torch.bfloat16) if t.is_floating_point() else t)(torch.as_tensor(a)))
    N, deg, D, De = 10000, 16, 128, max(0, 1)
    E = N * deg
    H = 2 * D
    return {
        "x": _w((lambda *s: torch.randn(*s, dtype=torch.bfloat16) * 0.05)(N, D)),
        "e_attr": _w((lambda *s: torch.randn(*s, dtype=torch.bfloat16) * 1.6)(E, De)),
        "src": _w((lambda lo, hi, *s: torch.randint(lo, hi, s))(0, N, E).to(torch.int64)),
        "dst": _w((lambda lo, hi, *s: torch.randint(lo, hi, s))(0, N, E).to(torch.int64)),
        "w1": _w((lambda *s: torch.randn(*s, dtype=torch.bfloat16) * 1.6)(2 * D + De, H) * (1.0 / (2 * D + De) ** 0.5)),
        "b1": _w((lambda *s: torch.randn(*s, dtype=torch.bfloat16) * 1.6)(H) * 0.01),
        "w2": _w((lambda *s: torch.randn(*s, dtype=torch.bfloat16) * 0.05)(H, D) * (1.0 / H ** 0.5)),
        "b2": _w((lambda *s: torch.randn(*s, dtype=torch.bfloat16) * 0.05)(D) * 0.01),
    }

def reference(x, e_attr, src, dst, w1, b1, w2, b2):
    N, D = x.shape
    h_src = x[src]
    h_dst = x[dst]
    m_in = torch.concatenate([h_src, h_dst, e_attr], axis=-1)
    h = _silu(m_in @ w1 + b1)
    msg = h @ w2 + b2
    return _segment_sum(msg, dst, N)
```

```python
import sys, struct, os

NAME = "standalone__edge_featured_mpnn_mpnn__graph"
N, E, D, H = 10000, 160000, 128, 256
NB = int(os.environ.get('NBINS', '256'))
NPB = 40
NCH, CH = 64, 2500
CAP = 31
WS_T = 0
WS_SEG = 0x1000000
WS_W2F = 0x1B00000
WS_W1F = 0x1B10000
WS_CV = 0x1B20000
WS_DBG = 0x2000000
WS_BYTES = 0x10000000
R = int(os.environ.get("RING", "8"))
PFL = int(os.environ.get("PFL", "0"))
PRIO_T = eval(os.environ.get("PRIO_T", "((32, 2), (21, 1), (10, 0))"))
STAMP = os.environ.get("STAMP", "0") == "1"
EXP = os.environ.get("EXP", "")
PRIO = os.environ.get("PRIO", "1") == "1"
PI = [1, 3, 0, 2]
EXP1 = os.environ.get("EXP1", "")
SPF = int(os.environ.get("SPF", "0"))
NE = int(os.environ.get("NE", "0"))
STF = os.environ.get("STF", "nt")
STB = os.environ.get("STB", "")
XS = os.environ.get("XS", "")
FBASE = 0x4B000000
F1 = int(os.environ.get("F1", "4"))

def f32bits(x): return struct.unpack("<I", struct.pack("<f", x))[0]
C_NLOG2E = f32bits(-1.4426950408889634)
C_NLN2 = f32bits(-0.6931471805599453)

out = []
def A(s): out.append("    " + s)
def L(s): out.append(s + ":")
def CM(s): out.append("    ; " + s)
def vr(a, n): return f"v[{a}:{a+n-1}]"

PX, PE, PSRC, PDST, PW1, PB1, PW2, PB2 = 4, 6, 8, 10, 12, 14, 16, 18
POUT, PWS = 20, 22

def srd(dst, base, nrec, off=0):
    if off:
        A(f"s_add_u32 s{dst}, s{base}, {hex(off)}")
        A(f"s_addc_u32 s{dst+1}, s{base+1}, 0")
        src1 = dst + 1
    else:
        A(f"s_mov_b32 s{dst}, s{base}")
        src1 = base + 1
    A(f"s_and_b32 s{dst+1}, s{src1}, 0xffff")
    A(f"s_mov_b32 s{dst+2}, {hex(nrec)}")
    A(f"s_mov_b32 s{dst+3}, 0x20000")

def stamp(k):
    if STAMP: A(f"s_memrealtime s[{76+2*k}:{77+2*k}]")
def stamp_flush(kern, wave_s, nst):
    if not STAMP: return
    A("s_waitcnt lgkmcnt(0)")
    A(f"s_add_u32 s72, s{PWS}, {hex(WS_DBG + kern*0x100000)}")
    A(f"s_addc_u32 s73, s{PWS+1}, 0")
    A("s_and_b32 s73, s73, 0xffff")
    A("s_mov_b32 s74, 0x100000")
    A("s_mov_b32 s75, 0x20000")
    A("s_lshl_b32 s100, s2, 4")
    A(f"s_add_u32 s100, s100, s{wave_s}")
    A("s_lshl_b32 s100, s100, 7")
    A("s_mov_b64 exec, 1")
    A("v_mov_b32 v126, 0")
    for k in range(nst):
        A(f"v_mov_b32 v127, s{76+2*k}")
        A(f"buffer_store_dword v127, v126, s[72:75], s100 offen offset:{4*k}")
    A("s_mov_b64 exec, -1")

def kernel_begin(name):
    out.extend([".text", f".globl {name}", ".p2align 8", f".type {name},@function"])
    L(name)
def kernel_desc(name, vgpr, sgpr):
    acc = (vgpr + 3) // 4 * 4
    out.extend([
        '.section .rodata,"a"', ".p2align 6", f".amdhsa_kernel {name}",
        f"  .amdhsa_next_free_vgpr {vgpr}", f"  .amdhsa_next_free_sgpr {sgpr}", f"  .amdhsa_accum_offset {acc}",
        "  .amdhsa_group_segment_fixed_size 0", "  .amdhsa_kernarg_size 88", "  .amdhsa_user_sgpr_count 2",
        "  .amdhsa_user_sgpr_kernarg_segment_ptr 1", "  .amdhsa_system_sgpr_workgroup_id_x 1", ".end_amdhsa_kernel"])

K1_GEMM0 = NCH
K1_W20 = NCH + 160
K1_W10 = K1_W20 + 4
K1_CV = K1_W10 + 1
K1_GRID = K1_CV + 1
K1_LDS = int(os.environ.get("K1LDS", "65536"))
K1B0 = os.environ.get("K1B0", "1") == "1"

def gen_k1():
    kernel_begin("k1_kernel")
    A("s_load_dwordx16 s[4:19], s[0:1], 0")
    A("s_load_dwordx2 s[22:23], s[0:1], 80")
    stamp(0)
    A(f"s_cmp_ge_u32 s2, {K1_GRID}")
    A("s_cbranch_scc1 K1_END")
    A("v_and_b32 v1, 63, v0")
    A("v_lshrrev_b32 v2, 6, v0")
    A("v_and_b32 v3, 15, v0")
    A("v_bfe_u32 v4, v0, 4, 2")
    A("v_readfirstlane_b32 s3, v2")
    A("s_mov_b32 s52, 0x05040100")
    A("s_mov_b32 s53, 0x07060302")
    A(f"s_cmp_lt_u32 s2, {K1_GEMM0}")
    A("s_cbranch_scc1 K1_BIN")
    A(f"s_cmp_ge_u32 s2, {K1_W20}")
    A("s_cbranch_scc1 K1_PREP")
    A(f"s_sub_u32 s24, s2, {K1_GEMM0}")
    A("s_and_b32 s25, s24, 7")
    A("s_lshr_b32 s26, s24, 4")
    A("s_lshl_b32 s26, s26, 3")
    A("s_add_u32 s25, s25, s26")
    A("s_bfe_u32 s26, s24, 0x10003")
    A("s_cmp_ge_u32 s25, 79")
    A("s_cbranch_scc1 K1_END")
    A("s_and_b32 s27, s3, 1")
    A("s_lshr_b32 s28, s3, 1")
    A("s_lshl_b32 s30, s28, 14")
    A("s_lshl_b32 s31, s27, 11")
    A("s_add_u32 s30, s30, s31")
    A("s_lshl_b32 s31, s26, 8")
    A("s_add_u32 s30, s30, s31")
    A("s_lshl_b32 s32, s25, 7")
    A("s_lshl_b32 s33, s28, 5")
    A("s_add_u32 s32, s32, s33")
    A("v_lshlrev_b32 v5, 12, v4")
    A("v_lshl_add_u32 v5, v3, 4, v5")
    A("v_lshlrev_b32 v10, 4, v1")
    A("s_lshl_b32 s35, s28, 12")
    A("s_lshl_b32 s54, s27, 3")
    A("s_add_u32 s35, s35, s54")
    A("v_add_u32 v11, s35, v10")
    A("s_lshl_b32 s54, s27, 14")
    A("v_add_u32 v13, s54, v10")
    A("v_lshlrev_b32 v12, 9, v3")
    A("v_lshl_add_u32 v12, v4, 4, v12")
    A("s_lshl_b32 s55, s32, 9")
    A("s_lshl_b32 s54, s26, 7")
    A("s_add_u32 s55, s55, s54")
    A("s_lshl_b32 s54, s27, 6")
    A("s_add_u32 s55, s55, s54")
    A("s_add_u32 s56, s55, 8192")
    A("s_mov_b32 s58, 0x8000")
    for k in range(4):
        A(f"v_xor_b32 v{6+k}, v4, v3")
        if k: A(f"v_xor_b32 v{6+k}, {4*k}, v{6+k}")
        A(f"v_lshlrev_b32 v{6+k}, 4, v{6+k}")
        A(f"v_lshl_add_u32 v{6+k}, v4, 8, v{6+k}")
    A("s_lshl_b32 s33, s25, 15")
    A("s_lshl_b32 s34, s3, 12")
    A("s_add_u32 s33, s33, s34")
    A("s_add_u32 s34, s34, 32768")
    A("s_mov_b32 m0, s34")
    A("v_xor_b32 v14, v4, v3")
    A("v_lshlrev_b32 v14, 4, v14")
    A("v_lshl_add_u32 v14, v3, 8, v14")
    A("s_lshl_b32 s54, s28, 13")
    A("s_add_u32 s54, s54, 32768")
    for s in range(4):
        A(f"v_xor_b32 v{112+s}, {64*s}, v14")
        A(f"v_add_u32 v{112+s}, s54, v{112+s}")
    A("s_waitcnt lgkmcnt(0)")
    srd(36, PW1, 257 * 512)
    WL = 48
    for j in range(4):
        A(f"buffer_load_dwordx4 {vr(WL+4*j,4)}, v5, s[36:39], s30 offen offset:{j*512}")
    srd(40, PX, N * 256)
    if K1B0: A("s_barrier")
    for k in range(4):
        A(f"buffer_load_dwordx4 v{6+k}, s[40:43], s33 offen offset:{1024*k} lds")
    AF = 16
    srd(48, PWS, N * 512)
    A("s_waitcnt vmcnt(4)")
    stamp(1)
    PT = 64
    for pr in range(2):
        for dw in range(4):
            a, b = WL + 8*pr + dw, WL + 8*pr + 4 + dw
            A(f"v_perm_b32 v{PT+(2*dw)*2+pr}, v{b}, v{a}, s52")
            A(f"v_perm_b32 v{PT+(2*dw+1)*2+pr}, v{b}, v{a}, s53")
    for col in range(8):
        A(f"ds_write_b64 v11, {vr(PT+2*col,2)} offset:{(col>>2)*16384 + (col&3)*1024}")
    A("s_waitcnt vmcnt(0) lgkmcnt(0)")
    A("s_barrier")
    stamp(2)
    ACC = [80, 96]
    BB = [48, 52, 56, 60, 64, 68]
    ops = []
    for s in range(4):
        ops += [("x", 0, s), ("x", 1, s)] + [("w", s, t) for t in range(4)]
    def rd(op, wi):
        if op[0] == "x":
            A(f"ds_read_b128 {vr(AF+(op[1]*4+op[2])*4,4)}, v{112+op[2]} offset:{4096*op[1]}")
        else:
            A(f"ds_read_b128 {vr(BB[wi%6],4)}, v13 offset:{(op[1]*4+op[2])*1024}")
    widx = {}
    n = 0
    for i_, op in enumerate(ops):
        if op[0] == "w":
            widx[i_] = n; n += 1
    issued = 0
    def issue_upto(wlimit):
        nonlocal issued
        while issued < len(ops) and (ops[issued][0] == "x" or widx[issued] <= wlimit):
            rd(ops[issued], widx.get(issued, 0)); issued += 1
    for i_, op in enumerate(ops):
        if op[0] != "w": continue
        k = widx[i_]
        issue_upto(k + 4)
        A(f"s_waitcnt lgkmcnt({issued - 1 - i_})")
        s, t = op[1], op[2]
        for i in range(2):
            d = ACC[i] + 4*t
            c = "0" if s == 0 else vr(d, 4)
            A(f"v_mfma_f32_16x16x32_bf16 {vr(d,4)}, {vr(BB[k%6],4)}, {vr(AF+(i*4+s)*4,4)}, {c}")
    A("s_nop 1")
    stamp(4)
    for i in range(2):
        o0, o1 = 16 + 8*i, 20 + 8*i
        for t in range(4):
            f = [ACC[i] + 4*t + r for r in range(4)]
            for r in range(4):
                A(f"v_add_f32 v{f[r]}, 0, v{f[r]}")
            for r in range(4):
                A(f"v_add_u32 v{f[r]}, s58, v{f[r]}")
            for r in range(1, 4):
                A(f"v_sub_u32_sdwa v{f[r]}, v{f[r]}, v{f[r-1]} clamp dst_sel:DWORD dst_unused:UNUSED_PAD src0_sel:DWORD src1_sel:WORD_1")
            A(f"v_perm_b32 v{o0+t}, v{f[1]}, v{f[0]}, s53")
            A(f"v_perm_b32 v{o1+t}, v{f[3]}, v{f[2]}, s53")
        if "nop" not in EXP1:
            A(f"buffer_store_dwordx4 {vr(o0,4)}, v12, s[48:51], s{55+i} offen {STF}")
            A(f"buffer_store_dwordx4 {vr(o1,4)}, v12, s[48:51], s{55+i} offen offset:256 {STF}")
    stamp(5)
    if STAMP: A("s_waitcnt vmcnt(0)")
    stamp(6)
    stamp_flush(0, 3, 7)
    A("s_endpgm")

    L("K1_PREP")
    A("v_lshlrev_b32 v10, 4, v1")
    A(f"s_cmp_ge_u32 s2, {K1_CV}")
    A("s_cbranch_scc1 K1_CVEC")
    A(f"s_cmp_ge_u32 s2, {K1_W10}")
    A("s_cbranch_scc1 K1_W1")
    CM("w2: frag (nt, s) lane (c,g) jj -> w2[128(s>>2) + 64(s&1) + 32(g>>1) + 8 pi(jj&3) + 4((s>>1)&1) + 2(g&1) + (jj>>2)][16 nt + c]")
    A(f"s_sub_u32 s24, s2, {K1_W20}")
    A("s_lshr_b32 s25, s3, 2")
    A("s_lshl_b32 s25, s25, 15")
    A("s_and_b32 s26, s3, 1")
    A("s_lshl_b32 s26, s26, 14")
    A("s_add_u32 s25, s25, s26")
    A("s_bfe_u32 s26, s3, 0x10001")
    A("s_lshl_b32 s26, s26, 10")
    A("s_add_u32 s25, s25, s26")
    A("s_lshl_b32 s26, s24, 6")
    A("s_add_u32 s25, s25, s26")
    A("s_add_u32 s26, s25, 4096")
    A("v_lshrrev_b32 v5, 1, v4")
    A("v_lshlrev_b32 v5, 13, v5")
    A("v_and_b32 v6, 1, v4")
    A("v_lshl_add_u32 v5, v6, 9, v5")
    A("v_lshl_add_u32 v5, v3, 1, v5")
    A("s_lshl_b32 s27, s24, 14")
    A("s_lshl_b32 s28, s3, 10")
    A("s_add_u32 s27, s27, s28")
    A("s_add_u32 s28, s27, 8192")
    A("s_waitcnt lgkmcnt(0)")
    srd(36, PW2, 256 * 256)
    srd(40, PWS, 65536, off=WS_W2F)
    for t in range(2):
        for j in range(8):
            ro = (8*PI[j&3] + (j>>2))*256 + 32*t
            A(f"buffer_load_ushort v{16+8*t+j}, v5, s[36:39], s{25 + ro//4096} offen offset:{ro%4096}")
    A("s_waitcnt vmcnt(0)")
    for t in range(2):
        for jj in range(4):
            A(f"v_lshl_or_b32 v{32+4*t+jj}, v{17+8*t+2*jj}, 16, v{16+8*t+2*jj}")
    A("buffer_store_dwordx4 v[32:35], v10, s[40:43], s27 offen")
    A("buffer_store_dwordx4 v[36:39], v10, s[40:43], s28 offen")
    A("s_endpgm")
    L("K1_W1")
    CM("W1[128:256]: frag (w, s) lane (4g'' + i, g) jj -> w1[128 + 32s + 8g + jj][128(w>>3) + 32(w&3) + 8 pi(i) + 4((w>>2)&1) + g'']")
    A("s_lshr_b32 s24, s3, 2")
    A("s_and_b32 s25, s3, 3")
    A("s_lshl_b32 s26, s25, 14")
    A("s_lshl_b32 s27, s24, 8")
    A("s_add_u32 s26, s26, s27")
    A(f"s_add_u32 s26, s26, {128*512}")
    A("v_lshlrev_b32 v5, 12, v4")
    A("v_lshl_add_u32 v5, v3, 4, v5")
    A("s_lshl_b32 s27, s24, 15")
    A("s_lshl_b32 s28, s25, 10")
    A("s_add_u32 s27, s27, s28")
    A("s_add_u32 s28, s27, 16384")
    A("v_lshrrev_b32 v6, 2, v3")
    A("v_lshlrev_b32 v6, 12, v6")
    A("v_and_b32 v7, 3, v3")
    A("v_lshlrev_b32 v7, 2, v7")
    A("v_mov_b32 v8, 0x1302")
    A("v_bfe_u32 v7, v8, v7, 4")
    A("v_lshl_add_u32 v6, v7, 4, v6")
    A("v_lshl_add_u32 v6, v4, 8, v6")
    A("s_waitcnt lgkmcnt(0)")
    srd(36, PW1, 257 * 512)
    srd(40, PWS, 65536, off=WS_W1F)
    for jj in range(8):
        A(f"buffer_load_dwordx4 {vr(16+4*jj,4)}, v5, s[36:39], s26 offen offset:{jj*512}")
    A("s_waitcnt vmcnt(0)")
    for col in range(8):
        o = 48 + col * 4
        for pr in range(4):
            a, b = 16 + 8*pr + (col >> 1), 16 + 8*pr + 4 + (col >> 1)
            A(f"v_perm_b32 v{o+pr}, v{b}, v{a}, s{53 if col & 1 else 52}")
        A(f"buffer_store_dwordx4 {vr(o,4)}, v6, s[40:43], s{27+(col>>2)} offen offset:{(col&3)*64}")
    A("s_endpgm")
    L("K1_CVEC")
    CM("thread t < 256: l = t>>2, i = t&3: -log2e w1[256][phi(l, pi(i))], b1[phi(l, pi(i))] as f32; t < 128: b2[t] as f32")
    A("s_cmp_ge_u32 s3, 4")
    A("s_cbranch_scc1 K1_END")
    A("v_and_b32 v5, 3, v0")
    A("v_lshlrev_b32 v5, 2, v5")
    A("v_mov_b32 v8, 0x2031")
    A("v_bfe_u32 v5, v8, v5, 4")
    A("v_lshlrev_b32 v5, 3, v5")
    A("v_bfe_u32 v6, v0, 2, 2")
    A("v_add_u32 v5, v5, v6")
    A("v_lshl_add_u32 v5, v4, 5, v5")
    A("v_bfe_u32 v6, v0, 6, 1")
    A("v_lshl_add_u32 v5, v6, 2, v5")
    A("v_bfe_u32 v6, v0, 7, 1")
    A("v_lshl_add_u32 v5, v6, 7, v5")
    A("v_lshlrev_b32 v5, 1, v5")
    A("v_lshlrev_b32 v6, 1, v0")
    A("v_lshlrev_b32 v7, 2, v0")
    A(f"s_mov_b32 s24, {256*512}")
    A(f"s_mov_b32 s25, {hex(C_NLOG2E)}")
    A("s_waitcnt lgkmcnt(0)")
    srd(36, PW1, 257 * 512)
    srd(40, PB1, 512)
    srd(44, PB2, 256)
    srd(48, PWS, 2048 + 512, off=WS_CV)
    A("buffer_load_ushort v16, v5, s[36:39], s24 offen")
    A("buffer_load_ushort v17, v5, s[40:43], 0 offen")
    A("buffer_load_ushort v18, v6, s[44:47], 0 offen")
    A("s_waitcnt vmcnt(0)")
    for k in range(3):
        A(f"v_lshlrev_b32 v{16+k}, 16, v{16+k}")
    A("v_mul_f32 v16, s25, v16")
    A("buffer_store_dword v16, v7, s[48:51], 0 offen")
    A("buffer_store_dword v17, v7, s[48:51], 0 offen offset:1024")
    A("buffer_store_dword v18, v7, s[48:51], 0 offen offset:2048")
    A("s_endpgm")

    L("K1_BIN")
    A("v_lshlrev_b32 v5, 2, v0")
    A("v_lshlrev_b32 v6, 1, v0")
    A("v_mov_b32 v7, 0")
    A("v_mov_b32 v8, 1")
    A("ds_write_b32 v5, v7")
    A(f"s_mul_i32 s24, s2, {CH*4}")
    A(f"s_mul_i32 s25, s2, {CH*2}")
    A("s_movk_i32 s26, 0x1000")
    A("s_movk_i32 s27, 0x2000")
    A("s_lshl_b32 s28, s2, 8")
    A("s_add_u32 s29, s28, 8")
    A(f"s_movk_i32 s32, {CH - 4*512}")
    A(f"s_mov_b32 s33, {hex(FBASE)}")
    A(f"s_movk_i32 s34, {-NPB if NB == 250 else 625}")
    A("v_cmp_gt_u32 s[60:61], s32, v0")
    A("s_waitcnt lgkmcnt(0)")
    DST, REC, EV, RK, BN = 16, 24, 40, 48, 56
    so4 = ["0", "0", "s26", "s26", "s27"]; io4 = [0, 2048, 0, 2048, 0]
    so2 = ["0", "0", "0", "0", "s26"]; io2 = [0, 1024, 2048, 3072, 0]
    def csrd(d, p, off, nb):
        A(f"s_add_u32 s{d}, s{p}, s{off}")
        A(f"s_addc_u32 s{d+1}, s{p+1}, 0")
        A(f"s_and_b32 s{d+1}, s{d+1}, 0xffff")
        A(f"s_mov_b32 s{d+2}, {nb}")
        A(f"s_mov_b32 s{d+3}, 0x20000")
    csrd(36, PDST, 24, CH*4)
    for j in range(5):
        A(f"buffer_load_dword v{DST+j}, v5, s[36:39], {so4[j]} offen offset:{io4[j]}")
    csrd(40, PSRC, 24, CH*4)
    csrd(44, PE, 25, CH*2)
    for j in range(5):
        A(f"buffer_load_dword v{REC+2*j}, v5, s[40:43], {so4[j]} offen offset:{io4[j]}")
        A(f"buffer_load_ushort v{EV+j}, v6, s[44:47], {so2[j]} offen offset:{io2[j]}")
    srd(48, PWS, NB * NCH * 256, off=WS_SEG)
    A("s_barrier")
    for j in range(5):
        A(f"s_waitcnt vmcnt({14-j})")
        A(f"v_mul_u32_u24 v{BN+j}, {'0xcccd' if NB == 250 else 429497}, v{DST+j}")
        A(f"v_lshrrev_b32 v{BN+j}, {21 if NB == 250 else 24}, v{BN+j}")
        A(f"v_lshlrev_b32 v9, 2, v{BN+j}")
        if j == 4:
            A(f"v_mov_b32 v{RK+j}, {CAP}")
            A("s_mov_b64 exec, s[60:61]")
            A("s_cbranch_execz K1_B_SKIP4")
        A(f"ds_add_rtn_u32 v{RK+j}, v9, v8")
        if j == 4:
            L("K1_B_SKIP4")
            A("s_mov_b64 exec, -1")
        if NB == 250:
            A(f"v_mad_i32_i24 v{DST+j}, v{BN+j}, s34, v{DST+j}")
        else:
            A(f"v_mad_u32_u24 v10, v{BN+j}, s34, 15")
            A("v_lshrrev_b32 v10, 4, v10")
            A(f"v_sub_u32 v{DST+j}, v{DST+j}, v10")
        A(f"v_lshlrev_b32 v{BN+j}, 14, v{BN+j}")
        A(f"v_lshlrev_b32 v{DST+j}, 2, v{DST+j}")
    stamp(1)
    A("v_mov_b32 v11, 0x7ffff000")
    for j in range(5):
        A(f"s_waitcnt vmcnt({8-2*j+j}) lgkmcnt({0 if (j >= 3 or STAMP) else 3-j})")
        A(f"v_lshl_or_b32 v{REC+2*j+1}, v{EV+j}, 16, v{DST+j}")
        A(f"v_cmp_gt_u32 vcc, {CAP}, v{RK+j}")
        A(f"v_lshl_or_b32 v{REC+2*j}, v{REC+2*j}, 9, s33")
        A(f"v_lshl_add_u32 v9, v{RK+j}, 3, v{BN+j}")
        A("v_cndmask_b32 v9, v11, v9, vcc")
        if "norec" in EXP1: A("v_mov_b32 v9, v11")
        A(f"buffer_store_dwordx2 {vr(REC+2*j,2)}, v9, s[48:51], s29 offen {STB}")
    stamp(2)
    A("s_barrier")
    A("ds_read_b32 v10, v5")
    A("v_lshlrev_b32 v9, 14, v0")
    A("s_waitcnt lgkmcnt(0)")
    if "norec" in EXP1: A("v_mov_b32 v10, 0")
    if "nocnt" in EXP1: A("v_mov_b32 v9, v11")
    A(f"buffer_store_dword v10, v9, s[48:51], s28 offen {STB}")
    stamp(3)
    if STAMP: A("s_waitcnt vmcnt(0)")
    stamp(4)
    stamp_flush(0, 3, 5)
    L("K1_END")
    A("s_endpgm")

QROW, HROW = 1040, 528
L_CNT = 0
L_FLAG = 256
L_SFL = 272
L_ZROW = 352
ZERO_B = 864
L_PRIV = 896
PRIV_N = 64 + R + 8
PRIV_B = PRIV_N * 8
L_H = L_PRIV + 16 * PRIV_B
L_SIDE = L_H + NPB * HROW
L_Q = L_SIDE + 16 * 1024
L_XT = L_Q + NPB * QROW
L_LIST = L_XT + 16 * 1024
K2_LDS = L_LIST + 2048 * 8
assert K2_LDS <= 163840 and PRIV_N % 4 == 0 and R == 8 and L_XT % 1024 != -1 and L_H % 16 == 0 and L_Q % 16 == 0
WIN = 16 * 63
DUMMY = FBASE + 0x7FF000

def gen_k2():
    kernel_begin("k2_kernel")
    VLF, VH8, VL16, VT16, VQ16 = 3, 4, 5, 6, 7
    W, Q, NN, DD, Z, Z2, T, LO, PZ = 8, 12, 16, 20, 24, 28, 32, 36, 38
    VA, VP, VDEG, VB4, VCNT, VPL, VM, VEND = 40, 41, 42, 43, 44, 45, 46, 47
    EV, OG, DAT = 48, [56, 60], 64
    AD, OUTA, OV = 80, 83, 84
    B2F = 92
    W2R = 96
    W1F, B1P, RC, TI = 96, 112, 116, 120
    SACC = 100
    ST, SW, SO, SX = 24, 28, 32, 36
    MA, MB = 40, 42
    SC = 44
    SMODE, SFIRST, SPOS, SQD, SCH, SFAST = 46, 47, 48, 49, 50, 51
    SOV, SM = 52, 54
    SREM, STOT, SLP, SW2, SNN, SWV = 56, 57, 58, 59, 60, 3
    SN40, SEX = 61, 62
    T0, T1, T2, T3, TP = 64, 65, 66, 67, 68
    STAIL, SSIDE = 70, 71
    SQM = 4
    SW1, SNB = 14, 15
    SLEN, SOUT = 12, 13
    C2 = f"s[{SC}:{SC+1}]"
    NLA, NLB, RKA, RKB, PA_, PB_, X0, X1 = 28, 29, 30, 31, 32, 33, 34, 35

    A("s_load_dwordx8 s[4:11], s[0:1], 0")
    A("s_load_dwordx2 s[20:21], s[0:1], 64")
    A("s_load_dwordx2 s[22:23], s[0:1], 80")
    stamp(0)
    if STAMP: A("s_memtime s[94:95]")
    A(f"s_cmp_ge_u32 s2, {NB}")
    A("s_cbranch_scc1 K2_END")
    A("v_and_b32 v1, 63, v0")
    A("v_lshrrev_b32 v48, 6, v0")
    A(f"v_lshlrev_b32 v{VT16}, 4, v0")
    A(f"v_readfirstlane_b32 s{SWV}, v48")
    A("v_lshlrev_b32 v2, 2, v1")
    A(f"s_lshl_b32 s{T0}, s2, 14")
    A(f"s_add_u32 s{T0}, s{T0}, {hex(WS_SEG)}")
    if NB == 250:
        A(f"s_mul_i32 s{SN40}, s2, {NPB}")
        A(f"s_mov_b32 s{SNB}, {NPB}")
    else:
        A(f"s_mul_i32 s{SN40}, s2, 625")
        A(f"s_add_u32 s{SNB}, s{SN40}, 640")
        A(f"s_add_u32 s{SN40}, s{SN40}, 15")
        A(f"s_lshr_b32 s{SN40}, s{SN40}, 4")
        A(f"s_lshr_b32 s{SNB}, s{SNB}, 4")
        A(f"s_sub_u32 s{SNB}, s{SNB}, s{SN40}")
    for k in range(4):
        A(f"v_mov_b32 v{52+k}, 0")
    A(f"v_cmp_gt_u32 vcc, {ZERO_B//16}, v0")
    A(f"s_mul_i32 s{T1}, s{SWV}, {PRIV_B}")
    A(f"s_add_u32 s{T1}, s{T1}, {L_PRIV}")
    A(f"s_and_saveexec_b64 s[{SEX}:{SEX+1}], vcc")
    A("s_cbranch_execz K2_Z1")
    A(f"ds_write_b128 v{VT16}, v[52:55]")
    L("K2_Z1")
    A(f"s_mov_b64 exec, s[{SEX}:{SEX+1}]")
    A(f"v_add_u32 v{VPL}, s{T1}, v2")
    A(f"v_mov_b32 v56, {hex(DUMMY)}")
    A(f"ds_write_b32 v{VPL}, v56")
    A(f"ds_write_b32 v{VPL}, v56 offset:{(PRIV_N-64)*4}")
    A(f"v_mov_b32 v{VP}, s{T1}")
    A("v_and_b32 v48, 15, v1")
    A("v_lshrrev_b32 v49, 4, v1")
    A("v_lshrrev_b32 v50, 4, v0")
    A("v_xor_b32 v51, v50, v48")
    A("v_and_b32 v51, 15, v51")
    A("v_lshlrev_b32 v51, 4, v51")
    A("v_lshl_add_u32 v51, v50, 8, v51")
    A(f"s_lshl_b32 s{SSIDE}, s{SWV}, 10")
    A(f"s_add_u32 s{T2}, s{SSIDE}, {L_XT}")
    A(f"s_mov_b32 m0, s{T2}")
    A(f"s_add_u32 s{SSIDE}, s{SSIDE}, {L_SIDE}")
    A(f"s_lshl_b32 s{T2}, s{SN40}, 8")
    A(f"s_cmp_lt_u32 s{SWV}, 12")
    A(f"s_cselect_b32 s{T2}, s{T2}, 0x7ffff000")
    A(f"v_lshlrev_b32 v{VL16}, 4, v1")
    A("s_waitcnt lgkmcnt(0)")
    srd(SW, PWS, WS_BYTES)
    A(f"buffer_load_dwordx4 {vr(RC,4)}, v{VT16}, s[{SW}:{SW+3}], s{T0} offen")
    srd(SX, PX, N * 256)
    A(f"buffer_load_dwordx4 v51, s[{SX}:{SX+3}], s{T2} offen lds")
    if SPF:
        A(f"s_lshr_b32 s{T1}, s2, 3")
        A(f"s_lshl_b32 s{T1}, s{T1}, 4")
        A(f"s_add_u32 s{T1}, s{T1}, s{SWV}")
        A(f"s_mul_i32 s{T1}, s{T1}, {SPF*128}")
        A(f"s_add_u32 s16, s{PWS}, s{T1}")
        A(f"s_addc_u32 s17, s{PWS+1}, 0")
        for k in range(SPF):
            A(f"s_load_dword s{18 + (k&1)}, s[16:17], {k*128}")
    A("s_barrier")
    if XS == "g": stamp(4)
    A(f"s_lshl_b32 s{T1}, s{SWV}, 12")
    A(f"s_add_u32 s{T2}, s{T1}, {hex(WS_W1F)}")
    A("v_lshlrev_b32 v52, 4, v50")
    A(f"s_mov_b32 s{T3}, {hex(WS_CV)}")
    A(f"buffer_load_dwordx4 {vr(B1P,4)}, v52, s[{SW}:{SW+3}], s{T3} offen offset:1024")
    for s in range(NE):
        A(f"buffer_load_dwordx4 {vr(W1F+4*s,4)}, v{VL16}, s[{SW}:{SW+3}], s{T2} offen offset:{s*1024}")
    A(f"s_mov_b32 s{SW1}, s{T2}")
    A(f"v_and_b32 v{OV+1}, 0x1ff, v52")
    NPRE = 7
    assert not PFL
    if PFL:
        A(f"s_lshr_b32 s{T3}, s2, 3")
        A(f"s_mul_i32 s{T3}, s{T3}, {PFL*128}")
        A(f"s_sub_u32 s{T2}, 15, s{SWV}")
        A(f"s_lshl_b32 s{T1}, s{T2}, 13")
        A(f"s_add_u32 s{T3}, s{T3}, s{T1}")
        A(f"s_cmp_lt_u32 s{T2}, {PFL//64}")
        A(f"s_cselect_b32 s{T3}, s{T3}, 0x7ff00000")
        A("v_lshlrev_b32 v55, 7, v1")
        A(f"buffer_load_dword v{OV}, v55, s[{SW}:{SW+3}], s{T3} offen sc1")
        NPRE += 1
    A(f"s_mov_b32 s{SC}, {hex(C_NLOG2E)}")
    A(f"s_mov_b32 s{SC+1}, {hex(C_NLOG2E)}")
    A(f"s_mov_b32 s{SMODE}, 0")
    A(f"s_mov_b32 s{SQD}, 0")
    A(f"s_sub_u32 s{ST}, s{PWS}, {hex(FBASE)}")
    A(f"s_subb_u32 s{ST+1}, s{PWS+1}, 0")
    A(f"s_and_b32 s{ST+1}, s{ST+1}, 0xffff")
    A(f"s_mov_b32 s{ST+2}, {hex(FBASE + N*512)}")
    A(f"s_mov_b32 s{ST+3}, 0x20000")
    srd(SO, POUT, N * D * 2)
    A(f"v_cvt_f32_u32 v{VLF}, v2")
    A(f"v_lshlrev_b32 v{VH8}, 3, v1")
    A(f"v_add_u32 v{VH8}, {L_H}, v{VH8}")
    A(f"v_add_u32 v{VQ16}, {L_Q}, v{VL16}")
    A(f"v_cvt_f32_u32 v{VM}, v1")
    A(f"v_rcp_f32 v{VM}, v{VM}")
    A("v_xor_b32 v54, v49, v48")
    A(f"v_mul_f32 v{VM}, 0x47800000, v{VM}")
    A("v_lshlrev_b32 v54, 4, v54")
    A(f"v_cvt_u32_f32 v{VM}, v{VM}")
    A("v_lshl_add_u32 v54, v48, 8, v54")
    A(f"v_add_u32 v{VM}, 1, v{VM}")
    for s in range(4):
        A(f"v_xor_b32 v{Q+s}, {64*s}, v54")
        A(f"v_add_u32 v{Q+s}, {L_XT}, v{Q+s}")
    A(f"s_movk_i32 s{T1}, {QROW}")
    A(f"v_mad_u32_u24 v{VA}, v48, s{T1}, v52")
    A(f"v_add_u32 v{VA}, {L_Q}, v{VA}")
    A(f"s_sub_u32 s{T2}, s{SNB}, 32")
    A(f"v_cmp_gt_u32 s[{SQM}:{SQM+1}], s{T2}, v48")
    A(f"s_movk_i32 s{T1}, {HROW}")
    A("v_lshlrev_b32 v55, 4, v49")
    A(f"v_mad_u32_u24 v{AD}, v48, s{T1}, v55")
    A(f"v_add_u32 v{LO+1}, {L_ZROW}, v55")
    A(f"v_lshlrev_b32 v{OUTA}, 8, v48")
    A(f"v_lshl_add_u32 v{OUTA}, v49, 3, v{OUTA}")
    A(f"v_lshlrev_b32 v{LO}, 2, v48")
    A(f"s_lshl_b32 s{SOUT}, s{SN40}, 8")
    A(f"s_lshl_b32 s{T2}, s{SWV}, 5")
    A(f"s_add_u32 s{SOUT}, s{SOUT}, s{T2}")
    A("s_branch K2_START")

    L("K2_PASS")
    A(f"s_lshl_b32 s{T0}, s2, 14")
    A(f"s_add_u32 s{T0}, s{T0}, {hex(WS_SEG)}")
    A(f"buffer_load_dwordx4 {vr(RC,4)}, v{VT16}, s[{SW}:{SW+3}], s{T0} offen")
    A("s_waitcnt vmcnt(0)")
    L("K2_START")
    A(f"v_mov_b32 v{VDEG}, 0")
    A(f"v_mov_b32 v{PZ}, 0")
    A(f"v_mov_b32 v{PZ+1}, 0")
    A(f"s_mov_b32 s{SFIRST}, 1")
    A(f"v_and_b32 v{X0}, 15, v0")
    A(f"v_lshlrev_b32 v{X0}, 1, v{X0}")
    A(f"v_add_u32 v{X1}, -1, v{X0}")
    A(f"s_waitcnt vmcnt({NE+2})")
    stamp(1)
    A(f"v_mov_b32_dpp v{PA_}, v{RC} row_newbcast:0 row_mask:0xf bank_mask:0xf")
    A(f"v_cmp_lt_u32 vcc, {CAP}, v{PA_}")
    A(f"v_cmp_lt_u32 s[{MA}:{MA+1}], v{X1}, v{PA_}")
    A(f"v_cmp_lt_u32 s[{MB}:{MB+1}], v{X0}, v{PA_}")
    A("s_cbranch_vccz K2_ROUND")
    A(f"s_andn2_b64 s[{MA}:{MA+1}], s[{MA}:{MA+1}], vcc")
    A(f"s_andn2_b64 s[{MB}:{MB+1}], s[{MB}:{MB+1}], vcc")
    A(f"s_and_saveexec_b64 s[{SEX}:{SEX+1}], vcc")
    A(f"v_lshrrev_b32 v{X0}, 4, v0")
    A(f"v_lshrrev_b32 v{X1}, 5, v{X0}")
    A(f"v_lshlrev_b32 v{X1}, 2, v{X1}")
    A(f"v_and_b32 v{X0}, 31, v{X0}")
    A(f"v_mov_b32 v{PB_}, 1")
    A(f"v_lshlrev_b32 v{PB_}, v{X0}, v{PB_}")
    A(f"ds_or_b32 v{X1}, v{PB_} offset:{L_FLAG}")
    A(f"s_mov_b64 exec, s[{SEX}:{SEX+1}]")

    L("K2_ROUND")
    A(f"v_and_b32 v{NLA}, 0xfc, v{RC+1}")
    A(f"v_and_b32 v{NLB}, 0xfc, v{RC+3}")
    A(f"v_mov_b32 v{X0}, 4")
    A(f"s_mov_b64 exec, s[{MA}:{MA+1}]")
    A("s_cbranch_execz K2_R1")
    A(f"ds_add_rtn_u32 v{RKA}, v{NLA}, v{X0}")
    L("K2_R1")
    A(f"s_mov_b64 exec, s[{MB}:{MB+1}]")
    A("s_cbranch_execz K2_R2")
    A(f"ds_add_rtn_u32 v{RKB}, v{NLB}, v{X0}")
    L("K2_R2")
    A("s_mov_b64 exec, -1")
    A(f"v_mov_b32 v{X1}, 0")
    A(f"s_cmp_lg_u32 s{SQD}, 0")
    A("s_cbranch_scc1 K2_R2B")
    A(f"s_mov_b32 s{T3}, {hex(WS_CV)}")
    for s in range(NE, 4):
        A(f"buffer_load_dwordx4 {vr(W1F+4*s,4)}, v{VL16}, s[{SW}:{SW+3}], s{SW1} offen offset:{s*1024}")
    A(f"buffer_load_dwordx4 {vr(W,4)}, v{VL16}, s[{SW}:{SW+3}], s{T3} offen")
    A(f"buffer_load_dwordx4 {vr(B2F,4)}, v{OV+1}, s[{SW}:{SW+3}], s{T3} offen offset:2048")
    L("K2_R2B")
    A(f"s_waitcnt vmcnt({NPRE}) lgkmcnt(0)")
    A("s_barrier")
    if XS == "e": stamp(4)
    if XS == "f":
        A("s_waitcnt vmcnt(0)"); stamp(4)
    A(f"ds_read_b32 v{VCNT}, v2")
    A(f"ds_read_b64 {vr(NN,2)}, v{X1} offset:{L_FLAG}")
    A("s_waitcnt lgkmcnt(1)")
    A(f"v_add_u32_dpp v{VEND}, v{VCNT}, v{VCNT} row_shr:1 row_mask:0xf bank_mask:0xf bound_ctrl:0")
    A(f"v_add_u32 v{VDEG}, v{VDEG}, v{VCNT}")
    for k, ctl in enumerate(("row_shr:2 row_mask:0xf bank_mask:0xf bound_ctrl:0",
                "row_shr:4 row_mask:0xf bank_mask:0xf bound_ctrl:0", "row_shr:8 row_mask:0xf bank_mask:0xf bound_ctrl:0",
                "row_bcast:15 row_mask:0xa bank_mask:0xf", "row_bcast:31 row_mask:0xc bank_mask:0xf")):
        A("s_nop 0" if k == 0 else "s_nop 1")
        A(f"v_add_u32_dpp v{VEND}, v{VEND}, v{VEND} {ctl}")
    A(f"v_sub_u32 v{VB4}, v{VEND}, v{VCNT}")
    A("s_waitcnt lgkmcnt(0)")
    A(f"v_readlane_b32 s{STOT}, v{VEND}, 63")
    A(f"ds_bpermute_b32 v{PA_}, v{NLA}, v{VB4}")
    A(f"ds_bpermute_b32 v{PB_}, v{NLB}, v{VB4}")
    A(f"s_cmp_eq_u32 s{SFIRST}, 0")
    A("s_cbranch_scc1 K2_R3")
    A(f"v_readfirstlane_b32 s{SOV}, v{NN}")
    A(f"v_readfirstlane_b32 s{SOV+1}, v{NN+1}")
    A(f"s_mov_b32 s{SPOS}, {CH}")
    L("K2_R3")
    A(f"s_add_u32 s{T1}, s{STOT}, 60")
    A(f"s_lshr_b32 s{SLEN}, s{T1}, 6")
    A(f"s_lshl_b32 s{T1}, s{SLEN}, 2")
    A(f"s_add_u32 s{T2}, s{T1}, 4")
    A(f"v_cmp_lt_u32 vcc, s{T2}, v{VCNT}")
    A(f"s_and_b32 s{T3}, s{SLEN}, 63")
    A(f"v_readlane_b32 s{T0}, v{VM}, s{T3}")
    A(f"s_andn2_b32 s{SFAST}, s{SFIRST}, s{SMODE}")
    A(f"s_cmp_gt_u32 s{STOT}, {4*WIN}")
    A(f"s_cselect_b32 s{SFAST}, 0, s{SFAST}")
    A(f"s_sub_u32 s{T1}, {PRIV_B}, s{T1}")
    A(f"s_or_b64 vcc, vcc, s[{SOV}:{SOV+1}]")
    A(f"s_cselect_b32 s{SFAST}, 0, s{SFAST}")
    A(f"s_cmp_eq_u32 s{SFAST}, 0")
    A("s_waitcnt lgkmcnt(0)")
    A(f"v_add_u32 v{PA_}, v{PA_}, v{RKA}")
    A(f"v_add_u32 v{PB_}, v{PB_}, v{RKB}")
    A("s_cbranch_scc1 K2_WL")
    A(f"v_mul_u32_u24 v{RKA}, s{T0}, v{PA_}")
    A(f"v_mul_u32_u24 v{RKB}, s{T0}, v{PB_}")
    A(f"v_lshrrev_b32 v{RKA}, 18, v{RKA}")
    A(f"v_lshrrev_b32 v{RKB}, 18, v{RKB}")
    A(f"v_mad_u32_u24 v{PA_}, v{RKA}, s{T1}, v{PA_}")
    A(f"v_mad_u32_u24 v{PB_}, v{RKB}, s{T1}, v{PB_}")
    for tag, m, ad, rc in (("A", MA, PA_, RC), ("B", MB, PB_, RC + 2)):
        A(f"s_mov_b64 exec, s[{m}:{m+1}]")
        A(f"s_cbranch_execz K2_P{tag}")
        A(f"ds_write_b32 v{ad}, v{rc} offset:{L_PRIV}")
        A(f"ds_write_b32 v{ad}, v{rc+1} offset:{L_PRIV + PRIV_N*4}")
        L(f"K2_P{tag}")
    A("s_branch K2_WB")
    L("K2_WL")
    A(f"v_lshlrev_b32 v{PA_}, 1, v{PA_}")
    A(f"v_lshlrev_b32 v{PB_}, 1, v{PB_}")
    A(f"v_add_u32 v{PA_}, {L_LIST}, v{PA_}")
    A(f"v_add_u32 v{PB_}, {L_LIST}, v{PB_}")
    for tag, m, ad, rc in (("A", MA, PA_, RC), ("B", MB, PB_, RC + 2)):
        A(f"s_mov_b64 exec, s[{m}:{m+1}]")
        A(f"s_cbranch_execz K2_W{tag}")
        A(f"ds_write_b64 v{ad}, {vr(rc,2)}")
        L(f"K2_W{tag}")
    A("s_mov_b64 exec, -1")
    A(f"s_mov_b32 s{SW2}, 1")
    A("s_waitcnt lgkmcnt(0)")
    A("s_barrier")
    stamp(2)
    def row_load(d, p, pair=False):
        if not pair:
            A(f"v_add_u32 v{p}, v{p}, v2")
        A(f"buffer_load_dword v{d}, v{p}, s[{ST}:{ST+3}], 0 offen")
        A(f"buffer_load_dword v{d+1}, v{p}, s[{ST}:{ST+3}], 0 offen offset:256")
    for k in range(R // 4):
        A(f"ds_read_b128 {vr(TI+4*k,4)}, v{VP} offset:{16*k}")
    A(f"s_cmp_lg_u32 s{SWV}, 0")
    A("s_cbranch_scc1 K2_R4")
    A(f"ds_write_b32 v2, v{X1}")
    L("K2_R4")
    A(f"s_cmp_lg_u32 s{SQD}, 0")
    A("s_cbranch_scc1 K2_SLOW")
    A(f"s_mov_b32 s{SQD}, 1")
    AT = [72, 76, Z2, T, RC, OG[1]]
    seq = [(mt, s) for s in range(4) for mt in range(3)]
    PRE = 5
    for k in range(PRE):
        mt, s = seq[k]
        A(f"ds_read_b128 {vr(AT[k%6],4)}, v{Q+s} offset:{4096*mt}")
    A(f"s_mul_i32 s{T0}, s{SLEN}, s{SWV}")
    A(f"s_add_u32 s{T3}, s{T0}, s{SLEN}")
    A(f"s_lshl_b32 s{T0}, s{T0}, 2")
    A(f"s_lshl_b32 s{T3}, s{T3}, 2")
    A(f"s_min_u32 s{T0}, s{T0}, s{STOT}")
    A(f"s_min_u32 s{T3}, s{T3}, s{STOT}")
    A(f"s_sub_u32 s{SNN}, s{T3}, s{T0}")
    A(f"s_lshr_b32 s{SNN}, s{SNN}, 2")
    A(f"s_waitcnt lgkmcnt({PRE})")
    assert F1 == 4
    for k in range(F1):
        row_load(DAT + 2*k, TI + k)
    A(f"v_cmp_gt_u32 vcc, s{T0}, v{VB4}")
    A(f"v_cmp_lt_u32 s[{TP}:{TP+1}], s{T0}, v{VEND}")
    A(f"s_and_b64 vcc, vcc, s[{TP}:{TP+1}]")
    A(f"s_cselect_b32 s{SLP}, 1, 0")
    A(f"v_cmp_gt_u32 vcc, s{T3}, v{VB4}")
    A(f"v_cmp_lt_u32 s[{TP}:{TP+1}], s{T3}, v{VEND}")
    A(f"s_and_b64 vcc, vcc, s[{TP}:{TP+1}]")
    A(f"s_cselect_b32 s{STAIL}, 1, 0")
    for k, (mt, s) in enumerate(seq):
        if k + PRE < 12:
            m2, s2 = seq[k+PRE]
            A(f"ds_read_b128 {vr(AT[(k+PRE)%6],4)}, v{Q+s2} offset:{4096*m2}")
        w = f"s_waitcnt lgkmcnt({min(PRE, 11-k)})"
        if mt == 0: w += f" vmcnt({NPRE-2-s+2*F1})"
        A(w)
        c = vr(B1P, 4) if s == 0 else vr(NN+4*mt, 4)
        A(f"v_mfma_f32_16x16x32_bf16 {vr(NN+4*mt,4)}, {vr(W1F+4*s,4)}, {vr(AT[k%6],4)}, {c}")
    A(f"ds_read_b32 v{Q}, v{VPL} offset:{PRIV_N*4}")
    for k in range(R // 4):
        A(f"ds_read_b128 {vr(EV+4*k,4)}, v{VP} offset:{PRIV_N*4 + 16*k}")
    A(f"ds_read_b128 {vr(OG[0],4)}, v{VP} offset:{R*4}")
    A(f"v_cmp_le_u32 vcc, s{SNN}, v1")
    A(f"s_movk_i32 s{T2}, {QROW//4}")
    A(f"s_movk_i32 s{T3}, {HROW//4}")
    A(f"s_mov_b32 s{SREM}, s{SNN}")
    for mt in range(3):
        for r in range(4):
            A(f"v_mul_f32 v{NN+4*mt+r}, s{SC}, v{NN+4*mt+r}")
        if mt == 2:
            A(f"s_mov_b64 exec, s[{SQM}:{SQM+1}]")
        A(f"ds_write_b128 v{VA}, {vr(NN+4*mt,4)} offset:{16*mt*QROW}")
    A("s_mov_b64 exec, -1")
    A("s_waitcnt lgkmcnt(0)")
    A("s_barrier")
    stamp(3)
    A(f"s_cmp_eq_u32 s{SFAST}, 0")
    A("s_cbranch_scc1 K2_SLOW")
    A(f"v_and_b32 v{Z2}, 0xfc, v{EV}")
    A(f"v_and_b32 v{Q+1}, 0xfc, v{Q}")
    A(f"v_mad_u32_u24 v{Z2+1}, v{Z2}, s{T2}, v{VQ16}")
    A("s_setprio 3" if PRIO else "s_nop 0")
    A(f"v_mov_b32_dpp v{Q+2}, v{Q+1} wave_shr:1 row_mask:0xf bank_mask:0xf")
    A(f"v_cmp_ne_u32 s[{SM}:{SM+1}], v{Q+1}, v{Q+2}")
    A(f"ds_read_b128 {vr(Q,4)}, v{Z2+1}")
    A(f"s_or_b64 s[{SM}:{SM+1}], s[{SM}:{SM+1}], vcc")
    for k in range(F1, R):
        row_load(DAT + 2*k, TI + k)
    for k in range(4):
        A(f"v_add_u32 v{OG[0]+k}, v{OG[0]+k}, v2")
    def tail_prep():
        for mt in range(3):
            A(f"v_add_u32 v{T+3}, {64*mt}, v{LO}")
            A(f"ds_bpermute_b32 v{T+mt}, v{T+3}, v{VDEG}")
        A(f"v_add_u32 v{AD+2}, {L_H + 32*HROW}, v{AD}")
        A(f"v_add_u32 v{AD+1}, {L_H + 16*HROW}, v{AD}")
        A(f"v_add_u32 v{AD}, {L_H}, v{AD}")
        A("s_waitcnt lgkmcnt(0)")
        for mt in range(3):
            A(f"v_cmp_eq_u32 vcc, 0, v{T+mt}")
            A(f"v_cvt_f32_u32 v{T+mt}, v{T+mt}")
            A(f"v_mul_f32 v{T+mt}, 0.25, v{T+mt}") if False else A(f"v_mul_f32 v{T+mt}, 0x3e800000, v{T+mt}")
            A(f"v_cndmask_b32 v{AD+mt}, v{AD+mt}, v{LO+1}, vcc")
            A(f"v_pk_mul_f32 {vr(OV+4*mt,2)}, {vr(B2F,2)}, {vr(T+(mt&2),2)} " + ("op_sel_hi:[1,0]" if mt % 2 == 0 else "op_sel:[0,1]"))
            A(f"v_pk_mul_f32 {vr(OV+4*mt+2,2)}, {vr(B2F+2,2)}, {vr(T+(mt&2),2)} " + ("op_sel_hi:[1,0]" if mt % 2 == 0 else "op_sel:[0,1]"))
    A(f"s_cmp_ge_u32 s{SWV}, 8")
    A("s_cbranch_scc1 K2_NOTP")
    A(f"s_waitcnt vmcnt({2*R})")
    tail_prep()
    L("K2_NOTP")
    A(f"v_mov_b32 v{LO}, v{Z2}")
    VW = 2 * (R - 1)
    if STAMP and not XS:
        A(f"s_waitcnt vmcnt({VW})")
        stamp(4)
    A(f"s_cmp_eq_u32 s{SNN}, 0")
    A("s_cbranch_scc1 K2_WDONE")
    A("s_branch K2_HC0")

    def e_sel(s):
        base = EV + (s & ~1)
        return (vr(base, 2), "op_sel_hi:[1,0,1]") if s % 2 == 0 else (vr(base, 2), "op_sel:[0,1,0]")
    def part_z1(s, z):
        ep, es = e_sel(s)
        return [f"v_pk_fma_f32 {vr(z,2)}, {vr(W,2)}, {ep}, {vr(Q,2)} {es}",
                f"v_pk_fma_f32 {vr(z+2,2)}, {vr(W+2,2)}, {ep}, {vr(Q+2,2)} {es}"]
    def part_z2(s, z, zo=None):
        d = DAT + 2*s
        zo = z if zo is None else zo
        return [f"v_lshlrev_b64 {vr(LO,2)}, 16, {vr(d,2)}",
                f"v_pk_fma_f32 {vr(zo,2)}, {vr(d,2)}, {C2}, {vr(z,2)}",
                f"v_pk_fma_f32 {vr(zo+2,2)}, {vr(LO,2)}, {C2}, {vr(z+2,2)}"]
    def part_exp(z): return [f"v_exp_f32 v{T+k}, v{z+k}" for k in range(4)]
    def part_nd(z):
        return [f"v_pk_fma_f32 {vr(NN,2)}, {vr(NN,2)}, {vr(T,2)}, {vr(NN,2)}",
                f"v_pk_fma_f32 {vr(NN+2,2)}, {vr(NN+2,2)}, {vr(T+2,2)}, {vr(NN+2,2)}",
                f"v_pk_fma_f32 {vr(NN,2)}, {vr(z,2)}, {vr(DD,2)}, {vr(NN,2)}",
                f"v_pk_fma_f32 {vr(NN+2,2)}, {vr(z+2,2)}, {vr(DD+2,2)}, {vr(NN+2,2)}",
                f"v_pk_fma_f32 {vr(DD,2)}, {vr(DD,2)}, {vr(T,2)}, {vr(DD,2)}",
                f"v_pk_fma_f32 {vr(DD+2,2)}, {vr(DD+2,2)}, {vr(T+2,2)}, {vr(DD+2,2)}"]
    def addr_prep(k):
        A("s_waitcnt lgkmcnt(0)")
        A(f"v_pk_add_f32 {vr(OG[k],2)}, {vr(OG[k],2)}, v[2:3] op_sel:[0,1]")
        A(f"v_pk_add_f32 {vr(OG[k]+2,2)}, {vr(OG[k]+2,2)}, v[2:3] op_sel:[0,1]")
    def refill(s):
        og = OG[(s // 4) % 2]
        if s % 4 == 0:
            A(f"ds_read_b128 {vr(OG[(s//4+1)%2],4)}, v{VP} offset:{(R+s+4)*4}")
        if "noload" not in EXP:
            row_load(DAT + 2*s, og + s % 4, pair=True)
        if s % 4 == 3:
            addr_prep((s // 4 + 1) % 2)
        if s % 4 == 3:
            A(f"ds_read_b128 {vr(EV+s-3,4)}, v{VP} offset:{PRIV_N*4 + (R+s-3)*4}")
    def w2_load():
        A(f"s_mov_b32 s{SW2}, 0")
        A(f"s_lshl_b32 s{T0}, s{SWV}, 13")
        A(f"s_add_u32 s{T0}, s{T0}, {hex(WS_W2F)}")
        A(f"s_add_u32 s{T1}, s{T0}, 4096")
        for k in range(8):
            A(f"buffer_load_dwordx4 {vr(W2R+4*k,4)}, v{VL16}, s[{SW}:{SW+3}], s{T0 + k//4} offen offset:{(k%4)*1024}")
    NG = R // 4
    nocomp = "nocomp" in EXP
    L("K2_LOOP")
    for g in range(NG):
        L(f"K2_G{g}")
        A(f"s_and_b32 s{T0}, s{SM}, {hex(0xF << (4*g))}")
        A(f"s_cbranch_scc1 K2_S{4*g}")
        zz = [Z, Z2]
        s0 = 4*g
        for x in part_z1(s0, zz[0]): A(x)
        A(f"s_waitcnt vmcnt({VW})")
        for x in part_z2(s0, zz[0]): A(x)
        refill(s0)
        for k in range(4):
            s = s0 + k
            z, zn = zz[k % 2], zz[(k + 1) % 2]
            ex, nd = part_exp(z), part_nd(z)
            if nocomp: ex = ["s_nop 0"] * 4; nd = ["s_nop 0"] * 6
            if k < 3:
                a, b = part_z1(s + 1, zn), part_z2(s + 1, zn)
                A(ex[0]); A(a[0]); A(ex[1]); A(a[1]); A(ex[2])
                A(f"s_waitcnt vmcnt({VW})")
                A(b[0]); A(ex[3]); A(nd[0]); A(b[1]); A(nd[1]); A(nd[2]); A(b[2]); A(nd[3])
                refill(s + 1)
                A(nd[4]); A(nd[5])
            else:
                for x in ex + nd: A(x)
    L("K2_PEND")
    A(f"v_add_u32 v{VP}, {R*4}, v{VP}")
    A(f"s_lshr_b64 s[{SM}:{SM+1}], s[{SM}:{SM+1}], {R}")
    A(f"s_sub_u32 s{SREM}, s{SREM}, {R}")
    for thr, p in PRIO_T:
        A(f"s_cmp_gt_u32 s{SREM}, {thr}")
        A("s_cbranch_scc1 K2_LOOP")
        if PRIO: A(f"s_setprio {p}")
    A(f"s_cmp_ge_u32 s{SWV}, 8")
    A("s_cbranch_scc1 K2_LOOP")
    A(f"s_cmp_eq_u32 s{SW2}, 0")
    A("s_cbranch_scc1 K2_LOOP")
    w2_load()
    A("s_branch K2_LOOP")
    for s in range(R):
        L(f"K2_S{s}")
        A(f"s_bitcmp1_b32 s{SM}, {s}")
        A(f"s_cbranch_scc1 K2_H{s}")
        for x in part_z1(s, Z): A(x)
        A(f"s_waitcnt vmcnt({VW})")
        for x in part_z2(s, Z) + ([] if nocomp else part_exp(Z) + part_nd(Z)): A(x)
        L(f"K2_J{s}")
        refill(s)
        if s % 4 == 3:
            A(f"s_branch K2_G{s//4+1}" if s + 1 < R else "s_branch K2_PEND")
    def fold():
        for k in range(4):
            A(f"v_rcp_f32 v{T+k}, v{DD+k}")
        A(f"v_pk_fma_f32 {vr(PZ,2)}, {vr(DD,2)}, {vr(NN,2)}, {vr(PZ,2)}")
        A(f"v_pk_fma_f32 {vr(PZ,2)}, {vr(DD+2,2)}, {vr(NN+2,2)}, {vr(PZ,2)}")
        A(f"v_pk_mul_f32 {vr(Z,2)}, {vr(NN,2)}, {vr(T,2)}")
        A(f"v_pk_mul_f32 {vr(Z+2,2)}, {vr(NN+2,2)}, {vr(T+2,2)}")
    def lead_flush():
        A(f"v_add_u32 v{Z2}, s{SSIDE}, v{VL16}")
        A(f"ds_write_b128 v{Z2}, {vr(Z,4)}")
        A(f"s_lshl_b32 s{T0}, s{SWV}, 2")
        A(f"v_mov_b32 v{Z2+1}, s{T0}")
        A(f"v_mov_b32 v{Z2+2}, 1")
        A(f"ds_write_b32 v{Z2+1}, v{Z2+2} offset:{L_SFL}")
        A(f"s_mov_b32 s{SLP}, 0")
    for s in range(R):
        L(f"K2_H{s}")
        A(f"s_cmp_eq_u32 s{SREM}, {s}")
        A("s_cbranch_scc1 K2_LAST")
        A(f"v_and_b32 v{LO}, 0xfc, v{EV+s}")
        A(f"v_mad_u32_u24 v{LO+1}, v{LO}, s{T2}, v{VQ16}")
        A(f"ds_read_b128 {vr(Q,4)}, v{LO+1}")
        fold()
        A(f"s_cmp_lg_u32 s{SLP}, 0")
        A(f"s_cbranch_scc1 K2_LS{s}")
        A(f"v_cvt_pk_bf16_f32 v{Z}, v{Z}, v{Z+1}")
        A(f"v_cvt_pk_bf16_f32 v{Z+1}, v{Z+2}, v{Z+3}")
        A(f"ds_write_b64 v{VA}, {vr(Z,2)}")
        L(f"K2_HC{s}")
        A(f"v_mad_u32_u24 v{VA}, v{LO}, s{T3}, v{VH8}")
        A(f"s_waitcnt vmcnt({VW}) lgkmcnt(0)")
        for x in part_z1(s, Z) + part_z2(s, Z, NN) + part_exp(NN): A(x)
        A(f"v_pk_add_f32 {vr(DD,2)}, {vr(T,2)}, 1.0 op_sel_hi:[1,0]")
        A(f"v_pk_add_f32 {vr(DD+2,2)}, {vr(T+2,2)}, 1.0 op_sel_hi:[1,0]")
        A(f"s_branch K2_J{s}")
        L(f"K2_LS{s}")
        lead_flush()
        A(f"s_branch K2_HC{s}")
    L("K2_LAST")
    A(f"s_lshl_b32 s{T0}, s{SWV}, 2")
    A(f"v_mov_b32 v{LO}, s{T0}")
    A(f"v_add_u32 v{LO+1}, s{SSIDE}, v{VL16}")
    A(f"ds_read_b32 v{Z2}, v{LO} offset:{L_SFL+4}")
    A(f"ds_read_b128 {vr(Q,4)}, v{LO+1} offset:1024")
    fold()
    A(f"s_cmp_eq_u32 s{SLP}, 0")
    A("s_cbranch_scc1 K2_L1")
    A("s_waitcnt lgkmcnt(0)")
    lead_flush()
    A("s_branch K2_WDONE")
    L("K2_L1")
    A(f"s_cmp_eq_u32 s{STAIL}, 0")
    A("s_cbranch_scc1 K2_L3")
    L("K2_L2")
    A("s_waitcnt lgkmcnt(0)")
    A(f"v_readfirstlane_b32 s{T0}, v{Z2}")
    A(f"s_cmp_lg_u32 s{T0}, 0")
    A("s_cbranch_scc1 K2_L2B")
    A("s_sleep 2")
    A(f"ds_read_b32 v{Z2}, v{LO} offset:{L_SFL+4}")
    A(f"ds_read_b128 {vr(Q,4)}, v{LO+1} offset:1024")
    A("s_branch K2_L2")
    L("K2_L2B")
    A(f"v_pk_add_f32 {vr(Z,2)}, {vr(Z,2)}, {vr(Q,2)}")
    A(f"v_pk_add_f32 {vr(Z+2,2)}, {vr(Z+2,2)}, {vr(Q+2,2)}")
    L("K2_L3")
    A(f"v_cvt_pk_bf16_f32 v{Z}, v{Z}, v{Z+1}")
    A(f"v_cvt_pk_bf16_f32 v{Z+1}, v{Z+2}, v{Z+3}")
    A(f"ds_write_b64 v{VA}, {vr(Z,2)}")
    A("s_branch K2_WDONE")

    L("K2_SLOW")
    A("s_waitcnt vmcnt(0) lgkmcnt(0)")
    A(f"s_cmp_eq_u32 s{SFIRST}, 0")
    A("s_cbranch_scc1 K2_SL0")
    for k in range(12):
        A(f"v_mov_b32 v{SACC+k}, 0")
    L("K2_SL0")
    for i in range(3):
        A(f"s_add_u32 s{T0}, s{SWV}, {16*i}")
        A(f"v_readlane_b32 s{T1}, v{VB4}, s{T0}")
        A(f"v_readlane_b32 s{T2}, v{VCNT}, s{T0}")
        A(f"s_mul_i32 s{T3}, s{T0}, {QROW}")
        A(f"s_cmp_eq_u32 s{T2}, 0")
        A(f"s_cbranch_scc1 K2_SLN{i}")
        A(f"v_add_u32 v{Z2}, s{T3}, v{VQ16}")
        A(f"ds_read_b128 {vr(Q,4)}, v{Z2}")
        A(f"s_lshl_b32 s{T1}, s{T1}, 1")
        A(f"s_add_u32 s{T1}, s{T1}, {L_LIST}")
        A(f"v_mov_b32 v{VA}, s{T1}")
        L(f"K2_SLL{i}")
        A(f"ds_read_b64 {vr(EV,2)}, v{VA}")
        A(f"v_add_u32 v{VA}, 8, v{VA}")
        A("s_waitcnt lgkmcnt(0)")
        row_load(DAT + 2, EV, pair=False)
        for x in part_z1(1, Z): A(x)
        A("s_waitcnt vmcnt(0)")
        for x in part_z2(1, Z) + part_exp(Z): A(x)
        A("s_nop 0")
        for k in range(4):
            A(f"v_add_f32 v{T+k}, 1.0, v{T+k}")
        for k in range(4):
            A(f"v_rcp_f32 v{T+k}, v{T+k}")
        A(f"s_sub_u32 s{T2}, s{T2}, 4")
        for k in range(4):
            A(f"v_fmac_f32 v{SACC+4*i+k}, v{Z+k}, v{T+k}")
        A(f"s_cmp_lg_u32 s{T2}, 0")
        A(f"s_cbranch_scc1 K2_SLL{i}")
        L(f"K2_SLN{i}")
    A(f"s_mov_b32 s{SFIRST}, 0")
    A(f"s_cmp_lt_u32 s{SPOS}, {CH}")
    A("s_cbranch_scc1 K2_FETCH")
    A(f"s_cmp_eq_u64 s[{SOV}:{SOV+1}], 0")
    A("s_cbranch_scc1 K2_SLFIN")
    A(f"s_ff1_i32_b64 s{SCH}, s[{SOV}:{SOV+1}]")
    A(f"s_bitset0_b64 s[{SOV}:{SOV+1}], s{SCH}")
    A(f"s_mov_b32 s{SPOS}, 0")
    L("K2_FETCH")
    A("s_waitcnt lgkmcnt(0)")
    A("s_barrier")
    A(f"s_mul_i32 s{T0}, s{SCH}, {CH}")
    A(f"s_add_u32 s{T0}, s{T0}, s{SPOS}")
    A(f"s_lshl_b32 s{T1}, s{T0}, 2")
    A(f"s_lshl_b32 s{T2}, s{T0}, 1")
    A("v_lshlrev_b32 v64, 3, v0")
    A("v_lshlrev_b32 v65, 2, v0")
    srd(SX, PDST, E * 4)
    A(f"buffer_load_dwordx2 v[66:67], v64, s[{SX}:{SX+3}], s{T1} offen")
    srd(SX, PSRC, E * 4)
    A(f"buffer_load_dwordx2 v[68:69], v64, s[{SX}:{SX+3}], s{T1} offen")
    srd(SX, PE, E * 2)
    A(f"buffer_load_dword v70, v65, s[{SX}:{SX+3}], s{T2} offen")
    A("v_lshlrev_b32 v71, 1, v0")
    A(f"v_add_u32 v71, s{SPOS}, v71")
    A(f"s_movk_i32 s{T0}, {CH}")
    A(f"v_cmp_gt_u32 s[{MA}:{MA+1}], s{T0}, v71")
    A(f"s_add_u32 s{SPOS}, s{SPOS}, 2048")
    A(f"s_mov_b32 s{T0}, {hex(FBASE)}")
    A("s_waitcnt vmcnt(0)")
    A(f"v_lshl_or_b32 v{RC}, v68, 9, s{T0}")
    A(f"v_lshl_or_b32 v{RC+2}, v69, 9, s{T0}")
    A(f"v_subrev_u32 v66, s{SN40}, v66")
    A(f"v_subrev_u32 v67, s{SN40}, v67")
    A(f"v_cmp_gt_u32 vcc, s{SNB}, v67")
    A(f"s_and_b64 s[{MB}:{MB+1}], s[{MA}:{MA+1}], vcc")
    A(f"v_cmp_gt_u32 vcc, s{SNB}, v66")
    A(f"s_and_b64 s[{MA}:{MA+1}], s[{MA}:{MA+1}], vcc")
    A("v_lshlrev_b32 v66, 2, v66")
    A("v_lshlrev_b32 v67, 2, v67")
    A(f"v_lshl_or_b32 v{RC+1}, v70, 16, v66")
    A("v_and_b32 v70, 0xffff0000, v70")
    A(f"v_or_b32 v{RC+3}, v70, v67")
    A("s_branch K2_ROUND")
    L("K2_SLFIN")
    for i in range(3):
        if i == 2:
            A(f"s_cmp_ge_u32 s{SWV}, {NPB-32}")
            A("s_cbranch_scc1 K2_WDONE")
        A(f"s_add_u32 s{T0}, s{SWV}, {16*i}")
        A(f"s_mul_i32 s{T0}, s{T0}, {HROW}")
        A(f"v_add_u32 v{Z2}, s{T0}, v{VH8}")
        A(f"v_cvt_pk_bf16_f32 v{Z}, v{SACC+4*i}, v{SACC+4*i+1}")
        A(f"v_cvt_pk_bf16_f32 v{Z+1}, v{SACC+4*i+2}, v{SACC+4*i+3}")
        A(f"ds_write_b64 v{Z2}, {vr(Z,2)}")
    A("v_and_b32 v48, 15, v1")
    A("v_lshrrev_b32 v49, 4, v1")
    A("v_lshlrev_b32 v55, 4, v49")
    A(f"s_movk_i32 s{T1}, {HROW}")
    A(f"v_mad_u32_u24 v{AD}, v48, s{T1}, v55")
    A(f"v_add_u32 v{LO+1}, {L_ZROW}, v55")
    A(f"v_lshlrev_b32 v{LO}, 2, v48")
    A(f"s_lshl_b32 s{T0}, s{SWV}, 6")
    A(f"s_add_u32 s{T0}, s{T0}, {hex(WS_CV)}")
    A(f"buffer_load_dwordx4 {vr(B2F,4)}, v55, s[{SW}:{SW+3}], s{T0} offen offset:2048")
    A("s_waitcnt vmcnt(0)")
    tail_prep()

    L("K2_WDONE")
    stamp(5)
    A(f"v_add_f32 v{T}, v{PZ}, v{PZ+1}")
    A(f"v_mov_b32 v{Z2+1}, 0x207")
    A(f"v_cmp_class_f32 vcc, v{T}, v{Z2+1}")
    A(f"v_mov_b32 v{Z2+2}, 0")
    A(f"s_mov_b32 s{TP}, {hex(C_NLN2)}")
    A("s_branch K2_NOG" if EXP else "s_cbranch_vccz K2_NOG")
    A(f"ds_write_b32 v{Z2+2}, v{Z2+1} offset:{L_FLAG+8}")
    L("K2_NOG")
    A(f"s_cmp_ge_u32 s{SWV}, 8")
    A("s_cbranch_scc1 K2_B4")
    A(f"s_cmp_eq_u32 s{SW2}, 0")
    A("s_cbranch_scc1 K2_B4")
    w2_load()
    L("K2_B4")
    A("s_waitcnt vmcnt(0) lgkmcnt(0)")
    A("s_barrier")
    stamp(6)
    if os.environ.get("DUMP"):
        A(f"s_lshl_b32 s{T0}, s2, 17")
        A(f"s_add_u32 s{T0}, s{T0}, 0x4000000")
        for k in range(6):
            A(f"v_add_u32 v48, {k*16384}, v{VT16}")
            A("ds_read_b128 v[52:55], v48")
            A("s_waitcnt lgkmcnt(0)")
            A(f"buffer_store_dwordx4 v[52:55], v48, s[{SW}:{SW+3}], s{T0} offen")
            A("s_waitcnt vmcnt(0)")
    A(f"ds_read_b32 v{Z2+3}, v{Z2+2} offset:{L_FLAG+8}")
    A(f"s_cmp_ge_u32 s{SWV}, 8")
    A("s_cbranch_scc1 K2_CHK")
    HB = [48 + 4*k for k in range(8)]
    ACC = [12, 16, 20]
    seq = [(mt, s) for mt in range(3) for s in range(8)]
    PRE = 7
    for k in range(PRE):
        mt, s = seq[k]
        A(f"ds_read_b128 {vr(HB[k%8],4)}, v{AD+mt} offset:{s*64}")
    def epi(mt):
        for r in range(4):
            A(f"v_fma_f32 v{OV+4*mt+r}, v{ACC[mt]+r}, s{TP}, v{OV+4*mt+r}")
        A(f"v_cvt_pk_bf16_f32 v{32+2*mt}, v{OV+4*mt}, v{OV+4*mt+1}")
        A(f"v_cvt_pk_bf16_f32 v{33+2*mt}, v{OV+4*mt+2}, v{OV+4*mt+3}")
    for k, (mt, s) in enumerate(seq):
        if k + PRE < 24:
            m2, s2 = seq[k+PRE]
            A(f"ds_read_b128 {vr(HB[(k+PRE)%8],4)}, v{AD+m2} offset:{s2*64}")
        A(f"s_waitcnt lgkmcnt({min(PRE, 23-k)})")
        c = "0" if s == 0 else vr(ACC[mt], 4)
        A(f"v_mfma_f32_16x16x32_bf16 {vr(ACC[mt],4)}, {vr(W2R+4*s,4)}, {vr(HB[k%8],4)}, {c}")
        if s == 4 and mt > 0:
            epi(mt - 1)
    A("s_nop 7")
    epi(2)
    L("K2_CHK")
    A("s_waitcnt lgkmcnt(0)")
    A(f"v_readfirstlane_b32 s{T2}, v{Z2+3}")
    A(f"s_lshl_b32 s{T1}, s{SMODE}, 31")
    A(f"s_or_b32 s{T2}, s{T2}, s{T1}")
    A(f"s_cmp_gt_i32 s{T2}, 0")
    A("s_cbranch_scc1 K2_REDO")
    A(f"s_cmp_ge_u32 s{SWV}, 8")
    A("s_cbranch_scc1 K2_END2")
    A(f"s_add_u32 s{T2}, s{SOUT}, 4096")
    A(f"s_add_u32 s{T1}, s{SOUT}, 8192")
    A(f"buffer_store_dwordx2 v[32:33], v{OUTA}, s[{SO}:{SO+3}], s{SOUT} offen")
    A(f"buffer_store_dwordx2 v[34:35], v{OUTA}, s[{SO}:{SO+3}], s{T2} offen")
    A(f"s_mov_b64 exec, s[{SQM}:{SQM+1}]")
    A(f"buffer_store_dwordx2 v[36:37], v{OUTA}, s[{SO}:{SO+3}], s{T1} offen")
    L("K2_END2")
    stamp(7)
    if STAMP: A("s_waitcnt vmcnt(0)")
    stamp(8)
    if STAMP: A("s_memtime s[96:97]")
    stamp_flush(1, 3, 11)
    L("K2_END")
    A("s_endpgm")
    L("K2_REDO")
    A(f"s_mov_b32 s{SMODE}, 1")
    A("s_setprio 0")
    A("s_branch K2_PASS")

hdr = f"""; Kernarg layout for this problem (88 bytes, ptrs only, base s[0:1]):
; @launch kernel=k1_kernel grid=({K1_GRID},1,1) block=(512,1,1) lds={K1_LDS}
; @launch kernel=k2_kernel grid=({NB},1,1) block=(1024,1,1) lds={K2_LDS}
.amdgcn_target "amdgcn-amd-amdhsa--gfx950"
"""
gen_k1()
gen_k2()
kernel_desc("k1_kernel", 128, 102 if STAMP else 72)
kernel_desc("k2_kernel", 128, 102 if STAMP else 72)
txt = hdr + "\n".join(o for o in out if o is not None) + "\n"
dst = sys.argv[1] if len(sys.argv) > 1 else f"cdna_kernels/{NAME}.s"
open(dst, "w").write(txt)
print("wrote", dst, "K2_LDS", K2_LDS)
```

```python
import sys, struct, os

NAME = "standalone__edge_featured_mpnn_mpnn__graph"
N, E, D, H = 10000, 160000, 128, 256
NB = int(os.environ.get('NBINS', '250'))
NPB = 40
NCH, CH = 64, 2500
CAP = 31
WS_T = 0
WS_SEG = 0x500000
WS_W2F = 0x920000
WS_W1F = 0x930000
WS_CV = 0x940000
WS_DBG = 0x2000000
WS_BYTES = 0x10000000
R = int(os.environ.get("RING", "8"))
PFL = int(os.environ.get("PFL", "0"))
PRIO_T = eval(os.environ.get("PRIO_T", "((32, 2), (21, 1), (10, 0))"))
STAMP = os.environ.get("STAMP", "0") == "1"
EXP = os.environ.get("EXP", "")
PRIO = os.environ.get("PRIO", "1") == "1"
PI = [1, 3, 0, 2]
EXP1 = os.environ.get("EXP1", "")
SPF = int(os.environ.get("SPF", "0"))
NE = int(os.environ.get("NE", "0"))
STF = os.environ.get("STF", "nt")
STB = os.environ.get("STB", "")
XS = os.environ.get("XS", "")
FBASE = 0x4B000000
F1 = int(os.environ.get("F1", "4"))

def f32bits(x): return struct.unpack("<I", struct.pack("<f", x))[0]
C_NLOG2E = f32bits(-1.4426950408889634)
C_NLN2 = f32bits(-0.6931471805599453)

out = []
def A(s): out.append("    " + s)
def L(s): out.append(s + ":")
def CM(s): out.append("    ; " + s)
def vr(a, n): return f"v[{a}:{a+n-1}]"

PX, PE, PSRC, PDST, PW1, PB1, PW2, PB2 = 4, 6, 8, 10, 12, 14, 16, 18
POUT, PWS = 20, 22

def srd(dst, base, nrec, off=0):
    if off:
        A(f"s_add_u32 s{dst}, s{base}, {hex(off)}")
        A(f"s_addc_u32 s{dst+1}, s{base+1}, 0")
        src1 = dst + 1
    else:
        A(f"s_mov_b32 s{dst}, s{base}")
        src1 = base + 1
    A(f"s_and_b32 s{dst+1}, s{src1}, 0xffff")
    A(f"s_mov_b32 s{dst+2}, {hex(nrec)}")
    A(f"s_mov_b32 s{dst+3}, 0x20000")

def stamp(k):
    if STAMP: A(f"s_memrealtime s[{76+2*k}:{77+2*k}]")
def stamp_flush(kern, wave_s, nst):
    if not STAMP: return
    A("s_waitcnt lgkmcnt(0)")
    A(f"s_add_u32 s72, s{PWS}, {hex(WS_DBG + kern*0x100000)}")
    A(f"s_addc_u32 s73, s{PWS+1}, 0")
    A("s_and_b32 s73, s73, 0xffff")
    A("s_mov_b32 s74, 0x100000")
    A("s_mov_b32 s75, 0x20000")
    A("s_lshl_b32 s100, s2, 4")
    A(f"s_add_u32 s100, s100, s{wave_s}")
    A("s_lshl_b32 s100, s100, 7")
    A("s_mov_b64 exec, 1")
    A("v_mov_b32 v126, 0")
    for k in range(nst):
        A(f"v_mov_b32 v127, s{76+2*k}")
        A(f"buffer_store_dword v127, v126, s[72:75], s100 offen offset:{4*k}")
    A("s_mov_b64 exec, -1")

def kernel_begin(name):
    out.extend([".text", f".globl {name}", ".p2align 8", f".type {name},@function"])
    L(name)
def kernel_desc(name, vgpr, sgpr):
    acc = (vgpr + 3) // 4 * 4
    out.extend([
        '.section .rodata,"a"', ".p2align 6", f".amdhsa_kernel {name}",
        f"  .amdhsa_next_free_vgpr {vgpr}", f"  .amdhsa_next_free_sgpr {sgpr}", f"  .amdhsa_accum_offset {acc}",
        "  .amdhsa_group_segment_fixed_size 0", "  .amdhsa_kernarg_size 88", "  .amdhsa_user_sgpr_count 2",
        "  .amdhsa_user_sgpr_kernarg_segment_ptr 1", "  .amdhsa_system_sgpr_workgroup_id_x 1", ".end_amdhsa_kernel"])

NTW = int(os.environ.get("NTW", "16"))
K1_GEMM0 = NCH
K1_W20 = NCH + 160
K1_W10 = K1_W20 + 4
K1_CV = K1_W10 + 1
K1_GRID = K1_CV + 1
K1_LDS = int(os.environ.get("K1LDS", "65536"))
K1B0 = os.environ.get("K1B0", "1") == "1"

def gen_k1():
    kernel_begin("k1_kernel")
    A("s_load_dwordx16 s[4:19], s[0:1], 0")
    A("s_load_dwordx2 s[22:23], s[0:1], 80")
    stamp(0)
    if NTW:
        A(f"s_cmp_lt_u32 s2, {NTW}")
        A("s_cbranch_scc1 K1_TOUCH")
        A(f"s_sub_u32 s2, s2, {NTW}")
    A(f"s_cmp_ge_u32 s2, {K1_GRID}")
    A("s_cbranch_scc1 K1_END")
    A("v_and_b32 v1, 63, v0")
    A("v_lshrrev_b32 v2, 6, v0")
    A("v_and_b32 v3, 15, v0")
    A("v_bfe_u32 v4, v0, 4, 2")
    A("v_readfirstlane_b32 s3, v2")
    A("s_mov_b32 s52, 0x05040100")
    A("s_mov_b32 s53, 0x07060302")
    A(f"s_cmp_lt_u32 s2, {K1_GEMM0}")
    A("s_cbranch_scc1 K1_BIN")
    A(f"s_cmp_ge_u32 s2, {K1_W20}")
    A("s_cbranch_scc1 K1_PREP")
    A(f"s_sub_u32 s24, s2, {K1_GEMM0}")
    A("s_and_b32 s25, s24, 7")
    A("s_lshr_b32 s26, s24, 4")
    A("s_lshl_b32 s26, s26, 3")
    A("s_add_u32 s25, s25, s26")
    A("s_bfe_u32 s26, s24, 0x10003")
    A("s_cmp_ge_u32 s25, 79")
    A("s_cbranch_scc1 K1_END")
    A("s_and_b32 s27, s3, 1")
    A("s_lshr_b32 s28, s3, 1")
    A("s_lshl_b32 s30, s28, 14")
    A("s_lshl_b32 s31, s27, 11")
    A("s_add_u32 s30, s30, s31")
    A("s_lshl_b32 s31, s26, 8")
    A("s_add_u32 s30, s30, s31")
    A("s_lshl_b32 s32, s25, 7")
    A("s_lshl_b32 s33, s28, 5")
    A("s_add_u32 s32, s32, s33")
    A("v_lshlrev_b32 v5, 12, v4")
    A("v_lshl_add_u32 v5, v3, 4, v5")
    A("v_lshlrev_b32 v10, 4, v1")
    A("s_lshl_b32 s35, s28, 12")
    A("s_lshl_b32 s54, s27, 3")
    A("s_add_u32 s35, s35, s54")
    A("v_add_u32 v11, s35, v10")
    A("s_lshl_b32 s54, s27, 14")
    A("v_add_u32 v13, s54, v10")
    A("v_lshlrev_b32 v12, 9, v3")
    A("v_lshl_add_u32 v12, v4, 4, v12")
    A("s_lshl_b32 s55, s32, 9")
    A("s_lshl_b32 s54, s26, 7")
    A("s_add_u32 s55, s55, s54")
    A("s_lshl_b32 s54, s27, 6")
    A("s_add_u32 s55, s55, s54")
    A("s_add_u32 s56, s55, 8192")
    A("s_mov_b32 s58, 0x8000")
    for k in range(4):
        A(f"v_xor_b32 v{6+k}, v4, v3")
        if k: A(f"v_xor_b32 v{6+k}, {4*k}, v{6+k}")
        A(f"v_lshlrev_b32 v{6+k}, 4, v{6+k}")
        A(f"v_lshl_add_u32 v{6+k}, v4, 8, v{6+k}")
    A("s_lshl_b32 s33, s25, 15")
    A("s_lshl_b32 s34, s3, 12")
    A("s_add_u32 s33, s33, s34")
    A("s_add_u32 s34, s34, 32768")
    A("s_mov_b32 m0, s34")
    A("v_xor_b32 v14, v4, v3")
    A("v_lshlrev_b32 v14, 4, v14")
    A("v_lshl_add_u32 v14, v3, 8, v14")
    A("s_lshl_b32 s54, s28, 13")
    A("s_add_u32 s54, s54, 32768")
    for s in range(4):
        A(f"v_xor_b32 v{112+s}, {64*s}, v14")
        A(f"v_add_u32 v{112+s}, s54, v{112+s}")
    A("s_waitcnt lgkmcnt(0)")
    srd(36, PW1, 257 * 512)
    WL = 48
    for j in range(4):
        A(f"buffer_load_dwordx4 {vr(WL+4*j,4)}, v5, s[36:39], s30 offen offset:{j*512}")
    srd(40, PX, N * 256)
    if K1B0: A("s_barrier")
    for k in range(4):
        A(f"buffer_load_dwordx4 v{6+k}, s[40:43], s33 offen offset:{1024*k} lds")
    AF = 16
    srd(48, PWS, N * 512)
    A("s_waitcnt vmcnt(4)")
    stamp(1)
    PT = 64
    for pr in range(2):
        for dw in range(4):
            a, b = WL + 8*pr + dw, WL + 8*pr + 4 + dw
            A(f"v_perm_b32 v{PT+(2*dw)*2+pr}, v{b}, v{a}, s52")
            A(f"v_perm_b32 v{PT+(2*dw+1)*2+pr}, v{b}, v{a}, s53")
    for col in range(8):
        A(f"ds_write_b64 v11, {vr(PT+2*col,2)} offset:{(col>>2)*16384 + (col&3)*1024}")
    A("s_waitcnt vmcnt(0) lgkmcnt(0)")
    A("s_barrier")
    stamp(2)
    ACC = [80, 96]
    BB = [48, 52, 56, 60, 64, 68]
    ops = []
    for s in range(4):
        ops += [("x", 0, s), ("x", 1, s)] + [("w", s, t) for t in range(4)]
    def rd(op, wi):
        if op[0] == "x":
            A(f"ds_read_b128 {vr(AF+(op[1]*4+op[2])*4,4)}, v{112+op[2]} offset:{4096*op[1]}")
        else:
            A(f"ds_read_b128 {vr(BB[wi%6],4)}, v13 offset:{(op[1]*4+op[2])*1024}")
    widx = {}
    n = 0
    for i_, op in enumerate(ops):
        if op[0] == "w":
            widx[i_] = n; n += 1
    issued = 0
    def issue_upto(wlimit):
        nonlocal issued
        while issued < len(ops) and (ops[issued][0] == "x" or widx[issued] <= wlimit):
            rd(ops[issued], widx.get(issued, 0)); issued += 1
    for i_, op in enumerate(ops):
        if op[0] != "w": continue
        k = widx[i_]
        issue_upto(k + 4)
        A(f"s_waitcnt lgkmcnt({issued - 1 - i_})")
        s, t = op[1], op[2]
        for i in range(2):
            d = ACC[i] + 4*t
            c = "0" if s == 0 else vr(d, 4)
            A(f"v_mfma_f32_16x16x32_bf16 {vr(d,4)}, {vr(BB[k%6],4)}, {vr(AF+(i*4+s)*4,4)}, {c}")
    A("s_nop 1")
    stamp(4)
    for i in range(2):
        o0, o1 = 16 + 8*i, 20 + 8*i
        for t in range(4):
            f = [ACC[i] + 4*t + r for r in range(4)]
            for r in range(4):
                A(f"v_add_f32 v{f[r]}, 0, v{f[r]}")
            for r in range(4):
                A(f"v_add_u32 v{f[r]}, s58, v{f[r]}")
            for r in range(1, 4):
                A(f"v_sub_u32_sdwa v{f[r]}, v{f[r]}, v{f[r-1]} clamp dst_sel:DWORD dst_unused:UNUSED_PAD src0_sel:DWORD src1_sel:WORD_1")
            A(f"v_perm_b32 v{o0+t}, v{f[1]}, v{f[0]}, s53")
            A(f"v_perm_b32 v{o1+t}, v{f[3]}, v{f[2]}, s53")
        if "nop" not in EXP1:
            A(f"buffer_store_dwordx4 {vr(o0,4)}, v12, s[48:51], s{55+i} offen {STF}")
            A(f"buffer_store_dwordx4 {vr(o1,4)}, v12, s[48:51], s{55+i} offen offset:256 {STF}")
    stamp(5)
    if STAMP: A("s_waitcnt vmcnt(0)")
    stamp(6)
    stamp_flush(0, 3, 7)
    A("s_endpgm")

    L("K1_PREP")
    A("v_lshlrev_b32 v10, 4, v1")
    A(f"s_cmp_ge_u32 s2, {K1_CV}")
    A("s_cbranch_scc1 K1_CVEC")
    A(f"s_cmp_ge_u32 s2, {K1_W10}")
    A("s_cbranch_scc1 K1_W1")
    CM("w2: frag (nt, s) lane (c,g) jj -> w2[128(s>>2) + 64(s&1) + 32(g>>1) + 8 pi(jj&3) + 4((s>>1)&1) + 2(g&1) + (jj>>2)][16 nt + c]")
    A(f"s_sub_u32 s24, s2, {K1_W20}")
    A("s_lshr_b32 s25, s3, 2")
    A("s_lshl_b32 s25, s25, 15")
    A("s_and_b32 s26, s3, 1")
    A("s_lshl_b32 s26, s26, 14")
    A("s_add_u32 s25, s25, s26")
    A("s_bfe_u32 s26, s3, 0x10001")
    A("s_lshl_b32 s26, s26, 10")
    A("s_add_u32 s25, s25, s26")
    A("s_lshl_b32 s26, s24, 6")
    A("s_add_u32 s25, s25, s26")
    A("s_add_u32 s26, s25, 4096")
    A("v_lshrrev_b32 v5, 1, v4")
    A("v_lshlrev_b32 v5, 13, v5")
    A("v_and_b32 v6, 1, v4")
    A("v_lshl_add_u32 v5, v6, 9, v5")
    A("v_lshl_add_u32 v5, v3, 1, v5")
    A("s_lshl_b32 s27, s24, 14")
    A("s_lshl_b32 s28, s3, 10")
    A("s_add_u32 s27, s27, s28")
    A("s_add_u32 s28, s27, 8192")
    A("s_waitcnt lgkmcnt(0)")
    srd(36, PW2, 256 * 256)
    srd(40, PWS, 65536, off=WS_W2F)
    for t in range(2):
        for j in range(8):
            ro = (8*PI[j&3] + (j>>2))*256 + 32*t
            A(f"buffer_load_ushort v{16+8*t+j}, v5, s[36:39], s{25 + ro//4096} offen offset:{ro%4096}")
    A("s_waitcnt vmcnt(0)")
    for t in range(2):
        for jj in range(4):
            A(f"v_lshl_or_b32 v{32+4*t+jj}, v{17+8*t+2*jj}, 16, v{16+8*t+2*jj}")
    A("buffer_store_dwordx4 v[32:35], v10, s[40:43], s27 offen")
    A("buffer_store_dwordx4 v[36:39], v10, s[40:43], s28 offen")
    A("s_endpgm")
    L("K1_W1")
    CM("W1[128:256]: frag (w, s) lane (4g'' + i, g) jj -> w1[128 + 32s + 8g + jj][128(w>>3) + 32(w&3) + 8 pi(i) + 4((w>>2)&1) + g'']")
    A("s_lshr_b32 s24, s3, 2")
    A("s_and_b32 s25, s3, 3")
    A("s_lshl_b32 s26, s25, 14")
    A("s_lshl_b32 s27, s24, 8")
    A("s_add_u32 s26, s26, s27")
    A(f"s_add_u32 s26, s26, {128*512}")
    A("v_lshlrev_b32 v5, 12, v4")
    A("v_lshl_add_u32 v5, v3, 4, v5")
    A("s_lshl_b32 s27, s24, 15")
    A("s_lshl_b32 s28, s25, 10")
    A("s_add_u32 s27, s27, s28")
    A("s_add_u32 s28, s27, 16384")
    A("v_lshrrev_b32 v6, 2, v3")
    A("v_lshlrev_b32 v6, 12, v6")
    A("v_and_b32 v7, 3, v3")
    A("v_lshlrev_b32 v7, 2, v7")
    A("v_mov_b32 v8, 0x1302")
    A("v_bfe_u32 v7, v8, v7, 4")
    A("v_lshl_add_u32 v6, v7, 4, v6")
    A("v_lshl_add_u32 v6, v4, 8, v6")
    A("s_waitcnt lgkmcnt(0)")
    srd(36, PW1, 257 * 512)
    srd(40, PWS, 65536, off=WS_W1F)
    for jj in range(8):
        A(f"buffer_load_dwordx4 {vr(16+4*jj,4)}, v5, s[36:39], s26 offen offset:{jj*512}")
    A("s_waitcnt vmcnt(0)")
    for col in range(8):
        o = 48 + col * 4
        for pr in range(4):
            a, b = 16 + 8*pr + (col >> 1), 16 + 8*pr + 4 + (col >> 1)
            A(f"v_perm_b32 v{o+pr}, v{b}, v{a}, s{53 if col & 1 else 52}")
        A(f"buffer_store_dwordx4 {vr(o,4)}, v6, s[40:43], s{27+(col>>2)} offen offset:{(col&3)*64}")
    A("s_endpgm")
    L("K1_CVEC")
    CM("thread t < 256: l = t>>2, i = t&3: -log2e w1[256][phi(l, pi(i))], b1[phi(l, pi(i))] as f32; t < 128: b2[t] as f32")
    A("s_cmp_ge_u32 s3, 4")
    A("s_cbranch_scc1 K1_END")
    A("v_and_b32 v5, 3, v0")
    A("v_lshlrev_b32 v5, 2, v5")
    A("v_mov_b32 v8, 0x2031")
    A("v_bfe_u32 v5, v8, v5, 4")
    A("v_lshlrev_b32 v5, 3, v5")
    A("v_bfe_u32 v6, v0, 2, 2")
    A("v_add_u32 v5, v5, v6")
    A("v_lshl_add_u32 v5, v4, 5, v5")
    A("v_bfe_u32 v6, v0, 6, 1")
    A("v_lshl_add_u32 v5, v6, 2, v5")
    A("v_bfe_u32 v6, v0, 7, 1")
    A("v_lshl_add_u32 v5, v6, 7, v5")
    A("v_lshlrev_b32 v5, 1, v5")
    A("v_lshlrev_b32 v6, 1, v0")
    A("v_lshlrev_b32 v7, 2, v0")
    A(f"s_mov_b32 s24, {256*512}")
    A(f"s_mov_b32 s25, {hex(C_NLOG2E)}")
    A("s_waitcnt lgkmcnt(0)")
    srd(36, PW1, 257 * 512)
    srd(40, PB1, 512)
    srd(44, PB2, 256)
    srd(48, PWS, 2048 + 512, off=WS_CV)
    A("buffer_load_ushort v16, v5, s[36:39], s24 offen")
    A("buffer_load_ushort v17, v5, s[40:43], 0 offen")
    A("buffer_load_ushort v18, v6, s[44:47], 0 offen")
    A("s_waitcnt vmcnt(0)")
    for k in range(3):
        A(f"v_lshlrev_b32 v{16+k}, 16, v{16+k}")
    A("v_mul_f32 v16, s25, v16")
    A("buffer_store_dword v16, v7, s[48:51], 0 offen")
    A("buffer_store_dword v17, v7, s[48:51], 0 offen offset:1024")
    A("buffer_store_dword v18, v7, s[48:51], 0 offen offset:2048")
    A("s_endpgm")

    L("K1_BIN")
    A("v_lshlrev_b32 v5, 2, v0")
    A("v_lshlrev_b32 v6, 1, v0")
    A("v_mov_b32 v7, 0")
    A("v_mov_b32 v8, 1")
    A("ds_write_b32 v5, v7")
    A(f"s_mul_i32 s24, s2, {CH*4}")
    A(f"s_mul_i32 s25, s2, {CH*2}")
    A("s_movk_i32 s26, 0x1000")
    A("s_movk_i32 s27, 0x2000")
    A("s_lshl_b32 s28, s2, 8")
    A("s_add_u32 s29, s28, 8")
    A(f"s_movk_i32 s32, {CH - 4*512}")
    A(f"s_mov_b32 s33, {hex(FBASE)}")
    A(f"s_movk_i32 s34, {-NPB if NB == 250 else 625}")
    A("v_cmp_gt_u32 s[60:61], s32, v0")
    A("s_waitcnt lgkmcnt(0)")
    DST, REC, EV, RK, BN = 16, 24, 40, 48, 56
    so4 = ["0", "0", "s26", "s26", "s27"]; io4 = [0, 2048, 0, 2048, 0]
    so2 = ["0", "0", "0", "0", "s26"]; io2 = [0, 1024, 2048, 3072, 0]
    def csrd(d, p, off, nb):
        A(f"s_add_u32 s{d}, s{p}, s{off}")
        A(f"s_addc_u32 s{d+1}, s{p+1}, 0")
        A(f"s_and_b32 s{d+1}, s{d+1}, 0xffff")
        A(f"s_mov_b32 s{d+2}, {nb}")
        A(f"s_mov_b32 s{d+3}, 0x20000")
    csrd(36, PDST, 24, CH*4)
    for j in range(5):
        A(f"buffer_load_dword v{DST+j}, v5, s[36:39], {so4[j]} offen offset:{io4[j]}")
    csrd(40, PSRC, 24, CH*4)
    csrd(44, PE, 25, CH*2)
    for j in range(5):
        A(f"buffer_load_dword v{REC+2*j}, v5, s[40:43], {so4[j]} offen offset:{io4[j]}")
        A(f"buffer_load_ushort v{EV+j}, v6, s[44:47], {so2[j]} offen offset:{io2[j]}")
    srd(48, PWS, NB * NCH * 256, off=WS_SEG)
    A("s_barrier")
    for j in range(5):
        A(f"s_waitcnt vmcnt({14-j})")
        A(f"v_mul_u32_u24 v{BN+j}, {'0xcccd' if NB == 250 else 429497}, v{DST+j}")
        A(f"v_lshrrev_b32 v{BN+j}, {21 if NB == 250 else 24}, v{BN+j}")
        A(f"v_lshlrev_b32 v9, 2, v{BN+j}")
        if j == 4:
            A(f"v_mov_b32 v{RK+j}, {CAP}")
            A("s_mov_b64 exec, s[60:61]")
            A("s_cbranch_execz K1_B_SKIP4")
        A(f"ds_add_rtn_u32 v{RK+j}, v9, v8")
        if j == 4:
            L("K1_B_SKIP4")
            A("s_mov_b64 exec, -1")
        if NB == 250:
            A(f"v_mad_i32_i24 v{DST+j}, v{BN+j}, s34, v{DST+j}")
        else:
            A(f"v_mad_u32_u24 v10, v{BN+j}, s34, 15")
            A("v_lshrrev_b32 v10, 4, v10")
            A(f"v_sub_u32 v{DST+j}, v{DST+j}, v10")
        A(f"v_lshlrev_b32 v{BN+j}, 14, v{BN+j}")
        A(f"v_lshlrev_b32 v{DST+j}, 2, v{DST+j}")
    stamp(1)
    A("v_mov_b32 v11, 0x7ffff000")
    for j in range(5):
        A(f"s_waitcnt vmcnt({8-2*j+j}) lgkmcnt({0 if (j >= 3 or STAMP) else 3-j})")
        A(f"v_lshl_or_b32 v{REC+2*j+1}, v{EV+j}, 16, v{DST+j}")
        A(f"v_cmp_gt_u32 vcc, {CAP}, v{RK+j}")
        A(f"v_lshl_or_b32 v{REC+2*j}, v{REC+2*j}, 9, s33")
        A(f"v_lshl_add_u32 v9, v{RK+j}, 3, v{BN+j}")
        A("v_cndmask_b32 v9, v11, v9, vcc")
        if "norec" in EXP1: A("v_mov_b32 v9, v11")
        A(f"buffer_store_dwordx2 {vr(REC+2*j,2)}, v9, s[48:51], s29 offen {STB}")
    stamp(2)
    A("s_barrier")
    A("ds_read_b32 v10, v5")
    A("v_lshlrev_b32 v9, 14, v0")
    A("s_waitcnt lgkmcnt(0)")
    if "norec" in EXP1: A("v_mov_b32 v10, 0")
    if "nocnt" in EXP1: A("v_mov_b32 v9, v11")
    A(f"buffer_store_dword v10, v9, s[48:51], s28 offen {STB}")
    stamp(3)
    if STAMP: A("s_waitcnt vmcnt(0)")
    stamp(4)
    stamp_flush(0, 3, 5)
    L("K1_END")
    A("s_endpgm")
    if NTW:
        L("K1_TOUCH")
        CM("prefetch role: one load per 32 KB of the workspace part in use and of the output, one per line of k2's code")
        A("s_load_dwordx2 s[20:21], s[0:1], 64")
        A("v_lshlrev_b32 v1, 15, v0")
        A("v_lshlrev_b32 v2, 7, v0")
        A("s_getpc_b64 s[24:25]")
        L("K1_PC")
        A("s_add_u32 s24, s24, k2_kernel-K1_PC")
        A("s_addc_u32 s25, s25, 0")
        A("s_and_b32 s25, s25, 0xffff")
        A("s_mov_b32 s26, K2_CODE_END-k2_kernel")
        A("s_mov_b32 s27, 0x20000")
        A("buffer_load_dword v5, v2, s[24:27], 0 offen")
        A("s_waitcnt lgkmcnt(0)")
        srd(28, PWS, WS_CV + 4096)
        srd(32, POUT, N * D * 2)
        A("buffer_load_dword v3, v1, s[28:31], 0 offen")
        A("buffer_load_dword v4, v1, s[32:35], 0 offen")
        A("s_waitcnt vmcnt(0)")
        A("s_endpgm")

QROW, HROW = 1040, 528
L_CNT = 0
L_FLAG = 256
L_SFL = 272
L_ZROW = 352
ZERO_B = 864
L_PRIV = 896
PRIV_N = 64 + R + 8
PRIV_B = PRIV_N * 8
L_H = L_PRIV + 16 * PRIV_B
L_SIDE = L_H + NPB * HROW
L_Q = L_SIDE + 16 * 1024
L_XT = L_Q + NPB * QROW
L_LIST = L_XT + 16 * 1024
K2_LDS = L_LIST + 2048 * 8
assert K2_LDS <= 163840 and PRIV_N % 4 == 0 and R == 8 and L_XT % 1024 != -1 and L_H % 16 == 0 and L_Q % 16 == 0
WIN = 16 * 63
DUMMY = FBASE + 0x7FF000

def gen_k2():
    kernel_begin("k2_kernel")
    VLF, VH8, VL16, VT16, VQ16 = 3, 4, 5, 6, 7
    W, Q, NN, DD, Z, Z2, T, LO, PZ = 8, 12, 16, 20, 24, 28, 32, 36, 38
    VA, VP, VDEG, VB4, VCNT, VPL, VM, VEND = 40, 41, 42, 43, 44, 45, 46, 47
    EV, OG, DAT = 48, [56, 60], 64
    AD, OUTA, OV = 80, 83, 84
    B2F = 92
    W2R = 96
    W1F, B1P, RC, TI = 96, 112, 116, 120
    SACC = 100
    ST, SW, SO, SX = 24, 28, 32, 36
    MA, MB = 40, 42
    SC = 44
    SMODE, SFIRST, SPOS, SQD, SCH, SFAST = 46, 47, 48, 49, 50, 51
    SOV, SM = 52, 54
    SREM, STOT, SLP, SW2, SNN, SWV = 56, 57, 58, 59, 60, 3
    SN40, SEX = 61, 62
    T0, T1, T2, T3, TP = 64, 65, 66, 67, 68
    STAIL, SSIDE = 70, 71
    SQM = 4
    SW1, SNB = 14, 15
    SLEN, SOUT = 12, 13
    C2 = f"s[{SC}:{SC+1}]"
    NLA, NLB, RKA, RKB, PA_, PB_, X0, X1 = 28, 29, 30, 31, 32, 33, 34, 35

    A("s_load_dwordx8 s[4:11], s[0:1], 0")
    A("s_load_dwordx2 s[20:21], s[0:1], 64")
    A("s_load_dwordx2 s[22:23], s[0:1], 80")
    stamp(0)
    if STAMP: A("s_memtime s[94:95]")
    A(f"s_cmp_ge_u32 s2, {NB}")
    A("s_cbranch_scc1 K2_END")
    A("v_and_b32 v1, 63, v0")
    A("v_lshrrev_b32 v48, 6, v0")
    A(f"v_lshlrev_b32 v{VT16}, 4, v0")
    A(f"v_readfirstlane_b32 s{SWV}, v48")
    A("v_lshlrev_b32 v2, 2, v1")
    A(f"s_lshl_b32 s{T0}, s2, 14")
    A(f"s_add_u32 s{T0}, s{T0}, {hex(WS_SEG)}")
    if NB == 250:
        A(f"s_mul_i32 s{SN40}, s2, {NPB}")
        A(f"s_mov_b32 s{SNB}, {NPB}")
    else:
        A(f"s_mul_i32 s{SN40}, s2, 625")
        A(f"s_add_u32 s{SNB}, s{SN40}, 640")
        A(f"s_add_u32 s{SN40}, s{SN40}, 15")
        A(f"s_lshr_b32 s{SN40}, s{SN40}, 4")
        A(f"s_lshr_b32 s{SNB}, s{SNB}, 4")
        A(f"s_sub_u32 s{SNB}, s{SNB}, s{SN40}")
    for k in range(4):
        A(f"v_mov_b32 v{52+k}, 0")
    A(f"v_cmp_gt_u32 vcc, {ZERO_B//16}, v0")
    A(f"s_mul_i32 s{T1}, s{SWV}, {PRIV_B}")
    A(f"s_add_u32 s{T1}, s{T1}, {L_PRIV}")
    A(f"s_and_saveexec_b64 s[{SEX}:{SEX+1}], vcc")
    A("s_cbranch_execz K2_Z1")
    A(f"ds_write_b128 v{VT16}, v[52:55]")
    L("K2_Z1")
    A(f"s_mov_b64 exec, s[{SEX}:{SEX+1}]")
    A(f"v_add_u32 v{VPL}, s{T1}, v2")
    A(f"v_mov_b32 v56, {hex(DUMMY)}")
    A(f"ds_write_b32 v{VPL}, v56")
    A(f"ds_write_b32 v{VPL}, v56 offset:{(PRIV_N-64)*4}")
    A(f"v_mov_b32 v{VP}, s{T1}")
    A("v_and_b32 v48, 15, v1")
    A("v_lshrrev_b32 v49, 4, v1")
    A("v_lshrrev_b32 v50, 4, v0")
    A("v_xor_b32 v51, v50, v48")
    A("v_and_b32 v51, 15, v51")
    A("v_lshlrev_b32 v51, 4, v51")
    A("v_lshl_add_u32 v51, v50, 8, v51")
    A(f"s_lshl_b32 s{SSIDE}, s{SWV}, 10")
    A(f"s_add_u32 s{T2}, s{SSIDE}, {L_XT}")
    A(f"s_mov_b32 m0, s{T2}")
    A(f"s_add_u32 s{SSIDE}, s{SSIDE}, {L_SIDE}")
    A(f"s_lshl_b32 s{T2}, s{SN40}, 8")
    A(f"s_cmp_lt_u32 s{SWV}, 12")
    A(f"s_cselect_b32 s{T2}, s{T2}, 0x7ffff000")
    A(f"v_lshlrev_b32 v{VL16}, 4, v1")
    A("s_waitcnt lgkmcnt(0)")
    srd(SW, PWS, WS_BYTES)
    A(f"buffer_load_dwordx4 {vr(RC,4)}, v{VT16}, s[{SW}:{SW+3}], s{T0} offen")
    srd(SX, PX, N * 256)
    A(f"buffer_load_dwordx4 v51, s[{SX}:{SX+3}], s{T2} offen lds")
    if SPF:
        A(f"s_lshr_b32 s{T1}, s2, 3")
        A(f"s_lshl_b32 s{T1}, s{T1}, 4")
        A(f"s_add_u32 s{T1}, s{T1}, s{SWV}")
        A(f"s_mul_i32 s{T1}, s{T1}, {SPF*128}")
        A(f"s_add_u32 s16, s{PWS}, s{T1}")
        A(f"s_addc_u32 s17, s{PWS+1}, 0")
        for k in range(SPF):
            A(f"s_load_dword s{18 + (k&1)}, s[16:17], {k*128}")
    A("s_barrier")
    if XS == "g": stamp(4)
    A(f"s_lshl_b32 s{T1}, s{SWV}, 12")
    A(f"s_add_u32 s{T2}, s{T1}, {hex(WS_W1F)}")
    A("v_lshlrev_b32 v52, 4, v50")
    A(f"s_mov_b32 s{T3}, {hex(WS_CV)}")
    A(f"buffer_load_dwordx4 {vr(B1P,4)}, v52, s[{SW}:{SW+3}], s{T3} offen offset:1024")
    for s in range(NE):
        A(f"buffer_load_dwordx4 {vr(W1F+4*s,4)}, v{VL16}, s[{SW}:{SW+3}], s{T2} offen offset:{s*1024}")
    A(f"s_mov_b32 s{SW1}, s{T2}")
    A(f"v_and_b32 v{OV+1}, 0x1ff, v52")
    NPRE = 7
    assert not PFL
    if PFL:
        A(f"s_lshr_b32 s{T3}, s2, 3")
        A(f"s_mul_i32 s{T3}, s{T3}, {PFL*128}")
        A(f"s_sub_u32 s{T2}, 15, s{SWV}")
        A(f"s_lshl_b32 s{T1}, s{T2}, 13")
        A(f"s_add_u32 s{T3}, s{T3}, s{T1}")
        A(f"s_cmp_lt_u32 s{T2}, {PFL//64}")
        A(f"s_cselect_b32 s{T3}, s{T3}, 0x7ff00000")
        A("v_lshlrev_b32 v55, 7, v1")
        A(f"buffer_load_dword v{OV}, v55, s[{SW}:{SW+3}], s{T3} offen sc1")
        NPRE += 1
    A(f"s_mov_b32 s{SC}, {hex(C_NLOG2E)}")
    A(f"s_mov_b32 s{SC+1}, {hex(C_NLOG2E)}")
    A(f"s_mov_b32 s{SMODE}, 0")
    A(f"s_mov_b32 s{SQD}, 0")
    A(f"s_sub_u32 s{ST}, s{PWS}, {hex(FBASE)}")
    A(f"s_subb_u32 s{ST+1}, s{PWS+1}, 0")
    A(f"s_and_b32 s{ST+1}, s{ST+1}, 0xffff")
    A(f"s_mov_b32 s{ST+2}, {hex(FBASE + N*512)}")
    A(f"s_mov_b32 s{ST+3}, 0x20000")
    srd(SO, POUT, N * D * 2)
    A(f"v_cvt_f32_u32 v{VLF}, v2")
    A(f"v_lshlrev_b32 v{VH8}, 3, v1")
    A(f"v_add_u32 v{VH8}, {L_H}, v{VH8}")
    A(f"v_add_u32 v{VQ16}, {L_Q}, v{VL16}")
    A(f"v_cvt_f32_u32 v{VM}, v1")
    A(f"v_rcp_f32 v{VM}, v{VM}")
    A("v_xor_b32 v54, v49, v48")
    A(f"v_mul_f32 v{VM}, 0x47800000, v{VM}")
    A("v_lshlrev_b32 v54, 4, v54")
    A(f"v_cvt_u32_f32 v{VM}, v{VM}")
    A("v_lshl_add_u32 v54, v48, 8, v54")
    A(f"v_add_u32 v{VM}, 1, v{VM}")
    for s in range(4):
        A(f"v_xor_b32 v{Q+s}, {64*s}, v54")
        A(f"v_add_u32 v{Q+s}, {L_XT}, v{Q+s}")
    A(f"s_movk_i32 s{T1}, {QROW}")
    A(f"v_mad_u32_u24 v{VA}, v48, s{T1}, v52")
    A(f"v_add_u32 v{VA}, {L_Q}, v{VA}")
    A(f"s_sub_u32 s{T2}, s{SNB}, 32")
    A(f"v_cmp_gt_u32 s[{SQM}:{SQM+1}], s{T2}, v48")
    A(f"s_movk_i32 s{T1}, {HROW}")
    A("v_lshlrev_b32 v55, 4, v49")
    A(f"v_mad_u32_u24 v{AD}, v48, s{T1}, v55")
    A(f"v_add_u32 v{LO+1}, {L_ZROW}, v55")
    A(f"v_lshlrev_b32 v{OUTA}, 8, v48")
    A(f"v_lshl_add_u32 v{OUTA}, v49, 3, v{OUTA}")
    A(f"v_lshlrev_b32 v{LO}, 2, v48")
    A(f"s_lshl_b32 s{SOUT}, s{SN40}, 8")
    A(f"s_lshl_b32 s{T2}, s{SWV}, 5")
    A(f"s_add_u32 s{SOUT}, s{SOUT}, s{T2}")
    A("s_branch K2_START")

    L("K2_PASS")
    A(f"s_lshl_b32 s{T0}, s2, 14")
    A(f"s_add_u32 s{T0}, s{T0}, {hex(WS_SEG)}")
    A(f"buffer_load_dwordx4 {vr(RC,4)}, v{VT16}, s[{SW}:{SW+3}], s{T0} offen")
    A("s_waitcnt vmcnt(0)")
    L("K2_START")
    A(f"v_mov_b32 v{VDEG}, 0")
    A(f"v_mov_b32 v{PZ}, 0")
    A(f"v_mov_b32 v{PZ+1}, 0")
    A(f"s_mov_b32 s{SFIRST}, 1")
    A(f"v_and_b32 v{X0}, 15, v0")
    A(f"v_lshlrev_b32 v{X0}, 1, v{X0}")
    A(f"v_add_u32 v{X1}, -1, v{X0}")
    A(f"s_waitcnt vmcnt({NE+2})")
    stamp(1)
    A(f"v_mov_b32_dpp v{PA_}, v{RC} row_newbcast:0 row_mask:0xf bank_mask:0xf")
    A(f"v_cmp_lt_u32 vcc, {CAP}, v{PA_}")
    A(f"v_cmp_lt_u32 s[{MA}:{MA+1}], v{X1}, v{PA_}")
    A(f"v_cmp_lt_u32 s[{MB}:{MB+1}], v{X0}, v{PA_}")
    A("s_cbranch_vccz K2_ROUND")
    A(f"s_andn2_b64 s[{MA}:{MA+1}], s[{MA}:{MA+1}], vcc")
    A(f"s_andn2_b64 s[{MB}:{MB+1}], s[{MB}:{MB+1}], vcc")
    A(f"s_and_saveexec_b64 s[{SEX}:{SEX+1}], vcc")
    A(f"v_lshrrev_b32 v{X0}, 4, v0")
    A(f"v_lshrrev_b32 v{X1}, 5, v{X0}")
    A(f"v_lshlrev_b32 v{X1}, 2, v{X1}")
    A(f"v_and_b32 v{X0}, 31, v{X0}")
    A(f"v_mov_b32 v{PB_}, 1")
    A(f"v_lshlrev_b32 v{PB_}, v{X0}, v{PB_}")
    A(f"ds_or_b32 v{X1}, v{PB_} offset:{L_FLAG}")
    A(f"s_mov_b64 exec, s[{SEX}:{SEX+1}]")

    L("K2_ROUND")
    A(f"v_and_b32 v{NLA}, 0xfc, v{RC+1}")
    A(f"v_and_b32 v{NLB}, 0xfc, v{RC+3}")
    A(f"v_mov_b32 v{X0}, 4")
    A(f"s_mov_b64 exec, s[{MA}:{MA+1}]")
    A("s_cbranch_execz K2_R1")
    A(f"ds_add_rtn_u32 v{RKA}, v{NLA}, v{X0}")
    L("K2_R1")
    A(f"s_mov_b64 exec, s[{MB}:{MB+1}]")
    A("s_cbranch_execz K2_R2")
    A(f"ds_add_rtn_u32 v{RKB}, v{NLB}, v{X0}")
    L("K2_R2")
    A("s_mov_b64 exec, -1")
    A(f"v_mov_b32 v{X1}, 0")
    A(f"s_cmp_lg_u32 s{SQD}, 0")
    A("s_cbranch_scc1 K2_R2B")
    A(f"s_mov_b32 s{T3}, {hex(WS_CV)}")
    for s in range(NE, 4):
        A(f"buffer_load_dwordx4 {vr(W1F+4*s,4)}, v{VL16}, s[{SW}:{SW+3}], s{SW1} offen offset:{s*1024}")
    A(f"buffer_load_dwordx4 {vr(W,4)}, v{VL16}, s[{SW}:{SW+3}], s{T3} offen")
    A(f"buffer_load_dwordx4 {vr(B2F,4)}, v{OV+1}, s[{SW}:{SW+3}], s{T3} offen offset:2048")
    L("K2_R2B")
    A(f"s_waitcnt vmcnt({NPRE}) lgkmcnt(0)")
    A("s_barrier")
    if XS == "e": stamp(4)
    if XS == "f":
        A("s_waitcnt vmcnt(0)"); stamp(4)
    A(f"ds_read_b32 v{VCNT}, v2")
    A(f"ds_read_b64 {vr(NN,2)}, v{X1} offset:{L_FLAG}")
    A("s_waitcnt lgkmcnt(1)")
    A(f"v_add_u32_dpp v{VEND}, v{VCNT}, v{VCNT} row_shr:1 row_mask:0xf bank_mask:0xf bound_ctrl:0")
    A(f"v_add_u32 v{VDEG}, v{VDEG}, v{VCNT}")
    for k, ctl in enumerate(("row_shr:2 row_mask:0xf bank_mask:0xf bound_ctrl:0",
                "row_shr:4 row_mask:0xf bank_mask:0xf bound_ctrl:0", "row_shr:8 row_mask:0xf bank_mask:0xf bound_ctrl:0",
                "row_bcast:15 row_mask:0xa bank_mask:0xf", "row_bcast:31 row_mask:0xc bank_mask:0xf")):
        A("s_nop 0" if k == 0 else "s_nop 1")
        A(f"v_add_u32_dpp v{VEND}, v{VEND}, v{VEND} {ctl}")
    A(f"v_sub_u32 v{VB4}, v{VEND}, v{VCNT}")
    A("s_waitcnt lgkmcnt(0)")
    A(f"v_readlane_b32 s{STOT}, v{VEND}, 63")
    A(f"ds_bpermute_b32 v{PA_}, v{NLA}, v{VB4}")
    A(f"ds_bpermute_b32 v{PB_}, v{NLB}, v{VB4}")
    A(f"s_cmp_eq_u32 s{SFIRST}, 0")
    A("s_cbranch_scc1 K2_R3")
    A(f"v_readfirstlane_b32 s{SOV}, v{NN}")
    A(f"v_readfirstlane_b32 s{SOV+1}, v{NN+1}")
    A(f"s_mov_b32 s{SPOS}, {CH}")
    L("K2_R3")
    A(f"s_add_u32 s{T1}, s{STOT}, 60")
    A(f"s_lshr_b32 s{SLEN}, s{T1}, 6")
    A(f"s_lshl_b32 s{T1}, s{SLEN}, 2")
    A(f"s_add_u32 s{T2}, s{T1}, 4")
    A(f"v_cmp_lt_u32 vcc, s{T2}, v{VCNT}")
    A(f"s_and_b32 s{T3}, s{SLEN}, 63")
    A(f"v_readlane_b32 s{T0}, v{VM}, s{T3}")
    A(f"s_andn2_b32 s{SFAST}, s{SFIRST}, s{SMODE}")
    A(f"s_cmp_gt_u32 s{STOT}, {4*WIN}")
    A(f"s_cselect_b32 s{SFAST}, 0, s{SFAST}")
    A(f"s_sub_u32 s{T1}, {PRIV_B}, s{T1}")
    A(f"s_or_b64 vcc, vcc, s[{SOV}:{SOV+1}]")
    A(f"s_cselect_b32 s{SFAST}, 0, s{SFAST}")
    A(f"s_cmp_eq_u32 s{SFAST}, 0")
    A("s_waitcnt lgkmcnt(0)")
    A(f"v_add_u32 v{PA_}, v{PA_}, v{RKA}")
    A(f"v_add_u32 v{PB_}, v{PB_}, v{RKB}")
    A("s_cbranch_scc1 K2_WL")
    A(f"v_mul_u32_u24 v{RKA}, s{T0}, v{PA_}")
    A(f"v_mul_u32_u24 v{RKB}, s{T0}, v{PB_}")
    A(f"v_lshrrev_b32 v{RKA}, 18, v{RKA}")
    A(f"v_lshrrev_b32 v{RKB}, 18, v{RKB}")
    A(f"v_mad_u32_u24 v{PA_}, v{RKA}, s{T1}, v{PA_}")
    A(f"v_mad_u32_u24 v{PB_}, v{RKB}, s{T1}, v{PB_}")
    for tag, m, ad, rc in (("A", MA, PA_, RC), ("B", MB, PB_, RC + 2)):
        A(f"s_mov_b64 exec, s[{m}:{m+1}]")
        A(f"s_cbranch_execz K2_P{tag}")
        A(f"ds_write_b32 v{ad}, v{rc} offset:{L_PRIV}")
        A(f"ds_write_b32 v{ad}, v{rc+1} offset:{L_PRIV + PRIV_N*4}")
        L(f"K2_P{tag}")
    A("s_branch K2_WB")
    L("K2_WL")
    A(f"v_lshlrev_b32 v{PA_}, 1, v{PA_}")
    A(f"v_lshlrev_b32 v{PB_}, 1, v{PB_}")
    A(f"v_add_u32 v{PA_}, {L_LIST}, v{PA_}")
    A(f"v_add_u32 v{PB_}, {L_LIST}, v{PB_}")
    for tag, m, ad, rc in (("A", MA, PA_, RC), ("B", MB, PB_, RC + 2)):
        A(f"s_mov_b64 exec, s[{m}:{m+1}]")
        A(f"s_cbranch_execz K2_W{tag}")
        A(f"ds_write_b64 v{ad}, {vr(rc,2)}")
        L(f"K2_W{tag}")
    A("s_mov_b64 exec, -1")
    A(f"s_mov_b32 s{SW2}, 1")
    A("s_waitcnt lgkmcnt(0)")
    A("s_barrier")
    stamp(2)
    def row_load(d, p, pair=False):
        if not pair:
            A(f"v_add_u32 v{p}, v{p}, v2")
        A(f"buffer_load_dword v{d}, v{p}, s[{ST}:{ST+3}], 0 offen")
        A(f"buffer_load_dword v{d+1}, v{p}, s[{ST}:{ST+3}], 0 offen offset:256")
    for k in range(R // 4):
        A(f"ds_read_b128 {vr(TI+4*k,4)}, v{VP} offset:{16*k}")
    A(f"s_cmp_lg_u32 s{SWV}, 0")
    A("s_cbranch_scc1 K2_R4")
    A(f"ds_write_b32 v2, v{X1}")
    L("K2_R4")
    A(f"s_cmp_lg_u32 s{SQD}, 0")
    A("s_cbranch_scc1 K2_SLOW")
    A(f"s_mov_b32 s{SQD}, 1")
    AT = [72, 76, Z2, T, RC, OG[1]]
    seq = [(mt, s) for s in range(4) for mt in range(3)]
    PRE = 5
    for k in range(PRE):
        mt, s = seq[k]
        A(f"ds_read_b128 {vr(AT[k%6],4)}, v{Q+s} offset:{4096*mt}")
    A(f"s_mul_i32 s{T0}, s{SLEN}, s{SWV}")
    A(f"s_add_u32 s{T3}, s{T0}, s{SLEN}")
    A(f"s_lshl_b32 s{T0}, s{T0}, 2")
    A(f"s_lshl_b32 s{T3}, s{T3}, 2")
    A(f"s_min_u32 s{T0}, s{T0}, s{STOT}")
    A(f"s_min_u32 s{T3}, s{T3}, s{STOT}")
    A(f"s_sub_u32 s{SNN}, s{T3}, s{T0}")
    A(f"s_lshr_b32 s{SNN}, s{SNN}, 2")
    A(f"s_waitcnt lgkmcnt({PRE})")
    assert F1 == 4
    for k in range(F1):
        row_load(DAT + 2*k, TI + k)
    A(f"v_cmp_gt_u32 vcc, s{T0}, v{VB4}")
    A(f"v_cmp_lt_u32 s[{TP}:{TP+1}], s{T0}, v{VEND}")
    A(f"s_and_b64 vcc, vcc, s[{TP}:{TP+1}]")
    A(f"s_cselect_b32 s{SLP}, 1, 0")
    A(f"v_cmp_gt_u32 vcc, s{T3}, v{VB4}")
    A(f"v_cmp_lt_u32 s[{TP}:{TP+1}], s{T3}, v{VEND}")
    A(f"s_and_b64 vcc, vcc, s[{TP}:{TP+1}]")
    A(f"s_cselect_b32 s{STAIL}, 1, 0")
    for k, (mt, s) in enumerate(seq):
        if k + PRE < 12:
            m2, s2 = seq[k+PRE]
            A(f"ds_read_b128 {vr(AT[(k+PRE)%6],4)}, v{Q+s2} offset:{4096*m2}")
        w = f"s_waitcnt lgkmcnt({min(PRE, 11-k)})"
        if mt == 0: w += f" vmcnt({NPRE-2-s+2*F1})"
        A(w)
        c = vr(B1P, 4) if s == 0 else vr(NN+4*mt, 4)
        A(f"v_mfma_f32_16x16x32_bf16 {vr(NN+4*mt,4)}, {vr(W1F+4*s,4)}, {vr(AT[k%6],4)}, {c}")
    A(f"ds_read_b32 v{Q}, v{VPL} offset:{PRIV_N*4}")
    for k in range(R // 4):
        A(f"ds_read_b128 {vr(EV+4*k,4)}, v{VP} offset:{PRIV_N*4 + 16*k}")
    A(f"ds_read_b128 {vr(OG[0],4)}, v{VP} offset:{R*4}")
    A(f"v_cmp_le_u32 vcc, s{SNN}, v1")
    A(f"s_movk_i32 s{T2}, {QROW//4}")
    A(f"s_movk_i32 s{T3}, {HROW//4}")
    A(f"s_mov_b32 s{SREM}, s{SNN}")
    for mt in range(3):
        for r in range(4):
            A(f"v_mul_f32 v{NN+4*mt+r}, s{SC}, v{NN+4*mt+r}")
        if mt == 2:
            A(f"s_mov_b64 exec, s[{SQM}:{SQM+1}]")
        A(f"ds_write_b128 v{VA}, {vr(NN+4*mt,4)} offset:{16*mt*QROW}")
    A("s_mov_b64 exec, -1")
    A("s_waitcnt lgkmcnt(0)")
    A("s_barrier")
    stamp(3)
    A(f"s_cmp_eq_u32 s{SFAST}, 0")
    A("s_cbranch_scc1 K2_SLOW")
    A(f"v_and_b32 v{Z2}, 0xfc, v{EV}")
    A(f"v_and_b32 v{Q+1}, 0xfc, v{Q}")
    A(f"v_mad_u32_u24 v{Z2+1}, v{Z2}, s{T2}, v{VQ16}")
    A("s_setprio 3" if PRIO else "s_nop 0")
    A(f"v_mov_b32_dpp v{Q+2}, v{Q+1} wave_shr:1 row_mask:0xf bank_mask:0xf")
    A(f"v_cmp_ne_u32 s[{SM}:{SM+1}], v{Q+1}, v{Q+2}")
    A(f"ds_read_b128 {vr(Q,4)}, v{Z2+1}")
    A(f"s_or_b64 s[{SM}:{SM+1}], s[{SM}:{SM+1}], vcc")
    for k in range(F1, R):
        row_load(DAT + 2*k, TI + k)
    for k in range(4):
        A(f"v_add_u32 v{OG[0]+k}, v{OG[0]+k}, v2")
    def tail_prep():
        for mt in range(3):
            A(f"v_add_u32 v{T+3}, {64*mt}, v{LO}")
            A(f"ds_bpermute_b32 v{T+mt}, v{T+3}, v{VDEG}")
        A(f"v_add_u32 v{AD+2}, {L_H + 32*HROW}, v{AD}")
        A(f"v_add_u32 v{AD+1}, {L_H + 16*HROW}, v{AD}")
        A(f"v_add_u32 v{AD}, {L_H}, v{AD}")
        A("s_waitcnt lgkmcnt(0)")
        for mt in range(3):
            A(f"v_cmp_eq_u32 vcc, 0, v{T+mt}")
            A(f"v_cvt_f32_u32 v{T+mt}, v{T+mt}")
            A(f"v_mul_f32 v{T+mt}, 0.25, v{T+mt}") if False else A(f"v_mul_f32 v{T+mt}, 0x3e800000, v{T+mt}")
            A(f"v_cndmask_b32 v{AD+mt}, v{AD+mt}, v{LO+1}, vcc")
            A(f"v_pk_mul_f32 {vr(OV+4*mt,2)}, {vr(B2F,2)}, {vr(T+(mt&2),2)} " + ("op_sel_hi:[1,0]" if mt % 2 == 0 else "op_sel:[0,1]"))
            A(f"v_pk_mul_f32 {vr(OV+4*mt+2,2)}, {vr(B2F+2,2)}, {vr(T+(mt&2),2)} " + ("op_sel_hi:[1,0]" if mt % 2 == 0 else "op_sel:[0,1]"))
    A(f"s_cmp_ge_u32 s{SWV}, 8")
    A("s_cbranch_scc1 K2_NOTP")
    A(f"s_waitcnt vmcnt({2*R})")
    tail_prep()
    L("K2_NOTP")
    A(f"v_mov_b32 v{LO}, v{Z2}")
    VW = 2 * (R - 1)
    if STAMP and not XS:
        A(f"s_waitcnt vmcnt({VW})")
        stamp(4)
    A(f"s_cmp_eq_u32 s{SNN}, 0")
    A("s_cbranch_scc1 K2_WDONE")
    A("s_branch K2_HC0")

    def e_sel(s):
        base = EV + (s & ~1)
        return (vr(base, 2), "op_sel_hi:[1,0,1]") if s % 2 == 0 else (vr(base, 2), "op_sel:[0,1,0]")
    def part_z1(s, z):
        ep, es = e_sel(s)
        return [f"v_pk_fma_f32 {vr(z,2)}, {vr(W,2)}, {ep}, {vr(Q,2)} {es}",
                f"v_pk_fma_f32 {vr(z+2,2)}, {vr(W+2,2)}, {ep}, {vr(Q+2,2)} {es}"]
    def part_z2(s, z, zo=None):
        d = DAT + 2*s
        zo = z if zo is None else zo
        return [f"v_lshlrev_b64 {vr(LO,2)}, 16, {vr(d,2)}",
                f"v_pk_fma_f32 {vr(zo,2)}, {vr(d,2)}, {C2}, {vr(z,2)}",
                f"v_pk_fma_f32 {vr(zo+2,2)}, {vr(LO,2)}, {C2}, {vr(z+2,2)}"]
    def part_exp(z): return [f"v_exp_f32 v{T+k}, v{z+k}" for k in range(4)]
    def part_nd(z):
        return [f"v_pk_fma_f32 {vr(NN,2)}, {vr(NN,2)}, {vr(T,2)}, {vr(NN,2)}",
                f"v_pk_fma_f32 {vr(NN+2,2)}, {vr(NN+2,2)}, {vr(T+2,2)}, {vr(NN+2,2)}",
                f"v_pk_fma_f32 {vr(NN,2)}, {vr(z,2)}, {vr(DD,2)}, {vr(NN,2)}",
                f"v_pk_fma_f32 {vr(NN+2,2)}, {vr(z+2,2)}, {vr(DD+2,2)}, {vr(NN+2,2)}",
                f"v_pk_fma_f32 {vr(DD,2)}, {vr(DD,2)}, {vr(T,2)}, {vr(DD,2)}",
                f"v_pk_fma_f32 {vr(DD+2,2)}, {vr(DD+2,2)}, {vr(T+2,2)}, {vr(DD+2,2)}"]
    def addr_prep(k):
        A("s_waitcnt lgkmcnt(0)")
        A(f"v_pk_add_f32 {vr(OG[k],2)}, {vr(OG[k],2)}, v[2:3] op_sel:[0,1]")
        A(f"v_pk_add_f32 {vr(OG[k]+2,2)}, {vr(OG[k]+2,2)}, v[2:3] op_sel:[0,1]")
    def refill(s):
        og = OG[(s // 4) % 2]
        if s % 4 == 0:
            A(f"ds_read_b128 {vr(OG[(s//4+1)%2],4)}, v{VP} offset:{(R+s+4)*4}")
        if "noload" not in EXP:
            row_load(DAT + 2*s, og + s % 4, pair=True)
        if s % 4 == 3:
            addr_prep((s // 4 + 1) % 2)
        if s % 4 == 3:
            A(f"ds_read_b128 {vr(EV+s-3,4)}, v{VP} offset:{PRIV_N*4 + (R+s-3)*4}")
    def w2_load():
        A(f"s_mov_b32 s{SW2}, 0")
        A(f"s_lshl_b32 s{T0}, s{SWV}, 13")
        A(f"s_add_u32 s{T0}, s{T0}, {hex(WS_W2F)}")
        A(f"s_add_u32 s{T1}, s{T0}, 4096")
        for k in range(8):
            A(f"buffer_load_dwordx4 {vr(W2R+4*k,4)}, v{VL16}, s[{SW}:{SW+3}], s{T0 + k//4} offen offset:{(k%4)*1024}")
    NG = R // 4
    nocomp = "nocomp" in EXP
    L("K2_LOOP")
    for g in range(NG):
        L(f"K2_G{g}")
        A(f"s_and_b32 s{T0}, s{SM}, {hex(0xF << (4*g))}")
        A(f"s_cbranch_scc1 K2_S{4*g}")
        zz = [Z, Z2]
        s0 = 4*g
        for x in part_z1(s0, zz[0]): A(x)
        A(f"s_waitcnt vmcnt({VW})")
        for x in part_z2(s0, zz[0]): A(x)
        refill(s0)
        for k in range(4):
            s = s0 + k
            z, zn = zz[k % 2], zz[(k + 1) % 2]
            ex, nd = part_exp(z), part_nd(z)
            if nocomp: ex = ["s_nop 0"] * 4; nd = ["s_nop 0"] * 6
            if k < 3:
                a, b = part_z1(s + 1, zn), part_z2(s + 1, zn)
                A(ex[0]); A(a[0]); A(ex[1]); A(a[1]); A(ex[2])
                A(f"s_waitcnt vmcnt({VW})")
                A(b[0]); A(ex[3]); A(nd[0]); A(b[1]); A(nd[1]); A(nd[2]); A(b[2]); A(nd[3])
                refill(s + 1)
                A(nd[4]); A(nd[5])
            else:
                for x in ex + nd: A(x)
    L("K2_PEND")
    A(f"v_add_u32 v{VP}, {R*4}, v{VP}")
    A(f"s_lshr_b64 s[{SM}:{SM+1}], s[{SM}:{SM+1}], {R}")
    A(f"s_sub_u32 s{SREM}, s{SREM}, {R}")
    for thr, p in PRIO_T:
        A(f"s_cmp_gt_u32 s{SREM}, {thr}")
        A("s_cbranch_scc1 K2_LOOP")
        if PRIO: A(f"s_setprio {p}")
    A(f"s_cmp_ge_u32 s{SWV}, 8")
    A("s_cbranch_scc1 K2_LOOP")
    A(f"s_cmp_eq_u32 s{SW2}, 0")
    A("s_cbranch_scc1 K2_LOOP")
    w2_load()
    A("s_branch K2_LOOP")
    for s in range(R):
        L(f"K2_S{s}")
        A(f"s_bitcmp1_b32 s{SM}, {s}")
        A(f"s_cbranch_scc1 K2_H{s}")
        for x in part_z1(s, Z): A(x)
        A(f"s_waitcnt vmcnt({VW})")
        for x in part_z2(s, Z) + ([] if nocomp else part_exp(Z) + part_nd(Z)): A(x)
        L(f"K2_J{s}")
        refill(s)
        if s % 4 == 3:
            A(f"s_branch K2_G{s//4+1}" if s + 1 < R else "s_branch K2_PEND")
    def fold():
        for k in range(4):
            A(f"v_rcp_f32 v{T+k}, v{DD+k}")
        A(f"v_pk_fma_f32 {vr(PZ,2)}, {vr(DD,2)}, {vr(NN,2)}, {vr(PZ,2)}")
        A(f"v_pk_fma_f32 {vr(PZ,2)}, {vr(DD+2,2)}, {vr(NN+2,2)}, {vr(PZ,2)}")
        A(f"v_pk_mul_f32 {vr(Z,2)}, {vr(NN,2)}, {vr(T,2)}")
        A(f"v_pk_mul_f32 {vr(Z+2,2)}, {vr(NN+2,2)}, {vr(T+2,2)}")
    def lead_flush():
        A(f"v_add_u32 v{Z2}, s{SSIDE}, v{VL16}")
        A(f"ds_write_b128 v{Z2}, {vr(Z,4)}")
        A(f"s_lshl_b32 s{T0}, s{SWV}, 2")
        A(f"v_mov_b32 v{Z2+1}, s{T0}")
        A(f"v_mov_b32 v{Z2+2}, 1")
        A(f"ds_write_b32 v{Z2+1}, v{Z2+2} offset:{L_SFL}")
        A(f"s_mov_b32 s{SLP}, 0")
    for s in range(R):
        L(f"K2_H{s}")
        A(f"s_cmp_eq_u32 s{SREM}, {s}")
        A("s_cbranch_scc1 K2_LAST")
        A(f"v_and_b32 v{LO}, 0xfc, v{EV+s}")
        A(f"v_mad_u32_u24 v{LO+1}, v{LO}, s{T2}, v{VQ16}")
        A(f"ds_read_b128 {vr(Q,4)}, v{LO+1}")
        fold()
        A(f"s_cmp_lg_u32 s{SLP}, 0")
        A(f"s_cbranch_scc1 K2_LS{s}")
        A(f"v_cvt_pk_bf16_f32 v{Z}, v{Z}, v{Z+1}")
        A(f"v_cvt_pk_bf16_f32 v{Z+1}, v{Z+2}, v{Z+3}")
        A(f"ds_write_b64 v{VA}, {vr(Z,2)}")
        L(f"K2_HC{s}")
        A(f"v_mad_u32_u24 v{VA}, v{LO}, s{T3}, v{VH8}")
        A(f"s_waitcnt vmcnt({VW}) lgkmcnt(0)")
        for x in part_z1(s, Z) + part_z2(s, Z, NN) + part_exp(NN): A(x)
        A(f"v_pk_add_f32 {vr(DD,2)}, {vr(T,2)}, 1.0 op_sel_hi:[1,0]")
        A(f"v_pk_add_f32 {vr(DD+2,2)}, {vr(T+2,2)}, 1.0 op_sel_hi:[1,0]")
        A(f"s_branch K2_J{s}")
        L(f"K2_LS{s}")
        lead_flush()
        A(f"s_branch K2_HC{s}")
    L("K2_LAST")
    A(f"s_lshl_b32 s{T0}, s{SWV}, 2")
    A(f"v_mov_b32 v{LO}, s{T0}")
    A(f"v_add_u32 v{LO+1}, s{SSIDE}, v{VL16}")
    A(f"ds_read_b32 v{Z2}, v{LO} offset:{L_SFL+4}")
    A(f"ds_read_b128 {vr(Q,4)}, v{LO+1} offset:1024")
    fold()
    A(f"s_cmp_eq_u32 s{SLP}, 0")
    A("s_cbranch_scc1 K2_L1")
    A("s_waitcnt lgkmcnt(0)")
    lead_flush()
    A("s_branch K2_WDONE")
    L("K2_L1")
    A(f"s_cmp_eq_u32 s{STAIL}, 0")
    A("s_cbranch_scc1 K2_L3")
    L("K2_L2")
    A("s_waitcnt lgkmcnt(0)")
    A(f"v_readfirstlane_b32 s{T0}, v{Z2}")
    A(f"s_cmp_lg_u32 s{T0}, 0")
    A("s_cbranch_scc1 K2_L2B")
    A("s_sleep 2")
    A(f"ds_read_b32 v{Z2}, v{LO} offset:{L_SFL+4}")
    A(f"ds_read_b128 {vr(Q,4)}, v{LO+1} offset:1024")
    A("s_branch K2_L2")
    L("K2_L2B")
    A(f"v_pk_add_f32 {vr(Z,2)}, {vr(Z,2)}, {vr(Q,2)}")
    A(f"v_pk_add_f32 {vr(Z+2,2)}, {vr(Z+2,2)}, {vr(Q+2,2)}")
    L("K2_L3")
    A(f"v_cvt_pk_bf16_f32 v{Z}, v{Z}, v{Z+1}")
    A(f"v_cvt_pk_bf16_f32 v{Z+1}, v{Z+2}, v{Z+3}")
    A(f"ds_write_b64 v{VA}, {vr(Z,2)}")
    A("s_branch K2_WDONE")

    L("K2_SLOW")
    A("s_waitcnt vmcnt(0) lgkmcnt(0)")
    A(f"s_cmp_eq_u32 s{SFIRST}, 0")
    A("s_cbranch_scc1 K2_SL0")
    for k in range(12):
        A(f"v_mov_b32 v{SACC+k}, 0")
    L("K2_SL0")
    for i in range(3):
        A(f"s_add_u32 s{T0}, s{SWV}, {16*i}")
        A(f"v_readlane_b32 s{T1}, v{VB4}, s{T0}")
        A(f"v_readlane_b32 s{T2}, v{VCNT}, s{T0}")
        A(f"s_mul_i32 s{T3}, s{T0}, {QROW}")
        A(f"s_cmp_eq_u32 s{T2}, 0")
        A(f"s_cbranch_scc1 K2_SLN{i}")
        A(f"v_add_u32 v{Z2}, s{T3}, v{VQ16}")
        A(f"ds_read_b128 {vr(Q,4)}, v{Z2}")
        A(f"s_lshl_b32 s{T1}, s{T1}, 1")
        A(f"s_add_u32 s{T1}, s{T1}, {L_LIST}")
        A(f"v_mov_b32 v{VA}, s{T1}")
        L(f"K2_SLL{i}")
        A(f"ds_read_b64 {vr(EV,2)}, v{VA}")
        A(f"v_add_u32 v{VA}, 8, v{VA}")
        A("s_waitcnt lgkmcnt(0)")
        row_load(DAT + 2, EV, pair=False)
        for x in part_z1(1, Z): A(x)
        A("s_waitcnt vmcnt(0)")
        for x in part_z2(1, Z) + part_exp(Z): A(x)
        A("s_nop 0")
        for k in range(4):
            A(f"v_add_f32 v{T+k}, 1.0, v{T+k}")
        for k in range(4):
            A(f"v_rcp_f32 v{T+k}, v{T+k}")
        A(f"s_sub_u32 s{T2}, s{T2}, 4")
        for k in range(4):
            A(f"v_fmac_f32 v{SACC+4*i+k}, v{Z+k}, v{T+k}")
        A(f"s_cmp_lg_u32 s{T2}, 0")
        A(f"s_cbranch_scc1 K2_SLL{i}")
        L(f"K2_SLN{i}")
    A(f"s_mov_b32 s{SFIRST}, 0")
    A(f"s_cmp_lt_u32 s{SPOS}, {CH}")
    A("s_cbranch_scc1 K2_FETCH")
    A(f"s_cmp_eq_u64 s[{SOV}:{SOV+1}], 0")
    A("s_cbranch_scc1 K2_SLFIN")
    A(f"s_ff1_i32_b64 s{SCH}, s[{SOV}:{SOV+1}]")
    A(f"s_bitset0_b64 s[{SOV}:{SOV+1}], s{SCH}")
    A(f"s_mov_b32 s{SPOS}, 0")
    L("K2_FETCH")
    A("s_waitcnt lgkmcnt(0)")
    A("s_barrier")
    A(f"s_mul_i32 s{T0}, s{SCH}, {CH}")
    A(f"s_add_u32 s{T0}, s{T0}, s{SPOS}")
    A(f"s_lshl_b32 s{T1}, s{T0}, 2")
    A(f"s_lshl_b32 s{T2}, s{T0}, 1")
    A("v_lshlrev_b32 v64, 3, v0")
    A("v_lshlrev_b32 v65, 2, v0")
    srd(SX, PDST, E * 4)
    A(f"buffer_load_dwordx2 v[66:67], v64, s[{SX}:{SX+3}], s{T1} offen")
    srd(SX, PSRC, E * 4)
    A(f"buffer_load_dwordx2 v[68:69], v64, s[{SX}:{SX+3}], s{T1} offen")
    srd(SX, PE, E * 2)
    A(f"buffer_load_dword v70, v65, s[{SX}:{SX+3}], s{T2} offen")
    A("v_lshlrev_b32 v71, 1, v0")
    A(f"v_add_u32 v71, s{SPOS}, v71")
    A(f"s_movk_i32 s{T0}, {CH}")
    A(f"v_cmp_gt_u32 s[{MA}:{MA+1}], s{T0}, v71")
    A(f"s_add_u32 s{SPOS}, s{SPOS}, 2048")
    A(f"s_mov_b32 s{T0}, {hex(FBASE)}")
    A("s_waitcnt vmcnt(0)")
    A(f"v_lshl_or_b32 v{RC}, v68, 9, s{T0}")
    A(f"v_lshl_or_b32 v{RC+2}, v69, 9, s{T0}")
    A(f"v_subrev_u32 v66, s{SN40}, v66")
    A(f"v_subrev_u32 v67, s{SN40}, v67")
    A(f"v_cmp_gt_u32 vcc, s{SNB}, v67")
    A(f"s_and_b64 s[{MB}:{MB+1}], s[{MA}:{MA+1}], vcc")
    A(f"v_cmp_gt_u32 vcc, s{SNB}, v66")
    A(f"s_and_b64 s[{MA}:{MA+1}], s[{MA}:{MA+1}], vcc")
    A("v_lshlrev_b32 v66, 2, v66")
    A("v_lshlrev_b32 v67, 2, v67")
    A(f"v_lshl_or_b32 v{RC+1}, v70, 16, v66")
    A("v_and_b32 v70, 0xffff0000, v70")
    A(f"v_or_b32 v{RC+3}, v70, v67")
    A("s_branch K2_ROUND")
    L("K2_SLFIN")
    for i in range(3):
        if i == 2:
            A(f"s_cmp_ge_u32 s{SWV}, {NPB-32}")
            A("s_cbranch_scc1 K2_WDONE")
        A(f"s_add_u32 s{T0}, s{SWV}, {16*i}")
        A(f"s_mul_i32 s{T0}, s{T0}, {HROW}")
        A(f"v_add_u32 v{Z2}, s{T0}, v{VH8}")
        A(f"v_cvt_pk_bf16_f32 v{Z}, v{SACC+4*i}, v{SACC+4*i+1}")
        A(f"v_cvt_pk_bf16_f32 v{Z+1}, v{SACC+4*i+2}, v{SACC+4*i+3}")
        A(f"ds_write_b64 v{Z2}, {vr(Z,2)}")
    A("v_and_b32 v48, 15, v1")
    A("v_lshrrev_b32 v49, 4, v1")
    A("v_lshlrev_b32 v55, 4, v49")
    A(f"s_movk_i32 s{T1}, {HROW}")
    A(f"v_mad_u32_u24 v{AD}, v48, s{T1}, v55")
    A(f"v_add_u32 v{LO+1}, {L_ZROW}, v55")
    A(f"v_lshlrev_b32 v{LO}, 2, v48")
    A(f"s_lshl_b32 s{T0}, s{SWV}, 6")
    A(f"s_add_u32 s{T0}, s{T0}, {hex(WS_CV)}")
    A(f"buffer_load_dwordx4 {vr(B2F,4)}, v55, s[{SW}:{SW+3}], s{T0} offen offset:2048")
    A("s_waitcnt vmcnt(0)")
    tail_prep()

    L("K2_WDONE")
    stamp(5)
    A(f"v_add_f32 v{T}, v{PZ}, v{PZ+1}")
    A(f"v_mov_b32 v{Z2+1}, 0x207")
    A(f"v_cmp_class_f32 vcc, v{T}, v{Z2+1}")
    A(f"v_mov_b32 v{Z2+2}, 0")
    A(f"s_mov_b32 s{TP}, {hex(C_NLN2)}")
    A("s_branch K2_NOG" if EXP else "s_cbranch_vccz K2_NOG")
    A(f"ds_write_b32 v{Z2+2}, v{Z2+1} offset:{L_FLAG+8}")
    L("K2_NOG")
    A(f"s_cmp_ge_u32 s{SWV}, 8")
    A("s_cbranch_scc1 K2_B4")
    A(f"s_cmp_eq_u32 s{SW2}, 0")
    A("s_cbranch_scc1 K2_B4")
    w2_load()
    L("K2_B4")
    A("s_waitcnt vmcnt(0) lgkmcnt(0)")
    A("s_barrier")
    stamp(6)
    if os.environ.get("DUMP"):
        A(f"s_lshl_b32 s{T0}, s2, 17")
        A(f"s_add_u32 s{T0}, s{T0}, 0x4000000")
        for k in range(6):
            A(f"v_add_u32 v48, {k*16384}, v{VT16}")
            A("ds_read_b128 v[52:55], v48")
            A("s_waitcnt lgkmcnt(0)")
            A(f"buffer_store_dwordx4 v[52:55], v48, s[{SW}:{SW+3}], s{T0} offen")
            A("s_waitcnt vmcnt(0)")
    A(f"ds_read_b32 v{Z2+3}, v{Z2+2} offset:{L_FLAG+8}")
    A(f"s_cmp_ge_u32 s{SWV}, 8")
    A("s_cbranch_scc1 K2_CHK")
    HB = [48 + 4*k for k in range(8)]
    ACC = [12, 16, 20]
    seq = [(mt, s) for mt in range(3) for s in range(8)]
    PRE = 7
    for k in range(PRE):
        mt, s = seq[k]
        A(f"ds_read_b128 {vr(HB[k%8],4)}, v{AD+mt} offset:{s*64}")
    def epi(mt):
        for r in range(4):
            A(f"v_fma_f32 v{OV+4*mt+r}, v{ACC[mt]+r}, s{TP}, v{OV+4*mt+r}")
        A(f"v_cvt_pk_bf16_f32 v{32+2*mt}, v{OV+4*mt}, v{OV+4*mt+1}")
        A(f"v_cvt_pk_bf16_f32 v{33+2*mt}, v{OV+4*mt+2}, v{OV+4*mt+3}")
    for k, (mt, s) in enumerate(seq):
        if k + PRE < 24:
            m2, s2 = seq[k+PRE]
            A(f"ds_read_b128 {vr(HB[(k+PRE)%8],4)}, v{AD+m2} offset:{s2*64}")
        A(f"s_waitcnt lgkmcnt({min(PRE, 23-k)})")
        c = "0" if s == 0 else vr(ACC[mt], 4)
        A(f"v_mfma_f32_16x16x32_bf16 {vr(ACC[mt],4)}, {vr(W2R+4*s,4)}, {vr(HB[k%8],4)}, {c}")
        if s == 4 and mt > 0:
            epi(mt - 1)
    A("s_nop 7")
    epi(2)
    L("K2_CHK")
    A("s_waitcnt lgkmcnt(0)")
    A(f"v_readfirstlane_b32 s{T2}, v{Z2+3}")
    A(f"s_lshl_b32 s{T1}, s{SMODE}, 31")
    A(f"s_or_b32 s{T2}, s{T2}, s{T1}")
    A(f"s_cmp_gt_i32 s{T2}, 0")
    A("s_cbranch_scc1 K2_REDO")
    A(f"s_cmp_ge_u32 s{SWV}, 8")
    A("s_cbranch_scc1 K2_END2")
    A(f"s_add_u32 s{T2}, s{SOUT}, 4096")
    A(f"s_add_u32 s{T1}, s{SOUT}, 8192")
    A(f"buffer_store_dwordx2 v[32:33], v{OUTA}, s[{SO}:{SO+3}], s{SOUT} offen")
    A(f"buffer_store_dwordx2 v[34:35], v{OUTA}, s[{SO}:{SO+3}], s{T2} offen")
    A(f"s_mov_b64 exec, s[{SQM}:{SQM+1}]")
    A(f"buffer_store_dwordx2 v[36:37], v{OUTA}, s[{SO}:{SO+3}], s{T1} offen")
    L("K2_END2")
    stamp(7)
    if STAMP: A("s_waitcnt vmcnt(0)")
    stamp(8)
    if STAMP: A("s_memtime s[96:97]")
    stamp_flush(1, 3, 11)
    L("K2_END")
    A("s_endpgm")
    L("K2_REDO")
    A(f"s_mov_b32 s{SMODE}, 1")
    A("s_setprio 0")
    A("s_branch K2_PASS")
    L("K2_CODE_END")

hdr = f"""; Kernarg layout for this problem (88 bytes, ptrs only, base s[0:1]):
; @launch kernel=k1_kernel grid=({K1_GRID+NTW},1,1) block=(512,1,1) lds={K1_LDS}
; @launch kernel=k2_kernel grid=({NB},1,1) block=(1024,1,1) lds={K2_LDS}
.amdgcn_target "amdgcn-amd-amdhsa--gfx950"
"""
gen_k1()
gen_k2()
kernel_desc("k1_kernel", 128, 102 if STAMP else 72)
kernel_desc("k2_kernel", 128, 102 if STAMP else 72)
txt = hdr + "\n".join(o for o in out if o is not None) + "\n"
dst = sys.argv[1] if len(sys.argv) > 1 else f"cdna_kernels/{NAME}.s"
open(dst, "w").write(txt)
print("wrote", dst, "K2_LDS", K2_LDS)
```

```python
import sys, struct, os

NAME = "standalone__edge_featured_mpnn_mpnn__graph"
N, E, D, H = 10000, 160000, 128, 256
NB = int(os.environ.get('NBINS', '250'))
NPB = 40
NCH, CH = 64, 2500
CAP = 31
WS_T = 0
WS_SEG = 0x500000
WS_W2F = 0x920000
WS_W1F = 0x930000
WS_CV = 0x940000
WS_DBG = 0x2000000
WS_BYTES = 0x10000000
R = int(os.environ.get("RING", "8"))
PFL = int(os.environ.get("PFL", "0"))
PRIO_T = eval(os.environ.get("PRIO_T", "((32, 2), (21, 1), (10, 0))"))
STAMP = os.environ.get("STAMP", "0") == "1"
EXP = os.environ.get("EXP", "")
PRIO = os.environ.get("PRIO", "1") == "1"
PI = [1, 3, 0, 2]
TCH2 = int(os.environ.get("TCH2", "0"))
TCH1 = int(os.environ.get("TCH1", "0"))
EXP1 = os.environ.get("EXP1", "")
SPF = int(os.environ.get("SPF", "0"))
NE = int(os.environ.get("NE", "0"))
STF = os.environ.get("STF", "nt")
STB = os.environ.get("STB", "")
XS = os.environ.get("XS", "")
FBASE = 0x4B000000
F1 = int(os.environ.get("F1", "4"))

def f32bits(x): return struct.unpack("<I", struct.pack("<f", x))[0]
C_NLOG2E = f32bits(-1.4426950408889634)
C_NLN2 = f32bits(-0.6931471805599453)

out = []
def A(s): out.append("    " + s)
def L(s): out.append(s + ":")
def CM(s): out.append("    ; " + s)
def vr(a, n): return f"v[{a}:{a+n-1}]"

PX, PE, PSRC, PDST, PW1, PB1, PW2, PB2 = 4, 6, 8, 10, 12, 14, 16, 18
POUT, PWS = 20, 22

def srd(dst, base, nrec, off=0):
    if off:
        A(f"s_add_u32 s{dst}, s{base}, {hex(off)}")
        A(f"s_addc_u32 s{dst+1}, s{base+1}, 0")
        src1 = dst + 1
    else:
        A(f"s_mov_b32 s{dst}, s{base}")
        src1 = base + 1
    A(f"s_and_b32 s{dst+1}, s{src1}, 0xffff")
    A(f"s_mov_b32 s{dst+2}, {hex(nrec)}")
    A(f"s_mov_b32 s{dst+3}, 0x20000")

def stamp(k):
    if STAMP: A(f"s_memrealtime s[{76+2*k}:{77+2*k}]")
def stamp_flush(kern, wave_s, nst):
    if not STAMP: return
    A("s_waitcnt lgkmcnt(0)")
    A(f"s_add_u32 s72, s{PWS}, {hex(WS_DBG + kern*0x100000)}")
    A(f"s_addc_u32 s73, s{PWS+1}, 0")
    A("s_and_b32 s73, s73, 0xffff")
    A("s_mov_b32 s74, 0x100000")
    A("s_mov_b32 s75, 0x20000")
    A("s_lshl_b32 s100, s2, 4")
    A(f"s_add_u32 s100, s100, s{wave_s}")
    A("s_lshl_b32 s100, s100, 7")
    A("s_mov_b64 exec, 1")
    A("v_mov_b32 v126, 0")
    for k in range(nst):
        A(f"v_mov_b32 v127, s{76+2*k}")
        A(f"buffer_store_dword v127, v126, s[72:75], s100 offen offset:{4*k}")
    A("s_mov_b64 exec, -1")

def kernel_begin(name):
    out.extend([".text", f".globl {name}", ".p2align 8", f".type {name},@function"])
    L(name)
def kernel_desc(name, vgpr, sgpr):
    acc = (vgpr + 3) // 4 * 4
    out.extend([
        '.section .rodata,"a"', ".p2align 6", f".amdhsa_kernel {name}",
        f"  .amdhsa_next_free_vgpr {vgpr}", f"  .amdhsa_next_free_sgpr {sgpr}", f"  .amdhsa_accum_offset {acc}",
        "  .amdhsa_group_segment_fixed_size 0", "  .amdhsa_kernarg_size 88", "  .amdhsa_user_sgpr_count 2",
        "  .amdhsa_user_sgpr_kernarg_segment_ptr 1", "  .amdhsa_system_sgpr_workgroup_id_x 1", ".end_amdhsa_kernel"])

NTW = int(os.environ.get("NTW", "16"))
K1_GEMM0 = NCH
K1_W20 = NCH + 160
K1_W10 = K1_W20 + 4
K1_CV = K1_W10 + 1
K1_GRID = K1_CV + 1
K1_LDS = int(os.environ.get("K1LDS", "65536"))
K1B0 = os.environ.get("K1B0", "1") == "1"

def gen_k1():
    kernel_begin("k1_kernel")
    A("s_load_dwordx16 s[4:19], s[0:1], 0")
    A("s_load_dwordx2 s[22:23], s[0:1], 80")
    stamp(0)
    if NTW:
        A(f"s_cmp_lt_u32 s2, {NTW}")
        A("s_cbranch_scc1 K1_TOUCH")
        A(f"s_sub_u32 s2, s2, {NTW}")
    A(f"s_cmp_ge_u32 s2, {K1_GRID}")
    A("s_cbranch_scc1 K1_END")
    A("v_and_b32 v1, 63, v0")
    A("v_lshrrev_b32 v2, 6, v0")
    A("v_and_b32 v3, 15, v0")
    A("v_bfe_u32 v4, v0, 4, 2")
    A("v_readfirstlane_b32 s3, v2")
    A("s_mov_b32 s52, 0x05040100")
    A("s_mov_b32 s53, 0x07060302")
    A(f"s_cmp_lt_u32 s2, {K1_GEMM0}")
    A("s_cbranch_scc1 K1_BIN")
    A(f"s_cmp_ge_u32 s2, {K1_W20}")
    A("s_cbranch_scc1 K1_PREP")
    A(f"s_sub_u32 s24, s2, {K1_GEMM0}")
    A("s_and_b32 s25, s24, 7")
    A("s_lshr_b32 s26, s24, 4")
    A("s_lshl_b32 s26, s26, 3")
    A("s_add_u32 s25, s25, s26")
    A("s_bfe_u32 s26, s24, 0x10003")
    A("s_cmp_ge_u32 s25, 79")
    A("s_cbranch_scc1 K1_END")
    A("s_and_b32 s27, s3, 1")
    A("s_lshr_b32 s28, s3, 1")
    A("s_lshl_b32 s30, s28, 14")
    A("s_lshl_b32 s31, s27, 11")
    A("s_add_u32 s30, s30, s31")
    A("s_lshl_b32 s31, s26, 8")
    A("s_add_u32 s30, s30, s31")
    A("s_lshl_b32 s32, s25, 7")
    A("s_lshl_b32 s33, s28, 5")
    A("s_add_u32 s32, s32, s33")
    A("v_lshlrev_b32 v5, 12, v4")
    A("v_lshl_add_u32 v5, v3, 4, v5")
    A("v_lshlrev_b32 v10, 4, v1")
    A("s_lshl_b32 s35, s28, 12")
    A("s_lshl_b32 s54, s27, 3")
    A("s_add_u32 s35, s35, s54")
    A("v_add_u32 v11, s35, v10")
    A("s_lshl_b32 s54, s27, 14")
    A("v_add_u32 v13, s54, v10")
    A("v_lshlrev_b32 v12, 9, v3")
    A("v_lshl_add_u32 v12, v4, 4, v12")
    A("s_lshl_b32 s55, s32, 9")
    A("s_lshl_b32 s54, s26, 7")
    A("s_add_u32 s55, s55, s54")
    A("s_lshl_b32 s54, s27, 6")
    A("s_add_u32 s55, s55, s54")
    A("s_add_u32 s56, s55, 8192")
    A("s_mov_b32 s58, 0x8000")
    for k in range(4):
        A(f"v_xor_b32 v{6+k}, v4, v3")
        if k: A(f"v_xor_b32 v{6+k}, {4*k}, v{6+k}")
        A(f"v_lshlrev_b32 v{6+k}, 4, v{6+k}")
        A(f"v_lshl_add_u32 v{6+k}, v4, 8, v{6+k}")
    A("s_lshl_b32 s33, s25, 15")
    A("s_lshl_b32 s34, s3, 12")
    A("s_add_u32 s33, s33, s34")
    A("s_add_u32 s34, s34, 32768")
    A("s_mov_b32 m0, s34")
    A("v_xor_b32 v14, v4, v3")
    A("v_lshlrev_b32 v14, 4, v14")
    A("v_lshl_add_u32 v14, v3, 8, v14")
    A("s_lshl_b32 s54, s28, 13")
    A("s_add_u32 s54, s54, 32768")
    for s in range(4):
        A(f"v_xor_b32 v{112+s}, {64*s}, v14")
        A(f"v_add_u32 v{112+s}, s54, v{112+s}")
    A("s_waitcnt lgkmcnt(0)")
    srd(36, PW1, 257 * 512)
    WL = 48
    for j in range(4):
        A(f"buffer_load_dwordx4 {vr(WL+4*j,4)}, v5, s[36:39], s30 offen offset:{j*512}")
    srd(40, PX, N * 256)
    if K1B0: A("s_barrier")
    for k in range(4):
        A(f"buffer_load_dwordx4 v{6+k}, s[40:43], s33 offen offset:{1024*k} lds")
    AF = 16
    srd(48, PWS, N * 512)
    if TCH1:
        A("buffer_load_dword v15, v12, s[48:51], s55 offen")
    A(f"s_waitcnt vmcnt({5 if TCH1 else 4})")
    stamp(1)
    PT = 64
    for pr in range(2):
        for dw in range(4):
            a, b = WL + 8*pr + dw, WL + 8*pr + 4 + dw
            A(f"v_perm_b32 v{PT+(2*dw)*2+pr}, v{b}, v{a}, s52")
            A(f"v_perm_b32 v{PT+(2*dw+1)*2+pr}, v{b}, v{a}, s53")
    for col in range(8):
        A(f"ds_write_b64 v11, {vr(PT+2*col,2)} offset:{(col>>2)*16384 + (col&3)*1024}")
    A(f"s_waitcnt vmcnt({1 if TCH1 else 0}) lgkmcnt(0)")
    A("s_barrier")
    stamp(2)
    ACC = [80, 96]
    BB = [48, 52, 56, 60, 64, 68]
    ops = []
    for s in range(4):
        ops += [("x", 0, s), ("x", 1, s)] + [("w", s, t) for t in range(4)]
    def rd(op, wi):
        if op[0] == "x":
            A(f"ds_read_b128 {vr(AF+(op[1]*4+op[2])*4,4)}, v{112+op[2]} offset:{4096*op[1]}")
        else:
            A(f"ds_read_b128 {vr(BB[wi%6],4)}, v13 offset:{(op[1]*4+op[2])*1024}")
    widx = {}
    n = 0
    for i_, op in enumerate(ops):
        if op[0] == "w":
            widx[i_] = n; n += 1
    issued = 0
    def issue_upto(wlimit):
        nonlocal issued
        while issued < len(ops) and (ops[issued][0] == "x" or widx[issued] <= wlimit):
            rd(ops[issued], widx.get(issued, 0)); issued += 1
    for i_, op in enumerate(ops):
        if op[0] != "w": continue
        k = widx[i_]
        issue_upto(k + 4)
        A(f"s_waitcnt lgkmcnt({issued - 1 - i_})")
        s, t = op[1], op[2]
        for i in range(2):
            d = ACC[i] + 4*t
            c = "0" if s == 0 else vr(d, 4)
            A(f"v_mfma_f32_16x16x32_bf16 {vr(d,4)}, {vr(BB[k%6],4)}, {vr(AF+(i*4+s)*4,4)}, {c}")
    A("s_nop 1")
    stamp(4)
    for i in range(2):
        o0, o1 = 16 + 8*i, 20 + 8*i
        for t in range(4):
            f = [ACC[i] + 4*t + r for r in range(4)]
            for r in range(4):
                A(f"v_add_f32 v{f[r]}, 0, v{f[r]}")
            for r in range(4):
                A(f"v_add_u32 v{f[r]}, s58, v{f[r]}")
            for r in range(1, 4):
                A(f"v_sub_u32_sdwa v{f[r]}, v{f[r]}, v{f[r-1]} clamp dst_sel:DWORD dst_unused:UNUSED_PAD src0_sel:DWORD src1_sel:WORD_1")
            A(f"v_perm_b32 v{o0+t}, v{f[1]}, v{f[0]}, s53")
            A(f"v_perm_b32 v{o1+t}, v{f[3]}, v{f[2]}, s53")
        if "nop" not in EXP1:
            A(f"buffer_store_dwordx4 {vr(o0,4)}, v12, s[48:51], s{55+i} offen {STF}")
            A(f"buffer_store_dwordx4 {vr(o1,4)}, v12, s[48:51], s{55+i} offen offset:256 {STF}")
    stamp(5)
    if STAMP: A("s_waitcnt vmcnt(0)")
    stamp(6)
    stamp_flush(0, 3, 7)
    A("s_endpgm")

    L("K1_PREP")
    A("v_lshlrev_b32 v10, 4, v1")
    A(f"s_cmp_ge_u32 s2, {K1_CV}")
    A("s_cbranch_scc1 K1_CVEC")
    A(f"s_cmp_ge_u32 s2, {K1_W10}")
    A("s_cbranch_scc1 K1_W1")
    CM("w2: frag (nt, s) lane (c,g) jj -> w2[128(s>>2) + 64(s&1) + 32(g>>1) + 8 pi(jj&3) + 4((s>>1)&1) + 2(g&1) + (jj>>2)][16 nt + c]")
    A(f"s_sub_u32 s24, s2, {K1_W20}")
    A("s_lshr_b32 s25, s3, 2")
    A("s_lshl_b32 s25, s25, 15")
    A("s_and_b32 s26, s3, 1")
    A("s_lshl_b32 s26, s26, 14")
    A("s_add_u32 s25, s25, s26")
    A("s_bfe_u32 s26, s3, 0x10001")
    A("s_lshl_b32 s26, s26, 10")
    A("s_add_u32 s25, s25, s26")
    A("s_lshl_b32 s26, s24, 6")
    A("s_add_u32 s25, s25, s26")
    A("s_add_u32 s26, s25, 4096")
    A("v_lshrrev_b32 v5, 1, v4")
    A("v_lshlrev_b32 v5, 13, v5")
    A("v_and_b32 v6, 1, v4")
    A("v_lshl_add_u32 v5, v6, 9, v5")
    A("v_lshl_add_u32 v5, v3, 1, v5")
    A("s_lshl_b32 s27, s24, 14")
    A("s_lshl_b32 s28, s3, 10")
    A("s_add_u32 s27, s27, s28")
    A("s_add_u32 s28, s27, 8192")
    A("s_waitcnt lgkmcnt(0)")
    srd(36, PW2, 256 * 256)
    srd(40, PWS, 65536, off=WS_W2F)
    for t in range(2):
        for j in range(8):
            ro = (8*PI[j&3] + (j>>2))*256 + 32*t
            A(f"buffer_load_ushort v{16+8*t+j}, v5, s[36:39], s{25 + ro//4096} offen offset:{ro%4096}")
    A("s_waitcnt vmcnt(0)")
    for t in range(2):
        for jj in range(4):
            A(f"v_lshl_or_b32 v{32+4*t+jj}, v{17+8*t+2*jj}, 16, v{16+8*t+2*jj}")
    A("buffer_store_dwordx4 v[32:35], v10, s[40:43], s27 offen")
    A("buffer_store_dwordx4 v[36:39], v10, s[40:43], s28 offen")
    A("s_endpgm")
    L("K1_W1")
    CM("W1[128:256]: frag (w, s) lane (4g'' + i, g) jj -> w1[128 + 32s + 8g + jj][128(w>>3) + 32(w&3) + 8 pi(i) + 4((w>>2)&1) + g'']")
    A("s_lshr_b32 s24, s3, 2")
    A("s_and_b32 s25, s3, 3")
    A("s_lshl_b32 s26, s25, 14")
    A("s_lshl_b32 s27, s24, 8")
    A("s_add_u32 s26, s26, s27")
    A(f"s_add_u32 s26, s26, {128*512}")
    A("v_lshlrev_b32 v5, 12, v4")
    A("v_lshl_add_u32 v5, v3, 4, v5")
    A("s_lshl_b32 s27, s24, 15")
    A("s_lshl_b32 s28, s25, 10")
    A("s_add_u32 s27, s27, s28")
    A("s_add_u32 s28, s27, 16384")
    A("v_lshrrev_b32 v6, 2, v3")
    A("v_lshlrev_b32 v6, 12, v6")
    A("v_and_b32 v7, 3, v3")
    A("v_lshlrev_b32 v7, 2, v7")
    A("v_mov_b32 v8, 0x1302")
    A("v_bfe_u32 v7, v8, v7, 4")
    A("v_lshl_add_u32 v6, v7, 4, v6")
    A("v_lshl_add_u32 v6, v4, 8, v6")
    A("s_waitcnt lgkmcnt(0)")
    srd(36, PW1, 257 * 512)
    srd(40, PWS, 65536, off=WS_W1F)
    for jj in range(8):
        A(f"buffer_load_dwordx4 {vr(16+4*jj,4)}, v5, s[36:39], s26 offen offset:{jj*512}")
    A("s_waitcnt vmcnt(0)")
    for col in range(8):
        o = 48 + col * 4
        for pr in range(4):
            a, b = 16 + 8*pr + (col >> 1), 16 + 8*pr + 4 + (col >> 1)
            A(f"v_perm_b32 v{o+pr}, v{b}, v{a}, s{53 if col & 1 else 52}")
        A(f"buffer_store_dwordx4 {vr(o,4)}, v6, s[40:43], s{27+(col>>2)} offen offset:{(col&3)*64}")
    A("s_endpgm")
    L("K1_CVEC")
    CM("thread t < 256: l = t>>2, i = t&3: -log2e w1[256][phi(l, pi(i))], b1[phi(l, pi(i))] as f32; t < 128: b2[t] as f32")
    A("s_cmp_ge_u32 s3, 4")
    A("s_cbranch_scc1 K1_END")
    A("v_and_b32 v5, 3, v0")
    A("v_lshlrev_b32 v5, 2, v5")
    A("v_mov_b32 v8, 0x2031")
    A("v_bfe_u32 v5, v8, v5, 4")
    A("v_lshlrev_b32 v5, 3, v5")
    A("v_bfe_u32 v6, v0, 2, 2")
    A("v_add_u32 v5, v5, v6")
    A("v_lshl_add_u32 v5, v4, 5, v5")
    A("v_bfe_u32 v6, v0, 6, 1")
    A("v_lshl_add_u32 v5, v6, 2, v5")
    A("v_bfe_u32 v6, v0, 7, 1")
    A("v_lshl_add_u32 v5, v6, 7, v5")
    A("v_lshlrev_b32 v5, 1, v5")
    A("v_lshlrev_b32 v6, 1, v0")
    A("v_lshlrev_b32 v7, 2, v0")
    A(f"s_mov_b32 s24, {256*512}")
    A(f"s_mov_b32 s25, {hex(C_NLOG2E)}")
    A("s_waitcnt lgkmcnt(0)")
    srd(36, PW1, 257 * 512)
    srd(40, PB1, 512)
    srd(44, PB2, 256)
    srd(48, PWS, 2048 + 512, off=WS_CV)
    A("buffer_load_ushort v16, v5, s[36:39], s24 offen")
    A("buffer_load_ushort v17, v5, s[40:43], 0 offen")
    A("buffer_load_ushort v18, v6, s[44:47], 0 offen")
    A("s_waitcnt vmcnt(0)")
    for k in range(3):
        A(f"v_lshlrev_b32 v{16+k}, 16, v{16+k}")
    A("v_mul_f32 v16, s25, v16")
    A("buffer_store_dword v16, v7, s[48:51], 0 offen")
    A("buffer_store_dword v17, v7, s[48:51], 0 offen offset:1024")
    A("buffer_store_dword v18, v7, s[48:51], 0 offen offset:2048")
    A("s_endpgm")

    L("K1_BIN")
    A("v_lshlrev_b32 v5, 2, v0")
    A("v_lshlrev_b32 v6, 1, v0")
    A("v_mov_b32 v7, 0")
    A("v_mov_b32 v8, 1")
    A("ds_write_b32 v5, v7")
    A(f"s_mul_i32 s24, s2, {CH*4}")
    A(f"s_mul_i32 s25, s2, {CH*2}")
    A("s_movk_i32 s26, 0x1000")
    A("s_movk_i32 s27, 0x2000")
    A("s_lshl_b32 s28, s2, 8")
    A("s_add_u32 s29, s28, 8")
    A(f"s_movk_i32 s32, {CH - 4*512}")
    A(f"s_mov_b32 s33, {hex(FBASE)}")
    A(f"s_movk_i32 s34, {-NPB if NB == 250 else 625}")
    A("v_cmp_gt_u32 s[60:61], s32, v0")
    A("s_waitcnt lgkmcnt(0)")
    DST, REC, EV, RK, BN = 16, 24, 40, 48, 56
    so4 = ["0", "0", "s26", "s26", "s27"]; io4 = [0, 2048, 0, 2048, 0]
    so2 = ["0", "0", "0", "0", "s26"]; io2 = [0, 1024, 2048, 3072, 0]
    def csrd(d, p, off, nb):
        A(f"s_add_u32 s{d}, s{p}, s{off}")
        A(f"s_addc_u32 s{d+1}, s{p+1}, 0")
        A(f"s_and_b32 s{d+1}, s{d+1}, 0xffff")
        A(f"s_mov_b32 s{d+2}, {nb}")
        A(f"s_mov_b32 s{d+3}, 0x20000")
    csrd(36, PDST, 24, CH*4)
    for j in range(5):
        A(f"buffer_load_dword v{DST+j}, v5, s[36:39], {so4[j]} offen offset:{io4[j]}")
    csrd(40, PSRC, 24, CH*4)
    csrd(44, PE, 25, CH*2)
    for j in range(5):
        A(f"buffer_load_dword v{REC+2*j}, v5, s[40:43], {so4[j]} offen offset:{io4[j]}")
        A(f"buffer_load_ushort v{EV+j}, v6, s[44:47], {so2[j]} offen offset:{io2[j]}")
    srd(48, PWS, NB * NCH * 256, off=WS_SEG)
    A("s_barrier")
    for j in range(5):
        A(f"s_waitcnt vmcnt({14-j})")
        A(f"v_mul_u32_u24 v{BN+j}, {'0xcccd' if NB == 250 else 429497}, v{DST+j}")
        A(f"v_lshrrev_b32 v{BN+j}, {21 if NB == 250 else 24}, v{BN+j}")
        A(f"v_lshlrev_b32 v9, 2, v{BN+j}")
        if j == 4:
            A(f"v_mov_b32 v{RK+j}, {CAP}")
            A("s_mov_b64 exec, s[60:61]")
            A("s_cbranch_execz K1_B_SKIP4")
        A(f"ds_add_rtn_u32 v{RK+j}, v9, v8")
        if j == 4:
            L("K1_B_SKIP4")
            A("s_mov_b64 exec, -1")
        if NB == 250:
            A(f"v_mad_i32_i24 v{DST+j}, v{BN+j}, s34, v{DST+j}")
        else:
            A(f"v_mad_u32_u24 v10, v{BN+j}, s34, 15")
            A("v_lshrrev_b32 v10, 4, v10")
            A(f"v_sub_u32 v{DST+j}, v{DST+j}, v10")
        A(f"v_lshlrev_b32 v{BN+j}, 14, v{BN+j}")
        A(f"v_lshlrev_b32 v{DST+j}, 2, v{DST+j}")
    stamp(1)
    A("v_mov_b32 v11, 0x7ffff000")
    for j in range(5):
        A(f"s_waitcnt vmcnt({8-2*j+j}) lgkmcnt({0 if (j >= 3 or STAMP) else 3-j})")
        A(f"v_lshl_or_b32 v{REC+2*j+1}, v{EV+j}, 16, v{DST+j}")
        A(f"v_cmp_gt_u32 vcc, {CAP}, v{RK+j}")
        A(f"v_lshl_or_b32 v{REC+2*j}, v{REC+2*j}, 9, s33")
        A(f"v_lshl_add_u32 v9, v{RK+j}, 3, v{BN+j}")
        A("v_cndmask_b32 v9, v11, v9, vcc")
        if "norec" in EXP1: A("v_mov_b32 v9, v11")
        A(f"buffer_store_dwordx2 {vr(REC+2*j,2)}, v9, s[48:51], s29 offen {STB}")
    stamp(2)
    A("s_barrier")
    A("ds_read_b32 v10, v5")
    A("v_lshlrev_b32 v9, 14, v0")
    A("s_waitcnt lgkmcnt(0)")
    if "norec" in EXP1: A("v_mov_b32 v10, 0")
    if "nocnt" in EXP1: A("v_mov_b32 v9, v11")
    A(f"buffer_store_dword v10, v9, s[48:51], s28 offen {STB}")
    stamp(3)
    if STAMP: A("s_waitcnt vmcnt(0)")
    stamp(4)
    stamp_flush(0, 3, 5)
    L("K1_END")
    A("s_endpgm")
    if NTW:
        L("K1_TOUCH")
        CM("prefetch role: one load per 32 KB of the workspace part in use and of the output, one per line of k2's code")
        A("s_load_dwordx2 s[20:21], s[0:1], 64")
        A("v_lshlrev_b32 v1, 15, v0")
        A("v_lshlrev_b32 v2, 7, v0")
        A("s_getpc_b64 s[24:25]")
        L("K1_PC")
        A("s_add_u32 s24, s24, k2_kernel-K1_PC")
        A("s_addc_u32 s25, s25, 0")
        A("s_and_b32 s25, s25, 0xffff")
        A("s_mov_b32 s26, K2_CODE_END-k2_kernel")
        A("s_mov_b32 s27, 0x20000")
        A("buffer_load_dword v5, v2, s[24:27], 0 offen")
        A("s_waitcnt lgkmcnt(0)")
        srd(28, PWS, WS_CV + 4096)
        srd(32, POUT, N * D * 2)
        A("buffer_load_dword v3, v1, s[28:31], 0 offen")
        A("buffer_load_dword v4, v1, s[32:35], 0 offen")
        A("s_waitcnt vmcnt(0)")
        A("s_endpgm")

QROW, HROW = 1040, 528
L_CNT = 0
L_FLAG = 256
L_SFL = 272
L_ZROW = 352
ZERO_B = 864
L_PRIV = 896
PRIV_N = 64 + R + 8
PRIV_B = PRIV_N * 8
L_H = L_PRIV + 16 * PRIV_B
L_SIDE = L_H + NPB * HROW
L_Q = L_SIDE + 16 * 1024
L_XT = L_Q + NPB * QROW
L_LIST = L_XT + 16 * 1024
K2_LDS = L_LIST + 2048 * 8
assert K2_LDS <= 163840 and PRIV_N % 4 == 0 and R == 8 and L_XT % 1024 != -1 and L_H % 16 == 0 and L_Q % 16 == 0
WIN = 16 * 63
DUMMY = FBASE + 0x7FF000

def gen_k2():
    kernel_begin("k2_kernel")
    VLF, VH8, VL16, VT16, VQ16 = 3, 4, 5, 6, 7
    W, Q, NN, DD, Z, Z2, T, LO, PZ = 8, 12, 16, 20, 24, 28, 32, 36, 38
    VA, VP, VDEG, VB4, VCNT, VPL, VM, VEND = 40, 41, 42, 43, 44, 45, 46, 47
    EV, OG, DAT = 48, [56, 60], 64
    AD, OUTA, OV = 80, 83, 84
    B2F = 92
    W2R = 96
    W1F, B1P, RC, TI = 96, 112, 116, 120
    SACC = 100
    ST, SW, SO, SX = 24, 28, 32, 36
    MA, MB = 40, 42
    SC = 44
    SMODE, SFIRST, SPOS, SQD, SCH, SFAST = 46, 47, 48, 49, 50, 51
    SOV, SM = 52, 54
    SREM, STOT, SLP, SW2, SNN, SWV = 56, 57, 58, 59, 60, 3
    SN40, SEX = 61, 62
    T0, T1, T2, T3, TP = 64, 65, 66, 67, 68
    STAIL, SSIDE = 70, 71
    SQM = 4
    SW1, SNB = 14, 15
    SLEN, SOUT = 12, 13
    C2 = f"s[{SC}:{SC+1}]"
    NLA, NLB, RKA, RKB, PA_, PB_, X0, X1 = 28, 29, 30, 31, 32, 33, 34, 35

    A("s_load_dwordx8 s[4:11], s[0:1], 0")
    A("s_load_dwordx2 s[20:21], s[0:1], 64")
    A("s_load_dwordx2 s[22:23], s[0:1], 80")
    stamp(0)
    if STAMP: A("s_memtime s[94:95]")
    A(f"s_cmp_ge_u32 s2, {NB}")
    A("s_cbranch_scc1 K2_END")
    A("v_and_b32 v1, 63, v0")
    A("v_lshrrev_b32 v48, 6, v0")
    A(f"v_lshlrev_b32 v{VT16}, 4, v0")
    A(f"v_readfirstlane_b32 s{SWV}, v48")
    A("v_lshlrev_b32 v2, 2, v1")
    A(f"s_lshl_b32 s{T0}, s2, 14")
    A(f"s_add_u32 s{T0}, s{T0}, {hex(WS_SEG)}")
    if NB == 250:
        A(f"s_mul_i32 s{SN40}, s2, {NPB}")
        A(f"s_mov_b32 s{SNB}, {NPB}")
    else:
        A(f"s_mul_i32 s{SN40}, s2, 625")
        A(f"s_add_u32 s{SNB}, s{SN40}, 640")
        A(f"s_add_u32 s{SN40}, s{SN40}, 15")
        A(f"s_lshr_b32 s{SN40}, s{SN40}, 4")
        A(f"s_lshr_b32 s{SNB}, s{SNB}, 4")
        A(f"s_sub_u32 s{SNB}, s{SNB}, s{SN40}")
    for k in range(4):
        A(f"v_mov_b32 v{52+k}, 0")
    A(f"v_cmp_gt_u32 vcc, {ZERO_B//16}, v0")
    A(f"s_mul_i32 s{T1}, s{SWV}, {PRIV_B}")
    A(f"s_add_u32 s{T1}, s{T1}, {L_PRIV}")
    A(f"s_and_saveexec_b64 s[{SEX}:{SEX+1}], vcc")
    A("s_cbranch_execz K2_Z1")
    A(f"ds_write_b128 v{VT16}, v[52:55]")
    L("K2_Z1")
    A(f"s_mov_b64 exec, s[{SEX}:{SEX+1}]")
    A(f"v_add_u32 v{VPL}, s{T1}, v2")
    A(f"v_mov_b32 v56, {hex(DUMMY)}")
    A(f"ds_write_b32 v{VPL}, v56")
    A(f"ds_write_b32 v{VPL}, v56 offset:{(PRIV_N-64)*4}")
    A(f"v_mov_b32 v{VP}, s{T1}")
    A("v_and_b32 v48, 15, v1")
    A("v_lshrrev_b32 v49, 4, v1")
    A("v_lshrrev_b32 v50, 4, v0")
    A("v_xor_b32 v51, v50, v48")
    A("v_and_b32 v51, 15, v51")
    A("v_lshlrev_b32 v51, 4, v51")
    A("v_lshl_add_u32 v51, v50, 8, v51")
    A(f"s_lshl_b32 s{SSIDE}, s{SWV}, 10")
    A(f"s_add_u32 s{T2}, s{SSIDE}, {L_XT}")
    A(f"s_mov_b32 m0, s{T2}")
    A(f"s_add_u32 s{SSIDE}, s{SSIDE}, {L_SIDE}")
    A(f"s_lshl_b32 s{T2}, s{SN40}, 8")
    A(f"s_mov_b32 s{T3}, {hex(WS_CV - 12*1024)}")
    A(f"v_lshlrev_b32 v{VL16}, 4, v1")
    A("s_waitcnt lgkmcnt(0)")
    srd(SW, PWS, WS_BYTES)
    A(f"buffer_load_dwordx4 {vr(RC,4)}, v{VT16}, s[{SW}:{SW+3}], s{T0} offen")
    srd(SX, PX, N * 256)
    A(f"s_cmp_lt_u32 s{SWV}, 12")
    A("s_cbranch_scc0 K2_CVL")
    A(f"buffer_load_dwordx4 v51, s[{SX}:{SX+3}], s{T2} offen lds")
    A("s_branch K2_CVD")
    L("K2_CVL")
    A(f"buffer_load_dwordx4 v{VT16}, s[{SW}:{SW+3}], s{T3} offen lds")
    L("K2_CVD")
    if SPF:
        A(f"s_lshr_b32 s{T1}, s2, 3")
        A(f"s_lshl_b32 s{T1}, s{T1}, 4")
        A(f"s_add_u32 s{T1}, s{T1}, s{SWV}")
        A(f"s_mul_i32 s{T1}, s{T1}, {SPF*128}")
        A(f"s_add_u32 s16, s{PWS}, s{T1}")
        A(f"s_addc_u32 s17, s{PWS+1}, 0")
        for k in range(SPF):
            A(f"s_load_dword s{18 + (k&1)}, s[16:17], {k*128}")
    A("s_barrier")
    if XS == "g": stamp(4)
    A(f"s_lshl_b32 s{T1}, s{SWV}, 12")
    A(f"s_add_u32 s{T2}, s{T1}, {hex(WS_W1F)}")
    A("v_lshlrev_b32 v52, 4, v50")
    for s in range(4):
        A(f"buffer_load_dwordx4 {vr(W1F+4*s,4)}, v{VL16}, s[{SW}:{SW+3}], s{T2} offen offset:{s*1024}")
    L_CV = L_XT + 12 * 1024
    if TCH2:
        srd(SO, POUT, N * D * 2)
        A(f"s_cmp_lg_u32 s{SWV}, 15")
        A("s_cbranch_scc1 K2_NOT")
        A(f"v_lshlrev_b32 v57, {TCH2}, v1")
        A(f"s_mov_b32 s{SX}, s{SW}")
        A(f"s_mov_b32 s{SX+1}, s{SW+1}")
        A(f"s_mov_b32 s{SX+2}, {N*512}")
        A(f"s_lshl_b32 s{T3}, s{SN40}, 8")
        A(f"buffer_load_dword v58, v57, s[{SX}:{SX+3}], 0 offen")
        A(f"buffer_load_dword v59, v2, s[{SO}:{SO+3}], s{T3} offen")
        L("K2_NOT")
    A(f"v_add_u32 v{OV}, {L_CV + 1024}, v52")
    A(f"v_and_b32 v{OV+1}, 0x1ff, v52")
    A(f"v_add_u32 v{OV+1}, {L_CV + 2048}, v{OV+1}")
    A(f"v_add_u32 v{OV+2}, {L_CV}, v{VL16}")
    NPRE = 4
    assert not PFL
    if PFL:
        A(f"s_lshr_b32 s{T3}, s2, 3")
        A(f"s_mul_i32 s{T3}, s{T3}, {PFL*128}")
        A(f"s_sub_u32 s{T2}, 15, s{SWV}")
        A(f"s_lshl_b32 s{T1}, s{T2}, 13")
        A(f"s_add_u32 s{T3}, s{T3}, s{T1}")
        A(f"s_cmp_lt_u32 s{T2}, {PFL//64}")
        A(f"s_cselect_b32 s{T3}, s{T3}, 0x7ff00000")
        A("v_lshlrev_b32 v55, 7, v1")
        A(f"buffer_load_dword v{OV}, v55, s[{SW}:{SW+3}], s{T3} offen sc1")
        NPRE += 1
    A(f"s_mov_b32 s{SC}, {hex(C_NLOG2E)}")
    A(f"s_mov_b32 s{SC+1}, {hex(C_NLOG2E)}")
    A(f"s_mov_b32 s{SMODE}, 0")
    A(f"s_mov_b32 s{SQD}, 0")
    A(f"s_sub_u32 s{ST}, s{PWS}, {hex(FBASE)}")
    A(f"s_subb_u32 s{ST+1}, s{PWS+1}, 0")
    A(f"s_and_b32 s{ST+1}, s{ST+1}, 0xffff")
    A(f"s_mov_b32 s{ST+2}, {hex(FBASE + N*512)}")
    A(f"s_mov_b32 s{ST+3}, 0x20000")
    srd(SO, POUT, N * D * 2)
    A(f"v_cvt_f32_u32 v{VLF}, v2")
    A(f"v_lshlrev_b32 v{VH8}, 3, v1")
    A(f"v_add_u32 v{VH8}, {L_H}, v{VH8}")
    A(f"v_add_u32 v{VQ16}, {L_Q}, v{VL16}")
    A(f"v_cvt_f32_u32 v{VM}, v1")
    A(f"v_rcp_f32 v{VM}, v{VM}")
    A("v_xor_b32 v54, v49, v48")
    A(f"v_mul_f32 v{VM}, 0x47800000, v{VM}")
    A("v_lshlrev_b32 v54, 4, v54")
    A(f"v_cvt_u32_f32 v{VM}, v{VM}")
    A("v_lshl_add_u32 v54, v48, 8, v54")
    A(f"v_add_u32 v{VM}, 1, v{VM}")
    for s in range(4):
        A(f"v_xor_b32 v{Q+s}, {64*s}, v54")
        A(f"v_add_u32 v{Q+s}, {L_XT}, v{Q+s}")
    A(f"s_movk_i32 s{T1}, {QROW}")
    A(f"v_mad_u32_u24 v{VA}, v48, s{T1}, v52")
    A(f"v_add_u32 v{VA}, {L_Q}, v{VA}")
    A(f"s_sub_u32 s{T2}, s{SNB}, 32")
    A(f"v_cmp_gt_u32 s[{SQM}:{SQM+1}], s{T2}, v48")
    A(f"s_movk_i32 s{T1}, {HROW}")
    A("v_lshlrev_b32 v55, 4, v49")
    A(f"v_mad_u32_u24 v{AD}, v48, s{T1}, v55")
    A(f"v_add_u32 v{LO+1}, {L_ZROW}, v55")
    A(f"v_lshlrev_b32 v{OUTA}, 8, v48")
    A(f"v_lshl_add_u32 v{OUTA}, v49, 3, v{OUTA}")
    A(f"v_lshlrev_b32 v{LO}, 2, v48")
    A(f"s_lshl_b32 s{SOUT}, s{SN40}, 8")
    A(f"s_lshl_b32 s{T2}, s{SWV}, 5")
    A(f"s_add_u32 s{SOUT}, s{SOUT}, s{T2}")
    A("s_branch K2_START")

    L("K2_PASS")
    A(f"s_lshl_b32 s{T0}, s2, 14")
    A(f"s_add_u32 s{T0}, s{T0}, {hex(WS_SEG)}")
    A(f"buffer_load_dwordx4 {vr(RC,4)}, v{VT16}, s[{SW}:{SW+3}], s{T0} offen")
    A("s_waitcnt vmcnt(0)")
    L("K2_START")
    A(f"v_mov_b32 v{VDEG}, 0")
    A(f"v_mov_b32 v{PZ}, 0")
    A(f"v_mov_b32 v{PZ+1}, 0")
    A(f"s_mov_b32 s{SFIRST}, 1")
    A(f"v_and_b32 v{X0}, 15, v0")
    A(f"v_lshlrev_b32 v{X0}, 1, v{X0}")
    A(f"v_add_u32 v{X1}, -1, v{X0}")
    A(f"s_waitcnt vmcnt({NPRE+1})")
    stamp(1)
    A(f"v_mov_b32_dpp v{PA_}, v{RC} row_newbcast:0 row_mask:0xf bank_mask:0xf")
    A(f"v_cmp_lt_u32 vcc, {CAP}, v{PA_}")
    A(f"v_cmp_lt_u32 s[{MA}:{MA+1}], v{X1}, v{PA_}")
    A(f"v_cmp_lt_u32 s[{MB}:{MB+1}], v{X0}, v{PA_}")
    A("s_cbranch_vccz K2_ROUND")
    A(f"s_andn2_b64 s[{MA}:{MA+1}], s[{MA}:{MA+1}], vcc")
    A(f"s_andn2_b64 s[{MB}:{MB+1}], s[{MB}:{MB+1}], vcc")
    A(f"s_and_saveexec_b64 s[{SEX}:{SEX+1}], vcc")
    A(f"v_lshrrev_b32 v{X0}, 4, v0")
    A(f"v_lshrrev_b32 v{X1}, 5, v{X0}")
    A(f"v_lshlrev_b32 v{X1}, 2, v{X1}")
    A(f"v_and_b32 v{X0}, 31, v{X0}")
    A(f"v_mov_b32 v{PB_}, 1")
    A(f"v_lshlrev_b32 v{PB_}, v{X0}, v{PB_}")
    A(f"ds_or_b32 v{X1}, v{PB_} offset:{L_FLAG}")
    A(f"s_mov_b64 exec, s[{SEX}:{SEX+1}]")

    L("K2_ROUND")
    A(f"v_and_b32 v{NLA}, 0xfc, v{RC+1}")
    A(f"v_and_b32 v{NLB}, 0xfc, v{RC+3}")
    A(f"v_mov_b32 v{X0}, 4")
    A(f"s_mov_b64 exec, s[{MA}:{MA+1}]")
    A("s_cbranch_execz K2_R1")
    A(f"ds_add_rtn_u32 v{RKA}, v{NLA}, v{X0}")
    L("K2_R1")
    A(f"s_mov_b64 exec, s[{MB}:{MB+1}]")
    A("s_cbranch_execz K2_R2")
    A(f"ds_add_rtn_u32 v{RKB}, v{NLB}, v{X0}")
    L("K2_R2")
    A("s_mov_b64 exec, -1")
    A(f"v_mov_b32 v{X1}, 0")
    A(f"s_waitcnt vmcnt({NPRE}) lgkmcnt(0)")
    A("s_barrier")
    if XS == "e": stamp(4)
    if XS == "f":
        A("s_waitcnt vmcnt(0)"); stamp(4)
    A(f"ds_read_b32 v{VCNT}, v2")
    A(f"ds_read_b64 {vr(NN,2)}, v{X1} offset:{L_FLAG}")
    A("s_waitcnt lgkmcnt(1)")
    A(f"v_add_u32_dpp v{VEND}, v{VCNT}, v{VCNT} row_shr:1 row_mask:0xf bank_mask:0xf bound_ctrl:0")
    A(f"v_add_u32 v{VDEG}, v{VDEG}, v{VCNT}")
    for k, ctl in enumerate(("row_shr:2 row_mask:0xf bank_mask:0xf bound_ctrl:0",
                "row_shr:4 row_mask:0xf bank_mask:0xf bound_ctrl:0", "row_shr:8 row_mask:0xf bank_mask:0xf bound_ctrl:0",
                "row_bcast:15 row_mask:0xa bank_mask:0xf", "row_bcast:31 row_mask:0xc bank_mask:0xf")):
        A("s_nop 0" if k == 0 else "s_nop 1")
        A(f"v_add_u32_dpp v{VEND}, v{VEND}, v{VEND} {ctl}")
    A(f"v_sub_u32 v{VB4}, v{VEND}, v{VCNT}")
    A("s_waitcnt lgkmcnt(0)")
    A(f"v_readlane_b32 s{STOT}, v{VEND}, 63")
    A(f"ds_bpermute_b32 v{PA_}, v{NLA}, v{VB4}")
    A(f"ds_bpermute_b32 v{PB_}, v{NLB}, v{VB4}")
    A(f"s_cmp_eq_u32 s{SFIRST}, 0")
    A("s_cbranch_scc1 K2_R3")
    A(f"v_readfirstlane_b32 s{SOV}, v{NN}")
    A(f"v_readfirstlane_b32 s{SOV+1}, v{NN+1}")
    A(f"s_mov_b32 s{SPOS}, {CH}")
    L("K2_R3")
    A(f"s_add_u32 s{T1}, s{STOT}, 60")
    A(f"s_lshr_b32 s{SLEN}, s{T1}, 6")
    A(f"s_lshl_b32 s{T1}, s{SLEN}, 2")
    A(f"s_add_u32 s{T2}, s{T1}, 4")
    A(f"v_cmp_lt_u32 vcc, s{T2}, v{VCNT}")
    A(f"s_and_b32 s{T3}, s{SLEN}, 63")
    A(f"v_readlane_b32 s{T0}, v{VM}, s{T3}")
    A(f"s_andn2_b32 s{SFAST}, s{SFIRST}, s{SMODE}")
    A(f"s_cmp_gt_u32 s{STOT}, {4*WIN}")
    A(f"s_cselect_b32 s{SFAST}, 0, s{SFAST}")
    A(f"s_sub_u32 s{T1}, {PRIV_B}, s{T1}")
    A(f"s_or_b64 vcc, vcc, s[{SOV}:{SOV+1}]")
    A(f"s_cselect_b32 s{SFAST}, 0, s{SFAST}")
    A(f"s_cmp_eq_u32 s{SFAST}, 0")
    A("s_waitcnt lgkmcnt(0)")
    A(f"v_add_u32 v{PA_}, v{PA_}, v{RKA}")
    A(f"v_add_u32 v{PB_}, v{PB_}, v{RKB}")
    A("s_cbranch_scc1 K2_WL")
    A(f"v_mul_u32_u24 v{RKA}, s{T0}, v{PA_}")
    A(f"v_mul_u32_u24 v{RKB}, s{T0}, v{PB_}")
    A(f"v_lshrrev_b32 v{RKA}, 18, v{RKA}")
    A(f"v_lshrrev_b32 v{RKB}, 18, v{RKB}")
    A(f"v_mad_u32_u24 v{PA_}, v{RKA}, s{T1}, v{PA_}")
    A(f"v_mad_u32_u24 v{PB_}, v{RKB}, s{T1}, v{PB_}")
    for tag, m, ad, rc in (("A", MA, PA_, RC), ("B", MB, PB_, RC + 2)):
        A(f"s_mov_b64 exec, s[{m}:{m+1}]")
        A(f"s_cbranch_execz K2_P{tag}")
        A(f"ds_write_b32 v{ad}, v{rc} offset:{L_PRIV}")
        A(f"ds_write_b32 v{ad}, v{rc+1} offset:{L_PRIV + PRIV_N*4}")
        L(f"K2_P{tag}")
    A("s_branch K2_WB")
    L("K2_WL")
    A(f"v_lshlrev_b32 v{PA_}, 1, v{PA_}")
    A(f"v_lshlrev_b32 v{PB_}, 1, v{PB_}")
    A(f"v_add_u32 v{PA_}, {L_LIST}, v{PA_}")
    A(f"v_add_u32 v{PB_}, {L_LIST}, v{PB_}")
    for tag, m, ad, rc in (("A", MA, PA_, RC), ("B", MB, PB_, RC + 2)):
        A(f"s_mov_b64 exec, s[{m}:{m+1}]")
        A(f"s_cbranch_execz K2_W{tag}")
        A(f"ds_write_b64 v{ad}, {vr(rc,2)}")
        L(f"K2_W{tag}")
    A("s_mov_b64 exec, -1")
    A(f"s_mov_b32 s{SW2}, 1")
    A("s_waitcnt lgkmcnt(0)")
    A("s_barrier")
    stamp(2)
    def row_load(d, p, pair=False):
        if not pair:
            A(f"v_add_u32 v{p}, v{p}, v2")
        A(f"buffer_load_dword v{d}, v{p}, s[{ST}:{ST+3}], 0 offen")
        A(f"buffer_load_dword v{d+1}, v{p}, s[{ST}:{ST+3}], 0 offen offset:256")
    for k in range(R // 4):
        A(f"ds_read_b128 {vr(TI+4*k,4)}, v{VP} offset:{16*k}")
    A(f"s_cmp_lg_u32 s{SWV}, 0")
    A("s_cbranch_scc1 K2_R4")
    A(f"ds_write_b32 v2, v{X1}")
    L("K2_R4")
    A(f"s_cmp_lg_u32 s{SQD}, 0")
    A("s_cbranch_scc1 K2_SLOW")
    A(f"s_mov_b32 s{SQD}, 1")
    AT = [72, 76, Z2, T, RC, OG[1]]
    seq = [(mt, s) for s in range(4) for mt in range(3)]
    PRE = 5
    A(f"ds_read_b128 {vr(B1P,4)}, v{OV}")
    for k in range(PRE):
        mt, s = seq[k]
        A(f"ds_read_b128 {vr(AT[k%6],4)}, v{Q+s} offset:{4096*mt}")
    A(f"s_mul_i32 s{T0}, s{SLEN}, s{SWV}")
    A(f"s_add_u32 s{T3}, s{T0}, s{SLEN}")
    A(f"s_lshl_b32 s{T0}, s{T0}, 2")
    A(f"s_lshl_b32 s{T3}, s{T3}, 2")
    A(f"s_min_u32 s{T0}, s{T0}, s{STOT}")
    A(f"s_min_u32 s{T3}, s{T3}, s{STOT}")
    A(f"s_sub_u32 s{SNN}, s{T3}, s{T0}")
    A(f"s_lshr_b32 s{SNN}, s{SNN}, 2")
    A(f"s_waitcnt lgkmcnt({PRE+1})")
    assert F1 == 4
    for k in range(F1):
        row_load(DAT + 2*k, TI + k)
    A(f"v_cmp_gt_u32 vcc, s{T0}, v{VB4}")
    A(f"v_cmp_lt_u32 s[{TP}:{TP+1}], s{T0}, v{VEND}")
    A(f"s_and_b64 vcc, vcc, s[{TP}:{TP+1}]")
    A(f"s_cselect_b32 s{SLP}, 1, 0")
    A(f"v_cmp_gt_u32 vcc, s{T3}, v{VB4}")
    A(f"v_cmp_lt_u32 s[{TP}:{TP+1}], s{T3}, v{VEND}")
    A(f"s_and_b64 vcc, vcc, s[{TP}:{TP+1}]")
    A(f"s_cselect_b32 s{STAIL}, 1, 0")
    for k, (mt, s) in enumerate(seq):
        if k + PRE < 12:
            m2, s2 = seq[k+PRE]
            A(f"ds_read_b128 {vr(AT[(k+PRE)%6],4)}, v{Q+s2} offset:{4096*m2}")
        w = f"s_waitcnt lgkmcnt({min(PRE, 11-k)})"
        if mt == 0: w += f" vmcnt({NPRE-1-s+2*F1})"
        A(w)
        c = vr(B1P, 4) if s == 0 else vr(NN+4*mt, 4)
        A(f"v_mfma_f32_16x16x32_bf16 {vr(NN+4*mt,4)}, {vr(W1F+4*s,4)}, {vr(AT[k%6],4)}, {c}")
    A(f"ds_read_b32 v{Q}, v{VPL} offset:{PRIV_N*4}")
    for k in range(R // 4):
        A(f"ds_read_b128 {vr(EV+4*k,4)}, v{VP} offset:{PRIV_N*4 + 16*k}")
    A(f"ds_read_b128 {vr(OG[0],4)}, v{VP} offset:{R*4}")
    A(f"ds_read_b128 {vr(W,4)}, v{OV+2}")
    A(f"ds_read_b128 {vr(B2F,4)}, v{OV+1}")
    A(f"v_cmp_le_u32 vcc, s{SNN}, v1")
    A(f"s_movk_i32 s{T2}, {QROW//4}")
    A(f"s_movk_i32 s{T3}, {HROW//4}")
    A(f"s_mov_b32 s{SREM}, s{SNN}")
    for mt in range(3):
        for r in range(4):
            A(f"v_mul_f32 v{NN+4*mt+r}, s{SC}, v{NN+4*mt+r}")
        if mt == 2:
            A(f"s_mov_b64 exec, s[{SQM}:{SQM+1}]")
        A(f"ds_write_b128 v{VA}, {vr(NN+4*mt,4)} offset:{16*mt*QROW}")
    A("s_mov_b64 exec, -1")
    A("s_waitcnt lgkmcnt(0)")
    A("s_barrier")
    stamp(3)
    A(f"s_cmp_eq_u32 s{SFAST}, 0")
    A("s_cbranch_scc1 K2_SLOW")
    A(f"v_and_b32 v{Z2}, 0xfc, v{EV}")
    A(f"v_and_b32 v{Q+1}, 0xfc, v{Q}")
    A(f"v_mad_u32_u24 v{Z2+1}, v{Z2}, s{T2}, v{VQ16}")
    A("s_setprio 3" if PRIO else "s_nop 0")
    A(f"v_mov_b32_dpp v{Q+2}, v{Q+1} wave_shr:1 row_mask:0xf bank_mask:0xf")
    A(f"v_cmp_ne_u32 s[{SM}:{SM+1}], v{Q+1}, v{Q+2}")
    A(f"ds_read_b128 {vr(Q,4)}, v{Z2+1}")
    A(f"s_or_b64 s[{SM}:{SM+1}], s[{SM}:{SM+1}], vcc")
    for k in range(F1, R):
        row_load(DAT + 2*k, TI + k)
    for k in range(4):
        A(f"v_add_u32 v{OG[0]+k}, v{OG[0]+k}, v2")
    def tail_prep():
        for mt in range(3):
            A(f"v_add_u32 v{T+3}, {64*mt}, v{LO}")
            A(f"ds_bpermute_b32 v{T+mt}, v{T+3}, v{VDEG}")
        A(f"v_add_u32 v{AD+2}, {L_H + 32*HROW}, v{AD}")
        A(f"v_add_u32 v{AD+1}, {L_H + 16*HROW}, v{AD}")
        A(f"v_add_u32 v{AD}, {L_H}, v{AD}")
        A("s_waitcnt lgkmcnt(0)")
        for mt in range(3):
            A(f"v_cmp_eq_u32 vcc, 0, v{T+mt}")
            A(f"v_cvt_f32_u32 v{T+mt}, v{T+mt}")
            A(f"v_mul_f32 v{T+mt}, 0.25, v{T+mt}") if False else A(f"v_mul_f32 v{T+mt}, 0x3e800000, v{T+mt}")
            A(f"v_cndmask_b32 v{AD+mt}, v{AD+mt}, v{LO+1}, vcc")
            A(f"v_pk_mul_f32 {vr(OV+4*mt,2)}, {vr(B2F,2)}, {vr(T+(mt&2),2)} " + ("op_sel_hi:[1,0]" if mt % 2 == 0 else "op_sel:[0,1]"))
            A(f"v_pk_mul_f32 {vr(OV+4*mt+2,2)}, {vr(B2F+2,2)}, {vr(T+(mt&2),2)} " + ("op_sel_hi:[1,0]" if mt % 2 == 0 else "op_sel:[0,1]"))
    A(f"s_cmp_ge_u32 s{SWV}, 8")
    A("s_cbranch_scc1 K2_NOTP")
    tail_prep()
    L("K2_NOTP")
    A(f"v_mov_b32 v{LO}, v{Z2}")
    VW = 2 * (R - 1)
    if STAMP and not XS:
        A(f"s_waitcnt vmcnt({VW})")
        stamp(4)
    A(f"s_cmp_eq_u32 s{SNN}, 0")
    A("s_cbranch_scc1 K2_WDONE")
    A("s_branch K2_HC0")

    def e_sel(s):
        base = EV + (s & ~1)
        return (vr(base, 2), "op_sel_hi:[1,0,1]") if s % 2 == 0 else (vr(base, 2), "op_sel:[0,1,0]")
    def part_z1(s, z):
        ep, es = e_sel(s)
        return [f"v_pk_fma_f32 {vr(z,2)}, {vr(W,2)}, {ep}, {vr(Q,2)} {es}",
                f"v_pk_fma_f32 {vr(z+2,2)}, {vr(W+2,2)}, {ep}, {vr(Q+2,2)} {es}"]
    def part_z2(s, z, zo=None):
        d = DAT + 2*s
        zo = z if zo is None else zo
        return [f"v_lshlrev_b64 {vr(LO,2)}, 16, {vr(d,2)}",
                f"v_pk_fma_f32 {vr(zo,2)}, {vr(d,2)}, {C2}, {vr(z,2)}",
                f"v_pk_fma_f32 {vr(zo+2,2)}, {vr(LO,2)}, {C2}, {vr(z+2,2)}"]
    def part_exp(z): return [f"v_exp_f32 v{T+k}, v{z+k}" for k in range(4)]
    def part_nd(z):
        return [f"v_pk_fma_f32 {vr(NN,2)}, {vr(NN,2)}, {vr(T,2)}, {vr(NN,2)}",
                f"v_pk_fma_f32 {vr(NN+2,2)}, {vr(NN+2,2)}, {vr(T+2,2)}, {vr(NN+2,2)}",
                f"v_pk_fma_f32 {vr(NN,2)}, {vr(z,2)}, {vr(DD,2)}, {vr(NN,2)}",
                f"v_pk_fma_f32 {vr(NN+2,2)}, {vr(z+2,2)}, {vr(DD+2,2)}, {vr(NN+2,2)}",
                f"v_pk_fma_f32 {vr(DD,2)}, {vr(DD,2)}, {vr(T,2)}, {vr(DD,2)}",
                f"v_pk_fma_f32 {vr(DD+2,2)}, {vr(DD+2,2)}, {vr(T+2,2)}, {vr(DD+2,2)}"]
    def addr_prep(k):
        A("s_waitcnt lgkmcnt(0)")
        A(f"v_pk_add_f32 {vr(OG[k],2)}, {vr(OG[k],2)}, v[2:3] op_sel:[0,1]")
        A(f"v_pk_add_f32 {vr(OG[k]+2,2)}, {vr(OG[k]+2,2)}, v[2:3] op_sel:[0,1]")
    def refill(s):
        og = OG[(s // 4) % 2]
        if s % 4 == 0:
            A(f"ds_read_b128 {vr(OG[(s//4+1)%2],4)}, v{VP} offset:{(R+s+4)*4}")
        if "noload" not in EXP:
            row_load(DAT + 2*s, og + s % 4, pair=True)
        if s % 4 == 3:
            addr_prep((s // 4 + 1) % 2)
        if s % 4 == 3:
            A(f"ds_read_b128 {vr(EV+s-3,4)}, v{VP} offset:{PRIV_N*4 + (R+s-3)*4}")
    def w2_load():
        A(f"s_mov_b32 s{SW2}, 0")
        A(f"s_lshl_b32 s{T0}, s{SWV}, 13")
        A(f"s_add_u32 s{T0}, s{T0}, {hex(WS_W2F)}")
        A(f"s_add_u32 s{T1}, s{T0}, 4096")
        for k in range(8):
            A(f"buffer_load_dwordx4 {vr(W2R+4*k,4)}, v{VL16}, s[{SW}:{SW+3}], s{T0 + k//4} offen offset:{(k%4)*1024}")
    NG = R // 4
    nocomp = "nocomp" in EXP
    L("K2_LOOP")
    for g in range(NG):
        L(f"K2_G{g}")
        A(f"s_and_b32 s{T0}, s{SM}, {hex(0xF << (4*g))}")
        A(f"s_cbranch_scc1 K2_S{4*g}")
        zz = [Z, Z2]
        s0 = 4*g
        for x in part_z1(s0, zz[0]): A(x)
        A(f"s_waitcnt vmcnt({VW})")
        for x in part_z2(s0, zz[0]): A(x)
        refill(s0)
        for k in range(4):
            s = s0 + k
            z, zn = zz[k % 2], zz[(k + 1) % 2]
            ex, nd = part_exp(z), part_nd(z)
            if nocomp: ex = ["s_nop 0"] * 4; nd = ["s_nop 0"] * 6
            if k < 3:
                a, b = part_z1(s + 1, zn), part_z2(s + 1, zn)
                A(ex[0]); A(a[0]); A(ex[1]); A(a[1]); A(ex[2])
                A(f"s_waitcnt vmcnt({VW})")
                A(b[0]); A(ex[3]); A(nd[0]); A(b[1]); A(nd[1]); A(nd[2]); A(b[2]); A(nd[3])
                refill(s + 1)
                A(nd[4]); A(nd[5])
            else:
                for x in ex + nd: A(x)
    L("K2_PEND")
    A(f"v_add_u32 v{VP}, {R*4}, v{VP}")
    A(f"s_lshr_b64 s[{SM}:{SM+1}], s[{SM}:{SM+1}], {R}")
    A(f"s_sub_u32 s{SREM}, s{SREM}, {R}")
    for thr, p in PRIO_T:
        A(f"s_cmp_gt_u32 s{SREM}, {thr}")
        A("s_cbranch_scc1 K2_LOOP")
        if PRIO: A(f"s_setprio {p}")
    A(f"s_cmp_ge_u32 s{SWV}, 8")
    A("s_cbranch_scc1 K2_LOOP")
    A(f"s_cmp_eq_u32 s{SW2}, 0")
    A("s_cbranch_scc1 K2_LOOP")
    w2_load()
    A("s_branch K2_LOOP")
    for s in range(R):
        L(f"K2_S{s}")
        A(f"s_bitcmp1_b32 s{SM}, {s}")
        A(f"s_cbranch_scc1 K2_H{s}")
        for x in part_z1(s, Z): A(x)
        A(f"s_waitcnt vmcnt({VW})")
        for x in part_z2(s, Z) + ([] if nocomp else part_exp(Z) + part_nd(Z)): A(x)
        L(f"K2_J{s}")
        refill(s)
        if s % 4 == 3:
            A(f"s_branch K2_G{s//4+1}" if s + 1 < R else "s_branch K2_PEND")
    def fold():
        for k in range(4):
            A(f"v_rcp_f32 v{T+k}, v{DD+k}")
        A(f"v_pk_fma_f32 {vr(PZ,2)}, {vr(DD,2)}, {vr(NN,2)}, {vr(PZ,2)}")
        A(f"v_pk_fma_f32 {vr(PZ,2)}, {vr(DD+2,2)}, {vr(NN+2,2)}, {vr(PZ,2)}")
        A(f"v_pk_mul_f32 {vr(Z,2)}, {vr(NN,2)}, {vr(T,2)}")
        A(f"v_pk_mul_f32 {vr(Z+2,2)}, {vr(NN+2,2)}, {vr(T+2,2)}")
    def lead_flush():
        A(f"v_add_u32 v{Z2}, s{SSIDE}, v{VL16}")
        A(f"ds_write_b128 v{Z2}, {vr(Z,4)}")
        A(f"s_lshl_b32 s{T0}, s{SWV}, 2")
        A(f"v_mov_b32 v{Z2+1}, s{T0}")
        A(f"v_mov_b32 v{Z2+2}, 1")
        A(f"ds_write_b32 v{Z2+1}, v{Z2+2} offset:{L_SFL}")
        A(f"s_mov_b32 s{SLP}, 0")
    for s in range(R):
        L(f"K2_H{s}")
        A(f"s_cmp_eq_u32 s{SREM}, {s}")
        A("s_cbranch_scc1 K2_LAST")
        A(f"v_and_b32 v{LO}, 0xfc, v{EV+s}")
        A(f"v_mad_u32_u24 v{LO+1}, v{LO}, s{T2}, v{VQ16}")
        A(f"ds_read_b128 {vr(Q,4)}, v{LO+1}")
        fold()
        A(f"s_cmp_lg_u32 s{SLP}, 0")
        A(f"s_cbranch_scc1 K2_LS{s}")
        A(f"v_cvt_pk_bf16_f32 v{Z}, v{Z}, v{Z+1}")
        A(f"v_cvt_pk_bf16_f32 v{Z+1}, v{Z+2}, v{Z+3}")
        A(f"ds_write_b64 v{VA}, {vr(Z,2)}")
        L(f"K2_HC{s}")
        A(f"v_mad_u32_u24 v{VA}, v{LO}, s{T3}, v{VH8}")
        A(f"s_waitcnt vmcnt({VW}) lgkmcnt(0)")
        for x in part_z1(s, Z) + part_z2(s, Z, NN) + part_exp(NN): A(x)
        A(f"v_pk_add_f32 {vr(DD,2)}, {vr(T,2)}, 1.0 op_sel_hi:[1,0]")
        A(f"v_pk_add_f32 {vr(DD+2,2)}, {vr(T+2,2)}, 1.0 op_sel_hi:[1,0]")
        A(f"s_branch K2_J{s}")
        L(f"K2_LS{s}")
        lead_flush()
        A(f"s_branch K2_HC{s}")
    L("K2_LAST")
    A(f"s_lshl_b32 s{T0}, s{SWV}, 2")
    A(f"v_mov_b32 v{LO}, s{T0}")
    A(f"v_add_u32 v{LO+1}, s{SSIDE}, v{VL16}")
    A(f"ds_read_b32 v{Z2}, v{LO} offset:{L_SFL+4}")
    A(f"ds_read_b128 {vr(Q,4)}, v{LO+1} offset:1024")
    fold()
    A(f"s_cmp_eq_u32 s{SLP}, 0")
    A("s_cbranch_scc1 K2_L1")
    A("s_waitcnt lgkmcnt(0)")
    lead_flush()
    A("s_branch K2_WDONE")
    L("K2_L1")
    A(f"s_cmp_eq_u32 s{STAIL}, 0")
    A("s_cbranch_scc1 K2_L3")
    L("K2_L2")
    A("s_waitcnt lgkmcnt(0)")
    A(f"v_readfirstlane_b32 s{T0}, v{Z2}")
    A(f"s_cmp_lg_u32 s{T0}, 0")
    A("s_cbranch_scc1 K2_L2B")
    A("s_sleep 2")
    A(f"ds_read_b32 v{Z2}, v{LO} offset:{L_SFL+4}")
    A(f"ds_read_b128 {vr(Q,4)}, v{LO+1} offset:1024")
    A("s_branch K2_L2")
    L("K2_L2B")
    A(f"v_pk_add_f32 {vr(Z,2)}, {vr(Z,2)}, {vr(Q,2)}")
    A(f"v_pk_add_f32 {vr(Z+2,2)}, {vr(Z+2,2)}, {vr(Q+2,2)}")
    L("K2_L3")
    A(f"v_cvt_pk_bf16_f32 v{Z}, v{Z}, v{Z+1}")
    A(f"v_cvt_pk_bf16_f32 v{Z+1}, v{Z+2}, v{Z+3}")
    A(f"ds_write_b64 v{VA}, {vr(Z,2)}")
    A("s_branch K2_WDONE")

    L("K2_SLOW")
    A("s_waitcnt vmcnt(0) lgkmcnt(0)")
    A(f"s_cmp_eq_u32 s{SFIRST}, 0")
    A("s_cbranch_scc1 K2_SL0")
    for k in range(12):
        A(f"v_mov_b32 v{SACC+k}, 0")
    L("K2_SL0")
    for i in range(3):
        A(f"s_add_u32 s{T0}, s{SWV}, {16*i}")
        A(f"v_readlane_b32 s{T1}, v{VB4}, s{T0}")
        A(f"v_readlane_b32 s{T2}, v{VCNT}, s{T0}")
        A(f"s_mul_i32 s{T3}, s{T0}, {QROW}")
        A(f"s_cmp_eq_u32 s{T2}, 0")
        A(f"s_cbranch_scc1 K2_SLN{i}")
        A(f"v_add_u32 v{Z2}, s{T3}, v{VQ16}")
        A(f"ds_read_b128 {vr(Q,4)}, v{Z2}")
        A(f"s_lshl_b32 s{T1}, s{T1}, 1")
        A(f"s_add_u32 s{T1}, s{T1}, {L_LIST}")
        A(f"v_mov_b32 v{VA}, s{T1}")
        L(f"K2_SLL{i}")
        A(f"ds_read_b64 {vr(EV,2)}, v{VA}")
        A(f"v_add_u32 v{VA}, 8, v{VA}")
        A("s_waitcnt lgkmcnt(0)")
        row_load(DAT + 2, EV, pair=False)
        for x in part_z1(1, Z): A(x)
        A("s_waitcnt vmcnt(0)")
        for x in part_z2(1, Z) + part_exp(Z): A(x)
        A("s_nop 0")
        for k in range(4):
            A(f"v_add_f32 v{T+k}, 1.0, v{T+k}")
        for k in range(4):
            A(f"v_rcp_f32 v{T+k}, v{T+k}")
        A(f"s_sub_u32 s{T2}, s{T2}, 4")
        for k in range(4):
            A(f"v_fmac_f32 v{SACC+4*i+k}, v{Z+k}, v{T+k}")
        A(f"s_cmp_lg_u32 s{T2}, 0")
        A(f"s_cbranch_scc1 K2_SLL{i}")
        L(f"K2_SLN{i}")
    A(f"s_mov_b32 s{SFIRST}, 0")
    A(f"s_cmp_lt_u32 s{SPOS}, {CH}")
    A("s_cbranch_scc1 K2_FETCH")
    A(f"s_cmp_eq_u64 s[{SOV}:{SOV+1}], 0")
    A("s_cbranch_scc1 K2_SLFIN")
    A(f"s_ff1_i32_b64 s{SCH}, s[{SOV}:{SOV+1}]")
    A(f"s_bitset0_b64 s[{SOV}:{SOV+1}], s{SCH}")
    A(f"s_mov_b32 s{SPOS}, 0")
    L("K2_FETCH")
    A("s_waitcnt lgkmcnt(0)")
    A("s_barrier")
    A(f"s_mul_i32 s{T0}, s{SCH}, {CH}")
    A(f"s_add_u32 s{T0}, s{T0}, s{SPOS}")
    A(f"s_lshl_b32 s{T1}, s{T0}, 2")
    A(f"s_lshl_b32 s{T2}, s{T0}, 1")
    A("v_lshlrev_b32 v64, 3, v0")
    A("v_lshlrev_b32 v65, 2, v0")
    srd(SX, PDST, E * 4)
    A(f"buffer_load_dwordx2 v[66:67], v64, s[{SX}:{SX+3}], s{T1} offen")
    srd(SX, PSRC, E * 4)
    A(f"buffer_load_dwordx2 v[68:69], v64, s[{SX}:{SX+3}], s{T1} offen")
    srd(SX, PE, E * 2)
    A(f"buffer_load_dword v70, v65, s[{SX}:{SX+3}], s{T2} offen")
    A("v_lshlrev_b32 v71, 1, v0")
    A(f"v_add_u32 v71, s{SPOS}, v71")
    A(f"s_movk_i32 s{T0}, {CH}")
    A(f"v_cmp_gt_u32 s[{MA}:{MA+1}], s{T0}, v71")
    A(f"s_add_u32 s{SPOS}, s{SPOS}, 2048")
    A(f"s_mov_b32 s{T0}, {hex(FBASE)}")
    A("s_waitcnt vmcnt(0)")
    A(f"v_lshl_or_b32 v{RC}, v68, 9, s{T0}")
    A(f"v_lshl_or_b32 v{RC+2}, v69, 9, s{T0}")
    A(f"v_subrev_u32 v66, s{SN40}, v66")
    A(f"v_subrev_u32 v67, s{SN40}, v67")
    A(f"v_cmp_gt_u32 vcc, s{SNB}, v67")
    A(f"s_and_b64 s[{MB}:{MB+1}], s[{MA}:{MA+1}], vcc")
    A(f"v_cmp_gt_u32 vcc, s{SNB}, v66")
    A(f"s_and_b64 s[{MA}:{MA+1}], s[{MA}:{MA+1}], vcc")
    A("v_lshlrev_b32 v66, 2, v66")
    A("v_lshlrev_b32 v67, 2, v67")
    A(f"v_lshl_or_b32 v{RC+1}, v70, 16, v66")
    A("v_and_b32 v70, 0xffff0000, v70")
    A(f"v_or_b32 v{RC+3}, v70, v67")
    A("s_branch K2_ROUND")
    L("K2_SLFIN")
    for i in range(3):
        if i == 2:
            A(f"s_cmp_ge_u32 s{SWV}, {NPB-32}")
            A("s_cbranch_scc1 K2_WDONE")
        A(f"s_add_u32 s{T0}, s{SWV}, {16*i}")
        A(f"s_mul_i32 s{T0}, s{T0}, {HROW}")
        A(f"v_add_u32 v{Z2}, s{T0}, v{VH8}")
        A(f"v_cvt_pk_bf16_f32 v{Z}, v{SACC+4*i}, v{SACC+4*i+1}")
        A(f"v_cvt_pk_bf16_f32 v{Z+1}, v{SACC+4*i+2}, v{SACC+4*i+3}")
        A(f"ds_write_b64 v{Z2}, {vr(Z,2)}")
    A("v_and_b32 v48, 15, v1")
    A("v_lshrrev_b32 v49, 4, v1")
    A("v_lshlrev_b32 v55, 4, v49")
    A(f"s_movk_i32 s{T1}, {HROW}")
    A(f"v_mad_u32_u24 v{AD}, v48, s{T1}, v55")
    A(f"v_add_u32 v{LO+1}, {L_ZROW}, v55")
    A(f"v_lshlrev_b32 v{LO}, 2, v48")
    A(f"s_lshl_b32 s{T0}, s{SWV}, 6")
    A(f"s_add_u32 s{T0}, s{T0}, {hex(WS_CV)}")
    A(f"buffer_load_dwordx4 {vr(B2F,4)}, v55, s[{SW}:{SW+3}], s{T0} offen offset:2048")
    A("s_waitcnt vmcnt(0)")
    tail_prep()

    L("K2_WDONE")
    stamp(5)
    A(f"v_add_f32 v{T}, v{PZ}, v{PZ+1}")
    A(f"v_mov_b32 v{Z2+1}, 0x207")
    A(f"v_cmp_class_f32 vcc, v{T}, v{Z2+1}")
    A(f"v_mov_b32 v{Z2+2}, 0")
    A(f"s_mov_b32 s{TP}, {hex(C_NLN2)}")
    A("s_branch K2_NOG" if EXP else "s_cbranch_vccz K2_NOG")
    A(f"ds_write_b32 v{Z2+2}, v{Z2+1} offset:{L_FLAG+8}")
    L("K2_NOG")
    A(f"s_cmp_ge_u32 s{SWV}, 8")
    A("s_cbranch_scc1 K2_B4")
    A(f"s_cmp_eq_u32 s{SW2}, 0")
    A("s_cbranch_scc1 K2_B4")
    w2_load()
    L("K2_B4")
    A("s_waitcnt vmcnt(0) lgkmcnt(0)")
    A("s_barrier")
    stamp(6)
    if os.environ.get("DUMP"):
        A(f"s_lshl_b32 s{T0}, s2, 17")
        A(f"s_add_u32 s{T0}, s{T0}, 0x4000000")
        for k in range(6):
            A(f"v_add_u32 v48, {k*16384}, v{VT16}")
            A("ds_read_b128 v[52:55], v48")
            A("s_waitcnt lgkmcnt(0)")
            A(f"buffer_store_dwordx4 v[52:55], v48, s[{SW}:{SW+3}], s{T0} offen")
            A("s_waitcnt vmcnt(0)")
    A(f"ds_read_b32 v{Z2+3}, v{Z2+2} offset:{L_FLAG+8}")
    A(f"s_cmp_ge_u32 s{SWV}, 8")
    A("s_cbranch_scc1 K2_CHK")
    HB = [48 + 4*k for k in range(8)]
    ACC = [12, 16, 20]
    seq = [(mt, s) for mt in range(3) for s in range(8)]
    PRE = 7
    for k in range(PRE):
        mt, s = seq[k]
        A(f"ds_read_b128 {vr(HB[k%8],4)}, v{AD+mt} offset:{s*64}")
    def epi(mt):
        for r in range(4):
            A(f"v_fma_f32 v{OV+4*mt+r}, v{ACC[mt]+r}, s{TP}, v{OV+4*mt+r}")
        A(f"v_cvt_pk_bf16_f32 v{32+2*mt}, v{OV+4*mt}, v{OV+4*mt+1}")
        A(f"v_cvt_pk_bf16_f32 v{33+2*mt}, v{OV+4*mt+2}, v{OV+4*mt+3}")
    for k, (mt, s) in enumerate(seq):
        if k + PRE < 24:
            m2, s2 = seq[k+PRE]
            A(f"ds_read_b128 {vr(HB[(k+PRE)%8],4)}, v{AD+m2} offset:{s2*64}")
        A(f"s_waitcnt lgkmcnt({min(PRE, 23-k)})")
        c = "0" if s == 0 else vr(ACC[mt], 4)
        A(f"v_mfma_f32_16x16x32_bf16 {vr(ACC[mt],4)}, {vr(W2R+4*s,4)}, {vr(HB[k%8],4)}, {c}")
        if s == 4 and mt > 0:
            epi(mt - 1)
    A("s_nop 7")
    epi(2)
    L("K2_CHK")
    A("s_waitcnt lgkmcnt(0)")
    A(f"v_readfirstlane_b32 s{T2}, v{Z2+3}")
    A(f"s_lshl_b32 s{T1}, s{SMODE}, 31")
    A(f"s_or_b32 s{T2}, s{T2}, s{T1}")
    A(f"s_cmp_gt_i32 s{T2}, 0")
    A("s_cbranch_scc1 K2_REDO")
    A(f"s_cmp_ge_u32 s{SWV}, 8")
    A("s_cbranch_scc1 K2_END2")
    A(f"s_add_u32 s{T2}, s{SOUT}, 4096")
    A(f"s_add_u32 s{T1}, s{SOUT}, 8192")
    A(f"buffer_store_dwordx2 v[32:33], v{OUTA}, s[{SO}:{SO+3}], s{SOUT} offen")
    A(f"buffer_store_dwordx2 v[34:35], v{OUTA}, s[{SO}:{SO+3}], s{T2} offen")
    A(f"s_mov_b64 exec, s[{SQM}:{SQM+1}]")
    A(f"buffer_store_dwordx2 v[36:37], v{OUTA}, s[{SO}:{SO+3}], s{T1} offen")
    L("K2_END2")
    stamp(7)
    if STAMP: A("s_waitcnt vmcnt(0)")
    stamp(8)
    if STAMP: A("s_memtime s[96:97]")
    stamp_flush(1, 3, 11)
    L("K2_END")
    A("s_endpgm")
    L("K2_REDO")
    A(f"s_mov_b32 s{SMODE}, 1")
    A("s_setprio 0")
    A("s_branch K2_PASS")
    L("K2_CODE_END")

hdr = f"""; Kernarg layout for this problem (88 bytes, ptrs only, base s[0:1]):
; @launch kernel=k1_kernel grid=({K1_GRID+NTW},1,1) block=(512,1,1) lds={K1_LDS}
; @launch kernel=k2_kernel grid=({NB},1,1) block=(1024,1,1) lds={K2_LDS}
.amdgcn_target "amdgcn-amd-amdhsa--gfx950"
"""
gen_k1()
gen_k2()
kernel_desc("k1_kernel", 128, 102 if STAMP else 72)
kernel_desc("k2_kernel", 128, 102 if STAMP else 72)
txt = hdr + "\n".join(o for o in out if o is not None) + "\n"
dst = sys.argv[1] if len(sys.argv) > 1 else f"cdna_kernels/{NAME}.s"
open(dst, "w").write(txt)
print("wrote", dst, "K2_LDS", K2_LDS)
```

```python
import sys, struct, os

NAME = "standalone__edge_featured_mpnn_mpnn__graph"
N, E, D, H = 10000, 160000, 128, 256
NB = int(os.environ.get('NBINS', '250'))
NPB = 40
NCH, CH = 64, 2500
CAP = 31
WS_T = 0
WS_SEG = 0x500000
WS_W2F = 0x920000
WS_W1F = 0x930000
WS_CV = 0x940000
WS_DBG = 0x2000000
WS_BYTES = 0x10000000
R = int(os.environ.get("RING", "8"))
PFL = int(os.environ.get("PFL", "0"))
PRIO_T = eval(os.environ.get("PRIO_T", "((32, 2), (21, 1), (10, 0))"))
STAMP = os.environ.get("STAMP", "0") == "1"
EXP = os.environ.get("EXP", "")
PRIO = os.environ.get("PRIO", "1") == "1"
PI = [1, 3, 0, 2]
TCH2 = int(os.environ.get("TCH2", "0"))
TCH1 = int(os.environ.get("TCH1", "0"))
TCH3 = int(os.environ.get("TCH3", "0"))
EXP1 = os.environ.get("EXP1", "")
SPF = int(os.environ.get("SPF", "0"))
NE = int(os.environ.get("NE", "0"))
STF = os.environ.get("STF", "nt")
STB = os.environ.get("STB", "")
XS = os.environ.get("XS", "")
FBASE = 0x4B000000
F1 = int(os.environ.get("F1", "4"))

def f32bits(x): return struct.unpack("<I", struct.pack("<f", x))[0]
C_NLOG2E = f32bits(-1.4426950408889634)
C_NLN2 = f32bits(-0.6931471805599453)

out = []
def A(s): out.append("    " + s)
def L(s): out.append(s + ":")
def CM(s): out.append("    ; " + s)
def vr(a, n): return f"v[{a}:{a+n-1}]"

PX, PE, PSRC, PDST, PW1, PB1, PW2, PB2 = 4, 6, 8, 10, 12, 14, 16, 18
POUT, PWS = 20, 22

def srd(dst, base, nrec, off=0):
    if off:
        A(f"s_add_u32 s{dst}, s{base}, {hex(off)}")
        A(f"s_addc_u32 s{dst+1}, s{base+1}, 0")
        src1 = dst + 1
    else:
        A(f"s_mov_b32 s{dst}, s{base}")
        src1 = base + 1
    A(f"s_and_b32 s{dst+1}, s{src1}, 0xffff")
    A(f"s_mov_b32 s{dst+2}, {hex(nrec)}")
    A(f"s_mov_b32 s{dst+3}, 0x20000")

def stamp(k):
    if STAMP: A(f"s_memrealtime s[{76+2*k}:{77+2*k}]")
def stamp_flush(kern, wave_s, nst):
    if not STAMP: return
    A("s_waitcnt lgkmcnt(0)")
    A(f"s_add_u32 s72, s{PWS}, {hex(WS_DBG + kern*0x100000)}")
    A(f"s_addc_u32 s73, s{PWS+1}, 0")
    A("s_and_b32 s73, s73, 0xffff")
    A("s_mov_b32 s74, 0x100000")
    A("s_mov_b32 s75, 0x20000")
    A("s_lshl_b32 s100, s2, 4")
    A(f"s_add_u32 s100, s100, s{wave_s}")
    A("s_lshl_b32 s100, s100, 7")
    A("s_mov_b64 exec, 1")
    A("v_mov_b32 v126, 0")
    for k in range(nst):
        A(f"v_mov_b32 v127, s{76+2*k}")
        A(f"buffer_store_dword v127, v126, s[72:75], s100 offen offset:{4*k}")
    A("s_mov_b64 exec, -1")

def kernel_begin(name):
    out.extend([".text", f".globl {name}", ".p2align 8", f".type {name},@function"])
    L(name)
def kernel_desc(name, vgpr, sgpr):
    acc = (vgpr + 3) // 4 * 4
    out.extend([
        '.section .rodata,"a"', ".p2align 6", f".amdhsa_kernel {name}",
        f"  .amdhsa_next_free_vgpr {vgpr}", f"  .amdhsa_next_free_sgpr {sgpr}", f"  .amdhsa_accum_offset {acc}",
        "  .amdhsa_group_segment_fixed_size 0", "  .amdhsa_kernarg_size 88", "  .amdhsa_user_sgpr_count 2",
        "  .amdhsa_user_sgpr_kernarg_segment_ptr 1", "  .amdhsa_system_sgpr_workgroup_id_x 1", ".end_amdhsa_kernel"])

NTW = int(os.environ.get("NTW", "16"))
K1_GEMM0 = NCH
K1_W20 = NCH + 160
K1_W10 = K1_W20 + 4
K1_CV = K1_W10 + 1
K1_GRID = K1_CV + 1
K1_LDS = int(os.environ.get("K1LDS", "65536"))
K1B0 = os.environ.get("K1B0", "1") == "1"

def gen_k1():
    kernel_begin("k1_kernel")
    A("s_load_dwordx16 s[4:19], s[0:1], 0")
    A("s_load_dwordx2 s[22:23], s[0:1], 80")
    stamp(0)
    if NTW:
        A(f"s_cmp_lt_u32 s2, {NTW}")
        A("s_cbranch_scc1 K1_TOUCH")
        A(f"s_sub_u32 s2, s2, {NTW}")
    A(f"s_cmp_ge_u32 s2, {K1_GRID}")
    A("s_cbranch_scc1 K1_END")
    A("v_and_b32 v1, 63, v0")
    A("v_lshrrev_b32 v2, 6, v0")
    A("v_and_b32 v3, 15, v0")
    A("v_bfe_u32 v4, v0, 4, 2")
    A("v_readfirstlane_b32 s3, v2")
    A("s_mov_b32 s52, 0x05040100")
    A("s_mov_b32 s53, 0x07060302")
    A(f"s_cmp_lt_u32 s2, {K1_GEMM0}")
    A("s_cbranch_scc1 K1_BIN")
    A(f"s_cmp_ge_u32 s2, {K1_W20}")
    A("s_cbranch_scc1 K1_PREP")
    A(f"s_sub_u32 s24, s2, {K1_GEMM0}")
    A("s_and_b32 s25, s24, 7")
    A("s_lshr_b32 s26, s24, 4")
    A("s_lshl_b32 s26, s26, 3")
    A("s_add_u32 s25, s25, s26")
    A("s_bfe_u32 s26, s24, 0x10003")
    A("s_cmp_ge_u32 s25, 79")
    A("s_cbranch_scc1 K1_END")
    A("s_and_b32 s27, s3, 1")
    A("s_lshr_b32 s28, s3, 1")
    A("s_lshl_b32 s30, s28, 14")
    A("s_lshl_b32 s31, s27, 11")
    A("s_add_u32 s30, s30, s31")
    A("s_lshl_b32 s31, s26, 8")
    A("s_add_u32 s30, s30, s31")
    A("s_lshl_b32 s32, s25, 7")
    A("s_lshl_b32 s33, s28, 5")
    A("s_add_u32 s32, s32, s33")
    A("v_lshlrev_b32 v5, 12, v4")
    A("v_lshl_add_u32 v5, v3, 4, v5")
    A("v_lshlrev_b32 v10, 4, v1")
    A("s_lshl_b32 s35, s28, 12")
    A("s_lshl_b32 s54, s27, 3")
    A("s_add_u32 s35, s35, s54")
    A("v_add_u32 v11, s35, v10")
    A("s_lshl_b32 s54, s27, 14")
    A("v_add_u32 v13, s54, v10")
    A("v_lshlrev_b32 v12, 9, v3")
    A("v_lshl_add_u32 v12, v4, 4, v12")
    A("s_lshl_b32 s55, s32, 9")
    A("s_lshl_b32 s54, s26, 7")
    A("s_add_u32 s55, s55, s54")
    A("s_lshl_b32 s54, s27, 6")
    A("s_add_u32 s55, s55, s54")
    A("s_add_u32 s56, s55, 8192")
    A("s_mov_b32 s58, 0x8000")
    for k in range(4):
        A(f"v_xor_b32 v{6+k}, v4, v3")
        if k: A(f"v_xor_b32 v{6+k}, {4*k}, v{6+k}")
        A(f"v_lshlrev_b32 v{6+k}, 4, v{6+k}")
        A(f"v_lshl_add_u32 v{6+k}, v4, 8, v{6+k}")
    A("s_lshl_b32 s33, s25, 15")
    A("s_lshl_b32 s34, s3, 12")
    A("s_add_u32 s33, s33, s34")
    A("s_add_u32 s34, s34, 32768")
    A("s_mov_b32 m0, s34")
    A("v_xor_b32 v14, v4, v3")
    A("v_lshlrev_b32 v14, 4, v14")
    A("v_lshl_add_u32 v14, v3, 8, v14")
    A("s_lshl_b32 s54, s28, 13")
    A("s_add_u32 s54, s54, 32768")
    for s in range(4):
        A(f"v_xor_b32 v{112+s}, {64*s}, v14")
        A(f"v_add_u32 v{112+s}, s54, v{112+s}")
    A("s_waitcnt lgkmcnt(0)")
    srd(36, PW1, 257 * 512)
    WL = 48
    for j in range(4):
        A(f"buffer_load_dwordx4 {vr(WL+4*j,4)}, v5, s[36:39], s30 offen offset:{j*512}")
    srd(40, PX, N * 256)
    if K1B0: A("s_barrier")
    for k in range(4):
        A(f"buffer_load_dwordx4 v{6+k}, s[40:43], s33 offen offset:{1024*k} lds")
    AF = 16
    srd(48, PWS, N * 512)
    if TCH1:
        A("buffer_load_dword v15, v12, s[48:51], s55 offen")
    A(f"s_waitcnt vmcnt({5 if TCH1 else 4})")
    stamp(1)
    PT = 64
    for pr in range(2):
        for dw in range(4):
            a, b = WL + 8*pr + dw, WL + 8*pr + 4 + dw
            A(f"v_perm_b32 v{PT+(2*dw)*2+pr}, v{b}, v{a}, s52")
            A(f"v_perm_b32 v{PT+(2*dw+1)*2+pr}, v{b}, v{a}, s53")
    for col in range(8):
        A(f"ds_write_b64 v11, {vr(PT+2*col,2)} offset:{(col>>2)*16384 + (col&3)*1024}")
    A(f"s_waitcnt vmcnt({1 if TCH1 else 0}) lgkmcnt(0)")
    A("s_barrier")
    stamp(2)
    ACC = [80, 96]
    BB = [48, 52, 56, 60, 64, 68]
    ops = []
    for s in range(4):
        ops += [("x", 0, s), ("x", 1, s)] + [("w", s, t) for t in range(4)]
    def rd(op, wi):
        if op[0] == "x":
            A(f"ds_read_b128 {vr(AF+(op[1]*4+op[2])*4,4)}, v{112+op[2]} offset:{4096*op[1]}")
        else:
            A(f"ds_read_b128 {vr(BB[wi%6],4)}, v13 offset:{(op[1]*4+op[2])*1024}")
    widx = {}
    n = 0
    for i_, op in enumerate(ops):
        if op[0] == "w":
            widx[i_] = n; n += 1
    issued = 0
    def issue_upto(wlimit):
        nonlocal issued
        while issued < len(ops) and (ops[issued][0] == "x" or widx[issued] <= wlimit):
            rd(ops[issued], widx.get(issued, 0)); issued += 1
    for i_, op in enumerate(ops):
        if op[0] != "w": continue
        k = widx[i_]
        issue_upto(k + 4)
        A(f"s_waitcnt lgkmcnt({issued - 1 - i_})")
        s, t = op[1], op[2]
        for i in range(2):
            d = ACC[i] + 4*t
            c = "0" if s == 0 else vr(d, 4)
            A(f"v_mfma_f32_16x16x32_bf16 {vr(d,4)}, {vr(BB[k%6],4)}, {vr(AF+(i*4+s)*4,4)}, {c}")
    A("s_nop 1")
    stamp(4)
    for i in range(2):
        o0, o1 = 16 + 8*i, 20 + 8*i
        for t in range(4):
            f = [ACC[i] + 4*t + r for r in range(4)]
            for r in range(4):
                A(f"v_add_f32 v{f[r]}, 0, v{f[r]}")
            for r in range(4):
                A(f"v_add_u32 v{f[r]}, s58, v{f[r]}")
            for r in range(1, 4):
                A(f"v_sub_u32_sdwa v{f[r]}, v{f[r]}, v{f[r-1]} clamp dst_sel:DWORD dst_unused:UNUSED_PAD src0_sel:DWORD src1_sel:WORD_1")
            A(f"v_perm_b32 v{o0+t}, v{f[1]}, v{f[0]}, s53")
            A(f"v_perm_b32 v{o1+t}, v{f[3]}, v{f[2]}, s53")
        if "nop" not in EXP1:
            A(f"buffer_store_dwordx4 {vr(o0,4)}, v12, s[48:51], s{55+i} offen {STF}")
            A(f"buffer_store_dwordx4 {vr(o1,4)}, v12, s[48:51], s{55+i} offen offset:256 {STF}")
    stamp(5)
    if STAMP: A("s_waitcnt vmcnt(0)")
    stamp(6)
    stamp_flush(0, 3, 7)
    A("s_endpgm")

    L("K1_PREP")
    A("v_lshlrev_b32 v10, 4, v1")
    A(f"s_cmp_ge_u32 s2, {K1_CV}")
    A("s_cbranch_scc1 K1_CVEC")
    A(f"s_cmp_ge_u32 s2, {K1_W10}")
    A("s_cbranch_scc1 K1_W1")
    CM("w2: frag (nt, s) lane (c,g) jj -> w2[128(s>>2) + 64(s&1) + 32(g>>1) + 8 pi(jj&3) + 4((s>>1)&1) + 2(g&1) + (jj>>2)][16 nt + c]")
    A(f"s_sub_u32 s24, s2, {K1_W20}")
    A("s_lshr_b32 s25, s3, 2")
    A("s_lshl_b32 s25, s25, 15")
    A("s_and_b32 s26, s3, 1")
    A("s_lshl_b32 s26, s26, 14")
    A("s_add_u32 s25, s25, s26")
    A("s_bfe_u32 s26, s3, 0x10001")
    A("s_lshl_b32 s26, s26, 10")
    A("s_add_u32 s25, s25, s26")
    A("s_lshl_b32 s26, s24, 6")
    A("s_add_u32 s25, s25, s26")
    A("s_add_u32 s26, s25, 4096")
    A("v_lshrrev_b32 v5, 1, v4")
    A("v_lshlrev_b32 v5, 13, v5")
    A("v_and_b32 v6, 1, v4")
    A("v_lshl_add_u32 v5, v6, 9, v5")
    A("v_lshl_add_u32 v5, v3, 1, v5")
    A("s_lshl_b32 s27, s24, 14")
    A("s_lshl_b32 s28, s3, 10")
    A("s_add_u32 s27, s27, s28")
    A("s_add_u32 s28, s27, 8192")
    A("s_waitcnt lgkmcnt(0)")
    srd(36, PW2, 256 * 256)
    srd(40, PWS, 65536, off=WS_W2F)
    for t in range(2):
        for j in range(8):
            ro = (8*PI[j&3] + (j>>2))*256 + 32*t
            A(f"buffer_load_ushort v{16+8*t+j}, v5, s[36:39], s{25 + ro//4096} offen offset:{ro%4096}")
    A("s_waitcnt vmcnt(0)")
    for t in range(2):
        for jj in range(4):
            A(f"v_lshl_or_b32 v{32+4*t+jj}, v{17+8*t+2*jj}, 16, v{16+8*t+2*jj}")
    A("buffer_store_dwordx4 v[32:35], v10, s[40:43], s27 offen")
    A("buffer_store_dwordx4 v[36:39], v10, s[40:43], s28 offen")
    A("s_endpgm")
    L("K1_W1")
    CM("W1[128:256]: frag (w, s) lane (4g'' + i, g) jj -> w1[128 + 32s + 8g + jj][128(w>>3) + 32(w&3) + 8 pi(i) + 4((w>>2)&1) + g'']")
    A("s_lshr_b32 s24, s3, 2")
    A("s_and_b32 s25, s3, 3")
    A("s_lshl_b32 s26, s25, 14")
    A("s_lshl_b32 s27, s24, 8")
    A("s_add_u32 s26, s26, s27")
    A(f"s_add_u32 s26, s26, {128*512}")
    A("v_lshlrev_b32 v5, 12, v4")
    A("v_lshl_add_u32 v5, v3, 4, v5")
    A("s_lshl_b32 s27, s24, 15")
    A("s_lshl_b32 s28, s25, 10")
    A("s_add_u32 s27, s27, s28")
    A("s_add_u32 s28, s27, 16384")
    A("v_lshrrev_b32 v6, 2, v3")
    A("v_lshlrev_b32 v6, 12, v6")
    A("v_and_b32 v7, 3, v3")
    A("v_lshlrev_b32 v7, 2, v7")
    A("v_mov_b32 v8, 0x1302")
    A("v_bfe_u32 v7, v8, v7, 4")
    A("v_lshl_add_u32 v6, v7, 4, v6")
    A("v_lshl_add_u32 v6, v4, 8, v6")
    A("s_waitcnt lgkmcnt(0)")
    srd(36, PW1, 257 * 512)
    srd(40, PWS, 65536, off=WS_W1F)
    for jj in range(8):
        A(f"buffer_load_dwordx4 {vr(16+4*jj,4)}, v5, s[36:39], s26 offen offset:{jj*512}")
    A("s_waitcnt vmcnt(0)")
    for col in range(8):
        o = 48 + col * 4
        for pr in range(4):
            a, b = 16 + 8*pr + (col >> 1), 16 + 8*pr + 4 + (col >> 1)
            A(f"v_perm_b32 v{o+pr}, v{b}, v{a}, s{53 if col & 1 else 52}")
        A(f"buffer_store_dwordx4 {vr(o,4)}, v6, s[40:43], s{27+(col>>2)} offen offset:{(col&3)*64}")
    A("s_endpgm")
    L("K1_CVEC")
    CM("thread t < 256: l = t>>2, i = t&3: -log2e w1[256][phi(l, pi(i))], b1[phi(l, pi(i))] as f32; t < 128: b2[t] as f32")
    A("s_cmp_ge_u32 s3, 4")
    A("s_cbranch_scc1 K1_END")
    A("v_and_b32 v5, 3, v0")
    A("v_lshlrev_b32 v5, 2, v5")
    A("v_mov_b32 v8, 0x2031")
    A("v_bfe_u32 v5, v8, v5, 4")
    A("v_lshlrev_b32 v5, 3, v5")
    A("v_bfe_u32 v6, v0, 2, 2")
    A("v_add_u32 v5, v5, v6")
    A("v_lshl_add_u32 v5, v4, 5, v5")
    A("v_bfe_u32 v6, v0, 6, 1")
    A("v_lshl_add_u32 v5, v6, 2, v5")
    A("v_bfe_u32 v6, v0, 7, 1")
    A("v_lshl_add_u32 v5, v6, 7, v5")
    A("v_lshlrev_b32 v5, 1, v5")
    A("v_lshlrev_b32 v6, 1, v0")
    A("v_lshlrev_b32 v7, 2, v0")
    A(f"s_mov_b32 s24, {256*512}")
    A(f"s_mov_b32 s25, {hex(C_NLOG2E)}")
    A("s_waitcnt lgkmcnt(0)")
    srd(36, PW1, 257 * 512)
    srd(40, PB1, 512)
    srd(44, PB2, 256)
    srd(48, PWS, 2048 + 512, off=WS_CV)
    A("buffer_load_ushort v16, v5, s[36:39], s24 offen")
    A("buffer_load_ushort v17, v5, s[40:43], 0 offen")
    A("buffer_load_ushort v18, v6, s[44:47], 0 offen")
    A("s_waitcnt vmcnt(0)")
    for k in range(3):
        A(f"v_lshlrev_b32 v{16+k}, 16, v{16+k}")
    A("v_mul_f32 v16, s25, v16")
    A("buffer_store_dword v16, v7, s[48:51], 0 offen")
    A("buffer_store_dword v17, v7, s[48:51], 0 offen offset:1024")
    A("buffer_store_dword v18, v7, s[48:51], 0 offen offset:2048")
    A("s_endpgm")

    L("K1_BIN")
    A("v_lshlrev_b32 v5, 2, v0")
    A("v_lshlrev_b32 v6, 1, v0")
    A("v_mov_b32 v7, 0")
    A("v_mov_b32 v8, 1")
    A("ds_write_b32 v5, v7")
    A(f"s_mul_i32 s24, s2, {CH*4}")
    A(f"s_mul_i32 s25, s2, {CH*2}")
    A("s_movk_i32 s26, 0x1000")
    A("s_movk_i32 s27, 0x2000")
    A("s_lshl_b32 s28, s2, 8")
    A("s_add_u32 s29, s28, 8")
    A(f"s_movk_i32 s32, {CH - 4*512}")
    A(f"s_mov_b32 s33, {hex(FBASE)}")
    A(f"s_movk_i32 s34, {-NPB if NB == 250 else 625}")
    A("v_cmp_gt_u32 s[60:61], s32, v0")
    A("s_waitcnt lgkmcnt(0)")
    DST, REC, EV, RK, BN = 16, 24, 40, 48, 56
    so4 = ["0", "0", "s26", "s26", "s27"]; io4 = [0, 2048, 0, 2048, 0]
    so2 = ["0", "0", "0", "0", "s26"]; io2 = [0, 1024, 2048, 3072, 0]
    def csrd(d, p, off, nb):
        A(f"s_add_u32 s{d}, s{p}, s{off}")
        A(f"s_addc_u32 s{d+1}, s{p+1}, 0")
        A(f"s_and_b32 s{d+1}, s{d+1}, 0xffff")
        A(f"s_mov_b32 s{d+2}, {nb}")
        A(f"s_mov_b32 s{d+3}, 0x20000")
    csrd(36, PDST, 24, CH*4)
    for j in range(5):
        A(f"buffer_load_dword v{DST+j}, v5, s[36:39], {so4[j]} offen offset:{io4[j]}")
    csrd(40, PSRC, 24, CH*4)
    csrd(44, PE, 25, CH*2)
    for j in range(5):
        A(f"buffer_load_dword v{REC+2*j}, v5, s[40:43], {so4[j]} offen offset:{io4[j]}")
        A(f"buffer_load_ushort v{EV+j}, v6, s[44:47], {so2[j]} offen offset:{io2[j]}")
    srd(48, PWS, NB * NCH * 256, off=WS_SEG)
    if TCH3:
        A("v_lshlrev_b32 v12, 14, v0")
        A("buffer_load_dword v13, v12, s[48:51], s28 offen")
    A("s_barrier")
    for j in range(5):
        A(f"s_waitcnt vmcnt({14-j+(1 if TCH3 else 0)})")
        A(f"v_mul_u32_u24 v{BN+j}, {'0xcccd' if NB == 250 else 429497}, v{DST+j}")
        A(f"v_lshrrev_b32 v{BN+j}, {21 if NB == 250 else 24}, v{BN+j}")
        A(f"v_lshlrev_b32 v9, 2, v{BN+j}")
        if j == 4:
            A(f"v_mov_b32 v{RK+j}, {CAP}")
            A("s_mov_b64 exec, s[60:61]")
            A("s_cbranch_execz K1_B_SKIP4")
        A(f"ds_add_rtn_u32 v{RK+j}, v9, v8")
        if j == 4:
            L("K1_B_SKIP4")
            A("s_mov_b64 exec, -1")
        if NB == 250:
            A(f"v_mad_i32_i24 v{DST+j}, v{BN+j}, s34, v{DST+j}")
        else:
            A(f"v_mad_u32_u24 v10, v{BN+j}, s34, 15")
            A("v_lshrrev_b32 v10, 4, v10")
            A(f"v_sub_u32 v{DST+j}, v{DST+j}, v10")
        A(f"v_lshlrev_b32 v{BN+j}, 14, v{BN+j}")
        A(f"v_lshlrev_b32 v{DST+j}, 2, v{DST+j}")
    stamp(1)
    A("v_mov_b32 v11, 0x7ffff000")
    for j in range(5):
        A(f"s_waitcnt vmcnt({8-2*j+j+(1 if TCH3 else 0)}) lgkmcnt({0 if (j >= 3 or STAMP) else 3-j})")
        A(f"v_lshl_or_b32 v{REC+2*j+1}, v{EV+j}, 16, v{DST+j}")
        A(f"v_cmp_gt_u32 vcc, {CAP}, v{RK+j}")
        A(f"v_lshl_or_b32 v{REC+2*j}, v{REC+2*j}, 9, s33")
        A(f"v_lshl_add_u32 v9, v{RK+j}, 3, v{BN+j}")
        A("v_cndmask_b32 v9, v11, v9, vcc")
        if "norec" in EXP1: A("v_mov_b32 v9, v11")
        A(f"buffer_store_dwordx2 {vr(REC+2*j,2)}, v9, s[48:51], s29 offen {STB}")
    stamp(2)
    A("s_barrier")
    A("ds_read_b32 v10, v5")
    A("v_lshlrev_b32 v9, 14, v0")
    A("s_waitcnt lgkmcnt(0)")
    if "norec" in EXP1: A("v_mov_b32 v10, 0")
    if "nocnt" in EXP1: A("v_mov_b32 v9, v11")
    A(f"buffer_store_dword v10, v9, s[48:51], s28 offen {STB}")
    stamp(3)
    if STAMP: A("s_waitcnt vmcnt(0)")
    stamp(4)
    stamp_flush(0, 3, 5)
    L("K1_END")
    A("s_endpgm")
    if NTW:
        L("K1_TOUCH")
        CM("prefetch role: one load per 32 KB of the workspace part in use and of the output, one per line of k2's code")
        A("s_load_dwordx2 s[20:21], s[0:1], 64")
        A("v_lshlrev_b32 v1, 15, v0")
        A("v_lshlrev_b32 v2, 7, v0")
        A("s_getpc_b64 s[24:25]")
        L("K1_PC")
        A("s_add_u32 s24, s24, k2_kernel-K1_PC")
        A("s_addc_u32 s25, s25, 0")
        A("s_and_b32 s25, s25, 0xffff")
        A("s_mov_b32 s26, K2_CODE_END-k2_kernel")
        A("s_mov_b32 s27, 0x20000")
        A("buffer_load_dword v5, v2, s[24:27], 0 offen")
        A("s_waitcnt lgkmcnt(0)")
        srd(28, PWS, WS_CV + 4096)
        srd(32, POUT, N * D * 2)
        A("buffer_load_dword v3, v1, s[28:31], 0 offen")
        A("buffer_load_dword v4, v1, s[32:35], 0 offen")
        A("s_waitcnt vmcnt(0)")
        A("s_endpgm")

QROW, HROW = 1040, 528
L_CNT = 0
L_FLAG = 256
L_SFL = 272
L_ZROW = 352
ZERO_B = 864
L_PRIV = 896
PRIV_N = 64 + R + 8
PRIV_B = PRIV_N * 8
L_H = L_PRIV + 16 * PRIV_B
L_SIDE = L_H + NPB * HROW
L_Q = L_SIDE + 16 * 1024
L_XT = L_Q + NPB * QROW
L_LIST = L_XT + 16 * 1024
K2_LDS = L_LIST + 2048 * 8
assert K2_LDS <= 163840 and PRIV_N % 4 == 0 and R == 8 and L_XT % 1024 != -1 and L_H % 16 == 0 and L_Q % 16 == 0
WIN = 16 * 63
DUMMY = FBASE + 0x7FF000

def gen_k2():
    kernel_begin("k2_kernel")
    VLF, VH8, VL16, VT16, VQ16 = 3, 4, 5, 6, 7
    W, Q, NN, DD, Z, Z2, T, LO, PZ = 8, 12, 16, 20, 24, 28, 32, 36, 38
    VA, VP, VDEG, VB4, VCNT, VPL, VM, VEND = 40, 41, 42, 43, 44, 45, 46, 47
    EV, OG, DAT = 48, [56, 60], 64
    AD, OUTA, OV = 80, 83, 84
    B2F = 92
    W2R = 96
    W1F, B1P, RC, TI = 96, 112, 116, 120
    SACC = 100
    ST, SW, SO, SX = 24, 28, 32, 36
    MA, MB = 40, 42
    SC = 44
    SMODE, SFIRST, SPOS, SQD, SCH, SFAST = 46, 47, 48, 49, 50, 51
    SOV, SM = 52, 54
    SREM, STOT, SLP, SW2, SNN, SWV = 56, 57, 58, 59, 60, 3
    SN40, SEX = 61, 62
    T0, T1, T2, T3, TP = 64, 65, 66, 67, 68
    STAIL, SSIDE = 70, 71
    SQM = 4
    SW1, SNB = 14, 15
    SLEN, SOUT = 12, 13
    C2 = f"s[{SC}:{SC+1}]"
    NLA, NLB, RKA, RKB, PA_, PB_, X0, X1 = 28, 29, 30, 31, 32, 33, 34, 35

    A("s_load_dwordx8 s[4:11], s[0:1], 0")
    A("s_load_dwordx2 s[20:21], s[0:1], 64")
    A("s_load_dwordx2 s[22:23], s[0:1], 80")
    stamp(0)
    if STAMP: A("s_memtime s[94:95]")
    A(f"s_cmp_ge_u32 s2, {NB}")
    A("s_cbranch_scc1 K2_END")
    A("v_and_b32 v1, 63, v0")
    A("v_lshrrev_b32 v48, 6, v0")
    A(f"v_lshlrev_b32 v{VT16}, 4, v0")
    A(f"v_readfirstlane_b32 s{SWV}, v48")
    A("v_lshlrev_b32 v2, 2, v1")
    A(f"s_lshl_b32 s{T0}, s2, 14")
    A(f"s_add_u32 s{T0}, s{T0}, {hex(WS_SEG)}")
    if NB == 250:
        A(f"s_mul_i32 s{SN40}, s2, {NPB}")
        A(f"s_mov_b32 s{SNB}, {NPB}")
    else:
        A(f"s_mul_i32 s{SN40}, s2, 625")
        A(f"s_add_u32 s{SNB}, s{SN40}, 640")
        A(f"s_add_u32 s{SN40}, s{SN40}, 15")
        A(f"s_lshr_b32 s{SN40}, s{SN40}, 4")
        A(f"s_lshr_b32 s{SNB}, s{SNB}, 4")
        A(f"s_sub_u32 s{SNB}, s{SNB}, s{SN40}")
    for k in range(4):
        A(f"v_mov_b32 v{52+k}, 0")
    A(f"v_cmp_gt_u32 vcc, {ZERO_B//16}, v0")
    A(f"s_mul_i32 s{T1}, s{SWV}, {PRIV_B}")
    A(f"s_add_u32 s{T1}, s{T1}, {L_PRIV}")
    A(f"s_and_saveexec_b64 s[{SEX}:{SEX+1}], vcc")
    A("s_cbranch_execz K2_Z1")
    A(f"ds_write_b128 v{VT16}, v[52:55]")
    L("K2_Z1")
    A(f"s_mov_b64 exec, s[{SEX}:{SEX+1}]")
    A(f"v_add_u32 v{VPL}, s{T1}, v2")
    A(f"v_mov_b32 v56, {hex(DUMMY)}")
    A(f"ds_write_b32 v{VPL}, v56")
    A(f"ds_write_b32 v{VPL}, v56 offset:{(PRIV_N-64)*4}")
    A(f"v_mov_b32 v{VP}, s{T1}")
    A("v_and_b32 v48, 15, v1")
    A("v_lshrrev_b32 v49, 4, v1")
    A("v_lshrrev_b32 v50, 4, v0")
    A("v_xor_b32 v51, v50, v48")
    A("v_and_b32 v51, 15, v51")
    A("v_lshlrev_b32 v51, 4, v51")
    A("v_lshl_add_u32 v51, v50, 8, v51")
    A(f"s_lshl_b32 s{SSIDE}, s{SWV}, 10")
    A(f"s_add_u32 s{T2}, s{SSIDE}, {L_XT}")
    A(f"s_mov_b32 m0, s{T2}")
    A(f"s_add_u32 s{SSIDE}, s{SSIDE}, {L_SIDE}")
    A(f"s_lshl_b32 s{T2}, s{SN40}, 8")
    A(f"s_mov_b32 s{T3}, {hex(WS_CV - 12*1024)}")
    A(f"v_lshlrev_b32 v{VL16}, 4, v1")
    A("s_waitcnt lgkmcnt(0)")
    srd(SW, PWS, WS_BYTES)
    A(f"buffer_load_dwordx4 {vr(RC,4)}, v{VT16}, s[{SW}:{SW+3}], s{T0} offen")
    srd(SX, PX, N * 256)
    A(f"s_cmp_lt_u32 s{SWV}, 12")
    A("s_cbranch_scc0 K2_CVL")
    A(f"buffer_load_dwordx4 v51, s[{SX}:{SX+3}], s{T2} offen lds")
    A("s_branch K2_CVD")
    L("K2_CVL")
    A(f"buffer_load_dwordx4 v{VT16}, s[{SW}:{SW+3}], s{T3} offen lds")
    L("K2_CVD")
    if SPF:
        A(f"s_lshr_b32 s{T1}, s2, 3")
        A(f"s_lshl_b32 s{T1}, s{T1}, 4")
        A(f"s_add_u32 s{T1}, s{T1}, s{SWV}")
        A(f"s_mul_i32 s{T1}, s{T1}, {SPF*128}")
        A(f"s_add_u32 s16, s{PWS}, s{T1}")
        A(f"s_addc_u32 s17, s{PWS+1}, 0")
        for k in range(SPF):
            A(f"s_load_dword s{18 + (k&1)}, s[16:17], {k*128}")
    A("s_barrier")
    if XS == "g": stamp(4)
    A(f"s_lshl_b32 s{T1}, s{SWV}, 12")
    A(f"s_add_u32 s{T2}, s{T1}, {hex(WS_W1F)}")
    A("v_lshlrev_b32 v52, 4, v50")
    for s in range(4):
        A(f"buffer_load_dwordx4 {vr(W1F+4*s,4)}, v{VL16}, s[{SW}:{SW+3}], s{T2} offen offset:{s*1024}")
    L_CV = L_XT + 12 * 1024
    if TCH2:
        srd(SO, POUT, N * D * 2)
        A(f"s_cmp_lg_u32 s{SWV}, 15")
        A("s_cbranch_scc1 K2_NOT")
        A(f"v_lshlrev_b32 v57, {TCH2}, v1")
        A(f"s_mov_b32 s{SX}, s{SW}")
        A(f"s_mov_b32 s{SX+1}, s{SW+1}")
        A(f"s_mov_b32 s{SX+2}, {N*512}")
        A(f"s_lshl_b32 s{T3}, s{SN40}, 8")
        A(f"buffer_load_dword v58, v57, s[{SX}:{SX+3}], 0 offen")
        A(f"buffer_load_dword v59, v2, s[{SO}:{SO+3}], s{T3} offen")
        L("K2_NOT")
    A(f"v_add_u32 v{OV}, {L_CV + 1024}, v52")
    A(f"v_and_b32 v{OV+1}, 0x1ff, v52")
    A(f"v_add_u32 v{OV+1}, {L_CV + 2048}, v{OV+1}")
    A(f"v_add_u32 v{OV+2}, {L_CV}, v{VL16}")
    NPRE = 4
    assert not PFL
    if PFL:
        A(f"s_lshr_b32 s{T3}, s2, 3")
        A(f"s_mul_i32 s{T3}, s{T3}, {PFL*128}")
        A(f"s_sub_u32 s{T2}, 15, s{SWV}")
        A(f"s_lshl_b32 s{T1}, s{T2}, 13")
        A(f"s_add_u32 s{T3}, s{T3}, s{T1}")
        A(f"s_cmp_lt_u32 s{T2}, {PFL//64}")
        A(f"s_cselect_b32 s{T3}, s{T3}, 0x7ff00000")
        A("v_lshlrev_b32 v55, 7, v1")
        A(f"buffer_load_dword v{OV}, v55, s[{SW}:{SW+3}], s{T3} offen sc1")
        NPRE += 1
    A(f"s_mov_b32 s{SC}, {hex(C_NLOG2E)}")
    A(f"s_mov_b32 s{SC+1}, {hex(C_NLOG2E)}")
    A(f"s_mov_b32 s{SMODE}, 0")
    A(f"s_mov_b32 s{SQD}, 0")
    A(f"s_sub_u32 s{ST}, s{PWS}, {hex(FBASE)}")
    A(f"s_subb_u32 s{ST+1}, s{PWS+1}, 0")
    A(f"s_and_b32 s{ST+1}, s{ST+1}, 0xffff")
    A(f"s_mov_b32 s{ST+2}, {hex(FBASE + N*512)}")
    A(f"s_mov_b32 s{ST+3}, 0x20000")
    srd(SO, POUT, N * D * 2)
    A(f"v_cvt_f32_u32 v{VLF}, v2")
    A(f"v_lshlrev_b32 v{VH8}, 3, v1")
    A(f"v_add_u32 v{VH8}, {L_H}, v{VH8}")
    A(f"v_add_u32 v{VQ16}, {L_Q}, v{VL16}")
    A(f"v_cvt_f32_u32 v{VM}, v1")
    A(f"v_rcp_f32 v{VM}, v{VM}")
    A("v_xor_b32 v54, v49, v48")
    A(f"v_mul_f32 v{VM}, 0x47800000, v{VM}")
    A("v_lshlrev_b32 v54, 4, v54")
    A(f"v_cvt_u32_f32 v{VM}, v{VM}")
    A("v_lshl_add_u32 v54, v48, 8, v54")
    A(f"v_add_u32 v{VM}, 1, v{VM}")
    for s in range(4):
        A(f"v_xor_b32 v{Q+s}, {64*s}, v54")
        A(f"v_add_u32 v{Q+s}, {L_XT}, v{Q+s}")
    A(f"s_movk_i32 s{T1}, {QROW}")
    A(f"v_mad_u32_u24 v{VA}, v48, s{T1}, v52")
    A(f"v_add_u32 v{VA}, {L_Q}, v{VA}")
    A(f"s_sub_u32 s{T2}, s{SNB}, 32")
    A(f"v_cmp_gt_u32 s[{SQM}:{SQM+1}], s{T2}, v48")
    A(f"s_movk_i32 s{T1}, {HROW}")
    A("v_lshlrev_b32 v55, 4, v49")
    A(f"v_mad_u32_u24 v{AD}, v48, s{T1}, v55")
    A(f"v_add_u32 v{LO+1}, {L_ZROW}, v55")
    A(f"v_lshlrev_b32 v{OUTA}, 8, v48")
    A(f"v_lshl_add_u32 v{OUTA}, v49, 3, v{OUTA}")
    A(f"v_lshlrev_b32 v{LO}, 2, v48")
    A(f"s_lshl_b32 s{SOUT}, s{SN40}, 8")
    A(f"s_lshl_b32 s{T2}, s{SWV}, 5")
    A(f"s_add_u32 s{SOUT}, s{SOUT}, s{T2}")
    A("s_branch K2_START")

    L("K2_PASS")
    A(f"s_lshl_b32 s{T0}, s2, 14")
    A(f"s_add_u32 s{T0}, s{T0}, {hex(WS_SEG)}")
    A(f"buffer_load_dwordx4 {vr(RC,4)}, v{VT16}, s[{SW}:{SW+3}], s{T0} offen")
    A("s_waitcnt vmcnt(0)")
    L("K2_START")
    A(f"v_mov_b32 v{VDEG}, 0")
    A(f"v_mov_b32 v{PZ}, 0")
    A(f"v_mov_b32 v{PZ+1}, 0")
    A(f"s_mov_b32 s{SFIRST}, 1")
    A(f"v_and_b32 v{X0}, 15, v0")
    A(f"v_lshlrev_b32 v{X0}, 1, v{X0}")
    A(f"v_add_u32 v{X1}, -1, v{X0}")
    A(f"s_waitcnt vmcnt({NPRE+1})")
    stamp(1)
    A(f"v_mov_b32_dpp v{PA_}, v{RC} row_newbcast:0 row_mask:0xf bank_mask:0xf")
    A(f"v_cmp_lt_u32 vcc, {CAP}, v{PA_}")
    A(f"v_cmp_lt_u32 s[{MA}:{MA+1}], v{X1}, v{PA_}")
    A(f"v_cmp_lt_u32 s[{MB}:{MB+1}], v{X0}, v{PA_}")
    A("s_cbranch_vccz K2_ROUND")
    A(f"s_andn2_b64 s[{MA}:{MA+1}], s[{MA}:{MA+1}], vcc")
    A(f"s_andn2_b64 s[{MB}:{MB+1}], s[{MB}:{MB+1}], vcc")
    A(f"s_and_saveexec_b64 s[{SEX}:{SEX+1}], vcc")
    A(f"v_lshrrev_b32 v{X0}, 4, v0")
    A(f"v_lshrrev_b32 v{X1}, 5, v{X0}")
    A(f"v_lshlrev_b32 v{X1}, 2, v{X1}")
    A(f"v_and_b32 v{X0}, 31, v{X0}")
    A(f"v_mov_b32 v{PB_}, 1")
    A(f"v_lshlrev_b32 v{PB_}, v{X0}, v{PB_}")
    A(f"ds_or_b32 v{X1}, v{PB_} offset:{L_FLAG}")
    A(f"s_mov_b64 exec, s[{SEX}:{SEX+1}]")

    L("K2_ROUND")
    A(f"v_and_b32 v{NLA}, 0xfc, v{RC+1}")
    A(f"v_and_b32 v{NLB}, 0xfc, v{RC+3}")
    A(f"v_mov_b32 v{X0}, 4")
    A(f"s_mov_b64 exec, s[{MA}:{MA+1}]")
    A("s_cbranch_execz K2_R1")
    A(f"ds_add_rtn_u32 v{RKA}, v{NLA}, v{X0}")
    L("K2_R1")
    A(f"s_mov_b64 exec, s[{MB}:{MB+1}]")
    A("s_cbranch_execz K2_R2")
    A(f"ds_add_rtn_u32 v{RKB}, v{NLB}, v{X0}")
    L("K2_R2")
    A("s_mov_b64 exec, -1")
    A(f"v_mov_b32 v{X1}, 0")
    A(f"s_waitcnt vmcnt({NPRE}) lgkmcnt(0)")
    A("s_barrier")
    if XS == "e": stamp(4)
    if XS == "f":
        A("s_waitcnt vmcnt(0)"); stamp(4)
    A(f"ds_read_b32 v{VCNT}, v2")
    A(f"ds_read_b64 {vr(NN,2)}, v{X1} offset:{L_FLAG}")
    A("s_waitcnt lgkmcnt(1)")
    A(f"v_add_u32_dpp v{VEND}, v{VCNT}, v{VCNT} row_shr:1 row_mask:0xf bank_mask:0xf bound_ctrl:0")
    A(f"v_add_u32 v{VDEG}, v{VDEG}, v{VCNT}")
    for k, ctl in enumerate(("row_shr:2 row_mask:0xf bank_mask:0xf bound_ctrl:0",
                "row_shr:4 row_mask:0xf bank_mask:0xf bound_ctrl:0", "row_shr:8 row_mask:0xf bank_mask:0xf bound_ctrl:0",
                "row_bcast:15 row_mask:0xa bank_mask:0xf", "row_bcast:31 row_mask:0xc bank_mask:0xf")):
        A("s_nop 0" if k == 0 else "s_nop 1")
        A(f"v_add_u32_dpp v{VEND}, v{VEND}, v{VEND} {ctl}")
    A(f"v_sub_u32 v{VB4}, v{VEND}, v{VCNT}")
    A("s_waitcnt lgkmcnt(0)")
    A(f"v_readlane_b32 s{STOT}, v{VEND}, 63")
    A(f"ds_bpermute_b32 v{PA_}, v{NLA}, v{VB4}")
    A(f"ds_bpermute_b32 v{PB_}, v{NLB}, v{VB4}")
    A(f"s_cmp_eq_u32 s{SFIRST}, 0")
    A("s_cbranch_scc1 K2_R3")
    A(f"v_readfirstlane_b32 s{SOV}, v{NN}")
    A(f"v_readfirstlane_b32 s{SOV+1}, v{NN+1}")
    A(f"s_mov_b32 s{SPOS}, {CH}")
    L("K2_R3")
    A(f"s_add_u32 s{T1}, s{STOT}, 60")
    A(f"s_lshr_b32 s{SLEN}, s{T1}, 6")
    A(f"s_lshl_b32 s{T1}, s{SLEN}, 2")
    A(f"s_add_u32 s{T2}, s{T1}, 4")
    A(f"v_cmp_lt_u32 vcc, s{T2}, v{VCNT}")
    A(f"s_and_b32 s{T3}, s{SLEN}, 63")
    A(f"v_readlane_b32 s{T0}, v{VM}, s{T3}")
    A(f"s_andn2_b32 s{SFAST}, s{SFIRST}, s{SMODE}")
    A(f"s_cmp_gt_u32 s{STOT}, {4*WIN}")
    A(f"s_cselect_b32 s{SFAST}, 0, s{SFAST}")
    A(f"s_sub_u32 s{T1}, {PRIV_B}, s{T1}")
    A(f"s_or_b64 vcc, vcc, s[{SOV}:{SOV+1}]")
    A(f"s_cselect_b32 s{SFAST}, 0, s{SFAST}")
    A(f"s_cmp_eq_u32 s{SFAST}, 0")
    A("s_waitcnt lgkmcnt(0)")
    A(f"v_add_u32 v{PA_}, v{PA_}, v{RKA}")
    A(f"v_add_u32 v{PB_}, v{PB_}, v{RKB}")
    A("s_cbranch_scc1 K2_WL")
    A(f"v_mul_u32_u24 v{RKA}, s{T0}, v{PA_}")
    A(f"v_mul_u32_u24 v{RKB}, s{T0}, v{PB_}")
    A(f"v_lshrrev_b32 v{RKA}, 18, v{RKA}")
    A(f"v_lshrrev_b32 v{RKB}, 18, v{RKB}")
    A(f"v_mad_u32_u24 v{PA_}, v{RKA}, s{T1}, v{PA_}")
    A(f"v_mad_u32_u24 v{PB_}, v{RKB}, s{T1}, v{PB_}")
    for tag, m, ad, rc in (("A", MA, PA_, RC), ("B", MB, PB_, RC + 2)):
        A(f"s_mov_b64 exec, s[{m}:{m+1}]")
        A(f"s_cbranch_execz K2_P{tag}")
        A(f"ds_write_b32 v{ad}, v{rc} offset:{L_PRIV}")
        A(f"ds_write_b32 v{ad}, v{rc+1} offset:{L_PRIV + PRIV_N*4}")
        L(f"K2_P{tag}")
    A("s_branch K2_WB")
    L("K2_WL")
    A(f"v_lshlrev_b32 v{PA_}, 1, v{PA_}")
    A(f"v_lshlrev_b32 v{PB_}, 1, v{PB_}")
    A(f"v_add_u32 v{PA_}, {L_LIST}, v{PA_}")
    A(f"v_add_u32 v{PB_}, {L_LIST}, v{PB_}")
    for tag, m, ad, rc in (("A", MA, PA_, RC), ("B", MB, PB_, RC + 2)):
        A(f"s_mov_b64 exec, s[{m}:{m+1}]")
        A(f"s_cbranch_execz K2_W{tag}")
        A(f"ds_write_b64 v{ad}, {vr(rc,2)}")
        L(f"K2_W{tag}")
    A("s_mov_b64 exec, -1")
    A(f"s_mov_b32 s{SW2}, 1")
    A("s_waitcnt lgkmcnt(0)")
    A("s_barrier")
    stamp(2)
    def row_load(d, p, pair=False):
        if not pair:
            A(f"v_add_u32 v{p}, v{p}, v2")
        A(f"buffer_load_dword v{d}, v{p}, s[{ST}:{ST+3}], 0 offen")
        A(f"buffer_load_dword v{d+1}, v{p}, s[{ST}:{ST+3}], 0 offen offset:256")
    for k in range(R // 4):
        A(f"ds_read_b128 {vr(TI+4*k,4)}, v{VP} offset:{16*k}")
    A(f"s_cmp_lg_u32 s{SWV}, 0")
    A("s_cbranch_scc1 K2_R4")
    A(f"ds_write_b32 v2, v{X1}")
    L("K2_R4")
    A(f"s_cmp_lg_u32 s{SQD}, 0")
    A("s_cbranch_scc1 K2_SLOW")
    A(f"s_mov_b32 s{SQD}, 1")
    AT = [72, 76, Z2, T, RC, OG[1]]
    seq = [(mt, s) for s in range(4) for mt in range(3)]
    PRE = 5
    A(f"ds_read_b128 {vr(B1P,4)}, v{OV}")
    for k in range(PRE):
        mt, s = seq[k]
        A(f"ds_read_b128 {vr(AT[k%6],4)}, v{Q+s} offset:{4096*mt}")
    A(f"s_mul_i32 s{T0}, s{SLEN}, s{SWV}")
    A(f"s_add_u32 s{T3}, s{T0}, s{SLEN}")
    A(f"s_lshl_b32 s{T0}, s{T0}, 2")
    A(f"s_lshl_b32 s{T3}, s{T3}, 2")
    A(f"s_min_u32 s{T0}, s{T0}, s{STOT}")
    A(f"s_min_u32 s{T3}, s{T3}, s{STOT}")
    A(f"s_sub_u32 s{SNN}, s{T3}, s{T0}")
    A(f"s_lshr_b32 s{SNN}, s{SNN}, 2")
    A(f"s_waitcnt lgkmcnt({PRE+1})")
    assert F1 == 4
    for k in range(F1):
        row_load(DAT + 2*k, TI + k)
    A(f"v_cmp_gt_u32 vcc, s{T0}, v{VB4}")
    A(f"v_cmp_lt_u32 s[{TP}:{TP+1}], s{T0}, v{VEND}")
    A(f"s_and_b64 vcc, vcc, s[{TP}:{TP+1}]")
    A(f"s_cselect_b32 s{SLP}, 1, 0")
    A(f"v_cmp_gt_u32 vcc, s{T3}, v{VB4}")
    A(f"v_cmp_lt_u32 s[{TP}:{TP+1}], s{T3}, v{VEND}")
    A(f"s_and_b64 vcc, vcc, s[{TP}:{TP+1}]")
    A(f"s_cselect_b32 s{STAIL}, 1, 0")
    for k, (mt, s) in enumerate(seq):
        if k + PRE < 12:
            m2, s2 = seq[k+PRE]
            A(f"ds_read_b128 {vr(AT[(k+PRE)%6],4)}, v{Q+s2} offset:{4096*m2}")
        w = f"s_waitcnt lgkmcnt({min(PRE, 11-k)})"
        if mt == 0: w += f" vmcnt({NPRE-1-s+2*F1})"
        A(w)
        c = vr(B1P, 4) if s == 0 else vr(NN+4*mt, 4)
        A(f"v_mfma_f32_16x16x32_bf16 {vr(NN+4*mt,4)}, {vr(W1F+4*s,4)}, {vr(AT[k%6],4)}, {c}")
    A(f"ds_read_b32 v{Q}, v{VPL} offset:{PRIV_N*4}")
    for k in range(R // 4):
        A(f"ds_read_b128 {vr(EV+4*k,4)}, v{VP} offset:{PRIV_N*4 + 16*k}")
    A(f"ds_read_b128 {vr(OG[0],4)}, v{VP} offset:{R*4}")
    A(f"ds_read_b128 {vr(W,4)}, v{OV+2}")
    A(f"ds_read_b128 {vr(B2F,4)}, v{OV+1}")
    A(f"v_cmp_le_u32 vcc, s{SNN}, v1")
    A(f"s_movk_i32 s{T2}, {QROW//4}")
    A(f"s_movk_i32 s{T3}, {HROW//4}")
    A(f"s_mov_b32 s{SREM}, s{SNN}")
    for mt in range(3):
        for r in range(4):
            A(f"v_mul_f32 v{NN+4*mt+r}, s{SC}, v{NN+4*mt+r}")
        if mt == 2:
            A(f"s_mov_b64 exec, s[{SQM}:{SQM+1}]")
        A(f"ds_write_b128 v{VA}, {vr(NN+4*mt,4)} offset:{16*mt*QROW}")
    A("s_mov_b64 exec, -1")
    A("s_waitcnt lgkmcnt(0)")
    A("s_barrier")
    stamp(3)
    A(f"s_cmp_eq_u32 s{SFAST}, 0")
    A("s_cbranch_scc1 K2_SLOW")
    A(f"v_and_b32 v{Z2}, 0xfc, v{EV}")
    A(f"v_and_b32 v{Q+1}, 0xfc, v{Q}")
    A(f"v_mad_u32_u24 v{Z2+1}, v{Z2}, s{T2}, v{VQ16}")
    A("s_setprio 3" if PRIO else "s_nop 0")
    A(f"v_mov_b32_dpp v{Q+2}, v{Q+1} wave_shr:1 row_mask:0xf bank_mask:0xf")
    A(f"v_cmp_ne_u32 s[{SM}:{SM+1}], v{Q+1}, v{Q+2}")
    A(f"ds_read_b128 {vr(Q,4)}, v{Z2+1}")
    A(f"s_or_b64 s[{SM}:{SM+1}], s[{SM}:{SM+1}], vcc")
    for k in range(F1, R):
        row_load(DAT + 2*k, TI + k)
    for k in range(4):
        A(f"v_add_u32 v{OG[0]+k}, v{OG[0]+k}, v2")
    def tail_prep():
        for mt in range(3):
            A(f"v_add_u32 v{T+3}, {64*mt}, v{LO}")
            A(f"ds_bpermute_b32 v{T+mt}, v{T+3}, v{VDEG}")
        A(f"v_add_u32 v{AD+2}, {L_H + 32*HROW}, v{AD}")
        A(f"v_add_u32 v{AD+1}, {L_H + 16*HROW}, v{AD}")
        A(f"v_add_u32 v{AD}, {L_H}, v{AD}")
        A("s_waitcnt lgkmcnt(0)")
        for mt in range(3):
            A(f"v_cmp_eq_u32 vcc, 0, v{T+mt}")
            A(f"v_cvt_f32_u32 v{T+mt}, v{T+mt}")
            A(f"v_mul_f32 v{T+mt}, 0.25, v{T+mt}") if False else A(f"v_mul_f32 v{T+mt}, 0x3e800000, v{T+mt}")
            A(f"v_cndmask_b32 v{AD+mt}, v{AD+mt}, v{LO+1}, vcc")
            A(f"v_pk_mul_f32 {vr(OV+4*mt,2)}, {vr(B2F,2)}, {vr(T+(mt&2),2)} " + ("op_sel_hi:[1,0]" if mt % 2 == 0 else "op_sel:[0,1]"))
            A(f"v_pk_mul_f32 {vr(OV+4*mt+2,2)}, {vr(B2F+2,2)}, {vr(T+(mt&2),2)} " + ("op_sel_hi:[1,0]" if mt % 2 == 0 else "op_sel:[0,1]"))
    A(f"s_cmp_ge_u32 s{SWV}, 8")
    A("s_cbranch_scc1 K2_NOTP")
    tail_prep()
    L("K2_NOTP")
    A(f"v_mov_b32 v{LO}, v{Z2}")
    VW = 2 * (R - 1)
    if STAMP and not XS:
        A(f"s_waitcnt vmcnt({VW})")
        stamp(4)
    A(f"s_cmp_eq_u32 s{SNN}, 0")
    A("s_cbranch_scc1 K2_WDONE")
    A("s_branch K2_HC0")

    def e_sel(s):
        base = EV + (s & ~1)
        return (vr(base, 2), "op_sel_hi:[1,0,1]") if s % 2 == 0 else (vr(base, 2), "op_sel:[0,1,0]")
    def part_z1(s, z):
        ep, es = e_sel(s)
        return [f"v_pk_fma_f32 {vr(z,2)}, {vr(W,2)}, {ep}, {vr(Q,2)} {es}",
                f"v_pk_fma_f32 {vr(z+2,2)}, {vr(W+2,2)}, {ep}, {vr(Q+2,2)} {es}"]
    def part_z2(s, z, zo=None):
        d = DAT + 2*s
        zo = z if zo is None else zo
        return [f"v_lshlrev_b64 {vr(LO,2)}, 16, {vr(d,2)}",
                f"v_pk_fma_f32 {vr(zo,2)}, {vr(d,2)}, {C2}, {vr(z,2)}",
                f"v_pk_fma_f32 {vr(zo+2,2)}, {vr(LO,2)}, {C2}, {vr(z+2,2)}"]
    def part_exp(z): return [f"v_exp_f32 v{T+k}, v{z+k}" for k in range(4)]
    def part_nd(z):
        return [f"v_pk_fma_f32 {vr(NN,2)}, {vr(NN,2)}, {vr(T,2)}, {vr(NN,2)}",
                f"v_pk_fma_f32 {vr(NN+2,2)}, {vr(NN+2,2)}, {vr(T+2,2)}, {vr(NN+2,2)}",
                f"v_pk_fma_f32 {vr(NN,2)}, {vr(z,2)}, {vr(DD,2)}, {vr(NN,2)}",
                f"v_pk_fma_f32 {vr(NN+2,2)}, {vr(z+2,2)}, {vr(DD+2,2)}, {vr(NN+2,2)}",
                f"v_pk_fma_f32 {vr(DD,2)}, {vr(DD,2)}, {vr(T,2)}, {vr(DD,2)}",
                f"v_pk_fma_f32 {vr(DD+2,2)}, {vr(DD+2,2)}, {vr(T+2,2)}, {vr(DD+2,2)}"]
    def addr_prep(k):
        A("s_waitcnt lgkmcnt(0)")
        A(f"v_pk_add_f32 {vr(OG[k],2)}, {vr(OG[k],2)}, v[2:3] op_sel:[0,1]")
        A(f"v_pk_add_f32 {vr(OG[k]+2,2)}, {vr(OG[k]+2,2)}, v[2:3] op_sel:[0,1]")
    def refill(s):
        og = OG[(s // 4) % 2]
        if s % 4 == 0:
            A(f"ds_read_b128 {vr(OG[(s//4+1)%2],4)}, v{VP} offset:{(R+s+4)*4}")
        if "noload" not in EXP:
            row_load(DAT + 2*s, og + s % 4, pair=True)
        if s % 4 == 3:
            addr_prep((s // 4 + 1) % 2)
        if s % 4 == 3:
            A(f"ds_read_b128 {vr(EV+s-3,4)}, v{VP} offset:{PRIV_N*4 + (R+s-3)*4}")
    def w2_load():
        A(f"s_mov_b32 s{SW2}, 0")
        A(f"s_lshl_b32 s{T0}, s{SWV}, 13")
        A(f"s_add_u32 s{T0}, s{T0}, {hex(WS_W2F)}")
        A(f"s_add_u32 s{T1}, s{T0}, 4096")
        for k in range(8):
            A(f"buffer_load_dwordx4 {vr(W2R+4*k,4)}, v{VL16}, s[{SW}:{SW+3}], s{T0 + k//4} offen offset:{(k%4)*1024}")
    NG = R // 4
    nocomp = "nocomp" in EXP
    L("K2_LOOP")
    for g in range(NG):
        L(f"K2_G{g}")
        A(f"s_and_b32 s{T0}, s{SM}, {hex(0xF << (4*g))}")
        A(f"s_cbranch_scc1 K2_S{4*g}")
        zz = [Z, Z2]
        s0 = 4*g
        for x in part_z1(s0, zz[0]): A(x)
        A(f"s_waitcnt vmcnt({VW})")
        for x in part_z2(s0, zz[0]): A(x)
        refill(s0)
        for k in range(4):
            s = s0 + k
            z, zn = zz[k % 2], zz[(k + 1) % 2]
            ex, nd = part_exp(z), part_nd(z)
            if nocomp: ex = ["s_nop 0"] * 4; nd = ["s_nop 0"] * 6
            if k < 3:
                a, b = part_z1(s + 1, zn), part_z2(s + 1, zn)
                A(ex[0]); A(a[0]); A(ex[1]); A(a[1]); A(ex[2])
                A(f"s_waitcnt vmcnt({VW})")
                A(b[0]); A(ex[3]); A(nd[0]); A(b[1]); A(nd[1]); A(nd[2]); A(b[2]); A(nd[3])
                refill(s + 1)
                A(nd[4]); A(nd[5])
            else:
                for x in ex + nd: A(x)
    L("K2_PEND")
    A(f"v_add_u32 v{VP}, {R*4}, v{VP}")
    A(f"s_lshr_b64 s[{SM}:{SM+1}], s[{SM}:{SM+1}], {R}")
    A(f"s_sub_u32 s{SREM}, s{SREM}, {R}")
    for thr, p in PRIO_T:
        A(f"s_cmp_gt_u32 s{SREM}, {thr}")
        A("s_cbranch_scc1 K2_LOOP")
        if PRIO: A(f"s_setprio {p}")
    A(f"s_cmp_ge_u32 s{SWV}, 8")
    A("s_cbranch_scc1 K2_LOOP")
    A(f"s_cmp_eq_u32 s{SW2}, 0")
    A("s_cbranch_scc1 K2_LOOP")
    w2_load()
    A("s_branch K2_LOOP")
    for s in range(R):
        L(f"K2_S{s}")
        A(f"s_bitcmp1_b32 s{SM}, {s}")
        A(f"s_cbranch_scc1 K2_H{s}")
        for x in part_z1(s, Z): A(x)
        A(f"s_waitcnt vmcnt({VW})")
        for x in part_z2(s, Z) + ([] if nocomp else part_exp(Z) + part_nd(Z)): A(x)
        L(f"K2_J{s}")
        refill(s)
        if s % 4 == 3:
            A(f"s_branch K2_G{s//4+1}" if s + 1 < R else "s_branch K2_PEND")
    def fold():
        for k in range(4):
            A(f"v_rcp_f32 v{T+k}, v{DD+k}")
        A(f"v_pk_fma_f32 {vr(PZ,2)}, {vr(DD,2)}, {vr(NN,2)}, {vr(PZ,2)}")
        A(f"v_pk_fma_f32 {vr(PZ,2)}, {vr(DD+2,2)}, {vr(NN+2,2)}, {vr(PZ,2)}")
        A(f"v_pk_mul_f32 {vr(Z,2)}, {vr(NN,2)}, {vr(T,2)}")
        A(f"v_pk_mul_f32 {vr(Z+2,2)}, {vr(NN+2,2)}, {vr(T+2,2)}")
    def lead_flush():
        A(f"v_add_u32 v{Z2}, s{SSIDE}, v{VL16}")
        A(f"ds_write_b128 v{Z2}, {vr(Z,4)}")
        A(f"s_lshl_b32 s{T0}, s{SWV}, 2")
        A(f"v_mov_b32 v{Z2+1}, s{T0}")
        A(f"v_mov_b32 v{Z2+2}, 1")
        A(f"ds_write_b32 v{Z2+1}, v{Z2+2} offset:{L_SFL}")
        A(f"s_mov_b32 s{SLP}, 0")
    for s in range(R):
        L(f"K2_H{s}")
        A(f"s_cmp_eq_u32 s{SREM}, {s}")
        A("s_cbranch_scc1 K2_LAST")
        A(f"v_and_b32 v{LO}, 0xfc, v{EV+s}")
        A(f"v_mad_u32_u24 v{LO+1}, v{LO}, s{T2}, v{VQ16}")
        A(f"ds_read_b128 {vr(Q,4)}, v{LO+1}")
        fold()
        A(f"s_cmp_lg_u32 s{SLP}, 0")
        A(f"s_cbranch_scc1 K2_LS{s}")
        A(f"v_cvt_pk_bf16_f32 v{Z}, v{Z}, v{Z+1}")
        A(f"v_cvt_pk_bf16_f32 v{Z+1}, v{Z+2}, v{Z+3}")
        A(f"ds_write_b64 v{VA}, {vr(Z,2)}")
        L(f"K2_HC{s}")
        A(f"v_mad_u32_u24 v{VA}, v{LO}, s{T3}, v{VH8}")
        A(f"s_waitcnt vmcnt({VW}) lgkmcnt(0)")
        for x in part_z1(s, Z) + part_z2(s, Z, NN) + part_exp(NN): A(x)
        A(f"v_pk_add_f32 {vr(DD,2)}, {vr(T,2)}, 1.0 op_sel_hi:[1,0]")
        A(f"v_pk_add_f32 {vr(DD+2,2)}, {vr(T+2,2)}, 1.0 op_sel_hi:[1,0]")
        A(f"s_branch K2_J{s}")
        L(f"K2_LS{s}")
        lead_flush()
        A(f"s_branch K2_HC{s}")
    L("K2_LAST")
    A(f"s_lshl_b32 s{T0}, s{SWV}, 2")
    A(f"v_mov_b32 v{LO}, s{T0}")
    A(f"v_add_u32 v{LO+1}, s{SSIDE}, v{VL16}")
    A(f"ds_read_b32 v{Z2}, v{LO} offset:{L_SFL+4}")
    A(f"ds_read_b128 {vr(Q,4)}, v{LO+1} offset:1024")
    fold()
    A(f"s_cmp_eq_u32 s{SLP}, 0")
    A("s_cbranch_scc1 K2_L1")
    A("s_waitcnt lgkmcnt(0)")
    lead_flush()
    A("s_branch K2_WDONE")
    L("K2_L1")
    A(f"s_cmp_eq_u32 s{STAIL}, 0")
    A("s_cbranch_scc1 K2_L3")
    L("K2_L2")
    A("s_waitcnt lgkmcnt(0)")
    A(f"v_readfirstlane_b32 s{T0}, v{Z2}")
    A(f"s_cmp_lg_u32 s{T0}, 0")
    A("s_cbranch_scc1 K2_L2B")
    A("s_sleep 2")
    A(f"ds_read_b32 v{Z2}, v{LO} offset:{L_SFL+4}")
    A(f"ds_read_b128 {vr(Q,4)}, v{LO+1} offset:1024")
    A("s_branch K2_L2")
    L("K2_L2B")
    A(f"v_pk_add_f32 {vr(Z,2)}, {vr(Z,2)}, {vr(Q,2)}")
    A(f"v_pk_add_f32 {vr(Z+2,2)}, {vr(Z+2,2)}, {vr(Q+2,2)}")
    L("K2_L3")
    A(f"v_cvt_pk_bf16_f32 v{Z}, v{Z}, v{Z+1}")
    A(f"v_cvt_pk_bf16_f32 v{Z+1}, v{Z+2}, v{Z+3}")
    A(f"ds_write_b64 v{VA}, {vr(Z,2)}")
    A("s_branch K2_WDONE")

    L("K2_SLOW")
    A("s_waitcnt vmcnt(0) lgkmcnt(0)")
    A(f"s_cmp_eq_u32 s{SFIRST}, 0")
    A("s_cbranch_scc1 K2_SL0")
    for k in range(12):
        A(f"v_mov_b32 v{SACC+k}, 0")
    L("K2_SL0")
    for i in range(3):
        A(f"s_add_u32 s{T0}, s{SWV}, {16*i}")
        A(f"v_readlane_b32 s{T1}, v{VB4}, s{T0}")
        A(f"v_readlane_b32 s{T2}, v{VCNT}, s{T0}")
        A(f"s_mul_i32 s{T3}, s{T0}, {QROW}")
        A(f"s_cmp_eq_u32 s{T2}, 0")
        A(f"s_cbranch_scc1 K2_SLN{i}")
        A(f"v_add_u32 v{Z2}, s{T3}, v{VQ16}")
        A(f"ds_read_b128 {vr(Q,4)}, v{Z2}")
        A(f"s_lshl_b32 s{T1}, s{T1}, 1")
        A(f"s_add_u32 s{T1}, s{T1}, {L_LIST}")
        A(f"v_mov_b32 v{VA}, s{T1}")
        L(f"K2_SLL{i}")
        A(f"ds_read_b64 {vr(EV,2)}, v{VA}")
        A(f"v_add_u32 v{VA}, 8, v{VA}")
        A("s_waitcnt lgkmcnt(0)")
        row_load(DAT + 2, EV, pair=False)
        for x in part_z1(1, Z): A(x)
        A("s_waitcnt vmcnt(0)")
        for x in part_z2(1, Z) + part_exp(Z): A(x)
        A("s_nop 0")
        for k in range(4):
            A(f"v_add_f32 v{T+k}, 1.0, v{T+k}")
        for k in range(4):
            A(f"v_rcp_f32 v{T+k}, v{T+k}")
        A(f"s_sub_u32 s{T2}, s{T2}, 4")
        for k in range(4):
            A(f"v_fmac_f32 v{SACC+4*i+k}, v{Z+k}, v{T+k}")
        A(f"s_cmp_lg_u32 s{T2}, 0")
        A(f"s_cbranch_scc1 K2_SLL{i}")
        L(f"K2_SLN{i}")
    A(f"s_mov_b32 s{SFIRST}, 0")
    A(f"s_cmp_lt_u32 s{SPOS}, {CH}")
    A("s_cbranch_scc1 K2_FETCH")
    A(f"s_cmp_eq_u64 s[{SOV}:{SOV+1}], 0")
    A("s_cbranch_scc1 K2_SLFIN")
    A(f"s_ff1_i32_b64 s{SCH}, s[{SOV}:{SOV+1}]")
    A(f"s_bitset0_b64 s[{SOV}:{SOV+1}], s{SCH}")
    A(f"s_mov_b32 s{SPOS}, 0")
    L("K2_FETCH")
    A("s_waitcnt lgkmcnt(0)")
    A("s_barrier")
    A(f"s_mul_i32 s{T0}, s{SCH}, {CH}")
    A(f"s_add_u32 s{T0}, s{T0}, s{SPOS}")
    A(f"s_lshl_b32 s{T1}, s{T0}, 2")
    A(f"s_lshl_b32 s{T2}, s{T0}, 1")
    A("v_lshlrev_b32 v64, 3, v0")
    A("v_lshlrev_b32 v65, 2, v0")
    srd(SX, PDST, E * 4)
    A(f"buffer_load_dwordx2 v[66:67], v64, s[{SX}:{SX+3}], s{T1} offen")
    srd(SX, PSRC, E * 4)
    A(f"buffer_load_dwordx2 v[68:69], v64, s[{SX}:{SX+3}], s{T1} offen")
    srd(SX, PE, E * 2)
    A(f"buffer_load_dword v70, v65, s[{SX}:{SX+3}], s{T2} offen")
    A("v_lshlrev_b32 v71, 1, v0")
    A(f"v_add_u32 v71, s{SPOS}, v71")
    A(f"s_movk_i32 s{T0}, {CH}")
    A(f"v_cmp_gt_u32 s[{MA}:{MA+1}], s{T0}, v71")
    A(f"s_add_u32 s{SPOS}, s{SPOS}, 2048")
    A(f"s_mov_b32 s{T0}, {hex(FBASE)}")
    A("s_waitcnt vmcnt(0)")
    A(f"v_lshl_or_b32 v{RC}, v68, 9, s{T0}")
    A(f"v_lshl_or_b32 v{RC+2}, v69, 9, s{T0}")
    A(f"v_subrev_u32 v66, s{SN40}, v66")
    A(f"v_subrev_u32 v67, s{SN40}, v67")
    A(f"v_cmp_gt_u32 vcc, s{SNB}, v67")
    A(f"s_and_b64 s[{MB}:{MB+1}], s[{MA}:{MA+1}], vcc")
    A(f"v_cmp_gt_u32 vcc, s{SNB}, v66")
    A(f"s_and_b64 s[{MA}:{MA+1}], s[{MA}:{MA+1}], vcc")
    A("v_lshlrev_b32 v66, 2, v66")
    A("v_lshlrev_b32 v67, 2, v67")
    A(f"v_lshl_or_b32 v{RC+1}, v70, 16, v66")
    A("v_and_b32 v70, 0xffff0000, v70")
    A(f"v_or_b32 v{RC+3}, v70, v67")
    A("s_branch K2_ROUND")
    L("K2_SLFIN")
    for i in range(3):
        if i == 2:
            A(f"s_cmp_ge_u32 s{SWV}, {NPB-32}")
            A("s_cbranch_scc1 K2_WDONE")
        A(f"s_add_u32 s{T0}, s{SWV}, {16*i}")
        A(f"s_mul_i32 s{T0}, s{T0}, {HROW}")
        A(f"v_add_u32 v{Z2}, s{T0}, v{VH8}")
        A(f"v_cvt_pk_bf16_f32 v{Z}, v{SACC+4*i}, v{SACC+4*i+1}")
        A(f"v_cvt_pk_bf16_f32 v{Z+1}, v{SACC+4*i+2}, v{SACC+4*i+3}")
        A(f"ds_write_b64 v{Z2}, {vr(Z,2)}")
    A("v_and_b32 v48, 15, v1")
    A("v_lshrrev_b32 v49, 4, v1")
    A("v_lshlrev_b32 v55, 4, v49")
    A(f"s_movk_i32 s{T1}, {HROW}")
    A(f"v_mad_u32_u24 v{AD}, v48, s{T1}, v55")
    A(f"v_add_u32 v{LO+1}, {L_ZROW}, v55")
    A(f"v_lshlrev_b32 v{LO}, 2, v48")
    A(f"s_lshl_b32 s{T0}, s{SWV}, 6")
    A(f"s_add_u32 s{T0}, s{T0}, {hex(WS_CV)}")
    A(f"buffer_load_dwordx4 {vr(B2F,4)}, v55, s[{SW}:{SW+3}], s{T0} offen offset:2048")
    A("s_waitcnt vmcnt(0)")
    tail_prep()

    L("K2_WDONE")
    stamp(5)
    A(f"v_add_f32 v{T}, v{PZ}, v{PZ+1}")
    A(f"v_mov_b32 v{Z2+1}, 0x207")
    A(f"v_cmp_class_f32 vcc, v{T}, v{Z2+1}")
    A(f"v_mov_b32 v{Z2+2}, 0")
    A(f"s_mov_b32 s{TP}, {hex(C_NLN2)}")
    A("s_branch K2_NOG" if EXP else "s_cbranch_vccz K2_NOG")
    A(f"ds_write_b32 v{Z2+2}, v{Z2+1} offset:{L_FLAG+8}")
    L("K2_NOG")
    A(f"s_cmp_ge_u32 s{SWV}, 8")
    A("s_cbranch_scc1 K2_B4")
    A(f"s_cmp_eq_u32 s{SW2}, 0")
    A("s_cbranch_scc1 K2_B4")
    w2_load()
    L("K2_B4")
    A("s_waitcnt vmcnt(0) lgkmcnt(0)")
    A("s_barrier")
    stamp(6)
    if os.environ.get("DUMP"):
        A(f"s_lshl_b32 s{T0}, s2, 17")
        A(f"s_add_u32 s{T0}, s{T0}, 0x4000000")
        for k in range(6):
            A(f"v_add_u32 v48, {k*16384}, v{VT16}")
            A("ds_read_b128 v[52:55], v48")
            A("s_waitcnt lgkmcnt(0)")
            A(f"buffer_store_dwordx4 v[52:55], v48, s[{SW}:{SW+3}], s{T0} offen")
            A("s_waitcnt vmcnt(0)")
    A(f"ds_read_b32 v{Z2+3}, v{Z2+2} offset:{L_FLAG+8}")
    A(f"s_cmp_ge_u32 s{SWV}, 8")
    A("s_cbranch_scc1 K2_CHK")
    HB = [48 + 4*k for k in range(8)]
    ACC = [12, 16, 20]
    seq = [(mt, s) for mt in range(3) for s in range(8)]
    PRE = 7
    for k in range(PRE):
        mt, s = seq[k]
        A(f"ds_read_b128 {vr(HB[k%8],4)}, v{AD+mt} offset:{s*64}")
    def epi(mt):
        for r in range(4):
            A(f"v_fma_f32 v{OV+4*mt+r}, v{ACC[mt]+r}, s{TP}, v{OV+4*mt+r}")
        A(f"v_cvt_pk_bf16_f32 v{32+2*mt}, v{OV+4*mt}, v{OV+4*mt+1}")
        A(f"v_cvt_pk_bf16_f32 v{33+2*mt}, v{OV+4*mt+2}, v{OV+4*mt+3}")
    for k, (mt, s) in enumerate(seq):
        if k + PRE < 24:
            m2, s2 = seq[k+PRE]
            A(f"ds_read_b128 {vr(HB[(k+PRE)%8],4)}, v{AD+m2} offset:{s2*64}")
        A(f"s_waitcnt lgkmcnt({min(PRE, 23-k)})")
        c = "0" if s == 0 else vr(ACC[mt], 4)
        A(f"v_mfma_f32_16x16x32_bf16 {vr(ACC[mt],4)}, {vr(W2R+4*s,4)}, {vr(HB[k%8],4)}, {c}")
        if s == 4 and mt > 0:
            epi(mt - 1)
    A("s_nop 7")
    epi(2)
    L("K2_CHK")
    A("s_waitcnt lgkmcnt(0)")
    A(f"v_readfirstlane_b32 s{T2}, v{Z2+3}")
    A(f"s_lshl_b32 s{T1}, s{SMODE}, 31")
    A(f"s_or_b32 s{T2}, s{T2}, s{T1}")
    A(f"s_cmp_gt_i32 s{T2}, 0")
    A("s_cbranch_scc1 K2_REDO")
    A(f"s_cmp_ge_u32 s{SWV}, 8")
    A("s_cbranch_scc1 K2_END2")
    A(f"s_add_u32 s{T2}, s{SOUT}, 4096")
    A(f"s_add_u32 s{T1}, s{SOUT}, 8192")
    A(f"buffer_store_dwordx2 v[32:33], v{OUTA}, s[{SO}:{SO+3}], s{SOUT} offen")
    A(f"buffer_store_dwordx2 v[34:35], v{OUTA}, s[{SO}:{SO+3}], s{T2} offen")
    A(f"s_mov_b64 exec, s[{SQM}:{SQM+1}]")
    A(f"buffer_store_dwordx2 v[36:37], v{OUTA}, s[{SO}:{SO+3}], s{T1} offen")
    L("K2_END2")
    stamp(7)
    if STAMP: A("s_waitcnt vmcnt(0)")
    stamp(8)
    if STAMP: A("s_memtime s[96:97]")
    stamp_flush(1, 3, 11)
    L("K2_END")
    A("s_endpgm")
    L("K2_REDO")
    A(f"s_mov_b32 s{SMODE}, 1")
    A("s_setprio 0")
    A("s_branch K2_PASS")
    L("K2_CODE_END")

hdr = f"""; Kernarg layout for this problem (88 bytes, ptrs only, base s[0:1]):
; @launch kernel=k1_kernel grid=({K1_GRID+NTW},1,1) block=(512,1,1) lds={K1_LDS}
; @launch kernel=k2_kernel grid=({NB},1,1) block=(1024,1,1) lds={K2_LDS}
.amdgcn_target "amdgcn-amd-amdhsa--gfx950"
"""
gen_k1()
gen_k2()
kernel_desc("k1_kernel", 128, 102 if STAMP else 72)
kernel_desc("k2_kernel", 128, 102 if STAMP else 72)
txt = hdr + "\n".join(o for o in out if o is not None) + "\n"
dst = sys.argv[1] if len(sys.argv) > 1 else f"cdna_kernels/{NAME}.s"
open(dst, "w").write(txt)
print("wrote", dst, "K2_LDS", K2_LDS)
```

```python
import sys, struct, os

NAME = "standalone__edge_featured_mpnn_mpnn__graph"
N, E, D, H = 10000, 160000, 128, 256
NB = int(os.environ.get('NBINS', '250'))
NPB = 40
NCH, CH = 64, 2500
CAP = 31
WS_T = 0
WS_SEG = 0x500000
WS_W2F = 0x920000
WS_W1F = 0x930000
WS_CV = 0x940000
WS_DBG = 0x2000000
WS_BYTES = 0x10000000
R = int(os.environ.get("RING", "8"))
PFL = int(os.environ.get("PFL", "0"))
PRIO_T = eval(os.environ.get("PRIO_T", "((32, 2), (21, 1), (10, 0))"))
STAMP = os.environ.get("STAMP", "0") == "1"
EXP = os.environ.get("EXP", "")
PRIO = os.environ.get("PRIO", "1") == "1"
PI = [1, 3, 0, 2]
TCH2 = int(os.environ.get("TCH2", "0"))
TCH1 = int(os.environ.get("TCH1", "1"))
ICP = int(os.environ.get("ICP", "1"))
TPG = int(os.environ.get("TPG", "1"))
TCH3 = int(os.environ.get("TCH3", "0"))
EXP1 = os.environ.get("EXP1", "")
SPF = int(os.environ.get("SPF", "0"))
NE = int(os.environ.get("NE", "0"))
STF = os.environ.get("STF", "nt")
STB = os.environ.get("STB", "")
XS = os.environ.get("XS", "")
FBASE = 0x4B000000
F1 = int(os.environ.get("F1", "4"))

def f32bits(x): return struct.unpack("<I", struct.pack("<f", x))[0]
C_NLOG2E = f32bits(-1.4426950408889634)
C_NLN2 = f32bits(-0.6931471805599453)

out = []
def A(s): out.append("    " + s)
def L(s): out.append(s + ":")
def CM(s): out.append("    ; " + s)
def vr(a, n): return f"v[{a}:{a+n-1}]"

PX, PE, PSRC, PDST, PW1, PB1, PW2, PB2 = 4, 6, 8, 10, 12, 14, 16, 18
POUT, PWS = 20, 22

def srd(dst, base, nrec, off=0):
    if off:
        A(f"s_add_u32 s{dst}, s{base}, {hex(off)}")
        A(f"s_addc_u32 s{dst+1}, s{base+1}, 0")
        src1 = dst + 1
    else:
        A(f"s_mov_b32 s{dst}, s{base}")
        src1 = base + 1
    A(f"s_and_b32 s{dst+1}, s{src1}, 0xffff")
    A(f"s_mov_b32 s{dst+2}, {hex(nrec)}")
    A(f"s_mov_b32 s{dst+3}, 0x20000")

def stamp(k):
    if STAMP: A(f"s_memrealtime s[{76+2*k}:{77+2*k}]")
def stamp_flush(kern, wave_s, nst):
    if not STAMP: return
    A("s_waitcnt lgkmcnt(0)")
    A(f"s_add_u32 s72, s{PWS}, {hex(WS_DBG + kern*0x100000)}")
    A(f"s_addc_u32 s73, s{PWS+1}, 0")
    A("s_and_b32 s73, s73, 0xffff")
    A("s_mov_b32 s74, 0x100000")
    A("s_mov_b32 s75, 0x20000")
    A("s_lshl_b32 s100, s2, 4")
    A(f"s_add_u32 s100, s100, s{wave_s}")
    A("s_lshl_b32 s100, s100, 7")
    A("s_mov_b64 exec, 1")
    A("v_mov_b32 v126, 0")
    for k in range(nst):
        A(f"v_mov_b32 v127, s{76+2*k}")
        A(f"buffer_store_dword v127, v126, s[72:75], s100 offen offset:{4*k}")
    A("s_mov_b64 exec, -1")

def kernel_begin(name):
    out.extend([".text", f".globl {name}", ".p2align 8", f".type {name},@function"])
    L(name)
def kernel_desc(name, vgpr, sgpr):
    acc = (vgpr + 3) // 4 * 4
    out.extend([
        '.section .rodata,"a"', ".p2align 6", f".amdhsa_kernel {name}",
        f"  .amdhsa_next_free_vgpr {vgpr}", f"  .amdhsa_next_free_sgpr {sgpr}", f"  .amdhsa_accum_offset {acc}",
        "  .amdhsa_group_segment_fixed_size 0", "  .amdhsa_kernarg_size 88", "  .amdhsa_user_sgpr_count 2",
        "  .amdhsa_user_sgpr_kernarg_segment_ptr 1", "  .amdhsa_system_sgpr_workgroup_id_x 1", ".end_amdhsa_kernel"])

NTW = int(os.environ.get("NTW", "24"))
K1_GEMM0 = NCH
K1_W20 = NCH + 160
K1_W10 = K1_W20 + 4
K1_CV = K1_W10 + 1
K1_GRID = K1_CV + 1
K1_LDS = int(os.environ.get("K1LDS", "65536"))
K1B0 = os.environ.get("K1B0", "1") == "1"

def gen_k1():
    kernel_begin("k1_kernel")
    A("s_load_dwordx16 s[4:19], s[0:1], 0")
    A("s_load_dwordx2 s[22:23], s[0:1], 80")
    if ICP:
        CM("pull both kernels' code towards the L2 right away (one load per 128-B line; lanes past the code are out of range)")
        A("s_getpc_b64 s[24:25]")
        L("K1_PC0")
        A("v_lshlrev_b32 v126, 7, v0")
        A("s_and_b32 s25, s25, 0xffff")
        A("s_mov_b32 s26, K2_CODE_END-K1_PC0")
        A("s_mov_b32 s27, 0x20000")
        A("buffer_load_dword v127, v126, s[24:27], 0 offen")
    if NTW:
        A(f"s_cmp_lt_u32 s2, {NTW}")
        A("s_cbranch_scc1 K1_TOUCH")
        A(f"s_sub_u32 s2, s2, {NTW}")
    stamp(0)
    A(f"s_cmp_ge_u32 s2, {K1_GRID}")
    A("s_cbranch_scc1 K1_END")
    A("v_and_b32 v1, 63, v0")
    A("v_lshrrev_b32 v2, 6, v0")
    A("v_and_b32 v3, 15, v0")
    A("v_bfe_u32 v4, v0, 4, 2")
    A("v_readfirstlane_b32 s3, v2")
    A("s_mov_b32 s52, 0x05040100")
    A("s_mov_b32 s53, 0x07060302")
    A(f"s_cmp_lt_u32 s2, {K1_GEMM0}")
    A("s_cbranch_scc1 K1_BIN")
    A(f"s_cmp_ge_u32 s2, {K1_W20}")
    A("s_cbranch_scc1 K1_PREP")
    A(f"s_sub_u32 s24, s2, {K1_GEMM0}")
    A("s_and_b32 s25, s24, 7")
    A("s_lshr_b32 s26, s24, 4")
    A("s_lshl_b32 s26, s26, 3")
    A("s_add_u32 s25, s25, s26")
    A("s_bfe_u32 s26, s24, 0x10003")
    A("s_cmp_ge_u32 s25, 79")
    A("s_cbranch_scc1 K1_END")
    A("s_and_b32 s27, s3, 1")
    A("s_lshr_b32 s28, s3, 1")
    A("s_lshl_b32 s30, s28, 14")
    A("s_lshl_b32 s31, s27, 11")
    A("s_add_u32 s30, s30, s31")
    A("s_lshl_b32 s31, s26, 8")
    A("s_add_u32 s30, s30, s31")
    A("s_lshl_b32 s32, s25, 7")
    A("s_lshl_b32 s33, s28, 5")
    A("s_add_u32 s32, s32, s33")
    A("v_lshlrev_b32 v5, 12, v4")
    A("v_lshl_add_u32 v5, v3, 4, v5")
    A("v_lshlrev_b32 v10, 4, v1")
    A("s_lshl_b32 s35, s28, 12")
    A("s_lshl_b32 s54, s27, 3")
    A("s_add_u32 s35, s35, s54")
    A("v_add_u32 v11, s35, v10")
    A("s_lshl_b32 s54, s27, 14")
    A("v_add_u32 v13, s54, v10")
    A("v_lshlrev_b32 v12, 9, v3")
    A("v_lshl_add_u32 v12, v4, 4, v12")
    A("s_lshl_b32 s55, s32, 9")
    A("s_lshl_b32 s54, s26, 7")
    A("s_add_u32 s55, s55, s54")
    A("s_lshl_b32 s54, s27, 6")
    A("s_add_u32 s55, s55, s54")
    A("s_add_u32 s56, s55, 8192")
    A("s_mov_b32 s58, 0x8000")
    for k in range(4):
        A(f"v_xor_b32 v{6+k}, v4, v3")
        if k: A(f"v_xor_b32 v{6+k}, {4*k}, v{6+k}")
        A(f"v_lshlrev_b32 v{6+k}, 4, v{6+k}")
        A(f"v_lshl_add_u32 v{6+k}, v4, 8, v{6+k}")
    A("s_lshl_b32 s33, s25, 15")
    A("s_lshl_b32 s34, s3, 12")
    A("s_add_u32 s33, s33, s34")
    A("s_add_u32 s34, s34, 32768")
    A("s_mov_b32 m0, s34")
    A("v_xor_b32 v14, v4, v3")
    A("v_lshlrev_b32 v14, 4, v14")
    A("v_lshl_add_u32 v14, v3, 8, v14")
    A("s_lshl_b32 s54, s28, 13")
    A("s_add_u32 s54, s54, 32768")
    for s in range(4):
        A(f"v_xor_b32 v{112+s}, {64*s}, v14")
        A(f"v_add_u32 v{112+s}, s54, v{112+s}")
    A("s_waitcnt lgkmcnt(0)")
    srd(36, PW1, 257 * 512)
    WL = 48
    for j in range(4):
        A(f"buffer_load_dwordx4 {vr(WL+4*j,4)}, v5, s[36:39], s30 offen offset:{j*512}")
    srd(40, PX, N * 256)
    if K1B0: A("s_barrier")
    for k in range(4):
        A(f"buffer_load_dwordx4 v{6+k}, s[40:43], s33 offen offset:{1024*k} lds")
    AF = 16
    srd(48, PWS, N * 512)
    if TCH1:
        A("buffer_load_dword v15, v12, s[48:51], s55 offen")
    A(f"s_waitcnt vmcnt({5 if TCH1 else 4})")
    stamp(1)
    PT = 64
    for pr in range(2):
        for dw in range(4):
            a, b = WL + 8*pr + dw, WL + 8*pr + 4 + dw
            A(f"v_perm_b32 v{PT+(2*dw)*2+pr}, v{b}, v{a}, s52")
            A(f"v_perm_b32 v{PT+(2*dw+1)*2+pr}, v{b}, v{a}, s53")
    for col in range(8):
        A(f"ds_write_b64 v11, {vr(PT+2*col,2)} offset:{(col>>2)*16384 + (col&3)*1024}")
    A(f"s_waitcnt vmcnt({1 if TCH1 else 0}) lgkmcnt(0)")
    A("s_barrier")
    stamp(2)
    ACC = [80, 96]
    BB = [48, 52, 56, 60, 64, 68]
    ops = []
    for s in range(4):
        ops += [("x", 0, s), ("x", 1, s)] + [("w", s, t) for t in range(4)]
    def rd(op, wi):
        if op[0] == "x":
            A(f"ds_read_b128 {vr(AF+(op[1]*4+op[2])*4,4)}, v{112+op[2]} offset:{4096*op[1]}")
        else:
            A(f"ds_read_b128 {vr(BB[wi%6],4)}, v13 offset:{(op[1]*4+op[2])*1024}")
    widx = {}
    n = 0
    for i_, op in enumerate(ops):
        if op[0] == "w":
            widx[i_] = n; n += 1
    issued = 0
    def issue_upto(wlimit):
        nonlocal issued
        while issued < len(ops) and (ops[issued][0] == "x" or widx[issued] <= wlimit):
            rd(ops[issued], widx.get(issued, 0)); issued += 1
    for i_, op in enumerate(ops):
        if op[0] != "w": continue
        k = widx[i_]
        issue_upto(k + 4)
        A(f"s_waitcnt lgkmcnt({issued - 1 - i_})")
        s, t = op[1], op[2]
        for i in range(2):
            d = ACC[i] + 4*t
            c = "0" if s == 0 else vr(d, 4)
            A(f"v_mfma_f32_16x16x32_bf16 {vr(d,4)}, {vr(BB[k%6],4)}, {vr(AF+(i*4+s)*4,4)}, {c}")
    A("s_nop 1")
    stamp(4)
    for i in range(2):
        o0, o1 = 16 + 8*i, 20 + 8*i
        for t in range(4):
            f = [ACC[i] + 4*t + r for r in range(4)]
            for r in range(4):
                A(f"v_add_f32 v{f[r]}, 0, v{f[r]}")
            for r in range(4):
                A(f"v_add_u32 v{f[r]}, s58, v{f[r]}")
            for r in range(1, 4):
                A(f"v_sub_u32_sdwa v{f[r]}, v{f[r]}, v{f[r-1]} clamp dst_sel:DWORD dst_unused:UNUSED_PAD src0_sel:DWORD src1_sel:WORD_1")
            A(f"v_perm_b32 v{o0+t}, v{f[1]}, v{f[0]}, s53")
            A(f"v_perm_b32 v{o1+t}, v{f[3]}, v{f[2]}, s53")
        if "nop" not in EXP1:
            A(f"buffer_store_dwordx4 {vr(o0,4)}, v12, s[48:51], s{55+i} offen {STF}")
            A(f"buffer_store_dwordx4 {vr(o1,4)}, v12, s[48:51], s{55+i} offen offset:256 {STF}")
    stamp(5)
    if STAMP: A("s_waitcnt vmcnt(0)")
    stamp(6)
    stamp_flush(0, 3, 7)
    A("s_endpgm")

    L("K1_PREP")
    A("v_lshlrev_b32 v10, 4, v1")
    A(f"s_cmp_ge_u32 s2, {K1_CV}")
    A("s_cbranch_scc1 K1_CVEC")
    A(f"s_cmp_ge_u32 s2, {K1_W10}")
    A("s_cbranch_scc1 K1_W1")
    CM("w2: frag (nt, s) lane (c,g) jj -> w2[128(s>>2) + 64(s&1) + 32(g>>1) + 8 pi(jj&3) + 4((s>>1)&1) + 2(g&1) + (jj>>2)][16 nt + c]")
    A(f"s_sub_u32 s24, s2, {K1_W20}")
    A("s_lshr_b32 s25, s3, 2")
    A("s_lshl_b32 s25, s25, 15")
    A("s_and_b32 s26, s3, 1")
    A("s_lshl_b32 s26, s26, 14")
    A("s_add_u32 s25, s25, s26")
    A("s_bfe_u32 s26, s3, 0x10001")
    A("s_lshl_b32 s26, s26, 10")
    A("s_add_u32 s25, s25, s26")
    A("s_lshl_b32 s26, s24, 6")
    A("s_add_u32 s25, s25, s26")
    A("s_add_u32 s26, s25, 4096")
    A("v_lshrrev_b32 v5, 1, v4")
    A("v_lshlrev_b32 v5, 13, v5")
    A("v_and_b32 v6, 1, v4")
    A("v_lshl_add_u32 v5, v6, 9, v5")
    A("v_lshl_add_u32 v5, v3, 1, v5")
    A("s_lshl_b32 s27, s24, 14")
    A("s_lshl_b32 s28, s3, 10")
    A("s_add_u32 s27, s27, s28")
    A("s_add_u32 s28, s27, 8192")
    A("s_waitcnt lgkmcnt(0)")
    srd(36, PW2, 256 * 256)
    srd(40, PWS, 65536, off=WS_W2F)
    for t in range(2):
        for j in range(8):
            ro = (8*PI[j&3] + (j>>2))*256 + 32*t
            A(f"buffer_load_ushort v{16+8*t+j}, v5, s[36:39], s{25 + ro//4096} offen offset:{ro%4096}")
    A("s_waitcnt vmcnt(0)")
    for t in range(2):
        for jj in range(4):
            A(f"v_lshl_or_b32 v{32+4*t+jj}, v{17+8*t+2*jj}, 16, v{16+8*t+2*jj}")
    A("buffer_store_dwordx4 v[32:35], v10, s[40:43], s27 offen")
    A("buffer_store_dwordx4 v[36:39], v10, s[40:43], s28 offen")
    A("s_endpgm")
    L("K1_W1")
    CM("W1[128:256]: frag (w, s) lane (4g'' + i, g) jj -> w1[128 + 32s + 8g + jj][128(w>>3) + 32(w&3) + 8 pi(i) + 4((w>>2)&1) + g'']")
    A("s_lshr_b32 s24, s3, 2")
    A("s_and_b32 s25, s3, 3")
    A("s_lshl_b32 s26, s25, 14")
    A("s_lshl_b32 s27, s24, 8")
    A("s_add_u32 s26, s26, s27")
    A(f"s_add_u32 s26, s26, {128*512}")
    A("v_lshlrev_b32 v5, 12, v4")
    A("v_lshl_add_u32 v5, v3, 4, v5")
    A("s_lshl_b32 s27, s24, 15")
    A("s_lshl_b32 s28, s25, 10")
    A("s_add_u32 s27, s27, s28")
    A("s_add_u32 s28, s27, 16384")
    A("v_lshrrev_b32 v6, 2, v3")
    A("v_lshlrev_b32 v6, 12, v6")
    A("v_and_b32 v7, 3, v3")
    A("v_lshlrev_b32 v7, 2, v7")
    A("v_mov_b32 v8, 0x1302")
    A("v_bfe_u32 v7, v8, v7, 4")
    A("v_lshl_add_u32 v6, v7, 4, v6")
    A("v_lshl_add_u32 v6, v4, 8, v6")
    A("s_waitcnt lgkmcnt(0)")
    srd(36, PW1, 257 * 512)
    srd(40, PWS, 65536, off=WS_W1F)
    for jj in range(8):
        A(f"buffer_load_dwordx4 {vr(16+4*jj,4)}, v5, s[36:39], s26 offen offset:{jj*512}")
    A("s_waitcnt vmcnt(0)")
    for col in range(8):
        o = 48 + col * 4
        for pr in range(4):
            a, b = 16 + 8*pr + (col >> 1), 16 + 8*pr + 4 + (col >> 1)
            A(f"v_perm_b32 v{o+pr}, v{b}, v{a}, s{53 if col & 1 else 52}")
        A(f"buffer_store_dwordx4 {vr(o,4)}, v6, s[40:43], s{27+(col>>2)} offen offset:{(col&3)*64}")
    A("s_endpgm")
    L("K1_CVEC")
    CM("thread t < 256: l = t>>2, i = t&3: -log2e w1[256][phi(l, pi(i))], b1[phi(l, pi(i))] as f32; t < 128: b2[t] as f32")
    A("s_cmp_ge_u32 s3, 4")
    A("s_cbranch_scc1 K1_END")
    A("v_and_b32 v5, 3, v0")
    A("v_lshlrev_b32 v5, 2, v5")
    A("v_mov_b32 v8, 0x2031")
    A("v_bfe_u32 v5, v8, v5, 4")
    A("v_lshlrev_b32 v5, 3, v5")
    A("v_bfe_u32 v6, v0, 2, 2")
    A("v_add_u32 v5, v5, v6")
    A("v_lshl_add_u32 v5, v4, 5, v5")
    A("v_bfe_u32 v6, v0, 6, 1")
    A("v_lshl_add_u32 v5, v6, 2, v5")
    A("v_bfe_u32 v6, v0, 7, 1")
    A("v_lshl_add_u32 v5, v6, 7, v5")
    A("v_lshlrev_b32 v5, 1, v5")
    A("v_lshlrev_b32 v6, 1, v0")
    A("v_lshlrev_b32 v7, 2, v0")
    A(f"s_mov_b32 s24, {256*512}")
    A(f"s_mov_b32 s25, {hex(C_NLOG2E)}")
    A("s_waitcnt lgkmcnt(0)")
    srd(36, PW1, 257 * 512)
    srd(40, PB1, 512)
    srd(44, PB2, 256)
    srd(48, PWS, 2048 + 512, off=WS_CV)
    A("buffer_load_ushort v16, v5, s[36:39], s24 offen")
    A("buffer_load_ushort v17, v5, s[40:43], 0 offen")
    A("buffer_load_ushort v18, v6, s[44:47], 0 offen")
    A("s_waitcnt vmcnt(0)")
    for k in range(3):
        A(f"v_lshlrev_b32 v{16+k}, 16, v{16+k}")
    A("v_mul_f32 v16, s25, v16")
    A("buffer_store_dword v16, v7, s[48:51], 0 offen")
    A("buffer_store_dword v17, v7, s[48:51], 0 offen offset:1024")
    A("buffer_store_dword v18, v7, s[48:51], 0 offen offset:2048")
    A("s_endpgm")

    L("K1_BIN")
    A("v_lshlrev_b32 v5, 2, v0")
    A("v_lshlrev_b32 v6, 1, v0")
    A("v_mov_b32 v7, 0")
    A("v_mov_b32 v8, 1")
    A("ds_write_b32 v5, v7")
    A(f"s_mul_i32 s24, s2, {CH*4}")
    A(f"s_mul_i32 s25, s2, {CH*2}")
    A("s_movk_i32 s26, 0x1000")
    A("s_movk_i32 s27, 0x2000")
    A("s_lshl_b32 s28, s2, 8")
    A("s_add_u32 s29, s28, 8")
    A(f"s_movk_i32 s32, {CH - 4*512}")
    A(f"s_mov_b32 s33, {hex(FBASE)}")
    A(f"s_movk_i32 s34, {-NPB if NB == 250 else 625}")
    A("v_cmp_gt_u32 s[60:61], s32, v0")
    A("s_waitcnt lgkmcnt(0)")
    DST, REC, EV, RK, BN = 16, 24, 40, 48, 56
    so4 = ["0", "0", "s26", "s26", "s27"]; io4 = [0, 2048, 0, 2048, 0]
    so2 = ["0", "0", "0", "0", "s26"]; io2 = [0, 1024, 2048, 3072, 0]
    def csrd(d, p, off, nb):
        A(f"s_add_u32 s{d}, s{p}, s{off}")
        A(f"s_addc_u32 s{d+1}, s{p+1}, 0")
        A(f"s_and_b32 s{d+1}, s{d+1}, 0xffff")
        A(f"s_mov_b32 s{d+2}, {nb}")
        A(f"s_mov_b32 s{d+3}, 0x20000")
    csrd(36, PDST, 24, CH*4)
    for j in range(5):
        A(f"buffer_load_dword v{DST+j}, v5, s[36:39], {so4[j]} offen offset:{io4[j]}")
    csrd(40, PSRC, 24, CH*4)
    csrd(44, PE, 25, CH*2)
    for j in range(5):
        A(f"buffer_load_dword v{REC+2*j}, v5, s[40:43], {so4[j]} offen offset:{io4[j]}")
        A(f"buffer_load_ushort v{EV+j}, v6, s[44:47], {so2[j]} offen offset:{io2[j]}")
    srd(48, PWS, NB * NCH * 256, off=WS_SEG)
    if TCH3:
        A("v_lshlrev_b32 v12, 14, v0")
        A("buffer_load_dword v13, v12, s[48:51], s28 offen")
    A("s_barrier")
    for j in range(5):
        A(f"s_waitcnt vmcnt({14-j+(1 if TCH3 else 0)})")
        A(f"v_mul_u32_u24 v{BN+j}, {'0xcccd' if NB == 250 else 429497}, v{DST+j}")
        A(f"v_lshrrev_b32 v{BN+j}, {21 if NB == 250 else 24}, v{BN+j}")
        A(f"v_lshlrev_b32 v9, 2, v{BN+j}")
        if j == 4:
            A(f"v_mov_b32 v{RK+j}, {CAP}")
            A("s_mov_b64 exec, s[60:61]")
            A("s_cbranch_execz K1_B_SKIP4")
        A(f"ds_add_rtn_u32 v{RK+j}, v9, v8")
        if j == 4:
            L("K1_B_SKIP4")
            A("s_mov_b64 exec, -1")
        if NB == 250:
            A(f"v_mad_i32_i24 v{DST+j}, v{BN+j}, s34, v{DST+j}")
        else:
            A(f"v_mad_u32_u24 v10, v{BN+j}, s34, 15")
            A("v_lshrrev_b32 v10, 4, v10")
            A(f"v_sub_u32 v{DST+j}, v{DST+j}, v10")
        A(f"v_lshlrev_b32 v{BN+j}, 14, v{BN+j}")
        A(f"v_lshlrev_b32 v{DST+j}, 2, v{DST+j}")
    stamp(1)
    A("v_mov_b32 v11, 0x7ffff000")
    for j in range(5):
        A(f"s_waitcnt vmcnt({8-2*j+j+(1 if TCH3 else 0)}) lgkmcnt({0 if (j >= 3 or STAMP) else 3-j})")
        A(f"v_lshl_or_b32 v{REC+2*j+1}, v{EV+j}, 16, v{DST+j}")
        A(f"v_cmp_gt_u32 vcc, {CAP}, v{RK+j}")
        A(f"v_lshl_or_b32 v{REC+2*j}, v{REC+2*j}, 9, s33")
        A(f"v_lshl_add_u32 v9, v{RK+j}, 3, v{BN+j}")
        A("v_cndmask_b32 v9, v11, v9, vcc")
        if "norec" in EXP1: A("v_mov_b32 v9, v11")
        A(f"buffer_store_dwordx2 {vr(REC+2*j,2)}, v9, s[48:51], s29 offen {STB}")
    stamp(2)
    A("s_barrier")
    A("ds_read_b32 v10, v5")
    A("v_lshlrev_b32 v9, 14, v0")
    A("s_waitcnt lgkmcnt(0)")
    if "norec" in EXP1: A("v_mov_b32 v10, 0")
    if "nocnt" in EXP1: A("v_mov_b32 v9, v11")
    A(f"buffer_store_dword v10, v9, s[48:51], s28 offen {STB}")
    stamp(3)
    if STAMP: A("s_waitcnt vmcnt(0)")
    stamp(4)
    stamp_flush(0, 3, 5)
    L("K1_END")
    A("s_endpgm")
    if NTW:
        L("K1_TOUCH")
        CM("prefetch role: one load per 32 KB of the workspace part in use and of the output, one per line of k2's code")
        A("s_load_dwordx2 s[20:21], s[0:1], 64")
        A("v_lshlrev_b32 v1, 15, v0")
        A("v_lshlrev_b32 v2, 7, v0")
        A("s_getpc_b64 s[24:25]")
        L("K1_PC")
        A("s_add_u32 s24, s24, k2_kernel-K1_PC")
        A("s_addc_u32 s25, s25, 0")
        A("s_and_b32 s25, s25, 0xffff")
        A("s_mov_b32 s26, K2_CODE_END-k2_kernel")
        A("s_mov_b32 s27, 0x20000")
        A("buffer_load_dword v5, v2, s[24:27], 0 offen")
        A("s_waitcnt lgkmcnt(0)")
        srd(28, PWS, WS_CV + 4096)
        srd(32, POUT, N * D * 2)
        A("buffer_load_dword v3, v1, s[28:31], 0 offen")
        A("buffer_load_dword v4, v1, s[32:35], 0 offen")
        A("s_waitcnt vmcnt(0)")
        A("s_endpgm")

QROW, HROW = 1040, 528
L_CNT = 0
L_FLAG = 256
L_SFL = 272
L_ZROW = 352
ZERO_B = 864
L_PRIV = 896
PRIV_N = 64 + R + 8
PRIV_B = PRIV_N * 8
L_H = L_PRIV + 16 * PRIV_B
L_SIDE = L_H + NPB * HROW
L_Q = L_SIDE + 16 * 1024
L_XT = L_Q + NPB * QROW
L_LIST = L_XT + 16 * 1024
K2_LDS = L_LIST + 2048 * 8
assert K2_LDS <= 163840 and PRIV_N % 4 == 0 and R == 8 and L_XT % 1024 != -1 and L_H % 16 == 0 and L_Q % 16 == 0
WIN = 16 * 63
DUMMY = FBASE + 0x7FF000

def gen_k2():
    kernel_begin("k2_kernel")
    VLF, VH8, VL16, VT16, VQ16 = 3, 4, 5, 6, 7
    W, Q, NN, DD, Z, Z2, T, LO, PZ = 8, 12, 16, 20, 24, 28, 32, 36, 38
    VA, VP, VDEG, VB4, VCNT, VPL, VM, VEND = 40, 41, 42, 43, 44, 45, 46, 47
    EV, OG, DAT = 48, [56, 60], 64
    AD, OUTA, OV = 80, 83, 84
    B2F = 92
    W2R = 96
    W1F, B1P, RC, TI = 96, 112, 116, 120
    SACC = 100
    ST, SW, SO, SX = 24, 28, 32, 36
    MA, MB = 40, 42
    SC = 44
    SMODE, SFIRST, SPOS, SQD, SCH, SFAST = 46, 47, 48, 49, 50, 51
    SOV, SM = 52, 54
    SREM, STOT, SLP, SW2, SNN, SWV = 56, 57, 58, 59, 60, 3
    SN40, SEX = 61, 62
    T0, T1, T2, T3, TP = 64, 65, 66, 67, 68
    STAIL, SSIDE = 70, 71
    SQM = 4
    SW1, SNB = 14, 15
    SLEN, SOUT = 12, 13
    C2 = f"s[{SC}:{SC+1}]"
    NLA, NLB, RKA, RKB, PA_, PB_, X0, X1 = 28, 29, 30, 31, 32, 33, 34, 35

    A("s_load_dwordx8 s[4:11], s[0:1], 0")
    A("s_load_dwordx2 s[20:21], s[0:1], 64")
    A("s_load_dwordx2 s[22:23], s[0:1], 80")
    stamp(0)
    if STAMP: A("s_memtime s[94:95]")
    A(f"s_cmp_ge_u32 s2, {NB}")
    A("s_cbranch_scc1 K2_END")
    A("v_and_b32 v1, 63, v0")
    A("v_lshrrev_b32 v48, 6, v0")
    A(f"v_lshlrev_b32 v{VT16}, 4, v0")
    A(f"v_readfirstlane_b32 s{SWV}, v48")
    A("v_lshlrev_b32 v2, 2, v1")
    A(f"s_lshl_b32 s{T0}, s2, 14")
    A(f"s_add_u32 s{T0}, s{T0}, {hex(WS_SEG)}")
    if NB == 250:
        A(f"s_mul_i32 s{SN40}, s2, {NPB}")
        A(f"s_mov_b32 s{SNB}, {NPB}")
    else:
        A(f"s_mul_i32 s{SN40}, s2, 625")
        A(f"s_add_u32 s{SNB}, s{SN40}, 640")
        A(f"s_add_u32 s{SN40}, s{SN40}, 15")
        A(f"s_lshr_b32 s{SN40}, s{SN40}, 4")
        A(f"s_lshr_b32 s{SNB}, s{SNB}, 4")
        A(f"s_sub_u32 s{SNB}, s{SNB}, s{SN40}")
    for k in range(4):
        A(f"v_mov_b32 v{52+k}, 0")
    A(f"v_cmp_gt_u32 vcc, {ZERO_B//16}, v0")
    A(f"s_mul_i32 s{T1}, s{SWV}, {PRIV_B}")
    A(f"s_add_u32 s{T1}, s{T1}, {L_PRIV}")
    A(f"s_and_saveexec_b64 s[{SEX}:{SEX+1}], vcc")
    A("s_cbranch_execz K2_Z1")
    A(f"ds_write_b128 v{VT16}, v[52:55]")
    L("K2_Z1")
    A(f"s_mov_b64 exec, s[{SEX}:{SEX+1}]")
    A(f"v_add_u32 v{VPL}, s{T1}, v2")
    A(f"v_mov_b32 v56, {hex(DUMMY)}")
    A(f"ds_write_b32 v{VPL}, v56")
    A(f"ds_write_b32 v{VPL}, v56 offset:{(PRIV_N-64)*4}")
    A(f"v_mov_b32 v{VP}, s{T1}")
    A("v_and_b32 v48, 15, v1")
    A("v_lshrrev_b32 v49, 4, v1")
    A("v_lshrrev_b32 v50, 4, v0")
    A("v_xor_b32 v51, v50, v48")
    A("v_and_b32 v51, 15, v51")
    A("v_lshlrev_b32 v51, 4, v51")
    A("v_lshl_add_u32 v51, v50, 8, v51")
    A(f"s_lshl_b32 s{SSIDE}, s{SWV}, 10")
    A(f"s_add_u32 s{T2}, s{SSIDE}, {L_XT}")
    A(f"s_mov_b32 m0, s{T2}")
    A(f"s_add_u32 s{SSIDE}, s{SSIDE}, {L_SIDE}")
    A(f"s_lshl_b32 s{T2}, s{SN40}, 8")
    A(f"s_mov_b32 s{T3}, {hex(WS_CV - 12*1024)}")
    A(f"v_lshlrev_b32 v{VL16}, 4, v1")
    A("s_waitcnt lgkmcnt(0)")
    srd(SW, PWS, WS_BYTES)
    A(f"buffer_load_dwordx4 {vr(RC,4)}, v{VT16}, s[{SW}:{SW+3}], s{T0} offen")
    srd(SX, PX, N * 256)
    A(f"s_cmp_lt_u32 s{SWV}, 12")
    A("s_cbranch_scc0 K2_CVL")
    A(f"buffer_load_dwordx4 v51, s[{SX}:{SX+3}], s{T2} offen lds")
    A("s_branch K2_CVD")
    L("K2_CVL")
    A(f"buffer_load_dwordx4 v{VT16}, s[{SW}:{SW+3}], s{T3} offen lds")
    L("K2_CVD")
    if SPF:
        A(f"s_lshr_b32 s{T1}, s2, 3")
        A(f"s_lshl_b32 s{T1}, s{T1}, 4")
        A(f"s_add_u32 s{T1}, s{T1}, s{SWV}")
        A(f"s_mul_i32 s{T1}, s{T1}, {SPF*128}")
        A(f"s_add_u32 s16, s{PWS}, s{T1}")
        A(f"s_addc_u32 s17, s{PWS+1}, 0")
        for k in range(SPF):
            A(f"s_load_dword s{18 + (k&1)}, s[16:17], {k*128}")
    A("s_barrier")
    if XS == "g": stamp(4)
    A(f"s_lshl_b32 s{T1}, s{SWV}, 12")
    A(f"s_add_u32 s{T2}, s{T1}, {hex(WS_W1F)}")
    A("v_lshlrev_b32 v52, 4, v50")
    for s in range(4):
        A(f"buffer_load_dwordx4 {vr(W1F+4*s,4)}, v{VL16}, s[{SW}:{SW+3}], s{T2} offen offset:{s*1024}")
    L_CV = L_XT + 12 * 1024
    if TCH2:
        srd(SO, POUT, N * D * 2)
        A(f"s_cmp_lg_u32 s{SWV}, 15")
        A("s_cbranch_scc1 K2_NOT")
        A(f"v_lshlrev_b32 v57, {TCH2}, v1")
        A(f"s_mov_b32 s{SX}, s{SW}")
        A(f"s_mov_b32 s{SX+1}, s{SW+1}")
        A(f"s_mov_b32 s{SX+2}, {N*512}")
        A(f"s_lshl_b32 s{T3}, s{SN40}, 8")
        A(f"buffer_load_dword v58, v57, s[{SX}:{SX+3}], 0 offen")
        A(f"buffer_load_dword v59, v2, s[{SO}:{SO+3}], s{T3} offen")
        L("K2_NOT")
    A(f"v_add_u32 v{OV}, {L_CV + 1024}, v52")
    A(f"v_and_b32 v{OV+1}, 0x1ff, v52")
    A(f"v_add_u32 v{OV+1}, {L_CV + 2048}, v{OV+1}")
    A(f"v_add_u32 v{OV+2}, {L_CV}, v{VL16}")
    NPRE = 4
    assert not PFL
    if PFL:
        A(f"s_lshr_b32 s{T3}, s2, 3")
        A(f"s_mul_i32 s{T3}, s{T3}, {PFL*128}")
        A(f"s_sub_u32 s{T2}, 15, s{SWV}")
        A(f"s_lshl_b32 s{T1}, s{T2}, 13")
        A(f"s_add_u32 s{T3}, s{T3}, s{T1}")
        A(f"s_cmp_lt_u32 s{T2}, {PFL//64}")
        A(f"s_cselect_b32 s{T3}, s{T3}, 0x7ff00000")
        A("v_lshlrev_b32 v55, 7, v1")
        A(f"buffer_load_dword v{OV}, v55, s[{SW}:{SW+3}], s{T3} offen sc1")
        NPRE += 1
    A(f"s_mov_b32 s{SC}, {hex(C_NLOG2E)}")
    A(f"s_mov_b32 s{SC+1}, {hex(C_NLOG2E)}")
    A(f"s_mov_b32 s{SMODE}, 0")
    A(f"s_mov_b32 s{SQD}, 0")
    A(f"s_sub_u32 s{ST}, s{PWS}, {hex(FBASE)}")
    A(f"s_subb_u32 s{ST+1}, s{PWS+1}, 0")
    A(f"s_and_b32 s{ST+1}, s{ST+1}, 0xffff")
    A(f"s_mov_b32 s{ST+2}, {hex(FBASE + N*512)}")
    A(f"s_mov_b32 s{ST+3}, 0x20000")
    srd(SO, POUT, N * D * 2)
    A(f"v_cvt_f32_u32 v{VLF}, v2")
    A(f"v_lshlrev_b32 v{VH8}, 3, v1")
    A(f"v_add_u32 v{VH8}, {L_H}, v{VH8}")
    A(f"v_add_u32 v{VQ16}, {L_Q}, v{VL16}")
    A(f"v_cvt_f32_u32 v{VM}, v1")
    A(f"v_rcp_f32 v{VM}, v{VM}")
    A("v_xor_b32 v54, v49, v48")
    A(f"v_mul_f32 v{VM}, 0x47800000, v{VM}")
    A("v_lshlrev_b32 v54, 4, v54")
    A(f"v_cvt_u32_f32 v{VM}, v{VM}")
    A("v_lshl_add_u32 v54, v48, 8, v54")
    A(f"v_add_u32 v{VM}, 1, v{VM}")
    for s in range(4):
        A(f"v_xor_b32 v{Q+s}, {64*s}, v54")
        A(f"v_add_u32 v{Q+s}, {L_XT}, v{Q+s}")
    A(f"s_movk_i32 s{T1}, {QROW}")
    A(f"v_mad_u32_u24 v{VA}, v48, s{T1}, v52")
    A(f"v_add_u32 v{VA}, {L_Q}, v{VA}")
    A(f"s_sub_u32 s{T2}, s{SNB}, 32")
    A(f"v_cmp_gt_u32 s[{SQM}:{SQM+1}], s{T2}, v48")
    A(f"s_movk_i32 s{T1}, {HROW}")
    A("v_lshlrev_b32 v55, 4, v49")
    A(f"v_mad_u32_u24 v{AD}, v48, s{T1}, v55")
    A(f"v_add_u32 v{LO+1}, {L_ZROW}, v55")
    A(f"v_lshlrev_b32 v{OUTA}, 8, v48")
    A(f"v_lshl_add_u32 v{OUTA}, v49, 3, v{OUTA}")
    A(f"v_lshlrev_b32 v{LO}, 2, v48")
    A(f"s_lshl_b32 s{SOUT}, s{SN40}, 8")
    A(f"s_lshl_b32 s{T2}, s{SWV}, 5")
    A(f"s_add_u32 s{SOUT}, s{SOUT}, s{T2}")
    A("s_branch K2_START")

    L("K2_PASS")
    A(f"s_lshl_b32 s{T0}, s2, 14")
    A(f"s_add_u32 s{T0}, s{T0}, {hex(WS_SEG)}")
    A(f"buffer_load_dwordx4 {vr(RC,4)}, v{VT16}, s[{SW}:{SW+3}], s{T0} offen")
    A("s_waitcnt vmcnt(0)")
    L("K2_START")
    A(f"v_mov_b32 v{VDEG}, 0")
    A(f"v_mov_b32 v{PZ}, 0")
    A(f"v_mov_b32 v{PZ+1}, 0")
    A(f"s_mov_b32 s{SFIRST}, 1")
    A(f"v_and_b32 v{X0}, 15, v0")
    A(f"v_lshlrev_b32 v{X0}, 1, v{X0}")
    A(f"v_add_u32 v{X1}, -1, v{X0}")
    A(f"s_waitcnt vmcnt({NPRE+1})")
    stamp(1)
    A(f"v_mov_b32_dpp v{PA_}, v{RC} row_newbcast:0 row_mask:0xf bank_mask:0xf")
    A(f"v_cmp_lt_u32 vcc, {CAP}, v{PA_}")
    A(f"v_cmp_lt_u32 s[{MA}:{MA+1}], v{X1}, v{PA_}")
    A(f"v_cmp_lt_u32 s[{MB}:{MB+1}], v{X0}, v{PA_}")
    A("s_cbranch_vccz K2_ROUND")
    A(f"s_andn2_b64 s[{MA}:{MA+1}], s[{MA}:{MA+1}], vcc")
    A(f"s_andn2_b64 s[{MB}:{MB+1}], s[{MB}:{MB+1}], vcc")
    A(f"s_and_saveexec_b64 s[{SEX}:{SEX+1}], vcc")
    A(f"v_lshrrev_b32 v{X0}, 4, v0")
    A(f"v_lshrrev_b32 v{X1}, 5, v{X0}")
    A(f"v_lshlrev_b32 v{X1}, 2, v{X1}")
    A(f"v_and_b32 v{X0}, 31, v{X0}")
    A(f"v_mov_b32 v{PB_}, 1")
    A(f"v_lshlrev_b32 v{PB_}, v{X0}, v{PB_}")
    A(f"ds_or_b32 v{X1}, v{PB_} offset:{L_FLAG}")
    A(f"s_mov_b64 exec, s[{SEX}:{SEX+1}]")

    L("K2_ROUND")
    A(f"v_and_b32 v{NLA}, 0xfc, v{RC+1}")
    A(f"v_and_b32 v{NLB}, 0xfc, v{RC+3}")
    A(f"v_mov_b32 v{X0}, 4")
    A(f"s_mov_b64 exec, s[{MA}:{MA+1}]")
    A("s_cbranch_execz K2_R1")
    A(f"ds_add_rtn_u32 v{RKA}, v{NLA}, v{X0}")
    L("K2_R1")
    A(f"s_mov_b64 exec, s[{MB}:{MB+1}]")
    A("s_cbranch_execz K2_R2")
    A(f"ds_add_rtn_u32 v{RKB}, v{NLB}, v{X0}")
    L("K2_R2")
    A("s_mov_b64 exec, -1")
    A(f"v_mov_b32 v{X1}, 0")
    A(f"s_waitcnt vmcnt({NPRE}) lgkmcnt(0)")
    A("s_barrier")
    if XS == "e": stamp(4)
    if XS == "f":
        A("s_waitcnt vmcnt(0)"); stamp(4)
    A(f"ds_read_b32 v{VCNT}, v2")
    A(f"ds_read_b64 {vr(NN,2)}, v{X1} offset:{L_FLAG}")
    A("s_waitcnt lgkmcnt(1)")
    A(f"v_add_u32_dpp v{VEND}, v{VCNT}, v{VCNT} row_shr:1 row_mask:0xf bank_mask:0xf bound_ctrl:0")
    A(f"v_add_u32 v{VDEG}, v{VDEG}, v{VCNT}")
    for k, ctl in enumerate(("row_shr:2 row_mask:0xf bank_mask:0xf bound_ctrl:0",
                "row_shr:4 row_mask:0xf bank_mask:0xf bound_ctrl:0", "row_shr:8 row_mask:0xf bank_mask:0xf bound_ctrl:0",
                "row_bcast:15 row_mask:0xa bank_mask:0xf", "row_bcast:31 row_mask:0xc bank_mask:0xf")):
        A("s_nop 0" if k == 0 else "s_nop 1")
        A(f"v_add_u32_dpp v{VEND}, v{VEND}, v{VEND} {ctl}")
    A(f"v_sub_u32 v{VB4}, v{VEND}, v{VCNT}")
    A("s_waitcnt lgkmcnt(0)")
    A(f"v_readlane_b32 s{STOT}, v{VEND}, 63")
    A(f"ds_bpermute_b32 v{PA_}, v{NLA}, v{VB4}")
    A(f"ds_bpermute_b32 v{PB_}, v{NLB}, v{VB4}")
    A(f"s_cmp_eq_u32 s{SFIRST}, 0")
    A("s_cbranch_scc1 K2_R3")
    A(f"v_readfirstlane_b32 s{SOV}, v{NN}")
    A(f"v_readfirstlane_b32 s{SOV+1}, v{NN+1}")
    A(f"s_mov_b32 s{SPOS}, {CH}")
    L("K2_R3")
    A(f"s_add_u32 s{T1}, s{STOT}, 60")
    A(f"s_lshr_b32 s{SLEN}, s{T1}, 6")
    A(f"s_lshl_b32 s{T1}, s{SLEN}, 2")
    A(f"s_add_u32 s{T2}, s{T1}, 4")
    A(f"v_cmp_lt_u32 vcc, s{T2}, v{VCNT}")
    A(f"s_and_b32 s{T3}, s{SLEN}, 63")
    A(f"v_readlane_b32 s{T0}, v{VM}, s{T3}")
    A(f"s_andn2_b32 s{SFAST}, s{SFIRST}, s{SMODE}")
    A(f"s_cmp_gt_u32 s{STOT}, {4*WIN}")
    A(f"s_cselect_b32 s{SFAST}, 0, s{SFAST}")
    A(f"s_sub_u32 s{T1}, {PRIV_B}, s{T1}")
    A(f"s_or_b64 vcc, vcc, s[{SOV}:{SOV+1}]")
    A(f"s_cselect_b32 s{SFAST}, 0, s{SFAST}")
    A(f"s_cmp_eq_u32 s{SFAST}, 0")
    A("s_waitcnt lgkmcnt(0)")
    A(f"v_add_u32 v{PA_}, v{PA_}, v{RKA}")
    A(f"v_add_u32 v{PB_}, v{PB_}, v{RKB}")
    A("s_cbranch_scc1 K2_WL")
    A(f"v_mul_u32_u24 v{RKA}, s{T0}, v{PA_}")
    A(f"v_mul_u32_u24 v{RKB}, s{T0}, v{PB_}")
    A(f"v_lshrrev_b32 v{RKA}, 18, v{RKA}")
    A(f"v_lshrrev_b32 v{RKB}, 18, v{RKB}")
    A(f"v_mad_u32_u24 v{PA_}, v{RKA}, s{T1}, v{PA_}")
    A(f"v_mad_u32_u24 v{PB_}, v{RKB}, s{T1}, v{PB_}")
    for tag, m, ad, rc in (("A", MA, PA_, RC), ("B", MB, PB_, RC + 2)):
        A(f"s_mov_b64 exec, s[{m}:{m+1}]")
        A(f"s_cbranch_execz K2_P{tag}")
        A(f"ds_write_b32 v{ad}, v{rc} offset:{L_PRIV}")
        A(f"ds_write_b32 v{ad}, v{rc+1} offset:{L_PRIV + PRIV_N*4}")
        L(f"K2_P{tag}")
    A("s_branch K2_WB")
    L("K2_WL")
    A(f"v_lshlrev_b32 v{PA_}, 1, v{PA_}")
    A(f"v_lshlrev_b32 v{PB_}, 1, v{PB_}")
    A(f"v_add_u32 v{PA_}, {L_LIST}, v{PA_}")
    A(f"v_add_u32 v{PB_}, {L_LIST}, v{PB_}")
    for tag, m, ad, rc in (("A", MA, PA_, RC), ("B", MB, PB_, RC + 2)):
        A(f"s_mov_b64 exec, s[{m}:{m+1}]")
        A(f"s_cbranch_execz K2_W{tag}")
        A(f"ds_write_b64 v{ad}, {vr(rc,2)}")
        L(f"K2_W{tag}")
    A("s_mov_b64 exec, -1")
    A(f"s_mov_b32 s{SW2}, 1")
    A("s_waitcnt lgkmcnt(0)")
    A("s_barrier")
    stamp(2)
    def row_load(d, p, pair=False):
        if not pair:
            A(f"v_add_u32 v{p}, v{p}, v2")
        A(f"buffer_load_dword v{d}, v{p}, s[{ST}:{ST+3}], 0 offen")
        A(f"buffer_load_dword v{d+1}, v{p}, s[{ST}:{ST+3}], 0 offen offset:256")
    for k in range(R // 4):
        A(f"ds_read_b128 {vr(TI+4*k,4)}, v{VP} offset:{16*k}")
    A(f"s_cmp_lg_u32 s{SWV}, 0")
    A("s_cbranch_scc1 K2_R4")
    A(f"ds_write_b32 v2, v{X1}")
    L("K2_R4")
    A(f"s_cmp_lg_u32 s{SQD}, 0")
    A("s_cbranch_scc1 K2_SLOW")
    A(f"s_mov_b32 s{SQD}, 1")
    AT = [72, 76, Z2, T, RC, OG[1]]
    seq = [(mt, s) for s in range(4) for mt in range(3)]
    PRE = 5
    A(f"ds_read_b128 {vr(B1P,4)}, v{OV}")
    for k in range(PRE):
        mt, s = seq[k]
        A(f"ds_read_b128 {vr(AT[k%6],4)}, v{Q+s} offset:{4096*mt}")
    A(f"s_mul_i32 s{T0}, s{SLEN}, s{SWV}")
    A(f"s_add_u32 s{T3}, s{T0}, s{SLEN}")
    A(f"s_lshl_b32 s{T0}, s{T0}, 2")
    A(f"s_lshl_b32 s{T3}, s{T3}, 2")
    A(f"s_min_u32 s{T0}, s{T0}, s{STOT}")
    A(f"s_min_u32 s{T3}, s{T3}, s{STOT}")
    A(f"s_sub_u32 s{SNN}, s{T3}, s{T0}")
    A(f"s_lshr_b32 s{SNN}, s{SNN}, 2")
    A(f"s_waitcnt lgkmcnt({PRE+1})")
    assert F1 == 4
    for k in range(F1):
        row_load(DAT + 2*k, TI + k)
    A(f"v_cmp_gt_u32 vcc, s{T0}, v{VB4}")
    A(f"v_cmp_lt_u32 s[{TP}:{TP+1}], s{T0}, v{VEND}")
    A(f"s_and_b64 vcc, vcc, s[{TP}:{TP+1}]")
    A(f"s_cselect_b32 s{SLP}, 1, 0")
    A(f"v_cmp_gt_u32 vcc, s{T3}, v{VB4}")
    A(f"v_cmp_lt_u32 s[{TP}:{TP+1}], s{T3}, v{VEND}")
    A(f"s_and_b64 vcc, vcc, s[{TP}:{TP+1}]")
    A(f"s_cselect_b32 s{STAIL}, 1, 0")
    for k, (mt, s) in enumerate(seq):
        if k + PRE < 12:
            m2, s2 = seq[k+PRE]
            A(f"ds_read_b128 {vr(AT[(k+PRE)%6],4)}, v{Q+s2} offset:{4096*m2}")
        w = f"s_waitcnt lgkmcnt({min(PRE, 11-k)})"
        if mt == 0: w += f" vmcnt({NPRE-1-s+2*F1})"
        A(w)
        c = vr(B1P, 4) if s == 0 else vr(NN+4*mt, 4)
        A(f"v_mfma_f32_16x16x32_bf16 {vr(NN+4*mt,4)}, {vr(W1F+4*s,4)}, {vr(AT[k%6],4)}, {c}")
    A(f"ds_read_b32 v{Q}, v{VPL} offset:{PRIV_N*4}")
    for k in range(R // 4):
        A(f"ds_read_b128 {vr(EV+4*k,4)}, v{VP} offset:{PRIV_N*4 + 16*k}")
    A(f"ds_read_b128 {vr(OG[0],4)}, v{VP} offset:{R*4}")
    A(f"ds_read_b128 {vr(W,4)}, v{OV+2}")
    A(f"ds_read_b128 {vr(B2F,4)}, v{OV+1}")
    A(f"v_cmp_le_u32 vcc, s{SNN}, v1")
    A(f"s_movk_i32 s{T2}, {QROW//4}")
    A(f"s_movk_i32 s{T3}, {HROW//4}")
    A(f"s_mov_b32 s{SREM}, s{SNN}")
    for mt in range(3):
        for r in range(4):
            A(f"v_mul_f32 v{NN+4*mt+r}, s{SC}, v{NN+4*mt+r}")
        if mt == 2:
            A(f"s_mov_b64 exec, s[{SQM}:{SQM+1}]")
        A(f"ds_write_b128 v{VA}, {vr(NN+4*mt,4)} offset:{16*mt*QROW}")
    A("s_mov_b64 exec, -1")
    A("s_waitcnt lgkmcnt(0)")
    A("s_barrier")
    stamp(3)
    A(f"s_cmp_eq_u32 s{SFAST}, 0")
    A("s_cbranch_scc1 K2_SLOW")
    A(f"v_and_b32 v{Z2}, 0xfc, v{EV}")
    A(f"v_and_b32 v{Q+1}, 0xfc, v{Q}")
    A(f"v_mad_u32_u24 v{Z2+1}, v{Z2}, s{T2}, v{VQ16}")
    A("s_setprio 3" if PRIO else "s_nop 0")
    A(f"v_mov_b32_dpp v{Q+2}, v{Q+1} wave_shr:1 row_mask:0xf bank_mask:0xf")
    A(f"v_cmp_ne_u32 s[{SM}:{SM+1}], v{Q+1}, v{Q+2}")
    A(f"ds_read_b128 {vr(Q,4)}, v{Z2+1}")
    A(f"s_or_b64 s[{SM}:{SM+1}], s[{SM}:{SM+1}], vcc")
    for k in range(F1, R):
        row_load(DAT + 2*k, TI + k)
    for k in range(4):
        A(f"v_add_u32 v{OG[0]+k}, v{OG[0]+k}, v2")
    def tail_prep():
        for mt in range(3):
            A(f"v_add_u32 v{T+3}, {64*mt}, v{LO}")
            A(f"ds_bpermute_b32 v{T+mt}, v{T+3}, v{VDEG}")
        A(f"v_add_u32 v{AD+2}, {L_H + 32*HROW}, v{AD}")
        A(f"v_add_u32 v{AD+1}, {L_H + 16*HROW}, v{AD}")
        A(f"v_add_u32 v{AD}, {L_H}, v{AD}")
        A("s_waitcnt lgkmcnt(0)")
        for mt in range(3):
            A(f"v_cmp_eq_u32 vcc, 0, v{T+mt}")
            A(f"v_cvt_f32_u32 v{T+mt}, v{T+mt}")
            A(f"v_mul_f32 v{T+mt}, 0.25, v{T+mt}") if False else A(f"v_mul_f32 v{T+mt}, 0x3e800000, v{T+mt}")
            A(f"v_cndmask_b32 v{AD+mt}, v{AD+mt}, v{LO+1}, vcc")
            A(f"v_pk_mul_f32 {vr(OV+4*mt,2)}, {vr(B2F,2)}, {vr(T+(mt&2),2)} " + ("op_sel_hi:[1,0]" if mt % 2 == 0 else "op_sel:[0,1]"))
            A(f"v_pk_mul_f32 {vr(OV+4*mt+2,2)}, {vr(B2F+2,2)}, {vr(T+(mt&2),2)} " + ("op_sel_hi:[1,0]" if mt % 2 == 0 else "op_sel:[0,1]"))
    A(f"s_cmp_ge_u32 s{SWV}, 8")
    A("s_cbranch_scc1 K2_NOTP")
    tail_prep()
    L("K2_NOTP")
    A(f"v_mov_b32 v{LO}, v{Z2}")
    VW = 2 * (R - 1)
    if STAMP and not XS:
        A(f"s_waitcnt vmcnt({VW})")
        stamp(4)
    A(f"s_cmp_eq_u32 s{SNN}, 0")
    A("s_cbranch_scc1 K2_WDONE")
    A("s_branch K2_HC0")

    def e_sel(s):
        base = EV + (s & ~1)
        return (vr(base, 2), "op_sel_hi:[1,0,1]") if s % 2 == 0 else (vr(base, 2), "op_sel:[0,1,0]")
    def part_z1(s, z):
        ep, es = e_sel(s)
        return [f"v_pk_fma_f32 {vr(z,2)}, {vr(W,2)}, {ep}, {vr(Q,2)} {es}",
                f"v_pk_fma_f32 {vr(z+2,2)}, {vr(W+2,2)}, {ep}, {vr(Q+2,2)} {es}"]
    def part_z2(s, z, zo=None):
        d = DAT + 2*s
        zo = z if zo is None else zo
        return [f"v_lshlrev_b64 {vr(LO,2)}, 16, {vr(d,2)}",
                f"v_pk_fma_f32 {vr(zo,2)}, {vr(d,2)}, {C2}, {vr(z,2)}",
                f"v_pk_fma_f32 {vr(zo+2,2)}, {vr(LO,2)}, {C2}, {vr(z+2,2)}"]
    def part_exp(z): return [f"v_exp_f32 v{T+k}, v{z+k}" for k in range(4)]
    def part_nd(z):
        return [f"v_pk_fma_f32 {vr(NN,2)}, {vr(NN,2)}, {vr(T,2)}, {vr(NN,2)}",
                f"v_pk_fma_f32 {vr(NN+2,2)}, {vr(NN+2,2)}, {vr(T+2,2)}, {vr(NN+2,2)}",
                f"v_pk_fma_f32 {vr(NN,2)}, {vr(z,2)}, {vr(DD,2)}, {vr(NN,2)}",
                f"v_pk_fma_f32 {vr(NN+2,2)}, {vr(z+2,2)}, {vr(DD+2,2)}, {vr(NN+2,2)}",
                f"v_pk_fma_f32 {vr(DD,2)}, {vr(DD,2)}, {vr(T,2)}, {vr(DD,2)}",
                f"v_pk_fma_f32 {vr(DD+2,2)}, {vr(DD+2,2)}, {vr(T+2,2)}, {vr(DD+2,2)}"]
    def addr_prep(k):
        A("s_waitcnt lgkmcnt(0)")
        A(f"v_pk_add_f32 {vr(OG[k],2)}, {vr(OG[k],2)}, v[2:3] op_sel:[0,1]")
        A(f"v_pk_add_f32 {vr(OG[k]+2,2)}, {vr(OG[k]+2,2)}, v[2:3] op_sel:[0,1]")
    def refill(s):
        og = OG[(s // 4) % 2]
        if s % 4 == 0:
            A(f"ds_read_b128 {vr(OG[(s//4+1)%2],4)}, v{VP} offset:{(R+s+4)*4}")
        if "noload" not in EXP:
            row_load(DAT + 2*s, og + s % 4, pair=True)
        if s % 4 == 3:
            addr_prep((s // 4 + 1) % 2)
        if s % 4 == 3:
            A(f"ds_read_b128 {vr(EV+s-3,4)}, v{VP} offset:{PRIV_N*4 + (R+s-3)*4}")
    def w2_load():
        A(f"s_mov_b32 s{SW2}, 0")
        A(f"s_lshl_b32 s{T0}, s{SWV}, 13")
        A(f"s_add_u32 s{T0}, s{T0}, {hex(WS_W2F)}")
        A(f"s_add_u32 s{T1}, s{T0}, 4096")
        for k in range(8):
            A(f"buffer_load_dwordx4 {vr(W2R+4*k,4)}, v{VL16}, s[{SW}:{SW+3}], s{T0 + k//4} offen offset:{(k%4)*1024}")
    NG = R // 4
    nocomp = "nocomp" in EXP
    L("K2_LOOP")
    for g in range(NG):
        L(f"K2_G{g}")
        A(f"s_and_b32 s{T0}, s{SM}, {hex(0xF << (4*g))}")
        A(f"s_cbranch_scc1 K2_S{4*g}")
        zz = [Z, Z2]
        s0 = 4*g
        for x in part_z1(s0, zz[0]): A(x)
        A(f"s_waitcnt vmcnt({VW})")
        for x in part_z2(s0, zz[0]): A(x)
        refill(s0)
        for k in range(4):
            s = s0 + k
            z, zn = zz[k % 2], zz[(k + 1) % 2]
            ex, nd = part_exp(z), part_nd(z)
            if nocomp: ex = ["s_nop 0"] * 4; nd = ["s_nop 0"] * 6
            if k < 3:
                a, b = part_z1(s + 1, zn), part_z2(s + 1, zn)
                A(ex[0]); A(a[0]); A(ex[1]); A(a[1]); A(ex[2])
                A(f"s_waitcnt vmcnt({VW})")
                A(b[0]); A(ex[3]); A(nd[0]); A(b[1]); A(nd[1]); A(nd[2]); A(b[2]); A(nd[3])
                refill(s + 1)
                A(nd[4]); A(nd[5])
            else:
                for x in ex + nd: A(x)
    L("K2_PEND")
    A(f"v_add_u32 v{VP}, {R*4}, v{VP}")
    A(f"s_lshr_b64 s[{SM}:{SM+1}], s[{SM}:{SM+1}], {R}")
    A(f"s_sub_u32 s{SREM}, s{SREM}, {R}")
    for thr, p in PRIO_T:
        A(f"s_cmp_gt_u32 s{SREM}, {thr}")
        A("s_cbranch_scc1 K2_LOOP")
        if PRIO: A(f"s_setprio {p}")
    A(f"s_cmp_ge_u32 s{SWV}, 8")
    A("s_cbranch_scc1 K2_LOOP")
    A(f"s_cmp_eq_u32 s{SW2}, 0")
    A("s_cbranch_scc1 K2_LOOP")
    w2_load()
    A("s_branch K2_LOOP")
    for s in range(R):
        L(f"K2_S{s}")
        A(f"s_bitcmp1_b32 s{SM}, {s}")
        A(f"s_cbranch_scc1 K2_H{s}")
        for x in part_z1(s, Z): A(x)
        A(f"s_waitcnt vmcnt({VW})")
        for x in part_z2(s, Z) + ([] if nocomp else part_exp(Z) + part_nd(Z)): A(x)
        L(f"K2_J{s}")
        refill(s)
        if s % 4 == 3:
            A(f"s_branch K2_G{s//4+1}" if s + 1 < R else "s_branch K2_PEND")
    def fold():
        for k in range(4):
            A(f"v_rcp_f32 v{T+k}, v{DD+k}")
        A(f"v_pk_fma_f32 {vr(PZ,2)}, {vr(DD,2)}, {vr(NN,2)}, {vr(PZ,2)}")
        A(f"v_pk_fma_f32 {vr(PZ,2)}, {vr(DD+2,2)}, {vr(NN+2,2)}, {vr(PZ,2)}")
        A(f"v_pk_mul_f32 {vr(Z,2)}, {vr(NN,2)}, {vr(T,2)}")
        A(f"v_pk_mul_f32 {vr(Z+2,2)}, {vr(NN+2,2)}, {vr(T+2,2)}")
    def lead_flush():
        A(f"v_add_u32 v{Z2}, s{SSIDE}, v{VL16}")
        A(f"ds_write_b128 v{Z2}, {vr(Z,4)}")
        A(f"s_lshl_b32 s{T0}, s{SWV}, 2")
        A(f"v_mov_b32 v{Z2+1}, s{T0}")
        A(f"v_mov_b32 v{Z2+2}, 1")
        A(f"ds_write_b32 v{Z2+1}, v{Z2+2} offset:{L_SFL}")
        A(f"s_mov_b32 s{SLP}, 0")
    for s in range(R):
        L(f"K2_H{s}")
        A(f"s_cmp_eq_u32 s{SREM}, {s}")
        A("s_cbranch_scc1 K2_LAST")
        A(f"v_and_b32 v{LO}, 0xfc, v{EV+s}")
        A(f"v_mad_u32_u24 v{LO+1}, v{LO}, s{T2}, v{VQ16}")
        A(f"ds_read_b128 {vr(Q,4)}, v{LO+1}")
        fold()
        A(f"s_cmp_lg_u32 s{SLP}, 0")
        A(f"s_cbranch_scc1 K2_LS{s}")
        A(f"v_cvt_pk_bf16_f32 v{Z}, v{Z}, v{Z+1}")
        A(f"v_cvt_pk_bf16_f32 v{Z+1}, v{Z+2}, v{Z+3}")
        A(f"ds_write_b64 v{VA}, {vr(Z,2)}")
        L(f"K2_HC{s}")
        A(f"v_mad_u32_u24 v{VA}, v{LO}, s{T3}, v{VH8}")
        A(f"s_waitcnt vmcnt({VW}) lgkmcnt(0)")
        for x in part_z1(s, Z) + part_z2(s, Z, NN) + part_exp(NN): A(x)
        A(f"v_pk_add_f32 {vr(DD,2)}, {vr(T,2)}, 1.0 op_sel_hi:[1,0]")
        A(f"v_pk_add_f32 {vr(DD+2,2)}, {vr(T+2,2)}, 1.0 op_sel_hi:[1,0]")
        A(f"s_branch K2_J{s}")
        L(f"K2_LS{s}")
        lead_flush()
        A(f"s_branch K2_HC{s}")
    L("K2_LAST")
    A(f"s_lshl_b32 s{T0}, s{SWV}, 2")
    A(f"v_mov_b32 v{LO}, s{T0}")
    A(f"v_add_u32 v{LO+1}, s{SSIDE}, v{VL16}")
    A(f"ds_read_b32 v{Z2}, v{LO} offset:{L_SFL+4}")
    A(f"ds_read_b128 {vr(Q,4)}, v{LO+1} offset:1024")
    fold()
    A(f"s_cmp_eq_u32 s{SLP}, 0")
    A("s_cbranch_scc1 K2_L1")
    A("s_waitcnt lgkmcnt(0)")
    lead_flush()
    A("s_branch K2_WDONE")
    L("K2_L1")
    A(f"s_cmp_eq_u32 s{STAIL}, 0")
    A("s_cbranch_scc1 K2_L3")
    L("K2_L2")
    A("s_waitcnt lgkmcnt(0)")
    A(f"v_readfirstlane_b32 s{T0}, v{Z2}")
    A(f"s_cmp_lg_u32 s{T0}, 0")
    A("s_cbranch_scc1 K2_L2B")
    A("s_sleep 2")
    A(f"ds_read_b32 v{Z2}, v{LO} offset:{L_SFL+4}")
    A(f"ds_read_b128 {vr(Q,4)}, v{LO+1} offset:1024")
    A("s_branch K2_L2")
    L("K2_L2B")
    A(f"v_pk_add_f32 {vr(Z,2)}, {vr(Z,2)}, {vr(Q,2)}")
    A(f"v_pk_add_f32 {vr(Z+2,2)}, {vr(Z+2,2)}, {vr(Q+2,2)}")
    L("K2_L3")
    A(f"v_cvt_pk_bf16_f32 v{Z}, v{Z}, v{Z+1}")
    A(f"v_cvt_pk_bf16_f32 v{Z+1}, v{Z+2}, v{Z+3}")
    A(f"ds_write_b64 v{VA}, {vr(Z,2)}")
    A("s_branch K2_WDONE")

    L("K2_SLOW")
    A("s_waitcnt vmcnt(0) lgkmcnt(0)")
    A(f"s_cmp_eq_u32 s{SFIRST}, 0")
    A("s_cbranch_scc1 K2_SL0")
    for k in range(12):
        A(f"v_mov_b32 v{SACC+k}, 0")
    L("K2_SL0")
    for i in range(3):
        A(f"s_add_u32 s{T0}, s{SWV}, {16*i}")
        A(f"v_readlane_b32 s{T1}, v{VB4}, s{T0}")
        A(f"v_readlane_b32 s{T2}, v{VCNT}, s{T0}")
        A(f"s_mul_i32 s{T3}, s{T0}, {QROW}")
        A(f"s_cmp_eq_u32 s{T2}, 0")
        A(f"s_cbranch_scc1 K2_SLN{i}")
        A(f"v_add_u32 v{Z2}, s{T3}, v{VQ16}")
        A(f"ds_read_b128 {vr(Q,4)}, v{Z2}")
        A(f"s_lshl_b32 s{T1}, s{T1}, 1")
        A(f"s_add_u32 s{T1}, s{T1}, {L_LIST}")
        A(f"v_mov_b32 v{VA}, s{T1}")
        L(f"K2_SLL{i}")
        A(f"ds_read_b64 {vr(EV,2)}, v{VA}")
        A(f"v_add_u32 v{VA}, 8, v{VA}")
        A("s_waitcnt lgkmcnt(0)")
        row_load(DAT + 2, EV, pair=False)
        for x in part_z1(1, Z): A(x)
        A("s_waitcnt vmcnt(0)")
        for x in part_z2(1, Z) + part_exp(Z): A(x)
        A("s_nop 0")
        for k in range(4):
            A(f"v_add_f32 v{T+k}, 1.0, v{T+k}")
        for k in range(4):
            A(f"v_rcp_f32 v{T+k}, v{T+k}")
        A(f"s_sub_u32 s{T2}, s{T2}, 4")
        for k in range(4):
            A(f"v_fmac_f32 v{SACC+4*i+k}, v{Z+k}, v{T+k}")
        A(f"s_cmp_lg_u32 s{T2}, 0")
        A(f"s_cbranch_scc1 K2_SLL{i}")
        L(f"K2_SLN{i}")
    A(f"s_mov_b32 s{SFIRST}, 0")
    A(f"s_cmp_lt_u32 s{SPOS}, {CH}")
    A("s_cbranch_scc1 K2_FETCH")
    A(f"s_cmp_eq_u64 s[{SOV}:{SOV+1}], 0")
    A("s_cbranch_scc1 K2_SLFIN")
    A(f"s_ff1_i32_b64 s{SCH}, s[{SOV}:{SOV+1}]")
    A(f"s_bitset0_b64 s[{SOV}:{SOV+1}], s{SCH}")
    A(f"s_mov_b32 s{SPOS}, 0")
    L("K2_FETCH")
    A("s_waitcnt lgkmcnt(0)")
    A("s_barrier")
    A(f"s_mul_i32 s{T0}, s{SCH}, {CH}")
    A(f"s_add_u32 s{T0}, s{T0}, s{SPOS}")
    A(f"s_lshl_b32 s{T1}, s{T0}, 2")
    A(f"s_lshl_b32 s{T2}, s{T0}, 1")
    A("v_lshlrev_b32 v64, 3, v0")
    A("v_lshlrev_b32 v65, 2, v0")
    srd(SX, PDST, E * 4)
    A(f"buffer_load_dwordx2 v[66:67], v64, s[{SX}:{SX+3}], s{T1} offen")
    srd(SX, PSRC, E * 4)
    A(f"buffer_load_dwordx2 v[68:69], v64, s[{SX}:{SX+3}], s{T1} offen")
    srd(SX, PE, E * 2)
    A(f"buffer_load_dword v70, v65, s[{SX}:{SX+3}], s{T2} offen")
    A("v_lshlrev_b32 v71, 1, v0")
    A(f"v_add_u32 v71, s{SPOS}, v71")
    A(f"s_movk_i32 s{T0}, {CH}")
    A(f"v_cmp_gt_u32 s[{MA}:{MA+1}], s{T0}, v71")
    A(f"s_add_u32 s{SPOS}, s{SPOS}, 2048")
    A(f"s_mov_b32 s{T0}, {hex(FBASE)}")
    A("s_waitcnt vmcnt(0)")
    A(f"v_lshl_or_b32 v{RC}, v68, 9, s{T0}")
    A(f"v_lshl_or_b32 v{RC+2}, v69, 9, s{T0}")
    A(f"v_subrev_u32 v66, s{SN40}, v66")
    A(f"v_subrev_u32 v67, s{SN40}, v67")
    A(f"v_cmp_gt_u32 vcc, s{SNB}, v67")
    A(f"s_and_b64 s[{MB}:{MB+1}], s[{MA}:{MA+1}], vcc")
    A(f"v_cmp_gt_u32 vcc, s{SNB}, v66")
    A(f"s_and_b64 s[{MA}:{MA+1}], s[{MA}:{MA+1}], vcc")
    A("v_lshlrev_b32 v66, 2, v66")
    A("v_lshlrev_b32 v67, 2, v67")
    A(f"v_lshl_or_b32 v{RC+1}, v70, 16, v66")
    A("v_and_b32 v70, 0xffff0000, v70")
    A(f"v_or_b32 v{RC+3}, v70, v67")
    A("s_branch K2_ROUND")
    L("K2_SLFIN")
    for i in range(3):
        if i == 2:
            A(f"s_cmp_ge_u32 s{SWV}, {NPB-32}")
            A("s_cbranch_scc1 K2_WDONE")
        A(f"s_add_u32 s{T0}, s{SWV}, {16*i}")
        A(f"s_mul_i32 s{T0}, s{T0}, {HROW}")
        A(f"v_add_u32 v{Z2}, s{T0}, v{VH8}")
        A(f"v_cvt_pk_bf16_f32 v{Z}, v{SACC+4*i}, v{SACC+4*i+1}")
        A(f"v_cvt_pk_bf16_f32 v{Z+1}, v{SACC+4*i+2}, v{SACC+4*i+3}")
        A(f"ds_write_b64 v{Z2}, {vr(Z,2)}")
    A("v_and_b32 v48, 15, v1")
    A("v_lshrrev_b32 v49, 4, v1")
    A("v_lshlrev_b32 v55, 4, v49")
    A(f"s_movk_i32 s{T1}, {HROW}")
    A(f"v_mad_u32_u24 v{AD}, v48, s{T1}, v55")
    A(f"v_add_u32 v{LO+1}, {L_ZROW}, v55")
    A(f"v_lshlrev_b32 v{LO}, 2, v48")
    A(f"s_lshl_b32 s{T0}, s{SWV}, 6")
    A(f"s_add_u32 s{T0}, s{T0}, {hex(WS_CV)}")
    A(f"buffer_load_dwordx4 {vr(B2F,4)}, v55, s[{SW}:{SW+3}], s{T0} offen offset:2048")
    A("s_waitcnt vmcnt(0)")
    tail_prep()

    L("K2_WDONE")
    stamp(5)
    A(f"v_add_f32 v{T}, v{PZ}, v{PZ+1}")
    A(f"v_mov_b32 v{Z2+1}, 0x207")
    A(f"v_cmp_class_f32 vcc, v{T}, v{Z2+1}")
    A(f"v_mov_b32 v{Z2+2}, 0")
    A(f"s_mov_b32 s{TP}, {hex(C_NLN2)}")
    A("s_branch K2_NOG" if EXP else "s_cbranch_vccz K2_NOG")
    A(f"ds_write_b32 v{Z2+2}, v{Z2+1} offset:{L_FLAG+8}")
    L("K2_NOG")
    A(f"s_cmp_ge_u32 s{SWV}, 8")
    A("s_cbranch_scc1 K2_B4")
    A(f"s_cmp_eq_u32 s{SW2}, 0")
    A("s_cbranch_scc1 K2_B4")
    w2_load()
    L("K2_B4")
    A("s_waitcnt vmcnt(0) lgkmcnt(0)")
    A("s_barrier")
    stamp(6)
    if os.environ.get("DUMP"):
        A(f"s_lshl_b32 s{T0}, s2, 17")
        A(f"s_add_u32 s{T0}, s{T0}, 0x4000000")
        for k in range(6):
            A(f"v_add_u32 v48, {k*16384}, v{VT16}")
            A("ds_read_b128 v[52:55], v48")
            A("s_waitcnt lgkmcnt(0)")
            A(f"buffer_store_dwordx4 v[52:55], v48, s[{SW}:{SW+3}], s{T0} offen")
            A("s_waitcnt vmcnt(0)")
    A(f"ds_read_b32 v{Z2+3}, v{Z2+2} offset:{L_FLAG+8}")
    A(f"s_cmp_ge_u32 s{SWV}, 8")
    A("s_cbranch_scc1 K2_CHK")
    HB = [48 + 4*k for k in range(8)]
    ACC = [12, 16, 20]
    seq = [(mt, s) for mt in range(3) for s in range(8)]
    PRE = 7
    for k in range(PRE):
        mt, s = seq[k]
        A(f"ds_read_b128 {vr(HB[k%8],4)}, v{AD+mt} offset:{s*64}")
    def epi(mt):
        for r in range(4):
            A(f"v_fma_f32 v{OV+4*mt+r}, v{ACC[mt]+r}, s{TP}, v{OV+4*mt+r}")
        A(f"v_cvt_pk_bf16_f32 v{32+2*mt}, v{OV+4*mt}, v{OV+4*mt+1}")
        A(f"v_cvt_pk_bf16_f32 v{33+2*mt}, v{OV+4*mt+2}, v{OV+4*mt+3}")
    for k, (mt, s) in enumerate(seq):
        if k + PRE < 24:
            m2, s2 = seq[k+PRE]
            A(f"ds_read_b128 {vr(HB[(k+PRE)%8],4)}, v{AD+m2} offset:{s2*64}")
        A(f"s_waitcnt lgkmcnt({min(PRE, 23-k)})")
        c = "0" if s == 0 else vr(ACC[mt], 4)
        A(f"v_mfma_f32_16x16x32_bf16 {vr(ACC[mt],4)}, {vr(W2R+4*s,4)}, {vr(HB[k%8],4)}, {c}")
        if s == 4 and mt > 0:
            epi(mt - 1)
    A("s_nop 7")
    epi(2)
    L("K2_CHK")
    A("s_waitcnt lgkmcnt(0)")
    A(f"v_readfirstlane_b32 s{T2}, v{Z2+3}")
    A(f"s_lshl_b32 s{T1}, s{SMODE}, 31")
    A(f"s_or_b32 s{T2}, s{T2}, s{T1}")
    A(f"s_cmp_gt_i32 s{T2}, 0")
    A("s_cbranch_scc1 K2_REDO")
    A(f"s_cmp_ge_u32 s{SWV}, 8")
    A("s_cbranch_scc1 K2_END2")
    A(f"s_add_u32 s{T2}, s{SOUT}, 4096")
    A(f"s_add_u32 s{T1}, s{SOUT}, 8192")
    A(f"buffer_store_dwordx2 v[32:33], v{OUTA}, s[{SO}:{SO+3}], s{SOUT} offen")
    A(f"buffer_store_dwordx2 v[34:35], v{OUTA}, s[{SO}:{SO+3}], s{T2} offen")
    A(f"s_mov_b64 exec, s[{SQM}:{SQM+1}]")
    A(f"buffer_store_dwordx2 v[36:37], v{OUTA}, s[{SO}:{SO+3}], s{T1} offen")
    L("K2_END2")
    stamp(7)
    if STAMP: A("s_waitcnt vmcnt(0)")
    stamp(8)
    if STAMP: A("s_memtime s[96:97]")
    stamp_flush(1, 3, 11)
    L("K2_END")
    A("s_endpgm")
    L("K2_REDO")
    A(f"s_mov_b32 s{SMODE}, 1")
    A("s_setprio 0")
    A("s_branch K2_PASS")
    L("K2_CODE_END")

hdr = f"""; Kernarg layout for this problem (88 bytes, ptrs only, base s[0:1]):
; @launch kernel=k1_kernel grid=({K1_GRID+NTW},1,1) block=(512,1,1) lds={K1_LDS}
; @launch kernel=k2_kernel grid=({NB},1,1) block=(1024,1,1) lds={K2_LDS}
.amdgcn_target "amdgcn-amd-amdhsa--gfx950"
"""
gen_k1()
gen_k2()
kernel_desc("k1_kernel", 128, 102 if STAMP else 72)
kernel_desc("k2_kernel", 128, 102 if STAMP else 72)
txt = hdr + "\n".join(o for o in out if o is not None) + "\n"
dst = sys.argv[1] if len(sys.argv) > 1 else f"cdna_kernels/{NAME}.s"
open(dst, "w").write(txt)
print("wrote", dst, "K2_LDS", K2_LDS)
```

```python
import sys, struct, os

NAME = "standalone__edge_featured_mpnn_mpnn__graph"
KN = NAME + "_kernel"
N, E, D, H = 10000, 160000, 128, 256
NB, NPB, CH = 250, 40, 640
WS_REC = 0x500000
WS_OFS = 0x680000
WS_PF = 0x700000
WS_W2F = 0x710000
WS_DBG = 0x2000000
WS_BYTES = 0x10000000
R = 8
PRIO_T = eval(os.environ.get("PRIO_T", "((32, 2), (21, 1), (10, 0))"))
STAMP = os.environ.get("STAMP", "0") == "1"
PI = [1, 3, 0, 2]
FBASE = 0x4B000000
SPIN = 1 << 16
SLP_N = int(os.environ.get('SLP', '2'))

def f32bits(x): return struct.unpack("<I", struct.pack("<f", x))[0]
C_NLOG2E = f32bits(-1.4426950408889634)
C_NLN2 = f32bits(-0.6931471805599453)

out = []
def A(s): out.append("    " + s)
def L(s): out.append(s + ":")
def CM(s): out.append("    ; " + s)
def vr(a, n): return f"v[{a}:{a+n-1}]"
def sr(a, n): return f"s[{a}:{a+n-1}]"

PX, PE, PSRC, PDST, PW1, PB1, PW2, PB2 = 4, 6, 8, 10, 12, 14, 16, 18
POUT, PDBG, PWS = 20, 22, 24

def srd(dst, base, nrec, off=None):
    if off is not None:
        A(f"s_add_u32 s{dst}, s{base}, {off}")
        A(f"s_addc_u32 s{dst+1}, s{base+1}, 0")
        src1 = dst + 1
    else:
        A(f"s_mov_b32 s{dst}, s{base}")
        src1 = base + 1
    A(f"s_and_b32 s{dst+1}, s{src1}, 0xffff")
    A(f"s_mov_b32 s{dst+2}, {hex(nrec)}")
    A(f"s_mov_b32 s{dst+3}, 0x20000")

NST = 0
def stamp(k):
    if STAMP: A(f"s_memrealtime s[100:101]"); A("s_waitcnt lgkmcnt(0)"); A(f"v_writelane_b32 v{VST}, s100, {k}")

QROW, HROW = 1040, 528
L_CNT, L_FLAG, L_SFL, L_ZROW, L_HIST = 0, 256, 272, 352, 896
ZERO_B = 1920
L_CV = 1920
L_PRIV = L_CV + 2560
PRIV_N = 64 + R + 8
PRIV_B = PRIV_N * 8
L_H = L_PRIV + 16 * PRIV_B
L_XT = L_H + NPB * HROW
L_SIDE = L_XT
L_Q = L_XT + 16384
L_SB = L_Q
L_S = L_Q + NPB * QROW
LDS = L_S + 65536
L_LIST = L_PRIV
assert LDS <= 163840 and L_Q - L_PRIV >= 4096 * 8 and L_H % 16 == 0 and L_Q % 16 == 0 and L_S % 16 == 0 and L_XT % 16 == 0
WIN = 16 * 63
DUMMY = FBASE + 0x7FF000

VLF, VH8, VL16, VT16, VQ16 = 3, 4, 5, 6, 7
W, Q, NN, DD, Z, Z2, T, LO, PZ = 8, 12, 16, 20, 24, 28, 32, 36, 38
VA, VP, VDEG, VB4, VCNT, VPL, VM, VEND = 40, 41, 42, 43, 44, 45, 46, 47
EV, OG, DAT = 48, [56, 60], 64
AD, OUTA, OV, B2F = 80, 83, 84, 92
XF = 48
WL, PT = 96, 112
W2R = 96
RC = 96
VST = 45
SACC = 112

def gen():
    out.extend([".text", f".globl {KN}", ".p2align 8", f".type {KN},@function"])
    L(KN)
    ST, SW, SO, SX, SY, SZ = 28, 32, 36, 40, 44, 48
    MK = [4 + 2*k for k in range(8)]
    SC = 60
    SMODE, SFIRST, SRND, SFAST, STOK, SSP = 62, 63, 64, 65, 66, 67
    SM = 68
    SREM, STOT, SLP, SNN, SWV = 70, 71, 72, 73, 3
    SN40, SEX = 74, 76
    T0, T1, T2, T3, TP = 78, 79, 80, 81, 82
    STAIL, SSIDE, SLEN, SOUT, SWO = 84, 85, 86, 87, 88
    SQM, P0, P1 = 90, 92, 93
    SB8, SW2, SOWN = 75, 89, 52
    C2 = sr(SC, 2)
    SCAN = ("row_shr:2 row_mask:0xf bank_mask:0xf bound_ctrl:0", "row_shr:4 row_mask:0xf bank_mask:0xf bound_ctrl:0",
            "row_shr:8 row_mask:0xf bank_mask:0xf bound_ctrl:0", "row_bcast:15 row_mask:0xa bank_mask:0xf", "row_bcast:31 row_mask:0xc bank_mask:0xf")
    VC, VG = 36, 37
    GRT = 34

    A("s_load_dwordx16 s[4:19], s[0:1], 0")
    A("s_load_dwordx4 s[20:23], s[0:1], 64")
    A("s_load_dwordx2 s[24:25], s[0:1], 80")
    A("s_memrealtime s[26:27]")
    CM("pull the code towards the L2 right away (one load per 128-B line; lanes past the code are out of range)")
    A(f"s_getpc_b64 {sr(SX,2)}")
    L("K_PC0")
    A("v_lshlrev_b32 v126, 7, v0")
    A(f"s_and_b32 s{SX+1}, s{SX+1}, 0xffff")
    A(f"s_mov_b32 s{SX+2}, K_CODE_END-K_PC0")
    A(f"s_mov_b32 s{SX+3}, 0x20000")
    A(f"buffer_load_dword v{VM}, v126, {sr(SX,4)}, 0 offen")
    A(f"s_cmp_ge_u32 s2, {NB}")
    A("s_cbranch_scc1 K_END")
    A("v_and_b32 v1, 63, v0")
    A("v_lshrrev_b32 v48, 6, v0")
    A(f"v_lshlrev_b32 v{VT16}, 4, v0")
    A(f"v_readfirstlane_b32 s{SWV}, v48")
    A("v_lshlrev_b32 v2, 2, v1")
    A(f"v_lshlrev_b32 v{VL16}, 4, v1")
    A(f"v_and_b32 v{VC}, 15, v1")
    A(f"v_lshrrev_b32 v{VG}, 4, v1")
    if STAMP: A(f"v_mov_b32 v{VST}, 0")
    A(f"s_mul_i32 s{SN40}, s2, {NPB}")
    A(f"s_mov_b32 s{P0}, 0x05040100")
    A(f"s_mov_b32 s{P1}, 0x07060302")
    A(f"s_mov_b32 s{SC}, {hex(C_NLOG2E)}")
    A(f"s_mov_b32 s{SC+1}, {hex(C_NLOG2E)}")
    A(f"s_cmp_lt_u32 s{SWV}, 8")
    A("s_cbranch_scc1 K_AUX")
    def common_setup():
        srd(SW, PWS, WS_BYTES)
        srd(SO, PDBG, 256)
        A(f"s_mul_i32 s{SW2}, s{SWV}, {PRIV_B}")
        A(f"s_add_u32 s{SW2}, s{SW2}, {L_PRIV}")
        A(f"v_add_u32 v30, s{SW2}, v2")
        A(f"v_mov_b32 v31, {hex(DUMMY)}")
        A("ds_write_b32 v30, v31")
        A(f"ds_write_b32 v30, v31 offset:{(PRIV_N-64)*4}")
        A(f"s_lshl_b32 s{SSIDE}, s{SWV}, 10")
        A(f"s_add_u32 s{SSIDE}, s{SSIDE}, {L_SIDE}")
        A(f"s_mov_b32 s{SMODE}, 0")
        A(f"s_sub_u32 s{ST}, s{PWS}, {hex(FBASE)}")
        A(f"s_subb_u32 s{ST+1}, s{PWS+1}, 0")
        A(f"s_and_b32 s{ST+1}, s{ST+1}, 0xffff")
        A(f"s_mov_b32 s{ST+2}, {hex(FBASE + N*512)}")
        A(f"s_mov_b32 s{ST+3}, 0x20000")
        A(f"s_lshl_b32 s{SB8}, s2, 3")
        A(f"s_add_u32 s{SB8}, s{SB8}, {hex(WS_OFS)}")
        A(f"v_cvt_f32_u32 v{VLF}, v2")
        A(f"v_lshlrev_b32 v{VH8}, 3, v1")
        A(f"v_add_u32 v{VH8}, {L_H}, v{VH8}")
        A(f"v_add_u32 v{VQ16}, {L_Q}, v{VL16}")
        A(f"v_cmp_gt_u32 {sr(SQM,2)}, 8, v{VC}")
        A(f"s_lshl_b32 s{SOUT}, s{SN40}, 8")
        A(f"s_lshl_b32 s{T2}, s{SWV}, 5")
        A(f"s_add_u32 s{SOUT}, s{SOUT}, s{T2}")
        A(f"s_mov_b32 s{SFIRST}, 1")
    def late_setup():
        A(f"v_cvt_f32_u32 v{VM}, v1")
        A(f"v_rcp_f32 v{VM}, v{VM}")
        A(f"v_mov_b32 v{VP}, s{SW2}")
        A(f"v_mul_f32 v{VM}, 0x47800000, v{VM}")
        A(f"v_cvt_u32_f32 v{VM}, v{VM}")
        A(f"v_add_u32 v{VM}, 1, v{VM}")
        A(f"v_mov_b32 v{VDEG}, 0")
    tokn = [0]
    def token(vt, vz):
        tokn[0] += 1; n = tokn[0]
        A(f"s_mov_b32 s{SSP}, {SPIN}")
        L(f"K_TOK{n}")
        A(f"v_readfirstlane_b32 s{STOK}, v{vt}")
        A(f"s_cmp_lg_u32 s{STOK}, 0")
        A(f"s_cbranch_scc1 K_TOKOK{n}")
        A(f"s_sub_u32 s{SSP}, s{SSP}, 1")
        A("s_cbranch_scc1 K_END")
        A(f"buffer_load_dword v{vt}, v{vz}, {sr(SO,4)}, 0 offen sc1")
        A("s_waitcnt vmcnt(0)")
        A(f"s_branch K_TOK{n}")
        L(f"K_TOKOK{n}")
    def perm4(dst, col):
        for pr in range(4):
            a, b = WL + 8*pr + (col >> 1), WL + 8*pr + 4 + (col >> 1)
            A(f"v_perm_b32 v{dst+pr}, v{b}, v{a}, s{P1 if col & 1 else P0}")
    VPA, VQA, VB1A, VSW, VWO = 41, 42, 43, 44, 47
    A(f"v_lshlrev_b32 v{VWO}, 12, v{VG}")
    A(f"v_lshl_add_u32 v{VWO}, v{VC}, 4, v{VWO}")
    A(f"s_and_b32 s{T0}, s{SWV}, 3")
    A(f"s_bfe_u32 s{T3}, s{SWV}, 0x10002")
    A(f"s_lshl_b32 s{SWO}, s{T0}, 14")
    A(f"s_lshl_b32 s{TP}, s{T3}, 8")
    A(f"s_add_u32 s{SWO}, s{SWO}, s{TP}")
    A("s_waitcnt lgkmcnt(0)")
    srd(SY, PW1, 257 * 512)
    def w_loads(so):
        for j in range(8):
            A(f"buffer_load_dwordx4 {vr(WL+4*j,4)}, v{VWO}, {sr(SY,4)}, s{so} offen offset:{512*j}")
    w_loads(SWO)
    A(f"s_lshl_b32 s{T3}, s{T3}, 15")
    A(f"s_lshl_b32 s{T0}, s{T0}, 10")
    A(f"s_add_u32 s{T3}, s{T3}, s{T0}")
    A(f"s_add_u32 s{T3}, s{T3}, {L_S}")
    A(f"v_add_u32 v{VSW}, s{T3}, v{VL16}")
    common_setup()
    XA = 8
    A(f"v_xor_b32 v12, v{VG}, v{VC}")
    A("v_lshlrev_b32 v12, 4, v12")
    A(f"v_lshl_add_u32 v12, v{VC}, 8, v12")
    for s in range(4):
        A(f"v_xor_b32 v{XA+s}, {64*s}, v12")
    A(f"s_sub_u32 s{T0}, s{SWV}, 8")
    A(f"s_lshl_b32 s{T1}, s{T0}, 13")
    A(f"s_add_u32 s{T1}, s{T1}, {L_S}")
    A(f"v_add_u32 v{VA}, s{T1}, v{VL16}")
    A(f"s_lshr_b32 s{T1}, s{T0}, 1")
    A(f"s_lshl_b32 s{T1}, s{T1}, 4")
    A(f"s_and_b32 s{T0}, s{T0}, 1")
    A(f"s_lshl_b32 s{T0}, s{T0}, 1")
    A(f"s_add_u32 s{T0}, s{T0}, s{T1}")
    A(f"v_lshl_add_u32 v12, v{VG}, 2, s{T0}")
    A(f"s_movk_i32 s{T1}, {HROW}")
    A(f"v_lshlrev_b32 v{VPA}, 2, v12")
    A(f"v_mad_u32_u24 v{VPA}, v{VC}, s{T1}, v{VPA}")
    A(f"v_lshlrev_b32 v{VB1A}, 4, v12")
    A(f"s_movk_i32 s{T1}, {QROW}")
    A(f"v_mad_u32_u24 v{VQA}, v{VC}, s{T1}, v{VB1A}")
    A(f"v_add_u32 v{VQA}, {L_Q}, v{VQA}")
    A(f"s_add_u32 s{T0}, s{SWO}, {128*512}")
    A(f"s_mov_b32 s{T2}, 0x8000")
    A("s_waitcnt vmcnt(0)")
    stamp(1)
    for col in range(8):
        perm4(48 + 4*col, col)
        A(f"ds_write_b128 v{VSW}, {vr(48+4*col,4)} offset:{col*4096}")
    w_loads(T0)
    A("s_waitcnt lgkmcnt(0)")
    A("s_barrier")
    stamp(3)
    AC = lambda t, mt: 16 + (t*3 + mt) * 4
    AB = [12, 8]
    def rdA(k, dst):
        A(f"ds_read_b128 {vr(dst,4)}, v{VA} offset:{((k&1)*4 + (k>>1))*1024}")
    rdA(0, AB[0])
    for s in range(4):
        for mt in range(3):
            A(f"ds_read_b128 {vr(XF+(mt*4+s)*4,4)}, v{XA+s} offset:{L_XT + 4096*mt}")
    rdA(1, AB[1])
    for k in range(8):
        s, t = k >> 1, k & 1
        A(f"s_waitcnt lgkmcnt({10 if k == 0 else (1 if k < 7 else 0)})")
        for mt in range(3):
            c = "0" if s == 0 else vr(AC(t, mt), 4)
            A(f"v_mfma_f32_16x16x32_bf16 {vr(AC(t,mt),4)}, {vr(AB[k%2],4)}, {vr(XF+(mt*4+s)*4,4)}, {c}")
        if k + 2 < 8:
            rdA(k + 2, AB[k % 2])
    A("s_nop 3")
    for mt in range(3):
        o = 8 + 4 * (mt % 2)
        for t in range(2):
            f = [AC(t, mt) + r for r in range(4)]
            for r in range(4):
                A(f"v_add_f32 v{f[r]}, 0, v{f[r]}")
            for r in range(4):
                A(f"v_add_u32 v{f[r]}, s{T2}, v{f[r]}")
            for r in range(1, 4):
                A(f"v_sub_u32_sdwa v{f[r]}, v{f[r]}, v{f[r-1]} clamp dst_sel:DWORD dst_unused:UNUSED_PAD src0_sel:DWORD src1_sel:WORD_1")
            A(f"v_perm_b32 v{o+t}, v{f[1]}, v{f[0]}, s{P1}")
            A(f"v_perm_b32 v{o+2+t}, v{f[3]}, v{f[2]}, s{P1}")
        if mt == 2:
            A(f"s_mov_b64 exec, {sr(SQM,2)}")
        A(f"ds_write_b64 v{VPA}, {vr(o,2)} offset:{L_H + 16*mt*HROW}")
        A(f"ds_write_b64 v{VPA}, {vr(o+2,2)} offset:{L_H + 16*mt*HROW + 256}")
    A("s_mov_b64 exec, -1")
    A("s_waitcnt lgkmcnt(0)")
    A("s_barrier")
    stamp(4)
    A("v_mov_b32 v9, 0")
    A(f"ds_read_b32 v{VWO}, v9 offset:{L_FLAG+12}")
    A("s_waitcnt vmcnt(0)")
    for col in range(8):
        d = 16 + 4 * (col % 6)
        perm4(d, col)
        A(f"ds_write_b128 v{VSW}, {vr(d,4)} offset:{col*4096}")
    A("s_waitcnt lgkmcnt(0)")
    A("s_barrier")
    stamp(5)
    A(f"ds_read_b128 v[8:11], v{VB1A} offset:{L_CV+1024}")
    A(f"ds_read_b128 v[12:15], v{VB1A} offset:{L_CV+1024+16}")
    for k in range(8):
        rdA(k, WL + 4*k)
    for k in range(8):
        s, t = k >> 1, k & 1
        A(f"s_waitcnt lgkmcnt({7-k})")
        for mt in range(3):
            c = vr(8 + 4*t, 4) if s == 0 else vr(AC(t, mt), 4)
            A(f"v_mfma_f32_16x16x32_bf16 {vr(AC(t,mt),4)}, {vr(WL+4*k,4)}, {vr(XF+(mt*4+s)*4,4)}, {c}")
    for k in range(8):
        A(f"s_mov_b64 {sr(MK[k],2)}, 0")
    for mt in range(3):
        for t in range(2):
            d = 48 + (mt*2 + t) * 4
            for i in range(4):
                A(f"v_mul_f32 v{d+i}, s{SC}, v{AC(t,mt)+PI[i]}")
            if mt == 2:
                A(f"s_mov_b64 exec, {sr(SQM,2)}")
            A(f"ds_write_b128 v{VQA}, {vr(d,4)} offset:{16*mt*QROW + 16*t}")
            if mt == 2:
                A("s_mov_b64 exec, -1")
    A(f"v_readfirstlane_b32 s{STOK}, v{VWO}")
    late_setup()
    A(f"v_and_b32 v{VC}, 15, v1")
    A(f"v_lshrrev_b32 v{VG}, 4, v1")
    A(f"v_mov_b32 v{PZ}, 0")
    A(f"v_mov_b32 v{PZ+1}, 0")
    A(f"s_mov_b32 s{T1}, {hex(WS_PF - 8192)}")
    A(f"s_cmp_lt_u32 s{SWV}, 12")
    A(f"s_cselect_b32 s{SRND}, s{T1}, 0x7ff00000")
    stamp(6)
    A("s_branch K_ROUND")

    L("K_AUX")
    A(f"s_cmp_lg_u32 s{SWV}, 0")
    A("s_cbranch_scc1 K_AUX1")
    ED, ES, EE, RKB, BN4, RCB = 48, 58, 68, 74, 84, 96
    for k in range(4):
        A(f"v_mov_b32 v{8+k}, 0")
    A(f"ds_write_b128 v{VL16}, v[8:11] offset:{L_HIST}")
    A("v_lshlrev_b32 v12, 3, v1")
    A(f"s_mul_i32 s{T0}, s2, {CH*4}")
    A(f"s_mul_i32 s{T1}, s2, {CH*2}")
    A("s_waitcnt lgkmcnt(0)")
    srd(SX, PDST, CH * 4, f"s{T0}")
    for k in range(5):
        A(f"buffer_load_dwordx2 {vr(ED+2*k,2)}, v12, {sr(SX,4)}, 0 offen offset:{512*k}")
    srd(SY, PSRC, CH * 4, f"s{T0}")
    for k in range(5):
        A(f"buffer_load_dwordx2 {vr(ES+2*k,2)}, v12, {sr(SY,4)}, 0 offen offset:{512*k}")
    srd(SZ, PE, CH * 2, f"s{T1}")
    for k in range(5):
        A(f"buffer_load_dword v{EE+k}, v2, {sr(SZ,4)}, 0 offen offset:{256*k}")
    common_setup()
    A(f"s_mov_b32 s{T0}, {hex(FBASE)}")
    A(f"s_movk_i32 s{T1}, {-NPB}")
    A("v_mov_b32 v13, 1")
    for j in range(10):
        if j % 2 == 0:
            A(f"s_waitcnt vmcnt({14 - j//2})")
        A(f"v_mul_u32_u24 v14, 0xcccd, v{ED+j}")
        A("v_lshrrev_b32 v14, 21, v14")
        A(f"v_lshlrev_b32 v{BN4+j}, 2, v14")
        A(f"ds_add_rtn_u32 v{RKB+j}, v{BN4+j}, v13 offset:{L_HIST}")
        A(f"v_mad_i32_i24 v{ED+j}, v14, s{T1}, v{ED+j}")
    HC_, HB_ = 16, 20
    A(f"ds_read_b128 {vr(HC_,4)}, v{VL16} offset:{L_HIST}")
    A("s_waitcnt vmcnt(0)")
    stamp(1)
    A(f"buffer_load_dword v{VEND}, v8, {sr(SO,4)}, 0 offen sc1")
    for j in range(10):
        A(f"v_lshl_or_b32 v{RCB+2*j}, v{ES+j}, 9, s{T0}")
        if j % 2 == 0:
            A(f"v_lshlrev_b32 v14, 16, v{EE+j//2}")
        else:
            A(f"v_and_b32 v14, 0xffff0000, v{EE+j//2}")
        A(f"v_lshl_or_b32 v{RCB+2*j+1}, v{ED+j}, 2, v14")
    A("s_waitcnt lgkmcnt(0)")
    A(f"v_add_u32 v{HB_+2}, v{HC_}, v{HC_+1}")
    A(f"v_add_u32 v{HB_+3}, v{HB_+2}, v{HC_+2}")
    A(f"v_add_u32 v15, v{HB_+3}, v{HC_+3}")
    A("s_nop 1")
    A(f"v_add_u32_dpp v{HB_}, v15, v15 row_shr:1 row_mask:0xf bank_mask:0xf bound_ctrl:0")
    for ctl in SCAN:
        A("s_nop 1")
        A(f"v_add_u32_dpp v{HB_}, v{HB_}, v{HB_} {ctl}")
    A(f"v_sub_u32 v{HB_}, v{HB_}, v15")
    A(f"v_add_u32 v{HB_+1}, v{HB_}, v{HC_}")
    A(f"v_add_u32 v{HB_+2}, v{HB_}, v{HB_+2}")
    A(f"v_add_u32 v{HB_+3}, v{HB_}, v{HB_+3}")
    A(f"ds_write_b128 v{VL16}, {vr(HB_,4)} offset:{L_HIST}")
    for j in range(10):
        A(f"ds_read_b32 v{ED+j}, v{BN4+j} offset:{L_HIST}")
    for j in range(10):
        A(f"s_waitcnt lgkmcnt({9-j+j})")
        A(f"v_add_lshl_u32 v{ED+j}, v{ED+j}, v{RKB+j}, 3")
        A(f"ds_write_b64 v{ED+j}, {vr(RCB+2*j,2)} offset:{L_SB}")
    for k in range(5):
        A(f"ds_read_b128 {vr(60+4*k,4)}, v{VL16} offset:{L_SB + 1024*k}")
    A(f"s_mul_i32 s{T0}, s2, {CH*8}")
    A(f"s_add_u32 s{T0}, s{T0}, {hex(WS_REC)}")
    A(f"s_add_u32 s{T1}, s{T0}, 4096")
    for k in range(5):
        A(f"s_waitcnt lgkmcnt({4-k})")
        A(f"buffer_store_dwordx4 {vr(60+4*k,4)}, v{VL16}, {sr(SW,4)}, s{T0 + k//4} offen offset:{1024*(k%4)} sc1")
    stamp(2)
    for k in range(4):
        A(f"v_lshl_or_b32 v{25+2*k}, v{HC_+k}, 16, v{HB_+k}")
    A(f"v_lshlrev_b32 v32, 1, v{VL16}")
    A(f"s_lshl_b32 s{T3}, s2, 11")
    A(f"s_add_u32 s{T3}, s{T3}, {hex(WS_OFS)}")
    A("s_barrier")
    A("s_waitcnt vmcnt(0)")
    token(VEND, 8)
    for k in range(4):
        A(f"v_mov_b32 v{24+2*k}, s{STOK}")
    A(f"ds_write_b32 v8, v24 offset:{L_FLAG+12}")
    A(f"buffer_store_dwordx4 v[24:27], v32, {sr(SW,4)}, s{T3} offen sc1")
    A(f"buffer_store_dwordx4 v[28:31], v32, {sr(SW,4)}, s{T3} offen offset:16 sc1")
    stamp(3)
    A("s_branch K_AUXP")
    L("K_AUX1")
    A(f"s_sub_u32 s{T0}, s{SWV}, 1")
    A(f"s_lshl_b32 s{T1}, s{T0}, 3")
    A(f"v_add_u32 v50, s{T1}, v{VG}")
    for k in range(2):
        A(f"v_xor_b32 v{51+k}, v50, v{VC}")
        if k: A(f"v_xor_b32 v{51+k}, 4, v{51+k}")
        A(f"v_and_b32 v{51+k}, 15, v{51+k}")
        A(f"v_lshlrev_b32 v{51+k}, 4, v{51+k}")
        A(f"v_lshl_add_u32 v{51+k}, v50, 8, v{51+k}")
    A(f"s_lshl_b32 s{T0}, s{T0}, 11")
    A(f"s_add_u32 s{T0}, s{T0}, {L_XT}")
    A(f"s_mov_b32 m0, s{T0}")
    A(f"s_lshl_b32 s{T2}, s{SN40}, 8")
    A(f"s_cmp_lt_u32 s{SWV}, 6")
    A(f"s_cselect_b32 s{T2}, s{T2}, 0x7ffff000")
    for k in range(4):
        A(f"v_mov_b32 v{8+k}, 0")
    A("v_and_b32 v53, 3, v0")
    A("v_lshlrev_b32 v53, 2, v53")
    A("v_mov_b32 v54, 0x2031")
    A("v_bfe_u32 v55, v54, v53, 4")
    A("v_bfe_u32 v54, v0, 2, 2")
    A(f"v_lshl_add_u32 v54, v{VG}, 5, v54")
    A("v_bfe_u32 v56, v0, 6, 1")
    A("v_lshl_add_u32 v54, v56, 2, v54")
    A("v_bfe_u32 v56, v0, 7, 1")
    A("v_lshl_add_u32 v54, v56, 7, v54")
    A("v_lshl_add_u32 v55, v55, 3, v54")
    A("v_lshl_add_u32 v54, v53, 1, v54")
    A("v_lshlrev_b32 v55, 1, v55")
    A("v_lshlrev_b32 v54, 1, v54")
    A("v_and_b32 v56, 0xff, v0")
    A("v_lshlrev_b32 v57, 1, v56")
    A("v_lshlrev_b32 v56, 2, v56")
    A("s_waitcnt lgkmcnt(0)")
    srd(SX, PX, N * 256)
    A(f"buffer_load_dwordx4 v51, {sr(SX,4)}, s{T2} offen lds")
    A(f"buffer_load_dwordx4 v52, {sr(SX,4)}, s{T2} offen offset:1024 lds")
    srd(SO, PDBG, 256)
    A(f"s_xor_b32 s{T0}, s{SWV}, 7")
    A(f"s_or_b32 s{T0}, s{T0}, s2")
    A("s_cbranch_scc1 K_NOTOK")
    A("s_or_b32 s26, s26, 1")
    A("v_mov_b32 v59, s26")
    A(f"buffer_store_dword v59, v2, {sr(SO,4)}, 0 offen sc1")
    L("K_NOTOK")
    A(f"s_cmp_lt_u32 s{SWV}, 4")
    A("s_cbranch_scc1 K_NOCV")
    srd(SY, PW1, 257 * 512)
    A(f"s_mov_b32 s{T0}, {256*512}")
    A(f"buffer_load_ushort v20, v55, {sr(SY,4)}, s{T0} offen")
    srd(SX, PB1, 512)
    A(f"buffer_load_ushort v21, v54, {sr(SX,4)}, 0 offen")
    srd(SX, PB2, 256)
    A(f"buffer_load_ushort v22, v57, {sr(SX,4)}, 0 offen")
    common_setup()
    A("s_waitcnt vmcnt(0)")
    for k in range(3):
        A(f"v_lshlrev_b32 v{20+k}, 16, v{20+k}")
    A(f"v_mul_f32 v20, s{SC}, v20")
    A(f"ds_write_b32 v56, v21 offset:{L_CV+1024}")
    A(f"ds_write_b32 v56, v20 offset:{L_CV}")
    A(f"s_cmp_ge_u32 s{SWV}, 6")
    A("s_cbranch_scc1 K_AUXW")
    A(f"ds_write_b32 v56, v22 offset:{L_CV+2048}")
    A("s_branch K_AUXW")
    L("K_NOCV")
    common_setup()
    A(f"v_cmp_gt_u32 vcc, {L_HIST//16}, v1")
    A(f"s_and_saveexec_b64 {sr(SEX,2)}, vcc")
    A(f"ds_write_b128 v{VL16}, v[8:11]")
    A(f"s_mov_b64 exec, {sr(SEX,2)}")
    A(f"s_cmp_lg_u32 s{SWV}, 3")
    A("s_cbranch_scc1 K_AUXW")
    A("s_cmp_ge_u32 s2, 8")
    A("s_cbranch_scc1 K_AUXW")
    A(f"s_lshr_b32 s{T0}, s2, 2")
    A(f"s_lshl_b32 s{T0}, s{T0}, 15")
    A(f"s_and_b32 s{T1}, s2, 1")
    A(f"s_lshl_b32 s{T1}, s{T1}, 14")
    A(f"s_add_u32 s{T0}, s{T0}, s{T1}")
    A(f"s_bfe_u32 s{T1}, s2, 0x10001")
    A(f"s_lshl_b32 s{T1}, s{T1}, 10")
    A(f"s_add_u32 s{T0}, s{T0}, s{T1}")
    A(f"v_lshrrev_b32 v24, 1, v{VG}")
    A("v_lshlrev_b32 v24, 13, v24")
    A(f"v_and_b32 v25, 1, v{VG}")
    A("v_lshl_add_u32 v24, v25, 9, v24")
    A(f"v_lshl_add_u32 v24, v{VC}, 4, v24")
    A("v_add_u32 v25, 4096, v24")
    srd(SX, PW2, 256 * 256)
    for jj in range(8):
        p = PI[jj & 3]
        A(f"buffer_load_dwordx4 {vr(WL+4*jj,4)}, v{24 if p < 2 else 25}, {sr(SX,4)}, s{T0} offen offset:{(p&1)*2048 + (jj>>2)*256}")
    A(f"v_lshrrev_b32 v26, 1, v{VC}")
    A(f"s_movk_i32 s{T1}, 1040")
    A(f"v_mul_u32_u24 v26, s{T1}, v26")
    A(f"v_and_b32 v27, 1, v{VC}")
    A("v_lshl_add_u32 v26, v27, 7, v26")
    A(f"v_lshl_add_u32 v26, v{VG}, 8, v26")
    A(f"v_add_u32 v26, {L_Q + 8192}, v26")
    A(f"v_add_u32 v27, {L_Q + 8192}, v{VL16}")
    A(f"s_lshl_b32 s{T0}, s2, 10")
    A(f"s_add_u32 s{T0}, s{T0}, {hex(WS_W2F)}")
    A("s_waitcnt vmcnt(0)")
    for col in range(8):
        perm4(48 + 4*col, col)
        A(f"ds_write_b128 v26, {vr(48+4*col,4)} offset:{16*col}")
    for nt in range(8):
        A(f"ds_read_b128 {vr(WL+4*nt,4)}, v27 offset:{1040*nt}")
        if nt == 5: A("s_waitcnt lgkmcnt(6)")
    for nt in range(8):
        A(f"s_waitcnt lgkmcnt({7-nt})")
        A(f"buffer_store_dwordx4 {vr(WL+4*nt,4)}, v{VL16}, {sr(SW,4)}, s{T0} offen sc1")
        A(f"s_add_u32 s{T0}, s{T0}, 8192")
    A("s_branch K_AUXW2")
    L("K_AUXW")
    A("s_waitcnt vmcnt(0) lgkmcnt(0)")
    L("K_AUXW2")
    A("s_barrier")
    A("v_mov_b32 v8, 0")
    L("K_AUXP")
    late_setup()
    A("v_lshrrev_b32 v12, 5, v0")
    A("v_and_b32 v13, 31, v0")
    A("v_lshlrev_b32 v13, 4, v13")
    A(f"s_movk_i32 s{T1}, {HROW}")
    A(f"v_mad_u32_u24 v12, v12, s{T1}, v13")
    A(f"v_lshrrev_b32 v{VEND}, 1, v0")
    A(f"v_lshlrev_b32 v{VEND}, 11, v{VEND}")
    A(f"s_lshl_b32 s{T0}, s{SN40}, 9")
    A(f"s_add_u32 s{T1}, s{T0}, 8192")
    A(f"s_add_u32 s{T2}, s{T0}, 16384")
    A(f"s_cmp_ge_u32 s{SWV}, 4")
    A(f"s_cselect_b32 s{T2}, 0x7ff00000, s{T2}")
    A(f"s_movk_i32 s{T3}, {2*NB}")
    A(f"v_cmp_gt_u32 {sr(SOWN,2)}, s{T3}, v0")
    A(f"s_mov_b32 s{SRND}, 0x7ff00000")
    A("v_mov_b32 v14, 1")
    A("s_waitcnt lgkmcnt(0)")
    A("s_barrier")
    for k in range(3):
        A(f"ds_read_b128 {vr(48+4*k,4)}, v12 offset:{L_H + 16*k*HROW}")
    A(f"ds_read_b32 v16, v8 offset:{L_FLAG+12}")
    for k in range(3):
        A(f"s_waitcnt lgkmcnt({3-k})")
        A(f"buffer_store_dwordx4 {vr(48+4*k,4)}, v{VT16}, {sr(SW,4)}, s{T0+k} offen sc1")
    A(f"buffer_load_dwordx2 {vr(GRT,2)}, v{VEND}, {sr(SW,4)}, s{SB8} offen sc1")
    stamp(4)
    A("s_barrier")
    A("s_waitcnt vmcnt(1)")
    A("s_mov_b64 exec, 1")
    A(f"ds_add_rtn_u32 v15, v8, v14 offset:{L_FLAG+4}")
    A(f"s_lshl_b32 s{T0}, s2, 4")
    A(f"s_add_u32 s{T0}, s{T0}, {hex(WS_PF)}")
    A("s_waitcnt lgkmcnt(0)")
    A(f"v_readfirstlane_b32 s{STOK}, v16")
    A(f"v_readfirstlane_b32 s{T1}, v15")
    A(f"s_cmp_lg_u32 s{T1}, 7")
    A("s_cbranch_scc1 K_NOPF")
    A(f"buffer_store_dword v16, v8, {sr(SW,4)}, s{T0} offen sc1")
    A("s_waitcnt vmcnt(1)")
    A("s_branch K_PF1")
    L("K_NOPF")
    A("s_waitcnt vmcnt(0)")
    L("K_PF1")
    A("s_mov_b64 exec, -1")
    stamp(5)
    A(f"s_mov_b32 s{SSP}, {SPIN}")
    L("K_OFS")
    A(f"v_cmp_ne_u32 vcc, s{STOK}, v{GRT}")
    A(f"s_and_b64 vcc, vcc, {sr(SOWN,2)}")
    A("s_cbranch_scc0 K_OFSOK")
    A(f"s_sub_u32 s{SSP}, s{SSP}, 1")
    A("s_cbranch_scc1 K_END")
    A("s_mov_b64 exec, vcc")
    A(f"s_sleep {SLP_N}")
    A(f"buffer_load_dwordx2 {vr(GRT,2)}, v{VEND}, {sr(SW,4)}, s{SB8} offen sc1")
    A("s_mov_b64 exec, -1")
    A("s_waitcnt vmcnt(0)")
    A("s_branch K_OFS")
    L("K_OFSOK")
    def rec_setup():
        A(f"v_lshrrev_b32 v{GRT}, 16, v{GRT+1}")
        A(f"v_and_b32 v{GRT+1}, 0xffff, v{GRT+1}")
        A(f"v_cndmask_b32 v{GRT}, 0, v{GRT}, {sr(SOWN,2)}")
        A("v_lshrrev_b32 v32, 1, v0")
        A(f"s_movk_i32 s{T0}, {CH}")
        A(f"v_mad_u32_u24 v{GRT+1}, v32, s{T0}, v{GRT+1}")
        A("v_and_b32 v32, 1, v0")
        A("v_lshlrev_b32 v32, 1, v32")
        A(f"v_add_lshl_u32 v{PZ+1}, v{GRT+1}, v32, 3")
        A(f"v_sub_i32 v{PZ}, v{GRT}, v32")
    def rec_loads(tag):
        A(f"s_mov_b32 s{T0}, {hex(WS_REC)}")
        for k in range(8):
            A(f"v_cmp_lt_i32 {sr(MK[k],2)}, {4*(k>>1) + (k&1)}, v{PZ}")
        A(f"v_cmp_lt_i32 vcc, 16, v{PZ}")
        for k in range(4):
            A(f"s_mov_b64 exec, {sr(MK[2*k],2)}")
            A(f"s_cbranch_execz K_RL{tag}")
            A(f"buffer_load_dwordx4 {vr(RC+4*k,4)}, v{PZ+1}, {sr(SW,4)}, s{T0} offen offset:{32*k} sc1")
        L(f"K_RL{tag}")
        A("s_mov_b64 exec, -1")
        A(f"s_cbranch_vccz K_RM{tag}")
        A("v_mov_b32 v32, 0")
        A("v_mov_b32 v33, 1")
        A(f"ds_write_b32 v32, v33 offset:{L_FLAG}")
        L(f"K_RM{tag}")
    rec_setup()
    rec_loads("0")
    stamp(6)
    L("K_ROUND")
    NL, RK, PS = 64, 72, 80
    A("v_mov_b32 v88, 4")
    A("v_mov_b32 v89, 0")
    A(f"v_mov_b32 v{OUTA}, 0")
    A("s_waitcnt vmcnt(0)")
    A(f"buffer_load_dword v90, v{VT16}, {sr(SW,4)}, s{SRND} offen sc1")
    for k in range(8):
        A(f"s_mov_b64 exec, {sr(MK[k],2)}")
        A("s_cbranch_execz K_R1")
        A(f"v_and_b32 v{NL+k}, 0xfc, v{RC+2*k+1}")
        A(f"ds_add_rtn_u32 v{RK+k}, v{NL+k}, v88")
    L("K_R1")
    A("s_mov_b64 exec, -1")
    A("s_waitcnt lgkmcnt(0)")
    A("s_barrier")
    stamp(7)
    A(f"ds_read_b32 v{VCNT}, v2")
    A(f"ds_read_b32 v91, v89 offset:{L_FLAG}")
    A("s_waitcnt lgkmcnt(1)")
    A(f"v_add_u32_dpp v{VEND}, v{VCNT}, v{VCNT} row_shr:1 row_mask:0xf bank_mask:0xf bound_ctrl:0")
    A(f"v_add_u32 v{VDEG}, v{VDEG}, v{VCNT}")
    for k, ctl in enumerate(SCAN):
        A("s_nop 0" if k == 0 else "s_nop 1")
        A(f"v_add_u32_dpp v{VEND}, v{VEND}, v{VEND} {ctl}")
    A(f"v_sub_u32 v{VB4}, v{VEND}, v{VCNT}")
    A("s_waitcnt lgkmcnt(0)")
    A(f"v_readlane_b32 s{STOT}, v{VEND}, 63")
    for k in range(8):
        A(f"s_cmp_eq_u64 {sr(MK[k],2)}, 0")
        A("s_cbranch_scc1 K_R2")
        A(f"ds_bpermute_b32 v{PS+k}, v{NL+k}, v{VB4}")
    L("K_R2")
    A(f"v_readfirstlane_b32 s{SLP}, v91")
    A(f"s_add_u32 s{T1}, s{STOT}, 60")
    A(f"s_lshr_b32 s{SLEN}, s{T1}, 6")
    A(f"s_lshl_b32 s{T1}, s{SLEN}, 2")
    A(f"s_add_u32 s{T2}, s{T1}, 4")
    A(f"v_cmp_lt_u32 vcc, s{T2}, v{VCNT}")
    A(f"s_and_b32 s{T3}, s{SLEN}, 63")
    A(f"v_readlane_b32 s{T0}, v{VM}, s{T3}")
    A(f"s_andn2_b32 s{SFAST}, s{SFIRST}, s{SMODE}")
    A(f"s_andn2_b32 s{SFAST}, s{SFAST}, s{SLP}")
    A(f"s_cmp_gt_u32 s{STOT}, {4*WIN}")
    A(f"s_cselect_b32 s{SFAST}, 0, s{SFAST}")
    A(f"s_sub_u32 s{T1}, {PRIV_B}, s{T1}")
    A("s_cmp_lg_u64 vcc, 0")
    A(f"s_cselect_b32 s{SFAST}, 0, s{SFAST}")
    A(f"s_mov_b32 s{SW2}, 1")
    A(f"s_cmp_eq_u32 s{SFAST}, 0")
    A("s_waitcnt lgkmcnt(0)")
    A("s_cbranch_scc1 K_WL")
    for k in range(8):
        A(f"s_mov_b64 exec, {sr(MK[k],2)}")
        A("s_cbranch_execz K_WB")
        A(f"v_add_u32 v{PS+k}, v{PS+k}, v{RK+k}")
        A(f"v_mul_u32_u24 v{RK+k}, s{T0}, v{PS+k}")
        A(f"v_lshrrev_b32 v{RK+k}, 18, v{RK+k}")
        A(f"v_mad_u32_u24 v{PS+k}, v{RK+k}, s{T1}, v{PS+k}")
        A(f"ds_write_b32 v{PS+k}, v{RC+2*k} offset:{L_PRIV}")
        A(f"ds_write_b32 v{PS+k}, v{RC+2*k+1} offset:{L_PRIV + PRIV_N*4}")
    L("K_WB")
    A("s_mov_b64 exec, -1")
    A(f"s_cmp_eq_u32 s{SRND}, 0x7ff00000")
    A("s_cbranch_scc1 K_B3")
    A(f"s_movk_i32 s{T0}, {512 + NB}")
    A(f"v_cmp_gt_u32 {sr(TP,2)}, s{T0}, v0")
    A(f"s_mov_b32 s{SSP}, {SPIN}")
    L("K_PFL")
    A("s_waitcnt vmcnt(0)")
    A(f"v_cmp_ne_u32 vcc, s{STOK}, v90")
    A(f"s_and_b64 vcc, vcc, {sr(TP,2)}")
    A("s_cbranch_scc0 K_B3")
    A(f"s_sub_u32 s{SSP}, s{SSP}, 1")
    A("s_cbranch_scc1 K_B3")
    A("s_mov_b64 exec, vcc")
    A(f"s_sleep {SLP_N}")
    A(f"buffer_load_dword v90, v{VT16}, {sr(SW,4)}, s{SRND} offen sc1")
    A("s_mov_b64 exec, -1")
    A("s_branch K_PFL")
    L("K_B3")
    A("s_waitcnt vmcnt(0) lgkmcnt(0)")
    A("s_barrier")
    stamp(8)
    A(f"s_cmp_lg_u32 s{SWV}, 0")
    A("s_cbranch_scc1 K_R4")
    A("ds_write_b32 v2, v89")
    A(f"ds_write_b32 v89, v89 offset:{L_FLAG}")
    L("K_R4")
    A(f"ds_read_b128 {vr(W,4)}, v{VL16} offset:{L_CV}")
    A(f"s_cmp_eq_u32 s{SFAST}, 0")
    A("s_cbranch_scc1 K_SLOW")
    def row_load(d, p, pair=False):
        if not pair:
            A(f"v_add_u32 v{p}, v{p}, v2")
        A(f"buffer_load_dword v{d}, v{p}, {sr(ST,4)}, 0 offen sc1")
        A(f"buffer_load_dword v{d+1}, v{p}, {sr(ST,4)}, 0 offen offset:256 sc1")
    TI = 16
    for k in range(R // 4):
        A(f"ds_read_b128 {vr(TI+4*k,4)}, v{VP} offset:{16*k}")
    A(f"v_add_u32 v{Q+3}, v{VP}, v2")
    A(f"ds_read_b32 v{Q}, v{Q+3} offset:{PRIV_N*4}")
    for k in range(R // 4):
        A(f"ds_read_b128 {vr(EV+4*k,4)}, v{VP} offset:{PRIV_N*4 + 16*k}")
    A(f"ds_read_b128 {vr(OG[0],4)}, v{VP} offset:{R*4}")
    A(f"s_mul_i32 s{T0}, s{SLEN}, s{SWV}")
    A(f"s_add_u32 s{T3}, s{T0}, s{SLEN}")
    A(f"s_lshl_b32 s{T0}, s{T0}, 2")
    A(f"s_lshl_b32 s{T3}, s{T3}, 2")
    A(f"s_min_u32 s{T0}, s{T0}, s{STOT}")
    A(f"s_min_u32 s{T3}, s{T3}, s{STOT}")
    A(f"s_sub_u32 s{SNN}, s{T3}, s{T0}")
    A(f"s_lshr_b32 s{SNN}, s{SNN}, 2")
    for k in range(R):
        if k % 4 == 0:
            A(f"s_waitcnt lgkmcnt({5 - k//4})")
        row_load(DAT + 2*k, TI + k)
    A(f"v_cmp_gt_u32 vcc, s{T0}, v{VB4}")
    A(f"v_cmp_lt_u32 {sr(TP,2)}, s{T0}, v{VEND}")
    A(f"s_and_b64 vcc, vcc, {sr(TP,2)}")
    A(f"s_cselect_b32 s{SLP}, 1, 0")
    A(f"v_cmp_gt_u32 vcc, s{T3}, v{VB4}")
    A(f"v_cmp_lt_u32 {sr(TP,2)}, s{T3}, v{VEND}")
    A(f"s_and_b64 vcc, vcc, {sr(TP,2)}")
    A(f"s_cselect_b32 s{STAIL}, 1, 0")
    A(f"v_cmp_le_u32 vcc, s{SNN}, v1")
    A(f"s_movk_i32 s{T2}, {QROW//4}")
    A(f"s_movk_i32 s{T3}, {HROW//4}")
    A(f"s_mov_b32 s{SREM}, s{SNN}")
    A("s_waitcnt lgkmcnt(0)")
    A(f"v_and_b32 v{Z2}, 0xfc, v{EV}")
    A(f"v_and_b32 v{Q+1}, 0xfc, v{Q}")
    A(f"v_mad_u32_u24 v{Z2+1}, v{Z2}, s{T2}, v{VQ16}")
    A("s_setprio 3")
    A(f"v_mov_b32_dpp v{Q+2}, v{Q+1} wave_shr:1 row_mask:0xf bank_mask:0xf")
    A(f"v_cmp_ne_u32 {sr(SM,2)}, v{Q+1}, v{Q+2}")
    A(f"ds_read_b128 {vr(Q,4)}, v{Z2+1}")
    A(f"s_or_b64 {sr(SM,2)}, {sr(SM,2)}, vcc")
    for k in range(4):
        A(f"v_add_u32 v{OG[0]+k}, v{OG[0]+k}, v2")
    def tail_prep():
        A(f"v_lshlrev_b32 v{Z+1}, 2, v{VC}")
        A(f"v_lshlrev_b32 v{Z+2}, 4, v{VG}")
        for mt in range(3):
            A(f"v_add_u32 v{T+3}, {64*mt}, v{Z+1}")
            A(f"ds_bpermute_b32 v{T+mt}, v{T+3}, v{VDEG}")
        A(f"s_lshl_b32 s{T0}, s{SWV}, 6")
        A(f"v_add_u32 v{Z+3}, s{T0}, v{Z+2}")
        A(f"ds_read_b128 {vr(B2F,4)}, v{Z+3} offset:{L_CV+2048}")
        A(f"s_movk_i32 s{T1}, {HROW}")
        A(f"v_mad_u32_u24 v{AD}, v{VC}, s{T1}, v{Z+2}")
        A(f"v_lshlrev_b32 v{OUTA}, 8, v{VC}")
        A(f"v_lshl_add_u32 v{OUTA}, v{VG}, 3, v{OUTA}")
        A(f"v_add_u32 v{Z+2}, {L_ZROW}, v{Z+2}")
        A(f"v_add_u32 v{AD+2}, {L_H + 32*HROW}, v{AD}")
        A(f"v_add_u32 v{AD+1}, {L_H + 16*HROW}, v{AD}")
        A(f"v_add_u32 v{AD}, {L_H}, v{AD}")
        A("s_waitcnt lgkmcnt(0)")
        for mt in range(3):
            A(f"v_cmp_eq_u32 vcc, 0, v{T+mt}")
            A(f"v_cvt_f32_u32 v{T+mt}, v{T+mt}")
            A(f"v_mul_f32 v{T+mt}, 0x3e800000, v{T+mt}")
            A(f"v_cndmask_b32 v{AD+mt}, v{AD+mt}, v{Z+2}, vcc")
            sel = "op_sel_hi:[1,0]" if mt % 2 == 0 else "op_sel:[0,1]"
            A(f"v_pk_mul_f32 {vr(OV+4*mt,2)}, {vr(B2F,2)}, {vr(T+(mt&2),2)} {sel}")
            A(f"v_pk_mul_f32 {vr(OV+4*mt+2,2)}, {vr(B2F+2,2)}, {vr(T+(mt&2),2)} {sel}")
    def w2_load():
        A(f"s_mov_b32 s{SW2}, 0")
        A(f"s_lshl_b32 s{T0}, s{SWV}, 13")
        A(f"s_add_u32 s{T0}, s{T0}, {hex(WS_W2F)}")
        A(f"s_add_u32 s{T1}, s{T0}, 4096")
        for k in range(8):
            A(f"buffer_load_dwordx4 {vr(W2R+4*k,4)}, v{VL16}, {sr(SW,4)}, s{T0 + k//4} offen offset:{(k%4)*1024} sc1")
    A(f"s_cmp_ge_u32 s{SWV}, 8")
    A("s_cbranch_scc1 K_NOTP")
    tail_prep()
    L("K_NOTP")
    A(f"v_mov_b32 v{LO}, v{Z2}")
    A(f"v_mov_b32 v{PZ}, 0")
    A(f"v_mov_b32 v{PZ+1}, 0")
    VW = 2 * (R - 1)
    if STAMP:
        A(f"s_waitcnt vmcnt({VW})")
        stamp(9)
    A(f"s_cmp_eq_u32 s{SNN}, 0")
    A("s_cbranch_scc1 K_WDONE")
    A("s_branch K_HC0")

    def e_sel(s):
        base = EV + (s & ~1)
        return (vr(base, 2), "op_sel_hi:[1,0,1]") if s % 2 == 0 else (vr(base, 2), "op_sel:[0,1,0]")
    def part_z1(s, z):
        ep, es = e_sel(s)
        return [f"v_pk_fma_f32 {vr(z,2)}, {vr(W,2)}, {ep}, {vr(Q,2)} {es}",
                f"v_pk_fma_f32 {vr(z+2,2)}, {vr(W+2,2)}, {ep}, {vr(Q+2,2)} {es}"]
    def part_z2(s, z, zo=None, lo=LO):
        d = DAT + 2*s
        zo = z if zo is None else zo
        return [f"v_lshlrev_b64 {vr(lo,2)}, 16, {vr(d,2)}",
                f"v_pk_fma_f32 {vr(zo,2)}, {vr(d,2)}, {C2}, {vr(z,2)}",
                f"v_pk_fma_f32 {vr(zo+2,2)}, {vr(lo,2)}, {C2}, {vr(z+2,2)}"]
    def part_exp(z): return [f"v_exp_f32 v{T+k}, v{z+k}" for k in range(4)]
    def part_nd(z):
        return [f"v_pk_fma_f32 {vr(NN,2)}, {vr(NN,2)}, {vr(T,2)}, {vr(NN,2)}",
                f"v_pk_fma_f32 {vr(NN+2,2)}, {vr(NN+2,2)}, {vr(T+2,2)}, {vr(NN+2,2)}",
                f"v_pk_fma_f32 {vr(NN,2)}, {vr(z,2)}, {vr(DD,2)}, {vr(NN,2)}",
                f"v_pk_fma_f32 {vr(NN+2,2)}, {vr(z+2,2)}, {vr(DD+2,2)}, {vr(NN+2,2)}",
                f"v_pk_fma_f32 {vr(DD,2)}, {vr(DD,2)}, {vr(T,2)}, {vr(DD,2)}",
                f"v_pk_fma_f32 {vr(DD+2,2)}, {vr(DD+2,2)}, {vr(T+2,2)}, {vr(DD+2,2)}"]
    def addr_prep(k):
        A("s_waitcnt lgkmcnt(0)")
        A(f"v_pk_add_f32 {vr(OG[k],2)}, {vr(OG[k],2)}, v[2:3] op_sel:[0,1]")
        A(f"v_pk_add_f32 {vr(OG[k]+2,2)}, {vr(OG[k]+2,2)}, v[2:3] op_sel:[0,1]")
    def refill(s):
        og = OG[(s // 4) % 2]
        if s % 4 == 0:
            A(f"ds_read_b128 {vr(OG[(s//4+1)%2],4)}, v{VP} offset:{(R+s+4)*4}")
        row_load(DAT + 2*s, og + s % 4, pair=True)
        if s % 4 == 3:
            addr_prep((s // 4 + 1) % 2)
            A(f"ds_read_b128 {vr(EV+s-3,4)}, v{VP} offset:{PRIV_N*4 + (R+s-3)*4}")
    L("K_LOOP")
    for g in range(R // 4):
        L(f"K_G{g}")
        A(f"s_and_b32 s{T0}, s{SM}, {hex(0xF << (4*g))}")
        A(f"s_cbranch_scc1 K_S{4*g}")
        zz = [Z, Z2]
        s0 = 4*g
        for x in part_z1(s0, zz[0]): A(x)
        A(f"s_waitcnt vmcnt({VW})")
        for x in part_z2(s0, zz[0]): A(x)
        refill(s0)
        for k in range(4):
            s = s0 + k
            z, zn = zz[k % 2], zz[(k + 1) % 2]
            ex, nd = part_exp(z), part_nd(z)
            if k < 3:
                a, b = part_z1(s + 1, zn), part_z2(s + 1, zn)
                A(ex[0]); A(a[0]); A(ex[1]); A(a[1]); A(ex[2])
                A(f"s_waitcnt vmcnt({VW})")
                A(b[0]); A(ex[3]); A(nd[0]); A(b[1]); A(nd[1]); A(nd[2]); A(b[2]); A(nd[3])
                refill(s + 1)
                A(nd[4]); A(nd[5])
            else:
                for x in ex + nd: A(x)
    L("K_PEND")
    A(f"v_add_u32 v{VP}, {R*4}, v{VP}")
    A(f"s_lshr_b64 {sr(SM,2)}, {sr(SM,2)}, {R}")
    A(f"s_sub_u32 s{SREM}, s{SREM}, {R}")
    for thr, p in PRIO_T:
        A(f"s_cmp_gt_u32 s{SREM}, {thr}")
        A("s_cbranch_scc1 K_LOOP")
        A(f"s_setprio {p}")
    A(f"s_cmp_ge_u32 s{SWV}, 8")
    A("s_cbranch_scc1 K_LOOP")
    A(f"s_cmp_eq_u32 s{SW2}, 0")
    A("s_cbranch_scc1 K_LOOP")
    w2_load()
    A("s_branch K_LOOP")
    for s in range(R):
        L(f"K_S{s}")
        A(f"s_bitcmp1_b32 s{SM}, {s}")
        A(f"s_cbranch_scc1 K_H{s}")
        for x in part_z1(s, Z): A(x)
        A(f"s_waitcnt vmcnt({VW})")
        for x in part_z2(s, Z) + part_exp(Z) + part_nd(Z): A(x)
        L(f"K_J{s}")
        refill(s)
        if s % 4 == 3:
            A(f"s_branch K_G{s//4+1}" if s + 1 < R else "s_branch K_PEND")
    def fold():
        for k in range(4):
            A(f"v_rcp_f32 v{T+k}, v{DD+k}")
        A(f"v_pk_fma_f32 {vr(PZ,2)}, {vr(DD,2)}, {vr(NN,2)}, {vr(PZ,2)}")
        A(f"v_pk_fma_f32 {vr(PZ,2)}, {vr(DD+2,2)}, {vr(NN+2,2)}, {vr(PZ,2)}")
        A(f"v_pk_mul_f32 {vr(Z,2)}, {vr(NN,2)}, {vr(T,2)}")
        A(f"v_pk_mul_f32 {vr(Z+2,2)}, {vr(NN+2,2)}, {vr(T+2,2)}")
    def lead_flush():
        A(f"v_add_u32 v{Z2}, s{SSIDE}, v{VL16}")
        A(f"s_lshl_b32 s{T0}, s{SWV}, 2")
        A(f"v_mov_b32 v{Z2+1}, s{T0}")
        A(f"v_mov_b32 v{Z2+2}, 1")
        A(f"ds_write_b128 v{Z2}, {vr(Z,4)}")
        A(f"ds_write_b32 v{Z2+1}, v{Z2+2} offset:{L_SFL}")
        A(f"s_mov_b32 s{SLP}, 0")
    for s in range(R):
        L(f"K_H{s}")
        A(f"s_cmp_eq_u32 s{SREM}, {s}")
        A("s_cbranch_scc1 K_LAST")
        A(f"v_and_b32 v{LO}, 0xfc, v{EV+s}")
        A(f"v_mad_u32_u24 v{LO+1}, v{LO}, s{T2}, v{VQ16}")
        A(f"ds_read_b128 {vr(Q,4)}, v{LO+1}")
        fold()
        A(f"s_cmp_lg_u32 s{SLP}, 0")
        A(f"s_cbranch_scc1 K_LS{s}")
        A(f"v_cvt_pk_bf16_f32 v{Z}, v{Z}, v{Z+1}")
        A(f"v_cvt_pk_bf16_f32 v{Z+1}, v{Z+2}, v{Z+3}")
        A(f"ds_write_b64 v{VA}, {vr(Z,2)}")
        L(f"K_HC{s}")
        A(f"v_mad_u32_u24 v{VA}, v{LO}, s{T3}, v{VH8}")
        A(f"s_waitcnt vmcnt({VW}) lgkmcnt(0)")
        for x in part_z1(s, Z) + part_z2(s, Z, NN) + part_exp(NN): A(x)
        A(f"v_pk_add_f32 {vr(DD,2)}, {vr(T,2)}, 1.0 op_sel_hi:[1,0]")
        A(f"v_pk_add_f32 {vr(DD+2,2)}, {vr(T+2,2)}, 1.0 op_sel_hi:[1,0]")
        A(f"s_branch K_J{s}")
        L(f"K_LS{s}")
        lead_flush()
        A(f"s_branch K_HC{s}")
    L("K_LAST")
    A(f"s_lshl_b32 s{T0}, s{SWV}, 2")
    A(f"v_mov_b32 v{LO}, s{T0}")
    A(f"v_add_u32 v{LO+1}, s{SSIDE}, v{VL16}")
    A(f"ds_read_b32 v{Z2}, v{LO} offset:{L_SFL+4}")
    A(f"ds_read_b128 {vr(Q,4)}, v{LO+1} offset:1024")
    fold()
    A(f"s_cmp_eq_u32 s{SLP}, 0")
    A("s_cbranch_scc1 K_L1")
    A("s_waitcnt lgkmcnt(0)")
    lead_flush()
    A("s_branch K_WDONE")
    L("K_L1")
    A(f"s_cmp_eq_u32 s{STAIL}, 0")
    A("s_cbranch_scc1 K_L3")
    A(f"s_mov_b32 s{SSP}, {SPIN}")
    L("K_L2")
    A("s_waitcnt lgkmcnt(0)")
    A(f"v_readfirstlane_b32 s{T0}, v{Z2}")
    A(f"s_cmp_lg_u32 s{T0}, 0")
    A("s_cbranch_scc1 K_L2B")
    A(f"s_sub_u32 s{SSP}, s{SSP}, 1")
    A("s_cbranch_scc1 K_L2B")
    A("s_sleep 2")
    A(f"ds_read_b32 v{Z2}, v{LO} offset:{L_SFL+4}")
    A(f"ds_read_b128 {vr(Q,4)}, v{LO+1} offset:1024")
    A("s_branch K_L2")
    L("K_L2B")
    A(f"v_pk_add_f32 {vr(Z,2)}, {vr(Z,2)}, {vr(Q,2)}")
    A(f"v_pk_add_f32 {vr(Z+2,2)}, {vr(Z+2,2)}, {vr(Q+2,2)}")
    L("K_L3")
    A(f"v_cvt_pk_bf16_f32 v{Z}, v{Z}, v{Z+1}")
    A(f"v_cvt_pk_bf16_f32 v{Z+1}, v{Z+2}, v{Z+3}")
    A(f"ds_write_b64 v{VA}, {vr(Z,2)}")
    L("K_WDONE")
    stamp(10)
    A(f"v_add_f32 v{T}, v{PZ}, v{PZ+1}")
    A(f"v_mov_b32 v{Z2+1}, 0x207")
    A(f"v_cmp_class_f32 vcc, v{T}, v{Z2+1}")
    A(f"v_mov_b32 v{Z2+2}, 0")
    A(f"s_mov_b32 s{TP}, {hex(C_NLN2)}")
    srd(SO, POUT, N * D * 2)
    A("s_cbranch_vccz K_NOG")
    A(f"ds_write_b32 v{Z2+2}, v{Z2+1} offset:{L_FLAG+8}")
    L("K_NOG")
    A(f"s_cmp_ge_u32 s{SWV}, 8")
    A("s_cbranch_scc1 K_B4")
    A(f"s_cmp_eq_u32 s{SW2}, 0")
    A("s_cbranch_scc1 K_B4")
    w2_load()
    L("K_B4")
    A("s_waitcnt vmcnt(0) lgkmcnt(0)")
    A("s_barrier")
    stamp(11)
    A(f"ds_read_b32 v{Z2+3}, v{Z2+2} offset:{L_FLAG+8}")
    A(f"s_cmp_ge_u32 s{SWV}, 8")
    A("s_cbranch_scc1 K_CHK")
    HB = [48 + 4*k for k in range(8)]
    ACC = [12, 16, 20]
    seq = [(mt, s) for mt in range(3) for s in range(8)]
    PRE = 7
    for k in range(PRE):
        mt, s = seq[k]
        A(f"ds_read_b128 {vr(HB[k%8],4)}, v{AD+mt} offset:{s*64}")
    def epi(mt):
        for r in range(4):
            A(f"v_fma_f32 v{OV+4*mt+r}, v{ACC[mt]+r}, s{TP}, v{OV+4*mt+r}")
        A(f"v_cvt_pk_bf16_f32 v{32+2*mt}, v{OV+4*mt}, v{OV+4*mt+1}")
        A(f"v_cvt_pk_bf16_f32 v{33+2*mt}, v{OV+4*mt+2}, v{OV+4*mt+3}")
    for k, (mt, s) in enumerate(seq):
        if k + PRE < 24:
            m2, s2 = seq[k+PRE]
            A(f"ds_read_b128 {vr(HB[(k+PRE)%8],4)}, v{AD+m2} offset:{s2*64}")
        A(f"s_waitcnt lgkmcnt({min(PRE, 23-k)})")
        c = "0" if s == 0 else vr(ACC[mt], 4)
        A(f"v_mfma_f32_16x16x32_bf16 {vr(ACC[mt],4)}, {vr(W2R+4*s,4)}, {vr(HB[k%8],4)}, {c}")
        if s == 4 and mt > 0:
            epi(mt - 1)
    A("s_nop 7")
    epi(2)
    L("K_CHK")
    A("s_waitcnt lgkmcnt(0)")
    A(f"v_readfirstlane_b32 s{T2}, v{Z2+3}")
    A(f"s_lshl_b32 s{T1}, s{SMODE}, 31")
    A(f"s_or_b32 s{T2}, s{T2}, s{T1}")
    A(f"s_cmp_gt_i32 s{T2}, 0")
    A("s_cbranch_scc1 K_REDO")
    A(f"s_cmp_ge_u32 s{SWV}, 8")
    A("s_cbranch_scc1 K_END2")
    A(f"s_add_u32 s{T2}, s{SOUT}, 4096")
    A(f"s_add_u32 s{T1}, s{SOUT}, 8192")
    A(f"buffer_store_dwordx2 v[32:33], v{OUTA}, {sr(SO,4)}, s{SOUT} offen")
    A(f"buffer_store_dwordx2 v[34:35], v{OUTA}, {sr(SO,4)}, s{T2} offen")
    A(f"s_mov_b64 exec, {sr(SQM,2)}")
    A(f"buffer_store_dwordx2 v[36:37], v{OUTA}, {sr(SO,4)}, s{T1} offen")
    A("s_mov_b64 exec, -1")
    L("K_END2")
    if STAMP:
        stamp(12)
        A("s_waitcnt vmcnt(0)")
        stamp(13)
        A(f"v_writelane_b32 v{VST}, s26, 14")
        A(f"s_lshl_b32 s{T0}, s2, 4")
        A(f"s_add_u32 s{T0}, s{T0}, s{SWV}")
        A(f"s_lshl_b32 s{T0}, s{T0}, 8")
        A(f"s_add_u32 s{T0}, s{T0}, {hex(WS_DBG)}")
        A(f"buffer_store_dword v{VST}, v2, {sr(SW,4)}, s{T0} offen")
    L("K_END")
    A("s_endpgm")

    L("K_WL")
    for k in range(8):
        A(f"s_mov_b64 exec, {sr(MK[k],2)}")
        A("s_cbranch_execz K_WB")
        A(f"v_add_lshl_u32 v{PS+k}, v{PS+k}, v{RK+k}, 1")
        A(f"ds_write_b64 v{PS+k}, {vr(RC+2*k,2)} offset:{L_LIST}")
    A("s_branch K_WB")
    L("K_REDO")
    A(f"s_mov_b32 s{SMODE}, 1")
    A("s_setprio 0")
    A("v_lshrrev_b32 v31, 1, v0")
    A("v_lshlrev_b32 v31, 11, v31")
    A(f"buffer_load_dwordx2 {vr(GRT,2)}, v31, {sr(SW,4)}, s{SB8} offen sc1")
    A(f"s_movk_i32 s{T0}, {2*NB}")
    A(f"v_cmp_gt_u32 {sr(SOWN,2)}, s{T0}, v0")
    A(f"v_and_b32 v{VC}, 15, v1")
    A(f"v_lshrrev_b32 v{VG}, 4, v1")
    A("s_waitcnt vmcnt(0)")
    rec_setup()
    rec_loads("1")
    A(f"v_mov_b32 v{VDEG}, 0")
    A(f"s_mov_b32 s{SFIRST}, 1")
    A("s_branch K_ROUND")
    L("K_SLOW")
    A(f"s_cmp_eq_u32 s{SFIRST}, 0")
    A("s_cbranch_scc1 K_SL0")
    for k in range(12):
        A(f"v_mov_b32 v{SACC+k}, 0")
    L("K_SL0")
    for i in range(3):
        A(f"s_add_u32 s{T0}, s{SWV}, {16*i}")
        A(f"v_readlane_b32 s{T1}, v{VB4}, s{T0}")
        A(f"v_readlane_b32 s{T2}, v{VCNT}, s{T0}")
        A(f"s_mul_i32 s{T3}, s{T0}, {QROW}")
        A(f"s_cmp_eq_u32 s{T2}, 0")
        A(f"s_cbranch_scc1 K_SLN{i}")
        A(f"v_add_u32 v{Z2}, s{T3}, v{VQ16}")
        A(f"ds_read_b128 {vr(Q,4)}, v{Z2}")
        A(f"s_lshl_b32 s{T1}, s{T1}, 1")
        A(f"v_mov_b32 v{VA}, s{T1}")
        L(f"K_SLL{i}")
        A(f"ds_read_b64 {vr(EV,2)}, v{VA} offset:{L_LIST}")
        A(f"v_add_u32 v{VA}, 8, v{VA}")
        A("s_waitcnt lgkmcnt(0)")
        row_load(DAT + 2, EV)
        for x in part_z1(1, Z): A(x)
        A("s_waitcnt vmcnt(0)")
        for x in part_z2(1, Z, lo=NN) + part_exp(Z): A(x)
        A("s_nop 0")
        for k in range(4):
            A(f"v_add_f32 v{T+k}, 1.0, v{T+k}")
        for k in range(4):
            A(f"v_rcp_f32 v{T+k}, v{T+k}")
        A(f"s_sub_u32 s{T2}, s{T2}, 4")
        for k in range(4):
            A(f"v_fmac_f32 v{SACC+4*i+k}, v{Z+k}, v{T+k}")
        A(f"s_cmp_lg_u32 s{T2}, 0")
        A(f"s_cbranch_scc1 K_SLL{i}")
        L(f"K_SLN{i}")
    A(f"s_mov_b32 s{SFIRST}, 0")
    A("s_waitcnt lgkmcnt(0)")
    A("s_barrier")
    A(f"s_cmp_eq_u32 s{SLP}, 0")
    A("s_cbranch_scc1 K_SLFIN")
    A(f"v_add_u32 v{PZ}, -16, v{PZ}")
    A(f"v_add_u32 v{PZ+1}, 128, v{PZ+1}")
    rec_loads("2")
    A("s_branch K_ROUND")
    L("K_SLFIN")
    A(f"v_mov_b32 v{PZ}, 0")
    A(f"v_mov_b32 v{PZ+1}, 0")
    for i in range(3):
        if i == 2:
            A(f"s_cmp_ge_u32 s{SWV}, {NPB-32}")
            A("s_cbranch_scc1 K_WDONE")
        A(f"s_add_u32 s{T0}, s{SWV}, {16*i}")
        A(f"s_mul_i32 s{T0}, s{T0}, {HROW}")
        A(f"v_add_u32 v{Z2}, s{T0}, v{VH8}")
        A(f"v_cvt_pk_bf16_f32 v{Z}, v{SACC+4*i}, v{SACC+4*i+1}")
        A(f"v_cvt_pk_bf16_f32 v{Z+1}, v{SACC+4*i+2}, v{SACC+4*i+3}")
        A(f"ds_write_b64 v{Z2}, {vr(Z,2)}")
    tail_prep()
    A("s_branch K_WDONE")
    L("K_CODE_END")

hdr = f"""; Kernarg layout for this problem (88 bytes, ptrs only, base s[0:1]):
; @launch grid=({NB},1,1) block=(1024,1,1) lds={LDS}
.amdgcn_target "amdgcn-amd-amdhsa--gfx950"
"""
gen()
vg = 128
out.extend(['.section .rodata,"a"', ".p2align 6", f".amdhsa_kernel {KN}",
    f"  .amdhsa_next_free_vgpr {vg}", f"  .amdhsa_next_free_sgpr 102", f"  .amdhsa_accum_offset {vg}",
    "  .amdhsa_group_segment_fixed_size 0", "  .amdhsa_kernarg_size 88", "  .amdhsa_user_sgpr_count 2",
    "  .amdhsa_user_sgpr_kernarg_segment_ptr 1", "  .amdhsa_system_sgpr_workgroup_id_x 1", ".end_amdhsa_kernel"])
txt = hdr + "\n".join(out) + "\n"
dst = sys.argv[1] if len(sys.argv) > 1 else f"fused.s"
open(dst, "w").write(txt)
print("wrote", dst, "LDS", LDS)
```

```python
import sys, struct, os

NAME = "standalone__edge_featured_mpnn_mpnn__graph"
KN = NAME + "_kernel"
N, E, D, H = 10000, 160000, 128, 256
NB, NPB, CH = 250, 40, 640
WS_REC = 0x500000
WS_OFS = 0x680000
WS_PF = 0x700000
WS_W2F = 0x710000
WS_DBG = 0x2000000
WS_BYTES = 0x10000000
R = 8
PRIO_T = eval(os.environ.get("PRIO_T", "((32, 2), (21, 1), (10, 0))"))
STAMP = os.environ.get("STAMP", "0") == "1"
PI = [1, 3, 0, 2]
FBASE = 0x4B000000
SPIN = 1 << 16
SLP_N = int(os.environ.get('SLP', '2'))

def f32bits(x): return struct.unpack("<I", struct.pack("<f", x))[0]
C_NLOG2E = f32bits(-1.4426950408889634)
C_NLN2 = f32bits(-0.6931471805599453)

out = []
def A(s): out.append("    " + s)
def L(s): out.append(s + ":")
def CM(s): out.append("    ; " + s)
def vr(a, n): return f"v[{a}:{a+n-1}]"
def sr(a, n): return f"s[{a}:{a+n-1}]"

PX, PE, PSRC, PDST, PW1, PB1, PW2, PB2 = 4, 6, 8, 10, 12, 14, 16, 18
POUT, PDBG, PWS = 20, 22, 24

def srd(dst, base, nrec, off=None):
    if off is not None:
        A(f"s_add_u32 s{dst}, s{base}, {off}")
        A(f"s_addc_u32 s{dst+1}, s{base+1}, 0")
        src1 = dst + 1
    else:
        A(f"s_mov_b32 s{dst}, s{base}")
        src1 = base + 1
    A(f"s_and_b32 s{dst+1}, s{src1}, 0xffff")
    A(f"s_mov_b32 s{dst+2}, {hex(nrec)}")
    A(f"s_mov_b32 s{dst+3}, 0x20000")

NST = 0
def stamp(k):
    if STAMP: A(f"s_memrealtime s[100:101]"); A("s_waitcnt lgkmcnt(0)"); A(f"v_writelane_b32 v{VST}, s100, {k}")

QROW, HROW, PROW = 1040, 528, 272
L_CNT, L_FLAG, L_SFL, L_ZROW, L_GC, L_TOK = 0, 256, 272, 352, 864, 892
L_CV = 896
L_HIST = L_CV + 2560
L_PRIV = L_HIST + 1024
ZERO_B = L_PRIV
PRIV_N = 64 + R + 8
PRIV_B = PRIV_N * 8
L_H = L_PRIV + 16 * PRIV_B
L_XT = L_H + NPB * HROW
L_SIDE = L_XT
L_Q = L_XT + 20480
L_S = L_Q + NPB * QROW
L_SB = L_H + 10240
L_PT = L_Q
LDS = L_S + 65536
L_LIST = L_HIST
assert LDS <= 163840 and L_XT - L_LIST >= 32000 and L_H % 16 == 0 and L_Q % 16 == 0 and L_S % 16 == 0 and L_XT % 16 == 0
W1B_EARLY = 0
W1B_AT = int(os.environ.get("W1BAT", "2"))
PD0 = int(os.environ.get("PD0", "0"))
WIN = 16 * 63
DUMMY = FBASE + 0x7FF000

VLF, VH8, VL16, VT16, VQ16 = 3, 4, 5, 6, 7
W, Q, NN, DD, Z, Z2, T, LO, PZ = 8, 12, 16, 20, 24, 28, 32, 36, 38
VA, VP, VDEG, VB4, VCNT, VPL, VM, VEND = 40, 41, 42, 43, 44, 45, 46, 47
EV, OG, DAT = 48, [56, 60], 64
AD, OUTA, OV, B2F = 80, 83, 84, 92
XF = 48
WL, PT = 96, 112
W2R = 96
RC = 96
VST = 45
SACC = 112

def gen():
    out.extend([".text", f".globl {KN}", ".p2align 8", f".type {KN},@function"])
    L(KN)
    ST, SW, SO, SX, SY, SZ = 28, 32, 36, 40, 44, 48
    MK = [4 + 2*k for k in range(8)]
    SC = 60
    SMODE, SFIRST, SRND, SFAST, STOK, SSP = 62, 63, 64, 65, 66, 67
    SM = 68
    SREM, STOT, SLP, SNN, SWV = 70, 71, 72, 73, 3
    SN40, SEX = 74, 76
    T0, T1, T2, T3, TP = 78, 79, 80, 81, 82
    STAIL, SSIDE, SLEN, SOUT, SWO = 84, 85, 86, 87, 88
    SQM, P0, P1 = 90, 92, 93
    SB8, SW2, SOWN, STAG, SN80, SCB = 75, 89, 52, 54, 55, 56
    C2 = sr(SC, 2)
    SCAN = ("row_shr:2 row_mask:0xf bank_mask:0xf bound_ctrl:0", "row_shr:4 row_mask:0xf bank_mask:0xf bound_ctrl:0",
            "row_shr:8 row_mask:0xf bank_mask:0xf bound_ctrl:0", "row_bcast:15 row_mask:0xa bank_mask:0xf", "row_bcast:31 row_mask:0xc bank_mask:0xf")
    VC, VG = 36, 37
    GRT = 34
    VZ, VONE = VEND, VM

    A("s_load_dwordx16 s[4:19], s[0:1], 0")
    A("s_load_dwordx4 s[20:23], s[0:1], 64")
    A("s_load_dwordx2 s[24:25], s[0:1], 80")
    A("s_memrealtime s[26:27]")
    CM("pull the code towards the L2 right away (one load per 128-B line; lanes past the code are out of range)")
    A(f"s_getpc_b64 {sr(SX,2)}")
    L("K_PC0")
    A("v_lshlrev_b32 v126, 7, v0")
    A(f"s_and_b32 s{SX+1}, s{SX+1}, 0xffff")
    A(f"s_mov_b32 s{SX+2}, K_CODE_END-K_PC0")
    A(f"s_mov_b32 s{SX+3}, 0x20000")
    A(f"buffer_load_dword v{VDEG}, v126, {sr(SX,4)}, 0 offen")
    A(f"s_cmp_ge_u32 s2, {NB}")
    A("s_cbranch_scc1 K_END")
    A("v_and_b32 v1, 63, v0")
    A("v_lshrrev_b32 v48, 6, v0")
    A(f"v_lshlrev_b32 v{VT16}, 4, v0")
    A(f"v_readfirstlane_b32 s{SWV}, v48")
    A("v_lshlrev_b32 v2, 2, v1")
    A(f"v_lshlrev_b32 v{VL16}, 4, v1")
    A(f"v_and_b32 v{VC}, 15, v1")
    A(f"v_lshrrev_b32 v{VG}, 4, v1")
    if STAMP: A(f"v_mov_b32 v{VST}, 0")
    A(f"v_mov_b32 v{VZ}, 0")
    A(f"v_mov_b32 v{VONE}, 1")
    for k in range(4):
        A(f"v_mov_b32 v{8+k}, 0")
    A(f"s_movk_i32 s{T0}, {ZERO_B//16}")
    A(f"v_cmp_gt_u32 vcc, s{T0}, v0")
    A(f"s_mul_i32 s{SN40}, s2, {NPB}")
    A(f"s_lshr_b32 s{SN80}, s2, 1")
    A(f"s_mul_i32 s{SN80}, s{SN80}, 80")
    A(f"s_and_b32 s{SCB}, s2, 1")
    A(f"s_and_saveexec_b64 {sr(SEX,2)}, vcc")
    A("s_cbranch_execz K_Z1")
    A(f"ds_write_b128 v{VT16}, v[8:11]")
    L("K_Z1")
    A(f"s_mov_b64 exec, {sr(SEX,2)}")
    A(f"s_mov_b32 s{P0}, 0x05040100")
    A(f"s_mov_b32 s{P1}, 0x07060302")
    A(f"s_mov_b32 s{SC}, {hex(C_NLOG2E)}")
    A(f"s_mov_b32 s{SC+1}, {hex(C_NLOG2E)}")
    A(f"s_mul_i32 s{SW2}, s{SWV}, {PRIV_B}")
    A(f"s_add_u32 s{SW2}, s{SW2}, {L_PRIV}")
    A(f"v_add_u32 v30, s{SW2}, v2")
    A(f"v_mov_b32 v31, {hex(DUMMY)}")
    A("ds_write_b32 v30, v31")
    A(f"ds_write_b32 v30, v31 offset:{(PRIV_N-64)*4}")
    A(f"s_cmp_lt_u32 s{SWV}, 8")
    A("s_cbranch_scc1 K_AUX")
    def common_setup():
        srd(SW, PWS, WS_BYTES)
        A(f"s_lshl_b32 s{SSIDE}, s{SWV}, 10")
        A(f"s_add_u32 s{SSIDE}, s{SSIDE}, {L_SIDE}")
        A(f"s_mov_b32 s{SMODE}, 0")
        A(f"s_sub_u32 s{ST}, s{PWS}, {hex(FBASE)}")
        A(f"s_subb_u32 s{ST+1}, s{PWS+1}, 0")
        A(f"s_and_b32 s{ST+1}, s{ST+1}, 0xffff")
        A(f"s_mov_b32 s{ST+2}, {hex(FBASE + N*512)}")
        A(f"s_mov_b32 s{ST+3}, 0x20000")
        A(f"s_lshl_b32 s{SB8}, s2, 3")
        A(f"s_add_u32 s{SB8}, s{SB8}, {hex(WS_OFS)}")
        A(f"v_cvt_f32_u32 v{VLF}, v2")
        A(f"v_lshlrev_b32 v{VH8}, 3, v1")
        A(f"v_add_u32 v{VH8}, {L_H}, v{VH8}")
        A(f"v_add_u32 v{VQ16}, {L_Q}, v{VL16}")
        A(f"v_cmp_gt_u32 {sr(SQM,2)}, 8, v{VC}")
        A(f"s_lshl_b32 s{SOUT}, s{SN40}, 8")
        A(f"s_lshl_b32 s{T2}, s{SWV}, 5")
        A(f"s_add_u32 s{SOUT}, s{SOUT}, s{T2}")
        A(f"s_mov_b32 s{SFIRST}, 1")
    uid = [0]
    def arrive(c):
        A("s_mov_b64 exec, 1")
        A(f"ds_add_u32 v{VZ}, v{VONE} offset:{L_GC + 4*c}")
        A("s_mov_b64 exec, -1")
    def await_lds(off, n, vt, sdst, nonzero=False):
        uid[0] += 1; u = uid[0]
        A(f"s_mov_b32 s{SSP}, {SPIN*16}")
        L(f"K_AW{u}")
        A(f"ds_read_b32 v{vt}, v{VZ} offset:{off}")
        A("s_waitcnt lgkmcnt(0)")
        A(f"v_readfirstlane_b32 s{sdst}, v{vt}")
        A(f"s_cmp_lg_u32 s{sdst}, 0" if nonzero else f"s_cmp_ge_u32 s{sdst}, {n}")
        A(f"s_cbranch_scc1 K_AWD{u}")
        A(f"s_sub_u32 s{SSP}, s{SSP}, 1")
        A("s_cbranch_scc1 K_END")
        A("s_sleep 1")
        A(f"s_branch K_AW{u}")
        L(f"K_AWD{u}")
    def perm4(dst, col):
        for pr in range(4):
            a, b = WL + 8*pr + (col >> 1), WL + 8*pr + 4 + (col >> 1)
            A(f"v_perm_b32 v{dst+pr}, v{b}, v{a}, s{P1 if col & 1 else P0}")
    def franks(srdn):
        pass
    VPA, VQA, VB1A, VSW, VWO = 41, 38, 43, 44, 39
    A(f"v_lshlrev_b32 v{VWO}, 12, v{VG}")
    A(f"v_lshl_add_u32 v{VWO}, v{VC}, 4, v{VWO}")
    A(f"s_and_b32 s{T0}, s{SWV}, 3")
    A(f"s_bfe_u32 s{T3}, s{SWV}, 0x10002")
    A(f"s_lshl_b32 s{SWO}, s{T0}, 14")
    A(f"s_lshl_b32 s{T1}, s{T3}, 11")
    A(f"s_add_u32 s{T1}, s{T1}, s{SWO}")
    A(f"s_lshl_b32 s{T2}, s{SCB}, 8")
    A(f"s_add_u32 s{T1}, s{T1}, s{T2}")
    A(f"s_lshl_b32 s{T2}, s{T3}, 8")
    A(f"s_add_u32 s{SWO}, s{SWO}, s{T2}")
    A(f"s_add_u32 s{SWO}, s{SWO}, {128*512}")
    A("s_waitcnt lgkmcnt(0)")
    srd(SY, PW1, 257 * 512)
    A("s_barrier")
    for j in range(4):
        A(f"buffer_load_dwordx4 {vr(64+4*j,4)}, v{VWO}, {sr(SY,4)}, s{T1} offen offset:{512*j}")
    if W1B_EARLY:
        for j in range(8):
            A(f"buffer_load_dwordx4 {vr(WL+4*j,4)}, v{VWO}, {sr(SY,4)}, s{SWO} offen offset:{512*j}")
    common_setup()
    A(f"s_lshl_b32 s{T0}, s{T0}, 10")
    A(f"s_add_u32 s{T0}, s{T0}, {L_S}")
    A(f"s_lshl_b32 s{T1}, s{T3}, 3")
    A(f"s_add_u32 s{T1}, s{T1}, s{T0}")
    A(f"v_add_u32 v12, s{T1}, v{VL16}")
    A(f"s_lshl_b32 s{T1}, s{T3}, 15")
    A(f"s_add_u32 s{T1}, s{T1}, s{T0}")
    A(f"v_add_u32 v{VSW}, s{T1}, v{VL16}")
    XA = 8
    A(f"v_xor_b32 v13, v{VG}, v{VC}")
    A("v_lshlrev_b32 v13, 4, v13")
    A(f"v_lshl_add_u32 v13, v{VC}, 8, v13")
    for s_ in range(4):
        A(f"v_xor_b32 v{XA+s_}, {64*s_}, v13")
    A(f"s_sub_u32 s{T0}, s{SWV}, 8")
    A(f"s_lshl_b32 s{T1}, s{T0}, 12")
    A(f"s_add_u32 s{T1}, s{T1}, {L_S}")
    A(f"v_add_u32 v{VA}, s{T1}, v{VL16}")
    A(f"s_lshr_b32 s{T1}, s{T0}, 2")
    A(f"s_lshl_b32 s{T1}, s{T1}, 4")
    A(f"s_and_b32 s{T2}, s{T0}, 3")
    A(f"s_add_u32 s{T1}, s{T1}, s{T2}")
    A(f"v_lshl_add_u32 v13, v{VG}, 2, s{T1}")
    A(f"s_movk_i32 s{T1}, {PROW}")
    A(f"v_lshlrev_b32 v{VPA}, 2, v13")
    A(f"v_mad_u32_u24 v{VPA}, v{VC}, s{T1}, v{VPA}")
    A(f"v_add_u32 v{VPA}, {L_PT}, v{VPA}")
    A(f"s_mov_b32 s{T2}, 0x8000")
    A(f"s_waitcnt vmcnt({8 if W1B_EARLY else 0})")
    stamp(1)
    for pr in range(2):
        for dw in range(4):
            a_, b_ = 64 + 8*pr + dw, 64 + 8*pr + 4 + dw
            A(f"v_perm_b32 v{48+(2*dw)*2+pr}, v{b_}, v{a_}, s{P0}")
            A(f"v_perm_b32 v{48+(2*dw+1)*2+pr}, v{b_}, v{a_}, s{P1}")
    for col in range(8):
        A(f"ds_write_b64 v12, {vr(48+2*col,2)} offset:{col*4096}")
    def w1b_loads():
        for j in range(8):
            A(f"buffer_load_dwordx4 {vr(WL+4*j,4)}, v{VWO}, {sr(SY,4)}, s{SWO} offen offset:{512*j}")
    if W1B_AT == 0: w1b_loads()
    A("s_waitcnt lgkmcnt(0)")
    arrive(0)
    await_lds(L_GC, 13, 12, T0)
    stamp(3)
    AF, XR = 48, [64 + 4*k for k in range(8)]
    ACP = lambda mt: 16 + 4*mt
    for s_ in range(4):
        A(f"ds_read_b128 {vr(AF+4*s_,4)}, v{VA} offset:{s_*1024}")
    seq = [(mt, s_) for mt in range(5) for s_ in range(4)]
    PRE = 7
    def rdx(k):
        mt, s_ = seq[k]
        A(f"ds_read_b128 {vr(XR[k%8],4)}, v{XA+s_} offset:{L_XT + 4096*mt}")
    for k in range(PRE): rdx(k)
    def pack(mt):
        f = [ACP(mt) + r for r in range(4)]
        o = []
        o += [f"v_add_f32 v{f[r]}, 0, v{f[r]}" for r in range(4)]
        o += [f"v_add_u32 v{f[r]}, s{T2}, v{f[r]}" for r in range(4)]
        o += [f"v_sub_u32_sdwa v{f[r]}, v{f[r]}, v{f[r-1]} clamp dst_sel:DWORD dst_unused:UNUSED_PAD src0_sel:DWORD src1_sel:WORD_1" for r in range(1, 4)]
        o += [f"v_perm_b32 v{f[0]}, v{f[1]}, v{f[0]}, s{P1}", f"v_perm_b32 v{f[2]}, v{f[3]}, v{f[2]}, s{P1}"]
        return o
    pend = []
    for k, (mt, s_) in enumerate(seq):
        if k + PRE < 20: rdx(k + PRE)
        A(f"s_waitcnt lgkmcnt({min(PRE, 19-k)})")
        c = "0" if s_ == 0 else vr(ACP(mt), 4)
        A(f"v_mfma_f32_16x16x32_bf16 {vr(ACP(mt),4)}, {vr(AF+4*s_,4)}, {vr(XR[k%8],4)}, {c}")
        if s_ == 3 and mt >= 1: pend += pack(mt - 1)
        for x in pend[:4]: A(x)
        pend = pend[4:]
    for x in pend: A(x)
    A("s_nop 1")
    for x in pack(4): A(x)
    for mt in range(5):
        A(f"ds_write_b32 v{VPA}, v{ACP(mt)} offset:{16*mt*PROW}")
        A(f"ds_write_b32 v{VPA}, v{ACP(mt)+2} offset:{16*mt*PROW + 128}")
    A("v_bfe_u32 v12, v0, 4, 5")
    A(f"s_movk_i32 s{T1}, {PROW}")
    A(f"v_lshlrev_b32 v13, 4, v{VC}")
    A(f"v_mad_u32_u24 v14, v12, s{T1}, v13")
    A(f"v_add_u32 v14, {L_PT}, v14")
    A("v_and_b32 v15, 0x70, v13")
    A("v_lshl_add_u32 v15, v12, 9, v15")
    A("v_and_b32 v13, 0x80, v13")
    A("v_lshl_add_u32 v15, v13, 1, v15")
    A(f"s_lshl_b32 s{T0}, s{SN80}, 9")
    A(f"s_lshl_b32 s{T1}, s{SCB}, 7")
    A(f"s_add_u32 s{T0}, s{T0}, s{T1}")
    A(f"s_add_u32 s{T1}, s{T0}, 16384")
    A(f"s_add_u32 s{T2}, s{T0}, 32768")
    A(f"s_cmp_ge_u32 s{SWV}, 12")
    A(f"s_cselect_b32 s{T2}, 0x7ff00000, s{T2}")
    A("s_waitcnt lgkmcnt(0)")
    arrive(1)
    if W1B_AT == 1: w1b_loads()
    await_lds(L_GC + 4, 8, 12, T3)
    stamp(4)
    for k in range(3):
        A(f"ds_read_b128 {vr(48+4*k,4)}, v14 offset:{32*k*PROW}")
    for k in range(3):
        A(f"s_waitcnt lgkmcnt({2-k})")
        A(f"buffer_store_dwordx4 {vr(48+4*k,4)}, v15, {sr(SW,4)}, s{T0+k} offen sc1")
    if W1B_AT == 2:
        w1b_loads()
        A(f"s_sub_u32 s{T0}, s{SWV}, 8")
        A(f"s_lshl_b32 s{T1}, s{T0}, 13")
        A(f"s_add_u32 s{T1}, s{T1}, {L_S}")
        A(f"v_add_u32 v{VA}, s{T1}, v{VL16}")
        A(f"s_lshr_b32 s{T1}, s{T0}, 1")
        A(f"s_lshl_b32 s{T1}, s{T1}, 4")
        A(f"s_and_b32 s{T0}, s{T0}, 1")
        A(f"s_lshl_b32 s{T0}, s{T0}, 1")
        A(f"s_add_u32 s{T0}, s{T0}, s{T1}")
        A(f"v_lshl_add_u32 v12, v{VG}, 2, s{T0}")
        A(f"v_lshlrev_b32 v{VB1A}, 4, v12")
        A(f"s_movk_i32 s{T1}, {QROW}")
        A(f"v_mad_u32_u24 v{VPA}, v{VC}, s{T1}, v{VB1A}")
        A(f"v_add_u32 v{VPA}, {L_Q}, v{VPA}")
        A(f"s_mul_i32 s{T0}, s{SCB}, 40")
        A(f"v_add_u32 v12, s{T0}, v{VC}")
        A(f"v_xor_b32 v13, v{VG}, v12")
        A("v_and_b32 v13, 15, v13")
        A("v_lshlrev_b32 v13, 4, v13")
        A("v_lshl_add_u32 v13, v12, 8, v13")
        for s_ in range(4):
            A(f"v_xor_b32 v{XA+s_}, {64*s_}, v13")
        await_lds(L_TOK, 0, 14, STOK, nonzero=True)
        A("s_waitcnt vmcnt(8)")
        A("s_mov_b64 exec, 1")
        A(f"ds_add_rtn_u32 v15, v{VZ}, v{VONE} offset:{L_GC+12}")
        A(f"s_lshl_b32 s{T0}, s2, 4")
        A(f"s_add_u32 s{T0}, s{T0}, {hex(WS_PF)}")
        A("s_waitcnt lgkmcnt(0)")
        A(f"v_readfirstlane_b32 s{T1}, v15")
        A(f"s_cmp_lg_u32 s{T1}, 7")
        A("s_cbranch_scc1 K_NOPF")
        A(f"buffer_store_dword v14, v{VZ}, {sr(SW,4)}, s{T0} offen sc1")
        L("K_NOPF")
        A("s_mov_b64 exec, -1")
        stamp(2)
        A(f"s_cmp_eq_u32 s{T1}, 7"); A("s_cbranch_scc1 K_W1BW"); A("s_waitcnt vmcnt(0)"); L("K_W1BW"); A("s_waitcnt vmcnt(1)")
        for col in range(8):
            d = 64 + 4 * col
            perm4(d, col)
            A(f"ds_write_b128 v{VSW}, {vr(d,4)} offset:{col*4096}")
        A("s_waitcnt lgkmcnt(0)")
        arrive(2)
    else:
        A("s_waitcnt vmcnt(3)")
        for col in range(8):
            d = 64 + 4 * col
            perm4(d, col)
            A(f"ds_write_b128 v{VSW}, {vr(d,4)} offset:{col*4096}")
        A(f"s_sub_u32 s{T0}, s{SWV}, 8")
        A(f"s_lshl_b32 s{T1}, s{T0}, 13")
        A(f"s_add_u32 s{T1}, s{T1}, {L_S}")
        A(f"v_add_u32 v{VA}, s{T1}, v{VL16}")
        A(f"s_lshr_b32 s{T1}, s{T0}, 1")
        A(f"s_lshl_b32 s{T1}, s{T1}, 4")
        A(f"s_and_b32 s{T0}, s{T0}, 1")
        A(f"s_lshl_b32 s{T0}, s{T0}, 1")
        A(f"s_add_u32 s{T0}, s{T0}, s{T1}")
        A(f"v_lshl_add_u32 v12, v{VG}, 2, s{T0}")
        A(f"v_lshlrev_b32 v{VB1A}, 4, v12")
        A(f"s_movk_i32 s{T1}, {QROW}")
        A(f"v_mad_u32_u24 v{VPA}, v{VC}, s{T1}, v{VB1A}")
        A(f"v_add_u32 v{VPA}, {L_Q}, v{VPA}")
        A(f"s_mul_i32 s{T0}, s{SCB}, 40")
        A(f"v_add_u32 v12, s{T0}, v{VC}")
        A(f"v_xor_b32 v13, v{VG}, v12")
        A("v_and_b32 v13, 15, v13")
        A("v_lshlrev_b32 v13, 4, v13")
        A("v_lshl_add_u32 v13, v12, 8, v13")
        for s_ in range(4):
            A(f"v_xor_b32 v{XA+s_}, {64*s_}, v13")
        A("s_waitcnt lgkmcnt(0)")
        arrive(2)
        await_lds(L_TOK, 0, 14, STOK, nonzero=True)
        A("s_waitcnt vmcnt(0)")
        A("s_mov_b64 exec, 1")
        A(f"ds_add_rtn_u32 v15, v{VZ}, v{VONE} offset:{L_GC+12}")
        A(f"s_lshl_b32 s{T0}, s2, 4")
        A(f"s_add_u32 s{T0}, s{T0}, {hex(WS_PF)}")
        A("s_waitcnt lgkmcnt(0)")
        A(f"v_readfirstlane_b32 s{T1}, v15")
        A(f"s_cmp_lg_u32 s{T1}, 7")
        A("s_cbranch_scc1 K_NOPF")
        A(f"buffer_store_dword v14, v{VZ}, {sr(SW,4)}, s{T0} offen sc1")
        L("K_NOPF")
        A("s_mov_b64 exec, -1")
    stamp(5)
    for s_ in range(4):
        for mt in range(3):
            A(f"ds_read_b128 {vr(XF+(mt*4+s_)*4,4)}, v{XA+s_} offset:{L_XT + 4096*mt}")
    await_lds(L_GC + 8, 12, 12, T0)
    AC = lambda t, mt: 16 + (t*3 + mt) * 4
    A(f"ds_read_b128 v[8:11], v{VB1A} offset:{L_CV+1024}")
    A(f"ds_read_b128 v[12:15], v{VB1A} offset:{L_CV+1024+16}")
    for k in range(8):
        A(f"ds_read_b128 {vr(WL+4*k,4)}, v{VA} offset:{((k&1)*4 + (k>>1))*1024}")
    for k in range(8):
        s_, t = k >> 1, k & 1
        A(f"s_waitcnt lgkmcnt({7-k})")
        for mt in range(3):
            c = vr(8 + 4*t, 4) if s_ == 0 else vr(AC(t, mt), 4)
            A(f"v_mfma_f32_16x16x32_bf16 {vr(AC(t,mt),4)}, {vr(WL+4*k,4)}, {vr(XF+(mt*4+s_)*4,4)}, {c}")
    A(f"s_mov_b32 s{T1}, {hex(WS_PF - 8192)}")
    A(f"s_cmp_lt_u32 s{SWV}, 13")
    A(f"s_cselect_b32 s{SRND}, s{T1}, 0x7ff00000")
    A(f"buffer_load_dword v{VA}, v{VT16}, {sr(SW,4)}, s{SRND} offen sc1")
    for k in range(8):
        A(f"s_mov_b64 {sr(MK[k],2)}, 0")
    for mt in range(3):
        for t in range(2):
            d = 48 + (mt*2 + t) * 4
            for i in range(4):
                A(f"v_mul_f32 v{d+i}, s{SC}, v{AC(t,mt)+PI[i]}")
            if mt == 2:
                A(f"s_mov_b64 exec, {sr(SQM,2)}")
            A(f"ds_write_b128 v{VPA}, {vr(d,4)} offset:{16*mt*QROW + 16*t}")
            if mt == 2:
                A("s_mov_b64 exec, -1")
    stamp(6)
    A(f"v_and_b32 v{VC}, 15, v1")
    A(f"v_lshrrev_b32 v{VG}, 4, v1")
    A(f"v_mov_b32 v{PZ}, 0")
    A(f"v_mov_b32 v{PZ+1}, 0")
    A(f"v_mov_b32 v{VP}, s{SW2}")
    A(f"v_mov_b32 v{VDEG}, 0")
    A(f"v_mov_b32 v{OUTA}, 0")
    A(f"s_cmp_ge_u32 s{SWV}, 13")
    A("s_cbranch_scc1 K_B3")
    A(f"s_movk_i32 s{T0}, {512 + NB + 8}")
    A(f"v_cmp_gt_u32 {sr(TP,2)}, s{T0}, v0")
    A(f"s_mov_b32 s{SSP}, {SPIN}")
    L("K_PFL")
    A("s_waitcnt vmcnt(0)")
    A(f"v_cmp_ne_u32 vcc, s{STOK}, v{VA}")
    A(f"s_and_b64 vcc, vcc, {sr(TP,2)}")
    A("s_cbranch_scc0 K_B3")
    A(f"s_sub_u32 s{SSP}, s{SSP}, 1")
    A("s_cbranch_scc1 K_B3")
    A("s_mov_b64 exec, vcc")
    A(f"s_sleep {SLP_N}")
    A(f"buffer_load_dword v{VA}, v{VT16}, {sr(SW,4)}, s{SRND} offen sc1")
    A("s_mov_b64 exec, -1")
    A("s_branch K_PFL")

    L("K_AUX")
    A(f"s_cmp_lg_u32 s{SWV}, 0")
    A("s_cbranch_scc1 K_AUX1")
    ED, ES, EE, RKB, BN4, RCB = 48, 58, 68, 74, 84, 96
    A("v_lshlrev_b32 v12, 3, v1")
    A(f"s_mul_i32 s{T0}, s2, {CH*4}")
    A(f"s_mul_i32 s{T1}, s2, {CH*2}")
    A("s_waitcnt lgkmcnt(0)")
    srd(SX, PDST, CH * 4, f"s{T0}")
    for k in range(5):
        A(f"buffer_load_dwordx2 {vr(ED+2*k,2)}, v12, {sr(SX,4)}, 0 offen offset:{512*k}")
    srd(SY, PSRC, CH * 4, f"s{T0}")
    for k in range(5):
        A(f"buffer_load_dwordx2 {vr(ES+2*k,2)}, v12, {sr(SY,4)}, 0 offen offset:{512*k}")
    srd(SZ, PE, CH * 2, f"s{T1}")
    for k in range(5):
        A(f"buffer_load_dword v{EE+k}, v2, {sr(SZ,4)}, 0 offen offset:{256*k}")
    A("s_barrier")
    A("s_setprio 3")
    common_setup()
    srd(SO, PDBG, 256)
    A(f"s_movk_i32 s{T1}, {-NPB}")
    for j in range(10):
        if j % 2 == 0:
            A(f"s_waitcnt vmcnt({14 - j//2})")
            if j == 0:
                A(f"buffer_load_dword v33, v{VZ}, {sr(SO,4)}, 0 offen sc1")
        A(f"v_mul_u32_u24 v14, 0xcccd, v{ED+j}")
        A("v_lshrrev_b32 v14, 21, v14")
        A(f"v_lshlrev_b32 v{BN4+j}, 2, v14")
        A(f"ds_add_rtn_u32 v{RKB+j}, v{BN4+j}, v{VONE} offset:{L_HIST}")
        A(f"v_mad_i32_i24 v{ED+j}, v14, s{T1}, v{ED+j}")
    HC_, HB_ = 16, 20
    A(f"ds_read_b128 {vr(HC_,4)}, v{VL16} offset:{L_HIST}")
    A("s_waitcnt vmcnt(1)")
    stamp(1)
    for j in range(10):
        if j % 2 == 0:
            A(f"v_lshlrev_b32 v14, 16, v{EE+j//2}")
        else:
            A(f"v_and_b32 v14, 0xffff0000, v{EE+j//2}")
        A(f"v_lshl_or_b32 v{RCB+2*j+1}, v{ED+j}, 2, v14")
    A("s_waitcnt lgkmcnt(0)")
    A(f"v_add_u32 v{HB_+2}, v{HC_}, v{HC_+1}")
    A(f"v_add_u32 v{HB_+3}, v{HB_+2}, v{HC_+2}")
    A(f"v_add_u32 v15, v{HB_+3}, v{HC_+3}")
    A("s_nop 1")
    A(f"v_add_u32_dpp v{HB_}, v15, v15 row_shr:1 row_mask:0xf bank_mask:0xf bound_ctrl:0")
    for ctl in SCAN:
        A("s_nop 1")
        A(f"v_add_u32_dpp v{HB_}, v{HB_}, v{HB_} {ctl}")
    A(f"v_sub_u32 v{HB_}, v{HB_}, v15")
    A(f"v_add_u32 v{HB_+1}, v{HB_}, v{HC_}")
    A(f"v_add_u32 v{HB_+2}, v{HB_}, v{HB_+2}")
    A(f"v_add_u32 v{HB_+3}, v{HB_}, v{HB_+3}")
    A(f"ds_write_b128 v{VL16}, {vr(HB_,4)} offset:{L_HIST}")
    for j in range(10):
        A(f"ds_read_b32 v{ED+j}, v{BN4+j} offset:{L_HIST}")
    for k in range(4):
        A(f"v_lshl_or_b32 v{25+2*k}, v{HC_+k}, 16, v{HB_+k}")
    A(f"v_lshlrev_b32 v32, 1, v{VL16}")
    A(f"s_mov_b32 s{SSP}, {SPIN}")
    A("s_waitcnt vmcnt(0)")
    L("K_TOK")
    A(f"v_readfirstlane_b32 s{STOK}, v33")
    A(f"s_cmp_lg_u32 s{STOK}, 0")
    A("s_cbranch_scc1 K_TOKOK")
    A(f"s_sub_u32 s{SSP}, s{SSP}, 1")
    A("s_cbranch_scc1 K_END")
    A(f"buffer_load_dword v33, v{VZ}, {sr(SO,4)}, 0 offen sc1")
    A("s_waitcnt vmcnt(0)")
    A("s_branch K_TOK")
    L("K_TOKOK")
    A(f"s_lshl_b32 s{T0}, s{STOK}, 13")
    A(f"s_and_b32 s{T0}, s{T0}, 0xffffc000")
    A(f"s_lshl_b32 s{T3}, s2, 11")
    A(f"s_add_u32 s{T3}, s{T3}, {hex(WS_OFS)}")
    for k in range(4):
        A(f"v_mov_b32 v{24+2*k}, s{STOK}")
    A(f"buffer_store_dwordx4 v[24:27], v32, {sr(SW,4)}, s{T3} offen sc1")
    A(f"buffer_store_dwordx4 v[28:31], v32, {sr(SW,4)}, s{T3} offen offset:16 sc1")
    A("s_waitcnt lgkmcnt(0)")
    for j in range(10):
        A(f"v_or_b32 v{RCB+2*j}, s{T0}, v{ES+j}")
        A(f"v_add_lshl_u32 v{ED+j}, v{ED+j}, v{RKB+j}, 3")
        A(f"ds_write_b64 v{ED+j}, {vr(RCB+2*j,2)} offset:{L_SB}")
    for k in range(5):
        A(f"ds_read_b128 {vr(60+4*k,4)}, v{VL16} offset:{L_SB + 1024*k}")
    A(f"s_mul_i32 s{T0}, s2, {CH*8}")
    A(f"s_add_u32 s{T0}, s{T0}, {hex(WS_REC)}")
    A(f"s_add_u32 s{T1}, s{T0}, 4096")
    for k in range(5):
        A(f"s_waitcnt lgkmcnt({4-k})")
        A(f"buffer_store_dwordx4 {vr(60+4*k,4)}, v{VL16}, {sr(SW,4)}, s{T0 + k//4} offen offset:{1024*(k%4)} sc1")
    A(f"ds_write_b32 v{VZ}, v33 offset:{L_TOK}")
    A("s_setprio 0")
    stamp(2)
    A("s_branch K_AUXP")
    L("K_AUX1")
    for k in range(4):
        A(f"v_xor_b32 v{51+k}, v{VG}, v{VC}")
        if k: A(f"v_xor_b32 v{51+k}, {4*k}, v{51+k}")
        A(f"v_lshlrev_b32 v{51+k}, 4, v{51+k}")
        A(f"v_lshl_add_u32 v{51+k}, v{VG}, 8, v{51+k}")
    A(f"s_sub_u32 s{T0}, s{SWV}, 1")
    A(f"s_lshl_b32 s{T0}, s{T0}, 12")
    A(f"s_lshl_b32 s{T2}, s{SN80}, 8")
    A(f"s_add_u32 s{T2}, s{T2}, s{T0}")
    A(f"s_add_u32 s{T0}, s{T0}, {L_XT}")
    A(f"s_mov_b32 m0, s{T0}")
    A("s_waitcnt lgkmcnt(0)")
    A(f"s_cmp_ge_u32 s{SWV}, 6")
    A("s_cbranch_scc1 K_NOX")
    srd(SX, PX, N * 256)
    for k in range(4):
        A(f"buffer_load_dwordx4 v{51+k}, {sr(SX,4)}, s{T2} offen offset:{1024*k} lds")
    L("K_NOX")
    A(f"s_xor_b32 s{T0}, s{SWV}, 7")
    A(f"s_or_b32 s{T0}, s{T0}, s2")
    A("s_cbranch_scc1 K_NOTOK")
    srd(SO, PDBG, 256)
    A("s_or_b32 s26, s26, 1")
    A("v_mov_b32 v59, s26")
    A(f"buffer_store_dword v59, v2, {sr(SO,4)}, 0 offen sc1")
    L("K_NOTOK")
    A("s_barrier")
    common_setup()
    A(f"s_cmp_lt_u32 s{SWV}, 4")
    A("s_cbranch_scc1 K_NOCV")
    A("v_and_b32 v63, 3, v0")
    A("v_lshlrev_b32 v63, 2, v63")
    A("v_mov_b32 v64, 0x2031")
    A("v_bfe_u32 v65, v64, v63, 4")
    A("v_bfe_u32 v64, v0, 2, 2")
    A(f"v_lshl_add_u32 v64, v{VG}, 5, v64")
    A("v_bfe_u32 v66, v0, 6, 1")
    A("v_lshl_add_u32 v64, v66, 2, v64")
    A("v_bfe_u32 v66, v0, 7, 1")
    A("v_lshl_add_u32 v64, v66, 7, v64")
    A("v_lshl_add_u32 v65, v65, 3, v64")
    A("v_lshl_add_u32 v64, v63, 1, v64")
    A("v_lshlrev_b32 v65, 1, v65")
    A("v_lshlrev_b32 v64, 1, v64")
    A("v_and_b32 v66, 0xff, v0")
    A("v_lshlrev_b32 v67, 1, v66")
    A("v_lshlrev_b32 v66, 2, v66")
    srd(SY, PW1, 257 * 512)
    A(f"s_mov_b32 s{T0}, {256*512}")
    A(f"buffer_load_ushort v20, v65, {sr(SY,4)}, s{T0} offen")
    srd(SX, PB1, 512)
    A(f"buffer_load_ushort v21, v64, {sr(SX,4)}, 0 offen")
    srd(SX, PB2, 256)
    A(f"buffer_load_ushort v22, v67, {sr(SX,4)}, 0 offen")
    A(f"s_cmp_ge_u32 s{SWV}, 6")
    A("s_cbranch_scc1 K_CV1")
    A("s_waitcnt vmcnt(3)")
    arrive(0)
    L("K_CV1")
    A("s_waitcnt vmcnt(0)")
    for k in range(3):
        A(f"v_lshlrev_b32 v{20+k}, 16, v{20+k}")
    A(f"v_mul_f32 v20, s{SC}, v20")
    A(f"ds_write_b32 v66, v21 offset:{L_CV+1024}")
    A(f"ds_write_b32 v66, v20 offset:{L_CV}")
    A(f"s_cmp_ge_u32 s{SWV}, 6")
    A("s_cbranch_scc1 K_CV2")
    A(f"ds_write_b32 v66, v22 offset:{L_CV+2048}")
    L("K_CV2")
    A("s_waitcnt lgkmcnt(0)")
    arrive(2)
    A("s_branch K_AUXT")
    L("K_NOCV")
    A("s_waitcnt vmcnt(0)")
    arrive(0)
    A(f"s_cmp_lg_u32 s{SWV}, 3")
    A("s_cbranch_scc1 K_AUXT")
    A("s_cmp_ge_u32 s2, 8")
    A("s_cbranch_scc1 K_AUXT")
    A(f"s_lshr_b32 s{T0}, s2, 2")
    A(f"s_lshl_b32 s{T0}, s{T0}, 15")
    A(f"s_and_b32 s{T1}, s2, 1")
    A(f"s_lshl_b32 s{T1}, s{T1}, 14")
    A(f"s_add_u32 s{T0}, s{T0}, s{T1}")
    A(f"s_bfe_u32 s{T1}, s2, 0x10001")
    A(f"s_lshl_b32 s{T1}, s{T1}, 10")
    A(f"s_add_u32 s{T0}, s{T0}, s{T1}")
    A(f"v_lshrrev_b32 v24, 1, v{VG}")
    A("v_lshlrev_b32 v24, 13, v24")
    A(f"v_and_b32 v25, 1, v{VG}")
    A("v_lshl_add_u32 v24, v25, 9, v24")
    A(f"v_lshl_add_u32 v24, v{VC}, 4, v24")
    A("v_add_u32 v25, 4096, v24")
    srd(SX, PW2, 256 * 256)
    for jj in range(8):
        p = PI[jj & 3]
        A(f"buffer_load_dwordx4 {vr(WL+4*jj,4)}, v{24 if p < 2 else 25}, {sr(SX,4)}, s{T0} offen offset:{(p&1)*2048 + (jj>>2)*256}")
    A(f"v_lshrrev_b32 v26, 1, v{VC}")
    A(f"s_movk_i32 s{T1}, 1040")
    A(f"v_mul_u32_u24 v26, s{T1}, v26")
    A(f"v_and_b32 v27, 1, v{VC}")
    A("v_lshl_add_u32 v26, v27, 7, v26")
    A(f"v_lshl_add_u32 v26, v{VG}, 8, v26")
    A(f"s_lshl_b32 s{T0}, s2, 10")
    A(f"s_add_u32 s{T0}, s{T0}, {hex(WS_W2F)}")
    A("s_waitcnt vmcnt(0)")
    for col in range(8):
        perm4(48 + 4*col, col)
        A(f"ds_write_b128 v26, {vr(48+4*col,4)} offset:{L_H + 16*col}")
    for nt in range(8):
        A(f"ds_read_b128 {vr(WL+4*nt,4)}, v{VL16} offset:{L_H + 1040*nt}")
        if nt == 5: A("s_waitcnt lgkmcnt(6)")
    for nt in range(8):
        A(f"s_waitcnt lgkmcnt({7-nt})")
        A(f"buffer_store_dwordx4 {vr(WL+4*nt,4)}, v{VL16}, {sr(SW,4)}, s{T0} offen sc1")
        A(f"s_add_u32 s{T0}, s{T0}, 8192")
    await_lds(L_TOK, 0, 33, STOK, nonzero=True)
    A(f"s_lshl_b32 s{T0}, s2, 4")
    A(f"s_add_u32 s{T0}, s{T0}, {hex(WS_PF + NB*16)}")
    A("s_waitcnt vmcnt(0)")
    A("s_mov_b64 exec, 1")
    A(f"buffer_store_dword v33, v{VZ}, {sr(SW,4)}, s{T0} offen sc1")
    A("s_mov_b64 exec, -1")
    L("K_AUXT")
    await_lds(L_TOK, 0, 33, STOK, nonzero=True)
    L("K_AUXP")
    A("v_lshrrev_b32 v31, 1, v0")
    A("v_lshlrev_b32 v31, 11, v31")
    A(f"s_movk_i32 s{T3}, {2*NB}")
    A(f"v_cmp_gt_u32 {sr(SOWN,2)}, s{T3}, v0")
    A(f"s_bfe_u32 s{STAG}, s{STOK}, 0x120001")
    A(f"v_cvt_f32_u32 v30, v1")
    A(f"v_rcp_f32 v30, v30")
    A(f"v_mov_b32 v{VP}, s{SW2}")
    A(f"v_mul_f32 v30, 0x47800000, v30")
    A(f"v_cvt_u32_f32 v30, v30")
    A(f"v_add_u32 v30, 1, v30")
    if PD0: A(f"s_sleep {PD0}")
    L("K_REC0")
    A(f"s_mov_b32 s{SSP}, {SPIN}")
    A(f"s_mov_b64 vcc, {sr(SOWN,2)}")
    L("K_OFS")
    A("s_mov_b64 exec, vcc")
    A(f"buffer_load_dwordx2 {vr(GRT,2)}, v31, {sr(SW,4)}, s{SB8} offen sc1")
    A("s_mov_b64 exec, -1")
    A("s_waitcnt vmcnt(0)")
    A(f"v_cmp_ne_u32 vcc, s{STOK}, v{GRT}")
    A(f"s_and_b64 vcc, vcc, {sr(SOWN,2)}")
    A("s_cbranch_scc0 K_OFSOK")
    A(f"s_sub_u32 s{SSP}, s{SSP}, 1")
    A("s_cbranch_scc1 K_END")
    A(f"s_sleep {SLP_N}")
    A("s_branch K_OFS")
    L("K_OFSOK")
    stamp(5)
    A(f"v_lshrrev_b32 v{GRT}, 16, v{GRT+1}")
    A(f"v_and_b32 v{GRT+1}, 0xffff, v{GRT+1}")
    A(f"v_cndmask_b32 v{GRT}, 0, v{GRT}, {sr(SOWN,2)}")
    A("v_lshrrev_b32 v32, 1, v0")
    A(f"s_movk_i32 s{T0}, {CH}")
    A(f"v_mad_u32_u24 v{GRT+1}, v32, s{T0}, v{GRT+1}")
    A("v_and_b32 v32, 1, v0")
    A("v_lshlrev_b32 v32, 1, v32")
    A(f"v_add_lshl_u32 v{PZ+1}, v{GRT+1}, v32, 3")
    A(f"v_sub_i32 v{PZ}, v{GRT}, v32")
    A(f"v_mov_b32 v{VDEG}, 0")
    A(f"v_mov_b32 v{OUTA}, 0")
    L("K_RECS")
    A(f"s_mov_b32 s{T0}, {hex(WS_REC)}")
    for k in range(8):
        A(f"v_cmp_lt_i32 {sr(MK[k],2)}, {4*(k>>1) + (k&1)}, v{PZ}")
    A(f"v_cmp_lt_i32 vcc, 16, v{PZ}")
    A("v_mov_b32 v88, 4")
    A("v_mov_b32 v89, 0")
    A("v_mov_b32 v90, 1")
    A("s_cbranch_vccz K_RM")
    A(f"ds_write_b32 v89, v90 offset:{L_FLAG}")
    L("K_RM")
    A(f"s_mov_b32 s{SSP}, {SPIN}")
    L("K_RLD")
    for k in range(4):
        A(f"s_mov_b64 exec, {sr(MK[2*k],2)}")
        A("s_cbranch_execz K_RL")
        A(f"buffer_load_dwordx4 {vr(RC+4*k,4)}, v{PZ+1}, {sr(SW,4)}, s{T0} offen offset:{32*k} sc1")
    L("K_RL")
    A(f"s_mov_b64 {sr(TP,2)}, 0")
    A("s_waitcnt vmcnt(0)")
    for k in range(8):
        A(f"s_mov_b64 exec, {sr(MK[k],2)}")
        A("s_cbranch_execz K_RV")
        A(f"v_lshrrev_b32 v91, 14, v{RC+2*k}")
        A(f"v_cmp_ne_u32 vcc, s{STAG}, v91")
        A(f"s_or_b64 {sr(TP,2)}, {sr(TP,2)}, vcc")
    L("K_RV")
    A("s_mov_b64 exec, -1")
    A(f"s_cmp_eq_u64 {sr(TP,2)}, 0")
    A("s_cbranch_scc1 K_RVOK")
    A(f"s_sub_u32 s{SSP}, s{SSP}, 1")
    A("s_cbranch_scc1 K_END")
    A(f"s_sleep {SLP_N}")
    A("s_branch K_RLD")
    L("K_RVOK")
    stamp(6)
    NL, RK, PS = 64, 72, 80
    A(f"s_mov_b32 s{T1}, {hex(FBASE)}")
    for k in range(8):
        A(f"s_mov_b64 exec, {sr(MK[k],2)}")
        A("s_cbranch_execz K_R1")
        A(f"v_and_b32 v{NL+k}, 0xfc, v{RC+2*k+1}")
        A(f"ds_add_rtn_u32 v{RK+k}, v{NL+k}, v88")
        A(f"v_and_b32 v{RC+2*k}, 0x3fff, v{RC+2*k}")
        A(f"v_lshl_or_b32 v{RC+2*k}, v{RC+2*k}, 9, s{T1}")
    L("K_R1")
    A("s_mov_b64 exec, 1")
    A("s_waitcnt lgkmcnt(0)")
    A(f"ds_add_u32 v89, v90 offset:{L_GC+16}")
    A("s_mov_b64 exec, -1")
    A(f"v_mov_b32 v{VZ}, 0")
    await_lds(L_GC + 16, 8, 91, T0)
    stamp(7)
    def scan_and_decide(tag, with_perm):
        A(f"ds_read_b32 v{VCNT}, v2")
        A(f"ds_read_b32 v91, v89 offset:{L_FLAG}")
        A("s_waitcnt lgkmcnt(1)")
        A(f"v_add_u32_dpp v{VEND}, v{VCNT}, v{VCNT} row_shr:1 row_mask:0xf bank_mask:0xf bound_ctrl:0")
        A(f"v_add_u32 v{VDEG}, v{VDEG}, v{VCNT}")
        for k, ctl in enumerate(SCAN):
            A("s_nop 0" if k == 0 else "s_nop 1")
            A(f"v_add_u32_dpp v{VEND}, v{VEND}, v{VEND} {ctl}")
        A(f"v_sub_u32 v{VB4}, v{VEND}, v{VCNT}")
        A("s_waitcnt lgkmcnt(0)")
        A(f"v_readlane_b32 s{STOT}, v{VEND}, 63")
        if with_perm:
            for k in range(8):
                A(f"s_cmp_eq_u64 {sr(MK[k],2)}, 0")
                A(f"s_cbranch_scc1 K_R2{tag}")
                A(f"ds_bpermute_b32 v{PS+k}, v{NL+k}, v{VB4}")
            L(f"K_R2{tag}")
        A(f"v_readfirstlane_b32 s{SLP}, v91")
        A(f"s_add_u32 s{T1}, s{STOT}, 60")
        A(f"s_lshr_b32 s{SLEN}, s{T1}, 6")
        A(f"s_lshl_b32 s{T1}, s{SLEN}, 2")
        A(f"s_add_u32 s{T2}, s{T1}, 4")
        A(f"v_cmp_lt_u32 vcc, s{T2}, v{VCNT}")
        A(f"s_and_b32 s{T3}, s{SLEN}, 63")
        if with_perm:
            A(f"v_readlane_b32 s{T0}, v30, s{T3}")
        A(f"s_andn2_b32 s{SFAST}, s{SFIRST}, s{SMODE}")
        A(f"s_andn2_b32 s{SFAST}, s{SFAST}, s{SLP}")
        A(f"s_cmp_gt_u32 s{STOT}, {4*WIN}")
        A(f"s_cselect_b32 s{SFAST}, 0, s{SFAST}")
        A(f"s_sub_u32 s{T1}, {PRIV_B}, s{T1}")
        A("s_cmp_lg_u64 vcc, 0")
        A(f"s_cselect_b32 s{SFAST}, 0, s{SFAST}")
    scan_and_decide("a", True)
    A(f"s_cmp_eq_u32 s{SFAST}, 0")
    A("s_waitcnt lgkmcnt(0)")
    A("s_cbranch_scc1 K_WL")
    for k in range(8):
        A(f"s_mov_b64 exec, {sr(MK[k],2)}")
        A("s_cbranch_execz K_WB")
        A(f"v_add_u32 v{PS+k}, v{PS+k}, v{RK+k}")
        A(f"v_mul_u32_u24 v{RK+k}, s{T0}, v{PS+k}")
        A(f"v_lshrrev_b32 v{RK+k}, 18, v{RK+k}")
        A(f"v_mad_u32_u24 v{PS+k}, v{RK+k}, s{T1}, v{PS+k}")
        A(f"ds_write_b32 v{PS+k}, v{RC+2*k} offset:{L_PRIV}")
        A(f"ds_write_b32 v{PS+k}, v{RC+2*k+1} offset:{L_PRIV + PRIV_N*4}")
    L("K_WB")
    A("s_mov_b64 exec, -1")
    L("K_B3")
    A(f"s_mov_b32 s{SW2}, 1")
    A("v_mov_b32 v89, 0")
    A("s_waitcnt vmcnt(0) lgkmcnt(0)")
    A("s_barrier")
    stamp(8)
    A(f"ds_read_b128 {vr(W,4)}, v{VL16} offset:{L_CV}")
    A(f"s_cmp_lt_u32 s{SWV}, 8")
    A("s_cbranch_scc1 K_R4")
    scan_and_decide("g", False)
    L("K_R4")
    A(f"s_cmp_eq_u32 s{SFAST}, 0")
    A("s_cbranch_scc1 K_SLOW")
    def row_load(d, p, pair=False):
        if not pair:
            A(f"v_add_u32 v{p}, v{p}, v2")
        A(f"buffer_load_dword v{d}, v{p}, {sr(ST,4)}, 0 offen sc1")
        A(f"buffer_load_dword v{d+1}, v{p}, {sr(ST,4)}, 0 offen offset:256 sc1")
    TI = 16
    for k in range(R // 4):
        A(f"ds_read_b128 {vr(TI+4*k,4)}, v{VP} offset:{16*k}")
    A(f"v_add_u32 v{Q+3}, v{VP}, v2")
    A(f"ds_read_b32 v{Q}, v{Q+3} offset:{PRIV_N*4}")
    for k in range(R // 4):
        A(f"ds_read_b128 {vr(EV+4*k,4)}, v{VP} offset:{PRIV_N*4 + 16*k}")
    A(f"ds_read_b128 {vr(OG[0],4)}, v{VP} offset:{R*4}")
    A(f"s_mul_i32 s{T0}, s{SLEN}, s{SWV}")
    A(f"s_add_u32 s{T3}, s{T0}, s{SLEN}")
    A(f"s_lshl_b32 s{T0}, s{T0}, 2")
    A(f"s_lshl_b32 s{T3}, s{T3}, 2")
    A(f"s_min_u32 s{T0}, s{T0}, s{STOT}")
    A(f"s_min_u32 s{T3}, s{T3}, s{STOT}")
    A(f"s_sub_u32 s{SNN}, s{T3}, s{T0}")
    A(f"s_lshr_b32 s{SNN}, s{SNN}, 2")
    for k in range(R):
        if k % 4 == 0:
            A(f"s_waitcnt lgkmcnt({5 - k//4})")
        row_load(DAT + 2*k, TI + k)
    A(f"v_cmp_gt_u32 vcc, s{T0}, v{VB4}")
    A(f"v_cmp_lt_u32 {sr(TP,2)}, s{T0}, v{VEND}")
    A(f"s_and_b64 vcc, vcc, {sr(TP,2)}")
    A(f"s_cselect_b32 s{SLP}, 1, 0")
    A(f"v_cmp_gt_u32 vcc, s{T3}, v{VB4}")
    A(f"v_cmp_lt_u32 {sr(TP,2)}, s{T3}, v{VEND}")
    A(f"s_and_b64 vcc, vcc, {sr(TP,2)}")
    A(f"s_cselect_b32 s{STAIL}, 1, 0")
    A(f"v_cmp_le_u32 vcc, s{SNN}, v1")
    A(f"s_movk_i32 s{T2}, {QROW//4}")
    A(f"s_movk_i32 s{T3}, {HROW//4}")
    A(f"s_mov_b32 s{SREM}, s{SNN}")
    A("s_waitcnt lgkmcnt(0)")
    A(f"v_and_b32 v{Z2}, 0xfc, v{EV}")
    A(f"v_and_b32 v{Q+1}, 0xfc, v{Q}")
    A(f"v_mad_u32_u24 v{Z2+1}, v{Z2}, s{T2}, v{VQ16}")
    A("s_setprio 3")
    A(f"v_mov_b32_dpp v{Q+2}, v{Q+1} wave_shr:1 row_mask:0xf bank_mask:0xf")
    A(f"v_cmp_ne_u32 {sr(SM,2)}, v{Q+1}, v{Q+2}")
    A(f"ds_read_b128 {vr(Q,4)}, v{Z2+1}")
    A(f"s_or_b64 {sr(SM,2)}, {sr(SM,2)}, vcc")
    for k in range(4):
        A(f"v_add_u32 v{OG[0]+k}, v{OG[0]+k}, v2")
    def tail_prep():
        A(f"v_lshlrev_b32 v{Z+1}, 2, v{VC}")
        A(f"v_lshlrev_b32 v{Z+2}, 4, v{VG}")
        for mt in range(3):
            A(f"v_add_u32 v{T+3}, {64*mt}, v{Z+1}")
            A(f"ds_bpermute_b32 v{T+mt}, v{T+3}, v{VDEG}")
        A(f"s_lshl_b32 s{T0}, s{SWV}, 6")
        A(f"v_add_u32 v{Z+3}, s{T0}, v{Z+2}")
        A(f"ds_read_b128 {vr(B2F,4)}, v{Z+3} offset:{L_CV+2048}")
        A(f"s_movk_i32 s{T1}, {HROW}")
        A(f"v_mad_u32_u24 v{AD}, v{VC}, s{T1}, v{Z+2}")
        A(f"v_lshlrev_b32 v{OUTA}, 8, v{VC}")
        A(f"v_lshl_add_u32 v{OUTA}, v{VG}, 3, v{OUTA}")
        A(f"v_add_u32 v{Z+2}, {L_ZROW}, v{Z+2}")
        A(f"v_add_u32 v{AD+2}, {L_H + 32*HROW}, v{AD}")
        A(f"v_add_u32 v{AD+1}, {L_H + 16*HROW}, v{AD}")
        A(f"v_add_u32 v{AD}, {L_H}, v{AD}")
        A("s_waitcnt lgkmcnt(0)")
        for mt in range(3):
            A(f"v_cmp_eq_u32 vcc, 0, v{T+mt}")
            A(f"v_cvt_f32_u32 v{T+mt}, v{T+mt}")
            A(f"v_mul_f32 v{T+mt}, 0x3e800000, v{T+mt}")
            A(f"v_cndmask_b32 v{AD+mt}, v{AD+mt}, v{Z+2}, vcc")
            sel = "op_sel_hi:[1,0]" if mt % 2 == 0 else "op_sel:[0,1]"
            A(f"v_pk_mul_f32 {vr(OV+4*mt,2)}, {vr(B2F,2)}, {vr(T+(mt&2),2)} {sel}")
            A(f"v_pk_mul_f32 {vr(OV+4*mt+2,2)}, {vr(B2F+2,2)}, {vr(T+(mt&2),2)} {sel}")
    def w2_load():
        A(f"s_mov_b32 s{SW2}, 0")
        A(f"s_lshl_b32 s{T0}, s{SWV}, 13")
        A(f"s_add_u32 s{T0}, s{T0}, {hex(WS_W2F)}")
        A(f"s_add_u32 s{T1}, s{T0}, 4096")
        for k in range(8):
            A(f"buffer_load_dwordx4 {vr(W2R+4*k,4)}, v{VL16}, {sr(SW,4)}, s{T0 + k//4} offen offset:{(k%4)*1024} sc1")
    A(f"s_cmp_ge_u32 s{SWV}, 8")
    A("s_cbranch_scc1 K_NOTP")
    tail_prep()
    L("K_NOTP")
    A(f"v_mov_b32 v{LO}, v{Z2}")
    A(f"v_mov_b32 v{PZ}, 0")
    A(f"v_mov_b32 v{PZ+1}, 0")
    VW = 2 * (R - 1)
    if STAMP:
        A(f"s_waitcnt vmcnt({VW})")
        stamp(9)
    A(f"s_cmp_eq_u32 s{SNN}, 0")
    A("s_cbranch_scc1 K_WDONE")
    A("s_branch K_HC0")

    def e_sel(s):
        base = EV + (s & ~1)
        return (vr(base, 2), "op_sel_hi:[1,0,1]") if s % 2 == 0 else (vr(base, 2), "op_sel:[0,1,0]")
    def part_z1(s, z):
        ep, es = e_sel(s)
        return [f"v_pk_fma_f32 {vr(z,2)}, {vr(W,2)}, {ep}, {vr(Q,2)} {es}",
                f"v_pk_fma_f32 {vr(z+2,2)}, {vr(W+2,2)}, {ep}, {vr(Q+2,2)} {es}"]
    def part_z2(s, z, zo=None, lo=LO):
        d = DAT + 2*s
        zo = z if zo is None else zo
        return [f"v_lshlrev_b64 {vr(lo,2)}, 16, {vr(d,2)}",
                f"v_pk_fma_f32 {vr(zo,2)}, {vr(d,2)}, {C2}, {vr(z,2)}",
                f"v_pk_fma_f32 {vr(zo+2,2)}, {vr(lo,2)}, {C2}, {vr(z+2,2)}"]
    def part_exp(z): return [f"v_exp_f32 v{T+k}, v{z+k}" for k in range(4)]
    def part_nd(z):
        return [f"v_pk_fma_f32 {vr(NN,2)}, {vr(NN,2)}, {vr(T,2)}, {vr(NN,2)}",
                f"v_pk_fma_f32 {vr(NN+2,2)}, {vr(NN+2,2)}, {vr(T+2,2)}, {vr(NN+2,2)}",
                f"v_pk_fma_f32 {vr(NN,2)}, {vr(z,2)}, {vr(DD,2)}, {vr(NN,2)}",
                f"v_pk_fma_f32 {vr(NN+2,2)}, {vr(z+2,2)}, {vr(DD+2,2)}, {vr(NN+2,2)}",
                f"v_pk_fma_f32 {vr(DD,2)}, {vr(DD,2)}, {vr(T,2)}, {vr(DD,2)}",
                f"v_pk_fma_f32 {vr(DD+2,2)}, {vr(DD+2,2)}, {vr(T+2,2)}, {vr(DD+2,2)}"]
    def addr_prep(k):
        A("s_waitcnt lgkmcnt(0)")
        A(f"v_pk_add_f32 {vr(OG[k],2)}, {vr(OG[k],2)}, v[2:3] op_sel:[0,1]")
        A(f"v_pk_add_f32 {vr(OG[k]+2,2)}, {vr(OG[k]+2,2)}, v[2:3] op_sel:[0,1]")
    def refill(s):
        og = OG[(s // 4) % 2]
        if s % 4 == 0:
            A(f"ds_read_b128 {vr(OG[(s//4+1)%2],4)}, v{VP} offset:{(R+s+4)*4}")
        row_load(DAT + 2*s, og + s % 4, pair=True)
        if s % 4 == 3:
            addr_prep((s // 4 + 1) % 2)
            A(f"ds_read_b128 {vr(EV+s-3,4)}, v{VP} offset:{PRIV_N*4 + (R+s-3)*4}")
    L("K_LOOP")
    for g in range(R // 4):
        L(f"K_G{g}")
        A(f"s_and_b32 s{T0}, s{SM}, {hex(0xF << (4*g))}")
        A(f"s_cbranch_scc1 K_S{4*g}")
        zz = [Z, Z2]
        s0 = 4*g
        for x in part_z1(s0, zz[0]): A(x)
        A(f"s_waitcnt vmcnt({VW})")
        for x in part_z2(s0, zz[0]): A(x)
        refill(s0)
        for k in range(4):
            s = s0 + k
            z, zn = zz[k % 2], zz[(k + 1) % 2]
            ex, nd = part_exp(z), part_nd(z)
            if k < 3:
                a, b = part_z1(s + 1, zn), part_z2(s + 1, zn)
                A(ex[0]); A(a[0]); A(ex[1]); A(a[1]); A(ex[2])
                A(f"s_waitcnt vmcnt({VW})")
                A(b[0]); A(ex[3]); A(nd[0]); A(b[1]); A(nd[1]); A(nd[2]); A(b[2]); A(nd[3])
                refill(s + 1)
                A(nd[4]); A(nd[5])
            else:
                for x in ex + nd: A(x)
    L("K_PEND")
    A(f"v_add_u32 v{VP}, {R*4}, v{VP}")
    A(f"s_lshr_b64 {sr(SM,2)}, {sr(SM,2)}, {R}")
    A(f"s_sub_u32 s{SREM}, s{SREM}, {R}")
    for thr, p in PRIO_T:
        A(f"s_cmp_gt_u32 s{SREM}, {thr}")
        A("s_cbranch_scc1 K_LOOP")
        A(f"s_setprio {p}")
    A(f"s_cmp_ge_u32 s{SWV}, 8")
    A("s_cbranch_scc1 K_LOOP")
    A(f"s_cmp_eq_u32 s{SW2}, 0")
    A("s_cbranch_scc1 K_LOOP")
    w2_load()
    A("s_branch K_LOOP")
    for s in range(R):
        L(f"K_S{s}")
        A(f"s_bitcmp1_b32 s{SM}, {s}")
        A(f"s_cbranch_scc1 K_H{s}")
        for x in part_z1(s, Z): A(x)
        A(f"s_waitcnt vmcnt({VW})")
        for x in part_z2(s, Z) + part_exp(Z) + part_nd(Z): A(x)
        L(f"K_J{s}")
        refill(s)
        if s % 4 == 3:
            A(f"s_branch K_G{s//4+1}" if s + 1 < R else "s_branch K_PEND")
    def fold():
        for k in range(4):
            A(f"v_rcp_f32 v{T+k}, v{DD+k}")
        A(f"v_pk_fma_f32 {vr(PZ,2)}, {vr(DD,2)}, {vr(NN,2)}, {vr(PZ,2)}")
        A(f"v_pk_fma_f32 {vr(PZ,2)}, {vr(DD+2,2)}, {vr(NN+2,2)}, {vr(PZ,2)}")
        A(f"v_pk_mul_f32 {vr(Z,2)}, {vr(NN,2)}, {vr(T,2)}")
        A(f"v_pk_mul_f32 {vr(Z+2,2)}, {vr(NN+2,2)}, {vr(T+2,2)}")
    def lead_flush():
        A(f"v_add_u32 v{Z2}, s{SSIDE}, v{VL16}")
        A(f"s_lshl_b32 s{T0}, s{SWV}, 2")
        A(f"v_mov_b32 v{Z2+1}, s{T0}")
        A(f"v_mov_b32 v{Z2+2}, 1")
        A(f"ds_write_b128 v{Z2}, {vr(Z,4)}")
        A(f"ds_write_b32 v{Z2+1}, v{Z2+2} offset:{L_SFL}")
        A(f"s_mov_b32 s{SLP}, 0")
    for s in range(R):
        L(f"K_H{s}")
        A(f"s_cmp_eq_u32 s{SREM}, {s}")
        A("s_cbranch_scc1 K_LAST")
        A(f"v_and_b32 v{LO}, 0xfc, v{EV+s}")
        A(f"v_mad_u32_u24 v{LO+1}, v{LO}, s{T2}, v{VQ16}")
        A(f"ds_read_b128 {vr(Q,4)}, v{LO+1}")
        fold()
        A(f"s_cmp_lg_u32 s{SLP}, 0")
        A(f"s_cbranch_scc1 K_LS{s}")
        A(f"v_cvt_pk_bf16_f32 v{Z}, v{Z}, v{Z+1}")
        A(f"v_cvt_pk_bf16_f32 v{Z+1}, v{Z+2}, v{Z+3}")
        A(f"ds_write_b64 v{VA}, {vr(Z,2)}")
        L(f"K_HC{s}")
        A(f"v_mad_u32_u24 v{VA}, v{LO}, s{T3}, v{VH8}")
        A(f"s_waitcnt vmcnt({VW}) lgkmcnt(0)")
        for x in part_z1(s, Z) + part_z2(s, Z, NN) + part_exp(NN): A(x)
        A(f"v_pk_add_f32 {vr(DD,2)}, {vr(T,2)}, 1.0 op_sel_hi:[1,0]")
        A(f"v_pk_add_f32 {vr(DD+2,2)}, {vr(T+2,2)}, 1.0 op_sel_hi:[1,0]")
        A(f"s_branch K_J{s}")
        L(f"K_LS{s}")
        lead_flush()
        A(f"s_branch K_HC{s}")
    L("K_LAST")
    A(f"s_lshl_b32 s{T0}, s{SWV}, 2")
    A(f"v_mov_b32 v{LO}, s{T0}")
    A(f"v_add_u32 v{LO+1}, s{SSIDE}, v{VL16}")
    A(f"ds_read_b32 v{Z2}, v{LO} offset:{L_SFL+4}")
    A(f"ds_read_b128 {vr(Q,4)}, v{LO+1} offset:1024")
    fold()
    A(f"s_cmp_eq_u32 s{SLP}, 0")
    A("s_cbranch_scc1 K_L1")
    A("s_waitcnt lgkmcnt(0)")
    lead_flush()
    A("s_branch K_WDONE")
    L("K_L1")
    A(f"s_cmp_eq_u32 s{STAIL}, 0")
    A("s_cbranch_scc1 K_L3")
    A(f"s_mov_b32 s{SSP}, {SPIN}")
    L("K_L2")
    A("s_waitcnt lgkmcnt(0)")
    A(f"v_readfirstlane_b32 s{T0}, v{Z2}")
    A(f"s_cmp_lg_u32 s{T0}, 0")
    A("s_cbranch_scc1 K_L2B")
    A(f"s_sub_u32 s{SSP}, s{SSP}, 1")
    A("s_cbranch_scc1 K_L2B")
    A("s_sleep 2")
    A(f"ds_read_b32 v{Z2}, v{LO} offset:{L_SFL+4}")
    A(f"ds_read_b128 {vr(Q,4)}, v{LO+1} offset:1024")
    A("s_branch K_L2")
    L("K_L2B")
    A(f"v_pk_add_f32 {vr(Z,2)}, {vr(Z,2)}, {vr(Q,2)}")
    A(f"v_pk_add_f32 {vr(Z+2,2)}, {vr(Z+2,2)}, {vr(Q+2,2)}")
    L("K_L3")
    A(f"v_cvt_pk_bf16_f32 v{Z}, v{Z}, v{Z+1}")
    A(f"v_cvt_pk_bf16_f32 v{Z+1}, v{Z+2}, v{Z+3}")
    A(f"ds_write_b64 v{VA}, {vr(Z,2)}")
    L("K_WDONE")
    stamp(10)
    A(f"v_add_f32 v{T}, v{PZ}, v{PZ+1}")
    A(f"v_mov_b32 v{Z2+1}, 0x207")
    A(f"v_cmp_class_f32 vcc, v{T}, v{Z2+1}")
    A(f"v_mov_b32 v{Z2+2}, 0")
    A(f"s_mov_b32 s{TP}, {hex(C_NLN2)}")
    srd(SO, POUT, N * D * 2)
    A("s_cbranch_vccz K_NOG")
    A(f"ds_write_b32 v{Z2+2}, v{Z2+1} offset:{L_FLAG+8}")
    L("K_NOG")
    A(f"s_cmp_ge_u32 s{SWV}, 8")
    A("s_cbranch_scc1 K_B4")
    A(f"s_cmp_eq_u32 s{SW2}, 0")
    A("s_cbranch_scc1 K_B4")
    w2_load()
    L("K_B4")
    A("s_waitcnt vmcnt(0) lgkmcnt(0)")
    A("s_barrier")
    stamp(11)
    A(f"ds_read_b32 v{Z2+3}, v{Z2+2} offset:{L_FLAG+8}")
    A(f"s_cmp_ge_u32 s{SWV}, 8")
    A("s_cbranch_scc1 K_CHK")
    HB = [48 + 4*k for k in range(8)]
    ACC = [12, 16, 20]
    seq = [(mt, s) for mt in range(3) for s in range(8)]
    PRE = 7
    for k in range(PRE):
        mt, s = seq[k]
        A(f"ds_read_b128 {vr(HB[k%8],4)}, v{AD+mt} offset:{s*64}")
    def epi(mt):
        for r in range(4):
            A(f"v_fma_f32 v{OV+4*mt+r}, v{ACC[mt]+r}, s{TP}, v{OV+4*mt+r}")
        A(f"v_cvt_pk_bf16_f32 v{32+2*mt}, v{OV+4*mt}, v{OV+4*mt+1}")
        A(f"v_cvt_pk_bf16_f32 v{33+2*mt}, v{OV+4*mt+2}, v{OV+4*mt+3}")
    for k, (mt, s) in enumerate(seq):
        if k + PRE < 24:
            m2, s2 = seq[k+PRE]
            A(f"ds_read_b128 {vr(HB[(k+PRE)%8],4)}, v{AD+m2} offset:{s2*64}")
        A(f"s_waitcnt lgkmcnt({min(PRE, 23-k)})")
        c = "0" if s == 0 else vr(ACC[mt], 4)
        A(f"v_mfma_f32_16x16x32_bf16 {vr(ACC[mt],4)}, {vr(W2R+4*s,4)}, {vr(HB[k%8],4)}, {c}")
        if s == 4 and mt > 0:
            epi(mt - 1)
    A("s_nop 7")
    epi(2)
    L("K_CHK")
    A("s_waitcnt lgkmcnt(0)")
    A(f"v_readfirstlane_b32 s{T2}, v{Z2+3}")
    A(f"s_lshl_b32 s{T1}, s{SMODE}, 31")
    A(f"s_or_b32 s{T2}, s{T2}, s{T1}")
    A(f"s_cmp_gt_i32 s{T2}, 0")
    A("s_cbranch_scc1 K_REDO")
    A(f"s_cmp_ge_u32 s{SWV}, 8")
    A("s_cbranch_scc1 K_END2")
    A(f"s_add_u32 s{T2}, s{SOUT}, 4096")
    A(f"s_add_u32 s{T1}, s{SOUT}, 8192")
    A(f"buffer_store_dwordx2 v[32:33], v{OUTA}, {sr(SO,4)}, s{SOUT} offen")
    A(f"buffer_store_dwordx2 v[34:35], v{OUTA}, {sr(SO,4)}, s{T2} offen")
    A(f"s_mov_b64 exec, {sr(SQM,2)}")
    A(f"buffer_store_dwordx2 v[36:37], v{OUTA}, {sr(SO,4)}, s{T1} offen")
    A("s_mov_b64 exec, -1")
    L("K_END2")
    if STAMP:
        stamp(12)
        A("s_waitcnt vmcnt(0)")
        stamp(13)
        A(f"v_writelane_b32 v{VST}, s26, 14")
        A(f"s_lshl_b32 s{T0}, s2, 4")
        A(f"s_add_u32 s{T0}, s{T0}, s{SWV}")
        A(f"s_lshl_b32 s{T0}, s{T0}, 8")
        A(f"s_add_u32 s{T0}, s{T0}, {hex(WS_DBG)}")
        A(f"buffer_store_dword v{VST}, v2, {sr(SW,4)}, s{T0} offen")
    L("K_END")
    A("s_endpgm")

    L("K_WL")
    for k in range(8):
        A(f"s_mov_b64 exec, {sr(MK[k],2)}")
        A("s_cbranch_execz K_WB")
        A(f"v_add_lshl_u32 v{PS+k}, v{PS+k}, v{RK+k}, 1")
        A(f"ds_write_b64 v{PS+k}, {vr(RC+2*k,2)} offset:{L_LIST}")
    A("s_branch K_WB")
    L("K_REDO")
    A(f"s_mov_b32 s{SMODE}, 1")
    A("s_setprio 0")
    A(f"v_and_b32 v{VC}, 15, v1")
    A(f"v_lshrrev_b32 v{VG}, 4, v1")
    A(f"v_mov_b32 v{VDEG}, 0")
    A(f"v_mov_b32 v{PZ}, 0")
    A(f"s_mov_b32 s{SFIRST}, 1")
    A("v_lshrrev_b32 v31, 1, v0")
    A("v_lshlrev_b32 v31, 11, v31")
    def reset_round():
        A("s_barrier")
        A(f"s_cmp_lg_u32 s{SWV}, 0")
        uid[0] += 1
        A(f"s_cbranch_scc1 K_RR{uid[0]}")
        A("v_mov_b32 v89, 0")
        A("ds_write_b32 v2, v89")
        A(f"ds_write_b32 v89, v89 offset:{L_FLAG}")
        A(f"ds_write_b32 v89, v89 offset:{L_GC+16}")
        A("s_waitcnt lgkmcnt(0)")
        L(f"K_RR{uid[0]}")
        A("s_barrier")
    reset_round()
    A(f"s_cmp_ge_u32 s{SWV}, 8")
    A("s_cbranch_scc1 K_B3")
    A("s_branch K_REC0")
    L("K_SLOW")
    A(f"s_cmp_eq_u32 s{SFIRST}, 0")
    A("s_cbranch_scc1 K_SL0")
    for k in range(12):
        A(f"v_mov_b32 v{SACC+k}, 0")
    L("K_SL0")
    for i in range(3):
        A(f"s_add_u32 s{T0}, s{SWV}, {16*i}")
        A(f"v_readlane_b32 s{T1}, v{VB4}, s{T0}")
        A(f"v_readlane_b32 s{T2}, v{VCNT}, s{T0}")
        A(f"s_mul_i32 s{T3}, s{T0}, {QROW}")
        A(f"s_cmp_eq_u32 s{T2}, 0")
        A(f"s_cbranch_scc1 K_SLN{i}")
        A(f"v_add_u32 v{Z2}, s{T3}, v{VQ16}")
        A(f"ds_read_b128 {vr(Q,4)}, v{Z2}")
        A(f"s_lshl_b32 s{T1}, s{T1}, 1")
        A(f"v_mov_b32 v{VA}, s{T1}")
        L(f"K_SLL{i}")
        A(f"ds_read_b64 {vr(EV,2)}, v{VA} offset:{L_LIST}")
        A(f"v_add_u32 v{VA}, 8, v{VA}")
        A("s_waitcnt lgkmcnt(0)")
        row_load(DAT + 2, EV)
        for x in part_z1(1, Z): A(x)
        A("s_waitcnt vmcnt(0)")
        for x in part_z2(1, Z, lo=NN) + part_exp(Z): A(x)
        A("s_nop 0")
        for k in range(4):
            A(f"v_add_f32 v{T+k}, 1.0, v{T+k}")
        for k in range(4):
            A(f"v_rcp_f32 v{T+k}, v{T+k}")
        A(f"s_sub_u32 s{T2}, s{T2}, 4")
        for k in range(4):
            A(f"v_fmac_f32 v{SACC+4*i+k}, v{Z+k}, v{T+k}")
        A(f"s_cmp_lg_u32 s{T2}, 0")
        A(f"s_cbranch_scc1 K_SLL{i}")
        L(f"K_SLN{i}")
    A(f"s_mov_b32 s{SFIRST}, 0")
    A("s_waitcnt lgkmcnt(0)")
    reset_round()
    A(f"s_cmp_eq_u32 s{SLP}, 0")
    A("s_cbranch_scc1 K_SLFIN")
    A(f"s_cmp_ge_u32 s{SWV}, 8")
    A("s_cbranch_scc1 K_B3")
    A(f"v_add_u32 v{PZ}, -16, v{PZ}")
    A(f"v_add_u32 v{PZ+1}, 128, v{PZ+1}")
    A("s_branch K_RECS")
    L("K_SLFIN")
    A(f"v_mov_b32 v{PZ}, 0")
    A(f"v_mov_b32 v{PZ+1}, 0")
    for i in range(3):
        if i == 2:
            A(f"s_cmp_ge_u32 s{SWV}, {NPB-32}")
            A("s_cbranch_scc1 K_WDONE")
        A(f"s_add_u32 s{T0}, s{SWV}, {16*i}")
        A(f"s_mul_i32 s{T0}, s{T0}, {HROW}")
        A(f"v_add_u32 v{Z2}, s{T0}, v{VH8}")
        A(f"v_cvt_pk_bf16_f32 v{Z}, v{SACC+4*i}, v{SACC+4*i+1}")
        A(f"v_cvt_pk_bf16_f32 v{Z+1}, v{SACC+4*i+2}, v{SACC+4*i+3}")
        A(f"ds_write_b64 v{Z2}, {vr(Z,2)}")
    tail_prep()
    A("s_branch K_WDONE")
    L("K_CODE_END")

hdr = f"""; Kernarg layout for this problem (88 bytes, ptrs only, base s[0:1]):
; @launch grid=({NB},1,1) block=(1024,1,1) lds={LDS}
.amdgcn_target "amdgcn-amd-amdhsa--gfx950"
"""
gen()
vg = 128
out.extend(['.section .rodata,"a"', ".p2align 6", f".amdhsa_kernel {KN}",
    f"  .amdhsa_next_free_vgpr {vg}", f"  .amdhsa_next_free_sgpr 102", f"  .amdhsa_accum_offset {vg}",
    "  .amdhsa_group_segment_fixed_size 0", "  .amdhsa_kernarg_size 88", "  .amdhsa_user_sgpr_count 2",
    "  .amdhsa_user_sgpr_kernarg_segment_ptr 1", "  .amdhsa_system_sgpr_workgroup_id_x 1", ".end_amdhsa_kernel"])
txt = hdr + "\n".join(out) + "\n"
dst = sys.argv[1] if len(sys.argv) > 1 else f"fused.s"
open(dst, "w").write(txt)
print("wrote", dst, "LDS", LDS)
```

```python
import sys, struct, os

NAME = "standalone__edge_featured_mpnn_mpnn__graph"
KN = NAME + "_kernel"
N, E, D, H = 10000, 160000, 128, 256
NB, NPB, CH = 250, 40, 640
WS_REC = 0x500000
WS_OFS = 0x680000
WS_PF = 0x700000
WS_W2F = 0x710000
WS_DBG = 0x2000000
WS_BYTES = 0x10000000
R = 8
PRIO_T = eval(os.environ.get("PRIO_T", "((32, 2), (21, 1), (10, 0))"))
STAMP = os.environ.get("STAMP", "0") == "1"
PI = [1, 3, 0, 2]
FBASE = 0x4B000000
SPIN = 1 << 16
SLP_N = int(os.environ.get('SLP', '2'))

def f32bits(x): return struct.unpack("<I", struct.pack("<f", x))[0]
C_NLOG2E = f32bits(-1.4426950408889634)
C_NLN2 = f32bits(-0.6931471805599453)

out = []
def A(s): out.append("    " + s)
def L(s): out.append(s + ":")
def CM(s): out.append("    ; " + s)
def vr(a, n): return f"v[{a}:{a+n-1}]"
def sr(a, n): return f"s[{a}:{a+n-1}]"

PX, PE, PSRC, PDST, PW1, PB1, PW2, PB2 = 4, 6, 8, 10, 12, 14, 16, 18
POUT, PDBG, PWS = 20, 22, 24

def srd(dst, base, nrec, off=None):
    if off is not None:
        A(f"s_add_u32 s{dst}, s{base}, {off}")
        A(f"s_addc_u32 s{dst+1}, s{base+1}, 0")
        src1 = dst + 1
    else:
        A(f"s_mov_b32 s{dst}, s{base}")
        src1 = base + 1
    A(f"s_and_b32 s{dst+1}, s{src1}, 0xffff")
    A(f"s_mov_b32 s{dst+2}, {hex(nrec)}")
    A(f"s_mov_b32 s{dst+3}, 0x20000")

NST = 0
def stamp(k):
    if STAMP: A(f"s_memrealtime s[100:101]"); A("s_waitcnt lgkmcnt(0)"); A(f"v_writelane_b32 v{VST}, s100, {k}")

QROW, HROW, PROW = 1040, 528, 272
L_CNT, L_FLAG, L_SFL, L_ZROW, L_GC, L_TOK = 0, 256, 272, 352, 864, 892
L_CV = 896
L_HIST = L_CV + 2560
L_PRIV = L_HIST + 1024
ZERO_B = L_PRIV
PRIV_N = 64 + R + 8
PRIV_B = PRIV_N * 8
L_H = L_PRIV + 16 * PRIV_B
L_XT = L_H + NPB * HROW
L_SIDE = L_XT
L_Q = L_XT + 20480
L_S = L_Q + NPB * QROW
L_SB = L_H + 10240
L_PT = L_Q
LDS = L_S + 65536
L_LIST = L_HIST
assert LDS <= 163840 and L_XT - L_LIST >= 32000 and L_H % 16 == 0 and L_Q % 16 == 0 and L_S % 16 == 0 and L_XT % 16 == 0
W1B_EARLY = 0
W1B_AT = 2
W1B_H = int(os.environ.get("W1BH", "0"))
GWD = int(os.environ.get("GWD", "0"))
PD0 = int(os.environ.get("PD0", "0"))
WIN = 16 * 63
DUMMY = FBASE + 0x7FF000

VLF, VH8, VL16, VT16, VQ16 = 3, 4, 5, 6, 7
W, Q, NN, DD, Z, Z2, T, LO, PZ = 8, 12, 16, 20, 24, 28, 32, 36, 38
VA, VP, VDEG, VB4, VCNT, VPL, VM, VEND = 40, 41, 42, 43, 44, 45, 46, 47
EV, OG, DAT = 48, [56, 60], 64
AD, OUTA, OV, B2F = 80, 83, 84, 92
XF = 48
WL, PT = 96, 112
W2R = 96
RC = 96
VST = 45
SACC = 112

def gen():
    out.extend([".text", f".globl {KN}", ".p2align 8", f".type {KN},@function"])
    L(KN)
    ST, SW, SO, SX, SY, SZ = 28, 32, 36, 40, 44, 48
    MK = [4 + 2*k for k in range(8)]
    SC = 60
    SMODE, SFIRST, SRND, SFAST, STOK, SSP = 62, 63, 64, 65, 66, 67
    SM = 68
    SREM, STOT, SLP, SNN, SWV = 70, 71, 72, 73, 3
    SN40, SEX = 74, 76
    T0, T1, T2, T3, TP = 78, 79, 80, 81, 82
    STAIL, SSIDE, SLEN, SOUT, SWO = 84, 85, 86, 87, 88
    SQM, P0, P1 = 90, 92, 93
    SB8, SW2, SOWN, STAG, SN80, SCB = 75, 89, 52, 54, 55, 56
    C2 = sr(SC, 2)
    SCAN = ("row_shr:2 row_mask:0xf bank_mask:0xf bound_ctrl:0", "row_shr:4 row_mask:0xf bank_mask:0xf bound_ctrl:0",
            "row_shr:8 row_mask:0xf bank_mask:0xf bound_ctrl:0", "row_bcast:15 row_mask:0xa bank_mask:0xf", "row_bcast:31 row_mask:0xc bank_mask:0xf")
    VC, VG = 36, 37
    GRT = 34
    VZ, VONE = VEND, VM

    A("s_load_dwordx16 s[4:19], s[0:1], 0")
    A("s_load_dwordx4 s[20:23], s[0:1], 64")
    A("s_load_dwordx2 s[24:25], s[0:1], 80")
    A("s_memrealtime s[26:27]")
    CM("pull the code towards the L2 right away (one load per 128-B line; lanes past the code are out of range)")
    A(f"s_getpc_b64 {sr(SX,2)}")
    L("K_PC0")
    A("v_lshlrev_b32 v126, 7, v0")
    A(f"s_and_b32 s{SX+1}, s{SX+1}, 0xffff")
    A(f"s_mov_b32 s{SX+2}, K_CODE_END-K_PC0")
    A(f"s_mov_b32 s{SX+3}, 0x20000")
    A(f"buffer_load_dword v{VDEG}, v126, {sr(SX,4)}, 0 offen")
    A(f"s_cmp_ge_u32 s2, {NB}")
    A("s_cbranch_scc1 K_END")
    A("v_and_b32 v1, 63, v0")
    A("v_lshrrev_b32 v48, 6, v0")
    A(f"v_lshlrev_b32 v{VT16}, 4, v0")
    A(f"v_readfirstlane_b32 s{SWV}, v48")
    A("v_lshlrev_b32 v2, 2, v1")
    A(f"v_lshlrev_b32 v{VL16}, 4, v1")
    A(f"v_and_b32 v{VC}, 15, v1")
    A(f"v_lshrrev_b32 v{VG}, 4, v1")
    if STAMP: A(f"v_mov_b32 v{VST}, 0")
    A(f"v_mov_b32 v{VZ}, 0")
    A(f"v_mov_b32 v{VONE}, 1")
    for k in range(4):
        A(f"v_mov_b32 v{8+k}, 0")
    A(f"s_movk_i32 s{T0}, {ZERO_B//16}")
    A(f"v_cmp_gt_u32 vcc, s{T0}, v0")
    A(f"s_mul_i32 s{SN40}, s2, {NPB}")
    A(f"s_lshr_b32 s{SN80}, s2, 1")
    A(f"s_mul_i32 s{SN80}, s{SN80}, 80")
    A(f"s_and_b32 s{SCB}, s2, 1")
    A(f"s_and_saveexec_b64 {sr(SEX,2)}, vcc")
    A("s_cbranch_execz K_Z1")
    A(f"ds_write_b128 v{VT16}, v[8:11]")
    L("K_Z1")
    A(f"s_mov_b64 exec, {sr(SEX,2)}")
    A(f"s_mov_b32 s{P0}, 0x05040100")
    A(f"s_mov_b32 s{P1}, 0x07060302")
    A(f"s_mov_b32 s{SC}, {hex(C_NLOG2E)}")
    A(f"s_mov_b32 s{SC+1}, {hex(C_NLOG2E)}")
    A(f"s_mul_i32 s{SW2}, s{SWV}, {PRIV_B}")
    A(f"s_add_u32 s{SW2}, s{SW2}, {L_PRIV}")
    A(f"v_add_u32 v30, s{SW2}, v2")
    A(f"v_mov_b32 v31, {hex(DUMMY)}")
    A("ds_write_b32 v30, v31")
    A(f"ds_write_b32 v30, v31 offset:{(PRIV_N-64)*4}")
    A(f"s_cmp_lt_u32 s{SWV}, 8")
    A("s_cbranch_scc1 K_AUX")
    def common_setup():
        srd(SW, PWS, WS_BYTES)
        A(f"s_lshl_b32 s{SSIDE}, s{SWV}, 10")
        A(f"s_add_u32 s{SSIDE}, s{SSIDE}, {L_SIDE}")
        A(f"s_mov_b32 s{SMODE}, 0")
        A(f"s_sub_u32 s{ST}, s{PWS}, {hex(FBASE)}")
        A(f"s_subb_u32 s{ST+1}, s{PWS+1}, 0")
        A(f"s_and_b32 s{ST+1}, s{ST+1}, 0xffff")
        A(f"s_mov_b32 s{ST+2}, {hex(FBASE + N*512)}")
        A(f"s_mov_b32 s{ST+3}, 0x20000")
        A(f"s_lshl_b32 s{SB8}, s2, 3")
        A(f"s_add_u32 s{SB8}, s{SB8}, {hex(WS_OFS)}")
        A(f"v_cvt_f32_u32 v{VLF}, v2")
        A(f"v_lshlrev_b32 v{VH8}, 3, v1")
        A(f"v_add_u32 v{VH8}, {L_H}, v{VH8}")
        A(f"v_add_u32 v{VQ16}, {L_Q}, v{VL16}")
        A(f"v_cmp_gt_u32 {sr(SQM,2)}, 8, v{VC}")
        A(f"s_lshl_b32 s{SOUT}, s{SN40}, 8")
        A(f"s_lshl_b32 s{T2}, s{SWV}, 5")
        A(f"s_add_u32 s{SOUT}, s{SOUT}, s{T2}")
        A(f"s_mov_b32 s{SFIRST}, 1")
    uid = [0]
    def arrive(c):
        A("s_mov_b64 exec, 1")
        A(f"ds_add_u32 v{VZ}, v{VONE} offset:{L_GC + 4*c}")
        A("s_mov_b64 exec, -1")
    def await_lds(off, n, vt, sdst, nonzero=False, slp=1):
        uid[0] += 1; u = uid[0]
        A(f"s_mov_b32 s{SSP}, {SPIN*16}")
        L(f"K_AW{u}")
        A(f"ds_read_b32 v{vt}, v{VZ} offset:{off}")
        A("s_waitcnt lgkmcnt(0)")
        A(f"v_readfirstlane_b32 s{sdst}, v{vt}")
        A(f"s_cmp_lg_u32 s{sdst}, 0" if nonzero else f"s_cmp_ge_u32 s{sdst}, {n}")
        A(f"s_cbranch_scc1 K_AWD{u}")
        A(f"s_sub_u32 s{SSP}, s{SSP}, 1")
        A("s_cbranch_scc1 K_END")
        A(f"s_sleep {slp}")
        A(f"s_branch K_AW{u}")
        L(f"K_AWD{u}")
    def perm4(dst, col, src=WL):
        for pr in range(4):
            a, b = src + 8*pr + (col >> 1), src + 8*pr + 4 + (col >> 1)
            A(f"v_perm_b32 v{dst+pr}, v{b}, v{a}, s{P1 if col & 1 else P0}")
    def franks(srdn):
        pass
    VPA, VQA, VB1A, VSW, VWO = 41, 38, 43, 44, 39
    A(f"v_lshlrev_b32 v{VWO}, 12, v{VG}")
    A(f"v_lshl_add_u32 v{VWO}, v{VC}, 4, v{VWO}")
    A(f"s_and_b32 s{T0}, s{SWV}, 3")
    A(f"s_bfe_u32 s{T3}, s{SWV}, 0x10002")
    A(f"s_lshl_b32 s{SWO}, s{T0}, 14")
    A(f"s_lshl_b32 s{T1}, s{T3}, 11")
    A(f"s_add_u32 s{T1}, s{T1}, s{SWO}")
    A(f"s_lshl_b32 s{T2}, s{SCB}, 8")
    A(f"s_add_u32 s{T1}, s{T1}, s{T2}")
    A(f"s_lshl_b32 s{T2}, s{T3}, 8")
    A(f"s_add_u32 s{SWO}, s{SWO}, s{T2}")
    A(f"s_add_u32 s{SWO}, s{SWO}, {128*512}")
    A("s_waitcnt lgkmcnt(0)")
    srd(SY, PW1, 257 * 512)
    A("s_barrier")
    for j in range(4):
        A(f"buffer_load_dwordx4 {vr(64+4*j,4)}, v{VWO}, {sr(SY,4)}, s{T1} offen offset:{512*j}")
    if W1B_EARLY:
        for j in range(8):
            A(f"buffer_load_dwordx4 {vr(WL+4*j,4)}, v{VWO}, {sr(SY,4)}, s{SWO} offen offset:{512*j}")
    common_setup()
    A(f"s_lshl_b32 s{T0}, s{T0}, 10")
    A(f"s_add_u32 s{T0}, s{T0}, {L_S}")
    A(f"s_lshl_b32 s{T1}, s{T3}, 3")
    A(f"s_add_u32 s{T1}, s{T1}, s{T0}")
    A(f"v_add_u32 v12, s{T1}, v{VL16}")
    A(f"s_lshl_b32 s{T1}, s{T3}, 15")
    A(f"s_add_u32 s{T1}, s{T1}, s{T0}")
    A(f"v_add_u32 v{VSW}, s{T1}, v{VL16}")
    XA = 8
    A(f"v_xor_b32 v13, v{VG}, v{VC}")
    A("v_lshlrev_b32 v13, 4, v13")
    A(f"v_lshl_add_u32 v13, v{VC}, 8, v13")
    for s_ in range(4):
        A(f"v_xor_b32 v{XA+s_}, {64*s_}, v13")
    A(f"s_sub_u32 s{T0}, s{SWV}, 8")
    A(f"s_lshl_b32 s{T1}, s{T0}, 12")
    A(f"s_add_u32 s{T1}, s{T1}, {L_S}")
    A(f"v_add_u32 v{VA}, s{T1}, v{VL16}")
    A(f"s_lshr_b32 s{T1}, s{T0}, 2")
    A(f"s_lshl_b32 s{T1}, s{T1}, 4")
    A(f"s_and_b32 s{T2}, s{T0}, 3")
    A(f"s_add_u32 s{T1}, s{T1}, s{T2}")
    A(f"v_lshl_add_u32 v13, v{VG}, 2, s{T1}")
    A(f"s_movk_i32 s{T1}, {PROW}")
    A(f"v_lshlrev_b32 v{VPA}, 2, v13")
    A(f"v_mad_u32_u24 v{VPA}, v{VC}, s{T1}, v{VPA}")
    A(f"v_add_u32 v{VPA}, {L_PT}, v{VPA}")
    A(f"s_mov_b32 s{T2}, 0x8000")
    A(f"s_waitcnt vmcnt({8 if W1B_EARLY else 0})")
    stamp(1)
    for pr in range(2):
        for dw in range(4):
            a_, b_ = 64 + 8*pr + dw, 64 + 8*pr + 4 + dw
            A(f"v_perm_b32 v{48+(2*dw)*2+pr}, v{b_}, v{a_}, s{P0}")
            A(f"v_perm_b32 v{48+(2*dw+1)*2+pr}, v{b_}, v{a_}, s{P1}")
    for col in range(8):
        A(f"ds_write_b64 v12, {vr(48+2*col,2)} offset:{col*4096}")
    def w1b_loads():
        for j in range(8):
            A(f"buffer_load_dwordx4 {vr(WL+4*j,4)}, v{VWO}, {sr(SY,4)}, s{SWO} offen offset:{512*j}")
    if W1B_AT == 0: w1b_loads()
    A("s_waitcnt lgkmcnt(0)")
    arrive(0)
    await_lds(L_GC, 13, 12, T0)
    stamp(3)
    if W1B_H:
        A(f"s_cmp_ge_u32 s{SWV}, 12")
        A("s_cbranch_scc1 K_NOH1")
        w1b_loads()
        L("K_NOH1")
    AF, XR = 48, [64 + 4*k for k in range(8)]
    ACP = lambda mt: 16 + 4*mt
    for s_ in range(4):
        A(f"ds_read_b128 {vr(AF+4*s_,4)}, v{VA} offset:{s_*1024}")
    seq = [(mt, s_) for mt in range(5) for s_ in range(4)]
    PRE = 7
    def rdx(k):
        mt, s_ = seq[k]
        A(f"ds_read_b128 {vr(XR[k%8],4)}, v{XA+s_} offset:{L_XT + 4096*mt}")
    for k in range(PRE): rdx(k)
    def pack(mt):
        f = [ACP(mt) + r for r in range(4)]
        o = []
        o += [f"v_add_f32 v{f[r]}, 0, v{f[r]}" for r in range(4)]
        o += [f"v_add_u32 v{f[r]}, s{T2}, v{f[r]}" for r in range(4)]
        o += [f"v_sub_u32_sdwa v{f[r]}, v{f[r]}, v{f[r-1]} clamp dst_sel:DWORD dst_unused:UNUSED_PAD src0_sel:DWORD src1_sel:WORD_1" for r in range(1, 4)]
        o += [f"v_perm_b32 v{f[0]}, v{f[1]}, v{f[0]}, s{P1}", f"v_perm_b32 v{f[2]}, v{f[3]}, v{f[2]}, s{P1}"]
        return o
    pend = []
    for k, (mt, s_) in enumerate(seq):
        if k + PRE < 20: rdx(k + PRE)
        A(f"s_waitcnt lgkmcnt({min(PRE, 19-k)})")
        c = "0" if s_ == 0 else vr(ACP(mt), 4)
        A(f"v_mfma_f32_16x16x32_bf16 {vr(ACP(mt),4)}, {vr(AF+4*s_,4)}, {vr(XR[k%8],4)}, {c}")
        if s_ == 3 and mt >= 1: pend += pack(mt - 1)
        for x in pend[:4]: A(x)
        pend = pend[4:]
    for x in pend: A(x)
    A("s_nop 1")
    for x in pack(4): A(x)
    for mt in range(5):
        A(f"ds_write_b32 v{VPA}, v{ACP(mt)} offset:{16*mt*PROW}")
        A(f"ds_write_b32 v{VPA}, v{ACP(mt)+2} offset:{16*mt*PROW + 128}")
    A("v_bfe_u32 v12, v0, 4, 4")
    A(f"s_movk_i32 s{T1}, {PROW}")
    A(f"v_lshlrev_b32 v13, 4, v{VC}")
    A(f"v_mad_u32_u24 v14, v12, s{T1}, v13")
    A(f"v_add_u32 v14, {L_PT}, v14")
    A("v_and_b32 v15, 0x70, v13")
    A("v_lshl_add_u32 v15, v12, 9, v15")
    A("v_and_b32 v13, 0x80, v13")
    A("v_lshl_add_u32 v15, v13, 1, v15")
    A(f"s_lshl_b32 s{T0}, s{SN80}, 9")
    A(f"s_lshl_b32 s{T1}, s{SCB}, 7")
    A(f"s_add_u32 s{T0}, s{T0}, s{T1}")
    A("s_waitcnt lgkmcnt(0)")
    arrive(1)
    await_lds(L_GC + 4, 9, 12, T3)
    stamp(4)
    A(f"s_cmp_lt_u32 s{SWV}, 12")
    A("s_cbranch_scc1 K_GW")
    for k in range(5):
        A(f"ds_read_b128 {vr(48+4*k,4)}, v14 offset:{16*k*PROW}")
    for k in range(5):
        A(f"s_waitcnt lgkmcnt({4-k})")
        A(f"buffer_store_dwordx4 {vr(48+4*k,4)}, v15, {sr(SW,4)}, s{T0} offen sc1")
        A(f"s_add_u32 s{T0}, s{T0}, 8192")
    arrive(2)
    await_lds(L_TOK, 0, 14, STOK, nonzero=True)
    A("s_waitcnt vmcnt(0)")
    A("s_mov_b64 exec, 1")
    A(f"ds_add_rtn_u32 v15, v{VZ}, v{VONE} offset:{L_GC+12}")
    A(f"s_lshl_b32 s{T0}, s2, 4")
    A(f"s_add_u32 s{T0}, s{T0}, {hex(WS_PF)}")
    A("s_waitcnt lgkmcnt(0)")
    A(f"v_readfirstlane_b32 s{T1}, v15")
    A(f"s_cmp_lg_u32 s{T1}, 3")
    A("s_cbranch_scc1 K_NOPF")
    A(f"buffer_store_dword v14, v{VZ}, {sr(SW,4)}, s{T0} offen sc1")
    L("K_NOPF")
    A("s_mov_b64 exec, -1")
    A("s_branch K_GQ")
    L("K_GW")
    if GWD: A(f"s_sleep {GWD}")
    if not W1B_H:
        w1b_loads()
    A(f"s_add_u32 s{T0}, s{SWO}, 256")
    for j in range(8):
        A(f"buffer_load_dwordx4 {vr(64+4*j,4)}, v{VWO}, {sr(SY,4)}, s{T0} offen offset:{512*j}")
    A("s_waitcnt vmcnt(8)")
    for col in range(8):
        d = 16 + 4 * (col % 5)
        perm4(d, col)
        A(f"ds_write_b128 v{VSW}, {vr(d,4)} offset:{col*4096}")
    A("s_waitcnt vmcnt(0)")
    for col in range(8):
        d = 16 + 4 * ((col + 3) % 5)
        perm4(d, col, 64)
        A(f"ds_write_b128 v{VSW}, {vr(d,4)} offset:{32768 + col*4096}")
    A("s_waitcnt lgkmcnt(0)")
    arrive(2)
    await_lds(L_TOK, 0, 14, STOK, nonzero=True)
    L("K_GQ")
    A(f"s_sub_u32 s{T0}, s{SWV}, 8")
    A(f"s_lshl_b32 s{T1}, s{T0}, 13")
    A(f"s_add_u32 s{T1}, s{T1}, {L_S}")
    A(f"v_add_u32 v{VA}, s{T1}, v{VL16}")
    A(f"s_lshr_b32 s{T1}, s{T0}, 1")
    A(f"s_lshl_b32 s{T1}, s{T1}, 4")
    A(f"s_and_b32 s{T0}, s{T0}, 1")
    A(f"s_lshl_b32 s{T0}, s{T0}, 1")
    A(f"s_add_u32 s{T0}, s{T0}, s{T1}")
    A(f"v_lshl_add_u32 v12, v{VG}, 2, s{T0}")
    A(f"v_lshlrev_b32 v{VB1A}, 4, v12")
    A(f"s_movk_i32 s{T1}, {QROW}")
    A(f"v_mad_u32_u24 v{VPA}, v{VC}, s{T1}, v{VB1A}")
    A(f"v_add_u32 v{VPA}, {L_Q}, v{VPA}")
    A(f"s_mul_i32 s{T0}, s{SCB}, 40")
    A(f"v_add_u32 v12, s{T0}, v{VC}")
    A(f"v_xor_b32 v13, v{VG}, v12")
    A("v_and_b32 v13, 15, v13")
    A("v_lshlrev_b32 v13, 4, v13")
    A("v_lshl_add_u32 v13, v12, 8, v13")
    for s_ in range(4):
        A(f"v_xor_b32 v{XA+s_}, {64*s_}, v13")
    stamp(5)
    for s_ in range(4):
        for mt in range(3):
            A(f"ds_read_b128 {vr(XF+(mt*4+s_)*4,4)}, v{XA+s_} offset:{L_XT + 4096*mt}")
    await_lds(L_GC + 8, 12, 12, T0)
    AC = lambda t, mt: 16 + (t*3 + mt) * 4
    A(f"ds_read_b128 v[8:11], v{VB1A} offset:{L_CV+1024}")
    A(f"ds_read_b128 v[12:15], v{VB1A} offset:{L_CV+1024+16}")
    for k in range(8):
        A(f"ds_read_b128 {vr(WL+4*k,4)}, v{VA} offset:{((k&1)*4 + (k>>1))*1024}")
    for k in range(8):
        s_, t = k >> 1, k & 1
        A(f"s_waitcnt lgkmcnt({7-k})")
        for mt in range(3):
            c = vr(8 + 4*t, 4) if s_ == 0 else vr(AC(t, mt), 4)
            A(f"v_mfma_f32_16x16x32_bf16 {vr(AC(t,mt),4)}, {vr(WL+4*k,4)}, {vr(XF+(mt*4+s_)*4,4)}, {c}")
    A(f"s_mov_b32 s{T1}, {hex(WS_PF - 8192)}")
    A(f"s_cmp_lt_u32 s{SWV}, 12")
    A(f"s_cselect_b32 s{SRND}, s{T1}, 0x7ff00000")
    A(f"buffer_load_dword v{VA}, v{VT16}, {sr(SW,4)}, s{SRND} offen sc1")
    for k in range(8):
        A(f"s_mov_b64 {sr(MK[k],2)}, 0")
    for mt in range(3):
        for t in range(2):
            d = 48 + (mt*2 + t) * 4
            for i in range(4):
                A(f"v_mul_f32 v{d+i}, s{SC}, v{AC(t,mt)+PI[i]}")
            if mt == 2:
                A(f"s_mov_b64 exec, {sr(SQM,2)}")
            A(f"ds_write_b128 v{VPA}, {vr(d,4)} offset:{16*mt*QROW + 16*t}")
            if mt == 2:
                A("s_mov_b64 exec, -1")
    stamp(6)
    A(f"v_and_b32 v{VC}, 15, v1")
    A(f"v_lshrrev_b32 v{VG}, 4, v1")
    A(f"v_mov_b32 v{PZ}, 0")
    A(f"v_mov_b32 v{PZ+1}, 0")
    A(f"v_mov_b32 v{VP}, s{SW2}")
    A(f"v_mov_b32 v{VDEG}, 0")
    A(f"v_mov_b32 v{OUTA}, 0")
    A(f"s_cmp_ge_u32 s{SWV}, 12")
    A("s_cbranch_scc1 K_B3")
    A(f"s_movk_i32 s{T0}, {512 + NB}")
    A(f"v_cmp_gt_u32 {sr(TP,2)}, s{T0}, v0")
    A(f"s_mov_b32 s{SSP}, {SPIN}")
    L("K_PFL")
    A("s_waitcnt vmcnt(0)")
    A(f"v_cmp_ne_u32 vcc, s{STOK}, v{VA}")
    A(f"s_and_b64 vcc, vcc, {sr(TP,2)}")
    A("s_cbranch_scc0 K_B3")
    A(f"s_sub_u32 s{SSP}, s{SSP}, 1")
    A("s_cbranch_scc1 K_B3")
    A("s_mov_b64 exec, vcc")
    A(f"s_sleep {SLP_N}")
    A(f"buffer_load_dword v{VA}, v{VT16}, {sr(SW,4)}, s{SRND} offen sc1")
    A("s_mov_b64 exec, -1")
    A("s_branch K_PFL")

    L("K_AUX")
    A(f"s_cmp_lg_u32 s{SWV}, 0")
    A("s_cbranch_scc1 K_AUX1")
    ED, ES, EE, RKB, BN4, RCB = 48, 58, 68, 74, 84, 96
    A("v_lshlrev_b32 v12, 3, v1")
    A(f"s_mul_i32 s{T0}, s2, {CH*4}")
    A(f"s_mul_i32 s{T1}, s2, {CH*2}")
    A("s_waitcnt lgkmcnt(0)")
    srd(SX, PDST, CH * 4, f"s{T0}")
    for k in range(5):
        A(f"buffer_load_dwordx2 {vr(ED+2*k,2)}, v12, {sr(SX,4)}, 0 offen offset:{512*k}")
    srd(SY, PSRC, CH * 4, f"s{T0}")
    for k in range(5):
        A(f"buffer_load_dwordx2 {vr(ES+2*k,2)}, v12, {sr(SY,4)}, 0 offen offset:{512*k}")
    srd(SZ, PE, CH * 2, f"s{T1}")
    for k in range(5):
        A(f"buffer_load_dword v{EE+k}, v2, {sr(SZ,4)}, 0 offen offset:{256*k}")
    A("s_barrier")
    A("s_setprio 3")
    common_setup()
    srd(SO, PDBG, 256)
    A(f"s_movk_i32 s{T1}, {-NPB}")
    for j in range(10):
        if j % 2 == 0:
            A(f"s_waitcnt vmcnt({14 - j//2})")
            if j == 0:
                A(f"buffer_load_dword v33, v{VZ}, {sr(SO,4)}, 0 offen sc1")
        A(f"v_mul_u32_u24 v14, 0xcccd, v{ED+j}")
        A("v_lshrrev_b32 v14, 21, v14")
        A(f"v_lshlrev_b32 v{BN4+j}, 2, v14")
        A(f"ds_add_rtn_u32 v{RKB+j}, v{BN4+j}, v{VONE} offset:{L_HIST}")
        A(f"v_mad_i32_i24 v{ED+j}, v14, s{T1}, v{ED+j}")
    HC_, HB_ = 16, 20
    A(f"ds_read_b128 {vr(HC_,4)}, v{VL16} offset:{L_HIST}")
    A("s_waitcnt vmcnt(1)")
    stamp(1)
    for j in range(10):
        if j % 2 == 0:
            A(f"v_lshlrev_b32 v14, 16, v{EE+j//2}")
        else:
            A(f"v_and_b32 v14, 0xffff0000, v{EE+j//2}")
        A(f"v_lshl_or_b32 v{RCB+2*j+1}, v{ED+j}, 2, v14")
    A("s_waitcnt lgkmcnt(0)")
    A(f"v_add_u32 v{HB_+2}, v{HC_}, v{HC_+1}")
    A(f"v_add_u32 v{HB_+3}, v{HB_+2}, v{HC_+2}")
    A(f"v_add_u32 v15, v{HB_+3}, v{HC_+3}")
    A("s_nop 1")
    A(f"v_add_u32_dpp v{HB_}, v15, v15 row_shr:1 row_mask:0xf bank_mask:0xf bound_ctrl:0")
    for ctl in SCAN:
        A("s_nop 1")
        A(f"v_add_u32_dpp v{HB_}, v{HB_}, v{HB_} {ctl}")
    A(f"v_sub_u32 v{HB_}, v{HB_}, v15")
    A(f"v_add_u32 v{HB_+1}, v{HB_}, v{HC_}")
    A(f"v_add_u32 v{HB_+2}, v{HB_}, v{HB_+2}")
    A(f"v_add_u32 v{HB_+3}, v{HB_}, v{HB_+3}")
    A(f"ds_write_b128 v{VL16}, {vr(HB_,4)} offset:{L_HIST}")
    for j in range(10):
        A(f"ds_read_b32 v{ED+j}, v{BN4+j} offset:{L_HIST}")
    for k in range(4):
        A(f"v_lshl_or_b32 v{25+2*k}, v{HC_+k}, 16, v{HB_+k}")
    A(f"v_lshlrev_b32 v32, 1, v{VL16}")
    A(f"s_mov_b32 s{SSP}, {SPIN}")
    A("s_waitcnt vmcnt(0)")
    L("K_TOK")
    A(f"v_readfirstlane_b32 s{STOK}, v33")
    A(f"s_cmp_lg_u32 s{STOK}, 0")
    A("s_cbranch_scc1 K_TOKOK")
    A(f"s_sub_u32 s{SSP}, s{SSP}, 1")
    A("s_cbranch_scc1 K_END")
    A(f"buffer_load_dword v33, v{VZ}, {sr(SO,4)}, 0 offen sc1")
    A("s_waitcnt vmcnt(0)")
    A("s_branch K_TOK")
    L("K_TOKOK")
    A(f"s_lshl_b32 s{T0}, s{STOK}, 13")
    A(f"s_and_b32 s{T0}, s{T0}, 0xffffc000")
    A(f"s_lshl_b32 s{T3}, s2, 11")
    A(f"s_add_u32 s{T3}, s{T3}, {hex(WS_OFS)}")
    for k in range(4):
        A(f"v_mov_b32 v{24+2*k}, s{STOK}")
    A(f"buffer_store_dwordx4 v[24:27], v32, {sr(SW,4)}, s{T3} offen sc1")
    A(f"buffer_store_dwordx4 v[28:31], v32, {sr(SW,4)}, s{T3} offen offset:16 sc1")
    A("s_waitcnt lgkmcnt(0)")
    for j in range(10):
        A(f"v_or_b32 v{RCB+2*j}, s{T0}, v{ES+j}")
        A(f"v_add_lshl_u32 v{ED+j}, v{ED+j}, v{RKB+j}, 3")
        A(f"ds_write_b64 v{ED+j}, {vr(RCB+2*j,2)} offset:{L_SB}")
    for k in range(5):
        A(f"ds_read_b128 {vr(60+4*k,4)}, v{VL16} offset:{L_SB + 1024*k}")
    A(f"s_mul_i32 s{T0}, s2, {CH*8}")
    A(f"s_add_u32 s{T0}, s{T0}, {hex(WS_REC)}")
    A(f"s_add_u32 s{T1}, s{T0}, 4096")
    for k in range(5):
        A(f"s_waitcnt lgkmcnt({4-k})")
        A(f"buffer_store_dwordx4 {vr(60+4*k,4)}, v{VL16}, {sr(SW,4)}, s{T0 + k//4} offen offset:{1024*(k%4)} sc1")
    A(f"ds_write_b32 v{VZ}, v33 offset:{L_TOK}")
    A("s_setprio 0")
    stamp(2)
    A("s_branch K_AUXP")
    L("K_AUX1")
    for k in range(4):
        A(f"v_xor_b32 v{51+k}, v{VG}, v{VC}")
        if k: A(f"v_xor_b32 v{51+k}, {4*k}, v{51+k}")
        A(f"v_lshlrev_b32 v{51+k}, 4, v{51+k}")
        A(f"v_lshl_add_u32 v{51+k}, v{VG}, 8, v{51+k}")
    A(f"s_sub_u32 s{T0}, s{SWV}, 1")
    A(f"s_lshl_b32 s{T0}, s{T0}, 12")
    A(f"s_lshl_b32 s{T2}, s{SN80}, 8")
    A(f"s_add_u32 s{T2}, s{T2}, s{T0}")
    A(f"s_add_u32 s{T0}, s{T0}, {L_XT}")
    A(f"s_mov_b32 m0, s{T0}")
    A("s_waitcnt lgkmcnt(0)")
    A(f"s_cmp_ge_u32 s{SWV}, 6")
    A("s_cbranch_scc1 K_NOX")
    srd(SX, PX, N * 256)
    for k in range(4):
        A(f"buffer_load_dwordx4 v{51+k}, {sr(SX,4)}, s{T2} offen offset:{1024*k} lds")
    L("K_NOX")
    A(f"s_xor_b32 s{T0}, s{SWV}, 7")
    A(f"s_or_b32 s{T0}, s{T0}, s2")
    A("s_cbranch_scc1 K_NOTOK")
    srd(SO, PDBG, 256)
    A("s_or_b32 s26, s26, 1")
    A("v_mov_b32 v59, s26")
    A(f"buffer_store_dword v59, v2, {sr(SO,4)}, 0 offen sc1")
    L("K_NOTOK")
    A("s_barrier")
    common_setup()
    A(f"s_cmp_lt_u32 s{SWV}, 4")
    A("s_cbranch_scc1 K_NOCV")
    A("v_and_b32 v63, 3, v0")
    A("v_lshlrev_b32 v63, 2, v63")
    A("v_mov_b32 v64, 0x2031")
    A("v_bfe_u32 v65, v64, v63, 4")
    A("v_bfe_u32 v64, v0, 2, 2")
    A(f"v_lshl_add_u32 v64, v{VG}, 5, v64")
    A("v_bfe_u32 v66, v0, 6, 1")
    A("v_lshl_add_u32 v64, v66, 2, v64")
    A("v_bfe_u32 v66, v0, 7, 1")
    A("v_lshl_add_u32 v64, v66, 7, v64")
    A("v_lshl_add_u32 v65, v65, 3, v64")
    A("v_lshl_add_u32 v64, v63, 1, v64")
    A("v_lshlrev_b32 v65, 1, v65")
    A("v_lshlrev_b32 v64, 1, v64")
    A("v_and_b32 v66, 0xff, v0")
    A("v_lshlrev_b32 v67, 1, v66")
    A("v_lshlrev_b32 v66, 2, v66")
    srd(SY, PW1, 257 * 512)
    A(f"s_mov_b32 s{T0}, {256*512}")
    A(f"buffer_load_ushort v20, v65, {sr(SY,4)}, s{T0} offen")
    srd(SX, PB1, 512)
    A(f"buffer_load_ushort v21, v64, {sr(SX,4)}, 0 offen")
    srd(SX, PB2, 256)
    A(f"buffer_load_ushort v22, v67, {sr(SX,4)}, 0 offen")
    A(f"s_cmp_ge_u32 s{SWV}, 6")
    A("s_cbranch_scc1 K_CV1")
    A("s_waitcnt vmcnt(3)")
    arrive(0)
    L("K_CV1")
    A(f"s_cmp_lg_u32 s{SWV}, 7")
    A("s_cbranch_scc1 K_CV1B")
    A("s_cmp_ge_u32 s2, 64")
    A("s_cbranch_scc1 K_CV1B")
    A(f"s_bfe_u32 s{T0}, s2, 0x10002")
    A(f"s_lshl_b32 s{T0}, s{T0}, 15")
    A(f"s_and_b32 s{T1}, s2, 1")
    A(f"s_lshl_b32 s{T1}, s{T1}, 14")
    A(f"s_add_u32 s{T0}, s{T0}, s{T1}")
    A(f"s_bfe_u32 s{T1}, s2, 0x10001")
    A(f"s_lshl_b32 s{T1}, s{T1}, 10")
    A(f"s_add_u32 s{T0}, s{T0}, s{T1}")
    A(f"s_lshr_b32 s{T1}, s2, 3")
    A(f"s_lshl_b32 s{T1}, s{T1}, 5")
    A(f"s_add_u32 s{T0}, s{T0}, s{T1}")
    A(f"s_add_u32 s{T1}, s{T0}, 4096")
    A(f"v_lshrrev_b32 v24, 1, v{VG}")
    A("v_lshlrev_b32 v24, 13, v24")
    A(f"v_and_b32 v25, 1, v{VG}")
    A("v_lshl_add_u32 v24, v25, 9, v24")
    A(f"v_lshl_add_u32 v24, v{VC}, 1, v24")
    srd(SX, PW2, 256 * 256)
    for jj in range(8):
        p = PI[jj & 3]
        A(f"buffer_load_ushort v{72+jj}, v24, {sr(SX,4)}, s{T0 if p < 2 else T1} offen offset:{(p&1)*2048 + (jj>>2)*256}")
    A(f"s_lshl_b32 s{T0}, s2, 10")
    A(f"s_add_u32 s{T0}, s{T0}, {hex(WS_W2F)}")
    A("s_waitcnt vmcnt(0)")
    for k in range(4):
        A(f"v_lshl_or_b32 v{80+k}, v{73+2*k}, 16, v{72+2*k}")
    A(f"buffer_store_dwordx4 v[80:83], v{VL16}, {sr(SW,4)}, s{T0} offen sc1")
    L("K_CV1B")
    A("s_waitcnt vmcnt(0)")
    for k in range(3):
        A(f"v_lshlrev_b32 v{20+k}, 16, v{20+k}")
    A(f"v_mul_f32 v20, s{SC}, v20")
    A(f"ds_write_b32 v66, v21 offset:{L_CV+1024}")
    A(f"ds_write_b32 v66, v20 offset:{L_CV}")
    A(f"s_cmp_ge_u32 s{SWV}, 6")
    A("s_cbranch_scc1 K_CV2")
    A(f"ds_write_b32 v66, v22 offset:{L_CV+2048}")
    L("K_CV2")
    A("s_waitcnt lgkmcnt(0)")
    arrive(2)
    A(f"s_cmp_lg_u32 s{SWV}, 7")
    A("s_cbranch_scc1 K_AUXT")
    arrive(1)
    A("s_branch K_AUXT")
    L("K_NOCV")
    A("s_waitcnt vmcnt(0)")
    arrive(0)
    L("K_AUXT")
    L("K_AUXP")
    A("v_lshrrev_b32 v31, 1, v0")
    A("v_lshlrev_b32 v31, 11, v31")
    A(f"s_movk_i32 s{T3}, {2*NB}")
    A(f"v_cmp_gt_u32 {sr(SOWN,2)}, s{T3}, v0")
    A(f"v_cvt_f32_u32 v30, v1")
    A(f"v_rcp_f32 v30, v30")
    A(f"v_mov_b32 v{VP}, s{SW2}")
    A(f"v_mul_f32 v30, 0x47800000, v30")
    A(f"v_cvt_u32_f32 v30, v30")
    A(f"v_add_u32 v30, 1, v30")
    await_lds(L_TOK, 0, 33, STOK, nonzero=True, slp=4)
    A(f"s_bfe_u32 s{STAG}, s{STOK}, 0x120001")
    if PD0: A(f"s_sleep {PD0}")
    L("K_REC0")
    A(f"s_mov_b32 s{SSP}, {SPIN}")
    A(f"s_mov_b64 vcc, {sr(SOWN,2)}")
    L("K_OFS")
    A("s_mov_b64 exec, vcc")
    A(f"buffer_load_dwordx2 {vr(GRT,2)}, v31, {sr(SW,4)}, s{SB8} offen sc1")
    A("s_mov_b64 exec, -1")
    L("K_OFS1")
    A("s_waitcnt vmcnt(0)")
    A(f"v_cmp_ne_u32 vcc, s{STOK}, v{GRT}")
    A(f"s_and_b64 vcc, vcc, {sr(SOWN,2)}")
    A("s_cbranch_scc0 K_OFSOK")
    A(f"s_sub_u32 s{SSP}, s{SSP}, 1")
    A("s_cbranch_scc1 K_END")
    A(f"s_sleep {SLP_N}")
    A("s_branch K_OFS")
    L("K_OFSOK")
    stamp(5)
    A(f"v_lshrrev_b32 v{GRT}, 16, v{GRT+1}")
    A(f"v_and_b32 v{GRT+1}, 0xffff, v{GRT+1}")
    A(f"v_cndmask_b32 v{GRT}, 0, v{GRT}, {sr(SOWN,2)}")
    A("v_lshrrev_b32 v32, 1, v0")
    A(f"s_movk_i32 s{T0}, {CH}")
    A(f"v_mad_u32_u24 v{GRT+1}, v32, s{T0}, v{GRT+1}")
    A("v_and_b32 v32, 1, v0")
    A("v_lshlrev_b32 v32, 1, v32")
    A(f"v_add_lshl_u32 v{PZ+1}, v{GRT+1}, v32, 3")
    A(f"v_sub_i32 v{PZ}, v{GRT}, v32")
    A(f"v_mov_b32 v{VDEG}, 0")
    A(f"v_mov_b32 v{OUTA}, 0")
    L("K_RECS")
    A(f"s_mov_b32 s{T0}, {hex(WS_REC)}")
    for k in range(8):
        A(f"v_cmp_lt_i32 {sr(MK[k],2)}, {4*(k>>1) + (k&1)}, v{PZ}")
    A(f"v_cmp_lt_i32 vcc, 16, v{PZ}")
    A("v_mov_b32 v88, 4")
    A("v_mov_b32 v89, 0")
    A("v_mov_b32 v90, 1")
    A("s_cbranch_vccz K_RM")
    A(f"ds_write_b32 v89, v90 offset:{L_FLAG}")
    L("K_RM")
    A(f"s_mov_b32 s{SSP}, {SPIN}")
    L("K_RLD")
    for k in range(4):
        A(f"s_mov_b64 exec, {sr(MK[2*k],2)}")
        A("s_cbranch_execz K_RL")
        A(f"buffer_load_dwordx4 {vr(RC+4*k,4)}, v{PZ+1}, {sr(SW,4)}, s{T0} offen offset:{32*k} sc1")
    L("K_RL")
    A("s_mov_b64 exec, -1")
    L("K_NOU")
    A(f"s_mov_b64 {sr(TP,2)}, 0")
    A("s_waitcnt vmcnt(0)")
    for k in range(8):
        A(f"s_mov_b64 exec, {sr(MK[k],2)}")
        A("s_cbranch_execz K_RV")
        A(f"v_lshrrev_b32 v91, 14, v{RC+2*k}")
        A(f"v_cmp_ne_u32 vcc, s{STAG}, v91")
        A(f"s_or_b64 {sr(TP,2)}, {sr(TP,2)}, vcc")
    L("K_RV")
    A("s_mov_b64 exec, -1")
    A(f"s_cmp_eq_u64 {sr(TP,2)}, 0")
    A("s_cbranch_scc1 K_RVOK")
    A(f"s_sub_u32 s{SSP}, s{SSP}, 1")
    A("s_cbranch_scc1 K_END")
    A(f"s_sleep {SLP_N}")
    A("s_branch K_RLD")
    L("K_RVOK")
    stamp(6)
    NL, RK, PS = 64, 72, 80
    A(f"s_mov_b32 s{T1}, {hex(FBASE)}")
    for k in range(8):
        A(f"s_mov_b64 exec, {sr(MK[k],2)}")
        A("s_cbranch_execz K_R1")
        A(f"v_and_b32 v{NL+k}, 0xfc, v{RC+2*k+1}")
        A(f"ds_add_rtn_u32 v{RK+k}, v{NL+k}, v88")
        A(f"v_and_b32 v{RC+2*k}, 0x3fff, v{RC+2*k}")
        A(f"v_lshl_or_b32 v{RC+2*k}, v{RC+2*k}, 9, s{T1}")
    L("K_R1")
    A("s_mov_b64 exec, 1")
    A("s_waitcnt lgkmcnt(0)")
    A(f"ds_add_u32 v89, v90 offset:{L_GC+16}")
    A("s_mov_b64 exec, -1")
    A(f"v_mov_b32 v{VZ}, 0")
    await_lds(L_GC + 16, 8, 91, T0)
    stamp(7)
    def scan_and_decide(tag, with_perm):
        A(f"ds_read_b32 v{VCNT}, v2")
        A(f"ds_read_b32 v91, v89 offset:{L_FLAG}")
        A("s_waitcnt lgkmcnt(1)")
        A(f"v_add_u32_dpp v{VEND}, v{VCNT}, v{VCNT} row_shr:1 row_mask:0xf bank_mask:0xf bound_ctrl:0")
        A(f"v_add_u32 v{VDEG}, v{VDEG}, v{VCNT}")
        for k, ctl in enumerate(SCAN):
            A("s_nop 0" if k == 0 else "s_nop 1")
            A(f"v_add_u32_dpp v{VEND}, v{VEND}, v{VEND} {ctl}")
        A(f"v_sub_u32 v{VB4}, v{VEND}, v{VCNT}")
        A("s_waitcnt lgkmcnt(0)")
        A(f"v_readlane_b32 s{STOT}, v{VEND}, 63")
        if with_perm:
            for k in range(8):
                A(f"s_cmp_eq_u64 {sr(MK[k],2)}, 0")
                A(f"s_cbranch_scc1 K_R2{tag}")
                A(f"ds_bpermute_b32 v{PS+k}, v{NL+k}, v{VB4}")
            L(f"K_R2{tag}")
        A(f"v_readfirstlane_b32 s{SLP}, v91")
        A(f"s_add_u32 s{T1}, s{STOT}, 60")
        A(f"s_lshr_b32 s{SLEN}, s{T1}, 6")
        A(f"s_lshl_b32 s{T1}, s{SLEN}, 2")
        A(f"s_add_u32 s{T2}, s{T1}, 4")
        A(f"v_cmp_lt_u32 vcc, s{T2}, v{VCNT}")
        A(f"s_and_b32 s{T3}, s{SLEN}, 63")
        if with_perm:
            A(f"v_readlane_b32 s{T0}, v30, s{T3}")
        A(f"s_andn2_b32 s{SFAST}, s{SFIRST}, s{SMODE}")
        A(f"s_andn2_b32 s{SFAST}, s{SFAST}, s{SLP}")
        A(f"s_cmp_gt_u32 s{STOT}, {4*WIN}")
        A(f"s_cselect_b32 s{SFAST}, 0, s{SFAST}")
        A(f"s_sub_u32 s{T1}, {PRIV_B}, s{T1}")
        A("s_cmp_lg_u64 vcc, 0")
        A(f"s_cselect_b32 s{SFAST}, 0, s{SFAST}")
    scan_and_decide("a", True)
    A(f"s_cmp_eq_u32 s{SFAST}, 0")
    A("s_waitcnt lgkmcnt(0)")
    A("s_cbranch_scc1 K_WL")
    for k in range(8):
        A(f"s_mov_b64 exec, {sr(MK[k],2)}")
        A("s_cbranch_execz K_WB")
        A(f"v_add_u32 v{PS+k}, v{PS+k}, v{RK+k}")
        A(f"v_mul_u32_u24 v{RK+k}, s{T0}, v{PS+k}")
        A(f"v_lshrrev_b32 v{RK+k}, 18, v{RK+k}")
        A(f"v_mad_u32_u24 v{PS+k}, v{RK+k}, s{T1}, v{PS+k}")
        A(f"ds_write_b32 v{PS+k}, v{RC+2*k} offset:{L_PRIV}")
        A(f"ds_write_b32 v{PS+k}, v{RC+2*k+1} offset:{L_PRIV + PRIV_N*4}")
    L("K_WB")
    A("s_mov_b64 exec, -1")
    L("K_B3")
    A(f"s_mov_b32 s{SW2}, 1")
    A("v_mov_b32 v89, 0")
    A("s_waitcnt vmcnt(0) lgkmcnt(0)")
    A("s_barrier")
    stamp(8)
    A(f"ds_read_b128 {vr(W,4)}, v{VL16} offset:{L_CV}")
    A(f"s_cmp_lt_u32 s{SWV}, 8")
    A("s_cbranch_scc1 K_R4")
    scan_and_decide("g", False)
    L("K_R4")
    A(f"s_cmp_eq_u32 s{SFAST}, 0")
    A("s_cbranch_scc1 K_SLOW")
    def row_load(d, p, pair=False):
        if not pair:
            A(f"v_add_u32 v{p}, v{p}, v2")
        A(f"buffer_load_dword v{d}, v{p}, {sr(ST,4)}, 0 offen sc1")
        A(f"buffer_load_dword v{d+1}, v{p}, {sr(ST,4)}, 0 offen offset:256 sc1")
    TI = 16
    for k in range(R // 4):
        A(f"ds_read_b128 {vr(TI+4*k,4)}, v{VP} offset:{16*k}")
    A(f"v_add_u32 v{Q+3}, v{VP}, v2")
    A(f"ds_read_b32 v{Q}, v{Q+3} offset:{PRIV_N*4}")
    for k in range(R // 4):
        A(f"ds_read_b128 {vr(EV+4*k,4)}, v{VP} offset:{PRIV_N*4 + 16*k}")
    A(f"ds_read_b128 {vr(OG[0],4)}, v{VP} offset:{R*4}")
    A(f"s_mul_i32 s{T0}, s{SLEN}, s{SWV}")
    A(f"s_add_u32 s{T3}, s{T0}, s{SLEN}")
    A(f"s_lshl_b32 s{T0}, s{T0}, 2")
    A(f"s_lshl_b32 s{T3}, s{T3}, 2")
    A(f"s_min_u32 s{T0}, s{T0}, s{STOT}")
    A(f"s_min_u32 s{T3}, s{T3}, s{STOT}")
    A(f"s_sub_u32 s{SNN}, s{T3}, s{T0}")
    A(f"s_lshr_b32 s{SNN}, s{SNN}, 2")
    for k in range(R):
        if k % 4 == 0:
            A(f"s_waitcnt lgkmcnt({5 - k//4})")
        row_load(DAT + 2*k, TI + k)
    A(f"v_cmp_gt_u32 vcc, s{T0}, v{VB4}")
    A(f"v_cmp_lt_u32 {sr(TP,2)}, s{T0}, v{VEND}")
    A(f"s_and_b64 vcc, vcc, {sr(TP,2)}")
    A(f"s_cselect_b32 s{SLP}, 1, 0")
    A(f"v_cmp_gt_u32 vcc, s{T3}, v{VB4}")
    A(f"v_cmp_lt_u32 {sr(TP,2)}, s{T3}, v{VEND}")
    A(f"s_and_b64 vcc, vcc, {sr(TP,2)}")
    A(f"s_cselect_b32 s{STAIL}, 1, 0")
    A(f"v_cmp_le_u32 vcc, s{SNN}, v1")
    A(f"s_movk_i32 s{T2}, {QROW//4}")
    A(f"s_movk_i32 s{T3}, {HROW//4}")
    A(f"s_mov_b32 s{SREM}, s{SNN}")
    A("s_waitcnt lgkmcnt(0)")
    A(f"v_and_b32 v{Z2}, 0xfc, v{EV}")
    A(f"v_and_b32 v{Q+1}, 0xfc, v{Q}")
    A(f"v_mad_u32_u24 v{Z2+1}, v{Z2}, s{T2}, v{VQ16}")
    A("s_setprio 3")
    A(f"v_mov_b32_dpp v{Q+2}, v{Q+1} wave_shr:1 row_mask:0xf bank_mask:0xf")
    A(f"v_cmp_ne_u32 {sr(SM,2)}, v{Q+1}, v{Q+2}")
    A(f"ds_read_b128 {vr(Q,4)}, v{Z2+1}")
    A(f"s_or_b64 {sr(SM,2)}, {sr(SM,2)}, vcc")
    for k in range(4):
        A(f"v_add_u32 v{OG[0]+k}, v{OG[0]+k}, v2")
    def tail_prep():
        A(f"v_lshlrev_b32 v{Z+1}, 2, v{VC}")
        A(f"v_lshlrev_b32 v{Z+2}, 4, v{VG}")
        for mt in range(3):
            A(f"v_add_u32 v{T+3}, {64*mt}, v{Z+1}")
            A(f"ds_bpermute_b32 v{T+mt}, v{T+3}, v{VDEG}")
        A(f"s_lshl_b32 s{T0}, s{SWV}, 6")
        A(f"v_add_u32 v{Z+3}, s{T0}, v{Z+2}")
        A(f"ds_read_b128 {vr(B2F,4)}, v{Z+3} offset:{L_CV+2048}")
        A(f"s_movk_i32 s{T1}, {HROW}")
        A(f"v_mad_u32_u24 v{AD}, v{VC}, s{T1}, v{Z+2}")
        A(f"v_lshlrev_b32 v{OUTA}, 8, v{VC}")
        A(f"v_lshl_add_u32 v{OUTA}, v{VG}, 3, v{OUTA}")
        A(f"v_add_u32 v{Z+2}, {L_ZROW}, v{Z+2}")
        A(f"v_add_u32 v{AD+2}, {L_H + 32*HROW}, v{AD}")
        A(f"v_add_u32 v{AD+1}, {L_H + 16*HROW}, v{AD}")
        A(f"v_add_u32 v{AD}, {L_H}, v{AD}")
        A("s_waitcnt lgkmcnt(0)")
        for mt in range(3):
            A(f"v_cmp_eq_u32 vcc, 0, v{T+mt}")
            A(f"v_cvt_f32_u32 v{T+mt}, v{T+mt}")
            A(f"v_mul_f32 v{T+mt}, 0x3e800000, v{T+mt}")
            A(f"v_cndmask_b32 v{AD+mt}, v{AD+mt}, v{Z+2}, vcc")
            sel = "op_sel_hi:[1,0]" if mt % 2 == 0 else "op_sel:[0,1]"
            A(f"v_pk_mul_f32 {vr(OV+4*mt,2)}, {vr(B2F,2)}, {vr(T+(mt&2),2)} {sel}")
            A(f"v_pk_mul_f32 {vr(OV+4*mt+2,2)}, {vr(B2F+2,2)}, {vr(T+(mt&2),2)} {sel}")
    def w2_load():
        A(f"s_mov_b32 s{SW2}, 0")
        A(f"s_lshl_b32 s{T0}, s{SWV}, 13")
        A(f"s_add_u32 s{T0}, s{T0}, {hex(WS_W2F)}")
        A(f"s_add_u32 s{T1}, s{T0}, 4096")
        for k in range(8):
            A(f"buffer_load_dwordx4 {vr(W2R+4*k,4)}, v{VL16}, {sr(SW,4)}, s{T0 + k//4} offen offset:{(k%4)*1024} sc1")
    A(f"s_cmp_ge_u32 s{SWV}, 8")
    A("s_cbranch_scc1 K_NOTP")
    tail_prep()
    L("K_NOTP")
    A(f"v_mov_b32 v{LO}, v{Z2}")
    A(f"v_mov_b32 v{PZ}, 0")
    A(f"v_mov_b32 v{PZ+1}, 0")
    VW = 2 * (R - 1)
    if STAMP:
        A(f"s_waitcnt vmcnt({VW})")
        stamp(9)
    A(f"s_cmp_eq_u32 s{SNN}, 0")
    A("s_cbranch_scc1 K_WDONE")
    A("s_branch K_HC0")

    def e_sel(s):
        base = EV + (s & ~1)
        return (vr(base, 2), "op_sel_hi:[1,0,1]") if s % 2 == 0 else (vr(base, 2), "op_sel:[0,1,0]")
    def part_z1(s, z):
        ep, es = e_sel(s)
        return [f"v_pk_fma_f32 {vr(z,2)}, {vr(W,2)}, {ep}, {vr(Q,2)} {es}",
                f"v_pk_fma_f32 {vr(z+2,2)}, {vr(W+2,2)}, {ep}, {vr(Q+2,2)} {es}"]
    def part_z2(s, z, zo=None, lo=LO):
        d = DAT + 2*s
        zo = z if zo is None else zo
        return [f"v_lshlrev_b64 {vr(lo,2)}, 16, {vr(d,2)}",
                f"v_pk_fma_f32 {vr(zo,2)}, {vr(d,2)}, {C2}, {vr(z,2)}",
                f"v_pk_fma_f32 {vr(zo+2,2)}, {vr(lo,2)}, {C2}, {vr(z+2,2)}"]
    def part_exp(z): return [f"v_exp_f32 v{T+k}, v{z+k}" for k in range(4)]
    def part_nd(z):
        return [f"v_pk_fma_f32 {vr(NN,2)}, {vr(NN,2)}, {vr(T,2)}, {vr(NN,2)}",
                f"v_pk_fma_f32 {vr(NN+2,2)}, {vr(NN+2,2)}, {vr(T+2,2)}, {vr(NN+2,2)}",
                f"v_pk_fma_f32 {vr(NN,2)}, {vr(z,2)}, {vr(DD,2)}, {vr(NN,2)}",
                f"v_pk_fma_f32 {vr(NN+2,2)}, {vr(z+2,2)}, {vr(DD+2,2)}, {vr(NN+2,2)}",
                f"v_pk_fma_f32 {vr(DD,2)}, {vr(DD,2)}, {vr(T,2)}, {vr(DD,2)}",
                f"v_pk_fma_f32 {vr(DD+2,2)}, {vr(DD+2,2)}, {vr(T+2,2)}, {vr(DD+2,2)}"]
    def addr_prep(k):
        A("s_waitcnt lgkmcnt(0)")
        A(f"v_pk_add_f32 {vr(OG[k],2)}, {vr(OG[k],2)}, v[2:3] op_sel:[0,1]")
        A(f"v_pk_add_f32 {vr(OG[k]+2,2)}, {vr(OG[k]+2,2)}, v[2:3] op_sel:[0,1]")
    def refill(s):
        og = OG[(s // 4) % 2]
        if s % 4 == 0:
            A(f"ds_read_b128 {vr(OG[(s//4+1)%2],4)}, v{VP} offset:{(R+s+4)*4}")
        row_load(DAT + 2*s, og + s % 4, pair=True)
        if s % 4 == 3:
            addr_prep((s // 4 + 1) % 2)
            A(f"ds_read_b128 {vr(EV+s-3,4)}, v{VP} offset:{PRIV_N*4 + (R+s-3)*4}")
    L("K_LOOP")
    for g in range(R // 4):
        L(f"K_G{g}")
        A(f"s_and_b32 s{T0}, s{SM}, {hex(0xF << (4*g))}")
        A(f"s_cbranch_scc1 K_S{4*g}")
        zz = [Z, Z2]
        s0 = 4*g
        for x in part_z1(s0, zz[0]): A(x)
        A(f"s_waitcnt vmcnt({VW})")
        for x in part_z2(s0, zz[0]): A(x)
        refill(s0)
        for k in range(4):
            s = s0 + k
            z, zn = zz[k % 2], zz[(k + 1) % 2]
            ex, nd = part_exp(z), part_nd(z)
            if k < 3:
                a, b = part_z1(s + 1, zn), part_z2(s + 1, zn)
                A(ex[0]); A(a[0]); A(ex[1]); A(a[1]); A(ex[2])
                A(f"s_waitcnt vmcnt({VW})")
                A(b[0]); A(ex[3]); A(nd[0]); A(b[1]); A(nd[1]); A(nd[2]); A(b[2]); A(nd[3])
                refill(s + 1)
                A(nd[4]); A(nd[5])
            else:
                for x in ex + nd: A(x)
    L("K_PEND")
    A(f"v_add_u32 v{VP}, {R*4}, v{VP}")
    A(f"s_lshr_b64 {sr(SM,2)}, {sr(SM,2)}, {R}")
    A(f"s_sub_u32 s{SREM}, s{SREM}, {R}")
    for thr, p in PRIO_T:
        A(f"s_cmp_gt_u32 s{SREM}, {thr}")
        A("s_cbranch_scc1 K_LOOP")
        A(f"s_setprio {p}")
    A(f"s_cmp_ge_u32 s{SWV}, 8")
    A("s_cbranch_scc1 K_LOOP")
    A(f"s_cmp_eq_u32 s{SW2}, 0")
    A("s_cbranch_scc1 K_LOOP")
    w2_load()
    A("s_branch K_LOOP")
    for s in range(R):
        L(f"K_S{s}")
        A(f"s_bitcmp1_b32 s{SM}, {s}")
        A(f"s_cbranch_scc1 K_H{s}")
        for x in part_z1(s, Z): A(x)
        A(f"s_waitcnt vmcnt({VW})")
        for x in part_z2(s, Z) + part_exp(Z) + part_nd(Z): A(x)
        L(f"K_J{s}")
        refill(s)
        if s % 4 == 3:
            A(f"s_branch K_G{s//4+1}" if s + 1 < R else "s_branch K_PEND")
    def fold():
        for k in range(4):
            A(f"v_rcp_f32 v{T+k}, v{DD+k}")
        A(f"v_pk_fma_f32 {vr(PZ,2)}, {vr(DD,2)}, {vr(NN,2)}, {vr(PZ,2)}")
        A(f"v_pk_fma_f32 {vr(PZ,2)}, {vr(DD+2,2)}, {vr(NN+2,2)}, {vr(PZ,2)}")
        A(f"v_pk_mul_f32 {vr(Z,2)}, {vr(NN,2)}, {vr(T,2)}")
        A(f"v_pk_mul_f32 {vr(Z+2,2)}, {vr(NN+2,2)}, {vr(T+2,2)}")
    def lead_flush():
        A(f"v_add_u32 v{Z2}, s{SSIDE}, v{VL16}")
        A(f"s_lshl_b32 s{T0}, s{SWV}, 2")
        A(f"v_mov_b32 v{Z2+1}, s{T0}")
        A(f"v_mov_b32 v{Z2+2}, 1")
        A(f"ds_write_b128 v{Z2}, {vr(Z,4)}")
        A(f"ds_write_b32 v{Z2+1}, v{Z2+2} offset:{L_SFL}")
        A(f"s_mov_b32 s{SLP}, 0")
    for s in range(R):
        L(f"K_H{s}")
        A(f"s_cmp_eq_u32 s{SREM}, {s}")
        A("s_cbranch_scc1 K_LAST")
        A(f"v_and_b32 v{LO}, 0xfc, v{EV+s}")
        A(f"v_mad_u32_u24 v{LO+1}, v{LO}, s{T2}, v{VQ16}")
        A(f"ds_read_b128 {vr(Q,4)}, v{LO+1}")
        fold()
        A(f"s_cmp_lg_u32 s{SLP}, 0")
        A(f"s_cbranch_scc1 K_LS{s}")
        A(f"v_cvt_pk_bf16_f32 v{Z}, v{Z}, v{Z+1}")
        A(f"v_cvt_pk_bf16_f32 v{Z+1}, v{Z+2}, v{Z+3}")
        A(f"ds_write_b64 v{VA}, {vr(Z,2)}")
        L(f"K_HC{s}")
        A(f"v_mad_u32_u24 v{VA}, v{LO}, s{T3}, v{VH8}")
        A(f"s_waitcnt vmcnt({VW}) lgkmcnt(0)")
        for x in part_z1(s, Z) + part_z2(s, Z, NN) + part_exp(NN): A(x)
        A(f"v_pk_add_f32 {vr(DD,2)}, {vr(T,2)}, 1.0 op_sel_hi:[1,0]")
        A(f"v_pk_add_f32 {vr(DD+2,2)}, {vr(T+2,2)}, 1.0 op_sel_hi:[1,0]")
        A(f"s_branch K_J{s}")
        L(f"K_LS{s}")
        lead_flush()
        A(f"s_branch K_HC{s}")
    L("K_LAST")
    A(f"s_lshl_b32 s{T0}, s{SWV}, 2")
    A(f"v_mov_b32 v{LO}, s{T0}")
    A(f"v_add_u32 v{LO+1}, s{SSIDE}, v{VL16}")
    A(f"ds_read_b32 v{Z2}, v{LO} offset:{L_SFL+4}")
    A(f"ds_read_b128 {vr(Q,4)}, v{LO+1} offset:1024")
    fold()
    A(f"s_cmp_eq_u32 s{SLP}, 0")
    A("s_cbranch_scc1 K_L1")
    A("s_waitcnt lgkmcnt(0)")
    lead_flush()
    A("s_branch K_WDONE")
    L("K_L1")
    A(f"s_cmp_eq_u32 s{STAIL}, 0")
    A("s_cbranch_scc1 K_L3")
    A(f"s_mov_b32 s{SSP}, {SPIN}")
    L("K_L2")
    A("s_waitcnt lgkmcnt(0)")
    A(f"v_readfirstlane_b32 s{T0}, v{Z2}")
    A(f"s_cmp_lg_u32 s{T0}, 0")
    A("s_cbranch_scc1 K_L2B")
    A(f"s_sub_u32 s{SSP}, s{SSP}, 1")
    A("s_cbranch_scc1 K_L2B")
    A("s_sleep 2")
    A(f"ds_read_b32 v{Z2}, v{LO} offset:{L_SFL+4}")
    A(f"ds_read_b128 {vr(Q,4)}, v{LO+1} offset:1024")
    A("s_branch K_L2")
    L("K_L2B")
    A(f"v_pk_add_f32 {vr(Z,2)}, {vr(Z,2)}, {vr(Q,2)}")
    A(f"v_pk_add_f32 {vr(Z+2,2)}, {vr(Z+2,2)}, {vr(Q+2,2)}")
    L("K_L3")
    A(f"v_cvt_pk_bf16_f32 v{Z}, v{Z}, v{Z+1}")
    A(f"v_cvt_pk_bf16_f32 v{Z+1}, v{Z+2}, v{Z+3}")
    A(f"ds_write_b64 v{VA}, {vr(Z,2)}")
    L("K_WDONE")
    stamp(10)
    A(f"v_add_f32 v{T}, v{PZ}, v{PZ+1}")
    A(f"v_mov_b32 v{Z2+1}, 0x207")
    A(f"v_cmp_class_f32 vcc, v{T}, v{Z2+1}")
    A(f"v_mov_b32 v{Z2+2}, 0")
    A(f"s_mov_b32 s{TP}, {hex(C_NLN2)}")
    srd(SO, POUT, N * D * 2)
    A("s_cbranch_vccz K_NOG")
    A(f"ds_write_b32 v{Z2+2}, v{Z2+1} offset:{L_FLAG+8}")
    L("K_NOG")
    A(f"s_cmp_ge_u32 s{SWV}, 8")
    A("s_cbranch_scc1 K_B4")
    A(f"s_cmp_eq_u32 s{SW2}, 0")
    A("s_cbranch_scc1 K_B4")
    w2_load()
    L("K_B4")
    A("s_waitcnt vmcnt(0) lgkmcnt(0)")
    A("s_barrier")
    stamp(11)
    A(f"ds_read_b32 v{Z2+3}, v{Z2+2} offset:{L_FLAG+8}")
    A(f"s_cmp_ge_u32 s{SWV}, 8")
    A("s_cbranch_scc1 K_CHK")
    HB = [48 + 4*k for k in range(8)]
    ACC = [12, 16, 20]
    seq = [(mt, s) for mt in range(3) for s in range(8)]
    PRE = 7
    for k in range(PRE):
        mt, s = seq[k]
        A(f"ds_read_b128 {vr(HB[k%8],4)}, v{AD+mt} offset:{s*64}")
    def epi(mt):
        for r in range(4):
            A(f"v_fma_f32 v{OV+4*mt+r}, v{ACC[mt]+r}, s{TP}, v{OV+4*mt+r}")
        A(f"v_cvt_pk_bf16_f32 v{32+2*mt}, v{OV+4*mt}, v{OV+4*mt+1}")
        A(f"v_cvt_pk_bf16_f32 v{33+2*mt}, v{OV+4*mt+2}, v{OV+4*mt+3}")
    for k, (mt, s) in enumerate(seq):
        if k + PRE < 24:
            m2, s2 = seq[k+PRE]
            A(f"ds_read_b128 {vr(HB[(k+PRE)%8],4)}, v{AD+m2} offset:{s2*64}")
        A(f"s_waitcnt lgkmcnt({min(PRE, 23-k)})")
        c = "0" if s == 0 else vr(ACC[mt], 4)
        A(f"v_mfma_f32_16x16x32_bf16 {vr(ACC[mt],4)}, {vr(W2R+4*s,4)}, {vr(HB[k%8],4)}, {c}")
        if s == 4 and mt > 0:
            epi(mt - 1)
    A("s_nop 7")
    epi(2)
    L("K_CHK")
    A("s_waitcnt lgkmcnt(0)")
    A(f"v_readfirstlane_b32 s{T2}, v{Z2+3}")
    A(f"s_lshl_b32 s{T1}, s{SMODE}, 31")
    A(f"s_or_b32 s{T2}, s{T2}, s{T1}")
    A(f"s_cmp_gt_i32 s{T2}, 0")
    A("s_cbranch_scc1 K_REDO")
    A(f"s_cmp_ge_u32 s{SWV}, 8")
    A("s_cbranch_scc1 K_END2")
    A(f"s_add_u32 s{T2}, s{SOUT}, 4096")
    A(f"s_add_u32 s{T1}, s{SOUT}, 8192")
    A(f"buffer_store_dwordx2 v[32:33], v{OUTA}, {sr(SO,4)}, s{SOUT} offen")
    A(f"buffer_store_dwordx2 v[34:35], v{OUTA}, {sr(SO,4)}, s{T2} offen")
    A(f"s_mov_b64 exec, {sr(SQM,2)}")
    A(f"buffer_store_dwordx2 v[36:37], v{OUTA}, {sr(SO,4)}, s{T1} offen")
    A("s_mov_b64 exec, -1")
    L("K_END2")
    if STAMP:
        stamp(12)
        A("s_waitcnt vmcnt(0)")
        stamp(13)
        A(f"v_writelane_b32 v{VST}, s26, 14")
        A(f"s_lshl_b32 s{T0}, s2, 4")
        A(f"s_add_u32 s{T0}, s{T0}, s{SWV}")
        A(f"s_lshl_b32 s{T0}, s{T0}, 8")
        A(f"s_add_u32 s{T0}, s{T0}, {hex(WS_DBG)}")
        A(f"buffer_store_dword v{VST}, v2, {sr(SW,4)}, s{T0} offen")
    L("K_END")
    A("s_endpgm")

    L("K_WL")
    for k in range(8):
        A(f"s_mov_b64 exec, {sr(MK[k],2)}")
        A("s_cbranch_execz K_WB")
        A(f"v_add_lshl_u32 v{PS+k}, v{PS+k}, v{RK+k}, 1")
        A(f"ds_write_b64 v{PS+k}, {vr(RC+2*k,2)} offset:{L_LIST}")
    A("s_branch K_WB")
    L("K_REDO")
    A(f"s_mov_b32 s{SMODE}, 1")
    A("s_setprio 0")
    A(f"v_and_b32 v{VC}, 15, v1")
    A(f"v_lshrrev_b32 v{VG}, 4, v1")
    A(f"v_mov_b32 v{VDEG}, 0")
    A(f"v_mov_b32 v{PZ}, 0")
    A(f"s_mov_b32 s{SFIRST}, 1")
    A("v_lshrrev_b32 v31, 1, v0")
    A("v_lshlrev_b32 v31, 11, v31")
    def reset_round():
        A("s_barrier")
        A(f"s_cmp_lg_u32 s{SWV}, 0")
        uid[0] += 1
        A(f"s_cbranch_scc1 K_RR{uid[0]}")
        A("v_mov_b32 v89, 0")
        A("ds_write_b32 v2, v89")
        A(f"ds_write_b32 v89, v89 offset:{L_FLAG}")
        A(f"ds_write_b32 v89, v89 offset:{L_GC+16}")
        A("s_waitcnt lgkmcnt(0)")
        L(f"K_RR{uid[0]}")
        A("s_barrier")
    reset_round()
    A(f"s_cmp_ge_u32 s{SWV}, 8")
    A("s_cbranch_scc1 K_B3")
    A("s_branch K_REC0")
    L("K_SLOW")
    A(f"s_cmp_eq_u32 s{SFIRST}, 0")
    A("s_cbranch_scc1 K_SL0")
    for k in range(12):
        A(f"v_mov_b32 v{SACC+k}, 0")
    L("K_SL0")
    for i in range(3):
        A(f"s_add_u32 s{T0}, s{SWV}, {16*i}")
        A(f"v_readlane_b32 s{T1}, v{VB4}, s{T0}")
        A(f"v_readlane_b32 s{T2}, v{VCNT}, s{T0}")
        A(f"s_mul_i32 s{T3}, s{T0}, {QROW}")
        A(f"s_cmp_eq_u32 s{T2}, 0")
        A(f"s_cbranch_scc1 K_SLN{i}")
        A(f"v_add_u32 v{Z2}, s{T3}, v{VQ16}")
        A(f"ds_read_b128 {vr(Q,4)}, v{Z2}")
        A(f"s_lshl_b32 s{T1}, s{T1}, 1")
        A(f"v_mov_b32 v{VA}, s{T1}")
        L(f"K_SLL{i}")
        A(f"ds_read_b64 {vr(EV,2)}, v{VA} offset:{L_LIST}")
        A(f"v_add_u32 v{VA}, 8, v{VA}")
        A("s_waitcnt lgkmcnt(0)")
        row_load(DAT + 2, EV)
        for x in part_z1(1, Z): A(x)
        A("s_waitcnt vmcnt(0)")
        for x in part_z2(1, Z, lo=NN) + part_exp(Z): A(x)
        A("s_nop 0")
        for k in range(4):
            A(f"v_add_f32 v{T+k}, 1.0, v{T+k}")
        for k in range(4):
            A(f"v_rcp_f32 v{T+k}, v{T+k}")
        A(f"s_sub_u32 s{T2}, s{T2}, 4")
        for k in range(4):
            A(f"v_fmac_f32 v{SACC+4*i+k}, v{Z+k}, v{T+k}")
        A(f"s_cmp_lg_u32 s{T2}, 0")
        A(f"s_cbranch_scc1 K_SLL{i}")
        L(f"K_SLN{i}")
    A(f"s_mov_b32 s{SFIRST}, 0")
    A("s_waitcnt lgkmcnt(0)")
    reset_round()
    A(f"s_cmp_eq_u32 s{SLP}, 0")
    A("s_cbranch_scc1 K_SLFIN")
    A(f"s_cmp_ge_u32 s{SWV}, 8")
    A("s_cbranch_scc1 K_B3")
    A(f"v_add_u32 v{PZ}, -16, v{PZ}")
    A(f"v_add_u32 v{PZ+1}, 128, v{PZ+1}")
    A("s_branch K_RECS")
    L("K_SLFIN")
    A(f"v_mov_b32 v{PZ}, 0")
    A(f"v_mov_b32 v{PZ+1}, 0")
    for i in range(3):
        if i == 2:
            A(f"s_cmp_ge_u32 s{SWV}, {NPB-32}")
            A("s_cbranch_scc1 K_WDONE")
        A(f"s_add_u32 s{T0}, s{SWV}, {16*i}")
        A(f"s_mul_i32 s{T0}, s{T0}, {HROW}")
        A(f"v_add_u32 v{Z2}, s{T0}, v{VH8}")
        A(f"v_cvt_pk_bf16_f32 v{Z}, v{SACC+4*i}, v{SACC+4*i+1}")
        A(f"v_cvt_pk_bf16_f32 v{Z+1}, v{SACC+4*i+2}, v{SACC+4*i+3}")
        A(f"ds_write_b64 v{Z2}, {vr(Z,2)}")
    tail_prep()
    A("s_branch K_WDONE")
    L("K_CODE_END")

hdr = f"""; Kernarg layout for this problem (88 bytes, ptrs only, base s[0:1]):
; @launch grid=({NB},1,1) block=(1024,1,1) lds={LDS}
.amdgcn_target "amdgcn-amd-amdhsa--gfx950"
"""
gen()
vg = 128
out.extend(['.section .rodata,"a"', ".p2align 6", f".amdhsa_kernel {KN}",
    f"  .amdhsa_next_free_vgpr {vg}", f"  .amdhsa_next_free_sgpr 102", f"  .amdhsa_accum_offset {vg}",
    "  .amdhsa_group_segment_fixed_size 0", "  .amdhsa_kernarg_size 88", "  .amdhsa_user_sgpr_count 2",
    "  .amdhsa_user_sgpr_kernarg_segment_ptr 1", "  .amdhsa_system_sgpr_workgroup_id_x 1", ".end_amdhsa_kernel"])
txt = hdr + "\n".join(out) + "\n"
dst = sys.argv[1] if len(sys.argv) > 1 else f"fused.s"
open(dst, "w").write(txt)
print("wrote", dst, "LDS", LDS)
```

```python
import sys, struct, os

NAME = "standalone__edge_featured_mpnn_mpnn__graph"
N, E, D, H = 10000, 160000, 128, 256
NB = int(os.environ.get('NBINS', '250'))
NPB = 40
NCH, CH = 64, 2500
CAP = 31
WS_T = 0
WS_SEG = 0x500000
WS_W2F = 0x920000
WS_W1F = 0x930000
WS_CV = 0x940000
WS_DBG = 0x2000000
WS_BYTES = 0x10000000
R = int(os.environ.get("RING", "8"))
PFL = int(os.environ.get("PFL", "0"))
PRIO_T = eval(os.environ.get("PRIO_T", "((32, 2), (21, 1), (10, 0))"))
STAMP = os.environ.get("STAMP", "0") == "1"
EXP = os.environ.get("EXP", "")
PRIO = os.environ.get("PRIO", "1") == "1"
PI = [1, 3, 0, 2]
LDF = os.environ.get("LDF", "")
TCH2 = int(os.environ.get("TCH2", "0"))
TCH1 = int(os.environ.get("TCH1", "1"))
ICP = int(os.environ.get("ICP", "1"))
TPG = int(os.environ.get("TPG", "1"))
TCH3 = int(os.environ.get("TCH3", "0"))
EXP1 = os.environ.get("EXP1", "")
SPF = int(os.environ.get("SPF", "0"))
NE = int(os.environ.get("NE", "0"))
STF = os.environ.get("STF", "nt")
STB = os.environ.get("STB", "")
XS = os.environ.get("XS", "")
FBASE = 0x4B000000
F1 = int(os.environ.get("F1", "4"))

def f32bits(x): return struct.unpack("<I", struct.pack("<f", x))[0]
C_NLOG2E = f32bits(-1.4426950408889634)
C_NLN2 = f32bits(-0.6931471805599453)

out = []
def A(s): out.append("    " + s)
def L(s): out.append(s + ":")
def CM(s): out.append("    ; " + s)
def vr(a, n): return f"v[{a}:{a+n-1}]"

PX, PE, PSRC, PDST, PW1, PB1, PW2, PB2 = 4, 6, 8, 10, 12, 14, 16, 18
POUT, PWS = 20, 22

def srd(dst, base, nrec, off=0):
    if off:
        A(f"s_add_u32 s{dst}, s{base}, {hex(off)}")
        A(f"s_addc_u32 s{dst+1}, s{base+1}, 0")
        src1 = dst + 1
    else:
        A(f"s_mov_b32 s{dst}, s{base}")
        src1 = base + 1
    A(f"s_and_b32 s{dst+1}, s{src1}, 0xffff")
    A(f"s_mov_b32 s{dst+2}, {hex(nrec)}")
    A(f"s_mov_b32 s{dst+3}, 0x20000")

def stamp(k):
    if STAMP: A(f"s_memrealtime s[{76+2*k}:{77+2*k}]")
def stamp_flush(kern, wave_s, nst):
    if not STAMP: return
    A("s_waitcnt lgkmcnt(0)")
    A(f"s_add_u32 s72, s{PWS}, {hex(WS_DBG + kern*0x100000)}")
    A(f"s_addc_u32 s73, s{PWS+1}, 0")
    A("s_and_b32 s73, s73, 0xffff")
    A("s_mov_b32 s74, 0x100000")
    A("s_mov_b32 s75, 0x20000")
    A("s_lshl_b32 s100, s2, 4")
    A(f"s_add_u32 s100, s100, s{wave_s}")
    A("s_lshl_b32 s100, s100, 7")
    A("s_mov_b64 exec, 1")
    A("v_mov_b32 v126, 0")
    for k in range(nst):
        A(f"v_mov_b32 v127, s{76+2*k}")
        A(f"buffer_store_dword v127, v126, s[72:75], s100 offen offset:{4*k}")
    A("s_mov_b64 exec, -1")

def kernel_begin(name):
    out.extend([".text", f".globl {name}", ".p2align 8", f".type {name},@function"])
    L(name)
def kernel_desc(name, vgpr, sgpr):
    acc = (vgpr + 3) // 4 * 4
    out.extend([
        '.section .rodata,"a"', ".p2align 6", f".amdhsa_kernel {name}",
        f"  .amdhsa_next_free_vgpr {vgpr}", f"  .amdhsa_next_free_sgpr {sgpr}", f"  .amdhsa_accum_offset {acc}",
        "  .amdhsa_group_segment_fixed_size 0", "  .amdhsa_kernarg_size 88", "  .amdhsa_user_sgpr_count 2",
        "  .amdhsa_user_sgpr_kernarg_segment_ptr 1", "  .amdhsa_system_sgpr_workgroup_id_x 1", ".end_amdhsa_kernel"])

NTW = int(os.environ.get("NTW", "0"))
K1_GEMM0 = NCH
K1_W20 = NCH + 160
K1_W10 = K1_W20 + 4
K1_CV = K1_W10 + 1
K1_GRID = K1_CV + 1
K1_LDS = int(os.environ.get("K1LDS", "65536"))
K1B0 = os.environ.get("K1B0", "1") == "1"

def gen_k1():
    kernel_begin("k1_kernel")
    A("s_load_dwordx16 s[4:19], s[0:1], 0")
    A("s_load_dwordx2 s[22:23], s[0:1], 80")
    if ICP:
        CM("pull both kernels' code towards the L2 right away (one load per 128-B line; lanes past the code are out of range)")
        A("s_getpc_b64 s[24:25]")
        L("K1_PC0")
        A("v_lshlrev_b32 v126, 7, v0")
        A("s_and_b32 s25, s25, 0xffff")
        A("s_mov_b32 s26, K2_HOT_END-K1_PC0")
        A("s_mov_b32 s27, 0x20000")
        A("buffer_load_dword v127, v126, s[24:27], 0 offen")
    if NTW:
        A(f"s_cmp_lt_u32 s2, {NTW}")
        A("s_cbranch_scc1 K1_TOUCH")
        A(f"s_sub_u32 s2, s2, {NTW}")
    stamp(0)
    A(f"s_cmp_ge_u32 s2, {K1_GRID}")
    A("s_cbranch_scc1 K1_END")
    A("v_and_b32 v1, 63, v0")
    A("v_lshrrev_b32 v2, 6, v0")
    A("v_and_b32 v3, 15, v0")
    A("v_bfe_u32 v4, v0, 4, 2")
    A("v_readfirstlane_b32 s3, v2")
    A("s_mov_b32 s52, 0x05040100")
    A("s_mov_b32 s53, 0x07060302")
    A(f"s_cmp_lt_u32 s2, {K1_GEMM0}")
    A("s_cbranch_scc1 K1_BIN")
    A(f"s_cmp_ge_u32 s2, {K1_W20}")
    A("s_cbranch_scc1 K1_PREP")
    A(f"s_sub_u32 s24, s2, {K1_GEMM0}")
    A("s_and_b32 s25, s24, 7")
    A("s_lshr_b32 s26, s24, 4")
    A("s_lshl_b32 s26, s26, 3")
    A("s_add_u32 s25, s25, s26")
    A("s_bfe_u32 s26, s24, 0x10003")
    A("s_cmp_ge_u32 s25, 79")
    A("s_cbranch_scc1 K1_END")
    A("s_and_b32 s27, s3, 1")
    A("s_lshr_b32 s28, s3, 1")
    A("s_lshl_b32 s30, s28, 14")
    A("s_lshl_b32 s31, s27, 11")
    A("s_add_u32 s30, s30, s31")
    A("s_lshl_b32 s31, s26, 8")
    A("s_add_u32 s30, s30, s31")
    A("s_lshl_b32 s32, s25, 7")
    A("s_lshl_b32 s33, s28, 5")
    A("s_add_u32 s32, s32, s33")
    A("v_lshlrev_b32 v5, 12, v4")
    A("v_lshl_add_u32 v5, v3, 4, v5")
    A("v_lshlrev_b32 v10, 4, v1")
    A("s_lshl_b32 s35, s28, 12")
    A("s_lshl_b32 s54, s27, 3")
    A("s_add_u32 s35, s35, s54")
    A("v_add_u32 v11, s35, v10")
    A("s_lshl_b32 s54, s27, 14")
    A("v_add_u32 v13, s54, v10")
    A("v_lshlrev_b32 v12, 9, v3")
    A("v_lshl_add_u32 v12, v4, 4, v12")
    A("s_lshl_b32 s55, s32, 9")
    A("s_lshl_b32 s54, s26, 7")
    A("s_add_u32 s55, s55, s54")
    A("s_lshl_b32 s54, s27, 6")
    A("s_add_u32 s55, s55, s54")
    A("s_add_u32 s56, s55, 8192")
    A("s_mov_b32 s58, 0x8000")
    for k in range(4):
        A(f"v_xor_b32 v{6+k}, v4, v3")
        if k: A(f"v_xor_b32 v{6+k}, {4*k}, v{6+k}")
        A(f"v_lshlrev_b32 v{6+k}, 4, v{6+k}")
        A(f"v_lshl_add_u32 v{6+k}, v4, 8, v{6+k}")
    A("s_lshl_b32 s33, s25, 15")
    A("s_lshl_b32 s34, s3, 12")
    A("s_add_u32 s33, s33, s34")
    A("s_add_u32 s34, s34, 32768")
    A("s_mov_b32 m0, s34")
    A("v_xor_b32 v14, v4, v3")
    A("v_lshlrev_b32 v14, 4, v14")
    A("v_lshl_add_u32 v14, v3, 8, v14")
    A("s_lshl_b32 s54, s28, 13")
    A("s_add_u32 s54, s54, 32768")
    for s in range(4):
        A(f"v_xor_b32 v{112+s}, {64*s}, v14")
        A(f"v_add_u32 v{112+s}, s54, v{112+s}")
    A("s_waitcnt lgkmcnt(0)")
    srd(36, PW1, 257 * 512)
    WL = 48
    for j in range(4):
        A(f"buffer_load_dwordx4 {vr(WL+4*j,4)}, v5, s[36:39], s30 offen offset:{j*512}")
    srd(40, PX, N * 256)
    if K1B0: A("s_barrier")
    for k in range(4):
        A(f"buffer_load_dwordx4 v{6+k}, s[40:43], s33 offen offset:{1024*k} lds")
    AF = 16
    srd(48, PWS, N * 512)
    if TCH1:
        A("buffer_load_dword v15, v12, s[48:51], s55 offen")
    A(f"s_waitcnt vmcnt({5 if TCH1 else 4})")
    stamp(1)
    PT = 64
    for pr in range(2):
        for dw in range(4):
            a, b = WL + 8*pr + dw, WL + 8*pr + 4 + dw
            A(f"v_perm_b32 v{PT+(2*dw)*2+pr}, v{b}, v{a}, s52")
            A(f"v_perm_b32 v{PT+(2*dw+1)*2+pr}, v{b}, v{a}, s53")
    for col in range(8):
        A(f"ds_write_b64 v11, {vr(PT+2*col,2)} offset:{(col>>2)*16384 + (col&3)*1024}")
    A(f"s_waitcnt vmcnt({1 if TCH1 else 0}) lgkmcnt(0)")
    A("s_barrier")
    stamp(2)
    ACC = [80, 96]
    BB = [48, 52, 56, 60, 64, 68]
    ops = []
    for s in range(4):
        ops += [("x", 0, s), ("x", 1, s)] + [("w", s, t) for t in range(4)]
    def rd(op, wi):
        if op[0] == "x":
            A(f"ds_read_b128 {vr(AF+(op[1]*4+op[2])*4,4)}, v{112+op[2]} offset:{4096*op[1]}")
        else:
            A(f"ds_read_b128 {vr(BB[wi%6],4)}, v13 offset:{(op[1]*4+op[2])*1024}")
    widx = {}
    n = 0
    for i_, op in enumerate(ops):
        if op[0] == "w":
            widx[i_] = n; n += 1
    issued = 0
    def issue_upto(wlimit):
        nonlocal issued
        while issued < len(ops) and (ops[issued][0] == "x" or widx[issued] <= wlimit):
            rd(ops[issued], widx.get(issued, 0)); issued += 1
    for i_, op in enumerate(ops):
        if op[0] != "w": continue
        k = widx[i_]
        issue_upto(k + 4)
        A(f"s_waitcnt lgkmcnt({issued - 1 - i_})")
        s, t = op[1], op[2]
        for i in range(2):
            d = ACC[i] + 4*t
            c = "0" if s == 0 else vr(d, 4)
            A(f"v_mfma_f32_16x16x32_bf16 {vr(d,4)}, {vr(BB[k%6],4)}, {vr(AF+(i*4+s)*4,4)}, {c}")
    A("s_nop 1")
    stamp(4)
    for i in range(2):
        o0, o1 = 16 + 8*i, 20 + 8*i
        for t in range(4):
            f = [ACC[i] + 4*t + r for r in range(4)]
            for r in range(4):
                A(f"v_add_f32 v{f[r]}, 0, v{f[r]}")
            for r in range(4):
                A(f"v_add_u32 v{f[r]}, s58, v{f[r]}")
            for r in range(1, 4):
                A(f"v_sub_u32_sdwa v{f[r]}, v{f[r]}, v{f[r-1]} clamp dst_sel:DWORD dst_unused:UNUSED_PAD src0_sel:DWORD src1_sel:WORD_1")
            A(f"v_perm_b32 v{o0+t}, v{f[1]}, v{f[0]}, s53")
            A(f"v_perm_b32 v{o1+t}, v{f[3]}, v{f[2]}, s53")
        if "nop" not in EXP1:
            A(f"buffer_store_dwordx4 {vr(o0,4)}, v12, s[48:51], s{55+i} offen {STF}")
            A(f"buffer_store_dwordx4 {vr(o1,4)}, v12, s[48:51], s{55+i} offen offset:256 {STF}")
    stamp(5)
    if STAMP: A("s_waitcnt vmcnt(0)")
    stamp(6)
    stamp_flush(0, 3, 7)
    A("s_endpgm")

    L("K1_PREP")
    A("v_lshlrev_b32 v10, 4, v1")
    A(f"s_cmp_ge_u32 s2, {K1_CV}")
    A("s_cbranch_scc1 K1_CVEC")
    A(f"s_cmp_ge_u32 s2, {K1_W10}")
    A("s_cbranch_scc1 K1_W1")
    CM("w2: frag (nt, s) lane (c,g) jj -> w2[128(s>>2) + 64(s&1) + 32(g>>1) + 8 pi(jj&3) + 4((s>>1)&1) + 2(g&1) + (jj>>2)][16 nt + c]")
    A(f"s_sub_u32 s24, s2, {K1_W20}")
    A("s_lshr_b32 s25, s3, 2")
    A("s_lshl_b32 s25, s25, 15")
    A("s_and_b32 s26, s3, 1")
    A("s_lshl_b32 s26, s26, 14")
    A("s_add_u32 s25, s25, s26")
    A("s_bfe_u32 s26, s3, 0x10001")
    A("s_lshl_b32 s26, s26, 10")
    A("s_add_u32 s25, s25, s26")
    A("s_lshl_b32 s26, s24, 6")
    A("s_add_u32 s25, s25, s26")
    A("s_add_u32 s26, s25, 4096")
    A("v_lshrrev_b32 v5, 1, v4")
    A("v_lshlrev_b32 v5, 13, v5")
    A("v_and_b32 v6, 1, v4")
    A("v_lshl_add_u32 v5, v6, 9, v5")
    A("v_lshl_add_u32 v5, v3, 1, v5")
    A("s_lshl_b32 s27, s24, 14")
    A("s_lshl_b32 s28, s3, 10")
    A("s_add_u32 s27, s27, s28")
    A("s_add_u32 s28, s27, 8192")
    A("s_waitcnt lgkmcnt(0)")
    srd(36, PW2, 256 * 256)
    srd(40, PWS, 65536, off=WS_W2F)
    for t in range(2):
        for j in range(8):
            ro = (8*PI[j&3] + (j>>2))*256 + 32*t
            A(f"buffer_load_ushort v{16+8*t+j}, v5, s[36:39], s{25 + ro//4096} offen offset:{ro%4096}")
    A("s_waitcnt vmcnt(0)")
    for t in range(2):
        for jj in range(4):
            A(f"v_lshl_or_b32 v{32+4*t+jj}, v{17+8*t+2*jj}, 16, v{16+8*t+2*jj}")
    A("buffer_store_dwordx4 v[32:35], v10, s[40:43], s27 offen")
    A("buffer_store_dwordx4 v[36:39], v10, s[40:43], s28 offen")
    A("s_endpgm")
    L("K1_W1")
    CM("W1[128:256]: frag (w, s) lane (4g'' + i, g) jj -> w1[128 + 32s + 8g + jj][128(w>>3) + 32(w&3) + 8 pi(i) + 4((w>>2)&1) + g'']")
    A("s_lshr_b32 s24, s3, 2")
    A("s_and_b32 s25, s3, 3")
    A("s_lshl_b32 s26, s25, 14")
    A("s_lshl_b32 s27, s24, 8")
    A("s_add_u32 s26, s26, s27")
    A(f"s_add_u32 s26, s26, {128*512}")
    A("v_lshlrev_b32 v5, 12, v4")
    A("v_lshl_add_u32 v5, v3, 4, v5")
    A("s_lshl_b32 s27, s24, 15")
    A("s_lshl_b32 s28, s25, 10")
    A("s_add_u32 s27, s27, s28")
    A("s_add_u32 s28, s27, 16384")
    A("v_lshrrev_b32 v6, 2, v3")
    A("v_lshlrev_b32 v6, 12, v6")
    A("v_and_b32 v7, 3, v3")
    A("v_lshlrev_b32 v7, 2, v7")
    A("v_mov_b32 v8, 0x1302")
    A("v_bfe_u32 v7, v8, v7, 4")
    A("v_lshl_add_u32 v6, v7, 4, v6")
    A("v_lshl_add_u32 v6, v4, 8, v6")
    A("s_waitcnt lgkmcnt(0)")
    srd(36, PW1, 257 * 512)
    srd(40, PWS, 65536, off=WS_W1F)
    for jj in range(8):
        A(f"buffer_load_dwordx4 {vr(16+4*jj,4)}, v5, s[36:39], s26 offen offset:{jj*512}")
    A("s_waitcnt vmcnt(0)")
    for col in range(8):
        o = 48 + col * 4
        for pr in range(4):
            a, b = 16 + 8*pr + (col >> 1), 16 + 8*pr + 4 + (col >> 1)
            A(f"v_perm_b32 v{o+pr}, v{b}, v{a}, s{53 if col & 1 else 52}")
        A(f"buffer_store_dwordx4 {vr(o,4)}, v6, s[40:43], s{27+(col>>2)} offen offset:{(col&3)*64}")
    A("s_endpgm")
    L("K1_CVEC")
    CM("thread t < 256: l = t>>2, i = t&3: -log2e w1[256][phi(l, pi(i))], b1[phi(l, pi(i))] as f32; t < 128: b2[t] as f32")
    A("s_cmp_ge_u32 s3, 4")
    A("s_cbranch_scc1 K1_END")
    A("v_and_b32 v5, 3, v0")
    A("v_lshlrev_b32 v5, 2, v5")
    A("v_mov_b32 v8, 0x2031")
    A("v_bfe_u32 v5, v8, v5, 4")
    A("v_lshlrev_b32 v5, 3, v5")
    A("v_bfe_u32 v6, v0, 2, 2")
    A("v_add_u32 v5, v5, v6")
    A("v_lshl_add_u32 v5, v4, 5, v5")
    A("v_bfe_u32 v6, v0, 6, 1")
    A("v_lshl_add_u32 v5, v6, 2, v5")
    A("v_bfe_u32 v6, v0, 7, 1")
    A("v_lshl_add_u32 v5, v6, 7, v5")
    A("v_lshlrev_b32 v5, 1, v5")
    A("v_lshlrev_b32 v6, 1, v0")
    A("v_lshlrev_b32 v7, 2, v0")
    A(f"s_mov_b32 s24, {256*512}")
    A(f"s_mov_b32 s25, {hex(C_NLOG2E)}")
    A("s_waitcnt lgkmcnt(0)")
    srd(36, PW1, 257 * 512)
    srd(40, PB1, 512)
    srd(44, PB2, 256)
    srd(48, PWS, 2048 + 512, off=WS_CV)
    A("buffer_load_ushort v16, v5, s[36:39], s24 offen")
    A("buffer_load_ushort v17, v5, s[40:43], 0 offen")
    A("buffer_load_ushort v18, v6, s[44:47], 0 offen")
    A("s_waitcnt vmcnt(0)")
    for k in range(3):
        A(f"v_lshlrev_b32 v{16+k}, 16, v{16+k}")
    A("v_mul_f32 v16, s25, v16")
    A("buffer_store_dword v16, v7, s[48:51], 0 offen")
    A("buffer_store_dword v17, v7, s[48:51], 0 offen offset:1024")
    A("buffer_store_dword v18, v7, s[48:51], 0 offen offset:2048")
    A("s_endpgm")

    L("K1_BIN")
    A("v_lshlrev_b32 v5, 2, v0")
    A("v_lshlrev_b32 v6, 1, v0")
    A("v_mov_b32 v7, 0")
    A("v_mov_b32 v8, 1")
    A("ds_write_b32 v5, v7")
    A(f"s_mul_i32 s24, s2, {CH*4}")
    A(f"s_mul_i32 s25, s2, {CH*2}")
    A("s_movk_i32 s26, 0x1000")
    A("s_movk_i32 s27, 0x2000")
    A("s_lshl_b32 s28, s2, 8")
    A("s_add_u32 s29, s28, 8")
    A(f"s_movk_i32 s32, {CH - 4*512}")
    A(f"s_mov_b32 s33, {hex(FBASE)}")
    A(f"s_movk_i32 s34, {-NPB if NB == 250 else 625}")
    A("v_cmp_gt_u32 s[60:61], s32, v0")
    A("s_waitcnt lgkmcnt(0)")
    DST, REC, EV, RK, BN = 16, 24, 40, 48, 56
    so4 = ["0", "0", "s26", "s26", "s27"]; io4 = [0, 2048, 0, 2048, 0]
    so2 = ["0", "0", "0", "0", "s26"]; io2 = [0, 1024, 2048, 3072, 0]
    def csrd(d, p, off, nb):
        A(f"s_add_u32 s{d}, s{p}, s{off}")
        A(f"s_addc_u32 s{d+1}, s{p+1}, 0")
        A(f"s_and_b32 s{d+1}, s{d+1}, 0xffff")
        A(f"s_mov_b32 s{d+2}, {nb}")
        A(f"s_mov_b32 s{d+3}, 0x20000")
    csrd(36, PDST, 24, CH*4)
    for j in range(5):
        A(f"buffer_load_dword v{DST+j}, v5, s[36:39], {so4[j]} offen offset:{io4[j]}")
    csrd(40, PSRC, 24, CH*4)
    csrd(44, PE, 25, CH*2)
    for j in range(5):
        A(f"buffer_load_dword v{REC+2*j}, v5, s[40:43], {so4[j]} offen offset:{io4[j]}")
        A(f"buffer_load_ushort v{EV+j}, v6, s[44:47], {so2[j]} offen offset:{io2[j]}")
    srd(48, PWS, NB * NCH * 256, off=WS_SEG)
    if TCH3:
        A("v_lshlrev_b32 v12, 14, v0")
        A("buffer_load_dword v13, v12, s[48:51], s28 offen")
    A("s_barrier")
    for j in range(5):
        A(f"s_waitcnt vmcnt({14-j+(1 if TCH3 else 0)})")
        A(f"v_mul_u32_u24 v{BN+j}, {'0xcccd' if NB == 250 else 429497}, v{DST+j}")
        A(f"v_lshrrev_b32 v{BN+j}, {21 if NB == 250 else 24}, v{BN+j}")
        A(f"v_lshlrev_b32 v9, 2, v{BN+j}")
        if j == 4:
            A(f"v_mov_b32 v{RK+j}, {CAP}")
            A("s_mov_b64 exec, s[60:61]")
            A("s_cbranch_execz K1_B_SKIP4")
        A(f"ds_add_rtn_u32 v{RK+j}, v9, v8")
        if j == 4:
            L("K1_B_SKIP4")
            A("s_mov_b64 exec, -1")
        if NB == 250:
            A(f"v_mad_i32_i24 v{DST+j}, v{BN+j}, s34, v{DST+j}")
        else:
            A(f"v_mad_u32_u24 v10, v{BN+j}, s34, 15")
            A("v_lshrrev_b32 v10, 4, v10")
            A(f"v_sub_u32 v{DST+j}, v{DST+j}, v10")
        A(f"v_lshlrev_b32 v{BN+j}, 14, v{BN+j}")
        A(f"v_lshlrev_b32 v{DST+j}, 2, v{DST+j}")
    stamp(1)
    A("v_mov_b32 v11, 0x7ffff000")
    for j in range(5):
        A(f"s_waitcnt vmcnt({8-2*j+j+(1 if TCH3 else 0)}) lgkmcnt({0 if (j >= 3 or STAMP) else 3-j})")
        A(f"v_lshl_or_b32 v{REC+2*j+1}, v{EV+j}, 16, v{DST+j}")
        A(f"v_cmp_gt_u32 vcc, {CAP}, v{RK+j}")
        A(f"v_lshl_or_b32 v{REC+2*j}, v{REC+2*j}, 9, s33")
        A(f"v_lshl_add_u32 v9, v{RK+j}, 3, v{BN+j}")
        A("v_cndmask_b32 v9, v11, v9, vcc")
        if "norec" in EXP1: A("v_mov_b32 v9, v11")
        A(f"buffer_store_dwordx2 {vr(REC+2*j,2)}, v9, s[48:51], s29 offen {STB}")
    stamp(2)
    A("s_barrier")
    A("ds_read_b32 v10, v5")
    A("v_lshlrev_b32 v9, 14, v0")
    A("s_waitcnt lgkmcnt(0)")
    if "norec" in EXP1: A("v_mov_b32 v10, 0")
    if "nocnt" in EXP1: A("v_mov_b32 v9, v11")
    A(f"buffer_store_dword v10, v9, s[48:51], s28 offen {STB}")
    stamp(3)
    if STAMP: A("s_waitcnt vmcnt(0)")
    stamp(4)
    stamp_flush(0, 3, 5)
    L("K1_END")
    A("s_endpgm")
    if NTW:
        L("K1_TOUCH")
        CM("prefetch role: one load per 32 KB of the workspace part in use and of the output, one per line of k2's code")
        A("s_load_dwordx2 s[20:21], s[0:1], 64")
        A("v_lshlrev_b32 v1, 15, v0")
        A("v_lshlrev_b32 v2, 7, v0")
        A("s_getpc_b64 s[24:25]")
        L("K1_PC")
        A("s_add_u32 s24, s24, k2_kernel-K1_PC")
        A("s_addc_u32 s25, s25, 0")
        A("s_and_b32 s25, s25, 0xffff")
        A("s_mov_b32 s26, K2_CODE_END-k2_kernel")
        A("s_mov_b32 s27, 0x20000")
        A("buffer_load_dword v5, v2, s[24:27], 0 offen")
        A("s_waitcnt lgkmcnt(0)")
        srd(28, PWS, WS_CV + 4096)
        srd(32, POUT, N * D * 2)
        A("buffer_load_dword v3, v1, s[28:31], 0 offen")
        A("buffer_load_dword v4, v1, s[32:35], 0 offen")
        A("s_waitcnt vmcnt(0)")
        A("s_endpgm")

QROW, HROW = 1040, 528
L_CNT = 0
L_FLAG = 256
L_SFL = 272
L_ZROW = 352
ZERO_B = 864
L_PRIV = 896
PRIV_N = 64 + R + 8
PRIV_B = PRIV_N * 8
L_H = L_PRIV + 16 * PRIV_B
L_SIDE = L_H + NPB * HROW
L_Q = L_SIDE + 16 * 1024
L_XT = L_Q + NPB * QROW
L_LIST = L_XT + 16 * 1024
K2_LDS = L_LIST + 2048 * 8
assert K2_LDS <= 163840 and PRIV_N % 4 == 0 and R == 8 and L_XT % 1024 != -1 and L_H % 16 == 0 and L_Q % 16 == 0
WIN = 16 * 63
DUMMY = FBASE + 0x7FF000

coldbuf = []
class cold:
    def __enter__(self): self.n = len(out)
    def __exit__(self, *a):
        coldbuf.extend(out[self.n:]); del out[self.n:]

def gen_k2():
    kernel_begin("k2_kernel")
    VLF, VH8, VL16, VT16, VQ16 = 3, 4, 5, 6, 7
    W, Q, NN, DD, Z, Z2, T, LO, PZ = 8, 12, 16, 20, 24, 28, 32, 36, 38
    VA, VP, VDEG, VB4, VCNT, VPL, VM, VEND = 40, 41, 42, 43, 44, 45, 46, 47
    EV, OG, DAT = 48, [56, 60], 64
    AD, OUTA, OV = 80, 83, 84
    B2F = 92
    W2R = 96
    W1F, B1P, RC, TI = 96, 112, 116, 120
    SACC = 100
    ST, SW, SO, SX = 24, 28, 32, 36
    MA, MB = 40, 42
    SC = 44
    SMODE, SFIRST, SPOS, SQD, SCH, SFAST = 46, 47, 48, 49, 50, 51
    SOV, SM = 52, 54
    SREM, STOT, SLP, SW2, SNN, SWV = 56, 57, 58, 59, 60, 3
    SN40, SEX = 61, 62
    T0, T1, T2, T3, TP = 64, 65, 66, 67, 68
    STAIL, SSIDE = 70, 71
    SQM = 4
    SW1, SNB = 14, 15
    SLEN, SOUT = 12, 13
    C2 = f"s[{SC}:{SC+1}]"
    NLA, NLB, RKA, RKB, PA_, PB_, X0, X1 = 28, 29, 30, 31, 32, 33, 34, 35

    A("s_load_dwordx8 s[4:11], s[0:1], 0")
    A("s_load_dwordx2 s[20:21], s[0:1], 64")
    A("s_load_dwordx2 s[22:23], s[0:1], 80")
    stamp(0)
    if STAMP: A("s_memtime s[94:95]")
    A(f"s_cmp_ge_u32 s2, {NB}")
    A("s_cbranch_scc1 K2_END")
    A("v_and_b32 v1, 63, v0")
    A("v_lshrrev_b32 v48, 6, v0")
    A(f"v_lshlrev_b32 v{VT16}, 4, v0")
    A(f"v_readfirstlane_b32 s{SWV}, v48")
    A("v_lshlrev_b32 v2, 2, v1")
    A(f"s_lshl_b32 s{T0}, s2, 14")
    A(f"s_add_u32 s{T0}, s{T0}, {hex(WS_SEG)}")
    if NB == 250:
        A(f"s_mul_i32 s{SN40}, s2, {NPB}")
        A(f"s_mov_b32 s{SNB}, {NPB}")
    else:
        A(f"s_mul_i32 s{SN40}, s2, 625")
        A(f"s_add_u32 s{SNB}, s{SN40}, 640")
        A(f"s_add_u32 s{SN40}, s{SN40}, 15")
        A(f"s_lshr_b32 s{SN40}, s{SN40}, 4")
        A(f"s_lshr_b32 s{SNB}, s{SNB}, 4")
        A(f"s_sub_u32 s{SNB}, s{SNB}, s{SN40}")
    for k in range(4):
        A(f"v_mov_b32 v{52+k}, 0")
    A(f"v_cmp_gt_u32 vcc, {ZERO_B//16}, v0")
    A(f"s_mul_i32 s{T1}, s{SWV}, {PRIV_B}")
    A(f"s_add_u32 s{T1}, s{T1}, {L_PRIV}")
    A(f"s_and_saveexec_b64 s[{SEX}:{SEX+1}], vcc")
    A("s_cbranch_execz K2_Z1")
    A(f"ds_write_b128 v{VT16}, v[52:55]")
    L("K2_Z1")
    A(f"s_mov_b64 exec, s[{SEX}:{SEX+1}]")
    A(f"v_add_u32 v{VPL}, s{T1}, v2")
    A(f"v_mov_b32 v56, {hex(DUMMY)}")
    A(f"ds_write_b32 v{VPL}, v56")
    A(f"ds_write_b32 v{VPL}, v56 offset:{(PRIV_N-64)*4}")
    A(f"v_mov_b32 v{VP}, s{T1}")
    A("v_and_b32 v48, 15, v1")
    A("v_lshrrev_b32 v49, 4, v1")
    A("v_lshrrev_b32 v50, 4, v0")
    A("v_xor_b32 v51, v50, v48")
    A("v_and_b32 v51, 15, v51")
    A("v_lshlrev_b32 v51, 4, v51")
    A("v_lshl_add_u32 v51, v50, 8, v51")
    A(f"s_lshl_b32 s{SSIDE}, s{SWV}, 10")
    A(f"s_add_u32 s{T2}, s{SSIDE}, {L_XT}")
    A(f"s_mov_b32 m0, s{T2}")
    A(f"s_add_u32 s{SSIDE}, s{SSIDE}, {L_SIDE}")
    A(f"s_lshl_b32 s{T2}, s{SN40}, 8")
    A(f"s_mov_b32 s{T3}, {hex(WS_CV - 12*1024)}")
    A(f"v_lshlrev_b32 v{VL16}, 4, v1")
    A("s_waitcnt lgkmcnt(0)")
    srd(SW, PWS, WS_BYTES)
    A(f"buffer_load_dwordx4 {vr(RC,4)}, v{VT16}, s[{SW}:{SW+3}], s{T0} offen")
    srd(SX, PX, N * 256)
    A(f"s_cmp_lt_u32 s{SWV}, 12")
    A("s_cbranch_scc0 K2_CVL")
    A(f"buffer_load_dwordx4 v51, s[{SX}:{SX+3}], s{T2} offen lds")
    A("s_branch K2_CVD")
    L("K2_CVL")
    A(f"buffer_load_dwordx4 v{VT16}, s[{SW}:{SW+3}], s{T3} offen lds")
    L("K2_CVD")
    if SPF:
        A(f"s_lshr_b32 s{T1}, s2, 3")
        A(f"s_lshl_b32 s{T1}, s{T1}, 4")
        A(f"s_add_u32 s{T1}, s{T1}, s{SWV}")
        A(f"s_mul_i32 s{T1}, s{T1}, {SPF*128}")
        A(f"s_add_u32 s16, s{PWS}, s{T1}")
        A(f"s_addc_u32 s17, s{PWS+1}, 0")
        for k in range(SPF):
            A(f"s_load_dword s{18 + (k&1)}, s[16:17], {k*128}")
    A("s_barrier")
    if XS == "g": stamp(4)
    A(f"s_lshl_b32 s{T1}, s{SWV}, 12")
    A(f"s_add_u32 s{T2}, s{T1}, {hex(WS_W1F)}")
    A("v_lshlrev_b32 v52, 4, v50")
    for s in range(4):
        A(f"buffer_load_dwordx4 {vr(W1F+4*s,4)}, v{VL16}, s[{SW}:{SW+3}], s{T2} offen offset:{s*1024}")
    L_CV = L_XT + 12 * 1024
    if TCH2:
        srd(SO, POUT, N * D * 2)
        A(f"s_cmp_lg_u32 s{SWV}, 15")
        A("s_cbranch_scc1 K2_NOT")
        A(f"v_lshlrev_b32 v57, {TCH2}, v1")
        A(f"s_mov_b32 s{SX}, s{SW}")
        A(f"s_mov_b32 s{SX+1}, s{SW+1}")
        A(f"s_mov_b32 s{SX+2}, {N*512}")
        A(f"s_lshl_b32 s{T3}, s{SN40}, 8")
        A(f"buffer_load_dword v58, v57, s[{SX}:{SX+3}], 0 offen")
        A(f"buffer_load_dword v59, v2, s[{SO}:{SO+3}], s{T3} offen")
        L("K2_NOT")
    A(f"v_add_u32 v{OV}, {L_CV + 1024}, v52")
    A(f"v_and_b32 v{OV+1}, 0x1ff, v52")
    A(f"v_add_u32 v{OV+1}, {L_CV + 2048}, v{OV+1}")
    A(f"v_add_u32 v{OV+2}, {L_CV}, v{VL16}")
    NPRE = 4
    assert not PFL
    if PFL:
        A(f"s_lshr_b32 s{T3}, s2, 3")
        A(f"s_mul_i32 s{T3}, s{T3}, {PFL*128}")
        A(f"s_sub_u32 s{T2}, 15, s{SWV}")
        A(f"s_lshl_b32 s{T1}, s{T2}, 13")
        A(f"s_add_u32 s{T3}, s{T3}, s{T1}")
        A(f"s_cmp_lt_u32 s{T2}, {PFL//64}")
        A(f"s_cselect_b32 s{T3}, s{T3}, 0x7ff00000")
        A("v_lshlrev_b32 v55, 7, v1")
        A(f"buffer_load_dword v{OV}, v55, s[{SW}:{SW+3}], s{T3} offen sc1")
        NPRE += 1
    A(f"s_mov_b32 s{SC}, {hex(C_NLOG2E)}")
    A(f"s_mov_b32 s{SC+1}, {hex(C_NLOG2E)}")
    A(f"s_mov_b32 s{SMODE}, 0")
    A(f"s_mov_b32 s{SQD}, 0")
    A(f"s_sub_u32 s{ST}, s{PWS}, {hex(FBASE)}")
    A(f"s_subb_u32 s{ST+1}, s{PWS+1}, 0")
    A(f"s_and_b32 s{ST+1}, s{ST+1}, 0xffff")
    A(f"s_mov_b32 s{ST+2}, {hex(FBASE + N*512)}")
    A(f"s_mov_b32 s{ST+3}, 0x20000")
    srd(SO, POUT, N * D * 2)
    A(f"v_cvt_f32_u32 v{VLF}, v2")
    A(f"v_lshlrev_b32 v{VH8}, 3, v1")
    A(f"v_add_u32 v{VH8}, {L_H}, v{VH8}")
    A(f"v_add_u32 v{VQ16}, {L_Q}, v{VL16}")
    A(f"v_cvt_f32_u32 v{VM}, v1")
    A(f"v_rcp_f32 v{VM}, v{VM}")
    A("v_xor_b32 v54, v49, v48")
    A(f"v_mul_f32 v{VM}, 0x47800000, v{VM}")
    A("v_lshlrev_b32 v54, 4, v54")
    A(f"v_cvt_u32_f32 v{VM}, v{VM}")
    A("v_lshl_add_u32 v54, v48, 8, v54")
    A(f"v_add_u32 v{VM}, 1, v{VM}")
    for s in range(4):
        A(f"v_xor_b32 v{Q+s}, {64*s}, v54")
        A(f"v_add_u32 v{Q+s}, {L_XT}, v{Q+s}")
    A(f"s_movk_i32 s{T1}, {QROW}")
    A(f"v_mad_u32_u24 v{VA}, v48, s{T1}, v52")
    A(f"v_add_u32 v{VA}, {L_Q}, v{VA}")
    A(f"s_sub_u32 s{T2}, s{SNB}, 32")
    A(f"v_cmp_gt_u32 s[{SQM}:{SQM+1}], s{T2}, v48")
    A(f"s_movk_i32 s{T1}, {HROW}")
    A("v_lshlrev_b32 v55, 4, v49")
    A(f"v_mad_u32_u24 v{AD}, v48, s{T1}, v55")
    A(f"v_add_u32 v{LO+1}, {L_ZROW}, v55")
    A(f"v_lshlrev_b32 v{OUTA}, 8, v48")
    A(f"v_lshl_add_u32 v{OUTA}, v49, 3, v{OUTA}")
    A(f"v_lshlrev_b32 v{LO}, 2, v48")
    A(f"s_lshl_b32 s{SOUT}, s{SN40}, 8")
    A(f"s_lshl_b32 s{T2}, s{SWV}, 5")
    A(f"s_add_u32 s{SOUT}, s{SOUT}, s{T2}")
    with cold():
        L("K2_PASS")
        A(f"s_lshl_b32 s{T0}, s2, 14")
        A(f"s_add_u32 s{T0}, s{T0}, {hex(WS_SEG)}")
        A(f"buffer_load_dwordx4 {vr(RC,4)}, v{VT16}, s[{SW}:{SW+3}], s{T0} offen")
        A("s_waitcnt vmcnt(0)")
        A("s_branch K2_START")
    L("K2_START")
    A(f"v_mov_b32 v{VDEG}, 0")
    A(f"v_mov_b32 v{PZ}, 0")
    A(f"v_mov_b32 v{PZ+1}, 0")
    A(f"s_mov_b32 s{SFIRST}, 1")
    A(f"v_and_b32 v{X0}, 15, v0")
    A(f"v_lshlrev_b32 v{X0}, 1, v{X0}")
    A(f"v_add_u32 v{X1}, -1, v{X0}")
    A(f"s_waitcnt vmcnt({NPRE+1})")
    stamp(1)
    A(f"v_mov_b32_dpp v{PA_}, v{RC} row_newbcast:0 row_mask:0xf bank_mask:0xf")
    A(f"v_cmp_lt_u32 vcc, {CAP}, v{PA_}")
    A(f"v_cmp_lt_u32 s[{MA}:{MA+1}], v{X1}, v{PA_}")
    A(f"v_cmp_lt_u32 s[{MB}:{MB+1}], v{X0}, v{PA_}")
    A("s_cbranch_vccnz K2_OVF")
    with cold():
        L("K2_OVF")
        A(f"s_andn2_b64 s[{MA}:{MA+1}], s[{MA}:{MA+1}], vcc")
        A(f"s_andn2_b64 s[{MB}:{MB+1}], s[{MB}:{MB+1}], vcc")
        A(f"s_and_saveexec_b64 s[{SEX}:{SEX+1}], vcc")
        A(f"v_lshrrev_b32 v{X0}, 4, v0")
        A(f"v_lshrrev_b32 v{X1}, 5, v{X0}")
        A(f"v_lshlrev_b32 v{X1}, 2, v{X1}")
        A(f"v_and_b32 v{X0}, 31, v{X0}")
        A(f"v_mov_b32 v{PB_}, 1")
        A(f"v_lshlrev_b32 v{PB_}, v{X0}, v{PB_}")
        A(f"ds_or_b32 v{X1}, v{PB_} offset:{L_FLAG}")
        A(f"s_mov_b64 exec, s[{SEX}:{SEX+1}]")
        A("s_branch K2_ROUND")

    L("K2_ROUND")
    A(f"v_and_b32 v{NLA}, 0xfc, v{RC+1}")
    A(f"v_and_b32 v{NLB}, 0xfc, v{RC+3}")
    A(f"v_mov_b32 v{X0}, 4")
    A(f"s_mov_b64 exec, s[{MA}:{MA+1}]")
    A("s_cbranch_execz K2_R1")
    A(f"ds_add_rtn_u32 v{RKA}, v{NLA}, v{X0}")
    L("K2_R1")
    A(f"s_mov_b64 exec, s[{MB}:{MB+1}]")
    A("s_cbranch_execz K2_R2")
    A(f"ds_add_rtn_u32 v{RKB}, v{NLB}, v{X0}")
    L("K2_R2")
    A("s_mov_b64 exec, -1")
    A(f"v_mov_b32 v{X1}, 0")
    A(f"s_waitcnt vmcnt({NPRE}) lgkmcnt(0)")
    A("s_barrier")
    if XS == "e": stamp(4)
    if XS == "f":
        A("s_waitcnt vmcnt(0)"); stamp(4)
    A(f"ds_read_b32 v{VCNT}, v2")
    A(f"ds_read_b64 {vr(NN,2)}, v{X1} offset:{L_FLAG}")
    A("s_waitcnt lgkmcnt(1)")
    A(f"v_add_u32_dpp v{VEND}, v{VCNT}, v{VCNT} row_shr:1 row_mask:0xf bank_mask:0xf bound_ctrl:0")
    A(f"v_add_u32 v{VDEG}, v{VDEG}, v{VCNT}")
    for k, ctl in enumerate(("row_shr:2 row_mask:0xf bank_mask:0xf bound_ctrl:0",
                "row_shr:4 row_mask:0xf bank_mask:0xf bound_ctrl:0", "row_shr:8 row_mask:0xf bank_mask:0xf bound_ctrl:0",
                "row_bcast:15 row_mask:0xa bank_mask:0xf", "row_bcast:31 row_mask:0xc bank_mask:0xf")):
        A("s_nop 0" if k == 0 else "s_nop 1")
        A(f"v_add_u32_dpp v{VEND}, v{VEND}, v{VEND} {ctl}")
    A(f"v_sub_u32 v{VB4}, v{VEND}, v{VCNT}")
    A("s_waitcnt lgkmcnt(0)")
    A(f"v_readlane_b32 s{STOT}, v{VEND}, 63")
    A(f"ds_bpermute_b32 v{PA_}, v{NLA}, v{VB4}")
    A(f"ds_bpermute_b32 v{PB_}, v{NLB}, v{VB4}")
    A(f"s_cmp_eq_u32 s{SFIRST}, 0")
    A("s_cbranch_scc1 K2_R3")
    A(f"v_readfirstlane_b32 s{SOV}, v{NN}")
    A(f"v_readfirstlane_b32 s{SOV+1}, v{NN+1}")
    A(f"s_mov_b32 s{SPOS}, {CH}")
    L("K2_R3")
    A(f"s_add_u32 s{T1}, s{STOT}, 60")
    A(f"s_lshr_b32 s{SLEN}, s{T1}, 6")
    A(f"s_lshl_b32 s{T1}, s{SLEN}, 2")
    A(f"s_add_u32 s{T2}, s{T1}, 4")
    A(f"v_cmp_lt_u32 vcc, s{T2}, v{VCNT}")
    A(f"s_and_b32 s{T3}, s{SLEN}, 63")
    A(f"v_readlane_b32 s{T0}, v{VM}, s{T3}")
    A(f"s_andn2_b32 s{SFAST}, s{SFIRST}, s{SMODE}")
    A(f"s_cmp_gt_u32 s{STOT}, {4*WIN}")
    A(f"s_cselect_b32 s{SFAST}, 0, s{SFAST}")
    A(f"s_sub_u32 s{T1}, {PRIV_B}, s{T1}")
    A(f"s_or_b64 vcc, vcc, s[{SOV}:{SOV+1}]")
    A(f"s_cselect_b32 s{SFAST}, 0, s{SFAST}")
    A(f"s_cmp_eq_u32 s{SFAST}, 0")
    A("s_waitcnt lgkmcnt(0)")
    A(f"v_add_u32 v{PA_}, v{PA_}, v{RKA}")
    A(f"v_add_u32 v{PB_}, v{PB_}, v{RKB}")
    A("s_cbranch_scc1 K2_WL")
    A(f"v_mul_u32_u24 v{RKA}, s{T0}, v{PA_}")
    A(f"v_mul_u32_u24 v{RKB}, s{T0}, v{PB_}")
    A(f"v_lshrrev_b32 v{RKA}, 18, v{RKA}")
    A(f"v_lshrrev_b32 v{RKB}, 18, v{RKB}")
    A(f"v_mad_u32_u24 v{PA_}, v{RKA}, s{T1}, v{PA_}")
    A(f"v_mad_u32_u24 v{PB_}, v{RKB}, s{T1}, v{PB_}")
    for tag, m, ad, rc in (("A", MA, PA_, RC), ("B", MB, PB_, RC + 2)):
        A(f"s_mov_b64 exec, s[{m}:{m+1}]")
        A(f"s_cbranch_execz K2_P{tag}")
        A(f"ds_write_b32 v{ad}, v{rc} offset:{L_PRIV}")
        A(f"ds_write_b32 v{ad}, v{rc+1} offset:{L_PRIV + PRIV_N*4}")
        L(f"K2_P{tag}")
    with cold():
        L("K2_WL")
        A(f"v_lshlrev_b32 v{PA_}, 1, v{PA_}")
        A(f"v_lshlrev_b32 v{PB_}, 1, v{PB_}")
        A(f"v_add_u32 v{PA_}, {L_LIST}, v{PA_}")
        A(f"v_add_u32 v{PB_}, {L_LIST}, v{PB_}")
        for tag, m, ad, rc in (("A", MA, PA_, RC), ("B", MB, PB_, RC + 2)):
            A(f"s_mov_b64 exec, s[{m}:{m+1}]")
            A(f"s_cbranch_execz K2_WX{tag}")
            A(f"ds_write_b64 v{ad}, {vr(rc,2)}")
            L(f"K2_WX{tag}")
        A("s_branch K2_WB")
    L("K2_WB")
    A("s_mov_b64 exec, -1")
    A(f"s_mov_b32 s{SW2}, 1")
    A("s_waitcnt lgkmcnt(0)")
    A("s_barrier")
    stamp(2)
    def row_load(d, p, pair=False):
        if not pair:
            A(f"v_add_u32 v{p}, v{p}, v2")
        A(f"buffer_load_dword v{d}, v{p}, s[{ST}:{ST+3}], 0 offen {LDF}")
        A(f"buffer_load_dword v{d+1}, v{p}, s[{ST}:{ST+3}], 0 offen offset:256 {LDF}")
    for k in range(R // 4):
        A(f"ds_read_b128 {vr(TI+4*k,4)}, v{VP} offset:{16*k}")
    A(f"s_cmp_lg_u32 s{SWV}, 0")
    A("s_cbranch_scc1 K2_R4")
    A(f"ds_write_b32 v2, v{X1}")
    L("K2_R4")
    A(f"s_cmp_lg_u32 s{SQD}, 0")
    A("s_cbranch_scc1 K2_SLOW")
    A(f"s_mov_b32 s{SQD}, 1")
    AT = [72, 76, Z2, T, RC, OG[1]]
    seq = [(mt, s) for s in range(4) for mt in range(3)]
    PRE = 5
    A(f"ds_read_b128 {vr(B1P,4)}, v{OV}")
    for k in range(PRE):
        mt, s = seq[k]
        A(f"ds_read_b128 {vr(AT[k%6],4)}, v{Q+s} offset:{4096*mt}")
    A(f"s_mul_i32 s{T0}, s{SLEN}, s{SWV}")
    A(f"s_add_u32 s{T3}, s{T0}, s{SLEN}")
    A(f"s_lshl_b32 s{T0}, s{T0}, 2")
    A(f"s_lshl_b32 s{T3}, s{T3}, 2")
    A(f"s_min_u32 s{T0}, s{T0}, s{STOT}")
    A(f"s_min_u32 s{T3}, s{T3}, s{STOT}")
    A(f"s_sub_u32 s{SNN}, s{T3}, s{T0}")
    A(f"s_lshr_b32 s{SNN}, s{SNN}, 2")
    A(f"s_waitcnt lgkmcnt({PRE+1})")
    assert F1 == 4
    for k in range(F1):
        row_load(DAT + 2*k, TI + k)
    A(f"v_cmp_gt_u32 vcc, s{T0}, v{VB4}")
    A(f"v_cmp_lt_u32 s[{TP}:{TP+1}], s{T0}, v{VEND}")
    A(f"s_and_b64 vcc, vcc, s[{TP}:{TP+1}]")
    A(f"s_cselect_b32 s{SLP}, 1, 0")
    A(f"v_cmp_gt_u32 vcc, s{T3}, v{VB4}")
    A(f"v_cmp_lt_u32 s[{TP}:{TP+1}], s{T3}, v{VEND}")
    A(f"s_and_b64 vcc, vcc, s[{TP}:{TP+1}]")
    A(f"s_cselect_b32 s{STAIL}, 1, 0")
    for k, (mt, s) in enumerate(seq):
        if k + PRE < 12:
            m2, s2 = seq[k+PRE]
            A(f"ds_read_b128 {vr(AT[(k+PRE)%6],4)}, v{Q+s2} offset:{4096*m2}")
        w = f"s_waitcnt lgkmcnt({min(PRE, 11-k)})"
        if mt == 0: w += f" vmcnt({NPRE-1-s+2*F1})"
        A(w)
        c = vr(B1P, 4) if s == 0 else vr(NN+4*mt, 4)
        A(f"v_mfma_f32_16x16x32_bf16 {vr(NN+4*mt,4)}, {vr(W1F+4*s,4)}, {vr(AT[k%6],4)}, {c}")
    A(f"ds_read_b32 v{Q}, v{VPL} offset:{PRIV_N*4}")
    for k in range(R // 4):
        A(f"ds_read_b128 {vr(EV+4*k,4)}, v{VP} offset:{PRIV_N*4 + 16*k}")
    A(f"ds_read_b128 {vr(OG[0],4)}, v{VP} offset:{R*4}")
    A(f"ds_read_b128 {vr(W,4)}, v{OV+2}")
    A(f"ds_read_b128 {vr(B2F,4)}, v{OV+1}")
    A(f"v_cmp_le_u32 vcc, s{SNN}, v1")
    A(f"s_movk_i32 s{T2}, {QROW//4}")
    A(f"s_movk_i32 s{T3}, {HROW//4}")
    A(f"s_mov_b32 s{SREM}, s{SNN}")
    for mt in range(3):
        for r in range(4):
            A(f"v_mul_f32 v{NN+4*mt+r}, s{SC}, v{NN+4*mt+r}")
        if mt == 2:
            A(f"s_mov_b64 exec, s[{SQM}:{SQM+1}]")
        A(f"ds_write_b128 v{VA}, {vr(NN+4*mt,4)} offset:{16*mt*QROW}")
    A("s_mov_b64 exec, -1")
    A("s_waitcnt lgkmcnt(0)")
    A("s_barrier")
    stamp(3)
    A(f"s_cmp_eq_u32 s{SFAST}, 0")
    A("s_cbranch_scc1 K2_SLOW")
    A(f"v_and_b32 v{Z2}, 0xfc, v{EV}")
    A(f"v_and_b32 v{Q+1}, 0xfc, v{Q}")
    A(f"v_mad_u32_u24 v{Z2+1}, v{Z2}, s{T2}, v{VQ16}")
    A("s_setprio 3" if PRIO else "s_nop 0")
    A(f"v_mov_b32_dpp v{Q+2}, v{Q+1} wave_shr:1 row_mask:0xf bank_mask:0xf")
    A(f"v_cmp_ne_u32 s[{SM}:{SM+1}], v{Q+1}, v{Q+2}")
    A(f"ds_read_b128 {vr(Q,4)}, v{Z2+1}")
    A(f"s_or_b64 s[{SM}:{SM+1}], s[{SM}:{SM+1}], vcc")
    for k in range(F1, R):
        row_load(DAT + 2*k, TI + k)
    for k in range(4):
        A(f"v_add_u32 v{OG[0]+k}, v{OG[0]+k}, v2")
    def tail_prep():
        for mt in range(3):
            A(f"v_add_u32 v{T+3}, {64*mt}, v{LO}")
            A(f"ds_bpermute_b32 v{T+mt}, v{T+3}, v{VDEG}")
        A(f"v_add_u32 v{AD+2}, {L_H + 32*HROW}, v{AD}")
        A(f"v_add_u32 v{AD+1}, {L_H + 16*HROW}, v{AD}")
        A(f"v_add_u32 v{AD}, {L_H}, v{AD}")
        A("s_waitcnt lgkmcnt(0)")
        for mt in range(3):
            A(f"v_cmp_eq_u32 vcc, 0, v{T+mt}")
            A(f"v_cvt_f32_u32 v{T+mt}, v{T+mt}")
            A(f"v_mul_f32 v{T+mt}, 0.25, v{T+mt}") if False else A(f"v_mul_f32 v{T+mt}, 0x3e800000, v{T+mt}")
            A(f"v_cndmask_b32 v{AD+mt}, v{AD+mt}, v{LO+1}, vcc")
            A(f"v_pk_mul_f32 {vr(OV+4*mt,2)}, {vr(B2F,2)}, {vr(T+(mt&2),2)} " + ("op_sel_hi:[1,0]" if mt % 2 == 0 else "op_sel:[0,1]"))
            A(f"v_pk_mul_f32 {vr(OV+4*mt+2,2)}, {vr(B2F+2,2)}, {vr(T+(mt&2),2)} " + ("op_sel_hi:[1,0]" if mt % 2 == 0 else "op_sel:[0,1]"))
    A(f"s_cmp_ge_u32 s{SWV}, 8")
    A("s_cbranch_scc1 K2_NOTP")
    tail_prep()
    L("K2_NOTP")
    A(f"v_mov_b32 v{LO}, v{Z2}")
    VW = 2 * (R - 1)
    if STAMP and not XS:
        A(f"s_waitcnt vmcnt({VW})")
        stamp(4)
    A(f"s_cmp_eq_u32 s{SNN}, 0")
    A("s_cbranch_scc1 K2_WDONE")
    A("s_branch K2_HC0")

    def e_sel(s):
        base = EV + (s & ~1)
        return (vr(base, 2), "op_sel_hi:[1,0,1]") if s % 2 == 0 else (vr(base, 2), "op_sel:[0,1,0]")
    def part_z1(s, z):
        ep, es = e_sel(s)
        return [f"v_pk_fma_f32 {vr(z,2)}, {vr(W,2)}, {ep}, {vr(Q,2)} {es}",
                f"v_pk_fma_f32 {vr(z+2,2)}, {vr(W+2,2)}, {ep}, {vr(Q+2,2)} {es}"]
    def part_z2(s, z, zo=None):
        d = DAT + 2*s
        zo = z if zo is None else zo
        return [f"v_lshlrev_b64 {vr(LO,2)}, 16, {vr(d,2)}",
                f"v_pk_fma_f32 {vr(zo,2)}, {vr(d,2)}, {C2}, {vr(z,2)}",
                f"v_pk_fma_f32 {vr(zo+2,2)}, {vr(LO,2)}, {C2}, {vr(z+2,2)}"]
    def part_exp(z): return [f"v_exp_f32 v{T+k}, v{z+k}" for k in range(4)]
    def part_nd(z):
        return [f"v_pk_fma_f32 {vr(NN,2)}, {vr(NN,2)}, {vr(T,2)}, {vr(NN,2)}",
                f"v_pk_fma_f32 {vr(NN+2,2)}, {vr(NN+2,2)}, {vr(T+2,2)}, {vr(NN+2,2)}",
                f"v_pk_fma_f32 {vr(NN,2)}, {vr(z,2)}, {vr(DD,2)}, {vr(NN,2)}",
                f"v_pk_fma_f32 {vr(NN+2,2)}, {vr(z+2,2)}, {vr(DD+2,2)}, {vr(NN+2,2)}",
                f"v_pk_fma_f32 {vr(DD,2)}, {vr(DD,2)}, {vr(T,2)}, {vr(DD,2)}",
                f"v_pk_fma_f32 {vr(DD+2,2)}, {vr(DD+2,2)}, {vr(T+2,2)}, {vr(DD+2,2)}"]
    def addr_prep(k):
        A("s_waitcnt lgkmcnt(0)")
        A(f"v_pk_add_f32 {vr(OG[k],2)}, {vr(OG[k],2)}, v[2:3] op_sel:[0,1]")
        A(f"v_pk_add_f32 {vr(OG[k]+2,2)}, {vr(OG[k]+2,2)}, v[2:3] op_sel:[0,1]")
    def refill(s):
        og = OG[(s // 4) % 2]
        if s % 4 == 0:
            A(f"ds_read_b128 {vr(OG[(s//4+1)%2],4)}, v{VP} offset:{(R+s+4)*4}")
        if "noload" not in EXP:
            row_load(DAT + 2*s, og + s % 4, pair=True)
        if s % 4 == 3:
            addr_prep((s // 4 + 1) % 2)
        if s % 4 == 3:
            A(f"ds_read_b128 {vr(EV+s-3,4)}, v{VP} offset:{PRIV_N*4 + (R+s-3)*4}")
    def w2_load():
        A(f"s_mov_b32 s{SW2}, 0")
        A(f"s_lshl_b32 s{T0}, s{SWV}, 13")
        A(f"s_add_u32 s{T0}, s{T0}, {hex(WS_W2F)}")
        A(f"s_add_u32 s{T1}, s{T0}, 4096")
        for k in range(8):
            A(f"buffer_load_dwordx4 {vr(W2R+4*k,4)}, v{VL16}, s[{SW}:{SW+3}], s{T0 + k//4} offen offset:{(k%4)*1024}")
    NG = R // 4
    nocomp = "nocomp" in EXP
    L("K2_LOOP")
    for g in range(NG):
        L(f"K2_G{g}")
        A(f"s_and_b32 s{T0}, s{SM}, {hex(0xF << (4*g))}")
        A(f"s_cbranch_scc1 K2_S{4*g}")
        zz = [Z, Z2]
        s0 = 4*g
        for x in part_z1(s0, zz[0]): A(x)
        A(f"s_waitcnt vmcnt({VW})")
        for x in part_z2(s0, zz[0]): A(x)
        refill(s0)
        for k in range(4):
            s = s0 + k
            z, zn = zz[k % 2], zz[(k + 1) % 2]
            ex, nd = part_exp(z), part_nd(z)
            if nocomp: ex = ["s_nop 0"] * 4; nd = ["s_nop 0"] * 6
            if k < 3:
                a, b = part_z1(s + 1, zn), part_z2(s + 1, zn)
                A(ex[0]); A(a[0]); A(ex[1]); A(a[1]); A(ex[2])
                A(f"s_waitcnt vmcnt({VW})")
                A(b[0]); A(ex[3]); A(nd[0]); A(b[1]); A(nd[1]); A(nd[2]); A(b[2]); A(nd[3])
                refill(s + 1)
                A(nd[4]); A(nd[5])
            else:
                for x in ex + nd: A(x)
    L("K2_PEND")
    A(f"v_add_u32 v{VP}, {R*4}, v{VP}")
    A(f"s_lshr_b64 s[{SM}:{SM+1}], s[{SM}:{SM+1}], {R}")
    A(f"s_sub_u32 s{SREM}, s{SREM}, {R}")
    for thr, p in PRIO_T:
        A(f"s_cmp_gt_u32 s{SREM}, {thr}")
        A("s_cbranch_scc1 K2_LOOP")
        if PRIO: A(f"s_setprio {p}")
    A(f"s_cmp_ge_u32 s{SWV}, 8")
    A("s_cbranch_scc1 K2_LOOP")
    A(f"s_cmp_eq_u32 s{SW2}, 0")
    A("s_cbranch_scc1 K2_LOOP")
    w2_load()
    A("s_branch K2_LOOP")
    for s in range(R):
        L(f"K2_S{s}")
        A(f"s_bitcmp1_b32 s{SM}, {s}")
        A(f"s_cbranch_scc1 K2_H{s}")
        for x in part_z1(s, Z): A(x)
        A(f"s_waitcnt vmcnt({VW})")
        for x in part_z2(s, Z) + ([] if nocomp else part_exp(Z) + part_nd(Z)): A(x)
        L(f"K2_J{s}")
        refill(s)
        if s % 4 == 3:
            A(f"s_branch K2_G{s//4+1}" if s + 1 < R else "s_branch K2_PEND")
    def fold():
        for k in range(4):
            A(f"v_rcp_f32 v{T+k}, v{DD+k}")
        A(f"v_pk_fma_f32 {vr(PZ,2)}, {vr(DD,2)}, {vr(NN,2)}, {vr(PZ,2)}")
        A(f"v_pk_fma_f32 {vr(PZ,2)}, {vr(DD+2,2)}, {vr(NN+2,2)}, {vr(PZ,2)}")
        A(f"v_pk_mul_f32 {vr(Z,2)}, {vr(NN,2)}, {vr(T,2)}")
        A(f"v_pk_mul_f32 {vr(Z+2,2)}, {vr(NN+2,2)}, {vr(T+2,2)}")
    def lead_flush():
        A(f"v_add_u32 v{Z2}, s{SSIDE}, v{VL16}")
        A(f"ds_write_b128 v{Z2}, {vr(Z,4)}")
        A(f"s_lshl_b32 s{T0}, s{SWV}, 2")
        A(f"v_mov_b32 v{Z2+1}, s{T0}")
        A(f"v_mov_b32 v{Z2+2}, 1")
        A(f"ds_write_b32 v{Z2+1}, v{Z2+2} offset:{L_SFL}")
        A(f"s_mov_b32 s{SLP}, 0")
    for s in range(R):
        L(f"K2_H{s}")
        A(f"s_cmp_eq_u32 s{SREM}, {s}")
        A("s_cbranch_scc1 K2_LAST")
        A(f"v_and_b32 v{LO}, 0xfc, v{EV+s}")
        A(f"v_mad_u32_u24 v{LO+1}, v{LO}, s{T2}, v{VQ16}")
        A(f"ds_read_b128 {vr(Q,4)}, v{LO+1}")
        fold()
        A(f"s_cmp_lg_u32 s{SLP}, 0")
        A(f"s_cbranch_scc1 K2_LS{s}")
        A(f"v_cvt_pk_bf16_f32 v{Z}, v{Z}, v{Z+1}")
        A(f"v_cvt_pk_bf16_f32 v{Z+1}, v{Z+2}, v{Z+3}")
        A(f"ds_write_b64 v{VA}, {vr(Z,2)}")
        L(f"K2_HC{s}")
        A(f"v_mad_u32_u24 v{VA}, v{LO}, s{T3}, v{VH8}")
        A(f"s_waitcnt vmcnt({VW}) lgkmcnt(0)")
        for x in part_z1(s, Z) + part_z2(s, Z, NN) + part_exp(NN): A(x)
        A(f"v_pk_add_f32 {vr(DD,2)}, {vr(T,2)}, 1.0 op_sel_hi:[1,0]")
        A(f"v_pk_add_f32 {vr(DD+2,2)}, {vr(T+2,2)}, 1.0 op_sel_hi:[1,0]")
        A(f"s_branch K2_J{s}")
        L(f"K2_LS{s}")
        lead_flush()
        A(f"s_branch K2_HC{s}")
    L("K2_LAST")
    A(f"s_lshl_b32 s{T0}, s{SWV}, 2")
    A(f"v_mov_b32 v{LO}, s{T0}")
    A(f"v_add_u32 v{LO+1}, s{SSIDE}, v{VL16}")
    A(f"ds_read_b32 v{Z2}, v{LO} offset:{L_SFL+4}")
    A(f"ds_read_b128 {vr(Q,4)}, v{LO+1} offset:1024")
    fold()
    A(f"s_cmp_eq_u32 s{SLP}, 0")
    A("s_cbranch_scc1 K2_L1")
    A("s_waitcnt lgkmcnt(0)")
    lead_flush()
    A("s_branch K2_WDONE")
    L("K2_L1")
    A(f"s_cmp_eq_u32 s{STAIL}, 0")
    A("s_cbranch_scc1 K2_L3")
    L("K2_L2")
    A("s_waitcnt lgkmcnt(0)")
    A(f"v_readfirstlane_b32 s{T0}, v{Z2}")
    A(f"s_cmp_lg_u32 s{T0}, 0")
    A("s_cbranch_scc1 K2_L2B")
    A("s_sleep 2")
    A(f"ds_read_b32 v{Z2}, v{LO} offset:{L_SFL+4}")
    A(f"ds_read_b128 {vr(Q,4)}, v{LO+1} offset:1024")
    A("s_branch K2_L2")
    L("K2_L2B")
    A(f"v_pk_add_f32 {vr(Z,2)}, {vr(Z,2)}, {vr(Q,2)}")
    A(f"v_pk_add_f32 {vr(Z+2,2)}, {vr(Z+2,2)}, {vr(Q+2,2)}")
    L("K2_L3")
    A(f"v_cvt_pk_bf16_f32 v{Z}, v{Z}, v{Z+1}")
    A(f"v_cvt_pk_bf16_f32 v{Z+1}, v{Z+2}, v{Z+3}")
    A(f"ds_write_b64 v{VA}, {vr(Z,2)}")
    with cold():

        L("K2_SLOW")
        A("s_waitcnt vmcnt(0) lgkmcnt(0)")
        A(f"s_cmp_eq_u32 s{SFIRST}, 0")
        A("s_cbranch_scc1 K2_SL0")
        for k in range(12):
            A(f"v_mov_b32 v{SACC+k}, 0")
        L("K2_SL0")
        for i in range(3):
            A(f"s_add_u32 s{T0}, s{SWV}, {16*i}")
            A(f"v_readlane_b32 s{T1}, v{VB4}, s{T0}")
            A(f"v_readlane_b32 s{T2}, v{VCNT}, s{T0}")
            A(f"s_mul_i32 s{T3}, s{T0}, {QROW}")
            A(f"s_cmp_eq_u32 s{T2}, 0")
            A(f"s_cbranch_scc1 K2_SLN{i}")
            A(f"v_add_u32 v{Z2}, s{T3}, v{VQ16}")
            A(f"ds_read_b128 {vr(Q,4)}, v{Z2}")
            A(f"s_lshl_b32 s{T1}, s{T1}, 1")
            A(f"s_add_u32 s{T1}, s{T1}, {L_LIST}")
            A(f"v_mov_b32 v{VA}, s{T1}")
            L(f"K2_SLL{i}")
            A(f"ds_read_b64 {vr(EV,2)}, v{VA}")
            A(f"v_add_u32 v{VA}, 8, v{VA}")
            A("s_waitcnt lgkmcnt(0)")
            row_load(DAT + 2, EV, pair=False)
            for x in part_z1(1, Z): A(x)
            A("s_waitcnt vmcnt(0)")
            for x in part_z2(1, Z) + part_exp(Z): A(x)
            A("s_nop 0")
            for k in range(4):
                A(f"v_add_f32 v{T+k}, 1.0, v{T+k}")
            for k in range(4):
                A(f"v_rcp_f32 v{T+k}, v{T+k}")
            A(f"s_sub_u32 s{T2}, s{T2}, 4")
            for k in range(4):
                A(f"v_fmac_f32 v{SACC+4*i+k}, v{Z+k}, v{T+k}")
            A(f"s_cmp_lg_u32 s{T2}, 0")
            A(f"s_cbranch_scc1 K2_SLL{i}")
            L(f"K2_SLN{i}")
        A(f"s_mov_b32 s{SFIRST}, 0")
        A(f"s_cmp_lt_u32 s{SPOS}, {CH}")
        A("s_cbranch_scc1 K2_FETCH")
        A(f"s_cmp_eq_u64 s[{SOV}:{SOV+1}], 0")
        A("s_cbranch_scc1 K2_SLFIN")
        A(f"s_ff1_i32_b64 s{SCH}, s[{SOV}:{SOV+1}]")
        A(f"s_bitset0_b64 s[{SOV}:{SOV+1}], s{SCH}")
        A(f"s_mov_b32 s{SPOS}, 0")
        L("K2_FETCH")
        A("s_waitcnt lgkmcnt(0)")
        A("s_barrier")
        A(f"s_mul_i32 s{T0}, s{SCH}, {CH}")
        A(f"s_add_u32 s{T0}, s{T0}, s{SPOS}")
        A(f"s_lshl_b32 s{T1}, s{T0}, 2")
        A(f"s_lshl_b32 s{T2}, s{T0}, 1")
        A("v_lshlrev_b32 v64, 3, v0")
        A("v_lshlrev_b32 v65, 2, v0")
        srd(SX, PDST, E * 4)
        A(f"buffer_load_dwordx2 v[66:67], v64, s[{SX}:{SX+3}], s{T1} offen")
        srd(SX, PSRC, E * 4)
        A(f"buffer_load_dwordx2 v[68:69], v64, s[{SX}:{SX+3}], s{T1} offen")
        srd(SX, PE, E * 2)
        A(f"buffer_load_dword v70, v65, s[{SX}:{SX+3}], s{T2} offen")
        A("v_lshlrev_b32 v71, 1, v0")
        A(f"v_add_u32 v71, s{SPOS}, v71")
        A(f"s_movk_i32 s{T0}, {CH}")
        A(f"v_cmp_gt_u32 s[{MA}:{MA+1}], s{T0}, v71")
        A(f"s_add_u32 s{SPOS}, s{SPOS}, 2048")
        A(f"s_mov_b32 s{T0}, {hex(FBASE)}")
        A("s_waitcnt vmcnt(0)")
        A(f"v_lshl_or_b32 v{RC}, v68, 9, s{T0}")
        A(f"v_lshl_or_b32 v{RC+2}, v69, 9, s{T0}")
        A(f"v_subrev_u32 v66, s{SN40}, v66")
        A(f"v_subrev_u32 v67, s{SN40}, v67")
        A(f"v_cmp_gt_u32 vcc, s{SNB}, v67")
        A(f"s_and_b64 s[{MB}:{MB+1}], s[{MA}:{MA+1}], vcc")
        A(f"v_cmp_gt_u32 vcc, s{SNB}, v66")
        A(f"s_and_b64 s[{MA}:{MA+1}], s[{MA}:{MA+1}], vcc")
        A("v_lshlrev_b32 v66, 2, v66")
        A("v_lshlrev_b32 v67, 2, v67")
        A(f"v_lshl_or_b32 v{RC+1}, v70, 16, v66")
        A("v_and_b32 v70, 0xffff0000, v70")
        A(f"v_or_b32 v{RC+3}, v70, v67")
        A("s_branch K2_ROUND")
        L("K2_SLFIN")
        for i in range(3):
            if i == 2:
                A(f"s_cmp_ge_u32 s{SWV}, {NPB-32}")
                A("s_cbranch_scc1 K2_WDONE")
            A(f"s_add_u32 s{T0}, s{SWV}, {16*i}")
            A(f"s_mul_i32 s{T0}, s{T0}, {HROW}")
            A(f"v_add_u32 v{Z2}, s{T0}, v{VH8}")
            A(f"v_cvt_pk_bf16_f32 v{Z}, v{SACC+4*i}, v{SACC+4*i+1}")
            A(f"v_cvt_pk_bf16_f32 v{Z+1}, v{SACC+4*i+2}, v{SACC+4*i+3}")
            A(f"ds_write_b64 v{Z2}, {vr(Z,2)}")
        A("v_and_b32 v48, 15, v1")
        A("v_lshrrev_b32 v49, 4, v1")
        A("v_lshlrev_b32 v55, 4, v49")
        A(f"s_movk_i32 s{T1}, {HROW}")
        A(f"v_mad_u32_u24 v{AD}, v48, s{T1}, v55")
        A(f"v_add_u32 v{LO+1}, {L_ZROW}, v55")
        A(f"v_lshlrev_b32 v{LO}, 2, v48")
        A(f"s_lshl_b32 s{T0}, s{SWV}, 6")
        A(f"s_add_u32 s{T0}, s{T0}, {hex(WS_CV)}")
        A(f"buffer_load_dwordx4 {vr(B2F,4)}, v55, s[{SW}:{SW+3}], s{T0} offen offset:2048")
        A("s_waitcnt vmcnt(0)")
        tail_prep()
        A("s_branch K2_WDONE")

    L("K2_WDONE")
    stamp(5)
    A(f"v_add_f32 v{T}, v{PZ}, v{PZ+1}")
    A(f"v_mov_b32 v{Z2+1}, 0x207")
    A(f"v_cmp_class_f32 vcc, v{T}, v{Z2+1}")
    A(f"v_mov_b32 v{Z2+2}, 0")
    A(f"s_mov_b32 s{TP}, {hex(C_NLN2)}")
    A("s_branch K2_NOG" if EXP else "s_cbranch_vccz K2_NOG")
    A(f"ds_write_b32 v{Z2+2}, v{Z2+1} offset:{L_FLAG+8}")
    L("K2_NOG")
    A(f"s_cmp_ge_u32 s{SWV}, 8")
    A("s_cbranch_scc1 K2_B4")
    A(f"s_cmp_eq_u32 s{SW2}, 0")
    A("s_cbranch_scc1 K2_B4")
    w2_load()
    L("K2_B4")
    A("s_waitcnt vmcnt(0) lgkmcnt(0)")
    A("s_barrier")
    stamp(6)
    if os.environ.get("DUMP"):
        A(f"s_lshl_b32 s{T0}, s2, 17")
        A(f"s_add_u32 s{T0}, s{T0}, 0x4000000")
        for k in range(6):
            A(f"v_add_u32 v48, {k*16384}, v{VT16}")
            A("ds_read_b128 v[52:55], v48")
            A("s_waitcnt lgkmcnt(0)")
            A(f"buffer_store_dwordx4 v[52:55], v48, s[{SW}:{SW+3}], s{T0} offen")
            A("s_waitcnt vmcnt(0)")
    A(f"ds_read_b32 v{Z2+3}, v{Z2+2} offset:{L_FLAG+8}")
    A(f"s_cmp_ge_u32 s{SWV}, 8")
    A("s_cbranch_scc1 K2_CHK")
    HB = [48 + 4*k for k in range(8)]
    ACC = [12, 16, 20]
    seq = [(mt, s) for mt in range(3) for s in range(8)]
    PRE = 7
    for k in range(PRE):
        mt, s = seq[k]
        A(f"ds_read_b128 {vr(HB[k%8],4)}, v{AD+mt} offset:{s*64}")
    def epi(mt):
        for r in range(4):
            A(f"v_fma_f32 v{OV+4*mt+r}, v{ACC[mt]+r}, s{TP}, v{OV+4*mt+r}")
        A(f"v_cvt_pk_bf16_f32 v{32+2*mt}, v{OV+4*mt}, v{OV+4*mt+1}")
        A(f"v_cvt_pk_bf16_f32 v{33+2*mt}, v{OV+4*mt+2}, v{OV+4*mt+3}")
    for k, (mt, s) in enumerate(seq):
        if k + PRE < 24:
            m2, s2 = seq[k+PRE]
            A(f"ds_read_b128 {vr(HB[(k+PRE)%8],4)}, v{AD+m2} offset:{s2*64}")
        A(f"s_waitcnt lgkmcnt({min(PRE, 23-k)})")
        c = "0" if s == 0 else vr(ACC[mt], 4)
        A(f"v_mfma_f32_16x16x32_bf16 {vr(ACC[mt],4)}, {vr(W2R+4*s,4)}, {vr(HB[k%8],4)}, {c}")
        if s == 4 and mt > 0:
            epi(mt - 1)
    A("s_nop 7")
    epi(2)
    L("K2_CHK")
    A("s_waitcnt lgkmcnt(0)")
    A(f"v_readfirstlane_b32 s{T2}, v{Z2+3}")
    A(f"s_lshl_b32 s{T1}, s{SMODE}, 31")
    A(f"s_or_b32 s{T2}, s{T2}, s{T1}")
    A(f"s_cmp_gt_i32 s{T2}, 0")
    A("s_cbranch_scc1 K2_REDO")
    A(f"s_cmp_ge_u32 s{SWV}, 8")
    A("s_cbranch_scc1 K2_END2")
    A(f"s_add_u32 s{T2}, s{SOUT}, 4096")
    A(f"s_add_u32 s{T1}, s{SOUT}, 8192")
    A(f"buffer_store_dwordx2 v[32:33], v{OUTA}, s[{SO}:{SO+3}], s{SOUT} offen")
    A(f"buffer_store_dwordx2 v[34:35], v{OUTA}, s[{SO}:{SO+3}], s{T2} offen")
    A(f"s_mov_b64 exec, s[{SQM}:{SQM+1}]")
    A(f"buffer_store_dwordx2 v[36:37], v{OUTA}, s[{SO}:{SO+3}], s{T1} offen")
    L("K2_END2")
    stamp(7)
    if STAMP: A("s_waitcnt vmcnt(0)")
    stamp(8)
    if STAMP: A("s_memtime s[96:97]")
    stamp_flush(1, 3, 11)
    L("K2_END")
    A("s_endpgm")
    L("K2_REDO")
    A(f"s_mov_b32 s{SMODE}, 1")
    A("s_setprio 0")
    A("s_branch K2_PASS")
    L("K2_HOT_END")
    out.extend(coldbuf)
    L("K2_CODE_END")

hdr = f"""; Kernarg layout for this problem (88 bytes, ptrs only, base s[0:1]):
; @launch kernel=k1_kernel grid=({K1_GRID+NTW},1,1) block=(512,1,1) lds={K1_LDS}
; @launch kernel=k2_kernel grid=({NB},1,1) block=(1024,1,1) lds={K2_LDS}
.amdgcn_target "amdgcn-amd-amdhsa--gfx950"
"""
gen_k1()
gen_k2()
kernel_desc("k1_kernel", 128, 102 if STAMP else 72)
kernel_desc("k2_kernel", 128, 102 if STAMP else 72)
txt = hdr + "\n".join(o for o in out if o is not None) + "\n"
dst = sys.argv[1] if len(sys.argv) > 1 else f"cdna_kernels/{NAME}.s"
open(dst, "w").write(txt)
print("wrote", dst, "K2_LDS", K2_LDS)
```

```python
import sys, struct, os

NAME = "standalone__edge_featured_mpnn_mpnn__graph"
KN = NAME + "_kernel"
N, E, D, H = 10000, 160000, 128, 256
NB, NPB, CH = 250, 40, 640
WS_REC = 0x500000
WS_OFS = 0x680000
WS_PF = 0x700000
WS_W2F = 0x710000
WS_DBG = 0x2000000
WS_BYTES = 0x10000000
R = 8
PRIO_T = eval(os.environ.get("PRIO_T", "((32, 2), (21, 1), (10, 0))"))
STAMP = os.environ.get("STAMP", "0") == "1"
PI = [1, 3, 0, 2]
FBASE = 0x4B000000
SPIN = 1 << 16
F1 = int(os.environ.get('F1', '4'))
SLP_F = int(os.environ.get('SLPF', '0'))
SLP_N = int(os.environ.get('SLP', '2'))

def f32bits(x): return struct.unpack("<I", struct.pack("<f", x))[0]
C_NLOG2E = f32bits(-1.4426950408889634)
C_NLN2 = f32bits(-0.6931471805599453)

out = []
def A(s): out.append("    " + s)
def L(s): out.append(s + ":")
def CM(s): out.append("    ; " + s)
def vr(a, n): return f"v[{a}:{a+n-1}]"
def sr(a, n): return f"s[{a}:{a+n-1}]"

PX, PE, PSRC, PDST, PW1, PB1, PW2, PB2 = 4, 6, 8, 10, 12, 14, 16, 18
POUT, PDBG, PWS = 20, 22, 24

def srd(dst, base, nrec, off=None):
    if off is not None:
        A(f"s_add_u32 s{dst}, s{base}, {off}")
        A(f"s_addc_u32 s{dst+1}, s{base+1}, 0")
        src1 = dst + 1
    else:
        A(f"s_mov_b32 s{dst}, s{base}")
        src1 = base + 1
    A(f"s_and_b32 s{dst+1}, s{src1}, 0xffff")
    A(f"s_mov_b32 s{dst+2}, {hex(nrec)}")
    A(f"s_mov_b32 s{dst+3}, 0x20000")

NST = 0
def stamp(k):
    if STAMP: A(f"s_memrealtime s[100:101]"); A("s_waitcnt lgkmcnt(0)"); A(f"v_writelane_b32 v{VST}, s100, {k}")

QROW, HROW, PROW = 1040, 528, 272
L_CNT, L_FLAG, L_SFL, L_ZROW, L_GC, L_TOK = 0, 256, 272, 352, 864, 892
L_CV = 896
L_HIST = L_CV + 2560
L_PRIV = L_HIST + 1024
ZERO_B = L_PRIV
PRIV_N = 64 + R + 8
PRIV_B = PRIV_N * 8
L_H = L_PRIV + 16 * PRIV_B
L_XT = L_H + NPB * HROW
L_SIDE = L_XT
L_Q = L_XT + 20480
L_S = L_Q + NPB * QROW
L_SB = L_H + 10240
L_PT = L_Q
LDS = L_S + 65536
L_LIST = L_HIST
assert LDS <= 163840 and L_XT - L_LIST >= 32000 and L_H % 16 == 0 and L_Q % 16 == 0 and L_S % 16 == 0 and L_XT % 16 == 0
W1B_EARLY = 0
W1B_AT = 2
W1B_H = int(os.environ.get("W1BH", "0"))
GWD = int(os.environ.get("GWD", "0"))
PD0 = int(os.environ.get("PD0", "0"))
WIN = 16 * 63
DUMMY = FBASE + 0x7FF000

VLF, VH8, VL16, VT16, VQ16 = 3, 4, 5, 6, 7
W, Q, NN, DD, Z, Z2, T, LO, PZ = 8, 12, 16, 20, 24, 28, 32, 36, 38
VA, VP, VDEG, VB4, VCNT, VPL, VM, VEND = 40, 41, 42, 43, 44, 45, 46, 47
EV, OG, DAT = 48, [56, 60], 64
AD, OUTA, OV, B2F = 80, 83, 84, 92
XF = 48
WL, PT = 96, 112
W2R = 96
RC = 96
VST = 45
SACC = 112

def gen():
    out.extend([".text", f".globl {KN}", ".p2align 8", f".type {KN},@function"])
    L(KN)
    ST, SW, SO, SX, SY, SZ = 28, 32, 36, 40, 44, 48
    MK = [4 + 2*k for k in range(8)]
    SC = 60
    SMODE, SFIRST, SRND, SFAST, STOK, SSP = 62, 63, 64, 65, 66, 67
    SM = 68
    SREM, STOT, SLP, SNN, SWV = 70, 71, 72, 73, 3
    SN40, SEX = 74, 76
    T0, T1, T2, T3, TP = 78, 79, 80, 81, 82
    STAIL, SSIDE, SLEN, SOUT, SWO = 84, 85, 86, 87, 88
    SQM, P0, P1 = 90, 92, 93
    SB8, SW2, SOWN, STAG, SN80, SCB = 75, 89, 52, 54, 55, 56
    C2 = sr(SC, 2)
    SCAN = ("row_shr:2 row_mask:0xf bank_mask:0xf bound_ctrl:0", "row_shr:4 row_mask:0xf bank_mask:0xf bound_ctrl:0",
            "row_shr:8 row_mask:0xf bank_mask:0xf bound_ctrl:0", "row_bcast:15 row_mask:0xa bank_mask:0xf", "row_bcast:31 row_mask:0xc bank_mask:0xf")
    VC, VG = 36, 37
    GRT = 34
    VZ, VONE = VEND, VM

    A("s_load_dwordx16 s[4:19], s[0:1], 0")
    A("s_load_dwordx4 s[20:23], s[0:1], 64")
    A("s_load_dwordx2 s[24:25], s[0:1], 80")
    A("s_memrealtime s[26:27]")
    CM("pull the code towards the L2 right away (one load per 128-B line; lanes past the code are out of range)")
    A(f"s_getpc_b64 {sr(SX,2)}")
    L("K_PC0")
    A("v_lshlrev_b32 v126, 7, v0")
    A(f"s_and_b32 s{SX+1}, s{SX+1}, 0xffff")
    A(f"s_mov_b32 s{SX+2}, K_CODE_END-K_PC0")
    A(f"s_mov_b32 s{SX+3}, 0x20000")
    A(f"buffer_load_dword v{VDEG}, v126, {sr(SX,4)}, 0 offen")
    A(f"s_cmp_ge_u32 s2, {NB}")
    A("s_cbranch_scc1 K_END")
    A("v_and_b32 v1, 63, v0")
    A("v_lshrrev_b32 v48, 6, v0")
    A(f"v_lshlrev_b32 v{VT16}, 4, v0")
    A(f"v_readfirstlane_b32 s{SWV}, v48")
    A("v_lshlrev_b32 v2, 2, v1")
    A(f"v_lshlrev_b32 v{VL16}, 4, v1")
    A(f"v_and_b32 v{VC}, 15, v1")
    A(f"v_lshrrev_b32 v{VG}, 4, v1")
    if STAMP: A(f"v_mov_b32 v{VST}, 0")
    A(f"v_mov_b32 v{VZ}, 0")
    A(f"v_mov_b32 v{VONE}, 1")
    for k in range(4):
        A(f"v_mov_b32 v{8+k}, 0")
    A(f"s_movk_i32 s{T0}, {ZERO_B//16}")
    A(f"v_cmp_gt_u32 vcc, s{T0}, v0")
    A(f"s_mul_i32 s{SN40}, s2, {NPB}")
    A(f"s_lshr_b32 s{SN80}, s2, 1")
    A(f"s_mul_i32 s{SN80}, s{SN80}, 80")
    A(f"s_and_b32 s{SCB}, s2, 1")
    A(f"s_and_saveexec_b64 {sr(SEX,2)}, vcc")
    A("s_cbranch_execz K_Z1")
    A(f"ds_write_b128 v{VT16}, v[8:11]")
    L("K_Z1")
    A(f"s_mov_b64 exec, {sr(SEX,2)}")
    A(f"s_mov_b32 s{P0}, 0x05040100")
    A(f"s_mov_b32 s{P1}, 0x07060302")
    A(f"s_mov_b32 s{SC}, {hex(C_NLOG2E)}")
    A(f"s_mov_b32 s{SC+1}, {hex(C_NLOG2E)}")
    A(f"s_mul_i32 s{SW2}, s{SWV}, {PRIV_B}")
    A(f"s_add_u32 s{SW2}, s{SW2}, {L_PRIV}")
    A(f"v_add_u32 v30, s{SW2}, v2")
    A(f"v_mov_b32 v31, {hex(DUMMY)}")
    A("ds_write_b32 v30, v31")
    A(f"ds_write_b32 v30, v31 offset:{(PRIV_N-64)*4}")
    A(f"s_cmp_lt_u32 s{SWV}, 8")
    A("s_cbranch_scc1 K_AUX")
    def common_setup():
        srd(SW, PWS, WS_BYTES)
        A(f"s_lshl_b32 s{SSIDE}, s{SWV}, 10")
        A(f"s_add_u32 s{SSIDE}, s{SSIDE}, {L_SIDE}")
        A(f"s_mov_b32 s{SMODE}, 0")
        A(f"s_sub_u32 s{ST}, s{PWS}, {hex(FBASE)}")
        A(f"s_subb_u32 s{ST+1}, s{PWS+1}, 0")
        A(f"s_and_b32 s{ST+1}, s{ST+1}, 0xffff")
        A(f"s_mov_b32 s{ST+2}, {hex(FBASE + N*512)}")
        A(f"s_mov_b32 s{ST+3}, 0x20000")
        A(f"s_lshl_b32 s{SB8}, s2, 3")
        A(f"s_add_u32 s{SB8}, s{SB8}, {hex(WS_OFS)}")
        A(f"v_cvt_f32_u32 v{VLF}, v2")
        A(f"v_lshlrev_b32 v{VH8}, 3, v1")
        A(f"v_add_u32 v{VH8}, {L_H}, v{VH8}")
        A(f"v_add_u32 v{VQ16}, {L_Q}, v{VL16}")
        A(f"v_cmp_gt_u32 {sr(SQM,2)}, 8, v{VC}")
        A(f"s_lshl_b32 s{SOUT}, s{SN40}, 8")
        A(f"s_lshl_b32 s{T2}, s{SWV}, 5")
        A(f"s_add_u32 s{SOUT}, s{SOUT}, s{T2}")
        A(f"s_mov_b32 s{SFIRST}, 1")
    uid = [0]
    def arrive(c):
        A("s_mov_b64 exec, 1")
        A(f"ds_add_u32 v{VZ}, v{VONE} offset:{L_GC + 4*c}")
        A("s_mov_b64 exec, -1")
    def await_lds(off, n, vt, sdst, nonzero=False, slp=1):
        uid[0] += 1; u = uid[0]
        A(f"s_mov_b32 s{SSP}, {SPIN*16}")
        L(f"K_AW{u}")
        A(f"ds_read_b32 v{vt}, v{VZ} offset:{off}")
        A("s_waitcnt lgkmcnt(0)")
        A(f"v_readfirstlane_b32 s{sdst}, v{vt}")
        A(f"s_cmp_lg_u32 s{sdst}, 0" if nonzero else f"s_cmp_ge_u32 s{sdst}, {n}")
        A(f"s_cbranch_scc1 K_AWD{u}")
        A(f"s_sub_u32 s{SSP}, s{SSP}, 1")
        A("s_cbranch_scc1 K_END")
        A(f"s_sleep {slp}")
        A(f"s_branch K_AW{u}")
        L(f"K_AWD{u}")
    def perm4(dst, col, src=WL):
        for pr in range(4):
            a, b = src + 8*pr + (col >> 1), src + 8*pr + 4 + (col >> 1)
            A(f"v_perm_b32 v{dst+pr}, v{b}, v{a}, s{P1 if col & 1 else P0}")
    def franks(srdn):
        pass
    VPA, VQA, VB1A, VSW, VWO = 41, 38, 43, 44, 39
    A(f"v_lshlrev_b32 v{VWO}, 12, v{VG}")
    A(f"v_lshl_add_u32 v{VWO}, v{VC}, 4, v{VWO}")
    A(f"s_and_b32 s{T0}, s{SWV}, 3")
    A(f"s_bfe_u32 s{T3}, s{SWV}, 0x10002")
    A(f"s_lshl_b32 s{SWO}, s{T0}, 14")
    A(f"s_lshl_b32 s{T1}, s{T3}, 11")
    A(f"s_add_u32 s{T1}, s{T1}, s{SWO}")
    A(f"s_lshl_b32 s{T2}, s{SCB}, 8")
    A(f"s_add_u32 s{T1}, s{T1}, s{T2}")
    A(f"s_lshl_b32 s{T2}, s{T3}, 8")
    A(f"s_add_u32 s{SWO}, s{SWO}, s{T2}")
    A(f"s_add_u32 s{SWO}, s{SWO}, {128*512}")
    A("s_waitcnt lgkmcnt(0)")
    srd(SY, PW1, 257 * 512)
    A("s_barrier")
    for j in range(4):
        A(f"buffer_load_dwordx4 {vr(64+4*j,4)}, v{VWO}, {sr(SY,4)}, s{T1} offen offset:{512*j}")
    if W1B_EARLY:
        for j in range(8):
            A(f"buffer_load_dwordx4 {vr(WL+4*j,4)}, v{VWO}, {sr(SY,4)}, s{SWO} offen offset:{512*j}")
    common_setup()
    A(f"s_lshl_b32 s{T0}, s{T0}, 10")
    A(f"s_add_u32 s{T0}, s{T0}, {L_S}")
    A(f"s_lshl_b32 s{T1}, s{T3}, 3")
    A(f"s_add_u32 s{T1}, s{T1}, s{T0}")
    A(f"v_add_u32 v12, s{T1}, v{VL16}")
    A(f"s_lshl_b32 s{T1}, s{T3}, 15")
    A(f"s_add_u32 s{T1}, s{T1}, s{T0}")
    A(f"v_add_u32 v{VSW}, s{T1}, v{VL16}")
    XA = 8
    A(f"v_xor_b32 v13, v{VG}, v{VC}")
    A("v_lshlrev_b32 v13, 4, v13")
    A(f"v_lshl_add_u32 v13, v{VC}, 8, v13")
    for s_ in range(4):
        A(f"v_xor_b32 v{XA+s_}, {64*s_}, v13")
    A(f"s_sub_u32 s{T0}, s{SWV}, 8")
    A(f"s_lshl_b32 s{T1}, s{T0}, 12")
    A(f"s_add_u32 s{T1}, s{T1}, {L_S}")
    A(f"v_add_u32 v{VA}, s{T1}, v{VL16}")
    A(f"s_lshr_b32 s{T1}, s{T0}, 2")
    A(f"s_lshl_b32 s{T1}, s{T1}, 4")
    A(f"s_and_b32 s{T2}, s{T0}, 3")
    A(f"s_add_u32 s{T1}, s{T1}, s{T2}")
    A(f"v_lshl_add_u32 v13, v{VG}, 2, s{T1}")
    A(f"s_movk_i32 s{T1}, {PROW}")
    A(f"v_lshlrev_b32 v{VPA}, 2, v13")
    A(f"v_mad_u32_u24 v{VPA}, v{VC}, s{T1}, v{VPA}")
    A(f"v_add_u32 v{VPA}, {L_PT}, v{VPA}")
    A(f"s_mov_b32 s{T2}, 0x8000")
    A(f"s_waitcnt vmcnt({8 if W1B_EARLY else 0})")
    stamp(1)
    for pr in range(2):
        for dw in range(4):
            a_, b_ = 64 + 8*pr + dw, 64 + 8*pr + 4 + dw
            A(f"v_perm_b32 v{48+(2*dw)*2+pr}, v{b_}, v{a_}, s{P0}")
            A(f"v_perm_b32 v{48+(2*dw+1)*2+pr}, v{b_}, v{a_}, s{P1}")
    for col in range(8):
        A(f"ds_write_b64 v12, {vr(48+2*col,2)} offset:{col*4096}")
    def w1b_loads():
        for j in range(8):
            A(f"buffer_load_dwordx4 {vr(WL+4*j,4)}, v{VWO}, {sr(SY,4)}, s{SWO} offen offset:{512*j}")
    if W1B_AT == 0: w1b_loads()
    A("s_waitcnt lgkmcnt(0)")
    arrive(0)
    await_lds(L_GC, 13, 12, T0)
    stamp(3)
    if W1B_H:
        A(f"s_cmp_ge_u32 s{SWV}, 12")
        A("s_cbranch_scc1 K_NOH1")
        w1b_loads()
        L("K_NOH1")
    AF, XR = 48, [64 + 4*k for k in range(8)]
    ACP = lambda mt: 16 + 4*mt
    for s_ in range(4):
        A(f"ds_read_b128 {vr(AF+4*s_,4)}, v{VA} offset:{s_*1024}")
    seq = [(mt, s_) for mt in range(5) for s_ in range(4)]
    PRE = 7
    def rdx(k):
        mt, s_ = seq[k]
        A(f"ds_read_b128 {vr(XR[k%8],4)}, v{XA+s_} offset:{L_XT + 4096*mt}")
    for k in range(PRE): rdx(k)
    def pack(mt):
        f = [ACP(mt) + r for r in range(4)]
        o = []
        o += [f"v_add_f32 v{f[r]}, 0, v{f[r]}" for r in range(4)]
        o += [f"v_add_u32 v{f[r]}, s{T2}, v{f[r]}" for r in range(4)]
        o += [f"v_sub_u32_sdwa v{f[r]}, v{f[r]}, v{f[r-1]} clamp dst_sel:DWORD dst_unused:UNUSED_PAD src0_sel:DWORD src1_sel:WORD_1" for r in range(1, 4)]
        o += [f"v_perm_b32 v{f[0]}, v{f[1]}, v{f[0]}, s{P1}", f"v_perm_b32 v{f[2]}, v{f[3]}, v{f[2]}, s{P1}"]
        return o
    pend = []
    for k, (mt, s_) in enumerate(seq):
        if k + PRE < 20: rdx(k + PRE)
        A(f"s_waitcnt lgkmcnt({min(PRE, 19-k)})")
        c = "0" if s_ == 0 else vr(ACP(mt), 4)
        A(f"v_mfma_f32_16x16x32_bf16 {vr(ACP(mt),4)}, {vr(AF+4*s_,4)}, {vr(XR[k%8],4)}, {c}")
        if s_ == 3 and mt >= 1: pend += pack(mt - 1)
        for x in pend[:4]: A(x)
        pend = pend[4:]
    for x in pend: A(x)
    A("s_nop 1")
    for x in pack(4): A(x)
    for mt in range(5):
        A(f"ds_write_b32 v{VPA}, v{ACP(mt)} offset:{16*mt*PROW}")
        A(f"ds_write_b32 v{VPA}, v{ACP(mt)+2} offset:{16*mt*PROW + 128}")
    A("v_bfe_u32 v12, v0, 4, 4")
    A(f"s_movk_i32 s{T1}, {PROW}")
    A(f"v_lshlrev_b32 v13, 4, v{VC}")
    A(f"v_mad_u32_u24 v14, v12, s{T1}, v13")
    A(f"v_add_u32 v14, {L_PT}, v14")
    A("v_and_b32 v15, 0x70, v13")
    A("v_lshl_add_u32 v15, v12, 9, v15")
    A("v_and_b32 v13, 0x80, v13")
    A("v_lshl_add_u32 v15, v13, 1, v15")
    A(f"s_lshl_b32 s{T0}, s{SN80}, 9")
    A(f"s_lshl_b32 s{T1}, s{SCB}, 7")
    A(f"s_add_u32 s{T0}, s{T0}, s{T1}")
    A("s_waitcnt lgkmcnt(0)")
    arrive(1)
    await_lds(L_GC + 4, 9, 12, T3)
    stamp(4)
    A(f"s_cmp_lt_u32 s{SWV}, 12")
    A("s_cbranch_scc1 K_GW")
    for k in range(5):
        A(f"ds_read_b128 {vr(48+4*k,4)}, v14 offset:{16*k*PROW}")
    for k in range(5):
        A(f"s_waitcnt lgkmcnt({4-k})")
        A(f"buffer_store_dwordx4 {vr(48+4*k,4)}, v15, {sr(SW,4)}, s{T0} offen sc1")
        A(f"s_add_u32 s{T0}, s{T0}, 8192")
    arrive(2)
    await_lds(L_TOK, 0, 14, STOK, nonzero=True)
    A("s_waitcnt vmcnt(0)")
    A("s_mov_b64 exec, 1")
    A(f"ds_add_rtn_u32 v15, v{VZ}, v{VONE} offset:{L_GC+12}")
    A(f"s_lshl_b32 s{T0}, s2, 4")
    A(f"s_add_u32 s{T0}, s{T0}, {hex(WS_PF)}")
    A("s_waitcnt lgkmcnt(0)")
    A(f"v_readfirstlane_b32 s{T1}, v15")
    A(f"s_cmp_lg_u32 s{T1}, 3")
    A("s_cbranch_scc1 K_NOPF")
    A(f"buffer_store_dword v14, v{VZ}, {sr(SW,4)}, s{T0} offen sc1")
    L("K_NOPF")
    A("s_mov_b64 exec, -1")
    stamp(2)
    A("s_branch K_GQ")
    L("K_GW")
    if GWD == 99: await_lds(L_GC + 12, 4, 12, T3, slp=2)
    elif GWD: A(f"s_sleep {GWD}")
    if not W1B_H:
        w1b_loads()
    A(f"s_add_u32 s{T0}, s{SWO}, 256")
    for j in range(8):
        A(f"buffer_load_dwordx4 {vr(64+4*j,4)}, v{VWO}, {sr(SY,4)}, s{T0} offen offset:{512*j}")
    A("s_waitcnt vmcnt(8)")
    for col in range(8):
        d = 16 + 4 * (col % 5)
        perm4(d, col)
        A(f"ds_write_b128 v{VSW}, {vr(d,4)} offset:{col*4096}")
    A("s_waitcnt vmcnt(0)")
    for col in range(8):
        d = 16 + 4 * ((col + 3) % 5)
        perm4(d, col, 64)
        A(f"ds_write_b128 v{VSW}, {vr(d,4)} offset:{32768 + col*4096}")
    A("s_waitcnt lgkmcnt(0)")
    arrive(2)
    await_lds(L_TOK, 0, 14, STOK, nonzero=True)
    L("K_GQ")
    A(f"s_sub_u32 s{T0}, s{SWV}, 8")
    A(f"s_lshl_b32 s{T1}, s{T0}, 13")
    A(f"s_add_u32 s{T1}, s{T1}, {L_S}")
    A(f"v_add_u32 v{VA}, s{T1}, v{VL16}")
    A(f"s_lshr_b32 s{T1}, s{T0}, 1")
    A(f"s_lshl_b32 s{T1}, s{T1}, 4")
    A(f"s_and_b32 s{T0}, s{T0}, 1")
    A(f"s_lshl_b32 s{T0}, s{T0}, 1")
    A(f"s_add_u32 s{T0}, s{T0}, s{T1}")
    A(f"v_lshl_add_u32 v12, v{VG}, 2, s{T0}")
    A(f"v_lshlrev_b32 v{VB1A}, 4, v12")
    A(f"s_movk_i32 s{T1}, {QROW}")
    A(f"v_mad_u32_u24 v{VPA}, v{VC}, s{T1}, v{VB1A}")
    A(f"v_add_u32 v{VPA}, {L_Q}, v{VPA}")
    A(f"s_mul_i32 s{T0}, s{SCB}, 40")
    A(f"v_add_u32 v12, s{T0}, v{VC}")
    A(f"v_xor_b32 v13, v{VG}, v12")
    A("v_and_b32 v13, 15, v13")
    A("v_lshlrev_b32 v13, 4, v13")
    A("v_lshl_add_u32 v13, v12, 8, v13")
    for s_ in range(4):
        A(f"v_xor_b32 v{XA+s_}, {64*s_}, v13")
    stamp(5)
    for s_ in range(4):
        for mt in range(3):
            A(f"ds_read_b128 {vr(XF+(mt*4+s_)*4,4)}, v{XA+s_} offset:{L_XT + 4096*mt}")
    await_lds(L_GC + 8, 12, 12, T0)
    AC = lambda t, mt: 16 + (t*3 + mt) * 4
    A(f"ds_read_b128 v[8:11], v{VB1A} offset:{L_CV+1024}")
    A(f"ds_read_b128 v[12:15], v{VB1A} offset:{L_CV+1024+16}")
    for k in range(8):
        A(f"ds_read_b128 {vr(WL+4*k,4)}, v{VA} offset:{((k&1)*4 + (k>>1))*1024}")
    for k in range(8):
        s_, t = k >> 1, k & 1
        A(f"s_waitcnt lgkmcnt({7-k})")
        for mt in range(3):
            c = vr(8 + 4*t, 4) if s_ == 0 else vr(AC(t, mt), 4)
            A(f"v_mfma_f32_16x16x32_bf16 {vr(AC(t,mt),4)}, {vr(WL+4*k,4)}, {vr(XF+(mt*4+s_)*4,4)}, {c}")
    A(f"s_mov_b32 s{T1}, {hex(WS_PF - 8192)}")
    A(f"s_cmp_lt_u32 s{SWV}, 12")
    A(f"s_cselect_b32 s{SRND}, s{T1}, 0x7ff00000")
    A(f"buffer_load_dword v{VA}, v{VT16}, {sr(SW,4)}, s{SRND} offen sc1")
    for k in range(8):
        A(f"s_mov_b64 {sr(MK[k],2)}, 0")
    for mt in range(3):
        for t in range(2):
            d = 48 + (mt*2 + t) * 4
            for i in range(4):
                A(f"v_mul_f32 v{d+i}, s{SC}, v{AC(t,mt)+PI[i]}")
            if mt == 2:
                A(f"s_mov_b64 exec, {sr(SQM,2)}")
            A(f"ds_write_b128 v{VPA}, {vr(d,4)} offset:{16*mt*QROW + 16*t}")
            if mt == 2:
                A("s_mov_b64 exec, -1")
    stamp(6)
    A(f"v_and_b32 v{VC}, 15, v1")
    A(f"v_lshrrev_b32 v{VG}, 4, v1")
    A(f"v_mov_b32 v{PZ}, 0")
    A(f"v_mov_b32 v{PZ+1}, 0")
    A(f"v_mov_b32 v{VP}, s{SW2}")
    A(f"v_mov_b32 v{VDEG}, 0")
    A(f"v_mov_b32 v{OUTA}, 0")
    A(f"s_cmp_ge_u32 s{SWV}, 12")
    A("s_cbranch_scc1 K_B3")
    A(f"s_movk_i32 s{T0}, {512 + NB}")
    A(f"v_cmp_gt_u32 {sr(TP,2)}, s{T0}, v0")
    A(f"s_mov_b32 s{SSP}, {SPIN}")
    L("K_PFL")
    A("s_waitcnt vmcnt(0)")
    A(f"v_cmp_ne_u32 vcc, s{STOK}, v{VA}")
    A(f"s_and_b64 vcc, vcc, {sr(TP,2)}")
    A("s_cbranch_scc0 K_B3")
    A(f"s_sub_u32 s{SSP}, s{SSP}, 1")
    A("s_cbranch_scc1 K_B3")
    A("s_mov_b64 exec, vcc")
    if SLP_F: A(f"s_sleep {SLP_F}")
    A(f"buffer_load_dword v{VA}, v{VT16}, {sr(SW,4)}, s{SRND} offen sc1")
    A("s_mov_b64 exec, -1")
    A("s_branch K_PFL")

    L("K_AUX")
    A(f"s_cmp_lg_u32 s{SWV}, 0")
    A("s_cbranch_scc1 K_AUX1")
    ED, ES, EE, RKB, BN4, RCB = 48, 58, 68, 74, 84, 96
    A("v_lshlrev_b32 v12, 3, v1")
    A(f"s_mul_i32 s{T0}, s2, {CH*4}")
    A(f"s_mul_i32 s{T1}, s2, {CH*2}")
    A("s_waitcnt lgkmcnt(0)")
    srd(SX, PDST, CH * 4, f"s{T0}")
    for k in range(5):
        A(f"buffer_load_dwordx2 {vr(ED+2*k,2)}, v12, {sr(SX,4)}, 0 offen offset:{512*k}")
    srd(SY, PSRC, CH * 4, f"s{T0}")
    for k in range(5):
        A(f"buffer_load_dwordx2 {vr(ES+2*k,2)}, v12, {sr(SY,4)}, 0 offen offset:{512*k}")
    srd(SZ, PE, CH * 2, f"s{T1}")
    for k in range(5):
        A(f"buffer_load_dword v{EE+k}, v2, {sr(SZ,4)}, 0 offen offset:{256*k}")
    A("s_barrier")
    A("s_setprio 3")
    common_setup()
    srd(SO, PDBG, 256)
    A(f"s_movk_i32 s{T1}, {-NPB}")
    for j in range(10):
        if j % 2 == 0:
            A(f"s_waitcnt vmcnt({14 - j//2})")
            if j == 0:
                A(f"buffer_load_dword v33, v{VZ}, {sr(SO,4)}, 0 offen sc1")
        A(f"v_mul_u32_u24 v14, 0xcccd, v{ED+j}")
        A("v_lshrrev_b32 v14, 21, v14")
        A(f"v_lshlrev_b32 v{BN4+j}, 2, v14")
        A(f"ds_add_rtn_u32 v{RKB+j}, v{BN4+j}, v{VONE} offset:{L_HIST}")
        A(f"v_mad_i32_i24 v{ED+j}, v14, s{T1}, v{ED+j}")
    HC_, HB_ = 16, 20
    A(f"ds_read_b128 {vr(HC_,4)}, v{VL16} offset:{L_HIST}")
    A("s_waitcnt vmcnt(1)")
    stamp(1)
    for j in range(10):
        if j % 2 == 0:
            A(f"v_lshlrev_b32 v14, 16, v{EE+j//2}")
        else:
            A(f"v_and_b32 v14, 0xffff0000, v{EE+j//2}")
        A(f"v_lshl_or_b32 v{RCB+2*j+1}, v{ED+j}, 2, v14")
    A("s_waitcnt lgkmcnt(0)")
    A(f"v_add_u32 v{HB_+2}, v{HC_}, v{HC_+1}")
    A(f"v_add_u32 v{HB_+3}, v{HB_+2}, v{HC_+2}")
    A(f"v_add_u32 v15, v{HB_+3}, v{HC_+3}")
    A("s_nop 1")
    A(f"v_add_u32_dpp v{HB_}, v15, v15 row_shr:1 row_mask:0xf bank_mask:0xf bound_ctrl:0")
    for ctl in SCAN:
        A("s_nop 1")
        A(f"v_add_u32_dpp v{HB_}, v{HB_}, v{HB_} {ctl}")
    A(f"v_sub_u32 v{HB_}, v{HB_}, v15")
    A(f"v_add_u32 v{HB_+1}, v{HB_}, v{HC_}")
    A(f"v_add_u32 v{HB_+2}, v{HB_}, v{HB_+2}")
    A(f"v_add_u32 v{HB_+3}, v{HB_}, v{HB_+3}")
    A(f"ds_write_b128 v{VL16}, {vr(HB_,4)} offset:{L_HIST}")
    for j in range(10):
        A(f"ds_read_b32 v{ED+j}, v{BN4+j} offset:{L_HIST}")
    for k in range(4):
        A(f"v_lshl_or_b32 v{25+2*k}, v{HC_+k}, 16, v{HB_+k}")
    A(f"v_lshlrev_b32 v32, 1, v{VL16}")
    A(f"s_mov_b32 s{SSP}, {SPIN}")
    A("s_waitcnt vmcnt(0)")
    L("K_TOK")
    A(f"v_readfirstlane_b32 s{STOK}, v33")
    A(f"s_cmp_lg_u32 s{STOK}, 0")
    A("s_cbranch_scc1 K_TOKOK")
    A(f"s_sub_u32 s{SSP}, s{SSP}, 1")
    A("s_cbranch_scc1 K_END")
    A(f"buffer_load_dword v33, v{VZ}, {sr(SO,4)}, 0 offen sc1")
    A("s_waitcnt vmcnt(0)")
    A("s_branch K_TOK")
    L("K_TOKOK")
    A(f"s_lshl_b32 s{T0}, s{STOK}, 13")
    A(f"s_and_b32 s{T0}, s{T0}, 0xffffc000")
    A(f"s_lshl_b32 s{T3}, s2, 11")
    A(f"s_add_u32 s{T3}, s{T3}, {hex(WS_OFS)}")
    for k in range(4):
        A(f"v_mov_b32 v{24+2*k}, s{STOK}")
    A(f"buffer_store_dwordx4 v[24:27], v32, {sr(SW,4)}, s{T3} offen sc1")
    A(f"buffer_store_dwordx4 v[28:31], v32, {sr(SW,4)}, s{T3} offen offset:16 sc1")
    A("s_waitcnt lgkmcnt(0)")
    for j in range(10):
        A(f"v_or_b32 v{RCB+2*j}, s{T0}, v{ES+j}")
        A(f"v_add_lshl_u32 v{ED+j}, v{ED+j}, v{RKB+j}, 3")
        A(f"ds_write_b64 v{ED+j}, {vr(RCB+2*j,2)} offset:{L_SB}")
    for k in range(5):
        A(f"ds_read_b128 {vr(60+4*k,4)}, v{VL16} offset:{L_SB + 1024*k}")
    A(f"s_mul_i32 s{T0}, s2, {CH*8}")
    A(f"s_add_u32 s{T0}, s{T0}, {hex(WS_REC)}")
    A(f"s_add_u32 s{T1}, s{T0}, 4096")
    for k in range(5):
        A(f"s_waitcnt lgkmcnt({4-k})")
        A(f"buffer_store_dwordx4 {vr(60+4*k,4)}, v{VL16}, {sr(SW,4)}, s{T0 + k//4} offen offset:{1024*(k%4)} sc1")
    A(f"ds_write_b32 v{VZ}, v33 offset:{L_TOK}")
    A("s_setprio 0")
    stamp(2)
    A("s_branch K_AUXP")
    L("K_AUX1")
    for k in range(4):
        A(f"v_xor_b32 v{51+k}, v{VG}, v{VC}")
        if k: A(f"v_xor_b32 v{51+k}, {4*k}, v{51+k}")
        A(f"v_lshlrev_b32 v{51+k}, 4, v{51+k}")
        A(f"v_lshl_add_u32 v{51+k}, v{VG}, 8, v{51+k}")
    A(f"s_sub_u32 s{T0}, s{SWV}, 1")
    A(f"s_lshl_b32 s{T0}, s{T0}, 12")
    A(f"s_lshl_b32 s{T2}, s{SN80}, 8")
    A(f"s_add_u32 s{T2}, s{T2}, s{T0}")
    A(f"s_add_u32 s{T0}, s{T0}, {L_XT}")
    A(f"s_mov_b32 m0, s{T0}")
    A("s_waitcnt lgkmcnt(0)")
    A(f"s_cmp_ge_u32 s{SWV}, 6")
    A("s_cbranch_scc1 K_NOX")
    srd(SX, PX, N * 256)
    for k in range(4):
        A(f"buffer_load_dwordx4 v{51+k}, {sr(SX,4)}, s{T2} offen offset:{1024*k} lds")
    L("K_NOX")
    A(f"s_xor_b32 s{T0}, s{SWV}, 7")
    A(f"s_or_b32 s{T0}, s{T0}, s2")
    A("s_cbranch_scc1 K_NOTOK")
    srd(SO, PDBG, 256)
    A("s_or_b32 s26, s26, 1")
    A("v_mov_b32 v59, s26")
    A(f"buffer_store_dword v59, v2, {sr(SO,4)}, 0 offen sc1")
    L("K_NOTOK")
    A("s_barrier")
    common_setup()
    A(f"s_cmp_lt_u32 s{SWV}, 4")
    A("s_cbranch_scc1 K_NOCV")
    A("v_and_b32 v63, 3, v0")
    A("v_lshlrev_b32 v63, 2, v63")
    A("v_mov_b32 v64, 0x2031")
    A("v_bfe_u32 v65, v64, v63, 4")
    A("v_bfe_u32 v64, v0, 2, 2")
    A(f"v_lshl_add_u32 v64, v{VG}, 5, v64")
    A("v_bfe_u32 v66, v0, 6, 1")
    A("v_lshl_add_u32 v64, v66, 2, v64")
    A("v_bfe_u32 v66, v0, 7, 1")
    A("v_lshl_add_u32 v64, v66, 7, v64")
    A("v_lshl_add_u32 v65, v65, 3, v64")
    A("v_lshl_add_u32 v64, v63, 1, v64")
    A("v_lshlrev_b32 v65, 1, v65")
    A("v_lshlrev_b32 v64, 1, v64")
    A("v_and_b32 v66, 0xff, v0")
    A("v_lshlrev_b32 v67, 1, v66")
    A("v_lshlrev_b32 v66, 2, v66")
    srd(SY, PW1, 257 * 512)
    A(f"s_mov_b32 s{T0}, {256*512}")
    A(f"buffer_load_ushort v20, v65, {sr(SY,4)}, s{T0} offen")
    srd(SX, PB1, 512)
    A(f"buffer_load_ushort v21, v64, {sr(SX,4)}, 0 offen")
    srd(SX, PB2, 256)
    A(f"buffer_load_ushort v22, v67, {sr(SX,4)}, 0 offen")
    A(f"s_cmp_ge_u32 s{SWV}, 6")
    A("s_cbranch_scc1 K_CV1")
    A("s_waitcnt vmcnt(3)")
    arrive(0)
    L("K_CV1")
    A(f"s_cmp_lg_u32 s{SWV}, 7")
    A("s_cbranch_scc1 K_CV1B")
    A("s_cmp_ge_u32 s2, 64")
    A("s_cbranch_scc1 K_CV1B")
    A(f"s_bfe_u32 s{T0}, s2, 0x10002")
    A(f"s_lshl_b32 s{T0}, s{T0}, 15")
    A(f"s_and_b32 s{T1}, s2, 1")
    A(f"s_lshl_b32 s{T1}, s{T1}, 14")
    A(f"s_add_u32 s{T0}, s{T0}, s{T1}")
    A(f"s_bfe_u32 s{T1}, s2, 0x10001")
    A(f"s_lshl_b32 s{T1}, s{T1}, 10")
    A(f"s_add_u32 s{T0}, s{T0}, s{T1}")
    A(f"s_lshr_b32 s{T1}, s2, 3")
    A(f"s_lshl_b32 s{T1}, s{T1}, 5")
    A(f"s_add_u32 s{T0}, s{T0}, s{T1}")
    A(f"s_add_u32 s{T1}, s{T0}, 4096")
    A(f"v_lshrrev_b32 v24, 1, v{VG}")
    A("v_lshlrev_b32 v24, 13, v24")
    A(f"v_and_b32 v25, 1, v{VG}")
    A("v_lshl_add_u32 v24, v25, 9, v24")
    A(f"v_lshl_add_u32 v24, v{VC}, 1, v24")
    srd(SX, PW2, 256 * 256)
    for jj in range(8):
        p = PI[jj & 3]
        A(f"buffer_load_ushort v{72+jj}, v24, {sr(SX,4)}, s{T0 if p < 2 else T1} offen offset:{(p&1)*2048 + (jj>>2)*256}")
    A(f"s_lshl_b32 s{T0}, s2, 10")
    A(f"s_add_u32 s{T0}, s{T0}, {hex(WS_W2F)}")
    A("s_waitcnt vmcnt(0)")
    for k in range(4):
        A(f"v_lshl_or_b32 v{80+k}, v{73+2*k}, 16, v{72+2*k}")
    A(f"buffer_store_dwordx4 v[80:83], v{VL16}, {sr(SW,4)}, s{T0} offen sc1")
    L("K_CV1B")
    A("s_waitcnt vmcnt(0)")
    for k in range(3):
        A(f"v_lshlrev_b32 v{20+k}, 16, v{20+k}")
    A(f"v_mul_f32 v20, s{SC}, v20")
    A(f"ds_write_b32 v66, v21 offset:{L_CV+1024}")
    A(f"ds_write_b32 v66, v20 offset:{L_CV}")
    A(f"s_cmp_ge_u32 s{SWV}, 6")
    A("s_cbranch_scc1 K_CV2")
    A(f"ds_write_b32 v66, v22 offset:{L_CV+2048}")
    L("K_CV2")
    A("s_waitcnt lgkmcnt(0)")
    arrive(2)
    A(f"s_cmp_lg_u32 s{SWV}, 7")
    A("s_cbranch_scc1 K_AUXT")
    arrive(1)
    A("s_branch K_AUXT")
    L("K_NOCV")
    A("s_waitcnt vmcnt(0)")
    arrive(0)
    L("K_AUXT")
    L("K_AUXP")
    A("v_lshrrev_b32 v31, 1, v0")
    A("v_lshlrev_b32 v31, 11, v31")
    A(f"s_movk_i32 s{T3}, {2*NB}")
    A(f"v_cmp_gt_u32 {sr(SOWN,2)}, s{T3}, v0")
    A(f"v_cvt_f32_u32 v30, v1")
    A(f"v_rcp_f32 v30, v30")
    A(f"v_mov_b32 v{VP}, s{SW2}")
    A(f"v_mul_f32 v30, 0x47800000, v30")
    A(f"v_cvt_u32_f32 v30, v30")
    A(f"v_add_u32 v30, 1, v30")
    await_lds(L_TOK, 0, 33, STOK, nonzero=True, slp=4)
    A(f"s_bfe_u32 s{STAG}, s{STOK}, 0x120001")
    if PD0: A(f"s_sleep {PD0}")
    L("K_REC0")
    A(f"s_mov_b32 s{SSP}, {SPIN}")
    A(f"s_mov_b64 vcc, {sr(SOWN,2)}")
    L("K_OFS")
    A("s_mov_b64 exec, vcc")
    A(f"buffer_load_dwordx2 {vr(GRT,2)}, v31, {sr(SW,4)}, s{SB8} offen sc1")
    A("s_mov_b64 exec, -1")
    L("K_OFS1")
    A("s_waitcnt vmcnt(0)")
    A(f"v_cmp_ne_u32 vcc, s{STOK}, v{GRT}")
    A(f"s_and_b64 vcc, vcc, {sr(SOWN,2)}")
    A("s_cbranch_scc0 K_OFSOK")
    A(f"s_sub_u32 s{SSP}, s{SSP}, 1")
    A("s_cbranch_scc1 K_END")
    A(f"s_sleep {SLP_N}")
    A("s_branch K_OFS")
    L("K_OFSOK")
    stamp(5)
    A(f"v_lshrrev_b32 v{GRT}, 16, v{GRT+1}")
    A(f"v_and_b32 v{GRT+1}, 0xffff, v{GRT+1}")
    A(f"v_cndmask_b32 v{GRT}, 0, v{GRT}, {sr(SOWN,2)}")
    A("v_lshrrev_b32 v32, 1, v0")
    A(f"s_movk_i32 s{T0}, {CH}")
    A(f"v_mad_u32_u24 v{GRT+1}, v32, s{T0}, v{GRT+1}")
    A("v_and_b32 v32, 1, v0")
    A("v_lshlrev_b32 v32, 1, v32")
    A(f"v_add_lshl_u32 v{PZ+1}, v{GRT+1}, v32, 3")
    A(f"v_sub_i32 v{PZ}, v{GRT}, v32")
    A(f"v_mov_b32 v{VDEG}, 0")
    A(f"v_mov_b32 v{OUTA}, 0")
    L("K_RECS")
    A(f"s_mov_b32 s{T0}, {hex(WS_REC)}")
    for k in range(8):
        A(f"v_cmp_lt_i32 {sr(MK[k],2)}, {4*(k>>1) + (k&1)}, v{PZ}")
    A(f"v_cmp_lt_i32 vcc, 16, v{PZ}")
    A("v_mov_b32 v88, 4")
    A("v_mov_b32 v89, 0")
    A("v_mov_b32 v90, 1")
    A("s_cbranch_vccz K_RM")
    A(f"ds_write_b32 v89, v90 offset:{L_FLAG}")
    L("K_RM")
    A(f"s_mov_b32 s{SSP}, {SPIN}")
    L("K_RLD")
    for k in range(4):
        A(f"s_mov_b64 exec, {sr(MK[2*k],2)}")
        A("s_cbranch_execz K_RL")
        A(f"buffer_load_dwordx4 {vr(RC+4*k,4)}, v{PZ+1}, {sr(SW,4)}, s{T0} offen offset:{32*k} sc1")
    L("K_RL")
    A("s_mov_b64 exec, -1")
    L("K_NOU")
    A(f"s_mov_b64 {sr(TP,2)}, 0")
    A("s_waitcnt vmcnt(0)")
    for k in range(8):
        A(f"s_mov_b64 exec, {sr(MK[k],2)}")
        A("s_cbranch_execz K_RV")
        A(f"v_lshrrev_b32 v91, 14, v{RC+2*k}")
        A(f"v_cmp_ne_u32 vcc, s{STAG}, v91")
        A(f"s_or_b64 {sr(TP,2)}, {sr(TP,2)}, vcc")
    L("K_RV")
    A("s_mov_b64 exec, -1")
    A(f"s_cmp_eq_u64 {sr(TP,2)}, 0")
    A("s_cbranch_scc1 K_RVOK")
    A(f"s_sub_u32 s{SSP}, s{SSP}, 1")
    A("s_cbranch_scc1 K_END")
    A(f"s_sleep {SLP_N}")
    A("s_branch K_RLD")
    L("K_RVOK")
    stamp(6)
    NL, RK, PS = 64, 72, 80
    A(f"s_mov_b32 s{T1}, {hex(FBASE)}")
    for k in range(8):
        A(f"s_mov_b64 exec, {sr(MK[k],2)}")
        A("s_cbranch_execz K_R1")
        A(f"v_and_b32 v{NL+k}, 0xfc, v{RC+2*k+1}")
        A(f"ds_add_rtn_u32 v{RK+k}, v{NL+k}, v88")
        A(f"v_and_b32 v{RC+2*k}, 0x3fff, v{RC+2*k}")
        A(f"v_lshl_or_b32 v{RC+2*k}, v{RC+2*k}, 9, s{T1}")
    L("K_R1")
    A("s_mov_b64 exec, 1")
    A("s_waitcnt lgkmcnt(0)")
    A(f"ds_add_u32 v89, v90 offset:{L_GC+16}")
    A("s_mov_b64 exec, -1")
    A(f"v_mov_b32 v{VZ}, 0")
    await_lds(L_GC + 16, 8, 91, T0)
    stamp(7)
    def scan_and_decide(tag, with_perm):
        A(f"ds_read_b32 v{VCNT}, v2")
        A(f"ds_read_b32 v91, v89 offset:{L_FLAG}")
        A("s_waitcnt lgkmcnt(1)")
        A(f"v_add_u32_dpp v{VEND}, v{VCNT}, v{VCNT} row_shr:1 row_mask:0xf bank_mask:0xf bound_ctrl:0")
        A(f"v_add_u32 v{VDEG}, v{VDEG}, v{VCNT}")
        for k, ctl in enumerate(SCAN):
            A("s_nop 0" if k == 0 else "s_nop 1")
            A(f"v_add_u32_dpp v{VEND}, v{VEND}, v{VEND} {ctl}")
        A(f"v_sub_u32 v{VB4}, v{VEND}, v{VCNT}")
        A("s_waitcnt lgkmcnt(0)")
        A(f"v_readlane_b32 s{STOT}, v{VEND}, 63")
        if with_perm:
            for k in range(8):
                A(f"s_cmp_eq_u64 {sr(MK[k],2)}, 0")
                A(f"s_cbranch_scc1 K_R2{tag}")
                A(f"ds_bpermute_b32 v{PS+k}, v{NL+k}, v{VB4}")
            L(f"K_R2{tag}")
        A(f"v_readfirstlane_b32 s{SLP}, v91")
        A(f"s_add_u32 s{T1}, s{STOT}, 60")
        A(f"s_lshr_b32 s{SLEN}, s{T1}, 6")
        A(f"s_lshl_b32 s{T1}, s{SLEN}, 2")
        A(f"s_add_u32 s{T2}, s{T1}, 4")
        A(f"v_cmp_lt_u32 vcc, s{T2}, v{VCNT}")
        A(f"s_and_b32 s{T3}, s{SLEN}, 63")
        if with_perm:
            A(f"v_readlane_b32 s{T0}, v30, s{T3}")
        A(f"s_andn2_b32 s{SFAST}, s{SFIRST}, s{SMODE}")
        A(f"s_andn2_b32 s{SFAST}, s{SFAST}, s{SLP}")
        A(f"s_cmp_gt_u32 s{STOT}, {4*WIN}")
        A(f"s_cselect_b32 s{SFAST}, 0, s{SFAST}")
        A(f"s_sub_u32 s{T1}, {PRIV_B}, s{T1}")
        A("s_cmp_lg_u64 vcc, 0")
        A(f"s_cselect_b32 s{SFAST}, 0, s{SFAST}")
    scan_and_decide("a", True)
    A(f"v_mov_b32 v92, s{SFAST}")
    A(f"ds_write_b32 v89, v92 offset:{L_FLAG+12}")
    A(f"s_cmp_eq_u32 s{SFAST}, 0")
    A("s_waitcnt lgkmcnt(0)")
    A("s_cbranch_scc1 K_WL")
    for k in range(8):
        A(f"s_mov_b64 exec, {sr(MK[k],2)}")
        A("s_cbranch_execz K_WB")
        A(f"v_add_u32 v{PS+k}, v{PS+k}, v{RK+k}")
        A(f"v_mul_u32_u24 v{RK+k}, s{T0}, v{PS+k}")
        A(f"v_lshrrev_b32 v{RK+k}, 18, v{RK+k}")
        A(f"v_mad_u32_u24 v{PS+k}, v{RK+k}, s{T1}, v{PS+k}")
        A(f"ds_write_b32 v{PS+k}, v{RC+2*k} offset:{L_PRIV}")
        A(f"ds_write_b32 v{PS+k}, v{RC+2*k+1} offset:{L_PRIV + PRIV_N*4}")
    L("K_WB")
    A("s_mov_b64 exec, -1")
    L("K_B3")
    A(f"s_mov_b32 s{SW2}, 1")
    A("v_mov_b32 v89, 0")
    A("s_waitcnt vmcnt(0) lgkmcnt(0)")
    A("s_barrier")
    stamp(8)
    def row_load(d, p, pair=False):
        if not pair:
            A(f"v_add_u32 v{p}, v{p}, v2")
        A(f"buffer_load_dword v{d}, v{p}, {sr(ST,4)}, 0 offen sc1")
        A(f"buffer_load_dword v{d+1}, v{p}, {sr(ST,4)}, 0 offen offset:256 sc1")
    TI = 16
    A(f"ds_read_b32 v92, v89 offset:{L_FLAG+12}")
    for k in range(R // 4):
        A(f"ds_read_b128 {vr(TI+4*k,4)}, v{VP} offset:{16*k}")
    A(f"ds_read_b128 {vr(W,4)}, v{VL16} offset:{L_CV}")
    A("s_waitcnt lgkmcnt(2)")
    A(f"v_readfirstlane_b32 s{T0}, v92")
    A(f"s_cmp_eq_u32 s{T0}, 0")
    A("s_cbranch_scc1 K_R3")
    for k in range(F1):
        if k == 4: A("s_waitcnt lgkmcnt(1)")
        row_load(DAT + 2*k, TI + k)
    L("K_R3")
    A(f"s_cmp_lt_u32 s{SWV}, 8")
    A("s_cbranch_scc1 K_R4")
    scan_and_decide("g", False)
    L("K_R4")
    A(f"s_cmp_eq_u32 s{SFAST}, 0")
    A("s_cbranch_scc1 K_SLOW")
    A(f"v_add_u32 v{Q+3}, v{VP}, v2")
    A(f"ds_read_b32 v{Q}, v{Q+3} offset:{PRIV_N*4}")
    for k in range(R // 4):
        A(f"ds_read_b128 {vr(EV+4*k,4)}, v{VP} offset:{PRIV_N*4 + 16*k}")
    A(f"ds_read_b128 {vr(OG[0],4)}, v{VP} offset:{R*4}")
    A(f"s_mul_i32 s{T0}, s{SLEN}, s{SWV}")
    A(f"s_add_u32 s{T3}, s{T0}, s{SLEN}")
    A(f"s_lshl_b32 s{T0}, s{T0}, 2")
    A(f"s_lshl_b32 s{T3}, s{T3}, 2")
    A(f"s_min_u32 s{T0}, s{T0}, s{STOT}")
    A(f"s_min_u32 s{T3}, s{T3}, s{STOT}")
    A(f"s_sub_u32 s{SNN}, s{T3}, s{T0}")
    A(f"s_lshr_b32 s{SNN}, s{SNN}, 2")
    A(f"v_cmp_gt_u32 vcc, s{T0}, v{VB4}")
    A(f"v_cmp_lt_u32 {sr(TP,2)}, s{T0}, v{VEND}")
    A(f"s_and_b64 vcc, vcc, {sr(TP,2)}")
    A(f"s_cselect_b32 s{SLP}, 1, 0")
    A(f"v_cmp_gt_u32 vcc, s{T3}, v{VB4}")
    A(f"v_cmp_lt_u32 {sr(TP,2)}, s{T3}, v{VEND}")
    A(f"s_and_b64 vcc, vcc, {sr(TP,2)}")
    A(f"s_cselect_b32 s{STAIL}, 1, 0")
    A(f"v_cmp_le_u32 vcc, s{SNN}, v1")
    A(f"s_movk_i32 s{T2}, {QROW//4}")
    A(f"s_movk_i32 s{T3}, {HROW//4}")
    A(f"s_mov_b32 s{SREM}, s{SNN}")
    A("s_waitcnt lgkmcnt(0)")
    A(f"v_and_b32 v{Z2}, 0xfc, v{EV}")
    A(f"v_and_b32 v{Q+1}, 0xfc, v{Q}")
    A(f"v_mad_u32_u24 v{Z2+1}, v{Z2}, s{T2}, v{VQ16}")
    A("s_setprio 3")
    A(f"v_mov_b32_dpp v{Q+2}, v{Q+1} wave_shr:1 row_mask:0xf bank_mask:0xf")
    A(f"v_cmp_ne_u32 {sr(SM,2)}, v{Q+1}, v{Q+2}")
    A(f"ds_read_b128 {vr(Q,4)}, v{Z2+1}")
    A(f"s_or_b64 {sr(SM,2)}, {sr(SM,2)}, vcc")
    for k in range(4):
        A(f"v_add_u32 v{OG[0]+k}, v{OG[0]+k}, v2")
    def tail_prep():
        A(f"v_lshlrev_b32 v{Z+1}, 2, v{VC}")
        A(f"v_lshlrev_b32 v{Z+2}, 4, v{VG}")
        for mt in range(3):
            A(f"v_add_u32 v{T+3}, {64*mt}, v{Z+1}")
            A(f"ds_bpermute_b32 v{T+mt}, v{T+3}, v{VDEG}")
        A(f"s_lshl_b32 s{T0}, s{SWV}, 6")
        A(f"v_add_u32 v{Z+3}, s{T0}, v{Z+2}")
        A(f"ds_read_b128 {vr(B2F,4)}, v{Z+3} offset:{L_CV+2048}")
        A(f"s_movk_i32 s{T1}, {HROW}")
        A(f"v_mad_u32_u24 v{AD}, v{VC}, s{T1}, v{Z+2}")
        A(f"v_lshlrev_b32 v{OUTA}, 8, v{VC}")
        A(f"v_lshl_add_u32 v{OUTA}, v{VG}, 3, v{OUTA}")
        A(f"v_add_u32 v{Z+2}, {L_ZROW}, v{Z+2}")
        A(f"v_add_u32 v{AD+2}, {L_H + 32*HROW}, v{AD}")
        A(f"v_add_u32 v{AD+1}, {L_H + 16*HROW}, v{AD}")
        A(f"v_add_u32 v{AD}, {L_H}, v{AD}")
        A("s_waitcnt lgkmcnt(0)")
        for mt in range(3):
            A(f"v_cmp_eq_u32 vcc, 0, v{T+mt}")
            A(f"v_cvt_f32_u32 v{T+mt}, v{T+mt}")
            A(f"v_mul_f32 v{T+mt}, 0x3e800000, v{T+mt}")
            A(f"v_cndmask_b32 v{AD+mt}, v{AD+mt}, v{Z+2}, vcc")
            sel = "op_sel_hi:[1,0]" if mt % 2 == 0 else "op_sel:[0,1]"
            A(f"v_pk_mul_f32 {vr(OV+4*mt,2)}, {vr(B2F,2)}, {vr(T+(mt&2),2)} {sel}")
            A(f"v_pk_mul_f32 {vr(OV+4*mt+2,2)}, {vr(B2F+2,2)}, {vr(T+(mt&2),2)} {sel}")
    def w2_load():
        A(f"s_mov_b32 s{SW2}, 0")
        A(f"s_lshl_b32 s{T0}, s{SWV}, 13")
        A(f"s_add_u32 s{T0}, s{T0}, {hex(WS_W2F)}")
        A(f"s_add_u32 s{T1}, s{T0}, 4096")
        for k in range(8):
            A(f"buffer_load_dwordx4 {vr(W2R+4*k,4)}, v{VL16}, {sr(SW,4)}, s{T0 + k//4} offen offset:{(k%4)*1024} sc1")
    A(f"s_cmp_ge_u32 s{SWV}, 8")
    A("s_cbranch_scc1 K_NOTP")
    tail_prep()
    L("K_NOTP")
    for k in range(F1, R):
        row_load(DAT + 2*k, TI + k)
    A(f"v_mov_b32 v{LO}, v{Z2}")
    A(f"v_mov_b32 v{PZ}, 0")
    A(f"v_mov_b32 v{PZ+1}, 0")
    VW = 2 * (R - 1)
    if STAMP:
        A(f"s_waitcnt vmcnt({VW})")
        stamp(9)
    A(f"s_cmp_eq_u32 s{SNN}, 0")
    A("s_cbranch_scc1 K_WDONE")
    A("s_branch K_HC0")

    def e_sel(s):
        base = EV + (s & ~1)
        return (vr(base, 2), "op_sel_hi:[1,0,1]") if s % 2 == 0 else (vr(base, 2), "op_sel:[0,1,0]")
    def part_z1(s, z):
        ep, es = e_sel(s)
        return [f"v_pk_fma_f32 {vr(z,2)}, {vr(W,2)}, {ep}, {vr(Q,2)} {es}",
                f"v_pk_fma_f32 {vr(z+2,2)}, {vr(W+2,2)}, {ep}, {vr(Q+2,2)} {es}"]
    def part_z2(s, z, zo=None, lo=LO):
        d = DAT + 2*s
        zo = z if zo is None else zo
        return [f"v_lshlrev_b64 {vr(lo,2)}, 16, {vr(d,2)}",
                f"v_pk_fma_f32 {vr(zo,2)}, {vr(d,2)}, {C2}, {vr(z,2)}",
                f"v_pk_fma_f32 {vr(zo+2,2)}, {vr(lo,2)}, {C2}, {vr(z+2,2)}"]
    def part_exp(z): return [f"v_exp_f32 v{T+k}, v{z+k}" for k in range(4)]
    def part_nd(z):
        return [f"v_pk_fma_f32 {vr(NN,2)}, {vr(NN,2)}, {vr(T,2)}, {vr(NN,2)}",
                f"v_pk_fma_f32 {vr(NN+2,2)}, {vr(NN+2,2)}, {vr(T+2,2)}, {vr(NN+2,2)}",
                f"v_pk_fma_f32 {vr(NN,2)}, {vr(z,2)}, {vr(DD,2)}, {vr(NN,2)}",
                f"v_pk_fma_f32 {vr(NN+2,2)}, {vr(z+2,2)}, {vr(DD+2,2)}, {vr(NN+2,2)}",
                f"v_pk_fma_f32 {vr(DD,2)}, {vr(DD,2)}, {vr(T,2)}, {vr(DD,2)}",
                f"v_pk_fma_f32 {vr(DD+2,2)}, {vr(DD+2,2)}, {vr(T+2,2)}, {vr(DD+2,2)}"]
    def addr_prep(k):
        A("s_waitcnt lgkmcnt(0)")
        A(f"v_pk_add_f32 {vr(OG[k],2)}, {vr(OG[k],2)}, v[2:3] op_sel:[0,1]")
        A(f"v_pk_add_f32 {vr(OG[k]+2,2)}, {vr(OG[k]+2,2)}, v[2:3] op_sel:[0,1]")
    def refill(s):
        og = OG[(s // 4) % 2]
        if s % 4 == 0:
            A(f"ds_read_b128 {vr(OG[(s//4+1)%2],4)}, v{VP} offset:{(R+s+4)*4}")
        row_load(DAT + 2*s, og + s % 4, pair=True)
        if s % 4 == 3:
            addr_prep((s // 4 + 1) % 2)
            A(f"ds_read_b128 {vr(EV+s-3,4)}, v{VP} offset:{PRIV_N*4 + (R+s-3)*4}")
    L("K_LOOP")
    for g in range(R // 4):
        L(f"K_G{g}")
        A(f"s_and_b32 s{T0}, s{SM}, {hex(0xF << (4*g))}")
        A(f"s_cbranch_scc1 K_S{4*g}")
        zz = [Z, Z2]
        s0 = 4*g
        for x in part_z1(s0, zz[0]): A(x)
        A(f"s_waitcnt vmcnt({VW})")
        for x in part_z2(s0, zz[0]): A(x)
        refill(s0)
        for k in range(4):
            s = s0 + k
            z, zn = zz[k % 2], zz[(k + 1) % 2]
            ex, nd = part_exp(z), part_nd(z)
            if k < 3:
                a, b = part_z1(s + 1, zn), part_z2(s + 1, zn)
                A(ex[0]); A(a[0]); A(ex[1]); A(a[1]); A(ex[2])
                A(f"s_waitcnt vmcnt({VW})")
                A(b[0]); A(ex[3]); A(nd[0]); A(b[1]); A(nd[1]); A(nd[2]); A(b[2]); A(nd[3])
                refill(s + 1)
                A(nd[4]); A(nd[5])
            else:
                for x in ex + nd: A(x)
    L("K_PEND")
    A(f"v_add_u32 v{VP}, {R*4}, v{VP}")
    A(f"s_lshr_b64 {sr(SM,2)}, {sr(SM,2)}, {R}")
    A(f"s_sub_u32 s{SREM}, s{SREM}, {R}")
    for thr, p in PRIO_T:
        A(f"s_cmp_gt_u32 s{SREM}, {thr}")
        A("s_cbranch_scc1 K_LOOP")
        A(f"s_setprio {p}")
    A(f"s_cmp_ge_u32 s{SWV}, 8")
    A("s_cbranch_scc1 K_LOOP")
    A(f"s_cmp_eq_u32 s{SW2}, 0")
    A("s_cbranch_scc1 K_LOOP")
    w2_load()
    A("s_branch K_LOOP")
    for s in range(R):
        L(f"K_S{s}")
        A(f"s_bitcmp1_b32 s{SM}, {s}")
        A(f"s_cbranch_scc1 K_H{s}")
        for x in part_z1(s, Z): A(x)
        A(f"s_waitcnt vmcnt({VW})")
        for x in part_z2(s, Z) + part_exp(Z) + part_nd(Z): A(x)
        L(f"K_J{s}")
        refill(s)
        if s % 4 == 3:
            A(f"s_branch K_G{s//4+1}" if s + 1 < R else "s_branch K_PEND")
    def fold():
        for k in range(4):
            A(f"v_rcp_f32 v{T+k}, v{DD+k}")
        A(f"v_pk_fma_f32 {vr(PZ,2)}, {vr(DD,2)}, {vr(NN,2)}, {vr(PZ,2)}")
        A(f"v_pk_fma_f32 {vr(PZ,2)}, {vr(DD+2,2)}, {vr(NN+2,2)}, {vr(PZ,2)}")
        A(f"v_pk_mul_f32 {vr(Z,2)}, {vr(NN,2)}, {vr(T,2)}")
        A(f"v_pk_mul_f32 {vr(Z+2,2)}, {vr(NN+2,2)}, {vr(T+2,2)}")
    def lead_flush():
        A(f"v_add_u32 v{Z2}, s{SSIDE}, v{VL16}")
        A(f"s_lshl_b32 s{T0}, s{SWV}, 2")
        A(f"v_mov_b32 v{Z2+1}, s{T0}")
        A(f"v_mov_b32 v{Z2+2}, 1")
        A(f"ds_write_b128 v{Z2}, {vr(Z,4)}")
        A(f"ds_write_b32 v{Z2+1}, v{Z2+2} offset:{L_SFL}")
        A(f"s_mov_b32 s{SLP}, 0")
    for s in range(R):
        L(f"K_H{s}")
        A(f"s_cmp_eq_u32 s{SREM}, {s}")
        A("s_cbranch_scc1 K_LAST")
        A(f"v_and_b32 v{LO}, 0xfc, v{EV+s}")
        A(f"v_mad_u32_u24 v{LO+1}, v{LO}, s{T2}, v{VQ16}")
        A(f"ds_read_b128 {vr(Q,4)}, v{LO+1}")
        fold()
        A(f"s_cmp_lg_u32 s{SLP}, 0")
        A(f"s_cbranch_scc1 K_LS{s}")
        A(f"v_cvt_pk_bf16_f32 v{Z}, v{Z}, v{Z+1}")
        A(f"v_cvt_pk_bf16_f32 v{Z+1}, v{Z+2}, v{Z+3}")
        A(f"ds_write_b64 v{VA}, {vr(Z,2)}")
        L(f"K_HC{s}")
        A(f"v_mad_u32_u24 v{VA}, v{LO}, s{T3}, v{VH8}")
        A(f"s_waitcnt vmcnt({VW}) lgkmcnt(0)")
        for x in part_z1(s, Z) + part_z2(s, Z, NN) + part_exp(NN): A(x)
        A(f"v_pk_add_f32 {vr(DD,2)}, {vr(T,2)}, 1.0 op_sel_hi:[1,0]")
        A(f"v_pk_add_f32 {vr(DD+2,2)}, {vr(T+2,2)}, 1.0 op_sel_hi:[1,0]")
        A(f"s_branch K_J{s}")
        L(f"K_LS{s}")
        lead_flush()
        A(f"s_branch K_HC{s}")
    L("K_LAST")
    A(f"s_lshl_b32 s{T0}, s{SWV}, 2")
    A(f"v_mov_b32 v{LO}, s{T0}")
    A(f"v_add_u32 v{LO+1}, s{SSIDE}, v{VL16}")
    A(f"ds_read_b32 v{Z2}, v{LO} offset:{L_SFL+4}")
    A(f"ds_read_b128 {vr(Q,4)}, v{LO+1} offset:1024")
    fold()
    A(f"s_cmp_eq_u32 s{SLP}, 0")
    A("s_cbranch_scc1 K_L1")
    A("s_waitcnt lgkmcnt(0)")
    lead_flush()
    A("s_branch K_WDONE")
    L("K_L1")
    A(f"s_cmp_eq_u32 s{STAIL}, 0")
    A("s_cbranch_scc1 K_L3")
    A(f"s_mov_b32 s{SSP}, {SPIN}")
    L("K_L2")
    A("s_waitcnt lgkmcnt(0)")
    A(f"v_readfirstlane_b32 s{T0}, v{Z2}")
    A(f"s_cmp_lg_u32 s{T0}, 0")
    A("s_cbranch_scc1 K_L2B")
    A(f"s_sub_u32 s{SSP}, s{SSP}, 1")
    A("s_cbranch_scc1 K_L2B")
    A("s_sleep 2")
    A(f"ds_read_b32 v{Z2}, v{LO} offset:{L_SFL+4}")
    A(f"ds_read_b128 {vr(Q,4)}, v{LO+1} offset:1024")
    A("s_branch K_L2")
    L("K_L2B")
    A(f"v_pk_add_f32 {vr(Z,2)}, {vr(Z,2)}, {vr(Q,2)}")
    A(f"v_pk_add_f32 {vr(Z+2,2)}, {vr(Z+2,2)}, {vr(Q+2,2)}")
    L("K_L3")
    A(f"v_cvt_pk_bf16_f32 v{Z}, v{Z}, v{Z+1}")
    A(f"v_cvt_pk_bf16_f32 v{Z+1}, v{Z+2}, v{Z+3}")
    A(f"ds_write_b64 v{VA}, {vr(Z,2)}")
    L("K_WDONE")
    stamp(10)
    A(f"v_add_f32 v{T}, v{PZ}, v{PZ+1}")
    A(f"v_mov_b32 v{Z2+1}, 0x207")
    A(f"v_cmp_class_f32 vcc, v{T}, v{Z2+1}")
    A(f"v_mov_b32 v{Z2+2}, 0")
    A(f"s_mov_b32 s{TP}, {hex(C_NLN2)}")
    srd(SO, POUT, N * D * 2)
    A("s_cbranch_vccz K_NOG")
    A(f"ds_write_b32 v{Z2+2}, v{Z2+1} offset:{L_FLAG+8}")
    L("K_NOG")
    A(f"s_cmp_ge_u32 s{SWV}, 8")
    A("s_cbranch_scc1 K_B4")
    A(f"s_cmp_eq_u32 s{SW2}, 0")
    A("s_cbranch_scc1 K_B4")
    w2_load()
    L("K_B4")
    A("s_waitcnt vmcnt(0) lgkmcnt(0)")
    A("s_barrier")
    stamp(11)
    A(f"ds_read_b32 v{Z2+3}, v{Z2+2} offset:{L_FLAG+8}")
    A(f"s_cmp_ge_u32 s{SWV}, 8")
    A("s_cbranch_scc1 K_CHK")
    HB = [48 + 4*k for k in range(8)]
    ACC = [12, 16, 20]
    seq = [(mt, s) for mt in range(3) for s in range(8)]
    PRE = 7
    for k in range(PRE):
        mt, s = seq[k]
        A(f"ds_read_b128 {vr(HB[k%8],4)}, v{AD+mt} offset:{s*64}")
    def epi(mt):
        for r in range(4):
            A(f"v_fma_f32 v{OV+4*mt+r}, v{ACC[mt]+r}, s{TP}, v{OV+4*mt+r}")
        A(f"v_cvt_pk_bf16_f32 v{32+2*mt}, v{OV+4*mt}, v{OV+4*mt+1}")
        A(f"v_cvt_pk_bf16_f32 v{33+2*mt}, v{OV+4*mt+2}, v{OV+4*mt+3}")
    for k, (mt, s) in enumerate(seq):
        if k + PRE < 24:
            m2, s2 = seq[k+PRE]
            A(f"ds_read_b128 {vr(HB[(k+PRE)%8],4)}, v{AD+m2} offset:{s2*64}")
        A(f"s_waitcnt lgkmcnt({min(PRE, 23-k)})")
        c = "0" if s == 0 else vr(ACC[mt], 4)
        A(f"v_mfma_f32_16x16x32_bf16 {vr(ACC[mt],4)}, {vr(W2R+4*s,4)}, {vr(HB[k%8],4)}, {c}")
        if s == 4 and mt > 0:
            epi(mt - 1)
    A("s_nop 7")
    epi(2)
    L("K_CHK")
    A("s_waitcnt lgkmcnt(0)")
    A(f"v_readfirstlane_b32 s{T2}, v{Z2+3}")
    A(f"s_lshl_b32 s{T1}, s{SMODE}, 31")
    A(f"s_or_b32 s{T2}, s{T2}, s{T1}")
    A(f"s_cmp_gt_i32 s{T2}, 0")
    A("s_cbranch_scc1 K_REDO")
    A(f"s_cmp_ge_u32 s{SWV}, 8")
    A("s_cbranch_scc1 K_END2")
    A(f"s_add_u32 s{T2}, s{SOUT}, 4096")
    A(f"s_add_u32 s{T1}, s{SOUT}, 8192")
    A(f"buffer_store_dwordx2 v[32:33], v{OUTA}, {sr(SO,4)}, s{SOUT} offen")
    A(f"buffer_store_dwordx2 v[34:35], v{OUTA}, {sr(SO,4)}, s{T2} offen")
    A(f"s_mov_b64 exec, {sr(SQM,2)}")
    A(f"buffer_store_dwordx2 v[36:37], v{OUTA}, {sr(SO,4)}, s{T1} offen")
    A("s_mov_b64 exec, -1")
    L("K_END2")
    if STAMP:
        stamp(12)
        A("s_waitcnt vmcnt(0)")
        stamp(13)
        A(f"v_writelane_b32 v{VST}, s26, 14")
        A(f"s_lshl_b32 s{T0}, s2, 4")
        A(f"s_add_u32 s{T0}, s{T0}, s{SWV}")
        A(f"s_lshl_b32 s{T0}, s{T0}, 8")
        A(f"s_add_u32 s{T0}, s{T0}, {hex(WS_DBG)}")
        A(f"buffer_store_dword v{VST}, v2, {sr(SW,4)}, s{T0} offen")
    L("K_END")
    A("s_endpgm")

    L("K_WL")
    for k in range(8):
        A(f"s_mov_b64 exec, {sr(MK[k],2)}")
        A("s_cbranch_execz K_WB")
        A(f"v_add_lshl_u32 v{PS+k}, v{PS+k}, v{RK+k}, 1")
        A(f"ds_write_b64 v{PS+k}, {vr(RC+2*k,2)} offset:{L_LIST}")
    A("s_branch K_WB")
    L("K_REDO")
    A(f"s_mov_b32 s{SMODE}, 1")
    A("s_setprio 0")
    A(f"v_and_b32 v{VC}, 15, v1")
    A(f"v_lshrrev_b32 v{VG}, 4, v1")
    A(f"v_mov_b32 v{VDEG}, 0")
    A(f"v_mov_b32 v{PZ}, 0")
    A(f"s_mov_b32 s{SFIRST}, 1")
    A("v_lshrrev_b32 v31, 1, v0")
    A("v_lshlrev_b32 v31, 11, v31")
    def reset_round():
        A("s_barrier")
        A(f"s_cmp_lg_u32 s{SWV}, 0")
        uid[0] += 1
        A(f"s_cbranch_scc1 K_RR{uid[0]}")
        A("v_mov_b32 v89, 0")
        A("ds_write_b32 v2, v89")
        A(f"ds_write_b32 v89, v89 offset:{L_FLAG}")
        A(f"ds_write_b32 v89, v89 offset:{L_GC+16}")
        A("s_waitcnt lgkmcnt(0)")
        L(f"K_RR{uid[0]}")
        A("s_barrier")
    reset_round()
    A(f"s_cmp_ge_u32 s{SWV}, 8")
    A("s_cbranch_scc1 K_B3")
    A("s_branch K_REC0")
    L("K_SLOW")
    A(f"s_cmp_eq_u32 s{SFIRST}, 0")
    A("s_cbranch_scc1 K_SL0")
    for k in range(12):
        A(f"v_mov_b32 v{SACC+k}, 0")
    L("K_SL0")
    for i in range(3):
        A(f"s_add_u32 s{T0}, s{SWV}, {16*i}")
        A(f"v_readlane_b32 s{T1}, v{VB4}, s{T0}")
        A(f"v_readlane_b32 s{T2}, v{VCNT}, s{T0}")
        A(f"s_mul_i32 s{T3}, s{T0}, {QROW}")
        A(f"s_cmp_eq_u32 s{T2}, 0")
        A(f"s_cbranch_scc1 K_SLN{i}")
        A(f"v_add_u32 v{Z2}, s{T3}, v{VQ16}")
        A(f"ds_read_b128 {vr(Q,4)}, v{Z2}")
        A(f"s_lshl_b32 s{T1}, s{T1}, 1")
        A(f"v_mov_b32 v{VA}, s{T1}")
        L(f"K_SLL{i}")
        A(f"ds_read_b64 {vr(EV,2)}, v{VA} offset:{L_LIST}")
        A(f"v_add_u32 v{VA}, 8, v{VA}")
        A("s_waitcnt lgkmcnt(0)")
        row_load(DAT + 2, EV)
        for x in part_z1(1, Z): A(x)
        A("s_waitcnt vmcnt(0)")
        for x in part_z2(1, Z, lo=NN) + part_exp(Z): A(x)
        A("s_nop 0")
        for k in range(4):
            A(f"v_add_f32 v{T+k}, 1.0, v{T+k}")
        for k in range(4):
            A(f"v_rcp_f32 v{T+k}, v{T+k}")
        A(f"s_sub_u32 s{T2}, s{T2}, 4")
        for k in range(4):
            A(f"v_fmac_f32 v{SACC+4*i+k}, v{Z+k}, v{T+k}")
        A(f"s_cmp_lg_u32 s{T2}, 0")
        A(f"s_cbranch_scc1 K_SLL{i}")
        L(f"K_SLN{i}")
    A(f"s_mov_b32 s{SFIRST}, 0")
    A("s_waitcnt lgkmcnt(0)")
    reset_round()
    A(f"s_cmp_eq_u32 s{SLP}, 0")
    A("s_cbranch_scc1 K_SLFIN")
    A(f"s_cmp_ge_u32 s{SWV}, 8")
    A("s_cbranch_scc1 K_B3")
    A(f"v_add_u32 v{PZ}, -16, v{PZ}")
    A(f"v_add_u32 v{PZ+1}, 128, v{PZ+1}")
    A("s_branch K_RECS")
    L("K_SLFIN")
    A(f"v_mov_b32 v{PZ}, 0")
    A(f"v_mov_b32 v{PZ+1}, 0")
    for i in range(3):
        if i == 2:
            A(f"s_cmp_ge_u32 s{SWV}, {NPB-32}")
            A("s_cbranch_scc1 K_WDONE")
        A(f"s_add_u32 s{T0}, s{SWV}, {16*i}")
        A(f"s_mul_i32 s{T0}, s{T0}, {HROW}")
        A(f"v_add_u32 v{Z2}, s{T0}, v{VH8}")
        A(f"v_cvt_pk_bf16_f32 v{Z}, v{SACC+4*i}, v{SACC+4*i+1}")
        A(f"v_cvt_pk_bf16_f32 v{Z+1}, v{SACC+4*i+2}, v{SACC+4*i+3}")
        A(f"ds_write_b64 v{Z2}, {vr(Z,2)}")
    tail_prep()
    A("s_branch K_WDONE")
    L("K_CODE_END")

hdr = f"""; Kernarg layout for this problem (88 bytes, ptrs only, base s[0:1]):
; @launch grid=({NB},1,1) block=(1024,1,1) lds={LDS}
.amdgcn_target "amdgcn-amd-amdhsa--gfx950"
"""
gen()
vg = 128
out.extend(['.section .rodata,"a"', ".p2align 6", f".amdhsa_kernel {KN}",
    f"  .amdhsa_next_free_vgpr {vg}", f"  .amdhsa_next_free_sgpr 102", f"  .amdhsa_accum_offset {vg}",
    "  .amdhsa_group_segment_fixed_size 0", "  .amdhsa_kernarg_size 88", "  .amdhsa_user_sgpr_count 2",
    "  .amdhsa_user_sgpr_kernarg_segment_ptr 1", "  .amdhsa_system_sgpr_workgroup_id_x 1", ".end_amdhsa_kernel"])
txt = hdr + "\n".join(out) + "\n"
dst = sys.argv[1] if len(sys.argv) > 1 else f"fused.s"
open(dst, "w").write(txt)
print("wrote", dst, "LDS", LDS)
```

```python
import sys, struct, os

NAME = "standalone__edge_featured_mpnn_mpnn__graph"
KN = NAME + "_kernel"
N, E, D, H = 10000, 160000, 128, 256
NB, NPB, CH = 250, 40, 640
WS_REC = 0x500000
WS_OFS = 0x680000
WS_PF = 0x700000
WS_W2F = 0x710000
WS_DBG = 0x2000000
WS_BYTES = 0x10000000
R = 8
PRIO_T = eval(os.environ.get("PRIO_T", "((32, 2), (21, 1), (10, 0))"))
STAMP = os.environ.get("STAMP", "0") == "1"
PI = [1, 3, 0, 2]
FBASE = 0x4B000000
SPIN = 1 << 16
PLATE = int(os.environ.get('PLATE', '2'))
F1 = int(os.environ.get('F1', '4'))
SLP_F = int(os.environ.get('SLPF', '0'))
SLP_N = int(os.environ.get('SLP', '2'))

def f32bits(x): return struct.unpack("<I", struct.pack("<f", x))[0]
C_NLOG2E = f32bits(-1.4426950408889634)
C_NLN2 = f32bits(-0.6931471805599453)

out = []
def A(s): out.append("    " + s)
def L(s): out.append(s + ":")
def CM(s): out.append("    ; " + s)
def vr(a, n): return f"v[{a}:{a+n-1}]"
def sr(a, n): return f"s[{a}:{a+n-1}]"

PX, PE, PSRC, PDST, PW1, PB1, PW2, PB2 = 4, 6, 8, 10, 12, 14, 16, 18
POUT, PDBG, PWS = 20, 22, 24

def srd(dst, base, nrec, off=None):
    if off is not None:
        A(f"s_add_u32 s{dst}, s{base}, {off}")
        A(f"s_addc_u32 s{dst+1}, s{base+1}, 0")
        src1 = dst + 1
    else:
        A(f"s_mov_b32 s{dst}, s{base}")
        src1 = base + 1
    A(f"s_and_b32 s{dst+1}, s{src1}, 0xffff")
    A(f"s_mov_b32 s{dst+2}, {hex(nrec)}")
    A(f"s_mov_b32 s{dst+3}, 0x20000")

NST = 0
def stamp(k):
    if STAMP: A(f"s_memrealtime s[100:101]"); A("s_waitcnt lgkmcnt(0)"); A(f"v_writelane_b32 v{VST}, s100, {k}")

QROW, HROW, PROW = 1040, 528, 272
L_CNT, L_FLAG, L_SFL, L_ZROW, L_GC, L_TOK = 0, 256, 272, 352, 864, 892
L_CV = 896
L_HIST = L_CV + 2560
L_PRIV = L_HIST + 1024
ZERO_B = L_PRIV
PRIV_N = 64 + R + 8
PRIV_B = PRIV_N * 8
L_H = L_PRIV + 16 * PRIV_B
L_XT = L_H + NPB * HROW
L_SIDE = L_XT
L_Q = L_XT + 20480
L_S = L_Q + NPB * QROW
L_SB = L_H + 10240
L_PT = L_Q
LDS = L_S + 65536
L_LIST = L_HIST
assert LDS <= 163840 and L_XT - L_LIST >= 32000 and L_H % 16 == 0 and L_Q % 16 == 0 and L_S % 16 == 0 and L_XT % 16 == 0
W1B_EARLY = 0
W1B_AT = 2
W1B_H = int(os.environ.get("W1BH", "4"))
GPR = int(os.environ.get("GPR", "2"))
WB0 = int(os.environ.get("WB0", "1"))
GWD = int(os.environ.get("GWD", "99"))
PD0 = int(os.environ.get("PD0", "0"))
WIN = 16 * 63
DUMMY = FBASE + 0x7FF000

VLF, VH8, VL16, VT16, VQ16 = 3, 4, 5, 6, 7
W, Q, NN, DD, Z, Z2, T, LO, PZ = 8, 12, 16, 20, 24, 28, 32, 36, 38
VA, VP, VDEG, VB4, VCNT, VPL, VM, VEND = 40, 41, 42, 43, 44, 45, 46, 47
EV, OG, DAT = 48, [56, 60], 64
AD, OUTA, OV, B2F = 80, 83, 84, 92
XF = 48
WL, PT = 96, 112
W2R = 96
RC = 96
VST = 45
SACC = 112

def gen():
    out.extend([".text", f".globl {KN}", ".p2align 8", f".type {KN},@function"])
    L(KN)
    ST, SW, SO, SX, SY, SZ = 28, 32, 36, 40, 44, 48
    MK = [4 + 2*k for k in range(8)]
    SC = 60
    SMODE, SFIRST, SRND, SFAST, STOK, SSP = 62, 63, 64, 65, 66, 67
    SM = 68
    SREM, STOT, SLP, SNN, SWV = 70, 71, 72, 73, 3
    SN40, SEX = 74, 76
    T0, T1, T2, T3, TP = 78, 79, 80, 81, 82
    STAIL, SSIDE, SLEN, SOUT, SWO = 84, 85, 86, 87, 88
    SQM, P0, P1 = 90, 92, 93
    SB8, SW2, SOWN, STAG, SN80, SCB = 75, 89, 52, 54, 55, 56
    C2 = sr(SC, 2)
    SCAN = ("row_shr:2 row_mask:0xf bank_mask:0xf bound_ctrl:0", "row_shr:4 row_mask:0xf bank_mask:0xf bound_ctrl:0",
            "row_shr:8 row_mask:0xf bank_mask:0xf bound_ctrl:0", "row_bcast:15 row_mask:0xa bank_mask:0xf", "row_bcast:31 row_mask:0xc bank_mask:0xf")
    VC, VG = 36, 37
    GRT = 34
    VZ, VONE = VEND, VM

    A("s_load_dwordx16 s[4:19], s[0:1], 0")
    A("s_load_dwordx4 s[20:23], s[0:1], 64")
    A("s_load_dwordx2 s[24:25], s[0:1], 80")
    A("s_memrealtime s[26:27]")
    CM("pull the code towards the L2 right away (one load per 128-B line; lanes past the code are out of range)")
    A(f"s_getpc_b64 {sr(SX,2)}")
    L("K_PC0")
    A("v_lshlrev_b32 v126, 7, v0")
    A(f"s_and_b32 s{SX+1}, s{SX+1}, 0xffff")
    A(f"s_mov_b32 s{SX+2}, K_CODE_END-K_PC0")
    A(f"s_mov_b32 s{SX+3}, 0x20000")
    A(f"buffer_load_dword v{VDEG}, v126, {sr(SX,4)}, 0 offen")
    A(f"s_cmp_ge_u32 s2, {NB}")
    A("s_cbranch_scc1 K_END")
    A("v_and_b32 v1, 63, v0")
    A("v_lshrrev_b32 v48, 6, v0")
    A(f"v_lshlrev_b32 v{VT16}, 4, v0")
    A(f"v_readfirstlane_b32 s{SWV}, v48")
    A("v_lshlrev_b32 v2, 2, v1")
    A(f"v_lshlrev_b32 v{VL16}, 4, v1")
    A(f"v_and_b32 v{VC}, 15, v1")
    A(f"v_lshrrev_b32 v{VG}, 4, v1")
    if STAMP: A(f"v_mov_b32 v{VST}, 0")
    A(f"v_mov_b32 v{VZ}, 0")
    A(f"v_mov_b32 v{VONE}, 1")
    for k in range(4):
        A(f"v_mov_b32 v{8+k}, 0")
    A(f"s_movk_i32 s{T0}, {ZERO_B//16}")
    A(f"v_cmp_gt_u32 vcc, s{T0}, v0")
    A(f"s_mul_i32 s{SN40}, s2, {NPB}")
    A(f"s_lshr_b32 s{SN80}, s2, 1")
    A(f"s_mul_i32 s{SN80}, s{SN80}, 80")
    A(f"s_and_b32 s{SCB}, s2, 1")
    A(f"s_and_saveexec_b64 {sr(SEX,2)}, vcc")
    A("s_cbranch_execz K_Z1")
    A(f"ds_write_b128 v{VT16}, v[8:11]")
    L("K_Z1")
    A(f"s_mov_b64 exec, {sr(SEX,2)}")
    A(f"s_mov_b32 s{P0}, 0x05040100")
    A(f"s_mov_b32 s{P1}, 0x07060302")
    A(f"s_mov_b32 s{SC}, {hex(C_NLOG2E)}")
    A(f"s_mov_b32 s{SC+1}, {hex(C_NLOG2E)}")
    A(f"s_mul_i32 s{SW2}, s{SWV}, {PRIV_B}")
    A(f"s_add_u32 s{SW2}, s{SW2}, {L_PRIV}")
    A(f"v_add_u32 v30, s{SW2}, v2")
    A(f"v_mov_b32 v31, {hex(DUMMY)}")
    A("ds_write_b32 v30, v31")
    A(f"ds_write_b32 v30, v31 offset:{(PRIV_N-64)*4}")
    A(f"s_cmp_lt_u32 s{SWV}, 8")
    A("s_cbranch_scc1 K_AUX")
    def common_setup():
        srd(SW, PWS, WS_BYTES)
        A(f"s_lshl_b32 s{SSIDE}, s{SWV}, 10")
        A(f"s_add_u32 s{SSIDE}, s{SSIDE}, {L_SIDE}")
        A(f"s_mov_b32 s{SMODE}, 0")
        A(f"s_sub_u32 s{ST}, s{PWS}, {hex(FBASE)}")
        A(f"s_subb_u32 s{ST+1}, s{PWS+1}, 0")
        A(f"s_and_b32 s{ST+1}, s{ST+1}, 0xffff")
        A(f"s_mov_b32 s{ST+2}, {hex(FBASE + N*512)}")
        A(f"s_mov_b32 s{ST+3}, 0x20000")
        A(f"s_lshl_b32 s{SB8}, s2, 3")
        A(f"s_add_u32 s{SB8}, s{SB8}, {hex(WS_OFS)}")
        A(f"v_cvt_f32_u32 v{VLF}, v2")
        A(f"v_lshlrev_b32 v{VH8}, 3, v1")
        A(f"v_add_u32 v{VH8}, {L_H}, v{VH8}")
        A(f"v_add_u32 v{VQ16}, {L_Q}, v{VL16}")
        A(f"v_cmp_gt_u32 {sr(SQM,2)}, 8, v{VC}")
        A(f"s_lshl_b32 s{SOUT}, s{SN40}, 8")
        A(f"s_lshl_b32 s{T2}, s{SWV}, 5")
        A(f"s_add_u32 s{SOUT}, s{SOUT}, s{T2}")
        A(f"s_mov_b32 s{SFIRST}, 1")
    uid = [0]
    def arrive(c):
        A("s_mov_b64 exec, 1")
        A(f"ds_add_u32 v{VZ}, v{VONE} offset:{L_GC + 4*c}")
        A("s_mov_b64 exec, -1")
    def await_lds(off, n, vt, sdst, nonzero=False, slp=1):
        uid[0] += 1; u = uid[0]
        A(f"s_mov_b32 s{SSP}, {SPIN*16}")
        L(f"K_AW{u}")
        A(f"ds_read_b32 v{vt}, v{VZ} offset:{off}")
        A("s_waitcnt lgkmcnt(0)")
        A(f"v_readfirstlane_b32 s{sdst}, v{vt}")
        A(f"s_cmp_lg_u32 s{sdst}, 0" if nonzero else f"s_cmp_ge_u32 s{sdst}, {n}")
        A(f"s_cbranch_scc1 K_AWD{u}")
        A(f"s_sub_u32 s{SSP}, s{SSP}, 1")
        A("s_cbranch_scc1 K_END")
        A(f"s_sleep {slp}")
        A(f"s_branch K_AW{u}")
        L(f"K_AWD{u}")
    def perm4(dst, col, src=WL):
        for pr in range(4):
            a, b = src + 8*pr + (col >> 1), src + 8*pr + 4 + (col >> 1)
            A(f"v_perm_b32 v{dst+pr}, v{b}, v{a}, s{P1 if col & 1 else P0}")
    def franks(srdn):
        pass
    VPA, VQA, VB1A, VSW, VWO = 41, 38, 43, 44, 39
    A(f"v_lshlrev_b32 v{VWO}, 12, v{VG}")
    A(f"v_lshl_add_u32 v{VWO}, v{VC}, 4, v{VWO}")
    A(f"s_and_b32 s{T0}, s{SWV}, 3")
    A(f"s_bfe_u32 s{T3}, s{SWV}, 0x10002")
    A(f"s_lshl_b32 s{SWO}, s{T0}, 14")
    A(f"s_lshl_b32 s{T1}, s{T3}, 11")
    A(f"s_add_u32 s{T1}, s{T1}, s{SWO}")
    A(f"s_lshl_b32 s{T2}, s{SCB}, 8")
    A(f"s_add_u32 s{T1}, s{T1}, s{T2}")
    A(f"s_lshl_b32 s{T2}, s{T3}, 8")
    A(f"s_add_u32 s{SWO}, s{SWO}, s{T2}")
    A(f"s_add_u32 s{SWO}, s{SWO}, {128*512}")
    A("s_waitcnt lgkmcnt(0)")
    srd(SY, PW1, 257 * 512)
    if not WB0: A("s_barrier")
    for j in range(4):
        A(f"buffer_load_dwordx4 {vr(64+4*j,4)}, v{VWO}, {sr(SY,4)}, s{T1} offen offset:{512*j}")
    if WB0: A("s_barrier")
    if GPR: A(f"s_setprio {GPR}")
    if W1B_EARLY:
        for j in range(8):
            A(f"buffer_load_dwordx4 {vr(WL+4*j,4)}, v{VWO}, {sr(SY,4)}, s{SWO} offen offset:{512*j}")
    if W1B_H == 3:
        A(f"s_cmp_ge_u32 s{SWV}, 12")
        A("s_cbranch_scc1 K_NOH3")
        for j in range(8):
            A(f"buffer_load_dwordx4 {vr(WL+4*j,4)}, v{VWO}, {sr(SY,4)}, s{SWO} offen offset:{512*j}")
        L("K_NOH3")
    common_setup()
    A(f"s_lshl_b32 s{T0}, s{T0}, 10")
    A(f"s_add_u32 s{T0}, s{T0}, {L_S}")
    A(f"s_lshl_b32 s{T1}, s{T3}, 3")
    A(f"s_add_u32 s{T1}, s{T1}, s{T0}")
    A(f"v_add_u32 v12, s{T1}, v{VL16}")
    A(f"s_lshl_b32 s{T1}, s{T3}, 15")
    A(f"s_add_u32 s{T1}, s{T1}, s{T0}")
    A(f"v_add_u32 v{VSW}, s{T1}, v{VL16}")
    XA = 8
    A(f"v_xor_b32 v13, v{VG}, v{VC}")
    A("v_lshlrev_b32 v13, 4, v13")
    A(f"v_lshl_add_u32 v13, v{VC}, 8, v13")
    for s_ in range(4):
        A(f"v_xor_b32 v{XA+s_}, {64*s_}, v13")
    A(f"s_sub_u32 s{T0}, s{SWV}, 8")
    A(f"s_lshl_b32 s{T1}, s{T0}, 12")
    A(f"s_add_u32 s{T1}, s{T1}, {L_S}")
    A(f"v_add_u32 v{VA}, s{T1}, v{VL16}")
    A(f"s_lshr_b32 s{T1}, s{T0}, 2")
    A(f"s_lshl_b32 s{T1}, s{T1}, 4")
    A(f"s_and_b32 s{T2}, s{T0}, 3")
    A(f"s_add_u32 s{T1}, s{T1}, s{T2}")
    A(f"v_lshl_add_u32 v13, v{VG}, 2, s{T1}")
    A(f"s_movk_i32 s{T1}, {PROW}")
    A(f"v_lshlrev_b32 v{VPA}, 2, v13")
    A(f"v_mad_u32_u24 v{VPA}, v{VC}, s{T1}, v{VPA}")
    A(f"v_add_u32 v{VPA}, {L_PT}, v{VPA}")
    A(f"s_mov_b32 s{T2}, 0x8000")
    if W1B_H == 3:
        A(f"s_cmp_lt_u32 s{SWV}, 12")
        A("s_cbranch_scc1 K_NOH3B")
        A("s_waitcnt vmcnt(0)")
        L("K_NOH3B")
        A("s_waitcnt vmcnt(8)")
    else:
        A("s_waitcnt vmcnt(0)")
    stamp(1)
    for pr in range(2):
        for dw in range(4):
            a_, b_ = 64 + 8*pr + dw, 64 + 8*pr + 4 + dw
            A(f"v_perm_b32 v{48+(2*dw)*2+pr}, v{b_}, v{a_}, s{P0}")
            A(f"v_perm_b32 v{48+(2*dw+1)*2+pr}, v{b_}, v{a_}, s{P1}")
    for col in range(8):
        A(f"ds_write_b64 v12, {vr(48+2*col,2)} offset:{col*4096}")
    def w1b_loads():
        for j in range(8):
            A(f"buffer_load_dwordx4 {vr(WL+4*j,4)}, v{VWO}, {sr(SY,4)}, s{SWO} offen offset:{512*j}")
    if W1B_AT == 0: w1b_loads()
    A("s_waitcnt lgkmcnt(0)")
    arrive(0)
    if W1B_H == 4: w1b_loads()
    if W1B_H == 2:
        A(f"s_cmp_ge_u32 s{SWV}, 12")
        A("s_cbranch_scc1 K_NOH2")
        w1b_loads()
        L("K_NOH2")
    await_lds(L_GC, 13, 12, T0)
    stamp(3)
    if W1B_H == 1:
        A(f"s_cmp_ge_u32 s{SWV}, 12")
        A("s_cbranch_scc1 K_NOH1")
        w1b_loads()
        L("K_NOH1")
    AF, XR = 48, [64 + 4*k for k in range(8)]
    ACP = lambda mt: 16 + 4*mt
    for s_ in range(4):
        A(f"ds_read_b128 {vr(AF+4*s_,4)}, v{VA} offset:{s_*1024}")
    seq = [(mt, s_) for mt in range(5) for s_ in range(4)]
    PRE = 7
    def rdx(k):
        mt, s_ = seq[k]
        A(f"ds_read_b128 {vr(XR[k%8],4)}, v{XA+s_} offset:{L_XT + 4096*mt}")
    for k in range(PRE): rdx(k)
    def pack(mt):
        f = [ACP(mt) + r for r in range(4)]
        o = []
        o += [f"v_add_f32 v{f[r]}, 0, v{f[r]}" for r in range(4)]
        o += [f"v_add_u32 v{f[r]}, s{T2}, v{f[r]}" for r in range(4)]
        o += [f"v_sub_u32_sdwa v{f[r]}, v{f[r]}, v{f[r-1]} clamp dst_sel:DWORD dst_unused:UNUSED_PAD src0_sel:DWORD src1_sel:WORD_1" for r in range(1, 4)]
        o += [f"v_perm_b32 v{f[0]}, v{f[1]}, v{f[0]}, s{P1}", f"v_perm_b32 v{f[2]}, v{f[3]}, v{f[2]}, s{P1}"]
        return o
    pend = []
    for k, (mt, s_) in enumerate(seq):
        if k + PRE < 20: rdx(k + PRE)
        A(f"s_waitcnt lgkmcnt({min(PRE, 19-k)})")
        c = "0" if s_ == 0 else vr(ACP(mt), 4)
        A(f"v_mfma_f32_16x16x32_bf16 {vr(ACP(mt),4)}, {vr(AF+4*s_,4)}, {vr(XR[k%8],4)}, {c}")
        if s_ == 3 and mt >= 1: pend += pack(mt - 1)
        for x in pend[:4]: A(x)
        pend = pend[4:]
    for x in pend: A(x)
    A("s_nop 1")
    for x in pack(4): A(x)
    for mt in range(5):
        A(f"ds_write_b32 v{VPA}, v{ACP(mt)} offset:{16*mt*PROW}")
        A(f"ds_write_b32 v{VPA}, v{ACP(mt)+2} offset:{16*mt*PROW + 128}")
    A("v_bfe_u32 v12, v0, 4, 4")
    A(f"s_movk_i32 s{T1}, {PROW}")
    A(f"v_lshlrev_b32 v13, 4, v{VC}")
    A(f"v_mad_u32_u24 v14, v12, s{T1}, v13")
    A(f"v_add_u32 v14, {L_PT}, v14")
    A("v_and_b32 v15, 0x70, v13")
    A("v_lshl_add_u32 v15, v12, 9, v15")
    A("v_and_b32 v13, 0x80, v13")
    A("v_lshl_add_u32 v15, v13, 1, v15")
    A(f"s_lshl_b32 s{T0}, s{SN80}, 9")
    A(f"s_lshl_b32 s{T1}, s{SCB}, 7")
    A(f"s_add_u32 s{T0}, s{T0}, s{T1}")
    A("s_waitcnt lgkmcnt(0)")
    arrive(1)
    await_lds(L_GC + 4, 9, 12, T3)
    stamp(4)
    A(f"s_cmp_lt_u32 s{SWV}, 12")
    A("s_cbranch_scc1 K_GW")
    for k in range(5):
        A(f"ds_read_b128 {vr(48+4*k,4)}, v14 offset:{16*k*PROW}")
    for k in range(5):
        A(f"s_waitcnt lgkmcnt({4-k})")
        A(f"buffer_store_dwordx4 {vr(48+4*k,4)}, v15, {sr(SW,4)}, s{T0} offen sc1")
        A(f"s_add_u32 s{T0}, s{T0}, 8192")
    if W1B_H == 4:
        A("s_waitcnt vmcnt(5)")
        for col in range(8):
            d = 16 + 4 * (col % 5)
            perm4(d, col)
            A(f"ds_write_b128 v{VSW}, {vr(d,4)} offset:{col*4096}")
        A("s_waitcnt lgkmcnt(0)")
    arrive(2)
    await_lds(L_TOK, 0, 14, STOK, nonzero=True)
    A("s_waitcnt vmcnt(0)")
    A("s_mov_b64 exec, 1")
    A(f"ds_add_rtn_u32 v15, v{VZ}, v{VONE} offset:{L_GC+12}")
    A(f"s_lshl_b32 s{T0}, s2, 4")
    A(f"s_add_u32 s{T0}, s{T0}, {hex(WS_PF)}")
    A("s_waitcnt lgkmcnt(0)")
    A(f"v_readfirstlane_b32 s{T1}, v15")
    A(f"s_cmp_lg_u32 s{T1}, 3")
    A("s_cbranch_scc1 K_NOPF")
    A(f"buffer_store_dword v14, v{VZ}, {sr(SW,4)}, s{T0} offen sc1")
    L("K_NOPF")
    A("s_mov_b64 exec, -1")
    stamp(2)
    A("s_branch K_GQ")
    L("K_GW")
    def st1():
        for col in range(8):
            d = 16 + 4 * (col % 5)
            perm4(d, col)
            A(f"ds_write_b128 v{VSW}, {vr(d,4)} offset:{col*4096}")
    if W1B_H:
        A("s_waitcnt vmcnt(0)")
        st1()
    if W1B_H != 4:
        if GWD == 99: await_lds(L_GC + 12, 4, 12, T3, slp=2)
        elif GWD: A(f"s_sleep {GWD}")
        if not W1B_H:
            w1b_loads()
        A(f"s_add_u32 s{T0}, s{SWO}, 256")
        for j in range(8):
            A(f"buffer_load_dwordx4 {vr(64+4*j,4)}, v{VWO}, {sr(SY,4)}, s{T0} offen offset:{512*j}")
        if not W1B_H:
            A("s_waitcnt vmcnt(8)")
            st1()
        A("s_waitcnt vmcnt(0)")
        for col in range(8):
            d = 16 + 4 * ((col + 3) % 5)
            perm4(d, col, 64)
            A(f"ds_write_b128 v{VSW}, {vr(d,4)} offset:{32768 + col*4096}")
    A("s_waitcnt lgkmcnt(0)")
    arrive(2)
    await_lds(L_TOK, 0, 14, STOK, nonzero=True)
    L("K_GQ")
    A(f"s_sub_u32 s{T0}, s{SWV}, 8")
    A(f"s_lshl_b32 s{T1}, s{T0}, 13")
    A(f"s_add_u32 s{T1}, s{T1}, {L_S}")
    A(f"v_add_u32 v{VA}, s{T1}, v{VL16}")
    A(f"s_lshr_b32 s{T1}, s{T0}, 1")
    A(f"s_lshl_b32 s{T1}, s{T1}, 4")
    A(f"s_and_b32 s{T0}, s{T0}, 1")
    A(f"s_lshl_b32 s{T0}, s{T0}, 1")
    A(f"s_add_u32 s{T0}, s{T0}, s{T1}")
    A(f"v_lshl_add_u32 v12, v{VG}, 2, s{T0}")
    A(f"v_lshlrev_b32 v{VB1A}, 4, v12")
    A(f"s_movk_i32 s{T1}, {QROW}")
    A(f"v_mad_u32_u24 v{VPA}, v{VC}, s{T1}, v{VB1A}")
    A(f"v_add_u32 v{VPA}, {L_Q}, v{VPA}")
    A(f"s_mul_i32 s{T0}, s{SCB}, 40")
    A(f"v_add_u32 v12, s{T0}, v{VC}")
    A(f"v_xor_b32 v13, v{VG}, v12")
    A("v_and_b32 v13, 15, v13")
    A("v_lshlrev_b32 v13, 4, v13")
    A("v_lshl_add_u32 v13, v12, 8, v13")
    for s_ in range(4):
        A(f"v_xor_b32 v{XA+s_}, {64*s_}, v13")
    stamp(5)
    for s_ in range(4):
        for mt in range(3):
            A(f"ds_read_b128 {vr(XF+(mt*4+s_)*4,4)}, v{XA+s_} offset:{L_XT + 4096*mt}")
    await_lds(L_GC + 8, 12, 12, T0)
    AC = lambda t, mt: 16 + (t*3 + mt) * 4
    A(f"ds_read_b128 v[8:11], v{VB1A} offset:{L_CV+1024}")
    A(f"ds_read_b128 v[12:15], v{VB1A} offset:{L_CV+1024+16}")
    for k in range(8):
        A(f"ds_read_b128 {vr(WL+4*k,4)}, v{VA} offset:{((k&1)*4 + (k>>1))*1024}")
    for k in range(8):
        s_, t = k >> 1, k & 1
        A(f"s_waitcnt lgkmcnt({7-k})")
        for mt in range(3):
            c = vr(8 + 4*t, 4) if s_ == 0 else vr(AC(t, mt), 4)
            A(f"v_mfma_f32_16x16x32_bf16 {vr(AC(t,mt),4)}, {vr(WL+4*k,4)}, {vr(XF+(mt*4+s_)*4,4)}, {c}")
    A(f"s_mov_b32 s{T1}, {hex(WS_PF - 8192)}")
    A(f"s_cmp_lt_u32 s{SWV}, 12")
    A(f"s_cselect_b32 s{SRND}, s{T1}, 0x7ff00000")
    if not PLATE: A(f"buffer_load_dword v{VA}, v{VT16}, {sr(SW,4)}, s{SRND} offen sc1")
    for k in range(8):
        A(f"s_mov_b64 {sr(MK[k],2)}, 0")
    for mt in range(3):
        for t in range(2):
            d = 48 + (mt*2 + t) * 4
            for i in range(4):
                A(f"v_mul_f32 v{d+i}, s{SC}, v{AC(t,mt)+PI[i]}")
            if mt == 2:
                A(f"s_mov_b64 exec, {sr(SQM,2)}")
            A(f"ds_write_b128 v{VPA}, {vr(d,4)} offset:{16*mt*QROW + 16*t}")
            if mt == 2:
                A("s_mov_b64 exec, -1")
    stamp(6)
    A(f"v_and_b32 v{VC}, 15, v1")
    A(f"v_lshrrev_b32 v{VG}, 4, v1")
    A(f"v_mov_b32 v{PZ}, 0")
    A(f"v_mov_b32 v{PZ+1}, 0")
    A(f"v_mov_b32 v{VP}, s{SW2}")
    A(f"v_mov_b32 v{VDEG}, 0")
    A(f"v_mov_b32 v{OUTA}, 0")
    A(f"s_cmp_ge_u32 s{SWV}, 12")
    A("s_cbranch_scc1 K_B3")
    A(f"s_movk_i32 s{T0}, {512 + NB}")
    A(f"v_cmp_gt_u32 {sr(TP,2)}, s{T0}, v0")
    if PLATE:
        await_lds(L_GC + 12, 4, 12, T3, slp=2)
        await_lds(L_GC + (20 if PLATE == 2 else 16), 8, 12, T3, slp=2)
        if PLATE > 2: A(f"s_sleep {PLATE}")
        A(f"buffer_load_dword v{VA}, v{VT16}, {sr(SW,4)}, s{SRND} offen sc1")
    A(f"s_mov_b32 s{SSP}, {SPIN}")
    L("K_PFL")
    A("s_waitcnt vmcnt(0)")
    A(f"v_cmp_ne_u32 vcc, s{STOK}, v{VA}")
    A(f"s_and_b64 vcc, vcc, {sr(TP,2)}")
    A("s_cbranch_scc0 K_B3")
    A(f"s_sub_u32 s{SSP}, s{SSP}, 1")
    A("s_cbranch_scc1 K_B3")
    A("s_mov_b64 exec, vcc")
    if SLP_F: A(f"s_sleep {SLP_F}")
    A(f"buffer_load_dword v{VA}, v{VT16}, {sr(SW,4)}, s{SRND} offen sc1")
    A("s_mov_b64 exec, -1")
    A("s_branch K_PFL")

    L("K_AUX")
    A(f"s_cmp_lg_u32 s{SWV}, 0")
    A("s_cbranch_scc1 K_AUX1")
    ED, ES, EE, RKB, BN4, RCB = 48, 58, 68, 74, 84, 96
    A("v_lshlrev_b32 v12, 3, v1")
    A(f"s_mul_i32 s{T0}, s2, {CH*4}")
    A(f"s_mul_i32 s{T1}, s2, {CH*2}")
    A("s_waitcnt lgkmcnt(0)")
    srd(SX, PDST, CH * 4, f"s{T0}")
    for k in range(5):
        A(f"buffer_load_dwordx2 {vr(ED+2*k,2)}, v12, {sr(SX,4)}, 0 offen offset:{512*k}")
    srd(SY, PSRC, CH * 4, f"s{T0}")
    for k in range(5):
        A(f"buffer_load_dwordx2 {vr(ES+2*k,2)}, v12, {sr(SY,4)}, 0 offen offset:{512*k}")
    srd(SZ, PE, CH * 2, f"s{T1}")
    for k in range(5):
        A(f"buffer_load_dword v{EE+k}, v2, {sr(SZ,4)}, 0 offen offset:{256*k}")
    A("s_barrier")
    A("s_setprio 3")
    common_setup()
    srd(SO, PDBG, 256)
    A(f"s_movk_i32 s{T1}, {-NPB}")
    for j in range(10):
        if j % 2 == 0:
            A(f"s_waitcnt vmcnt({14 - j//2})")
            if j == 0:
                A(f"buffer_load_dword v33, v{VZ}, {sr(SO,4)}, 0 offen sc1")
        A(f"v_mul_u32_u24 v14, 0xcccd, v{ED+j}")
        A("v_lshrrev_b32 v14, 21, v14")
        A(f"v_lshlrev_b32 v{BN4+j}, 2, v14")
        A(f"ds_add_rtn_u32 v{RKB+j}, v{BN4+j}, v{VONE} offset:{L_HIST}")
        A(f"v_mad_i32_i24 v{ED+j}, v14, s{T1}, v{ED+j}")
    HC_, HB_ = 16, 20
    A(f"ds_read_b128 {vr(HC_,4)}, v{VL16} offset:{L_HIST}")
    A("s_waitcnt vmcnt(1)")
    stamp(1)
    for j in range(10):
        if j % 2 == 0:
            A(f"v_lshlrev_b32 v14, 16, v{EE+j//2}")
        else:
            A(f"v_and_b32 v14, 0xffff0000, v{EE+j//2}")
        A(f"v_lshl_or_b32 v{RCB+2*j+1}, v{ED+j}, 2, v14")
    A("s_waitcnt lgkmcnt(0)")
    A(f"v_add_u32 v{HB_+2}, v{HC_}, v{HC_+1}")
    A(f"v_add_u32 v{HB_+3}, v{HB_+2}, v{HC_+2}")
    A(f"v_add_u32 v15, v{HB_+3}, v{HC_+3}")
    A("s_nop 1")
    A(f"v_add_u32_dpp v{HB_}, v15, v15 row_shr:1 row_mask:0xf bank_mask:0xf bound_ctrl:0")
    for ctl in SCAN:
        A("s_nop 1")
        A(f"v_add_u32_dpp v{HB_}, v{HB_}, v{HB_} {ctl}")
    A(f"v_sub_u32 v{HB_}, v{HB_}, v15")
    A(f"v_add_u32 v{HB_+1}, v{HB_}, v{HC_}")
    A(f"v_add_u32 v{HB_+2}, v{HB_}, v{HB_+2}")
    A(f"v_add_u32 v{HB_+3}, v{HB_}, v{HB_+3}")
    A(f"ds_write_b128 v{VL16}, {vr(HB_,4)} offset:{L_HIST}")
    for j in range(10):
        A(f"ds_read_b32 v{ED+j}, v{BN4+j} offset:{L_HIST}")
    for k in range(4):
        A(f"v_lshl_or_b32 v{25+2*k}, v{HC_+k}, 16, v{HB_+k}")
    A(f"v_lshlrev_b32 v32, 1, v{VL16}")
    A(f"s_mov_b32 s{SSP}, {SPIN}")
    A("s_waitcnt vmcnt(0)")
    L("K_TOK")
    A(f"v_readfirstlane_b32 s{STOK}, v33")
    A(f"s_cmp_lg_u32 s{STOK}, 0")
    A("s_cbranch_scc1 K_TOKOK")
    A(f"s_sub_u32 s{SSP}, s{SSP}, 1")
    A("s_cbranch_scc1 K_END")
    A(f"buffer_load_dword v33, v{VZ}, {sr(SO,4)}, 0 offen sc1")
    A("s_waitcnt vmcnt(0)")
    A("s_branch K_TOK")
    L("K_TOKOK")
    A(f"s_lshl_b32 s{T0}, s{STOK}, 13")
    A(f"s_and_b32 s{T0}, s{T0}, 0xffffc000")
    A(f"s_lshl_b32 s{T3}, s2, 11")
    A(f"s_add_u32 s{T3}, s{T3}, {hex(WS_OFS)}")
    for k in range(4):
        A(f"v_mov_b32 v{24+2*k}, s{STOK}")
    A(f"buffer_store_dwordx4 v[24:27], v32, {sr(SW,4)}, s{T3} offen sc1")
    A(f"buffer_store_dwordx4 v[28:31], v32, {sr(SW,4)}, s{T3} offen offset:16 sc1")
    A("s_waitcnt lgkmcnt(0)")
    for j in range(10):
        A(f"v_or_b32 v{RCB+2*j}, s{T0}, v{ES+j}")
        A(f"v_add_lshl_u32 v{ED+j}, v{ED+j}, v{RKB+j}, 3")
        A(f"ds_write_b64 v{ED+j}, {vr(RCB+2*j,2)} offset:{L_SB}")
    for k in range(5):
        A(f"ds_read_b128 {vr(60+4*k,4)}, v{VL16} offset:{L_SB + 1024*k}")
    A(f"s_mul_i32 s{T0}, s2, {CH*8}")
    A(f"s_add_u32 s{T0}, s{T0}, {hex(WS_REC)}")
    A(f"s_add_u32 s{T1}, s{T0}, 4096")
    for k in range(5):
        A(f"s_waitcnt lgkmcnt({4-k})")
        A(f"buffer_store_dwordx4 {vr(60+4*k,4)}, v{VL16}, {sr(SW,4)}, s{T0 + k//4} offen offset:{1024*(k%4)} sc1")
    A(f"ds_write_b32 v{VZ}, v33 offset:{L_TOK}")
    A("s_setprio 0")
    stamp(2)
    A("s_branch K_AUXP")
    L("K_AUX1")
    for k in range(4):
        A(f"v_xor_b32 v{51+k}, v{VG}, v{VC}")
        if k: A(f"v_xor_b32 v{51+k}, {4*k}, v{51+k}")
        A(f"v_lshlrev_b32 v{51+k}, 4, v{51+k}")
        A(f"v_lshl_add_u32 v{51+k}, v{VG}, 8, v{51+k}")
    A(f"s_sub_u32 s{T0}, s{SWV}, 1")
    A(f"s_lshl_b32 s{T0}, s{T0}, 12")
    A(f"s_lshl_b32 s{T2}, s{SN80}, 8")
    A(f"s_add_u32 s{T2}, s{T2}, s{T0}")
    A(f"s_add_u32 s{T0}, s{T0}, {L_XT}")
    A(f"s_mov_b32 m0, s{T0}")
    A("s_waitcnt lgkmcnt(0)")
    A(f"s_cmp_ge_u32 s{SWV}, 6")
    A("s_cbranch_scc1 K_NOX")
    srd(SX, PX, N * 256)
    for k in range(4):
        A(f"buffer_load_dwordx4 v{51+k}, {sr(SX,4)}, s{T2} offen offset:{1024*k} lds")
    L("K_NOX")
    A(f"s_xor_b32 s{T0}, s{SWV}, 7")
    A(f"s_or_b32 s{T0}, s{T0}, s2")
    A("s_cbranch_scc1 K_NOTOK")
    srd(SO, PDBG, 256)
    A("s_or_b32 s26, s26, 1")
    A("v_mov_b32 v59, s26")
    A(f"buffer_store_dword v59, v2, {sr(SO,4)}, 0 offen sc1")
    L("K_NOTOK")
    A("s_barrier")
    common_setup()
    A(f"s_cmp_lt_u32 s{SWV}, 4")
    A("s_cbranch_scc1 K_NOCV")
    A("v_and_b32 v63, 3, v0")
    A("v_lshlrev_b32 v63, 2, v63")
    A("v_mov_b32 v64, 0x2031")
    A("v_bfe_u32 v65, v64, v63, 4")
    A("v_bfe_u32 v64, v0, 2, 2")
    A(f"v_lshl_add_u32 v64, v{VG}, 5, v64")
    A("v_bfe_u32 v66, v0, 6, 1")
    A("v_lshl_add_u32 v64, v66, 2, v64")
    A("v_bfe_u32 v66, v0, 7, 1")
    A("v_lshl_add_u32 v64, v66, 7, v64")
    A("v_lshl_add_u32 v65, v65, 3, v64")
    A("v_lshl_add_u32 v64, v63, 1, v64")
    A("v_lshlrev_b32 v65, 1, v65")
    A("v_lshlrev_b32 v64, 1, v64")
    A("v_and_b32 v66, 0xff, v0")
    A("v_lshlrev_b32 v67, 1, v66")
    A("v_lshlrev_b32 v66, 2, v66")
    srd(SY, PW1, 257 * 512)
    A(f"s_mov_b32 s{T0}, {256*512}")
    A(f"buffer_load_ushort v20, v65, {sr(SY,4)}, s{T0} offen")
    srd(SX, PB1, 512)
    A(f"buffer_load_ushort v21, v64, {sr(SX,4)}, 0 offen")
    srd(SX, PB2, 256)
    A(f"buffer_load_ushort v22, v67, {sr(SX,4)}, 0 offen")
    A(f"s_cmp_ge_u32 s{SWV}, 6")
    A("s_cbranch_scc1 K_CV1")
    A("s_waitcnt vmcnt(3)")
    arrive(0)
    L("K_CV1")
    A(f"s_cmp_lg_u32 s{SWV}, 7")
    A("s_cbranch_scc1 K_CV1B")
    A("s_cmp_ge_u32 s2, 64")
    A("s_cbranch_scc1 K_CV1B")
    A(f"s_bfe_u32 s{T0}, s2, 0x10002")
    A(f"s_lshl_b32 s{T0}, s{T0}, 15")
    A(f"s_and_b32 s{T1}, s2, 1")
    A(f"s_lshl_b32 s{T1}, s{T1}, 14")
    A(f"s_add_u32 s{T0}, s{T0}, s{T1}")
    A(f"s_bfe_u32 s{T1}, s2, 0x10001")
    A(f"s_lshl_b32 s{T1}, s{T1}, 10")
    A(f"s_add_u32 s{T0}, s{T0}, s{T1}")
    A(f"s_lshr_b32 s{T1}, s2, 3")
    A(f"s_lshl_b32 s{T1}, s{T1}, 5")
    A(f"s_add_u32 s{T0}, s{T0}, s{T1}")
    A(f"s_add_u32 s{T1}, s{T0}, 4096")
    A(f"v_lshrrev_b32 v24, 1, v{VG}")
    A("v_lshlrev_b32 v24, 13, v24")
    A(f"v_and_b32 v25, 1, v{VG}")
    A("v_lshl_add_u32 v24, v25, 9, v24")
    A(f"v_lshl_add_u32 v24, v{VC}, 1, v24")
    srd(SX, PW2, 256 * 256)
    for jj in range(8):
        p = PI[jj & 3]
        A(f"buffer_load_ushort v{72+jj}, v24, {sr(SX,4)}, s{T0 if p < 2 else T1} offen offset:{(p&1)*2048 + (jj>>2)*256}")
    A(f"s_lshl_b32 s{T0}, s2, 10")
    A(f"s_add_u32 s{T0}, s{T0}, {hex(WS_W2F)}")
    A("s_waitcnt vmcnt(0)")
    for k in range(4):
        A(f"v_lshl_or_b32 v{80+k}, v{73+2*k}, 16, v{72+2*k}")
    A(f"buffer_store_dwordx4 v[80:83], v{VL16}, {sr(SW,4)}, s{T0} offen sc1")
    L("K_CV1B")
    A("s_waitcnt vmcnt(0)")
    for k in range(3):
        A(f"v_lshlrev_b32 v{20+k}, 16, v{20+k}")
    A(f"v_mul_f32 v20, s{SC}, v20")
    A(f"ds_write_b32 v66, v21 offset:{L_CV+1024}")
    A(f"ds_write_b32 v66, v20 offset:{L_CV}")
    A(f"s_cmp_ge_u32 s{SWV}, 6")
    A("s_cbranch_scc1 K_CV2")
    A(f"ds_write_b32 v66, v22 offset:{L_CV+2048}")
    L("K_CV2")
    A("s_waitcnt lgkmcnt(0)")
    arrive(2)
    A(f"s_cmp_lg_u32 s{SWV}, 7")
    A("s_cbranch_scc1 K_AUXT")
    arrive(1)
    A("s_branch K_AUXT")
    L("K_NOCV")
    A("s_waitcnt vmcnt(0)")
    arrive(0)
    L("K_AUXT")
    L("K_AUXP")
    A("v_lshrrev_b32 v31, 1, v0")
    A("v_lshlrev_b32 v31, 11, v31")
    A(f"s_movk_i32 s{T3}, {2*NB}")
    A(f"v_cmp_gt_u32 {sr(SOWN,2)}, s{T3}, v0")
    A(f"v_cvt_f32_u32 v30, v1")
    A(f"v_rcp_f32 v30, v30")
    A(f"v_mov_b32 v{VP}, s{SW2}")
    A(f"v_mul_f32 v30, 0x47800000, v30")
    A(f"v_cvt_u32_f32 v30, v30")
    A(f"v_add_u32 v30, 1, v30")
    await_lds(L_TOK, 0, 33, STOK, nonzero=True, slp=4)
    A(f"s_bfe_u32 s{STAG}, s{STOK}, 0x120001")
    if PD0: A(f"s_sleep {PD0}")
    L("K_REC0")
    A(f"s_mov_b32 s{SSP}, {SPIN}")
    A(f"s_mov_b64 vcc, {sr(SOWN,2)}")
    L("K_OFS")
    A("s_mov_b64 exec, vcc")
    A(f"buffer_load_dwordx2 {vr(GRT,2)}, v31, {sr(SW,4)}, s{SB8} offen sc1")
    A("s_mov_b64 exec, -1")
    L("K_OFS1")
    A("s_waitcnt vmcnt(0)")
    A(f"v_cmp_ne_u32 vcc, s{STOK}, v{GRT}")
    A(f"s_and_b64 vcc, vcc, {sr(SOWN,2)}")
    A("s_cbranch_scc0 K_OFSOK")
    A(f"s_sub_u32 s{SSP}, s{SSP}, 1")
    A("s_cbranch_scc1 K_END")
    A(f"s_sleep {SLP_N}")
    A("s_branch K_OFS")
    L("K_OFSOK")
    stamp(5)
    A(f"v_lshrrev_b32 v{GRT}, 16, v{GRT+1}")
    A(f"v_and_b32 v{GRT+1}, 0xffff, v{GRT+1}")
    A(f"v_cndmask_b32 v{GRT}, 0, v{GRT}, {sr(SOWN,2)}")
    A("v_lshrrev_b32 v32, 1, v0")
    A(f"s_movk_i32 s{T0}, {CH}")
    A(f"v_mad_u32_u24 v{GRT+1}, v32, s{T0}, v{GRT+1}")
    A("v_and_b32 v32, 1, v0")
    A("v_lshlrev_b32 v32, 1, v32")
    A(f"v_add_lshl_u32 v{PZ+1}, v{GRT+1}, v32, 3")
    A(f"v_sub_i32 v{PZ}, v{GRT}, v32")
    A(f"v_mov_b32 v{VDEG}, 0")
    A(f"v_mov_b32 v{OUTA}, 0")
    L("K_RECS")
    A(f"s_mov_b32 s{T0}, {hex(WS_REC)}")
    for k in range(8):
        A(f"v_cmp_lt_i32 {sr(MK[k],2)}, {4*(k>>1) + (k&1)}, v{PZ}")
    A(f"v_cmp_lt_i32 vcc, 16, v{PZ}")
    A("v_mov_b32 v88, 4")
    A("v_mov_b32 v89, 0")
    A("v_mov_b32 v90, 1")
    A("s_cbranch_vccz K_RM")
    A(f"ds_write_b32 v89, v90 offset:{L_FLAG}")
    L("K_RM")
    A(f"s_mov_b32 s{SSP}, {SPIN}")
    L("K_RLD")
    for k in range(4):
        A(f"s_mov_b64 exec, {sr(MK[2*k],2)}")
        A("s_cbranch_execz K_RL")
        A(f"buffer_load_dwordx4 {vr(RC+4*k,4)}, v{PZ+1}, {sr(SW,4)}, s{T0} offen offset:{32*k} sc1")
    L("K_RL")
    A("s_mov_b64 exec, -1")
    L("K_NOU")
    A(f"s_mov_b64 {sr(TP,2)}, 0")
    A("s_waitcnt vmcnt(0)")
    for k in range(8):
        A(f"s_mov_b64 exec, {sr(MK[k],2)}")
        A("s_cbranch_execz K_RV")
        A(f"v_lshrrev_b32 v91, 14, v{RC+2*k}")
        A(f"v_cmp_ne_u32 vcc, s{STAG}, v91")
        A(f"s_or_b64 {sr(TP,2)}, {sr(TP,2)}, vcc")
    L("K_RV")
    A("s_mov_b64 exec, -1")
    A(f"s_cmp_eq_u64 {sr(TP,2)}, 0")
    A("s_cbranch_scc1 K_RVOK")
    A(f"s_sub_u32 s{SSP}, s{SSP}, 1")
    A("s_cbranch_scc1 K_END")
    A(f"s_sleep {SLP_N}")
    A("s_branch K_RLD")
    L("K_RVOK")
    stamp(6)
    NL, RK, PS = 64, 72, 80
    A(f"s_mov_b32 s{T1}, {hex(FBASE)}")
    for k in range(8):
        A(f"s_mov_b64 exec, {sr(MK[k],2)}")
        A("s_cbranch_execz K_R1")
        A(f"v_and_b32 v{NL+k}, 0xfc, v{RC+2*k+1}")
        A(f"ds_add_rtn_u32 v{RK+k}, v{NL+k}, v88")
        A(f"v_and_b32 v{RC+2*k}, 0x3fff, v{RC+2*k}")
        A(f"v_lshl_or_b32 v{RC+2*k}, v{RC+2*k}, 9, s{T1}")
    L("K_R1")
    A("s_mov_b64 exec, 1")
    A("s_waitcnt lgkmcnt(0)")
    A(f"ds_add_u32 v89, v90 offset:{L_GC+16}")
    A("s_mov_b64 exec, -1")
    A(f"v_mov_b32 v{VZ}, 0")
    await_lds(L_GC + 16, 8, 91, T0)
    stamp(7)
    def scan_and_decide(tag, with_perm):
        A(f"ds_read_b32 v{VCNT}, v2")
        A(f"ds_read_b32 v91, v89 offset:{L_FLAG}")
        A("s_waitcnt lgkmcnt(1)")
        A(f"v_add_u32_dpp v{VEND}, v{VCNT}, v{VCNT} row_shr:1 row_mask:0xf bank_mask:0xf bound_ctrl:0")
        A(f"v_add_u32 v{VDEG}, v{VDEG}, v{VCNT}")
        for k, ctl in enumerate(SCAN):
            A("s_nop 0" if k == 0 else "s_nop 1")
            A(f"v_add_u32_dpp v{VEND}, v{VEND}, v{VEND} {ctl}")
        A(f"v_sub_u32 v{VB4}, v{VEND}, v{VCNT}")
        A("s_waitcnt lgkmcnt(0)")
        A(f"v_readlane_b32 s{STOT}, v{VEND}, 63")
        if with_perm:
            for k in range(8):
                A(f"s_cmp_eq_u64 {sr(MK[k],2)}, 0")
                A(f"s_cbranch_scc1 K_R2{tag}")
                A(f"ds_bpermute_b32 v{PS+k}, v{NL+k}, v{VB4}")
            L(f"K_R2{tag}")
        A(f"v_readfirstlane_b32 s{SLP}, v91")
        A(f"s_add_u32 s{T1}, s{STOT}, 60")
        A(f"s_lshr_b32 s{SLEN}, s{T1}, 6")
        A(f"s_lshl_b32 s{T1}, s{SLEN}, 2")
        A(f"s_add_u32 s{T2}, s{T1}, 4")
        A(f"v_cmp_lt_u32 vcc, s{T2}, v{VCNT}")
        A(f"s_and_b32 s{T3}, s{SLEN}, 63")
        if with_perm:
            A(f"v_readlane_b32 s{T0}, v30, s{T3}")
        A(f"s_andn2_b32 s{SFAST}, s{SFIRST}, s{SMODE}")
        A(f"s_andn2_b32 s{SFAST}, s{SFAST}, s{SLP}")
        A(f"s_cmp_gt_u32 s{STOT}, {4*WIN}")
        A(f"s_cselect_b32 s{SFAST}, 0, s{SFAST}")
        A(f"s_sub_u32 s{T1}, {PRIV_B}, s{T1}")
        A("s_cmp_lg_u64 vcc, 0")
        A(f"s_cselect_b32 s{SFAST}, 0, s{SFAST}")
    scan_and_decide("a", True)
    A(f"v_mov_b32 v92, s{SFAST}")
    A(f"ds_write_b32 v89, v92 offset:{L_FLAG+12}")
    A(f"s_cmp_eq_u32 s{SFAST}, 0")
    A("s_waitcnt lgkmcnt(0)")
    A("s_cbranch_scc1 K_WL")
    for k in range(8):
        A(f"s_mov_b64 exec, {sr(MK[k],2)}")
        A("s_cbranch_execz K_WB")
        A(f"v_add_u32 v{PS+k}, v{PS+k}, v{RK+k}")
        A(f"v_mul_u32_u24 v{RK+k}, s{T0}, v{PS+k}")
        A(f"v_lshrrev_b32 v{RK+k}, 18, v{RK+k}")
        A(f"v_mad_u32_u24 v{PS+k}, v{RK+k}, s{T1}, v{PS+k}")
        A(f"ds_write_b32 v{PS+k}, v{RC+2*k} offset:{L_PRIV}")
        A(f"ds_write_b32 v{PS+k}, v{RC+2*k+1} offset:{L_PRIV + PRIV_N*4}")
    L("K_WB")
    A("s_mov_b64 exec, 1")
    A(f"ds_add_u32 v89, v90 offset:{L_GC+20}")
    A("s_mov_b64 exec, -1")
    L("K_B3")
    A(f"s_mov_b32 s{SW2}, 1")
    A("v_mov_b32 v89, 0")
    A("s_waitcnt vmcnt(0) lgkmcnt(0)")
    A("s_barrier")
    stamp(8)
    def row_load(d, p, pair=False):
        if not pair:
            A(f"v_add_u32 v{p}, v{p}, v2")
        A(f"buffer_load_dword v{d}, v{p}, {sr(ST,4)}, 0 offen sc1")
        A(f"buffer_load_dword v{d+1}, v{p}, {sr(ST,4)}, 0 offen offset:256 sc1")
    TI = 16
    A(f"ds_read_b32 v92, v89 offset:{L_FLAG+12}")
    for k in range(R // 4):
        A(f"ds_read_b128 {vr(TI+4*k,4)}, v{VP} offset:{16*k}")
    A(f"ds_read_b128 {vr(W,4)}, v{VL16} offset:{L_CV}")
    A("s_waitcnt lgkmcnt(2)")
    A(f"v_readfirstlane_b32 s{T0}, v92")
    A(f"s_cmp_eq_u32 s{T0}, 0")
    A("s_cbranch_scc1 K_R3")
    for k in range(F1):
        if k == 4: A("s_waitcnt lgkmcnt(1)")
        row_load(DAT + 2*k, TI + k)
    L("K_R3")
    A(f"s_cmp_lt_u32 s{SWV}, 8")
    A("s_cbranch_scc1 K_R4")
    scan_and_decide("g", False)
    L("K_R4")
    A(f"s_cmp_eq_u32 s{SFAST}, 0")
    A("s_cbranch_scc1 K_SLOW")
    A(f"v_add_u32 v{Q+3}, v{VP}, v2")
    A(f"ds_read_b32 v{Q}, v{Q+3} offset:{PRIV_N*4}")
    for k in range(R // 4):
        A(f"ds_read_b128 {vr(EV+4*k,4)}, v{VP} offset:{PRIV_N*4 + 16*k}")
    A(f"ds_read_b128 {vr(OG[0],4)}, v{VP} offset:{R*4}")
    A(f"s_mul_i32 s{T0}, s{SLEN}, s{SWV}")
    A(f"s_add_u32 s{T3}, s{T0}, s{SLEN}")
    A(f"s_lshl_b32 s{T0}, s{T0}, 2")
    A(f"s_lshl_b32 s{T3}, s{T3}, 2")
    A(f"s_min_u32 s{T0}, s{T0}, s{STOT}")
    A(f"s_min_u32 s{T3}, s{T3}, s{STOT}")
    A(f"s_sub_u32 s{SNN}, s{T3}, s{T0}")
    A(f"s_lshr_b32 s{SNN}, s{SNN}, 2")
    A(f"v_cmp_gt_u32 vcc, s{T0}, v{VB4}")
    A(f"v_cmp_lt_u32 {sr(TP,2)}, s{T0}, v{VEND}")
    A(f"s_and_b64 vcc, vcc, {sr(TP,2)}")
    A(f"s_cselect_b32 s{SLP}, 1, 0")
    A(f"v_cmp_gt_u32 vcc, s{T3}, v{VB4}")
    A(f"v_cmp_lt_u32 {sr(TP,2)}, s{T3}, v{VEND}")
    A(f"s_and_b64 vcc, vcc, {sr(TP,2)}")
    A(f"s_cselect_b32 s{STAIL}, 1, 0")
    A(f"v_cmp_le_u32 vcc, s{SNN}, v1")
    A(f"s_movk_i32 s{T2}, {QROW//4}")
    A(f"s_movk_i32 s{T3}, {HROW//4}")
    A(f"s_mov_b32 s{SREM}, s{SNN}")
    A("s_waitcnt lgkmcnt(0)")
    A(f"v_and_b32 v{Z2}, 0xfc, v{EV}")
    A(f"v_and_b32 v{Q+1}, 0xfc, v{Q}")
    A(f"v_mad_u32_u24 v{Z2+1}, v{Z2}, s{T2}, v{VQ16}")
    A("s_setprio 3")
    A(f"v_mov_b32_dpp v{Q+2}, v{Q+1} wave_shr:1 row_mask:0xf bank_mask:0xf")
    A(f"v_cmp_ne_u32 {sr(SM,2)}, v{Q+1}, v{Q+2}")
    A(f"ds_read_b128 {vr(Q,4)}, v{Z2+1}")
    A(f"s_or_b64 {sr(SM,2)}, {sr(SM,2)}, vcc")
    for k in range(4):
        A(f"v_add_u32 v{OG[0]+k}, v{OG[0]+k}, v2")
    def tail_prep():
        A(f"v_lshlrev_b32 v{Z+1}, 2, v{VC}")
        A(f"v_lshlrev_b32 v{Z+2}, 4, v{VG}")
        for mt in range(3):
            A(f"v_add_u32 v{T+3}, {64*mt}, v{Z+1}")
            A(f"ds_bpermute_b32 v{T+mt}, v{T+3}, v{VDEG}")
        A(f"s_lshl_b32 s{T0}, s{SWV}, 6")
        A(f"v_add_u32 v{Z+3}, s{T0}, v{Z+2}")
        A(f"ds_read_b128 {vr(B2F,4)}, v{Z+3} offset:{L_CV+2048}")
        A(f"s_movk_i32 s{T1}, {HROW}")
        A(f"v_mad_u32_u24 v{AD}, v{VC}, s{T1}, v{Z+2}")
        A(f"v_lshlrev_b32 v{OUTA}, 8, v{VC}")
        A(f"v_lshl_add_u32 v{OUTA}, v{VG}, 3, v{OUTA}")
        A(f"v_add_u32 v{Z+2}, {L_ZROW}, v{Z+2}")
        A(f"v_add_u32 v{AD+2}, {L_H + 32*HROW}, v{AD}")
        A(f"v_add_u32 v{AD+1}, {L_H + 16*HROW}, v{AD}")
        A(f"v_add_u32 v{AD}, {L_H}, v{AD}")
        A("s_waitcnt lgkmcnt(0)")
        for mt in range(3):
            A(f"v_cmp_eq_u32 vcc, 0, v{T+mt}")
            A(f"v_cvt_f32_u32 v{T+mt}, v{T+mt}")
            A(f"v_mul_f32 v{T+mt}, 0x3e800000, v{T+mt}")
            A(f"v_cndmask_b32 v{AD+mt}, v{AD+mt}, v{Z+2}, vcc")
            sel = "op_sel_hi:[1,0]" if mt % 2 == 0 else "op_sel:[0,1]"
            A(f"v_pk_mul_f32 {vr(OV+4*mt,2)}, {vr(B2F,2)}, {vr(T+(mt&2),2)} {sel}")
            A(f"v_pk_mul_f32 {vr(OV+4*mt+2,2)}, {vr(B2F+2,2)}, {vr(T+(mt&2),2)} {sel}")
    def w2_load():
        A(f"s_mov_b32 s{SW2}, 0")
        A(f"s_lshl_b32 s{T0}, s{SWV}, 13")
        A(f"s_add_u32 s{T0}, s{T0}, {hex(WS_W2F)}")
        A(f"s_add_u32 s{T1}, s{T0}, 4096")
        for k in range(8):
            A(f"buffer_load_dwordx4 {vr(W2R+4*k,4)}, v{VL16}, {sr(SW,4)}, s{T0 + k//4} offen offset:{(k%4)*1024} sc1")
    A(f"s_cmp_ge_u32 s{SWV}, 8")
    A("s_cbranch_scc1 K_NOTP")
    tail_prep()
    L("K_NOTP")
    for k in range(F1, R):
        row_load(DAT + 2*k, TI + k)
    A(f"v_mov_b32 v{LO}, v{Z2}")
    A(f"v_mov_b32 v{PZ}, 0")
    A(f"v_mov_b32 v{PZ+1}, 0")
    VW = 2 * (R - 1)
    if STAMP:
        A(f"s_waitcnt vmcnt({VW})")
        stamp(9)
    A(f"s_cmp_eq_u32 s{SNN}, 0")
    A("s_cbranch_scc1 K_WDONE")
    A("s_branch K_HC0")

    def e_sel(s):
        base = EV + (s & ~1)
        return (vr(base, 2), "op_sel_hi:[1,0,1]") if s % 2 == 0 else (vr(base, 2), "op_sel:[0,1,0]")
    def part_z1(s, z):
        ep, es = e_sel(s)
        return [f"v_pk_fma_f32 {vr(z,2)}, {vr(W,2)}, {ep}, {vr(Q,2)} {es}",
                f"v_pk_fma_f32 {vr(z+2,2)}, {vr(W+2,2)}, {ep}, {vr(Q+2,2)} {es}"]
    def part_z2(s, z, zo=None, lo=LO):
        d = DAT + 2*s
        zo = z if zo is None else zo
        return [f"v_lshlrev_b64 {vr(lo,2)}, 16, {vr(d,2)}",
                f"v_pk_fma_f32 {vr(zo,2)}, {vr(d,2)}, {C2}, {vr(z,2)}",
                f"v_pk_fma_f32 {vr(zo+2,2)}, {vr(lo,2)}, {C2}, {vr(z+2,2)}"]
    def part_exp(z): return [f"v_exp_f32 v{T+k}, v{z+k}" for k in range(4)]
    def part_nd(z):
        return [f"v_pk_fma_f32 {vr(NN,2)}, {vr(NN,2)}, {vr(T,2)}, {vr(NN,2)}",
                f"v_pk_fma_f32 {vr(NN+2,2)}, {vr(NN+2,2)}, {vr(T+2,2)}, {vr(NN+2,2)}",
                f"v_pk_fma_f32 {vr(NN,2)}, {vr(z,2)}, {vr(DD,2)}, {vr(NN,2)}",
                f"v_pk_fma_f32 {vr(NN+2,2)}, {vr(z+2,2)}, {vr(DD+2,2)}, {vr(NN+2,2)}",
                f"v_pk_fma_f32 {vr(DD,2)}, {vr(DD,2)}, {vr(T,2)}, {vr(DD,2)}",
                f"v_pk_fma_f32 {vr(DD+2,2)}, {vr(DD+2,2)}, {vr(T+2,2)}, {vr(DD+2,2)}"]
    def addr_prep(k):
        A("s_waitcnt lgkmcnt(0)")
        A(f"v_pk_add_f32 {vr(OG[k],2)}, {vr(OG[k],2)}, v[2:3] op_sel:[0,1]")
        A(f"v_pk_add_f32 {vr(OG[k]+2,2)}, {vr(OG[k]+2,2)}, v[2:3] op_sel:[0,1]")
    def refill(s):
        og = OG[(s // 4) % 2]
        if s % 4 == 0:
            A(f"ds_read_b128 {vr(OG[(s//4+1)%2],4)}, v{VP} offset:{(R+s+4)*4}")
        row_load(DAT + 2*s, og + s % 4, pair=True)
        if s % 4 == 3:
            addr_prep((s // 4 + 1) % 2)
            A(f"ds_read_b128 {vr(EV+s-3,4)}, v{VP} offset:{PRIV_N*4 + (R+s-3)*4}")
    L("K_LOOP")
    for g in range(R // 4):
        L(f"K_G{g}")
        A(f"s_and_b32 s{T0}, s{SM}, {hex(0xF << (4*g))}")
        A(f"s_cbranch_scc1 K_S{4*g}")
        zz = [Z, Z2]
        s0 = 4*g
        for x in part_z1(s0, zz[0]): A(x)
        A(f"s_waitcnt vmcnt({VW})")
        for x in part_z2(s0, zz[0]): A(x)
        refill(s0)
        for k in range(4):
            s = s0 + k
            z, zn = zz[k % 2], zz[(k + 1) % 2]
            ex, nd = part_exp(z), part_nd(z)
            if k < 3:
                a, b = part_z1(s + 1, zn), part_z2(s + 1, zn)
                A(ex[0]); A(a[0]); A(ex[1]); A(a[1]); A(ex[2])
                A(f"s_waitcnt vmcnt({VW})")
                A(b[0]); A(ex[3]); A(nd[0]); A(b[1]); A(nd[1]); A(nd[2]); A(b[2]); A(nd[3])
                refill(s + 1)
                A(nd[4]); A(nd[5])
            else:
                for x in ex + nd: A(x)
    L("K_PEND")
    A(f"v_add_u32 v{VP}, {R*4}, v{VP}")
    A(f"s_lshr_b64 {sr(SM,2)}, {sr(SM,2)}, {R}")
    A(f"s_sub_u32 s{SREM}, s{SREM}, {R}")
    for thr, p in PRIO_T:
        A(f"s_cmp_gt_u32 s{SREM}, {thr}")
        A("s_cbranch_scc1 K_LOOP")
        A(f"s_setprio {p}")
    A(f"s_cmp_ge_u32 s{SWV}, 8")
    A("s_cbranch_scc1 K_LOOP")
    A(f"s_cmp_eq_u32 s{SW2}, 0")
    A("s_cbranch_scc1 K_LOOP")
    w2_load()
    A("s_branch K_LOOP")
    for s in range(R):
        L(f"K_S{s}")
        A(f"s_bitcmp1_b32 s{SM}, {s}")
        A(f"s_cbranch_scc1 K_H{s}")
        for x in part_z1(s, Z): A(x)
        A(f"s_waitcnt vmcnt({VW})")
        for x in part_z2(s, Z) + part_exp(Z) + part_nd(Z): A(x)
        L(f"K_J{s}")
        refill(s)
        if s % 4 == 3:
            A(f"s_branch K_G{s//4+1}" if s + 1 < R else "s_branch K_PEND")
    def fold():
        for k in range(4):
            A(f"v_rcp_f32 v{T+k}, v{DD+k}")
        A(f"v_pk_fma_f32 {vr(PZ,2)}, {vr(DD,2)}, {vr(NN,2)}, {vr(PZ,2)}")
        A(f"v_pk_fma_f32 {vr(PZ,2)}, {vr(DD+2,2)}, {vr(NN+2,2)}, {vr(PZ,2)}")
        A(f"v_pk_mul_f32 {vr(Z,2)}, {vr(NN,2)}, {vr(T,2)}")
        A(f"v_pk_mul_f32 {vr(Z+2,2)}, {vr(NN+2,2)}, {vr(T+2,2)}")
    def lead_flush():
        A(f"v_add_u32 v{Z2}, s{SSIDE}, v{VL16}")
        A(f"s_lshl_b32 s{T0}, s{SWV}, 2")
        A(f"v_mov_b32 v{Z2+1}, s{T0}")
        A(f"v_mov_b32 v{Z2+2}, 1")
        A(f"ds_write_b128 v{Z2}, {vr(Z,4)}")
        A(f"ds_write_b32 v{Z2+1}, v{Z2+2} offset:{L_SFL}")
        A(f"s_mov_b32 s{SLP}, 0")
    for s in range(R):
        L(f"K_H{s}")
        A(f"s_cmp_eq_u32 s{SREM}, {s}")
        A("s_cbranch_scc1 K_LAST")
        A(f"v_and_b32 v{LO}, 0xfc, v{EV+s}")
        A(f"v_mad_u32_u24 v{LO+1}, v{LO}, s{T2}, v{VQ16}")
        A(f"ds_read_b128 {vr(Q,4)}, v{LO+1}")
        fold()
        A(f"s_cmp_lg_u32 s{SLP}, 0")
        A(f"s_cbranch_scc1 K_LS{s}")
        A(f"v_cvt_pk_bf16_f32 v{Z}, v{Z}, v{Z+1}")
        A(f"v_cvt_pk_bf16_f32 v{Z+1}, v{Z+2}, v{Z+3}")
        A(f"ds_write_b64 v{VA}, {vr(Z,2)}")
        L(f"K_HC{s}")
        A(f"v_mad_u32_u24 v{VA}, v{LO}, s{T3}, v{VH8}")
        A(f"s_waitcnt vmcnt({VW}) lgkmcnt(0)")
        for x in part_z1(s, Z) + part_z2(s, Z, NN) + part_exp(NN): A(x)
        A(f"v_pk_add_f32 {vr(DD,2)}, {vr(T,2)}, 1.0 op_sel_hi:[1,0]")
        A(f"v_pk_add_f32 {vr(DD+2,2)}, {vr(T+2,2)}, 1.0 op_sel_hi:[1,0]")
        A(f"s_branch K_J{s}")
        L(f"K_LS{s}")
        lead_flush()
        A(f"s_branch K_HC{s}")
    L("K_LAST")
    A(f"s_lshl_b32 s{T0}, s{SWV}, 2")
    A(f"v_mov_b32 v{LO}, s{T0}")
    A(f"v_add_u32 v{LO+1}, s{SSIDE}, v{VL16}")
    A(f"ds_read_b32 v{Z2}, v{LO} offset:{L_SFL+4}")
    A(f"ds_read_b128 {vr(Q,4)}, v{LO+1} offset:1024")
    fold()
    A(f"s_cmp_eq_u32 s{SLP}, 0")
    A("s_cbranch_scc1 K_L1")
    A("s_waitcnt lgkmcnt(0)")
    lead_flush()
    A("s_branch K_WDONE")
    L("K_L1")
    A(f"s_cmp_eq_u32 s{STAIL}, 0")
    A("s_cbranch_scc1 K_L3")
    A(f"s_mov_b32 s{SSP}, {SPIN}")
    L("K_L2")
    A("s_waitcnt lgkmcnt(0)")
    A(f"v_readfirstlane_b32 s{T0}, v{Z2}")
    A(f"s_cmp_lg_u32 s{T0}, 0")
    A("s_cbranch_scc1 K_L2B")
    A(f"s_sub_u32 s{SSP}, s{SSP}, 1")
    A("s_cbranch_scc1 K_L2B")
    A("s_sleep 2")
    A(f"ds_read_b32 v{Z2}, v{LO} offset:{L_SFL+4}")
    A(f"ds_read_b128 {vr(Q,4)}, v{LO+1} offset:1024")
    A("s_branch K_L2")
    L("K_L2B")
    A(f"v_pk_add_f32 {vr(Z,2)}, {vr(Z,2)}, {vr(Q,2)}")
    A(f"v_pk_add_f32 {vr(Z+2,2)}, {vr(Z+2,2)}, {vr(Q+2,2)}")
    L("K_L3")
    A(f"v_cvt_pk_bf16_f32 v{Z}, v{Z}, v{Z+1}")
    A(f"v_cvt_pk_bf16_f32 v{Z+1}, v{Z+2}, v{Z+3}")
    A(f"ds_write_b64 v{VA}, {vr(Z,2)}")
    L("K_WDONE")
    stamp(10)
    A(f"v_add_f32 v{T}, v{PZ}, v{PZ+1}")
    A(f"v_mov_b32 v{Z2+1}, 0x207")
    A(f"v_cmp_class_f32 vcc, v{T}, v{Z2+1}")
    A(f"v_mov_b32 v{Z2+2}, 0")
    A(f"s_mov_b32 s{TP}, {hex(C_NLN2)}")
    srd(SO, POUT, N * D * 2)
    A("s_cbranch_vccz K_NOG")
    A(f"ds_write_b32 v{Z2+2}, v{Z2+1} offset:{L_FLAG+8}")
    L("K_NOG")
    A(f"s_cmp_ge_u32 s{SWV}, 8")
    A("s_cbranch_scc1 K_B4")
    A(f"s_cmp_eq_u32 s{SW2}, 0")
    A("s_cbranch_scc1 K_B4")
    w2_load()
    L("K_B4")
    A("s_waitcnt vmcnt(0) lgkmcnt(0)")
    A("s_barrier")
    stamp(11)
    A(f"ds_read_b32 v{Z2+3}, v{Z2+2} offset:{L_FLAG+8}")
    A(f"s_cmp_ge_u32 s{SWV}, 8")
    A("s_cbranch_scc1 K_CHK")
    HB = [48 + 4*k for k in range(8)]
    ACC = [12, 16, 20]
    seq = [(mt, s) for mt in range(3) for s in range(8)]
    PRE = 7
    for k in range(PRE):
        mt, s = seq[k]
        A(f"ds_read_b128 {vr(HB[k%8],4)}, v{AD+mt} offset:{s*64}")
    def epi(mt):
        for r in range(4):
            A(f"v_fma_f32 v{OV+4*mt+r}, v{ACC[mt]+r}, s{TP}, v{OV+4*mt+r}")
        A(f"v_cvt_pk_bf16_f32 v{32+2*mt}, v{OV+4*mt}, v{OV+4*mt+1}")
        A(f"v_cvt_pk_bf16_f32 v{33+2*mt}, v{OV+4*mt+2}, v{OV+4*mt+3}")
    for k, (mt, s) in enumerate(seq):
        if k + PRE < 24:
            m2, s2 = seq[k+PRE]
            A(f"ds_read_b128 {vr(HB[(k+PRE)%8],4)}, v{AD+m2} offset:{s2*64}")
        A(f"s_waitcnt lgkmcnt({min(PRE, 23-k)})")
        c = "0" if s == 0 else vr(ACC[mt], 4)
        A(f"v_mfma_f32_16x16x32_bf16 {vr(ACC[mt],4)}, {vr(W2R+4*s,4)}, {vr(HB[k%8],4)}, {c}")
        if s == 4 and mt > 0:
            epi(mt - 1)
    A("s_nop 7")
    epi(2)
    L("K_CHK")
    A("s_waitcnt lgkmcnt(0)")
    A(f"v_readfirstlane_b32 s{T2}, v{Z2+3}")
    A(f"s_lshl_b32 s{T1}, s{SMODE}, 31")
    A(f"s_or_b32 s{T2}, s{T2}, s{T1}")
    A(f"s_cmp_gt_i32 s{T2}, 0")
    A("s_cbranch_scc1 K_REDO")
    A(f"s_cmp_ge_u32 s{SWV}, 8")
    A("s_cbranch_scc1 K_END2")
    A(f"s_add_u32 s{T2}, s{SOUT}, 4096")
    A(f"s_add_u32 s{T1}, s{SOUT}, 8192")
    A(f"buffer_store_dwordx2 v[32:33], v{OUTA}, {sr(SO,4)}, s{SOUT} offen")
    A(f"buffer_store_dwordx2 v[34:35], v{OUTA}, {sr(SO,4)}, s{T2} offen")
    A(f"s_mov_b64 exec, {sr(SQM,2)}")
    A(f"buffer_store_dwordx2 v[36:37], v{OUTA}, {sr(SO,4)}, s{T1} offen")
    A("s_mov_b64 exec, -1")
    L("K_END2")
    if STAMP:
        stamp(12)
        A("s_waitcnt vmcnt(0)")
        stamp(13)
        A(f"v_writelane_b32 v{VST}, s26, 14")
        A(f"s_lshl_b32 s{T0}, s2, 4")
        A(f"s_add_u32 s{T0}, s{T0}, s{SWV}")
        A(f"s_lshl_b32 s{T0}, s{T0}, 8")
        A(f"s_add_u32 s{T0}, s{T0}, {hex(WS_DBG)}")
        A(f"buffer_store_dword v{VST}, v2, {sr(SW,4)}, s{T0} offen")
    L("K_END")
    A("s_endpgm")

    L("K_WL")
    for k in range(8):
        A(f"s_mov_b64 exec, {sr(MK[k],2)}")
        A("s_cbranch_execz K_WB")
        A(f"v_add_lshl_u32 v{PS+k}, v{PS+k}, v{RK+k}, 1")
        A(f"ds_write_b64 v{PS+k}, {vr(RC+2*k,2)} offset:{L_LIST}")
    A("s_branch K_WB")
    L("K_REDO")
    A(f"s_mov_b32 s{SMODE}, 1")
    A("s_setprio 0")
    A(f"v_and_b32 v{VC}, 15, v1")
    A(f"v_lshrrev_b32 v{VG}, 4, v1")
    A(f"v_mov_b32 v{VDEG}, 0")
    A(f"v_mov_b32 v{PZ}, 0")
    A(f"s_mov_b32 s{SFIRST}, 1")
    A("v_lshrrev_b32 v31, 1, v0")
    A("v_lshlrev_b32 v31, 11, v31")
    def reset_round():
        A("s_barrier")
        A(f"s_cmp_lg_u32 s{SWV}, 0")
        uid[0] += 1
        A(f"s_cbranch_scc1 K_RR{uid[0]}")
        A("v_mov_b32 v89, 0")
        A("ds_write_b32 v2, v89")
        A(f"ds_write_b32 v89, v89 offset:{L_FLAG}")
        A(f"ds_write_b32 v89, v89 offset:{L_GC+16}")
        A("s_waitcnt lgkmcnt(0)")
        L(f"K_RR{uid[0]}")
        A("s_barrier")
    reset_round()
    A(f"s_cmp_ge_u32 s{SWV}, 8")
    A("s_cbranch_scc1 K_B3")
    A("s_branch K_REC0")
    L("K_SLOW")
    A(f"s_cmp_eq_u32 s{SFIRST}, 0")
    A("s_cbranch_scc1 K_SL0")
    for k in range(12):
        A(f"v_mov_b32 v{SACC+k}, 0")
    L("K_SL0")
    for i in range(3):
        A(f"s_add_u32 s{T0}, s{SWV}, {16*i}")
        A(f"v_readlane_b32 s{T1}, v{VB4}, s{T0}")
        A(f"v_readlane_b32 s{T2}, v{VCNT}, s{T0}")
        A(f"s_mul_i32 s{T3}, s{T0}, {QROW}")
        A(f"s_cmp_eq_u32 s{T2}, 0")
        A(f"s_cbranch_scc1 K_SLN{i}")
        A(f"v_add_u32 v{Z2}, s{T3}, v{VQ16}")
        A(f"ds_read_b128 {vr(Q,4)}, v{Z2}")
        A(f"s_lshl_b32 s{T1}, s{T1}, 1")
        A(f"v_mov_b32 v{VA}, s{T1}")
        L(f"K_SLL{i}")
        A(f"ds_read_b64 {vr(EV,2)}, v{VA} offset:{L_LIST}")
        A(f"v_add_u32 v{VA}, 8, v{VA}")
        A("s_waitcnt lgkmcnt(0)")
        row_load(DAT + 2, EV)
        for x in part_z1(1, Z): A(x)
        A("s_waitcnt vmcnt(0)")
        for x in part_z2(1, Z, lo=NN) + part_exp(Z): A(x)
        A("s_nop 0")
        for k in range(4):
            A(f"v_add_f32 v{T+k}, 1.0, v{T+k}")
        for k in range(4):
            A(f"v_rcp_f32 v{T+k}, v{T+k}")
        A(f"s_sub_u32 s{T2}, s{T2}, 4")
        for k in range(4):
            A(f"v_fmac_f32 v{SACC+4*i+k}, v{Z+k}, v{T+k}")
        A(f"s_cmp_lg_u32 s{T2}, 0")
        A(f"s_cbranch_scc1 K_SLL{i}")
        L(f"K_SLN{i}")
    A(f"s_mov_b32 s{SFIRST}, 0")
    A("s_waitcnt lgkmcnt(0)")
    reset_round()
    A(f"s_cmp_eq_u32 s{SLP}, 0")
    A("s_cbranch_scc1 K_SLFIN")
    A(f"s_cmp_ge_u32 s{SWV}, 8")
    A("s_cbranch_scc1 K_B3")
    A(f"v_add_u32 v{PZ}, -16, v{PZ}")
    A(f"v_add_u32 v{PZ+1}, 128, v{PZ+1}")
    A("s_branch K_RECS")
    L("K_SLFIN")
    A(f"v_mov_b32 v{PZ}, 0")
    A(f"v_mov_b32 v{PZ+1}, 0")
    for i in range(3):
        if i == 2:
            A(f"s_cmp_ge_u32 s{SWV}, {NPB-32}")
            A("s_cbranch_scc1 K_WDONE")
        A(f"s_add_u32 s{T0}, s{SWV}, {16*i}")
        A(f"s_mul_i32 s{T0}, s{T0}, {HROW}")
        A(f"v_add_u32 v{Z2}, s{T0}, v{VH8}")
        A(f"v_cvt_pk_bf16_f32 v{Z}, v{SACC+4*i}, v{SACC+4*i+1}")
        A(f"v_cvt_pk_bf16_f32 v{Z+1}, v{SACC+4*i+2}, v{SACC+4*i+3}")
        A(f"ds_write_b64 v{Z2}, {vr(Z,2)}")
    tail_prep()
    A("s_branch K_WDONE")
    L("K_CODE_END")

hdr = f"""; Kernarg layout for this problem (88 bytes, ptrs only, base s[0:1]):
; @launch grid=({NB},1,1) block=(1024,1,1) lds={LDS}
.amdgcn_target "amdgcn-amd-amdhsa--gfx950"
"""
gen()
vg = 128
out.extend(['.section .rodata,"a"', ".p2align 6", f".amdhsa_kernel {KN}",
    f"  .amdhsa_next_free_vgpr {vg}", f"  .amdhsa_next_free_sgpr 102", f"  .amdhsa_accum_offset {vg}",
    "  .amdhsa_group_segment_fixed_size 0", "  .amdhsa_kernarg_size 88", "  .amdhsa_user_sgpr_count 2",
    "  .amdhsa_user_sgpr_kernarg_segment_ptr 1", "  .amdhsa_system_sgpr_workgroup_id_x 1", ".end_amdhsa_kernel"])
txt = hdr + "\n".join(out) + "\n"
dst = sys.argv[1] if len(sys.argv) > 1 else f"fused.s"
open(dst, "w").write(txt)
print("wrote", dst, "LDS", LDS)
```

```python
import sys, struct, os

NAME = "standalone__edge_featured_mpnn_mpnn__graph"
KN = NAME + "_kernel"
N, E, D, H = 10000, 160000, 128, 256
NB, NPB, CH = 250, 40, 640
WS_REC = 0x500000
WS_OFS = 0x680000
WS_PF = 0x700000
WS_W2F = 0x710000
WS_DBG = 0x2000000
WS_BYTES = 0x10000000
R = 8
PRIO_T = eval(os.environ.get("PRIO_T", "((32, 2), (21, 1), (10, 0))"))
STAMP = os.environ.get("STAMP", "0") == "1"
PI = [1, 3, 0, 2]
FBASE = 0x4B000000
SPIN = 1 << 16
TCH = int(os.environ.get('TCH', '0'))
PLATE = int(os.environ.get('PLATE', '2'))
F1 = int(os.environ.get('F1', '4'))
SLP_F = int(os.environ.get('SLPF', '0'))
SLP_N = int(os.environ.get('SLP', '2'))

def f32bits(x): return struct.unpack("<I", struct.pack("<f", x))[0]
C_NLOG2E = f32bits(-1.4426950408889634)
C_NLN2 = f32bits(-0.6931471805599453)

out = []
def A(s): out.append("    " + s)
def L(s): out.append(s + ":")
def CM(s): out.append("    ; " + s)
def vr(a, n): return f"v[{a}:{a+n-1}]"
def sr(a, n): return f"s[{a}:{a+n-1}]"

PX, PE, PSRC, PDST, PW1, PB1, PW2, PB2 = 4, 6, 8, 10, 12, 14, 16, 18
POUT, PDBG, PWS = 20, 22, 24

def srd(dst, base, nrec, off=None):
    if off is not None:
        A(f"s_add_u32 s{dst}, s{base}, {off}")
        A(f"s_addc_u32 s{dst+1}, s{base+1}, 0")
        src1 = dst + 1
    else:
        A(f"s_mov_b32 s{dst}, s{base}")
        src1 = base + 1
    A(f"s_and_b32 s{dst+1}, s{src1}, 0xffff")
    A(f"s_mov_b32 s{dst+2}, {hex(nrec)}")
    A(f"s_mov_b32 s{dst+3}, 0x20000")

NST = 0
def stamp(k):
    if STAMP: A(f"s_memrealtime s[100:101]"); A("s_waitcnt lgkmcnt(0)"); A(f"v_writelane_b32 v{VST}, s100, {k}")

QROW, HROW, PROW = 1040, 528, 272
L_CNT, L_FLAG, L_SFL, L_ZROW, L_GC, L_TOK = 0, 256, 272, 352, 864, 892
L_CV = 896
L_HIST = L_CV + 2560
L_PRIV = L_HIST + 1024
ZERO_B = L_PRIV
PRIV_N = 64 + R + 8
PRIV_B = PRIV_N * 8
L_H = L_PRIV + 16 * PRIV_B
L_XT = L_H + NPB * HROW
L_SIDE = L_XT
L_Q = L_XT + 20480
L_S = L_Q + NPB * QROW
L_SB = L_H + 10240
L_PT = L_Q
LDS = L_S + 65536
L_LIST = L_HIST
assert LDS <= 163840 and L_XT - L_LIST >= 32000 and L_H % 16 == 0 and L_Q % 16 == 0 and L_S % 16 == 0 and L_XT % 16 == 0
W1B_EARLY = 0
W1B_AT = 2
W1B_H = int(os.environ.get("W1BH", "4"))
GPR = int(os.environ.get("GPR", "2"))
WB0 = int(os.environ.get("WB0", "1"))
GWD = int(os.environ.get("GWD", "99"))
PD0 = int(os.environ.get("PD0", "0"))
WIN = 16 * 63
DUMMY = FBASE + 0x7FF000

VLF, VH8, VL16, VT16, VQ16 = 3, 4, 5, 6, 7
W, Q, NN, DD, Z, Z2, T, LO, PZ = 8, 12, 16, 20, 24, 28, 32, 36, 38
VA, VP, VDEG, VB4, VCNT, VPL, VM, VEND = 40, 41, 42, 43, 44, 45, 46, 47
EV, OG, DAT = 48, [56, 60], 64
AD, OUTA, OV, B2F = 80, 83, 84, 92
XF = 48
WL, PT = 96, 112
W2R = 96
RC = 96
VST = 45
SACC = 112

def gen():
    out.extend([".text", f".globl {KN}", ".p2align 8", f".type {KN},@function"])
    L(KN)
    ST, SW, SO, SX, SY, SZ = 28, 32, 36, 40, 44, 48
    MK = [4 + 2*k for k in range(8)]
    SC = 60
    SMODE, SFIRST, SRND, SFAST, STOK, SSP = 62, 63, 64, 65, 66, 67
    SM = 68
    SREM, STOT, SLP, SNN, SWV = 70, 71, 72, 73, 3
    SN40, SEX = 74, 76
    T0, T1, T2, T3, TP = 78, 79, 80, 81, 82
    STAIL, SSIDE, SLEN, SOUT, SWO = 84, 85, 86, 87, 88
    SQM, P0, P1 = 90, 92, 93
    SB8, SW2, SOWN, STAG, SN80, SCB = 75, 89, 52, 54, 55, 56
    C2 = sr(SC, 2)
    SCAN = ("row_shr:2 row_mask:0xf bank_mask:0xf bound_ctrl:0", "row_shr:4 row_mask:0xf bank_mask:0xf bound_ctrl:0",
            "row_shr:8 row_mask:0xf bank_mask:0xf bound_ctrl:0", "row_bcast:15 row_mask:0xa bank_mask:0xf", "row_bcast:31 row_mask:0xc bank_mask:0xf")
    VC, VG = 36, 37
    GRT = 34
    VZ, VONE = VEND, VM

    A("s_load_dwordx16 s[4:19], s[0:1], 0")
    A("s_load_dwordx4 s[20:23], s[0:1], 64")
    A("s_load_dwordx2 s[24:25], s[0:1], 80")
    A("s_memrealtime s[26:27]")
    CM("pull the code towards the L2 right away (one load per 128-B line; lanes past the code are out of range)")
    A(f"s_getpc_b64 {sr(SX,2)}")
    L("K_PC0")
    A("v_lshlrev_b32 v126, 7, v0")
    A(f"s_and_b32 s{SX+1}, s{SX+1}, 0xffff")
    A(f"s_mov_b32 s{SX+2}, K_CODE_END-K_PC0")
    A(f"s_mov_b32 s{SX+3}, 0x20000")
    A(f"buffer_load_dword v{VDEG}, v126, {sr(SX,4)}, 0 offen")
    A(f"s_cmp_ge_u32 s2, {NB}")
    A("s_cbranch_scc1 K_END")
    A("v_and_b32 v1, 63, v0")
    A("v_lshrrev_b32 v48, 6, v0")
    A(f"v_lshlrev_b32 v{VT16}, 4, v0")
    A(f"v_readfirstlane_b32 s{SWV}, v48")
    A("v_lshlrev_b32 v2, 2, v1")
    A(f"v_lshlrev_b32 v{VL16}, 4, v1")
    A(f"v_and_b32 v{VC}, 15, v1")
    A(f"v_lshrrev_b32 v{VG}, 4, v1")
    if STAMP: A(f"v_mov_b32 v{VST}, 0")
    A(f"v_mov_b32 v{VZ}, 0")
    A(f"v_mov_b32 v{VONE}, 1")
    for k in range(4):
        A(f"v_mov_b32 v{8+k}, 0")
    A(f"s_movk_i32 s{T0}, {ZERO_B//16}")
    A(f"v_cmp_gt_u32 vcc, s{T0}, v0")
    A(f"s_mul_i32 s{SN40}, s2, {NPB}")
    A(f"s_lshr_b32 s{SN80}, s2, 1")
    A(f"s_mul_i32 s{SN80}, s{SN80}, 80")
    A(f"s_and_b32 s{SCB}, s2, 1")
    A(f"s_and_saveexec_b64 {sr(SEX,2)}, vcc")
    A("s_cbranch_execz K_Z1")
    A(f"ds_write_b128 v{VT16}, v[8:11]")
    L("K_Z1")
    A(f"s_mov_b64 exec, {sr(SEX,2)}")
    A(f"s_mov_b32 s{P0}, 0x05040100")
    A(f"s_mov_b32 s{P1}, 0x07060302")
    A(f"s_mov_b32 s{SC}, {hex(C_NLOG2E)}")
    A(f"s_mov_b32 s{SC+1}, {hex(C_NLOG2E)}")
    A(f"s_mul_i32 s{SW2}, s{SWV}, {PRIV_B}")
    A(f"s_add_u32 s{SW2}, s{SW2}, {L_PRIV}")
    A(f"v_add_u32 v30, s{SW2}, v2")
    A(f"v_mov_b32 v31, {hex(DUMMY)}")
    A("ds_write_b32 v30, v31")
    A(f"ds_write_b32 v30, v31 offset:{(PRIV_N-64)*4}")
    A(f"s_cmp_lt_u32 s{SWV}, 8")
    A("s_cbranch_scc1 K_AUX")
    def common_setup():
        srd(SW, PWS, WS_BYTES)
        A(f"s_lshl_b32 s{SSIDE}, s{SWV}, 10")
        A(f"s_add_u32 s{SSIDE}, s{SSIDE}, {L_SIDE}")
        A(f"s_mov_b32 s{SMODE}, 0")
        A(f"s_sub_u32 s{ST}, s{PWS}, {hex(FBASE)}")
        A(f"s_subb_u32 s{ST+1}, s{PWS+1}, 0")
        A(f"s_and_b32 s{ST+1}, s{ST+1}, 0xffff")
        A(f"s_mov_b32 s{ST+2}, {hex(FBASE + N*512)}")
        A(f"s_mov_b32 s{ST+3}, 0x20000")
        A(f"s_lshl_b32 s{SB8}, s2, 3")
        A(f"s_add_u32 s{SB8}, s{SB8}, {hex(WS_OFS)}")
        A(f"v_cvt_f32_u32 v{VLF}, v2")
        A(f"v_lshlrev_b32 v{VH8}, 3, v1")
        A(f"v_add_u32 v{VH8}, {L_H}, v{VH8}")
        A(f"v_add_u32 v{VQ16}, {L_Q}, v{VL16}")
        A(f"v_cmp_gt_u32 {sr(SQM,2)}, 8, v{VC}")
        A(f"s_lshl_b32 s{SOUT}, s{SN40}, 8")
        A(f"s_lshl_b32 s{T2}, s{SWV}, 5")
        A(f"s_add_u32 s{SOUT}, s{SOUT}, s{T2}")
        A(f"s_mov_b32 s{SFIRST}, 1")
    uid = [0]
    def arrive(c):
        A("s_mov_b64 exec, 1")
        A(f"ds_add_u32 v{VZ}, v{VONE} offset:{L_GC + 4*c}")
        A("s_mov_b64 exec, -1")
    def await_lds(off, n, vt, sdst, nonzero=False, slp=1):
        uid[0] += 1; u = uid[0]
        A(f"s_mov_b32 s{SSP}, {SPIN*16}")
        L(f"K_AW{u}")
        A(f"ds_read_b32 v{vt}, v{VZ} offset:{off}")
        A("s_waitcnt lgkmcnt(0)")
        A(f"v_readfirstlane_b32 s{sdst}, v{vt}")
        A(f"s_cmp_lg_u32 s{sdst}, 0" if nonzero else f"s_cmp_ge_u32 s{sdst}, {n}")
        A(f"s_cbranch_scc1 K_AWD{u}")
        A(f"s_sub_u32 s{SSP}, s{SSP}, 1")
        A("s_cbranch_scc1 K_END")
        A(f"s_sleep {slp}")
        A(f"s_branch K_AW{u}")
        L(f"K_AWD{u}")
    def perm4(dst, col, src=WL):
        for pr in range(4):
            a, b = src + 8*pr + (col >> 1), src + 8*pr + 4 + (col >> 1)
            A(f"v_perm_b32 v{dst+pr}, v{b}, v{a}, s{P1 if col & 1 else P0}")
    def franks(srdn):
        pass
    VPA, VQA, VB1A, VSW, VWO = 41, 38, 43, 44, 39
    A(f"v_lshlrev_b32 v{VWO}, 12, v{VG}")
    A(f"v_lshl_add_u32 v{VWO}, v{VC}, 4, v{VWO}")
    A(f"s_and_b32 s{T0}, s{SWV}, 3")
    A(f"s_bfe_u32 s{T3}, s{SWV}, 0x10002")
    A(f"s_lshl_b32 s{SWO}, s{T0}, 14")
    A(f"s_lshl_b32 s{T1}, s{T3}, 11")
    A(f"s_add_u32 s{T1}, s{T1}, s{SWO}")
    A(f"s_lshl_b32 s{T2}, s{SCB}, 8")
    A(f"s_add_u32 s{T1}, s{T1}, s{T2}")
    A(f"s_lshl_b32 s{T2}, s{T3}, 8")
    A(f"s_add_u32 s{SWO}, s{SWO}, s{T2}")
    A(f"s_add_u32 s{SWO}, s{SWO}, {128*512}")
    A("s_waitcnt lgkmcnt(0)")
    srd(SY, PW1, 257 * 512)
    if not WB0: A("s_barrier")
    for j in range(4):
        A(f"buffer_load_dwordx4 {vr(64+4*j,4)}, v{VWO}, {sr(SY,4)}, s{T1} offen offset:{512*j}")
    if WB0: A("s_barrier")
    if GPR: A(f"s_setprio {GPR}")
    if W1B_EARLY:
        for j in range(8):
            A(f"buffer_load_dwordx4 {vr(WL+4*j,4)}, v{VWO}, {sr(SY,4)}, s{SWO} offen offset:{512*j}")
    if W1B_H == 3:
        A(f"s_cmp_ge_u32 s{SWV}, 12")
        A("s_cbranch_scc1 K_NOH3")
        for j in range(8):
            A(f"buffer_load_dwordx4 {vr(WL+4*j,4)}, v{VWO}, {sr(SY,4)}, s{SWO} offen offset:{512*j}")
        L("K_NOH3")
    common_setup()
    A(f"s_lshl_b32 s{T0}, s{T0}, 10")
    A(f"s_add_u32 s{T0}, s{T0}, {L_S}")
    A(f"s_lshl_b32 s{T1}, s{T3}, 3")
    A(f"s_add_u32 s{T1}, s{T1}, s{T0}")
    A(f"v_add_u32 v12, s{T1}, v{VL16}")
    A(f"s_lshl_b32 s{T1}, s{T3}, 15")
    A(f"s_add_u32 s{T1}, s{T1}, s{T0}")
    A(f"v_add_u32 v{VSW}, s{T1}, v{VL16}")
    XA = 8
    A(f"v_xor_b32 v13, v{VG}, v{VC}")
    A("v_lshlrev_b32 v13, 4, v13")
    A(f"v_lshl_add_u32 v13, v{VC}, 8, v13")
    for s_ in range(4):
        A(f"v_xor_b32 v{XA+s_}, {64*s_}, v13")
    A(f"s_sub_u32 s{T0}, s{SWV}, 8")
    A(f"s_lshl_b32 s{T1}, s{T0}, 12")
    A(f"s_add_u32 s{T1}, s{T1}, {L_S}")
    A(f"v_add_u32 v{VA}, s{T1}, v{VL16}")
    A(f"s_lshr_b32 s{T1}, s{T0}, 2")
    A(f"s_lshl_b32 s{T1}, s{T1}, 4")
    A(f"s_and_b32 s{T2}, s{T0}, 3")
    A(f"s_add_u32 s{T1}, s{T1}, s{T2}")
    A(f"v_lshl_add_u32 v13, v{VG}, 2, s{T1}")
    A(f"s_movk_i32 s{T1}, {PROW}")
    A(f"v_lshlrev_b32 v{VPA}, 2, v13")
    A(f"v_mad_u32_u24 v{VPA}, v{VC}, s{T1}, v{VPA}")
    A(f"v_add_u32 v{VPA}, {L_PT}, v{VPA}")
    A(f"s_mov_b32 s{T2}, 0x8000")
    if W1B_H == 3:
        A(f"s_cmp_lt_u32 s{SWV}, 12")
        A("s_cbranch_scc1 K_NOH3B")
        A("s_waitcnt vmcnt(0)")
        L("K_NOH3B")
        A("s_waitcnt vmcnt(8)")
    else:
        A("s_waitcnt vmcnt(0)")
    stamp(1)
    for pr in range(2):
        for dw in range(4):
            a_, b_ = 64 + 8*pr + dw, 64 + 8*pr + 4 + dw
            A(f"v_perm_b32 v{48+(2*dw)*2+pr}, v{b_}, v{a_}, s{P0}")
            A(f"v_perm_b32 v{48+(2*dw+1)*2+pr}, v{b_}, v{a_}, s{P1}")
    for col in range(8):
        A(f"ds_write_b64 v12, {vr(48+2*col,2)} offset:{col*4096}")
    def w1b_loads():
        for j in range(8):
            A(f"buffer_load_dwordx4 {vr(WL+4*j,4)}, v{VWO}, {sr(SY,4)}, s{SWO} offen offset:{512*j}")
    if W1B_AT == 0: w1b_loads()
    A("s_waitcnt lgkmcnt(0)")
    arrive(0)
    if W1B_H == 4: w1b_loads()
    if W1B_H == 2:
        A(f"s_cmp_ge_u32 s{SWV}, 12")
        A("s_cbranch_scc1 K_NOH2")
        w1b_loads()
        L("K_NOH2")
    await_lds(L_GC, 13, 12, T0)
    stamp(3)
    if W1B_H == 1:
        A(f"s_cmp_ge_u32 s{SWV}, 12")
        A("s_cbranch_scc1 K_NOH1")
        w1b_loads()
        L("K_NOH1")
    AF, XR = 48, [64 + 4*k for k in range(8)]
    ACP = lambda mt: 16 + 4*mt
    for s_ in range(4):
        A(f"ds_read_b128 {vr(AF+4*s_,4)}, v{VA} offset:{s_*1024}")
    seq = [(mt, s_) for mt in range(5) for s_ in range(4)]
    PRE = 7
    def rdx(k):
        mt, s_ = seq[k]
        A(f"ds_read_b128 {vr(XR[k%8],4)}, v{XA+s_} offset:{L_XT + 4096*mt}")
    for k in range(PRE): rdx(k)
    def pack(mt):
        f = [ACP(mt) + r for r in range(4)]
        o = []
        o += [f"v_add_f32 v{f[r]}, 0, v{f[r]}" for r in range(4)]
        o += [f"v_add_u32 v{f[r]}, s{T2}, v{f[r]}" for r in range(4)]
        o += [f"v_sub_u32_sdwa v{f[r]}, v{f[r]}, v{f[r-1]} clamp dst_sel:DWORD dst_unused:UNUSED_PAD src0_sel:DWORD src1_sel:WORD_1" for r in range(1, 4)]
        o += [f"v_perm_b32 v{f[0]}, v{f[1]}, v{f[0]}, s{P1}", f"v_perm_b32 v{f[2]}, v{f[3]}, v{f[2]}, s{P1}"]
        return o
    pend = []
    for k, (mt, s_) in enumerate(seq):
        if k + PRE < 20: rdx(k + PRE)
        A(f"s_waitcnt lgkmcnt({min(PRE, 19-k)})")
        c = "0" if s_ == 0 else vr(ACP(mt), 4)
        A(f"v_mfma_f32_16x16x32_bf16 {vr(ACP(mt),4)}, {vr(AF+4*s_,4)}, {vr(XR[k%8],4)}, {c}")
        if s_ == 3 and mt >= 1: pend += pack(mt - 1)
        for x in pend[:4]: A(x)
        pend = pend[4:]
    for x in pend: A(x)
    A("s_nop 1")
    for x in pack(4): A(x)
    for mt in range(5):
        A(f"ds_write_b32 v{VPA}, v{ACP(mt)} offset:{16*mt*PROW}")
        A(f"ds_write_b32 v{VPA}, v{ACP(mt)+2} offset:{16*mt*PROW + 128}")
    A("v_bfe_u32 v12, v0, 4, 4")
    A(f"s_movk_i32 s{T1}, {PROW}")
    A(f"v_lshlrev_b32 v13, 4, v{VC}")
    A(f"v_mad_u32_u24 v14, v12, s{T1}, v13")
    A(f"v_add_u32 v14, {L_PT}, v14")
    A("v_and_b32 v15, 0x70, v13")
    A("v_lshl_add_u32 v15, v12, 9, v15")
    A("v_and_b32 v13, 0x80, v13")
    A("v_lshl_add_u32 v15, v13, 1, v15")
    A(f"s_lshl_b32 s{T0}, s{SN80}, 9")
    A(f"s_lshl_b32 s{T1}, s{SCB}, 7")
    A(f"s_add_u32 s{T0}, s{T0}, s{T1}")
    A("s_waitcnt lgkmcnt(0)")
    arrive(1)
    await_lds(L_GC + 4, 9, 12, T3)
    stamp(4)
    A(f"s_cmp_lt_u32 s{SWV}, 12")
    A("s_cbranch_scc1 K_GW")
    for k in range(5):
        A(f"ds_read_b128 {vr(48+4*k,4)}, v14 offset:{16*k*PROW}")
    for k in range(5):
        A(f"s_waitcnt lgkmcnt({4-k})")
        A(f"buffer_store_dwordx4 {vr(48+4*k,4)}, v15, {sr(SW,4)}, s{T0} offen sc1")
        A(f"s_add_u32 s{T0}, s{T0}, 8192")
    if W1B_H == 4:
        A("s_waitcnt vmcnt(5)")
        for col in range(8):
            d = 16 + 4 * (col % 5)
            perm4(d, col)
            A(f"ds_write_b128 v{VSW}, {vr(d,4)} offset:{col*4096}")
        A("s_waitcnt lgkmcnt(0)")
    arrive(2)
    await_lds(L_TOK, 0, 14, STOK, nonzero=True)
    A("s_waitcnt vmcnt(0)")
    A("s_mov_b64 exec, 1")
    A(f"ds_add_rtn_u32 v15, v{VZ}, v{VONE} offset:{L_GC+12}")
    A(f"s_lshl_b32 s{T0}, s2, 4")
    A(f"s_add_u32 s{T0}, s{T0}, {hex(WS_PF)}")
    A("s_waitcnt lgkmcnt(0)")
    A(f"v_readfirstlane_b32 s{T1}, v15")
    A(f"s_cmp_lg_u32 s{T1}, 3")
    A("s_cbranch_scc1 K_NOPF")
    A(f"buffer_store_dword v14, v{VZ}, {sr(SW,4)}, s{T0} offen sc1")
    L("K_NOPF")
    A("s_mov_b64 exec, -1")
    stamp(2)
    A("s_branch K_GQ")
    L("K_GW")
    def st1():
        for col in range(8):
            d = 16 + 4 * (col % 5)
            perm4(d, col)
            A(f"ds_write_b128 v{VSW}, {vr(d,4)} offset:{col*4096}")
    if W1B_H:
        A("s_waitcnt vmcnt(0)")
        st1()
    if W1B_H != 4:
        if GWD == 99: await_lds(L_GC + 12, 4, 12, T3, slp=2)
        elif GWD: A(f"s_sleep {GWD}")
        if not W1B_H:
            w1b_loads()
        A(f"s_add_u32 s{T0}, s{SWO}, 256")
        for j in range(8):
            A(f"buffer_load_dwordx4 {vr(64+4*j,4)}, v{VWO}, {sr(SY,4)}, s{T0} offen offset:{512*j}")
        if not W1B_H:
            A("s_waitcnt vmcnt(8)")
            st1()
        A("s_waitcnt vmcnt(0)")
        for col in range(8):
            d = 16 + 4 * ((col + 3) % 5)
            perm4(d, col, 64)
            A(f"ds_write_b128 v{VSW}, {vr(d,4)} offset:{32768 + col*4096}")
    A("s_waitcnt lgkmcnt(0)")
    arrive(2)
    await_lds(L_TOK, 0, 14, STOK, nonzero=True)
    L("K_GQ")
    A(f"s_sub_u32 s{T0}, s{SWV}, 8")
    A(f"s_lshl_b32 s{T1}, s{T0}, 13")
    A(f"s_add_u32 s{T1}, s{T1}, {L_S}")
    A(f"v_add_u32 v{VA}, s{T1}, v{VL16}")
    A(f"s_lshr_b32 s{T1}, s{T0}, 1")
    A(f"s_lshl_b32 s{T1}, s{T1}, 4")
    A(f"s_and_b32 s{T0}, s{T0}, 1")
    A(f"s_lshl_b32 s{T0}, s{T0}, 1")
    A(f"s_add_u32 s{T0}, s{T0}, s{T1}")
    A(f"v_lshl_add_u32 v12, v{VG}, 2, s{T0}")
    A(f"v_lshlrev_b32 v{VB1A}, 4, v12")
    A(f"s_movk_i32 s{T1}, {QROW}")
    A(f"v_mad_u32_u24 v{VPA}, v{VC}, s{T1}, v{VB1A}")
    A(f"v_add_u32 v{VPA}, {L_Q}, v{VPA}")
    A(f"s_mul_i32 s{T0}, s{SCB}, 40")
    A(f"v_add_u32 v12, s{T0}, v{VC}")
    A(f"v_xor_b32 v13, v{VG}, v12")
    A("v_and_b32 v13, 15, v13")
    A("v_lshlrev_b32 v13, 4, v13")
    A("v_lshl_add_u32 v13, v12, 8, v13")
    for s_ in range(4):
        A(f"v_xor_b32 v{XA+s_}, {64*s_}, v13")
    stamp(5)
    for s_ in range(4):
        for mt in range(3):
            A(f"ds_read_b128 {vr(XF+(mt*4+s_)*4,4)}, v{XA+s_} offset:{L_XT + 4096*mt}")
    await_lds(L_GC + 8, 12, 12, T0)
    AC = lambda t, mt: 16 + (t*3 + mt) * 4
    A(f"ds_read_b128 v[8:11], v{VB1A} offset:{L_CV+1024}")
    A(f"ds_read_b128 v[12:15], v{VB1A} offset:{L_CV+1024+16}")
    for k in range(8):
        A(f"ds_read_b128 {vr(WL+4*k,4)}, v{VA} offset:{((k&1)*4 + (k>>1))*1024}")
    for k in range(8):
        s_, t = k >> 1, k & 1
        A(f"s_waitcnt lgkmcnt({7-k})")
        for mt in range(3):
            c = vr(8 + 4*t, 4) if s_ == 0 else vr(AC(t, mt), 4)
            A(f"v_mfma_f32_16x16x32_bf16 {vr(AC(t,mt),4)}, {vr(WL+4*k,4)}, {vr(XF+(mt*4+s_)*4,4)}, {c}")
    A(f"s_mov_b32 s{T1}, {hex(WS_PF - 8192)}")
    A(f"s_cmp_lt_u32 s{SWV}, 12")
    A(f"s_cselect_b32 s{SRND}, s{T1}, 0x7ff00000")
    if not PLATE: A(f"buffer_load_dword v{VA}, v{VT16}, {sr(SW,4)}, s{SRND} offen sc1")
    for k in range(8):
        A(f"s_mov_b64 {sr(MK[k],2)}, 0")
    for mt in range(3):
        for t in range(2):
            d = 48 + (mt*2 + t) * 4
            for i in range(4):
                A(f"v_mul_f32 v{d+i}, s{SC}, v{AC(t,mt)+PI[i]}")
            if mt == 2:
                A(f"s_mov_b64 exec, {sr(SQM,2)}")
            A(f"ds_write_b128 v{VPA}, {vr(d,4)} offset:{16*mt*QROW + 16*t}")
            if mt == 2:
                A("s_mov_b64 exec, -1")
    stamp(6)
    A(f"v_and_b32 v{VC}, 15, v1")
    A(f"v_lshrrev_b32 v{VG}, 4, v1")
    A(f"v_mov_b32 v{PZ}, 0")
    A(f"v_mov_b32 v{PZ+1}, 0")
    A(f"v_mov_b32 v{VP}, s{SW2}")
    A(f"v_mov_b32 v{VDEG}, 0")
    A(f"v_mov_b32 v{OUTA}, 0")
    A(f"s_cmp_ge_u32 s{SWV}, 12")
    A("s_cbranch_scc1 K_B3")
    A(f"s_movk_i32 s{T0}, {512 + NB}")
    A(f"v_cmp_gt_u32 {sr(TP,2)}, s{T0}, v0")
    if PLATE:
        await_lds(L_GC + 12, 4, 12, T3, slp=2)
        await_lds(L_GC + (20 if PLATE == 2 else 16), 8, 12, T3, slp=2)
        if PLATE > 2: A(f"s_sleep {PLATE}")
        A(f"buffer_load_dword v{VA}, v{VT16}, {sr(SW,4)}, s{SRND} offen sc1")
    A(f"s_mov_b32 s{SSP}, {SPIN}")
    L("K_PFL")
    A("s_waitcnt vmcnt(0)")
    A(f"v_cmp_ne_u32 vcc, s{STOK}, v{VA}")
    A(f"s_and_b64 vcc, vcc, {sr(TP,2)}")
    A("s_cbranch_scc0 K_B3")
    A(f"s_sub_u32 s{SSP}, s{SSP}, 1")
    A("s_cbranch_scc1 K_B3")
    A("s_mov_b64 exec, vcc")
    if SLP_F: A(f"s_sleep {SLP_F}")
    A(f"buffer_load_dword v{VA}, v{VT16}, {sr(SW,4)}, s{SRND} offen sc1")
    A("s_mov_b64 exec, -1")
    A("s_branch K_PFL")

    L("K_AUX")
    A(f"s_cmp_lg_u32 s{SWV}, 0")
    A("s_cbranch_scc1 K_AUX1")
    ED, ES, EE, RKB, BN4, RCB = 48, 58, 68, 74, 84, 96
    A("v_lshlrev_b32 v12, 3, v1")
    A(f"s_mul_i32 s{T0}, s2, {CH*4}")
    A(f"s_mul_i32 s{T1}, s2, {CH*2}")
    A("s_waitcnt lgkmcnt(0)")
    srd(SX, PDST, CH * 4, f"s{T0}")
    for k in range(5):
        A(f"buffer_load_dwordx2 {vr(ED+2*k,2)}, v12, {sr(SX,4)}, 0 offen offset:{512*k}")
    srd(SY, PSRC, CH * 4, f"s{T0}")
    for k in range(5):
        A(f"buffer_load_dwordx2 {vr(ES+2*k,2)}, v12, {sr(SY,4)}, 0 offen offset:{512*k}")
    srd(SZ, PE, CH * 2, f"s{T1}")
    for k in range(5):
        A(f"buffer_load_dword v{EE+k}, v2, {sr(SZ,4)}, 0 offen offset:{256*k}")
    A("s_barrier")
    A("s_setprio 3")
    common_setup()
    srd(SO, PDBG, 256)
    A(f"s_movk_i32 s{T1}, {-NPB}")
    for j in range(10):
        if j % 2 == 0:
            A(f"s_waitcnt vmcnt({14 - j//2})")
            if j == 0:
                A(f"buffer_load_dword v33, v{VZ}, {sr(SO,4)}, 0 offen sc1")
        A(f"v_mul_u32_u24 v14, 0xcccd, v{ED+j}")
        A("v_lshrrev_b32 v14, 21, v14")
        A(f"v_lshlrev_b32 v{BN4+j}, 2, v14")
        A(f"ds_add_rtn_u32 v{RKB+j}, v{BN4+j}, v{VONE} offset:{L_HIST}")
        A(f"v_mad_i32_i24 v{ED+j}, v14, s{T1}, v{ED+j}")
    HC_, HB_ = 16, 20
    A(f"ds_read_b128 {vr(HC_,4)}, v{VL16} offset:{L_HIST}")
    A("s_waitcnt vmcnt(1)")
    stamp(1)
    for j in range(10):
        if j % 2 == 0:
            A(f"v_lshlrev_b32 v14, 16, v{EE+j//2}")
        else:
            A(f"v_and_b32 v14, 0xffff0000, v{EE+j//2}")
        A(f"v_lshl_or_b32 v{RCB+2*j+1}, v{ED+j}, 2, v14")
    A("s_waitcnt lgkmcnt(0)")
    A(f"v_add_u32 v{HB_+2}, v{HC_}, v{HC_+1}")
    A(f"v_add_u32 v{HB_+3}, v{HB_+2}, v{HC_+2}")
    A(f"v_add_u32 v15, v{HB_+3}, v{HC_+3}")
    A("s_nop 1")
    A(f"v_add_u32_dpp v{HB_}, v15, v15 row_shr:1 row_mask:0xf bank_mask:0xf bound_ctrl:0")
    for ctl in SCAN:
        A("s_nop 1")
        A(f"v_add_u32_dpp v{HB_}, v{HB_}, v{HB_} {ctl}")
    A(f"v_sub_u32 v{HB_}, v{HB_}, v15")
    A(f"v_add_u32 v{HB_+1}, v{HB_}, v{HC_}")
    A(f"v_add_u32 v{HB_+2}, v{HB_}, v{HB_+2}")
    A(f"v_add_u32 v{HB_+3}, v{HB_}, v{HB_+3}")
    A(f"ds_write_b128 v{VL16}, {vr(HB_,4)} offset:{L_HIST}")
    for j in range(10):
        A(f"ds_read_b32 v{ED+j}, v{BN4+j} offset:{L_HIST}")
    for k in range(4):
        A(f"v_lshl_or_b32 v{25+2*k}, v{HC_+k}, 16, v{HB_+k}")
    A(f"v_lshlrev_b32 v32, 1, v{VL16}")
    A(f"s_mov_b32 s{SSP}, {SPIN}")
    A("s_waitcnt vmcnt(0)")
    L("K_TOK")
    A(f"v_readfirstlane_b32 s{STOK}, v33")
    A(f"s_cmp_lg_u32 s{STOK}, 0")
    A("s_cbranch_scc1 K_TOKOK")
    A(f"s_sub_u32 s{SSP}, s{SSP}, 1")
    A("s_cbranch_scc1 K_END")
    A(f"buffer_load_dword v33, v{VZ}, {sr(SO,4)}, 0 offen sc1")
    A("s_waitcnt vmcnt(0)")
    A("s_branch K_TOK")
    L("K_TOKOK")
    A(f"s_lshl_b32 s{T0}, s{STOK}, 13")
    A(f"s_and_b32 s{T0}, s{T0}, 0xffffc000")
    A(f"s_lshl_b32 s{T3}, s2, 11")
    A(f"s_add_u32 s{T3}, s{T3}, {hex(WS_OFS)}")
    for k in range(4):
        A(f"v_mov_b32 v{24+2*k}, s{STOK}")
    A(f"buffer_store_dwordx4 v[24:27], v32, {sr(SW,4)}, s{T3} offen sc1")
    A(f"buffer_store_dwordx4 v[28:31], v32, {sr(SW,4)}, s{T3} offen offset:16 sc1")
    A("s_waitcnt lgkmcnt(0)")
    for j in range(10):
        A(f"v_or_b32 v{RCB+2*j}, s{T0}, v{ES+j}")
        A(f"v_add_lshl_u32 v{ED+j}, v{ED+j}, v{RKB+j}, 3")
        A(f"ds_write_b64 v{ED+j}, {vr(RCB+2*j,2)} offset:{L_SB}")
    for k in range(5):
        A(f"ds_read_b128 {vr(60+4*k,4)}, v{VL16} offset:{L_SB + 1024*k}")
    A(f"s_mul_i32 s{T0}, s2, {CH*8}")
    A(f"s_add_u32 s{T0}, s{T0}, {hex(WS_REC)}")
    A(f"s_add_u32 s{T1}, s{T0}, 4096")
    for k in range(5):
        A(f"s_waitcnt lgkmcnt({4-k})")
        A(f"buffer_store_dwordx4 {vr(60+4*k,4)}, v{VL16}, {sr(SW,4)}, s{T0 + k//4} offen offset:{1024*(k%4)} sc1")
    A(f"ds_write_b32 v{VZ}, v33 offset:{L_TOK}")
    A("s_setprio 0")
    stamp(2)
    A("s_branch K_AUXP")
    L("K_AUX1")
    for k in range(4):
        A(f"v_xor_b32 v{51+k}, v{VG}, v{VC}")
        if k: A(f"v_xor_b32 v{51+k}, {4*k}, v{51+k}")
        A(f"v_lshlrev_b32 v{51+k}, 4, v{51+k}")
        A(f"v_lshl_add_u32 v{51+k}, v{VG}, 8, v{51+k}")
    A(f"s_sub_u32 s{T0}, s{SWV}, 1")
    A(f"s_lshl_b32 s{T0}, s{T0}, 12")
    A(f"s_lshl_b32 s{T2}, s{SN80}, 8")
    A(f"s_add_u32 s{T2}, s{T2}, s{T0}")
    A(f"s_add_u32 s{T0}, s{T0}, {L_XT}")
    A(f"s_mov_b32 m0, s{T0}")
    A("s_waitcnt lgkmcnt(0)")
    A(f"s_cmp_ge_u32 s{SWV}, 6")
    A("s_cbranch_scc1 K_NOX")
    srd(SX, PX, N * 256)
    for k in range(4):
        A(f"buffer_load_dwordx4 v{51+k}, {sr(SX,4)}, s{T2} offen offset:{1024*k} lds")
    L("K_NOX")
    if TCH:
        A(f"s_cmp_lg_u32 s{SWV}, 6")
        A("s_cbranch_scc1 K_NOTCH")
        CM("address translations of the pages that are written and read later")
        srd(SX, PWS, 0x800000)
        A(f"v_lshlrev_b32 v60, {TCH}, v1")
        A(f"buffer_load_dword v61, v60, {sr(SX,4)}, 0 offen sc1")
        srd(SX, POUT, N * D * 2)
        A(f"s_lshl_b32 s{T0}, s{SN40}, 8")
        A(f"buffer_load_dword v62, v{VZ}, {sr(SX,4)}, s{T0} offen")
        L("K_NOTCH")
    A(f"s_xor_b32 s{T0}, s{SWV}, 7")
    A(f"s_or_b32 s{T0}, s{T0}, s2")
    A("s_cbranch_scc1 K_NOTOK")
    srd(SO, PDBG, 256)
    A("s_or_b32 s26, s26, 1")
    A("v_mov_b32 v59, s26")
    A(f"buffer_store_dword v59, v2, {sr(SO,4)}, 0 offen sc1")
    L("K_NOTOK")
    A("s_barrier")
    common_setup()
    A(f"s_cmp_lt_u32 s{SWV}, 4")
    A("s_cbranch_scc1 K_NOCV")
    A("v_and_b32 v63, 3, v0")
    A("v_lshlrev_b32 v63, 2, v63")
    A("v_mov_b32 v64, 0x2031")
    A("v_bfe_u32 v65, v64, v63, 4")
    A("v_bfe_u32 v64, v0, 2, 2")
    A(f"v_lshl_add_u32 v64, v{VG}, 5, v64")
    A("v_bfe_u32 v66, v0, 6, 1")
    A("v_lshl_add_u32 v64, v66, 2, v64")
    A("v_bfe_u32 v66, v0, 7, 1")
    A("v_lshl_add_u32 v64, v66, 7, v64")
    A("v_lshl_add_u32 v65, v65, 3, v64")
    A("v_lshl_add_u32 v64, v63, 1, v64")
    A("v_lshlrev_b32 v65, 1, v65")
    A("v_lshlrev_b32 v64, 1, v64")
    A("v_and_b32 v66, 0xff, v0")
    A("v_lshlrev_b32 v67, 1, v66")
    A("v_lshlrev_b32 v66, 2, v66")
    srd(SY, PW1, 257 * 512)
    A(f"s_mov_b32 s{T0}, {256*512}")
    A(f"buffer_load_ushort v20, v65, {sr(SY,4)}, s{T0} offen")
    srd(SX, PB1, 512)
    A(f"buffer_load_ushort v21, v64, {sr(SX,4)}, 0 offen")
    srd(SX, PB2, 256)
    A(f"buffer_load_ushort v22, v67, {sr(SX,4)}, 0 offen")
    A(f"s_cmp_ge_u32 s{SWV}, 6")
    A("s_cbranch_scc1 K_CV1")
    A("s_waitcnt vmcnt(3)")
    arrive(0)
    L("K_CV1")
    A(f"s_cmp_lg_u32 s{SWV}, 7")
    A("s_cbranch_scc1 K_CV1B")
    A("s_cmp_ge_u32 s2, 64")
    A("s_cbranch_scc1 K_CV1B")
    A(f"s_bfe_u32 s{T0}, s2, 0x10002")
    A(f"s_lshl_b32 s{T0}, s{T0}, 15")
    A(f"s_and_b32 s{T1}, s2, 1")
    A(f"s_lshl_b32 s{T1}, s{T1}, 14")
    A(f"s_add_u32 s{T0}, s{T0}, s{T1}")
    A(f"s_bfe_u32 s{T1}, s2, 0x10001")
    A(f"s_lshl_b32 s{T1}, s{T1}, 10")
    A(f"s_add_u32 s{T0}, s{T0}, s{T1}")
    A(f"s_lshr_b32 s{T1}, s2, 3")
    A(f"s_lshl_b32 s{T1}, s{T1}, 5")
    A(f"s_add_u32 s{T0}, s{T0}, s{T1}")
    A(f"s_add_u32 s{T1}, s{T0}, 4096")
    A(f"v_lshrrev_b32 v24, 1, v{VG}")
    A("v_lshlrev_b32 v24, 13, v24")
    A(f"v_and_b32 v25, 1, v{VG}")
    A("v_lshl_add_u32 v24, v25, 9, v24")
    A(f"v_lshl_add_u32 v24, v{VC}, 1, v24")
    srd(SX, PW2, 256 * 256)
    for jj in range(8):
        p = PI[jj & 3]
        A(f"buffer_load_ushort v{72+jj}, v24, {sr(SX,4)}, s{T0 if p < 2 else T1} offen offset:{(p&1)*2048 + (jj>>2)*256}")
    A(f"s_lshl_b32 s{T0}, s2, 10")
    A(f"s_add_u32 s{T0}, s{T0}, {hex(WS_W2F)}")
    A("s_waitcnt vmcnt(0)")
    for k in range(4):
        A(f"v_lshl_or_b32 v{80+k}, v{73+2*k}, 16, v{72+2*k}")
    A(f"buffer_store_dwordx4 v[80:83], v{VL16}, {sr(SW,4)}, s{T0} offen sc1")
    L("K_CV1B")
    A("s_waitcnt vmcnt(0)")
    for k in range(3):
        A(f"v_lshlrev_b32 v{20+k}, 16, v{20+k}")
    A(f"v_mul_f32 v20, s{SC}, v20")
    A(f"ds_write_b32 v66, v21 offset:{L_CV+1024}")
    A(f"ds_write_b32 v66, v20 offset:{L_CV}")
    A(f"s_cmp_ge_u32 s{SWV}, 6")
    A("s_cbranch_scc1 K_CV2")
    A(f"ds_write_b32 v66, v22 offset:{L_CV+2048}")
    L("K_CV2")
    A("s_waitcnt lgkmcnt(0)")
    arrive(2)
    A(f"s_cmp_lg_u32 s{SWV}, 7")
    A("s_cbranch_scc1 K_AUXT")
    arrive(1)
    A("s_branch K_AUXT")
    L("K_NOCV")
    A("s_waitcnt vmcnt(0)")
    arrive(0)
    L("K_AUXT")
    L("K_AUXP")
    A("v_lshrrev_b32 v31, 1, v0")
    A("v_lshlrev_b32 v31, 11, v31")
    A(f"s_movk_i32 s{T3}, {2*NB}")
    A(f"v_cmp_gt_u32 {sr(SOWN,2)}, s{T3}, v0")
    A(f"v_cvt_f32_u32 v30, v1")
    A(f"v_rcp_f32 v30, v30")
    A(f"v_mov_b32 v{VP}, s{SW2}")
    A(f"v_mul_f32 v30, 0x47800000, v30")
    A(f"v_cvt_u32_f32 v30, v30")
    A(f"v_add_u32 v30, 1, v30")
    await_lds(L_TOK, 0, 33, STOK, nonzero=True, slp=4)
    A(f"s_bfe_u32 s{STAG}, s{STOK}, 0x120001")
    if PD0: A(f"s_sleep {PD0}")
    L("K_REC0")
    A(f"s_mov_b32 s{SSP}, {SPIN}")
    A(f"s_mov_b64 vcc, {sr(SOWN,2)}")
    L("K_OFS")
    A("s_mov_b64 exec, vcc")
    A(f"buffer_load_dwordx2 {vr(GRT,2)}, v31, {sr(SW,4)}, s{SB8} offen sc1")
    A("s_mov_b64 exec, -1")
    L("K_OFS1")
    A("s_waitcnt vmcnt(0)")
    A(f"v_cmp_ne_u32 vcc, s{STOK}, v{GRT}")
    A(f"s_and_b64 vcc, vcc, {sr(SOWN,2)}")
    A("s_cbranch_scc0 K_OFSOK")
    A(f"s_sub_u32 s{SSP}, s{SSP}, 1")
    A("s_cbranch_scc1 K_END")
    A(f"s_sleep {SLP_N}")
    A("s_branch K_OFS")
    L("K_OFSOK")
    stamp(5)
    A(f"v_lshrrev_b32 v{GRT}, 16, v{GRT+1}")
    A(f"v_and_b32 v{GRT+1}, 0xffff, v{GRT+1}")
    A(f"v_cndmask_b32 v{GRT}, 0, v{GRT}, {sr(SOWN,2)}")
    A("v_lshrrev_b32 v32, 1, v0")
    A(f"s_movk_i32 s{T0}, {CH}")
    A(f"v_mad_u32_u24 v{GRT+1}, v32, s{T0}, v{GRT+1}")
    A("v_and_b32 v32, 1, v0")
    A("v_lshlrev_b32 v32, 1, v32")
    A(f"v_add_lshl_u32 v{PZ+1}, v{GRT+1}, v32, 3")
    A(f"v_sub_i32 v{PZ}, v{GRT}, v32")
    A(f"v_mov_b32 v{VDEG}, 0")
    A(f"v_mov_b32 v{OUTA}, 0")
    L("K_RECS")
    A(f"s_mov_b32 s{T0}, {hex(WS_REC)}")
    for k in range(8):
        A(f"v_cmp_lt_i32 {sr(MK[k],2)}, {4*(k>>1) + (k&1)}, v{PZ}")
    A(f"v_cmp_lt_i32 vcc, 16, v{PZ}")
    A("v_mov_b32 v88, 4")
    A("v_mov_b32 v89, 0")
    A("v_mov_b32 v90, 1")
    A("s_cbranch_vccz K_RM")
    A(f"ds_write_b32 v89, v90 offset:{L_FLAG}")
    L("K_RM")
    A(f"s_mov_b32 s{SSP}, {SPIN}")
    L("K_RLD")
    for k in range(4):
        A(f"s_mov_b64 exec, {sr(MK[2*k],2)}")
        A("s_cbranch_execz K_RL")
        A(f"buffer_load_dwordx4 {vr(RC+4*k,4)}, v{PZ+1}, {sr(SW,4)}, s{T0} offen offset:{32*k} sc1")
    L("K_RL")
    A("s_mov_b64 exec, -1")
    L("K_NOU")
    A(f"s_mov_b64 {sr(TP,2)}, 0")
    A("s_waitcnt vmcnt(0)")
    for k in range(8):
        A(f"s_mov_b64 exec, {sr(MK[k],2)}")
        A("s_cbranch_execz K_RV")
        A(f"v_lshrrev_b32 v91, 14, v{RC+2*k}")
        A(f"v_cmp_ne_u32 vcc, s{STAG}, v91")
        A(f"s_or_b64 {sr(TP,2)}, {sr(TP,2)}, vcc")
    L("K_RV")
    A("s_mov_b64 exec, -1")
    A(f"s_cmp_eq_u64 {sr(TP,2)}, 0")
    A("s_cbranch_scc1 K_RVOK")
    A(f"s_sub_u32 s{SSP}, s{SSP}, 1")
    A("s_cbranch_scc1 K_END")
    A(f"s_sleep {SLP_N}")
    A("s_branch K_RLD")
    L("K_RVOK")
    stamp(6)
    NL, RK, PS = 64, 72, 80
    A(f"s_mov_b32 s{T1}, {hex(FBASE)}")
    for k in range(8):
        A(f"s_mov_b64 exec, {sr(MK[k],2)}")
        A("s_cbranch_execz K_R1")
        A(f"v_and_b32 v{NL+k}, 0xfc, v{RC+2*k+1}")
        A(f"ds_add_rtn_u32 v{RK+k}, v{NL+k}, v88")
        A(f"v_and_b32 v{RC+2*k}, 0x3fff, v{RC+2*k}")
        A(f"v_lshl_or_b32 v{RC+2*k}, v{RC+2*k}, 9, s{T1}")
    L("K_R1")
    A("s_mov_b64 exec, 1")
    A("s_waitcnt lgkmcnt(0)")
    A(f"ds_add_u32 v89, v90 offset:{L_GC+16}")
    A("s_mov_b64 exec, -1")
    A(f"v_mov_b32 v{VZ}, 0")
    await_lds(L_GC + 16, 8, 91, T0)
    stamp(7)
    def scan_and_decide(tag, with_perm):
        A(f"ds_read_b32 v{VCNT}, v2")
        A(f"ds_read_b32 v91, v89 offset:{L_FLAG}")
        A("s_waitcnt lgkmcnt(1)")
        A(f"v_add_u32_dpp v{VEND}, v{VCNT}, v{VCNT} row_shr:1 row_mask:0xf bank_mask:0xf bound_ctrl:0")
        A(f"v_add_u32 v{VDEG}, v{VDEG}, v{VCNT}")
        for k, ctl in enumerate(SCAN):
            A("s_nop 0" if k == 0 else "s_nop 1")
            A(f"v_add_u32_dpp v{VEND}, v{VEND}, v{VEND} {ctl}")
        A(f"v_sub_u32 v{VB4}, v{VEND}, v{VCNT}")
        A("s_waitcnt lgkmcnt(0)")
        A(f"v_readlane_b32 s{STOT}, v{VEND}, 63")
        if with_perm:
            for k in range(8):
                A(f"s_cmp_eq_u64 {sr(MK[k],2)}, 0")
                A(f"s_cbranch_scc1 K_R2{tag}")
                A(f"ds_bpermute_b32 v{PS+k}, v{NL+k}, v{VB4}")
            L(f"K_R2{tag}")
        A(f"v_readfirstlane_b32 s{SLP}, v91")
        A(f"s_add_u32 s{T1}, s{STOT}, 60")
        A(f"s_lshr_b32 s{SLEN}, s{T1}, 6")
        A(f"s_lshl_b32 s{T1}, s{SLEN}, 2")
        A(f"s_add_u32 s{T2}, s{T1}, 4")
        A(f"v_cmp_lt_u32 vcc, s{T2}, v{VCNT}")
        A(f"s_and_b32 s{T3}, s{SLEN}, 63")
        if with_perm:
            A(f"v_readlane_b32 s{T0}, v30, s{T3}")
        A(f"s_andn2_b32 s{SFAST}, s{SFIRST}, s{SMODE}")
        A(f"s_andn2_b32 s{SFAST}, s{SFAST}, s{SLP}")
        A(f"s_cmp_gt_u32 s{STOT}, {4*WIN}")
        A(f"s_cselect_b32 s{SFAST}, 0, s{SFAST}")
        A(f"s_sub_u32 s{T1}, {PRIV_B}, s{T1}")
        A("s_cmp_lg_u64 vcc, 0")
        A(f"s_cselect_b32 s{SFAST}, 0, s{SFAST}")
    scan_and_decide("a", True)
    A(f"v_mov_b32 v92, s{SFAST}")
    A(f"ds_write_b32 v89, v92 offset:{L_FLAG+12}")
    A(f"s_cmp_eq_u32 s{SFAST}, 0")
    A("s_waitcnt lgkmcnt(0)")
    A("s_cbranch_scc1 K_WL")
    for k in range(8):
        A(f"s_mov_b64 exec, {sr(MK[k],2)}")
        A("s_cbranch_execz K_WB")
        A(f"v_add_u32 v{PS+k}, v{PS+k}, v{RK+k}")
        A(f"v_mul_u32_u24 v{RK+k}, s{T0}, v{PS+k}")
        A(f"v_lshrrev_b32 v{RK+k}, 18, v{RK+k}")
        A(f"v_mad_u32_u24 v{PS+k}, v{RK+k}, s{T1}, v{PS+k}")
        A(f"ds_write_b32 v{PS+k}, v{RC+2*k} offset:{L_PRIV}")
        A(f"ds_write_b32 v{PS+k}, v{RC+2*k+1} offset:{L_PRIV + PRIV_N*4}")
    L("K_WB")
    A("s_mov_b64 exec, 1")
    A(f"ds_add_u32 v89, v90 offset:{L_GC+20}")
    A("s_mov_b64 exec, -1")
    L("K_B3")
    A(f"s_mov_b32 s{SW2}, 1")
    A("v_mov_b32 v89, 0")
    A("s_waitcnt vmcnt(0) lgkmcnt(0)")
    A("s_barrier")
    stamp(8)
    def row_load(d, p, pair=False):
        if not pair:
            A(f"v_add_u32 v{p}, v{p}, v2")
        A(f"buffer_load_dword v{d}, v{p}, {sr(ST,4)}, 0 offen sc1")
        A(f"buffer_load_dword v{d+1}, v{p}, {sr(ST,4)}, 0 offen offset:256 sc1")
    TI = 16
    A(f"ds_read_b32 v92, v89 offset:{L_FLAG+12}")
    for k in range(R // 4):
        A(f"ds_read_b128 {vr(TI+4*k,4)}, v{VP} offset:{16*k}")
    A(f"ds_read_b128 {vr(W,4)}, v{VL16} offset:{L_CV}")
    A("s_waitcnt lgkmcnt(2)")
    A(f"v_readfirstlane_b32 s{T0}, v92")
    A(f"s_cmp_eq_u32 s{T0}, 0")
    A("s_cbranch_scc1 K_R3")
    for k in range(F1):
        if k == 4: A("s_waitcnt lgkmcnt(1)")
        row_load(DAT + 2*k, TI + k)
    L("K_R3")
    A(f"s_cmp_lt_u32 s{SWV}, 8")
    A("s_cbranch_scc1 K_R4")
    scan_and_decide("g", False)
    L("K_R4")
    A(f"s_cmp_eq_u32 s{SFAST}, 0")
    A("s_cbranch_scc1 K_SLOW")
    A(f"v_add_u32 v{Q+3}, v{VP}, v2")
    A(f"ds_read_b32 v{Q}, v{Q+3} offset:{PRIV_N*4}")
    for k in range(R // 4):
        A(f"ds_read_b128 {vr(EV+4*k,4)}, v{VP} offset:{PRIV_N*4 + 16*k}")
    A(f"ds_read_b128 {vr(OG[0],4)}, v{VP} offset:{R*4}")
    A(f"s_mul_i32 s{T0}, s{SLEN}, s{SWV}")
    A(f"s_add_u32 s{T3}, s{T0}, s{SLEN}")
    A(f"s_lshl_b32 s{T0}, s{T0}, 2")
    A(f"s_lshl_b32 s{T3}, s{T3}, 2")
    A(f"s_min_u32 s{T0}, s{T0}, s{STOT}")
    A(f"s_min_u32 s{T3}, s{T3}, s{STOT}")
    A(f"s_sub_u32 s{SNN}, s{T3}, s{T0}")
    A(f"s_lshr_b32 s{SNN}, s{SNN}, 2")
    A(f"v_cmp_gt_u32 vcc, s{T0}, v{VB4}")
    A(f"v_cmp_lt_u32 {sr(TP,2)}, s{T0}, v{VEND}")
    A(f"s_and_b64 vcc, vcc, {sr(TP,2)}")
    A(f"s_cselect_b32 s{SLP}, 1, 0")
    A(f"v_cmp_gt_u32 vcc, s{T3}, v{VB4}")
    A(f"v_cmp_lt_u32 {sr(TP,2)}, s{T3}, v{VEND}")
    A(f"s_and_b64 vcc, vcc, {sr(TP,2)}")
    A(f"s_cselect_b32 s{STAIL}, 1, 0")
    A(f"v_cmp_le_u32 vcc, s{SNN}, v1")
    A(f"s_movk_i32 s{T2}, {QROW//4}")
    A(f"s_movk_i32 s{T3}, {HROW//4}")
    A(f"s_mov_b32 s{SREM}, s{SNN}")
    A("s_waitcnt lgkmcnt(0)")
    A(f"v_and_b32 v{Z2}, 0xfc, v{EV}")
    A(f"v_and_b32 v{Q+1}, 0xfc, v{Q}")
    A(f"v_mad_u32_u24 v{Z2+1}, v{Z2}, s{T2}, v{VQ16}")
    A("s_setprio 3")
    A(f"v_mov_b32_dpp v{Q+2}, v{Q+1} wave_shr:1 row_mask:0xf bank_mask:0xf")
    A(f"v_cmp_ne_u32 {sr(SM,2)}, v{Q+1}, v{Q+2}")
    A(f"ds_read_b128 {vr(Q,4)}, v{Z2+1}")
    A(f"s_or_b64 {sr(SM,2)}, {sr(SM,2)}, vcc")
    for k in range(4):
        A(f"v_add_u32 v{OG[0]+k}, v{OG[0]+k}, v2")
    def tail_prep():
        A(f"v_lshlrev_b32 v{Z+1}, 2, v{VC}")
        A(f"v_lshlrev_b32 v{Z+2}, 4, v{VG}")
        for mt in range(3):
            A(f"v_add_u32 v{T+3}, {64*mt}, v{Z+1}")
            A(f"ds_bpermute_b32 v{T+mt}, v{T+3}, v{VDEG}")
        A(f"s_lshl_b32 s{T0}, s{SWV}, 6")
        A(f"v_add_u32 v{Z+3}, s{T0}, v{Z+2}")
        A(f"ds_read_b128 {vr(B2F,4)}, v{Z+3} offset:{L_CV+2048}")
        A(f"s_movk_i32 s{T1}, {HROW}")
        A(f"v_mad_u32_u24 v{AD}, v{VC}, s{T1}, v{Z+2}")
        A(f"v_lshlrev_b32 v{OUTA}, 8, v{VC}")
        A(f"v_lshl_add_u32 v{OUTA}, v{VG}, 3, v{OUTA}")
        A(f"v_add_u32 v{Z+2}, {L_ZROW}, v{Z+2}")
        A(f"v_add_u32 v{AD+2}, {L_H + 32*HROW}, v{AD}")
        A(f"v_add_u32 v{AD+1}, {L_H + 16*HROW}, v{AD}")
        A(f"v_add_u32 v{AD}, {L_H}, v{AD}")
        A("s_waitcnt lgkmcnt(0)")
        for mt in range(3):
            A(f"v_cmp_eq_u32 vcc, 0, v{T+mt}")
            A(f"v_cvt_f32_u32 v{T+mt}, v{T+mt}")
            A(f"v_mul_f32 v{T+mt}, 0x3e800000, v{T+mt}")
            A(f"v_cndmask_b32 v{AD+mt}, v{AD+mt}, v{Z+2}, vcc")
            sel = "op_sel_hi:[1,0]" if mt % 2 == 0 else "op_sel:[0,1]"
            A(f"v_pk_mul_f32 {vr(OV+4*mt,2)}, {vr(B2F,2)}, {vr(T+(mt&2),2)} {sel}")
            A(f"v_pk_mul_f32 {vr(OV+4*mt+2,2)}, {vr(B2F+2,2)}, {vr(T+(mt&2),2)} {sel}")
    def w2_load():
        A(f"s_mov_b32 s{SW2}, 0")
        A(f"s_lshl_b32 s{T0}, s{SWV}, 13")
        A(f"s_add_u32 s{T0}, s{T0}, {hex(WS_W2F)}")
        A(f"s_add_u32 s{T1}, s{T0}, 4096")
        for k in range(8):
            A(f"buffer_load_dwordx4 {vr(W2R+4*k,4)}, v{VL16}, {sr(SW,4)}, s{T0 + k//4} offen offset:{(k%4)*1024} sc1")
    A(f"s_cmp_ge_u32 s{SWV}, 8")
    A("s_cbranch_scc1 K_NOTP")
    tail_prep()
    L("K_NOTP")
    for k in range(F1, R):
        row_load(DAT + 2*k, TI + k)
    A(f"v_mov_b32 v{LO}, v{Z2}")
    A(f"v_mov_b32 v{PZ}, 0")
    A(f"v_mov_b32 v{PZ+1}, 0")
    VW = 2 * (R - 1)
    if STAMP:
        A(f"s_waitcnt vmcnt({VW})")
        stamp(9)
    A(f"s_cmp_eq_u32 s{SNN}, 0")
    A("s_cbranch_scc1 K_WDONE")
    A("s_branch K_HC0")

    def e_sel(s):
        base = EV + (s & ~1)
        return (vr(base, 2), "op_sel_hi:[1,0,1]") if s % 2 == 0 else (vr(base, 2), "op_sel:[0,1,0]")
    def part_z1(s, z):
        ep, es = e_sel(s)
        return [f"v_pk_fma_f32 {vr(z,2)}, {vr(W,2)}, {ep}, {vr(Q,2)} {es}",
                f"v_pk_fma_f32 {vr(z+2,2)}, {vr(W+2,2)}, {ep}, {vr(Q+2,2)} {es}"]
    def part_z2(s, z, zo=None, lo=LO):
        d = DAT + 2*s
        zo = z if zo is None else zo
        return [f"v_lshlrev_b64 {vr(lo,2)}, 16, {vr(d,2)}",
                f"v_pk_fma_f32 {vr(zo,2)}, {vr(d,2)}, {C2}, {vr(z,2)}",
                f"v_pk_fma_f32 {vr(zo+2,2)}, {vr(lo,2)}, {C2}, {vr(z+2,2)}"]
    def part_exp(z): return [f"v_exp_f32 v{T+k}, v{z+k}" for k in range(4)]
    def part_nd(z):
        return [f"v_pk_fma_f32 {vr(NN,2)}, {vr(NN,2)}, {vr(T,2)}, {vr(NN,2)}",
                f"v_pk_fma_f32 {vr(NN+2,2)}, {vr(NN+2,2)}, {vr(T+2,2)}, {vr(NN+2,2)}",
                f"v_pk_fma_f32 {vr(NN,2)}, {vr(z,2)}, {vr(DD,2)}, {vr(NN,2)}",
                f"v_pk_fma_f32 {vr(NN+2,2)}, {vr(z+2,2)}, {vr(DD+2,2)}, {vr(NN+2,2)}",
                f"v_pk_fma_f32 {vr(DD,2)}, {vr(DD,2)}, {vr(T,2)}, {vr(DD,2)}",
                f"v_pk_fma_f32 {vr(DD+2,2)}, {vr(DD+2,2)}, {vr(T+2,2)}, {vr(DD+2,2)}"]
    def addr_prep(k):
        A("s_waitcnt lgkmcnt(0)")
        A(f"v_pk_add_f32 {vr(OG[k],2)}, {vr(OG[k],2)}, v[2:3] op_sel:[0,1]")
        A(f"v_pk_add_f32 {vr(OG[k]+2,2)}, {vr(OG[k]+2,2)}, v[2:3] op_sel:[0,1]")
    def refill(s):
        og = OG[(s // 4) % 2]
        if s % 4 == 0:
            A(f"ds_read_b128 {vr(OG[(s//4+1)%2],4)}, v{VP} offset:{(R+s+4)*4}")
        row_load(DAT + 2*s, og + s % 4, pair=True)
        if s % 4 == 3:
            addr_prep((s // 4 + 1) % 2)
            A(f"ds_read_b128 {vr(EV+s-3,4)}, v{VP} offset:{PRIV_N*4 + (R+s-3)*4}")
    L("K_LOOP")
    for g in range(R // 4):
        L(f"K_G{g}")
        A(f"s_and_b32 s{T0}, s{SM}, {hex(0xF << (4*g))}")
        A(f"s_cbranch_scc1 K_S{4*g}")
        zz = [Z, Z2]
        s0 = 4*g
        for x in part_z1(s0, zz[0]): A(x)
        A(f"s_waitcnt vmcnt({VW})")
        for x in part_z2(s0, zz[0]): A(x)
        refill(s0)
        for k in range(4):
            s = s0 + k
            z, zn = zz[k % 2], zz[(k + 1) % 2]
            ex, nd = part_exp(z), part_nd(z)
            if k < 3:
                a, b = part_z1(s + 1, zn), part_z2(s + 1, zn)
                A(ex[0]); A(a[0]); A(ex[1]); A(a[1]); A(ex[2])
                A(f"s_waitcnt vmcnt({VW})")
                A(b[0]); A(ex[3]); A(nd[0]); A(b[1]); A(nd[1]); A(nd[2]); A(b[2]); A(nd[3])
                refill(s + 1)
                A(nd[4]); A(nd[5])
            else:
                for x in ex + nd: A(x)
    L("K_PEND")
    A(f"v_add_u32 v{VP}, {R*4}, v{VP}")
    A(f"s_lshr_b64 {sr(SM,2)}, {sr(SM,2)}, {R}")
    A(f"s_sub_u32 s{SREM}, s{SREM}, {R}")
    for thr, p in PRIO_T:
        A(f"s_cmp_gt_u32 s{SREM}, {thr}")
        A("s_cbranch_scc1 K_LOOP")
        A(f"s_setprio {p}")
    A(f"s_cmp_ge_u32 s{SWV}, 8")
    A("s_cbranch_scc1 K_LOOP")
    A(f"s_cmp_eq_u32 s{SW2}, 0")
    A("s_cbranch_scc1 K_LOOP")
    w2_load()
    A("s_branch K_LOOP")
    for s in range(R):
        L(f"K_S{s}")
        A(f"s_bitcmp1_b32 s{SM}, {s}")
        A(f"s_cbranch_scc1 K_H{s}")
        for x in part_z1(s, Z): A(x)
        A(f"s_waitcnt vmcnt({VW})")
        for x in part_z2(s, Z) + part_exp(Z) + part_nd(Z): A(x)
        L(f"K_J{s}")
        refill(s)
        if s % 4 == 3:
            A(f"s_branch K_G{s//4+1}" if s + 1 < R else "s_branch K_PEND")
    def fold():
        for k in range(4):
            A(f"v_rcp_f32 v{T+k}, v{DD+k}")
        A(f"v_pk_fma_f32 {vr(PZ,2)}, {vr(DD,2)}, {vr(NN,2)}, {vr(PZ,2)}")
        A(f"v_pk_fma_f32 {vr(PZ,2)}, {vr(DD+2,2)}, {vr(NN+2,2)}, {vr(PZ,2)}")
        A(f"v_pk_mul_f32 {vr(Z,2)}, {vr(NN,2)}, {vr(T,2)}")
        A(f"v_pk_mul_f32 {vr(Z+2,2)}, {vr(NN+2,2)}, {vr(T+2,2)}")
    def lead_flush():
        A(f"v_add_u32 v{Z2}, s{SSIDE}, v{VL16}")
        A(f"s_lshl_b32 s{T0}, s{SWV}, 2")
        A(f"v_mov_b32 v{Z2+1}, s{T0}")
        A(f"v_mov_b32 v{Z2+2}, 1")
        A(f"ds_write_b128 v{Z2}, {vr(Z,4)}")
        A(f"ds_write_b32 v{Z2+1}, v{Z2+2} offset:{L_SFL}")
        A(f"s_mov_b32 s{SLP}, 0")
    for s in range(R):
        L(f"K_H{s}")
        A(f"s_cmp_eq_u32 s{SREM}, {s}")
        A("s_cbranch_scc1 K_LAST")
        A(f"v_and_b32 v{LO}, 0xfc, v{EV+s}")
        A(f"v_mad_u32_u24 v{LO+1}, v{LO}, s{T2}, v{VQ16}")
        A(f"ds_read_b128 {vr(Q,4)}, v{LO+1}")
        fold()
        A(f"s_cmp_lg_u32 s{SLP}, 0")
        A(f"s_cbranch_scc1 K_LS{s}")
        A(f"v_cvt_pk_bf16_f32 v{Z}, v{Z}, v{Z+1}")
        A(f"v_cvt_pk_bf16_f32 v{Z+1}, v{Z+2}, v{Z+3}")
        A(f"ds_write_b64 v{VA}, {vr(Z,2)}")
        L(f"K_HC{s}")
        A(f"v_mad_u32_u24 v{VA}, v{LO}, s{T3}, v{VH8}")
        A(f"s_waitcnt vmcnt({VW}) lgkmcnt(0)")
        for x in part_z1(s, Z) + part_z2(s, Z, NN) + part_exp(NN): A(x)
        A(f"v_pk_add_f32 {vr(DD,2)}, {vr(T,2)}, 1.0 op_sel_hi:[1,0]")
        A(f"v_pk_add_f32 {vr(DD+2,2)}, {vr(T+2,2)}, 1.0 op_sel_hi:[1,0]")
        A(f"s_branch K_J{s}")
        L(f"K_LS{s}")
        lead_flush()
        A(f"s_branch K_HC{s}")
    L("K_LAST")
    A(f"s_lshl_b32 s{T0}, s{SWV}, 2")
    A(f"v_mov_b32 v{LO}, s{T0}")
    A(f"v_add_u32 v{LO+1}, s{SSIDE}, v{VL16}")
    A(f"ds_read_b32 v{Z2}, v{LO} offset:{L_SFL+4}")
    A(f"ds_read_b128 {vr(Q,4)}, v{LO+1} offset:1024")
    fold()
    A(f"s_cmp_eq_u32 s{SLP}, 0")
    A("s_cbranch_scc1 K_L1")
    A("s_waitcnt lgkmcnt(0)")
    lead_flush()
    A("s_branch K_WDONE")
    L("K_L1")
    A(f"s_cmp_eq_u32 s{STAIL}, 0")
    A("s_cbranch_scc1 K_L3")
    A(f"s_mov_b32 s{SSP}, {SPIN}")
    L("K_L2")
    A("s_waitcnt lgkmcnt(0)")
    A(f"v_readfirstlane_b32 s{T0}, v{Z2}")
    A(f"s_cmp_lg_u32 s{T0}, 0")
    A("s_cbranch_scc1 K_L2B")
    A(f"s_sub_u32 s{SSP}, s{SSP}, 1")
    A("s_cbranch_scc1 K_L2B")
    A("s_sleep 2")
    A(f"ds_read_b32 v{Z2}, v{LO} offset:{L_SFL+4}")
    A(f"ds_read_b128 {vr(Q,4)}, v{LO+1} offset:1024")
    A("s_branch K_L2")
    L("K_L2B")
    A(f"v_pk_add_f32 {vr(Z,2)}, {vr(Z,2)}, {vr(Q,2)}")
    A(f"v_pk_add_f32 {vr(Z+2,2)}, {vr(Z+2,2)}, {vr(Q+2,2)}")
    L("K_L3")
    A(f"v_cvt_pk_bf16_f32 v{Z}, v{Z}, v{Z+1}")
    A(f"v_cvt_pk_bf16_f32 v{Z+1}, v{Z+2}, v{Z+3}")
    A(f"ds_write_b64 v{VA}, {vr(Z,2)}")
    L("K_WDONE")
    stamp(10)
    A(f"v_add_f32 v{T}, v{PZ}, v{PZ+1}")
    A(f"v_mov_b32 v{Z2+1}, 0x207")
    A(f"v_cmp_class_f32 vcc, v{T}, v{Z2+1}")
    A(f"v_mov_b32 v{Z2+2}, 0")
    A(f"s_mov_b32 s{TP}, {hex(C_NLN2)}")
    A(f"s_xor_b32 s{T0}, s{SWV}, 15")
    A(f"s_or_b32 s{T0}, s{T0}, s2")
    A("s_cbranch_scc1 K_NOCLR")
    srd(SO, PDBG, 256)
    A(f"buffer_store_dword v{Z2+2}, v2, {sr(SO,4)}, 0 offen sc1")
    L("K_NOCLR")
    srd(SO, POUT, N * D * 2)
    A("s_cbranch_vccz K_NOG")
    A(f"ds_write_b32 v{Z2+2}, v{Z2+1} offset:{L_FLAG+8}")
    L("K_NOG")
    A(f"s_cmp_ge_u32 s{SWV}, 8")
    A("s_cbranch_scc1 K_B4")
    A(f"s_cmp_eq_u32 s{SW2}, 0")
    A("s_cbranch_scc1 K_B4")
    w2_load()
    L("K_B4")
    A("s_waitcnt vmcnt(0) lgkmcnt(0)")
    A("s_barrier")
    stamp(11)
    A(f"ds_read_b32 v{Z2+3}, v{Z2+2} offset:{L_FLAG+8}")
    A(f"s_cmp_ge_u32 s{SWV}, 8")
    A("s_cbranch_scc1 K_CHK")
    HB = [48 + 4*k for k in range(8)]
    ACC = [12, 16, 20]
    seq = [(mt, s) for mt in range(3) for s in range(8)]
    PRE = 7
    for k in range(PRE):
        mt, s = seq[k]
        A(f"ds_read_b128 {vr(HB[k%8],4)}, v{AD+mt} offset:{s*64}")
    def epi(mt):
        for r in range(4):
            A(f"v_fma_f32 v{OV+4*mt+r}, v{ACC[mt]+r}, s{TP}, v{OV+4*mt+r}")
        A(f"v_cvt_pk_bf16_f32 v{32+2*mt}, v{OV+4*mt}, v{OV+4*mt+1}")
        A(f"v_cvt_pk_bf16_f32 v{33+2*mt}, v{OV+4*mt+2}, v{OV+4*mt+3}")
    for k, (mt, s) in enumerate(seq):
        if k + PRE < 24:
            m2, s2 = seq[k+PRE]
            A(f"ds_read_b128 {vr(HB[(k+PRE)%8],4)}, v{AD+m2} offset:{s2*64}")
        A(f"s_waitcnt lgkmcnt({min(PRE, 23-k)})")
        c = "0" if s == 0 else vr(ACC[mt], 4)
        A(f"v_mfma_f32_16x16x32_bf16 {vr(ACC[mt],4)}, {vr(W2R+4*s,4)}, {vr(HB[k%8],4)}, {c}")
        if s == 4 and mt > 0:
            epi(mt - 1)
    A("s_nop 7")
    epi(2)
    L("K_CHK")
    A("s_waitcnt lgkmcnt(0)")
    A(f"v_readfirstlane_b32 s{T2}, v{Z2+3}")
    A(f"s_lshl_b32 s{T1}, s{SMODE}, 31")
    A(f"s_or_b32 s{T2}, s{T2}, s{T1}")
    A(f"s_cmp_gt_i32 s{T2}, 0")
    A("s_cbranch_scc1 K_REDO")
    A(f"s_cmp_ge_u32 s{SWV}, 8")
    A("s_cbranch_scc1 K_END2")
    A(f"s_add_u32 s{T2}, s{SOUT}, 4096")
    A(f"s_add_u32 s{T1}, s{SOUT}, 8192")
    A(f"buffer_store_dwordx2 v[32:33], v{OUTA}, {sr(SO,4)}, s{SOUT} offen")
    A(f"buffer_store_dwordx2 v[34:35], v{OUTA}, {sr(SO,4)}, s{T2} offen")
    A(f"s_mov_b64 exec, {sr(SQM,2)}")
    A(f"buffer_store_dwordx2 v[36:37], v{OUTA}, {sr(SO,4)}, s{T1} offen")
    A("s_mov_b64 exec, -1")
    L("K_END2")
    if STAMP:
        stamp(12)
        A("s_waitcnt vmcnt(0)")
        stamp(13)
        A(f"v_writelane_b32 v{VST}, s26, 14")
        A(f"s_lshl_b32 s{T0}, s2, 4")
        A(f"s_add_u32 s{T0}, s{T0}, s{SWV}")
        A(f"s_lshl_b32 s{T0}, s{T0}, 8")
        A(f"s_add_u32 s{T0}, s{T0}, {hex(WS_DBG)}")
        A(f"buffer_store_dword v{VST}, v2, {sr(SW,4)}, s{T0} offen")
    L("K_END")
    A("s_endpgm")

    L("K_WL")
    for k in range(8):
        A(f"s_mov_b64 exec, {sr(MK[k],2)}")
        A("s_cbranch_execz K_WB")
        A(f"v_add_lshl_u32 v{PS+k}, v{PS+k}, v{RK+k}, 1")
        A(f"ds_write_b64 v{PS+k}, {vr(RC+2*k,2)} offset:{L_LIST}")
    A("s_branch K_WB")
    L("K_REDO")
    A(f"s_mov_b32 s{SMODE}, 1")
    A("s_setprio 0")
    A(f"v_and_b32 v{VC}, 15, v1")
    A(f"v_lshrrev_b32 v{VG}, 4, v1")
    A(f"v_mov_b32 v{VDEG}, 0")
    A(f"v_mov_b32 v{PZ}, 0")
    A(f"s_mov_b32 s{SFIRST}, 1")
    A("v_lshrrev_b32 v31, 1, v0")
    A("v_lshlrev_b32 v31, 11, v31")
    def reset_round():
        A("s_barrier")
        A(f"s_cmp_lg_u32 s{SWV}, 0")
        uid[0] += 1
        A(f"s_cbranch_scc1 K_RR{uid[0]}")
        A("v_mov_b32 v89, 0")
        A("ds_write_b32 v2, v89")
        A(f"ds_write_b32 v89, v89 offset:{L_FLAG}")
        A(f"ds_write_b32 v89, v89 offset:{L_GC+16}")
        A("s_waitcnt lgkmcnt(0)")
        L(f"K_RR{uid[0]}")
        A("s_barrier")
    reset_round()
    A(f"s_cmp_ge_u32 s{SWV}, 8")
    A("s_cbranch_scc1 K_B3")
    A("s_branch K_REC0")
    L("K_SLOW")
    A(f"s_cmp_eq_u32 s{SFIRST}, 0")
    A("s_cbranch_scc1 K_SL0")
    for k in range(12):
        A(f"v_mov_b32 v{SACC+k}, 0")
    L("K_SL0")
    for i in range(3):
        A(f"s_add_u32 s{T0}, s{SWV}, {16*i}")
        A(f"v_readlane_b32 s{T1}, v{VB4}, s{T0}")
        A(f"v_readlane_b32 s{T2}, v{VCNT}, s{T0}")
        A(f"s_mul_i32 s{T3}, s{T0}, {QROW}")
        A(f"s_cmp_eq_u32 s{T2}, 0")
        A(f"s_cbranch_scc1 K_SLN{i}")
        A(f"v_add_u32 v{Z2}, s{T3}, v{VQ16}")
        A(f"ds_read_b128 {vr(Q,4)}, v{Z2}")
        A(f"s_lshl_b32 s{T1}, s{T1}, 1")
        A(f"v_mov_b32 v{VA}, s{T1}")
        L(f"K_SLL{i}")
        A(f"ds_read_b64 {vr(EV,2)}, v{VA} offset:{L_LIST}")
        A(f"v_add_u32 v{VA}, 8, v{VA}")
        A("s_waitcnt lgkmcnt(0)")
        row_load(DAT + 2, EV)
        for x in part_z1(1, Z): A(x)
        A("s_waitcnt vmcnt(0)")
        for x in part_z2(1, Z, lo=NN) + part_exp(Z): A(x)
        A("s_nop 0")
        for k in range(4):
            A(f"v_add_f32 v{T+k}, 1.0, v{T+k}")
        for k in range(4):
            A(f"v_rcp_f32 v{T+k}, v{T+k}")
        A(f"s_sub_u32 s{T2}, s{T2}, 4")
        for k in range(4):
            A(f"v_fmac_f32 v{SACC+4*i+k}, v{Z+k}, v{T+k}")
        A(f"s_cmp_lg_u32 s{T2}, 0")
        A(f"s_cbranch_scc1 K_SLL{i}")
        L(f"K_SLN{i}")
    A(f"s_mov_b32 s{SFIRST}, 0")
    A("s_waitcnt lgkmcnt(0)")
    reset_round()
    A(f"s_cmp_eq_u32 s{SLP}, 0")
    A("s_cbranch_scc1 K_SLFIN")
    A(f"s_cmp_ge_u32 s{SWV}, 8")
    A("s_cbranch_scc1 K_B3")
    A(f"v_add_u32 v{PZ}, -16, v{PZ}")
    A(f"v_add_u32 v{PZ+1}, 128, v{PZ+1}")
    A("s_branch K_RECS")
    L("K_SLFIN")
    A(f"v_mov_b32 v{PZ}, 0")
    A(f"v_mov_b32 v{PZ+1}, 0")
    for i in range(3):
        if i == 2:
            A(f"s_cmp_ge_u32 s{SWV}, {NPB-32}")
            A("s_cbranch_scc1 K_WDONE")
        A(f"s_add_u32 s{T0}, s{SWV}, {16*i}")
        A(f"s_mul_i32 s{T0}, s{T0}, {HROW}")
        A(f"v_add_u32 v{Z2}, s{T0}, v{VH8}")
        A(f"v_cvt_pk_bf16_f32 v{Z}, v{SACC+4*i}, v{SACC+4*i+1}")
        A(f"v_cvt_pk_bf16_f32 v{Z+1}, v{SACC+4*i+2}, v{SACC+4*i+3}")
        A(f"ds_write_b64 v{Z2}, {vr(Z,2)}")
    tail_prep()
    A("s_branch K_WDONE")
    L("K_CODE_END")

hdr = f"""; Kernarg layout for this problem (88 bytes, ptrs only, base s[0:1]):
; @launch grid=({NB},1,1) block=(1024,1,1) lds={LDS}
.amdgcn_target "amdgcn-amd-amdhsa--gfx950"
"""
gen()
vg = 128
out.extend(['.section .rodata,"a"', ".p2align 6", f".amdhsa_kernel {KN}",
    f"  .amdhsa_next_free_vgpr {vg}", f"  .amdhsa_next_free_sgpr 102", f"  .amdhsa_accum_offset {vg}",
    "  .amdhsa_group_segment_fixed_size 0", "  .amdhsa_kernarg_size 88", "  .amdhsa_user_sgpr_count 2",
    "  .amdhsa_user_sgpr_kernarg_segment_ptr 1", "  .amdhsa_system_sgpr_workgroup_id_x 1", ".end_amdhsa_kernel"])
txt = hdr + "\n".join(out) + "\n"
dst = sys.argv[1] if len(sys.argv) > 1 else f"fused.s"
open(dst, "w").write(txt)
print("wrote", dst, "LDS", LDS)
```

```python
import sys, struct, os

NAME = "standalone__edge_featured_mpnn_mpnn__graph"
KN = NAME + "_kernel"
N, E, D, H = 10000, 160000, 128, 256
NB, NPB, CH = 250, 40, 640
WS_REC = 0x500000
WS_OFS = 0x680000
WS_PF = 0x700000
WS_W2F = 0x710000
WS_DBG = 0x2000000
WS_BYTES = 0x10000000
R = 8
PRIO_T = eval(os.environ.get("PRIO_T", "((32, 2), (21, 1), (10, 0))"))
STAMP = os.environ.get("STAMP", "0") == "1"
PI = [1, 3, 0, 2]
FBASE = 0x4B000000
SPIN = 1 << 16
WSB = int(os.environ.get('WSB', '0')) << 20
TCH = int(os.environ.get('TCH', '0'))
PLATE = int(os.environ.get('PLATE', '2'))
F1 = int(os.environ.get('F1', '4'))
SLP_F = int(os.environ.get('SLPF', '6'))
SLP_N = int(os.environ.get('SLP', '24'))

def f32bits(x): return struct.unpack("<I", struct.pack("<f", x))[0]
C_NLOG2E = f32bits(-1.4426950408889634)
C_NLN2 = f32bits(-0.6931471805599453)

out = []
def A(s): out.append("    " + s)
def L(s): out.append(s + ":")
def CM(s): out.append("    ; " + s)
def vr(a, n): return f"v[{a}:{a+n-1}]"
def sr(a, n): return f"s[{a}:{a+n-1}]"

PX, PE, PSRC, PDST, PW1, PB1, PW2, PB2 = 4, 6, 8, 10, 12, 14, 16, 18
POUT, PDBG, PWS = 20, 22, 24

def srd(dst, base, nrec, off=None):
    if off is not None:
        A(f"s_add_u32 s{dst}, s{base}, {off}")
        A(f"s_addc_u32 s{dst+1}, s{base+1}, 0")
        src1 = dst + 1
    else:
        A(f"s_mov_b32 s{dst}, s{base}")
        src1 = base + 1
    A(f"s_and_b32 s{dst+1}, s{src1}, 0xffff")
    A(f"s_mov_b32 s{dst+2}, {hex(nrec)}")
    A(f"s_mov_b32 s{dst+3}, 0x20000")

NST = 0
def stamp(k):
    if STAMP: A(f"s_memrealtime s[100:101]"); A("s_waitcnt lgkmcnt(0)"); A(f"v_writelane_b32 v{VST}, s100, {k}")

QROW, HROW, PROW = 1040, 528, 272
L_CNT, L_FLAG, L_SFL, L_ZROW, L_GC, L_TOK = 0, 256, 272, 352, 864, 892
L_CV = 896
L_HIST = L_CV + 2560
L_PRIV = L_HIST + 1024
ZERO_B = L_PRIV
PRIV_N = 64 + R + 8
PRIV_B = PRIV_N * 8
L_H = L_PRIV + 16 * PRIV_B
L_XT = L_H + NPB * HROW
L_SIDE = L_XT
L_Q = L_XT + 20480
L_S = L_Q + NPB * QROW
L_SB = L_H + 10240
L_PT = L_Q
LDS = L_S + 65536
L_LIST = L_HIST
assert LDS <= 163840 and L_XT - L_LIST >= 32000 and L_H % 16 == 0 and L_Q % 16 == 0 and L_S % 16 == 0 and L_XT % 16 == 0
W1B_EARLY = 0
W1B_AT = 2
W1B_H = int(os.environ.get("W1BH", "4"))
GPR = int(os.environ.get("GPR", "2"))
WB0 = int(os.environ.get("WB0", "1"))
GWD = int(os.environ.get("GWD", "99"))
PD0 = int(os.environ.get("PD0", "0"))
WIN = 16 * 63
DUMMY = FBASE + 0x7FF000

VLF, VH8, VL16, VT16, VQ16 = 3, 4, 5, 6, 7
W, Q, NN, DD, Z, Z2, T, LO, PZ = 8, 12, 16, 20, 24, 28, 32, 36, 38
VA, VP, VDEG, VB4, VCNT, VPL, VM, VEND = 40, 41, 42, 43, 44, 45, 46, 47
EV, OG, DAT = 48, [56, 60], 64
AD, OUTA, OV, B2F = 80, 83, 84, 92
XF = 48
WL, PT = 96, 112
W2R = 96
RC = 96
VST = 45
SACC = 112

def gen():
    out.extend([".text", f".globl {KN}", ".p2align 8", f".type {KN},@function"])
    L(KN)
    ST, SW, SO, SX, SY, SZ = 28, 32, 36, 40, 44, 48
    MK = [4 + 2*k for k in range(8)]
    SC = 60
    SMODE, SFIRST, SRND, SFAST, STOK, SSP = 62, 63, 64, 65, 66, 67
    SM = 68
    SREM, STOT, SLP, SNN, SWV = 70, 71, 72, 73, 3
    SN40, SEX = 74, 76
    T0, T1, T2, T3, TP = 78, 79, 80, 81, 82
    STAIL, SSIDE, SLEN, SOUT, SWO = 84, 85, 86, 87, 88
    SQM, P0, P1 = 90, 92, 93
    SB8, SW2, SOWN, STAG, SN80, SCB = 75, 89, 52, 54, 55, 56
    C2 = sr(SC, 2)
    SCAN = ("row_shr:2 row_mask:0xf bank_mask:0xf bound_ctrl:0", "row_shr:4 row_mask:0xf bank_mask:0xf bound_ctrl:0",
            "row_shr:8 row_mask:0xf bank_mask:0xf bound_ctrl:0", "row_bcast:15 row_mask:0xa bank_mask:0xf", "row_bcast:31 row_mask:0xc bank_mask:0xf")
    VC, VG = 36, 37
    GRT = 34
    VZ, VONE = VEND, VM

    A("s_load_dwordx16 s[4:19], s[0:1], 0")
    A("s_load_dwordx4 s[20:23], s[0:1], 64")
    A("s_load_dwordx2 s[24:25], s[0:1], 80")
    A("s_memrealtime s[26:27]")
    CM("pull the code towards the L2 right away (one load per 128-B line; lanes past the code are out of range)")
    A(f"s_getpc_b64 {sr(SX,2)}")
    L("K_PC0")
    A("v_lshlrev_b32 v126, 7, v0")
    A(f"s_and_b32 s{SX+1}, s{SX+1}, 0xffff")
    A(f"s_mov_b32 s{SX+2}, K_CODE_END-K_PC0")
    A(f"s_mov_b32 s{SX+3}, 0x20000")
    A(f"buffer_load_dword v{VDEG}, v126, {sr(SX,4)}, 0 offen")
    A(f"s_cmp_ge_u32 s2, {NB}")
    A("s_cbranch_scc1 K_END")
    A("v_and_b32 v1, 63, v0")
    A("v_lshrrev_b32 v48, 6, v0")
    A(f"v_lshlrev_b32 v{VT16}, 4, v0")
    A(f"v_readfirstlane_b32 s{SWV}, v48")
    A("v_lshlrev_b32 v2, 2, v1")
    A(f"v_lshlrev_b32 v{VL16}, 4, v1")
    A(f"v_and_b32 v{VC}, 15, v1")
    A(f"v_lshrrev_b32 v{VG}, 4, v1")
    if STAMP: A(f"v_mov_b32 v{VST}, 0")
    A(f"v_mov_b32 v{VZ}, 0")
    A(f"v_mov_b32 v{VONE}, 1")
    for k in range(4):
        A(f"v_mov_b32 v{8+k}, 0")
    A(f"s_movk_i32 s{T0}, {ZERO_B//16}")
    A(f"v_cmp_gt_u32 vcc, s{T0}, v0")
    A(f"s_mul_i32 s{SN40}, s2, {NPB}")
    A(f"s_lshr_b32 s{SN80}, s2, 1")
    A(f"s_mul_i32 s{SN80}, s{SN80}, 80")
    A(f"s_and_b32 s{SCB}, s2, 1")
    A(f"s_and_saveexec_b64 {sr(SEX,2)}, vcc")
    A("s_cbranch_execz K_Z1")
    A(f"ds_write_b128 v{VT16}, v[8:11]")
    L("K_Z1")
    A(f"s_mov_b64 exec, {sr(SEX,2)}")
    A(f"s_mov_b32 s{P0}, 0x05040100")
    A(f"s_mov_b32 s{P1}, 0x07060302")
    A(f"s_mov_b32 s{SC}, {hex(C_NLOG2E)}")
    A(f"s_mov_b32 s{SC+1}, {hex(C_NLOG2E)}")
    A(f"s_mul_i32 s{SW2}, s{SWV}, {PRIV_B}")
    A(f"s_add_u32 s{SW2}, s{SW2}, {L_PRIV}")
    A(f"v_add_u32 v30, s{SW2}, v2")
    A(f"v_mov_b32 v31, {hex(DUMMY)}")
    A("ds_write_b32 v30, v31")
    A(f"ds_write_b32 v30, v31 offset:{(PRIV_N-64)*4}")
    A(f"s_cmp_lt_u32 s{SWV}, 8")
    A("s_cbranch_scc1 K_AUX")
    def common_setup():
        if WSB:
            A(f"s_add_u32 s{PWS}, s{PWS}, {hex(WSB)}")
            A(f"s_addc_u32 s{PWS+1}, s{PWS+1}, 0")
        srd(SW, PWS, WS_BYTES - WSB)
        A(f"s_lshl_b32 s{SSIDE}, s{SWV}, 10")
        A(f"s_add_u32 s{SSIDE}, s{SSIDE}, {L_SIDE}")
        A(f"s_mov_b32 s{SMODE}, 0")
        A(f"s_sub_u32 s{ST}, s{PWS}, {hex(FBASE)}")
        A(f"s_subb_u32 s{ST+1}, s{PWS+1}, 0")
        A(f"s_and_b32 s{ST+1}, s{ST+1}, 0xffff")
        A(f"s_mov_b32 s{ST+2}, {hex(FBASE + N*512)}")
        A(f"s_mov_b32 s{ST+3}, 0x20000")
        A(f"s_lshl_b32 s{SB8}, s2, 3")
        A(f"s_add_u32 s{SB8}, s{SB8}, {hex(WS_OFS)}")
        A(f"v_cvt_f32_u32 v{VLF}, v2")
        A(f"v_lshlrev_b32 v{VH8}, 3, v1")
        A(f"v_add_u32 v{VH8}, {L_H}, v{VH8}")
        A(f"v_add_u32 v{VQ16}, {L_Q}, v{VL16}")
        A(f"v_cmp_gt_u32 {sr(SQM,2)}, 8, v{VC}")
        A(f"s_lshl_b32 s{SOUT}, s{SN40}, 8")
        A(f"s_lshl_b32 s{T2}, s{SWV}, 5")
        A(f"s_add_u32 s{SOUT}, s{SOUT}, s{T2}")
        A(f"s_mov_b32 s{SFIRST}, 1")
    uid = [0]
    def arrive(c):
        A("s_mov_b64 exec, 1")
        A(f"ds_add_u32 v{VZ}, v{VONE} offset:{L_GC + 4*c}")
        A("s_mov_b64 exec, -1")
    def await_lds(off, n, vt, sdst, nonzero=False, slp=1):
        uid[0] += 1; u = uid[0]
        A(f"s_mov_b32 s{SSP}, {SPIN*16}")
        L(f"K_AW{u}")
        A(f"ds_read_b32 v{vt}, v{VZ} offset:{off}")
        A("s_waitcnt lgkmcnt(0)")
        A(f"v_readfirstlane_b32 s{sdst}, v{vt}")
        A(f"s_cmp_lg_u32 s{sdst}, 0" if nonzero else f"s_cmp_ge_u32 s{sdst}, {n}")
        A(f"s_cbranch_scc1 K_AWD{u}")
        A(f"s_sub_u32 s{SSP}, s{SSP}, 1")
        A("s_cbranch_scc1 K_END")
        A(f"s_sleep {slp}")
        A(f"s_branch K_AW{u}")
        L(f"K_AWD{u}")
    def perm4(dst, col, src=WL):
        for pr in range(4):
            a, b = src + 8*pr + (col >> 1), src + 8*pr + 4 + (col >> 1)
            A(f"v_perm_b32 v{dst+pr}, v{b}, v{a}, s{P1 if col & 1 else P0}")
    def franks(srdn):
        pass
    VPA, VQA, VB1A, VSW, VWO = 41, 38, 43, 44, 39
    A(f"v_lshlrev_b32 v{VWO}, 12, v{VG}")
    A(f"v_lshl_add_u32 v{VWO}, v{VC}, 4, v{VWO}")
    A(f"s_and_b32 s{T0}, s{SWV}, 3")
    A(f"s_bfe_u32 s{T3}, s{SWV}, 0x10002")
    A(f"s_lshl_b32 s{SWO}, s{T0}, 14")
    A(f"s_lshl_b32 s{T1}, s{T3}, 11")
    A(f"s_add_u32 s{T1}, s{T1}, s{SWO}")
    A(f"s_lshl_b32 s{T2}, s{SCB}, 8")
    A(f"s_add_u32 s{T1}, s{T1}, s{T2}")
    A(f"s_lshl_b32 s{T2}, s{T3}, 8")
    A(f"s_add_u32 s{SWO}, s{SWO}, s{T2}")
    A(f"s_add_u32 s{SWO}, s{SWO}, {128*512}")
    A("s_waitcnt lgkmcnt(0)")
    srd(SY, PW1, 257 * 512)
    if not WB0: A("s_barrier")
    for j in range(4):
        A(f"buffer_load_dwordx4 {vr(64+4*j,4)}, v{VWO}, {sr(SY,4)}, s{T1} offen offset:{512*j}")
    if WB0: A("s_barrier")
    if GPR: A(f"s_setprio {GPR}")
    if W1B_EARLY:
        for j in range(8):
            A(f"buffer_load_dwordx4 {vr(WL+4*j,4)}, v{VWO}, {sr(SY,4)}, s{SWO} offen offset:{512*j}")
    if W1B_H == 3:
        A(f"s_cmp_ge_u32 s{SWV}, 12")
        A("s_cbranch_scc1 K_NOH3")
        for j in range(8):
            A(f"buffer_load_dwordx4 {vr(WL+4*j,4)}, v{VWO}, {sr(SY,4)}, s{SWO} offen offset:{512*j}")
        L("K_NOH3")
    common_setup()
    A(f"s_lshl_b32 s{T0}, s{T0}, 10")
    A(f"s_add_u32 s{T0}, s{T0}, {L_S}")
    A(f"s_lshl_b32 s{T1}, s{T3}, 3")
    A(f"s_add_u32 s{T1}, s{T1}, s{T0}")
    A(f"v_add_u32 v12, s{T1}, v{VL16}")
    A(f"s_lshl_b32 s{T1}, s{T3}, 15")
    A(f"s_add_u32 s{T1}, s{T1}, s{T0}")
    A(f"v_add_u32 v{VSW}, s{T1}, v{VL16}")
    XA = 8
    A(f"v_xor_b32 v13, v{VG}, v{VC}")
    A("v_lshlrev_b32 v13, 4, v13")
    A(f"v_lshl_add_u32 v13, v{VC}, 8, v13")
    for s_ in range(4):
        A(f"v_xor_b32 v{XA+s_}, {64*s_}, v13")
    A(f"s_sub_u32 s{T0}, s{SWV}, 8")
    A(f"s_lshl_b32 s{T1}, s{T0}, 12")
    A(f"s_add_u32 s{T1}, s{T1}, {L_S}")
    A(f"v_add_u32 v{VA}, s{T1}, v{VL16}")
    A(f"s_lshr_b32 s{T1}, s{T0}, 2")
    A(f"s_lshl_b32 s{T1}, s{T1}, 4")
    A(f"s_and_b32 s{T2}, s{T0}, 3")
    A(f"s_add_u32 s{T1}, s{T1}, s{T2}")
    A(f"v_lshl_add_u32 v13, v{VG}, 2, s{T1}")
    A(f"s_movk_i32 s{T1}, {PROW}")
    A(f"v_lshlrev_b32 v{VPA}, 2, v13")
    A(f"v_mad_u32_u24 v{VPA}, v{VC}, s{T1}, v{VPA}")
    A(f"v_add_u32 v{VPA}, {L_PT}, v{VPA}")
    A(f"s_mov_b32 s{T2}, 0x8000")
    if W1B_H == 3:
        A(f"s_cmp_lt_u32 s{SWV}, 12")
        A("s_cbranch_scc1 K_NOH3B")
        A("s_waitcnt vmcnt(0)")
        L("K_NOH3B")
        A("s_waitcnt vmcnt(8)")
    else:
        A("s_waitcnt vmcnt(0)")
    stamp(1)
    for pr in range(2):
        for dw in range(4):
            a_, b_ = 64 + 8*pr + dw, 64 + 8*pr + 4 + dw
            A(f"v_perm_b32 v{48+(2*dw)*2+pr}, v{b_}, v{a_}, s{P0}")
            A(f"v_perm_b32 v{48+(2*dw+1)*2+pr}, v{b_}, v{a_}, s{P1}")
    for col in range(8):
        A(f"ds_write_b64 v12, {vr(48+2*col,2)} offset:{col*4096}")
    def w1b_loads():
        for j in range(8):
            A(f"buffer_load_dwordx4 {vr(WL+4*j,4)}, v{VWO}, {sr(SY,4)}, s{SWO} offen offset:{512*j}")
    if W1B_AT == 0: w1b_loads()
    A("s_waitcnt lgkmcnt(0)")
    arrive(0)
    if W1B_H == 4: w1b_loads()
    if W1B_H == 2:
        A(f"s_cmp_ge_u32 s{SWV}, 12")
        A("s_cbranch_scc1 K_NOH2")
        w1b_loads()
        L("K_NOH2")
    await_lds(L_GC, 13, 12, T0)
    stamp(3)
    if W1B_H == 1:
        A(f"s_cmp_ge_u32 s{SWV}, 12")
        A("s_cbranch_scc1 K_NOH1")
        w1b_loads()
        L("K_NOH1")
    AF, XR = 48, [64 + 4*k for k in range(8)]
    ACP = lambda mt: 16 + 4*mt
    for s_ in range(4):
        A(f"ds_read_b128 {vr(AF+4*s_,4)}, v{VA} offset:{s_*1024}")
    seq = [(mt, s_) for mt in range(5) for s_ in range(4)]
    PRE = 7
    def rdx(k):
        mt, s_ = seq[k]
        A(f"ds_read_b128 {vr(XR[k%8],4)}, v{XA+s_} offset:{L_XT + 4096*mt}")
    for k in range(PRE): rdx(k)
    def pack(mt):
        f = [ACP(mt) + r for r in range(4)]
        o = []
        o += [f"v_add_f32 v{f[r]}, 0, v{f[r]}" for r in range(4)]
        o += [f"v_add_u32 v{f[r]}, s{T2}, v{f[r]}" for r in range(4)]
        o += [f"v_sub_u32_sdwa v{f[r]}, v{f[r]}, v{f[r-1]} clamp dst_sel:DWORD dst_unused:UNUSED_PAD src0_sel:DWORD src1_sel:WORD_1" for r in range(1, 4)]
        o += [f"v_perm_b32 v{f[0]}, v{f[1]}, v{f[0]}, s{P1}", f"v_perm_b32 v{f[2]}, v{f[3]}, v{f[2]}, s{P1}"]
        return o
    pend = []
    for k, (mt, s_) in enumerate(seq):
        if k + PRE < 20: rdx(k + PRE)
        A(f"s_waitcnt lgkmcnt({min(PRE, 19-k)})")
        c = "0" if s_ == 0 else vr(ACP(mt), 4)
        A(f"v_mfma_f32_16x16x32_bf16 {vr(ACP(mt),4)}, {vr(AF+4*s_,4)}, {vr(XR[k%8],4)}, {c}")
        if s_ == 3 and mt >= 1: pend += pack(mt - 1)
        for x in pend[:4]: A(x)
        pend = pend[4:]
    for x in pend: A(x)
    A("s_nop 1")
    for x in pack(4): A(x)
    for mt in range(5):
        A(f"ds_write_b32 v{VPA}, v{ACP(mt)} offset:{16*mt*PROW}")
        A(f"ds_write_b32 v{VPA}, v{ACP(mt)+2} offset:{16*mt*PROW + 128}")
    A("v_bfe_u32 v12, v0, 4, 4")
    A(f"s_movk_i32 s{T1}, {PROW}")
    A(f"v_lshlrev_b32 v13, 4, v{VC}")
    A(f"v_mad_u32_u24 v14, v12, s{T1}, v13")
    A(f"v_add_u32 v14, {L_PT}, v14")
    A("v_and_b32 v15, 0x70, v13")
    A("v_lshl_add_u32 v15, v12, 9, v15")
    A("v_and_b32 v13, 0x80, v13")
    A("v_lshl_add_u32 v15, v13, 1, v15")
    A(f"s_lshl_b32 s{T0}, s{SN80}, 9")
    A(f"s_lshl_b32 s{T1}, s{SCB}, 7")
    A(f"s_add_u32 s{T0}, s{T0}, s{T1}")
    A("s_waitcnt lgkmcnt(0)")
    arrive(1)
    await_lds(L_GC + 4, 9, 12, T3)
    stamp(4)
    A(f"s_cmp_lt_u32 s{SWV}, 12")
    A("s_cbranch_scc1 K_GW")
    for k in range(5):
        A(f"ds_read_b128 {vr(48+4*k,4)}, v14 offset:{16*k*PROW}")
    for k in range(5):
        A(f"s_waitcnt lgkmcnt({4-k})")
        A(f"buffer_store_dwordx4 {vr(48+4*k,4)}, v15, {sr(SW,4)}, s{T0} offen sc1")
        A(f"s_add_u32 s{T0}, s{T0}, 8192")
    if W1B_H == 4:
        A("s_waitcnt vmcnt(5)")
        for col in range(8):
            d = 16 + 4 * (col % 5)
            perm4(d, col)
            A(f"ds_write_b128 v{VSW}, {vr(d,4)} offset:{col*4096}")
        A("s_waitcnt lgkmcnt(0)")
    arrive(2)
    await_lds(L_TOK, 0, 14, STOK, nonzero=True)
    A("s_waitcnt vmcnt(0)")
    A("s_mov_b64 exec, 1")
    A(f"ds_add_rtn_u32 v15, v{VZ}, v{VONE} offset:{L_GC+12}")
    A(f"s_lshl_b32 s{T0}, s2, 4")
    A(f"s_add_u32 s{T0}, s{T0}, {hex(WS_PF)}")
    A("s_waitcnt lgkmcnt(0)")
    A(f"v_readfirstlane_b32 s{T1}, v15")
    A(f"s_cmp_lg_u32 s{T1}, 3")
    A("s_cbranch_scc1 K_NOPF")
    A(f"buffer_store_dword v14, v{VZ}, {sr(SW,4)}, s{T0} offen sc1")
    L("K_NOPF")
    A("s_mov_b64 exec, -1")
    stamp(2)
    A("s_branch K_GQ")
    L("K_GW")
    def st1():
        for col in range(8):
            d = 16 + 4 * (col % 5)
            perm4(d, col)
            A(f"ds_write_b128 v{VSW}, {vr(d,4)} offset:{col*4096}")
    if W1B_H:
        A("s_waitcnt vmcnt(0)")
        st1()
    if W1B_H != 4:
        if GWD == 99: await_lds(L_GC + 12, 4, 12, T3, slp=2)
        elif GWD: A(f"s_sleep {GWD}")
        if not W1B_H:
            w1b_loads()
        A(f"s_add_u32 s{T0}, s{SWO}, 256")
        for j in range(8):
            A(f"buffer_load_dwordx4 {vr(64+4*j,4)}, v{VWO}, {sr(SY,4)}, s{T0} offen offset:{512*j}")
        if not W1B_H:
            A("s_waitcnt vmcnt(8)")
            st1()
        A("s_waitcnt vmcnt(0)")
        for col in range(8):
            d = 16 + 4 * ((col + 3) % 5)
            perm4(d, col, 64)
            A(f"ds_write_b128 v{VSW}, {vr(d,4)} offset:{32768 + col*4096}")
    A("s_waitcnt lgkmcnt(0)")
    arrive(2)
    await_lds(L_TOK, 0, 14, STOK, nonzero=True)
    L("K_GQ")
    A(f"s_sub_u32 s{T0}, s{SWV}, 8")
    A(f"s_lshl_b32 s{T1}, s{T0}, 13")
    A(f"s_add_u32 s{T1}, s{T1}, {L_S}")
    A(f"v_add_u32 v{VA}, s{T1}, v{VL16}")
    A(f"s_lshr_b32 s{T1}, s{T0}, 1")
    A(f"s_lshl_b32 s{T1}, s{T1}, 4")
    A(f"s_and_b32 s{T0}, s{T0}, 1")
    A(f"s_lshl_b32 s{T0}, s{T0}, 1")
    A(f"s_add_u32 s{T0}, s{T0}, s{T1}")
    A(f"v_lshl_add_u32 v12, v{VG}, 2, s{T0}")
    A(f"v_lshlrev_b32 v{VB1A}, 4, v12")
    A(f"s_movk_i32 s{T1}, {QROW}")
    A(f"v_mad_u32_u24 v{VPA}, v{VC}, s{T1}, v{VB1A}")
    A(f"v_add_u32 v{VPA}, {L_Q}, v{VPA}")
    A(f"s_mul_i32 s{T0}, s{SCB}, 40")
    A(f"v_add_u32 v12, s{T0}, v{VC}")
    A(f"v_xor_b32 v13, v{VG}, v12")
    A("v_and_b32 v13, 15, v13")
    A("v_lshlrev_b32 v13, 4, v13")
    A("v_lshl_add_u32 v13, v12, 8, v13")
    for s_ in range(4):
        A(f"v_xor_b32 v{XA+s_}, {64*s_}, v13")
    stamp(5)
    for s_ in range(4):
        for mt in range(3):
            A(f"ds_read_b128 {vr(XF+(mt*4+s_)*4,4)}, v{XA+s_} offset:{L_XT + 4096*mt}")
    await_lds(L_GC + 8, 12, 12, T0)
    AC = lambda t, mt: 16 + (t*3 + mt) * 4
    A(f"ds_read_b128 v[8:11], v{VB1A} offset:{L_CV+1024}")
    A(f"ds_read_b128 v[12:15], v{VB1A} offset:{L_CV+1024+16}")
    for k in range(8):
        A(f"ds_read_b128 {vr(WL+4*k,4)}, v{VA} offset:{((k&1)*4 + (k>>1))*1024}")
    for k in range(8):
        s_, t = k >> 1, k & 1
        A(f"s_waitcnt lgkmcnt({7-k})")
        for mt in range(3):
            c = vr(8 + 4*t, 4) if s_ == 0 else vr(AC(t, mt), 4)
            A(f"v_mfma_f32_16x16x32_bf16 {vr(AC(t,mt),4)}, {vr(WL+4*k,4)}, {vr(XF+(mt*4+s_)*4,4)}, {c}")
    A(f"s_mov_b32 s{T1}, {hex(WS_PF - 8192)}")
    A(f"s_cmp_lt_u32 s{SWV}, 12")
    A(f"s_cselect_b32 s{SRND}, s{T1}, 0x7ff00000")
    if not PLATE: A(f"buffer_load_dword v{VA}, v{VT16}, {sr(SW,4)}, s{SRND} offen sc1")
    for k in range(8):
        A(f"s_mov_b64 {sr(MK[k],2)}, 0")
    for mt in range(3):
        for t in range(2):
            d = 48 + (mt*2 + t) * 4
            for i in range(4):
                A(f"v_mul_f32 v{d+i}, s{SC}, v{AC(t,mt)+PI[i]}")
            if mt == 2:
                A(f"s_mov_b64 exec, {sr(SQM,2)}")
            A(f"ds_write_b128 v{VPA}, {vr(d,4)} offset:{16*mt*QROW + 16*t}")
            if mt == 2:
                A("s_mov_b64 exec, -1")
    stamp(6)
    A(f"v_and_b32 v{VC}, 15, v1")
    A(f"v_lshrrev_b32 v{VG}, 4, v1")
    A(f"v_mov_b32 v{PZ}, 0")
    A(f"v_mov_b32 v{PZ+1}, 0")
    A(f"v_mov_b32 v{VP}, s{SW2}")
    A(f"v_mov_b32 v{VDEG}, 0")
    A(f"v_mov_b32 v{OUTA}, 0")
    A(f"s_cmp_ge_u32 s{SWV}, 12")
    A("s_cbranch_scc1 K_B3")
    A(f"s_movk_i32 s{T0}, {512 + NB}")
    A(f"v_cmp_gt_u32 {sr(TP,2)}, s{T0}, v0")
    if PLATE:
        await_lds(L_GC + 12, 4, 12, T3, slp=2)
        await_lds(L_GC + (20 if PLATE == 2 else 16), 8, 12, T3, slp=2)
        if PLATE > 2: A(f"s_sleep {PLATE}")
        A(f"buffer_load_dword v{VA}, v{VT16}, {sr(SW,4)}, s{SRND} offen sc1")
    A(f"s_mov_b32 s{SSP}, {SPIN}")
    L("K_PFL")
    A("s_waitcnt vmcnt(0)")
    A(f"v_cmp_ne_u32 vcc, s{STOK}, v{VA}")
    A(f"s_and_b64 vcc, vcc, {sr(TP,2)}")
    A("s_cbranch_scc0 K_B3")
    A(f"s_sub_u32 s{SSP}, s{SSP}, 1")
    A("s_cbranch_scc1 K_B3")
    A("s_mov_b64 exec, vcc")
    if SLP_F: A(f"s_sleep {SLP_F}")
    A(f"buffer_load_dword v{VA}, v{VT16}, {sr(SW,4)}, s{SRND} offen sc1")
    A("s_mov_b64 exec, -1")
    A("s_branch K_PFL")

    L("K_AUX")
    A(f"s_cmp_lg_u32 s{SWV}, 0")
    A("s_cbranch_scc1 K_AUX1")
    ED, ES, EE, RKB, BN4, RCB = 48, 58, 68, 74, 84, 96
    A("v_lshlrev_b32 v12, 3, v1")
    A(f"s_mul_i32 s{T0}, s2, {CH*4}")
    A(f"s_mul_i32 s{T1}, s2, {CH*2}")
    A("s_waitcnt lgkmcnt(0)")
    srd(SX, PDST, CH * 4, f"s{T0}")
    for k in range(5):
        A(f"buffer_load_dwordx2 {vr(ED+2*k,2)}, v12, {sr(SX,4)}, 0 offen offset:{512*k}")
    srd(SY, PSRC, CH * 4, f"s{T0}")
    for k in range(5):
        A(f"buffer_load_dwordx2 {vr(ES+2*k,2)}, v12, {sr(SY,4)}, 0 offen offset:{512*k}")
    srd(SZ, PE, CH * 2, f"s{T1}")
    for k in range(5):
        A(f"buffer_load_dword v{EE+k}, v2, {sr(SZ,4)}, 0 offen offset:{256*k}")
    A("s_barrier")
    A("s_setprio 3")
    common_setup()
    srd(SO, PDBG, 256)
    A(f"s_movk_i32 s{T1}, {-NPB}")
    for j in range(10):
        if j % 2 == 0:
            A(f"s_waitcnt vmcnt({14 - j//2})")
            if j == 0:
                A(f"buffer_load_dword v33, v{VZ}, {sr(SO,4)}, 0 offen sc1")
        A(f"v_mul_u32_u24 v14, 0xcccd, v{ED+j}")
        A("v_lshrrev_b32 v14, 21, v14")
        A(f"v_lshlrev_b32 v{BN4+j}, 2, v14")
        A(f"ds_add_rtn_u32 v{RKB+j}, v{BN4+j}, v{VONE} offset:{L_HIST}")
        A(f"v_mad_i32_i24 v{ED+j}, v14, s{T1}, v{ED+j}")
    HC_, HB_ = 16, 20
    A(f"ds_read_b128 {vr(HC_,4)}, v{VL16} offset:{L_HIST}")
    A("s_waitcnt vmcnt(1)")
    stamp(1)
    for j in range(10):
        if j % 2 == 0:
            A(f"v_lshlrev_b32 v14, 16, v{EE+j//2}")
        else:
            A(f"v_and_b32 v14, 0xffff0000, v{EE+j//2}")
        A(f"v_lshl_or_b32 v{RCB+2*j+1}, v{ED+j}, 2, v14")
    A("s_waitcnt lgkmcnt(0)")
    A(f"v_add_u32 v{HB_+2}, v{HC_}, v{HC_+1}")
    A(f"v_add_u32 v{HB_+3}, v{HB_+2}, v{HC_+2}")
    A(f"v_add_u32 v15, v{HB_+3}, v{HC_+3}")
    A("s_nop 1")
    A(f"v_add_u32_dpp v{HB_}, v15, v15 row_shr:1 row_mask:0xf bank_mask:0xf bound_ctrl:0")
    for ctl in SCAN:
        A("s_nop 1")
        A(f"v_add_u32_dpp v{HB_}, v{HB_}, v{HB_} {ctl}")
    A(f"v_sub_u32 v{HB_}, v{HB_}, v15")
    A(f"v_add_u32 v{HB_+1}, v{HB_}, v{HC_}")
    A(f"v_add_u32 v{HB_+2}, v{HB_}, v{HB_+2}")
    A(f"v_add_u32 v{HB_+3}, v{HB_}, v{HB_+3}")
    A(f"ds_write_b128 v{VL16}, {vr(HB_,4)} offset:{L_HIST}")
    for j in range(10):
        A(f"ds_read_b32 v{ED+j}, v{BN4+j} offset:{L_HIST}")
    for k in range(4):
        A(f"v_lshl_or_b32 v{25+2*k}, v{HC_+k}, 16, v{HB_+k}")
    A(f"v_lshlrev_b32 v32, 1, v{VL16}")
    A(f"s_mov_b32 s{SSP}, {SPIN}")
    A("s_waitcnt vmcnt(0)")
    L("K_TOK")
    A(f"v_readfirstlane_b32 s{STOK}, v33")
    A(f"s_cmp_lg_u32 s{STOK}, 0")
    A("s_cbranch_scc1 K_TOKOK")
    A(f"s_sub_u32 s{SSP}, s{SSP}, 1")
    A("s_cbranch_scc1 K_END")
    A(f"buffer_load_dword v33, v{VZ}, {sr(SO,4)}, 0 offen sc1")
    A("s_waitcnt vmcnt(0)")
    A("s_branch K_TOK")
    L("K_TOKOK")
    A(f"s_lshl_b32 s{T0}, s{STOK}, 13")
    A(f"s_and_b32 s{T0}, s{T0}, 0xffffc000")
    A(f"s_lshl_b32 s{T3}, s2, 11")
    A(f"s_add_u32 s{T3}, s{T3}, {hex(WS_OFS)}")
    for k in range(4):
        A(f"v_mov_b32 v{24+2*k}, s{STOK}")
    A(f"buffer_store_dwordx4 v[24:27], v32, {sr(SW,4)}, s{T3} offen sc1")
    A(f"buffer_store_dwordx4 v[28:31], v32, {sr(SW,4)}, s{T3} offen offset:16 sc1")
    A("s_waitcnt lgkmcnt(0)")
    for j in range(10):
        A(f"v_or_b32 v{RCB+2*j}, s{T0}, v{ES+j}")
        A(f"v_add_lshl_u32 v{ED+j}, v{ED+j}, v{RKB+j}, 3")
        A(f"ds_write_b64 v{ED+j}, {vr(RCB+2*j,2)} offset:{L_SB}")
    for k in range(5):
        A(f"ds_read_b128 {vr(60+4*k,4)}, v{VL16} offset:{L_SB + 1024*k}")
    A(f"s_mul_i32 s{T0}, s2, {CH*8}")
    A(f"s_add_u32 s{T0}, s{T0}, {hex(WS_REC)}")
    A(f"s_add_u32 s{T1}, s{T0}, 4096")
    for k in range(5):
        A(f"s_waitcnt lgkmcnt({4-k})")
        A(f"buffer_store_dwordx4 {vr(60+4*k,4)}, v{VL16}, {sr(SW,4)}, s{T0 + k//4} offen offset:{1024*(k%4)} sc1")
    A(f"ds_write_b32 v{VZ}, v33 offset:{L_TOK}")
    A("s_setprio 0")
    stamp(2)
    A("s_branch K_AUXP")
    L("K_AUX1")
    for k in range(4):
        A(f"v_xor_b32 v{51+k}, v{VG}, v{VC}")
        if k: A(f"v_xor_b32 v{51+k}, {4*k}, v{51+k}")
        A(f"v_lshlrev_b32 v{51+k}, 4, v{51+k}")
        A(f"v_lshl_add_u32 v{51+k}, v{VG}, 8, v{51+k}")
    A(f"s_sub_u32 s{T0}, s{SWV}, 1")
    A(f"s_lshl_b32 s{T0}, s{T0}, 12")
    A(f"s_lshl_b32 s{T2}, s{SN80}, 8")
    A(f"s_add_u32 s{T2}, s{T2}, s{T0}")
    A(f"s_add_u32 s{T0}, s{T0}, {L_XT}")
    A(f"s_mov_b32 m0, s{T0}")
    A("s_waitcnt lgkmcnt(0)")
    A(f"s_cmp_ge_u32 s{SWV}, 6")
    A("s_cbranch_scc1 K_NOX")
    srd(SX, PX, N * 256)
    for k in range(4):
        A(f"buffer_load_dwordx4 v{51+k}, {sr(SX,4)}, s{T2} offen offset:{1024*k} lds")
    L("K_NOX")
    if TCH:
        A(f"s_cmp_lg_u32 s{SWV}, 6")
        A("s_cbranch_scc1 K_NOTCH")
        CM("address translations of the pages that are written and read later")
        srd(SX, PWS, 0x800000)
        A(f"v_lshlrev_b32 v60, {TCH}, v1")
        A(f"buffer_load_dword v61, v60, {sr(SX,4)}, 0 offen sc1")
        srd(SX, POUT, N * D * 2)
        A(f"s_lshl_b32 s{T0}, s{SN40}, 8")
        A(f"buffer_load_dword v62, v{VZ}, {sr(SX,4)}, s{T0} offen")
        L("K_NOTCH")
    A(f"s_xor_b32 s{T0}, s{SWV}, 7")
    A(f"s_or_b32 s{T0}, s{T0}, s2")
    A("s_cbranch_scc1 K_NOTOK")
    srd(SO, PDBG, 256)
    A("s_or_b32 s26, s26, 1")
    A("v_mov_b32 v59, s26")
    A(f"buffer_store_dword v59, v2, {sr(SO,4)}, 0 offen sc1")
    L("K_NOTOK")
    A("s_barrier")
    common_setup()
    A(f"s_cmp_lt_u32 s{SWV}, 4")
    A("s_cbranch_scc1 K_NOCV")
    A("v_and_b32 v63, 3, v0")
    A("v_lshlrev_b32 v63, 2, v63")
    A("v_mov_b32 v64, 0x2031")
    A("v_bfe_u32 v65, v64, v63, 4")
    A("v_bfe_u32 v64, v0, 2, 2")
    A(f"v_lshl_add_u32 v64, v{VG}, 5, v64")
    A("v_bfe_u32 v66, v0, 6, 1")
    A("v_lshl_add_u32 v64, v66, 2, v64")
    A("v_bfe_u32 v66, v0, 7, 1")
    A("v_lshl_add_u32 v64, v66, 7, v64")
    A("v_lshl_add_u32 v65, v65, 3, v64")
    A("v_lshl_add_u32 v64, v63, 1, v64")
    A("v_lshlrev_b32 v65, 1, v65")
    A("v_lshlrev_b32 v64, 1, v64")
    A("v_and_b32 v66, 0xff, v0")
    A("v_lshlrev_b32 v67, 1, v66")
    A("v_lshlrev_b32 v66, 2, v66")
    srd(SY, PW1, 257 * 512)
    A(f"s_mov_b32 s{T0}, {256*512}")
    A(f"buffer_load_ushort v20, v65, {sr(SY,4)}, s{T0} offen")
    srd(SX, PB1, 512)
    A(f"buffer_load_ushort v21, v64, {sr(SX,4)}, 0 offen")
    srd(SX, PB2, 256)
    A(f"buffer_load_ushort v22, v67, {sr(SX,4)}, 0 offen")
    A(f"s_cmp_ge_u32 s{SWV}, 6")
    A("s_cbranch_scc1 K_CV1")
    A("s_waitcnt vmcnt(3)")
    arrive(0)
    L("K_CV1")
    A(f"s_cmp_lg_u32 s{SWV}, 7")
    A("s_cbranch_scc1 K_CV1B")
    A("s_cmp_ge_u32 s2, 64")
    A("s_cbranch_scc1 K_CV1B")
    A(f"s_bfe_u32 s{T0}, s2, 0x10002")
    A(f"s_lshl_b32 s{T0}, s{T0}, 15")
    A(f"s_and_b32 s{T1}, s2, 1")
    A(f"s_lshl_b32 s{T1}, s{T1}, 14")
    A(f"s_add_u32 s{T0}, s{T0}, s{T1}")
    A(f"s_bfe_u32 s{T1}, s2, 0x10001")
    A(f"s_lshl_b32 s{T1}, s{T1}, 10")
    A(f"s_add_u32 s{T0}, s{T0}, s{T1}")
    A(f"s_lshr_b32 s{T1}, s2, 3")
    A(f"s_lshl_b32 s{T1}, s{T1}, 5")
    A(f"s_add_u32 s{T0}, s{T0}, s{T1}")
    A(f"s_add_u32 s{T1}, s{T0}, 4096")
    A(f"v_lshrrev_b32 v24, 1, v{VG}")
    A("v_lshlrev_b32 v24, 13, v24")
    A(f"v_and_b32 v25, 1, v{VG}")
    A("v_lshl_add_u32 v24, v25, 9, v24")
    A(f"v_lshl_add_u32 v24, v{VC}, 1, v24")
    srd(SX, PW2, 256 * 256)
    for jj in range(8):
        p = PI[jj & 3]
        A(f"buffer_load_ushort v{72+jj}, v24, {sr(SX,4)}, s{T0 if p < 2 else T1} offen offset:{(p&1)*2048 + (jj>>2)*256}")
    A(f"s_lshl_b32 s{T0}, s2, 10")
    A(f"s_add_u32 s{T0}, s{T0}, {hex(WS_W2F)}")
    A("s_waitcnt vmcnt(0)")
    for k in range(4):
        A(f"v_lshl_or_b32 v{80+k}, v{73+2*k}, 16, v{72+2*k}")
    A(f"buffer_store_dwordx4 v[80:83], v{VL16}, {sr(SW,4)}, s{T0} offen sc1")
    L("K_CV1B")
    A("s_waitcnt vmcnt(0)")
    for k in range(3):
        A(f"v_lshlrev_b32 v{20+k}, 16, v{20+k}")
    A(f"v_mul_f32 v20, s{SC}, v20")
    A(f"ds_write_b32 v66, v21 offset:{L_CV+1024}")
    A(f"ds_write_b32 v66, v20 offset:{L_CV}")
    A(f"s_cmp_ge_u32 s{SWV}, 6")
    A("s_cbranch_scc1 K_CV2")
    A(f"ds_write_b32 v66, v22 offset:{L_CV+2048}")
    L("K_CV2")
    A("s_waitcnt lgkmcnt(0)")
    arrive(2)
    A(f"s_cmp_lg_u32 s{SWV}, 7")
    A("s_cbranch_scc1 K_AUXT")
    arrive(1)
    A("s_branch K_AUXT")
    L("K_NOCV")
    A("s_waitcnt vmcnt(0)")
    arrive(0)
    L("K_AUXT")
    L("K_AUXP")
    A("v_lshrrev_b32 v31, 1, v0")
    A("v_lshlrev_b32 v31, 11, v31")
    A(f"s_movk_i32 s{T3}, {2*NB}")
    A(f"v_cmp_gt_u32 {sr(SOWN,2)}, s{T3}, v0")
    A(f"v_cvt_f32_u32 v30, v1")
    A(f"v_rcp_f32 v30, v30")
    A(f"v_mov_b32 v{VP}, s{SW2}")
    A(f"v_mul_f32 v30, 0x47800000, v30")
    A(f"v_cvt_u32_f32 v30, v30")
    A(f"v_add_u32 v30, 1, v30")
    await_lds(L_TOK, 0, 33, STOK, nonzero=True, slp=4)
    A(f"s_bfe_u32 s{STAG}, s{STOK}, 0x120001")
    if PD0: A(f"s_sleep {PD0}")
    L("K_REC0")
    A(f"s_mov_b32 s{SSP}, {SPIN}")
    A(f"s_mov_b64 {sr(TP,2)}, {sr(SOWN,2)}")
    A(f"v_mov_b32 v{PZ}, 0")
    A(f"v_mov_b32 v{PZ+1}, 0")
    A("v_lshrrev_b32 v32, 1, v0")
    A(f"s_movk_i32 s{T0}, {CH}")
    A(f"v_mul_u32_u24 v32, s{T0}, v32")
    A("v_and_b32 v33, 1, v0")
    A("v_lshlrev_b32 v33, 1, v33")
    A("v_add_u32 v32, v32, v33")
    A(f"v_mov_b32 v{VDEG}, 0")
    A(f"v_mov_b32 v{OUTA}, 0")
    A(f"s_mov_b32 s{T0}, {hex(WS_REC)}")
    L("K_OFS")
    A(f"s_mov_b64 exec, {sr(TP,2)}")
    A(f"buffer_load_dwordx2 {vr(GRT,2)}, v31, {sr(SW,4)}, s{SB8} offen sc1")
    A("s_waitcnt vmcnt(0)")
    A(f"v_cmp_eq_u32 vcc, s{STOK}, v{GRT}")
    A(f"s_andn2_b64 {sr(TP,2)}, {sr(TP,2)}, vcc")
    A("s_mov_b64 exec, vcc")
    A("s_cbranch_execz K_OFN")
    A(f"v_lshrrev_b32 v{GRT}, 16, v{GRT+1}")
    A(f"v_and_b32 v{GRT+1}, 0xffff, v{GRT+1}")
    A(f"v_add_lshl_u32 v{PZ+1}, v{GRT+1}, v32, 3")
    A(f"v_sub_i32 v{PZ}, v{GRT}, v33")
    for k in range(4):
        A(f"v_cmp_lt_i32 vcc, {4*k}, v{PZ}")
        A("s_mov_b64 exec, vcc")
        A("s_cbranch_execz K_OFN")
        A(f"buffer_load_dwordx4 {vr(RC+4*k,4)}, v{PZ+1}, {sr(SW,4)}, s{T0} offen offset:{32*k} sc1")
    L("K_OFN")
    A("s_mov_b64 exec, -1")
    A(f"s_cmp_eq_u64 {sr(TP,2)}, 0")
    A("s_cbranch_scc1 K_OFSOK")
    A(f"s_sub_u32 s{SSP}, s{SSP}, 1")
    A("s_cbranch_scc1 K_END")
    A(f"s_sleep {SLP_N}")
    A("s_branch K_OFS")
    L("K_OFSOK")
    stamp(5)
    A(f"s_mov_b32 s{SRND}, 1")
    L("K_RECS")
    A(f"s_mov_b32 s{T0}, {hex(WS_REC)}")
    for k in range(8):
        A(f"v_cmp_lt_i32 {sr(MK[k],2)}, {4*(k>>1) + (k&1)}, v{PZ}")
    A(f"v_cmp_lt_i32 vcc, 16, v{PZ}")
    A("v_mov_b32 v88, 4")
    A("v_mov_b32 v89, 0")
    A("v_mov_b32 v90, 1")
    A("s_cbranch_vccz K_RM")
    A(f"ds_write_b32 v89, v90 offset:{L_FLAG}")
    L("K_RM")
    A(f"s_mov_b32 s{SSP}, {SPIN}")
    A(f"s_cmp_lg_u32 s{SRND}, 0")
    A(f"s_mov_b32 s{SRND}, 0")
    A(f"s_mov_b64 {sr(TP,2)}, -1")
    A("s_cbranch_scc1 K_RL")
    L("K_RLD")
    for k in range(4):
        A(f"s_and_b64 exec, {sr(MK[2*k],2)}, {sr(TP,2)}")
        A("s_cbranch_execz K_RL")
        A(f"buffer_load_dwordx4 {vr(RC+4*k,4)}, v{PZ+1}, {sr(SW,4)}, s{T0} offen offset:{32*k} sc1")
    L("K_RL")
    A("s_mov_b64 exec, -1")
    L("K_NOU")
    A(f"s_mov_b64 {sr(TP,2)}, 0")
    A("s_waitcnt vmcnt(0)")
    for k in range(8):
        A(f"s_mov_b64 exec, {sr(MK[k],2)}")
        A("s_cbranch_execz K_RV")
        A(f"v_lshrrev_b32 v91, 14, v{RC+2*k}")
        A(f"v_cmp_ne_u32 vcc, s{STAG}, v91")
        A(f"s_or_b64 {sr(TP,2)}, {sr(TP,2)}, vcc")
    L("K_RV")
    A("s_mov_b64 exec, -1")
    A(f"s_cmp_eq_u64 {sr(TP,2)}, 0")
    A("s_cbranch_scc1 K_RVOK")
    A(f"s_sub_u32 s{SSP}, s{SSP}, 1")
    A("s_cbranch_scc1 K_END")
    A("s_sleep 4")
    A("s_branch K_RLD")
    L("K_RVOK")
    stamp(6)
    NL, RK, PS = 64, 72, 80
    A(f"s_mov_b32 s{T1}, {hex(FBASE)}")
    for k in range(8):
        A(f"s_mov_b64 exec, {sr(MK[k],2)}")
        A("s_cbranch_execz K_R1")
        A(f"v_and_b32 v{NL+k}, 0xfc, v{RC+2*k+1}")
        A(f"ds_add_rtn_u32 v{RK+k}, v{NL+k}, v88")
        A(f"v_and_b32 v{RC+2*k}, 0x3fff, v{RC+2*k}")
        A(f"v_lshl_or_b32 v{RC+2*k}, v{RC+2*k}, 9, s{T1}")
    L("K_R1")
    A("s_mov_b64 exec, 1")
    A("s_waitcnt lgkmcnt(0)")
    A(f"ds_add_u32 v89, v90 offset:{L_GC+16}")
    A("s_mov_b64 exec, -1")
    A(f"v_mov_b32 v{VZ}, 0")
    await_lds(L_GC + 16, 8, 91, T0)
    stamp(7)
    def scan_and_decide(tag, with_perm):
        A(f"ds_read_b32 v{VCNT}, v2")
        A(f"ds_read_b32 v91, v89 offset:{L_FLAG}")
        A("s_waitcnt lgkmcnt(1)")
        A(f"v_add_u32_dpp v{VEND}, v{VCNT}, v{VCNT} row_shr:1 row_mask:0xf bank_mask:0xf bound_ctrl:0")
        A(f"v_add_u32 v{VDEG}, v{VDEG}, v{VCNT}")
        for k, ctl in enumerate(SCAN):
            A("s_nop 0" if k == 0 else "s_nop 1")
            A(f"v_add_u32_dpp v{VEND}, v{VEND}, v{VEND} {ctl}")
        A(f"v_sub_u32 v{VB4}, v{VEND}, v{VCNT}")
        A("s_waitcnt lgkmcnt(0)")
        A(f"v_readlane_b32 s{STOT}, v{VEND}, 63")
        if with_perm:
            for k in range(8):
                A(f"s_cmp_eq_u64 {sr(MK[k],2)}, 0")
                A(f"s_cbranch_scc1 K_R2{tag}")
                A(f"ds_bpermute_b32 v{PS+k}, v{NL+k}, v{VB4}")
            L(f"K_R2{tag}")
        A(f"v_readfirstlane_b32 s{SLP}, v91")
        A(f"s_add_u32 s{T1}, s{STOT}, 60")
        A(f"s_lshr_b32 s{SLEN}, s{T1}, 6")
        A(f"s_lshl_b32 s{T1}, s{SLEN}, 2")
        A(f"s_add_u32 s{T2}, s{T1}, 4")
        A(f"v_cmp_lt_u32 vcc, s{T2}, v{VCNT}")
        A(f"s_and_b32 s{T3}, s{SLEN}, 63")
        if with_perm:
            A(f"v_readlane_b32 s{T0}, v30, s{T3}")
        A(f"s_andn2_b32 s{SFAST}, s{SFIRST}, s{SMODE}")
        A(f"s_andn2_b32 s{SFAST}, s{SFAST}, s{SLP}")
        A(f"s_cmp_gt_u32 s{STOT}, {4*WIN}")
        A(f"s_cselect_b32 s{SFAST}, 0, s{SFAST}")
        A(f"s_sub_u32 s{T1}, {PRIV_B}, s{T1}")
        A("s_cmp_lg_u64 vcc, 0")
        A(f"s_cselect_b32 s{SFAST}, 0, s{SFAST}")
    scan_and_decide("a", True)
    A(f"v_mov_b32 v92, s{SFAST}")
    A(f"ds_write_b32 v89, v92 offset:{L_FLAG+12}")
    A(f"s_cmp_eq_u32 s{SFAST}, 0")
    A("s_waitcnt lgkmcnt(0)")
    A("s_cbranch_scc1 K_WL")
    for k in range(8):
        A(f"s_mov_b64 exec, {sr(MK[k],2)}")
        A("s_cbranch_execz K_WB")
        A(f"v_add_u32 v{PS+k}, v{PS+k}, v{RK+k}")
        A(f"v_mul_u32_u24 v{RK+k}, s{T0}, v{PS+k}")
        A(f"v_lshrrev_b32 v{RK+k}, 18, v{RK+k}")
        A(f"v_mad_u32_u24 v{PS+k}, v{RK+k}, s{T1}, v{PS+k}")
        A(f"ds_write_b32 v{PS+k}, v{RC+2*k} offset:{L_PRIV}")
        A(f"ds_write_b32 v{PS+k}, v{RC+2*k+1} offset:{L_PRIV + PRIV_N*4}")
    L("K_WB")
    A("s_mov_b64 exec, 1")
    A(f"ds_add_u32 v89, v90 offset:{L_GC+20}")
    A("s_mov_b64 exec, -1")
    L("K_B3")
    A(f"s_mov_b32 s{SW2}, 1")
    A("v_mov_b32 v89, 0")
    A("s_waitcnt vmcnt(0) lgkmcnt(0)")
    A("s_barrier")
    stamp(8)
    def row_load(d, p, pair=False):
        if not pair:
            A(f"v_add_u32 v{p}, v{p}, v2")
        A(f"buffer_load_dword v{d}, v{p}, {sr(ST,4)}, 0 offen sc1")
        A(f"buffer_load_dword v{d+1}, v{p}, {sr(ST,4)}, 0 offen offset:256 sc1")
    TI = 16
    A(f"ds_read_b32 v92, v89 offset:{L_FLAG+12}")
    for k in range(R // 4):
        A(f"ds_read_b128 {vr(TI+4*k,4)}, v{VP} offset:{16*k}")
    A(f"ds_read_b128 {vr(W,4)}, v{VL16} offset:{L_CV}")
    A("s_waitcnt lgkmcnt(2)")
    A(f"v_readfirstlane_b32 s{T0}, v92")
    A(f"s_cmp_eq_u32 s{T0}, 0")
    A("s_cbranch_scc1 K_R3")
    for k in range(F1):
        if k == 4: A("s_waitcnt lgkmcnt(1)")
        row_load(DAT + 2*k, TI + k)
    L("K_R3")
    A(f"s_cmp_lt_u32 s{SWV}, 8")
    A("s_cbranch_scc1 K_R4")
    scan_and_decide("g", False)
    L("K_R4")
    A(f"s_cmp_eq_u32 s{SFAST}, 0")
    A("s_cbranch_scc1 K_SLOW")
    A(f"v_add_u32 v{Q+3}, v{VP}, v2")
    A(f"ds_read_b32 v{Q}, v{Q+3} offset:{PRIV_N*4}")
    for k in range(R // 4):
        A(f"ds_read_b128 {vr(EV+4*k,4)}, v{VP} offset:{PRIV_N*4 + 16*k}")
    A(f"ds_read_b128 {vr(OG[0],4)}, v{VP} offset:{R*4}")
    A(f"s_mul_i32 s{T0}, s{SLEN}, s{SWV}")
    A(f"s_add_u32 s{T3}, s{T0}, s{SLEN}")
    A(f"s_lshl_b32 s{T0}, s{T0}, 2")
    A(f"s_lshl_b32 s{T3}, s{T3}, 2")
    A(f"s_min_u32 s{T0}, s{T0}, s{STOT}")
    A(f"s_min_u32 s{T3}, s{T3}, s{STOT}")
    A(f"s_sub_u32 s{SNN}, s{T3}, s{T0}")
    A(f"s_lshr_b32 s{SNN}, s{SNN}, 2")
    A(f"v_cmp_gt_u32 vcc, s{T0}, v{VB4}")
    A(f"v_cmp_lt_u32 {sr(TP,2)}, s{T0}, v{VEND}")
    A(f"s_and_b64 vcc, vcc, {sr(TP,2)}")
    A(f"s_cselect_b32 s{SLP}, 1, 0")
    A(f"v_cmp_gt_u32 vcc, s{T3}, v{VB4}")
    A(f"v_cmp_lt_u32 {sr(TP,2)}, s{T3}, v{VEND}")
    A(f"s_and_b64 vcc, vcc, {sr(TP,2)}")
    A(f"s_cselect_b32 s{STAIL}, 1, 0")
    A(f"v_cmp_le_u32 vcc, s{SNN}, v1")
    A(f"s_movk_i32 s{T2}, {QROW//4}")
    A(f"s_movk_i32 s{T3}, {HROW//4}")
    A(f"s_mov_b32 s{SREM}, s{SNN}")
    A("s_waitcnt lgkmcnt(0)")
    A(f"v_and_b32 v{Z2}, 0xfc, v{EV}")
    A(f"v_and_b32 v{Q+1}, 0xfc, v{Q}")
    A(f"v_mad_u32_u24 v{Z2+1}, v{Z2}, s{T2}, v{VQ16}")
    A("s_setprio 3")
    A(f"v_mov_b32_dpp v{Q+2}, v{Q+1} wave_shr:1 row_mask:0xf bank_mask:0xf")
    A(f"v_cmp_ne_u32 {sr(SM,2)}, v{Q+1}, v{Q+2}")
    A(f"ds_read_b128 {vr(Q,4)}, v{Z2+1}")
    A(f"s_or_b64 {sr(SM,2)}, {sr(SM,2)}, vcc")
    for k in range(4):
        A(f"v_add_u32 v{OG[0]+k}, v{OG[0]+k}, v2")
    def tail_prep():
        A(f"v_lshlrev_b32 v{Z+1}, 2, v{VC}")
        A(f"v_lshlrev_b32 v{Z+2}, 4, v{VG}")
        for mt in range(3):
            A(f"v_add_u32 v{T+3}, {64*mt}, v{Z+1}")
            A(f"ds_bpermute_b32 v{T+mt}, v{T+3}, v{VDEG}")
        A(f"s_lshl_b32 s{T0}, s{SWV}, 6")
        A(f"v_add_u32 v{Z+3}, s{T0}, v{Z+2}")
        A(f"ds_read_b128 {vr(B2F,4)}, v{Z+3} offset:{L_CV+2048}")
        A(f"s_movk_i32 s{T1}, {HROW}")
        A(f"v_mad_u32_u24 v{AD}, v{VC}, s{T1}, v{Z+2}")
        A(f"v_lshlrev_b32 v{OUTA}, 8, v{VC}")
        A(f"v_lshl_add_u32 v{OUTA}, v{VG}, 3, v{OUTA}")
        A(f"v_add_u32 v{Z+2}, {L_ZROW}, v{Z+2}")
        A(f"v_add_u32 v{AD+2}, {L_H + 32*HROW}, v{AD}")
        A(f"v_add_u32 v{AD+1}, {L_H + 16*HROW}, v{AD}")
        A(f"v_add_u32 v{AD}, {L_H}, v{AD}")
        A("s_waitcnt lgkmcnt(0)")
        for mt in range(3):
            A(f"v_cmp_eq_u32 vcc, 0, v{T+mt}")
            A(f"v_cvt_f32_u32 v{T+mt}, v{T+mt}")
            A(f"v_mul_f32 v{T+mt}, 0x3e800000, v{T+mt}")
            A(f"v_cndmask_b32 v{AD+mt}, v{AD+mt}, v{Z+2}, vcc")
            sel = "op_sel_hi:[1,0]" if mt % 2 == 0 else "op_sel:[0,1]"
            A(f"v_pk_mul_f32 {vr(OV+4*mt,2)}, {vr(B2F,2)}, {vr(T+(mt&2),2)} {sel}")
            A(f"v_pk_mul_f32 {vr(OV+4*mt+2,2)}, {vr(B2F+2,2)}, {vr(T+(mt&2),2)} {sel}")
    def w2_load():
        A(f"s_mov_b32 s{SW2}, 0")
        A(f"s_lshl_b32 s{T0}, s{SWV}, 13")
        A(f"s_add_u32 s{T0}, s{T0}, {hex(WS_W2F)}")
        A(f"s_add_u32 s{T1}, s{T0}, 4096")
        for k in range(8):
            A(f"buffer_load_dwordx4 {vr(W2R+4*k,4)}, v{VL16}, {sr(SW,4)}, s{T0 + k//4} offen offset:{(k%4)*1024} sc1")
    A(f"s_cmp_ge_u32 s{SWV}, 8")
    A("s_cbranch_scc1 K_NOTP")
    tail_prep()
    L("K_NOTP")
    for k in range(F1, R):
        row_load(DAT + 2*k, TI + k)
    A(f"v_mov_b32 v{LO}, v{Z2}")
    A(f"v_mov_b32 v{PZ}, 0")
    A(f"v_mov_b32 v{PZ+1}, 0")
    VW = 2 * (R - 1)
    if STAMP:
        A(f"s_waitcnt vmcnt({VW})")
        stamp(9)
    A(f"s_cmp_eq_u32 s{SNN}, 0")
    A("s_cbranch_scc1 K_WDONE")
    A("s_branch K_HC0")

    def e_sel(s):
        base = EV + (s & ~1)
        return (vr(base, 2), "op_sel_hi:[1,0,1]") if s % 2 == 0 else (vr(base, 2), "op_sel:[0,1,0]")
    def part_z1(s, z):
        ep, es = e_sel(s)
        return [f"v_pk_fma_f32 {vr(z,2)}, {vr(W,2)}, {ep}, {vr(Q,2)} {es}",
                f"v_pk_fma_f32 {vr(z+2,2)}, {vr(W+2,2)}, {ep}, {vr(Q+2,2)} {es}"]
    def part_z2(s, z, zo=None, lo=LO):
        d = DAT + 2*s
        zo = z if zo is None else zo
        return [f"v_lshlrev_b64 {vr(lo,2)}, 16, {vr(d,2)}",
                f"v_pk_fma_f32 {vr(zo,2)}, {vr(d,2)}, {C2}, {vr(z,2)}",
                f"v_pk_fma_f32 {vr(zo+2,2)}, {vr(lo,2)}, {C2}, {vr(z+2,2)}"]
    def part_exp(z): return [f"v_exp_f32 v{T+k}, v{z+k}" for k in range(4)]
    def part_nd(z):
        return [f"v_pk_fma_f32 {vr(NN,2)}, {vr(NN,2)}, {vr(T,2)}, {vr(NN,2)}",
                f"v_pk_fma_f32 {vr(NN+2,2)}, {vr(NN+2,2)}, {vr(T+2,2)}, {vr(NN+2,2)}",
                f"v_pk_fma_f32 {vr(NN,2)}, {vr(z,2)}, {vr(DD,2)}, {vr(NN,2)}",
                f"v_pk_fma_f32 {vr(NN+2,2)}, {vr(z+2,2)}, {vr(DD+2,2)}, {vr(NN+2,2)}",
                f"v_pk_fma_f32 {vr(DD,2)}, {vr(DD,2)}, {vr(T,2)}, {vr(DD,2)}",
                f"v_pk_fma_f32 {vr(DD+2,2)}, {vr(DD+2,2)}, {vr(T+2,2)}, {vr(DD+2,2)}"]
    def addr_prep(k):
        A("s_waitcnt lgkmcnt(0)")
        A(f"v_pk_add_f32 {vr(OG[k],2)}, {vr(OG[k],2)}, v[2:3] op_sel:[0,1]")
        A(f"v_pk_add_f32 {vr(OG[k]+2,2)}, {vr(OG[k]+2,2)}, v[2:3] op_sel:[0,1]")
    def refill(s):
        og = OG[(s // 4) % 2]
        if s % 4 == 0:
            A(f"ds_read_b128 {vr(OG[(s//4+1)%2],4)}, v{VP} offset:{(R+s+4)*4}")
        row_load(DAT + 2*s, og + s % 4, pair=True)
        if s % 4 == 3:
            addr_prep((s // 4 + 1) % 2)
            A(f"ds_read_b128 {vr(EV+s-3,4)}, v{VP} offset:{PRIV_N*4 + (R+s-3)*4}")
    L("K_LOOP")
    for g in range(R // 4):
        L(f"K_G{g}")
        A(f"s_and_b32 s{T0}, s{SM}, {hex(0xF << (4*g))}")
        A(f"s_cbranch_scc1 K_S{4*g}")
        zz = [Z, Z2]
        s0 = 4*g
        for x in part_z1(s0, zz[0]): A(x)
        A(f"s_waitcnt vmcnt({VW})")
        for x in part_z2(s0, zz[0]): A(x)
        refill(s0)
        for k in range(4):
            s = s0 + k
            z, zn = zz[k % 2], zz[(k + 1) % 2]
            ex, nd = part_exp(z), part_nd(z)
            if k < 3:
                a, b = part_z1(s + 1, zn), part_z2(s + 1, zn)
                A(ex[0]); A(a[0]); A(ex[1]); A(a[1]); A(ex[2])
                A(f"s_waitcnt vmcnt({VW})")
                A(b[0]); A(ex[3]); A(nd[0]); A(b[1]); A(nd[1]); A(nd[2]); A(b[2]); A(nd[3])
                refill(s + 1)
                A(nd[4]); A(nd[5])
            else:
                for x in ex + nd: A(x)
    L("K_PEND")
    A(f"v_add_u32 v{VP}, {R*4}, v{VP}")
    A(f"s_lshr_b64 {sr(SM,2)}, {sr(SM,2)}, {R}")
    A(f"s_sub_u32 s{SREM}, s{SREM}, {R}")
    for thr, p in PRIO_T:
        A(f"s_cmp_gt_u32 s{SREM}, {thr}")
        A("s_cbranch_scc1 K_LOOP")
        A(f"s_setprio {p}")
    A(f"s_cmp_ge_u32 s{SWV}, 8")
    A("s_cbranch_scc1 K_LOOP")
    A(f"s_cmp_eq_u32 s{SW2}, 0")
    A("s_cbranch_scc1 K_LOOP")
    w2_load()
    A("s_branch K_LOOP")
    for s in range(R):
        L(f"K_S{s}")
        A(f"s_bitcmp1_b32 s{SM}, {s}")
        A(f"s_cbranch_scc1 K_H{s}")
        for x in part_z1(s, Z): A(x)
        A(f"s_waitcnt vmcnt({VW})")
        for x in part_z2(s, Z) + part_exp(Z) + part_nd(Z): A(x)
        L(f"K_J{s}")
        refill(s)
        if s % 4 == 3:
            A(f"s_branch K_G{s//4+1}" if s + 1 < R else "s_branch K_PEND")
    def fold():
        for k in range(4):
            A(f"v_rcp_f32 v{T+k}, v{DD+k}")
        A(f"v_pk_fma_f32 {vr(PZ,2)}, {vr(DD,2)}, {vr(NN,2)}, {vr(PZ,2)}")
        A(f"v_pk_fma_f32 {vr(PZ,2)}, {vr(DD+2,2)}, {vr(NN+2,2)}, {vr(PZ,2)}")
        A(f"v_pk_mul_f32 {vr(Z,2)}, {vr(NN,2)}, {vr(T,2)}")
        A(f"v_pk_mul_f32 {vr(Z+2,2)}, {vr(NN+2,2)}, {vr(T+2,2)}")
    def lead_flush():
        A(f"v_add_u32 v{Z2}, s{SSIDE}, v{VL16}")
        A(f"s_lshl_b32 s{T0}, s{SWV}, 2")
        A(f"v_mov_b32 v{Z2+1}, s{T0}")
        A(f"v_mov_b32 v{Z2+2}, 1")
        A(f"ds_write_b128 v{Z2}, {vr(Z,4)}")
        A(f"ds_write_b32 v{Z2+1}, v{Z2+2} offset:{L_SFL}")
        A(f"s_mov_b32 s{SLP}, 0")
    for s in range(R):
        L(f"K_H{s}")
        A(f"s_cmp_eq_u32 s{SREM}, {s}")
        A("s_cbranch_scc1 K_LAST")
        A(f"v_and_b32 v{LO}, 0xfc, v{EV+s}")
        A(f"v_mad_u32_u24 v{LO+1}, v{LO}, s{T2}, v{VQ16}")
        A(f"ds_read_b128 {vr(Q,4)}, v{LO+1}")
        fold()
        A(f"s_cmp_lg_u32 s{SLP}, 0")
        A(f"s_cbranch_scc1 K_LS{s}")
        A(f"v_cvt_pk_bf16_f32 v{Z}, v{Z}, v{Z+1}")
        A(f"v_cvt_pk_bf16_f32 v{Z+1}, v{Z+2}, v{Z+3}")
        A(f"ds_write_b64 v{VA}, {vr(Z,2)}")
        L(f"K_HC{s}")
        A(f"v_mad_u32_u24 v{VA}, v{LO}, s{T3}, v{VH8}")
        A(f"s_waitcnt vmcnt({VW}) lgkmcnt(0)")
        for x in part_z1(s, Z) + part_z2(s, Z, NN) + part_exp(NN): A(x)
        A(f"v_pk_add_f32 {vr(DD,2)}, {vr(T,2)}, 1.0 op_sel_hi:[1,0]")
        A(f"v_pk_add_f32 {vr(DD+2,2)}, {vr(T+2,2)}, 1.0 op_sel_hi:[1,0]")
        A(f"s_branch K_J{s}")
        L(f"K_LS{s}")
        lead_flush()
        A(f"s_branch K_HC{s}")
    L("K_LAST")
    A(f"s_lshl_b32 s{T0}, s{SWV}, 2")
    A(f"v_mov_b32 v{LO}, s{T0}")
    A(f"v_add_u32 v{LO+1}, s{SSIDE}, v{VL16}")
    A(f"ds_read_b32 v{Z2}, v{LO} offset:{L_SFL+4}")
    A(f"ds_read_b128 {vr(Q,4)}, v{LO+1} offset:1024")
    fold()
    A(f"s_cmp_eq_u32 s{SLP}, 0")
    A("s_cbranch_scc1 K_L1")
    A("s_waitcnt lgkmcnt(0)")
    lead_flush()
    A("s_branch K_WDONE")
    L("K_L1")
    A(f"s_cmp_eq_u32 s{STAIL}, 0")
    A("s_cbranch_scc1 K_L3")
    A(f"s_mov_b32 s{SSP}, {SPIN}")
    L("K_L2")
    A("s_waitcnt lgkmcnt(0)")
    A(f"v_readfirstlane_b32 s{T0}, v{Z2}")
    A(f"s_cmp_lg_u32 s{T0}, 0")
    A("s_cbranch_scc1 K_L2B")
    A(f"s_sub_u32 s{SSP}, s{SSP}, 1")
    A("s_cbranch_scc1 K_L2B")
    A("s_sleep 2")
    A(f"ds_read_b32 v{Z2}, v{LO} offset:{L_SFL+4}")
    A(f"ds_read_b128 {vr(Q,4)}, v{LO+1} offset:1024")
    A("s_branch K_L2")
    L("K_L2B")
    A(f"v_pk_add_f32 {vr(Z,2)}, {vr(Z,2)}, {vr(Q,2)}")
    A(f"v_pk_add_f32 {vr(Z+2,2)}, {vr(Z+2,2)}, {vr(Q+2,2)}")
    L("K_L3")
    A(f"v_cvt_pk_bf16_f32 v{Z}, v{Z}, v{Z+1}")
    A(f"v_cvt_pk_bf16_f32 v{Z+1}, v{Z+2}, v{Z+3}")
    A(f"ds_write_b64 v{VA}, {vr(Z,2)}")
    L("K_WDONE")
    stamp(10)
    A(f"v_add_f32 v{T}, v{PZ}, v{PZ+1}")
    A(f"v_mov_b32 v{Z2+1}, 0x207")
    A(f"v_cmp_class_f32 vcc, v{T}, v{Z2+1}")
    A(f"v_mov_b32 v{Z2+2}, 0")
    A(f"s_mov_b32 s{TP}, {hex(C_NLN2)}")
    A(f"s_xor_b32 s{T0}, s{SWV}, 15")
    A(f"s_or_b32 s{T0}, s{T0}, s2")
    A("s_cbranch_scc1 K_NOCLR")
    srd(SO, PDBG, 256)
    A(f"buffer_store_dword v{Z2+2}, v2, {sr(SO,4)}, 0 offen sc1")
    L("K_NOCLR")
    srd(SO, POUT, N * D * 2)
    A("s_cbranch_vccz K_NOG")
    A(f"ds_write_b32 v{Z2+2}, v{Z2+1} offset:{L_FLAG+8}")
    L("K_NOG")
    A(f"s_cmp_ge_u32 s{SWV}, 8")
    A("s_cbranch_scc1 K_B4")
    A(f"s_cmp_eq_u32 s{SW2}, 0")
    A("s_cbranch_scc1 K_B4")
    w2_load()
    L("K_B4")
    A("s_waitcnt vmcnt(0) lgkmcnt(0)")
    A("s_barrier")
    stamp(11)
    A(f"ds_read_b32 v{Z2+3}, v{Z2+2} offset:{L_FLAG+8}")
    A(f"s_cmp_ge_u32 s{SWV}, 8")
    A("s_cbranch_scc1 K_CHK")
    HB = [48 + 4*k for k in range(8)]
    ACC = [12, 16, 20]
    seq = [(mt, s) for mt in range(3) for s in range(8)]
    PRE = 7
    for k in range(PRE):
        mt, s = seq[k]
        A(f"ds_read_b128 {vr(HB[k%8],4)}, v{AD+mt} offset:{s*64}")
    def epi(mt):
        for r in range(4):
            A(f"v_fma_f32 v{OV+4*mt+r}, v{ACC[mt]+r}, s{TP}, v{OV+4*mt+r}")
        A(f"v_cvt_pk_bf16_f32 v{32+2*mt}, v{OV+4*mt}, v{OV+4*mt+1}")
        A(f"v_cvt_pk_bf16_f32 v{33+2*mt}, v{OV+4*mt+2}, v{OV+4*mt+3}")
    for k, (mt, s) in enumerate(seq):
        if k + PRE < 24:
            m2, s2 = seq[k+PRE]
            A(f"ds_read_b128 {vr(HB[(k+PRE)%8],4)}, v{AD+m2} offset:{s2*64}")
        A(f"s_waitcnt lgkmcnt({min(PRE, 23-k)})")
        c = "0" if s == 0 else vr(ACC[mt], 4)
        A(f"v_mfma_f32_16x16x32_bf16 {vr(ACC[mt],4)}, {vr(W2R+4*s,4)}, {vr(HB[k%8],4)}, {c}")
        if s == 4 and mt > 0:
            epi(mt - 1)
    A("s_nop 7")
    epi(2)
    L("K_CHK")
    A("s_waitcnt lgkmcnt(0)")
    A(f"v_readfirstlane_b32 s{T2}, v{Z2+3}")
    A(f"s_lshl_b32 s{T1}, s{SMODE}, 31")
    A(f"s_or_b32 s{T2}, s{T2}, s{T1}")
    A(f"s_cmp_gt_i32 s{T2}, 0")
    A("s_cbranch_scc1 K_REDO")
    A(f"s_cmp_ge_u32 s{SWV}, 8")
    A("s_cbranch_scc1 K_END2")
    A(f"s_add_u32 s{T2}, s{SOUT}, 4096")
    A(f"s_add_u32 s{T1}, s{SOUT}, 8192")
    A(f"buffer_store_dwordx2 v[32:33], v{OUTA}, {sr(SO,4)}, s{SOUT} offen")
    A(f"buffer_store_dwordx2 v[34:35], v{OUTA}, {sr(SO,4)}, s{T2} offen")
    A(f"s_mov_b64 exec, {sr(SQM,2)}")
    A(f"buffer_store_dwordx2 v[36:37], v{OUTA}, {sr(SO,4)}, s{T1} offen")
    A("s_mov_b64 exec, -1")
    L("K_END2")
    if STAMP:
        stamp(12)
        A("s_waitcnt vmcnt(0)")
        stamp(13)
        A(f"v_writelane_b32 v{VST}, s26, 14")
        A(f"s_lshl_b32 s{T0}, s2, 4")
        A(f"s_add_u32 s{T0}, s{T0}, s{SWV}")
        A(f"s_lshl_b32 s{T0}, s{T0}, 8")
        A(f"s_add_u32 s{T0}, s{T0}, {hex(WS_DBG)}")
        A(f"buffer_store_dword v{VST}, v2, {sr(SW,4)}, s{T0} offen")
    L("K_END")
    A("s_endpgm")

    L("K_WL")
    for k in range(8):
        A(f"s_mov_b64 exec, {sr(MK[k],2)}")
        A("s_cbranch_execz K_WB")
        A(f"v_add_lshl_u32 v{PS+k}, v{PS+k}, v{RK+k}, 1")
        A(f"ds_write_b64 v{PS+k}, {vr(RC+2*k,2)} offset:{L_LIST}")
    A("s_branch K_WB")
    L("K_REDO")
    A(f"s_mov_b32 s{SMODE}, 1")
    A("s_setprio 0")
    A(f"v_and_b32 v{VC}, 15, v1")
    A(f"v_lshrrev_b32 v{VG}, 4, v1")
    A(f"v_mov_b32 v{VDEG}, 0")
    A(f"v_mov_b32 v{PZ}, 0")
    A(f"s_mov_b32 s{SFIRST}, 1")
    A("v_lshrrev_b32 v31, 1, v0")
    A("v_lshlrev_b32 v31, 11, v31")
    def reset_round():
        A("s_barrier")
        A(f"s_cmp_lg_u32 s{SWV}, 0")
        uid[0] += 1
        A(f"s_cbranch_scc1 K_RR{uid[0]}")
        A("v_mov_b32 v89, 0")
        A("ds_write_b32 v2, v89")
        A(f"ds_write_b32 v89, v89 offset:{L_FLAG}")
        A(f"ds_write_b32 v89, v89 offset:{L_GC+16}")
        A("s_waitcnt lgkmcnt(0)")
        L(f"K_RR{uid[0]}")
        A("s_barrier")
    reset_round()
    A(f"s_cmp_ge_u32 s{SWV}, 8")
    A("s_cbranch_scc1 K_B3")
    A("s_branch K_REC0")
    L("K_SLOW")
    A(f"s_cmp_eq_u32 s{SFIRST}, 0")
    A("s_cbranch_scc1 K_SL0")
    for k in range(12):
        A(f"v_mov_b32 v{SACC+k}, 0")
    L("K_SL0")
    for i in range(3):
        A(f"s_add_u32 s{T0}, s{SWV}, {16*i}")
        A(f"v_readlane_b32 s{T1}, v{VB4}, s{T0}")
        A(f"v_readlane_b32 s{T2}, v{VCNT}, s{T0}")
        A(f"s_mul_i32 s{T3}, s{T0}, {QROW}")
        A(f"s_cmp_eq_u32 s{T2}, 0")
        A(f"s_cbranch_scc1 K_SLN{i}")
        A(f"v_add_u32 v{Z2}, s{T3}, v{VQ16}")
        A(f"ds_read_b128 {vr(Q,4)}, v{Z2}")
        A(f"s_lshl_b32 s{T1}, s{T1}, 1")
        A(f"v_mov_b32 v{VA}, s{T1}")
        L(f"K_SLL{i}")
        A(f"ds_read_b64 {vr(EV,2)}, v{VA} offset:{L_LIST}")
        A(f"v_add_u32 v{VA}, 8, v{VA}")
        A("s_waitcnt lgkmcnt(0)")
        row_load(DAT + 2, EV)
        for x in part_z1(1, Z): A(x)
        A("s_waitcnt vmcnt(0)")
        for x in part_z2(1, Z, lo=NN) + part_exp(Z): A(x)
        A("s_nop 0")
        for k in range(4):
            A(f"v_add_f32 v{T+k}, 1.0, v{T+k}")
        for k in range(4):
            A(f"v_rcp_f32 v{T+k}, v{T+k}")
        A(f"s_sub_u32 s{T2}, s{T2}, 4")
        for k in range(4):
            A(f"v_fmac_f32 v{SACC+4*i+k}, v{Z+k}, v{T+k}")
        A(f"s_cmp_lg_u32 s{T2}, 0")
        A(f"s_cbranch_scc1 K_SLL{i}")
        L(f"K_SLN{i}")
    A(f"s_mov_b32 s{SFIRST}, 0")
    A("s_waitcnt lgkmcnt(0)")
    reset_round()
    A(f"s_cmp_eq_u32 s{SLP}, 0")
    A("s_cbranch_scc1 K_SLFIN")
    A(f"s_cmp_ge_u32 s{SWV}, 8")
    A("s_cbranch_scc1 K_B3")
    A(f"v_add_u32 v{PZ}, -16, v{PZ}")
    A(f"v_add_u32 v{PZ+1}, 128, v{PZ+1}")
    A("s_branch K_RECS")
    L("K_SLFIN")
    A(f"v_mov_b32 v{PZ}, 0")
    A(f"v_mov_b32 v{PZ+1}, 0")
    for i in range(3):
        if i == 2:
            A(f"s_cmp_ge_u32 s{SWV}, {NPB-32}")
            A("s_cbranch_scc1 K_WDONE")
        A(f"s_add_u32 s{T0}, s{SWV}, {16*i}")
        A(f"s_mul_i32 s{T0}, s{T0}, {HROW}")
        A(f"v_add_u32 v{Z2}, s{T0}, v{VH8}")
        A(f"v_cvt_pk_bf16_f32 v{Z}, v{SACC+4*i}, v{SACC+4*i+1}")
        A(f"v_cvt_pk_bf16_f32 v{Z+1}, v{SACC+4*i+2}, v{SACC+4*i+3}")
        A(f"ds_write_b64 v{Z2}, {vr(Z,2)}")
    tail_prep()
    A("s_branch K_WDONE")
    L("K_CODE_END")

hdr = f"""; Kernarg layout for this problem (88 bytes, ptrs only, base s[0:1]):
; @launch grid=({NB},1,1) block=(1024,1,1) lds={LDS}
.amdgcn_target "amdgcn-amd-amdhsa--gfx950"
"""
gen()
vg = 128
out.extend(['.section .rodata,"a"', ".p2align 6", f".amdhsa_kernel {KN}",
    f"  .amdhsa_next_free_vgpr {vg}", f"  .amdhsa_next_free_sgpr 102", f"  .amdhsa_accum_offset {vg}",
    "  .amdhsa_group_segment_fixed_size 0", "  .amdhsa_kernarg_size 88", "  .amdhsa_user_sgpr_count 2",
    "  .amdhsa_user_sgpr_kernarg_segment_ptr 1", "  .amdhsa_system_sgpr_workgroup_id_x 1", ".end_amdhsa_kernel"])
txt = hdr + "\n".join(out) + "\n"
dst = sys.argv[1] if len(sys.argv) > 1 else f"fused.s"
open(dst, "w").write(txt)
print("wrote", dst, "LDS", LDS)
```

```python
import sys, struct, os

NAME = "standalone__edge_featured_mpnn_mpnn__graph"
KN = NAME + "_kernel"
N, E, D, H = 10000, 160000, 128, 256
NB, NPB, CH = 250, 40, 640
WS_REC = 0x500000
WS_OFS = 0x680000
WS_PF = 0x700000
WS_W2F = 0x710000
WS_DBG = 0x2000000
WS_BYTES = 0x10000000
R = 8
PRIO_T = eval(os.environ.get("PRIO_T", "((32, 2), (21, 1), (10, 0))"))
STAMP = os.environ.get("STAMP", "0") == "1"
PI = [1, 3, 0, 2]
FBASE = 0x4B000000
SPIN = 1 << 16
WSB = int(os.environ.get('WSB', '0')) << 20
TCH = int(os.environ.get('TCH', '0'))
PLATE = int(os.environ.get('PLATE', '2'))
F1 = int(os.environ.get('F1', '4'))
SLP_F = int(os.environ.get('SLPF', '0'))
SLP_N = int(os.environ.get('SLP', '2'))

def f32bits(x): return struct.unpack("<I", struct.pack("<f", x))[0]
C_NLOG2E = f32bits(-1.4426950408889634)
C_NLN2 = f32bits(-0.6931471805599453)

out = []
def A(s): out.append("    " + s)
def L(s): out.append(s + ":")
def CM(s): out.append("    ; " + s)
def vr(a, n): return f"v[{a}:{a+n-1}]"
def sr(a, n): return f"s[{a}:{a+n-1}]"

PX, PE, PSRC, PDST, PW1, PB1, PW2, PB2 = 4, 6, 8, 10, 12, 14, 16, 18
POUT, PDBG, PWS = 20, 22, 24

def srd(dst, base, nrec, off=None):
    if off is not None:
        A(f"s_add_u32 s{dst}, s{base}, {off}")
        A(f"s_addc_u32 s{dst+1}, s{base+1}, 0")
        src1 = dst + 1
    else:
        A(f"s_mov_b32 s{dst}, s{base}")
        src1 = base + 1
    A(f"s_and_b32 s{dst+1}, s{src1}, 0xffff")
    A(f"s_mov_b32 s{dst+2}, {hex(nrec)}")
    A(f"s_mov_b32 s{dst+3}, 0x20000")

NST = 0
def stamp(k):
    if STAMP: A(f"s_memrealtime s[100:101]"); A("s_waitcnt lgkmcnt(0)"); A(f"v_writelane_b32 v{VST}, s100, {k}")

QROW, HROW, PROW = 1040, 528, 272
L_CNT, L_FLAG, L_SFL, L_ZROW, L_GC, L_TOK = 0, 256, 272, 352, 864, 892
L_CV = 896
L_HIST = L_CV + 2560
L_PRIV = L_HIST + 1024
ZERO_B = L_PRIV
PRIV_N = 64 + R + 8
PRIV_B = PRIV_N * 8
L_H = L_PRIV + 16 * PRIV_B
L_XT = L_H + NPB * HROW
L_SIDE = L_XT
L_Q = L_XT + 20480
L_S = L_Q + NPB * QROW
L_SB = L_H + 10240
L_PT = L_Q
LDS = L_S + 65536
L_LIST = L_HIST
assert LDS <= 163840 and L_XT - L_LIST >= 32000 and L_H % 16 == 0 and L_Q % 16 == 0 and L_S % 16 == 0 and L_XT % 16 == 0
W1B_EARLY = 0
W1B_AT = 2
W1B_H = int(os.environ.get("W1BH", "4"))
GPR = int(os.environ.get("GPR", "2"))
WB0 = int(os.environ.get("WB0", "1"))
GWD = int(os.environ.get("GWD", "99"))
PD0 = int(os.environ.get("PD0", "0"))
WIN = 16 * 63
DUMMY = FBASE + 0x7FF000

VLF, VH8, VL16, VT16, VQ16 = 3, 4, 5, 6, 7
W, Q, NN, DD, Z, Z2, T, LO, PZ = 8, 12, 16, 20, 24, 28, 32, 36, 38
VA, VP, VDEG, VB4, VCNT, VPL, VM, VEND = 40, 41, 42, 43, 44, 45, 46, 47
EV, OG, DAT = 48, [56, 60], 64
AD, OUTA, OV, B2F = 80, 83, 84, 92
XF = 48
WL, PT = 96, 112
W2R = 96
RC = 96
VST = 45
SACC = 112

def gen():
    out.extend([".text", f".globl {KN}", ".p2align 8", f".type {KN},@function"])
    L(KN)
    ST, SW, SO, SX, SY, SZ = 28, 32, 36, 40, 44, 48
    MK = [4 + 2*k for k in range(8)]
    SC = 60
    SMODE, SFIRST, SRND, SFAST, STOK, SSP = 62, 63, 64, 65, 66, 67
    SM = 68
    SREM, STOT, SLP, SNN, SWV = 70, 71, 72, 73, 3
    SN40, SEX = 74, 76
    T0, T1, T2, T3, TP = 78, 79, 80, 81, 82
    STAIL, SSIDE, SLEN, SOUT, SWO = 84, 85, 86, 87, 88
    SQM, P0, P1 = 90, 92, 93
    SB8, SW2, SOWN, STAG, SN80, SCB = 75, 89, 52, 54, 55, 56
    C2 = sr(SC, 2)
    SCAN = ("row_shr:2 row_mask:0xf bank_mask:0xf bound_ctrl:0", "row_shr:4 row_mask:0xf bank_mask:0xf bound_ctrl:0",
            "row_shr:8 row_mask:0xf bank_mask:0xf bound_ctrl:0", "row_bcast:15 row_mask:0xa bank_mask:0xf", "row_bcast:31 row_mask:0xc bank_mask:0xf")
    VC, VG = 36, 37
    GRT = 34
    VZ, VONE = VEND, VM

    A("s_load_dwordx16 s[4:19], s[0:1], 0")
    A("s_load_dwordx4 s[20:23], s[0:1], 64")
    A("s_load_dwordx2 s[24:25], s[0:1], 80")
    A("s_memrealtime s[26:27]")
    CM("pull the code towards the L2 right away (one load per 128-B line; lanes past the code are out of range)")
    A(f"s_getpc_b64 {sr(SX,2)}")
    L("K_PC0")
    A("v_lshlrev_b32 v126, 7, v0")
    A(f"s_and_b32 s{SX+1}, s{SX+1}, 0xffff")
    A(f"s_mov_b32 s{SX+2}, K_CODE_END-K_PC0")
    A(f"s_mov_b32 s{SX+3}, 0x20000")
    A(f"buffer_load_dword v{VDEG}, v126, {sr(SX,4)}, 0 offen")
    A(f"s_cmp_ge_u32 s2, {NB}")
    A("s_cbranch_scc1 K_END")
    A("v_and_b32 v1, 63, v0")
    A("v_lshrrev_b32 v48, 6, v0")
    A(f"v_lshlrev_b32 v{VT16}, 4, v0")
    A(f"v_readfirstlane_b32 s{SWV}, v48")
    A("v_lshlrev_b32 v2, 2, v1")
    A(f"v_lshlrev_b32 v{VL16}, 4, v1")
    A(f"v_and_b32 v{VC}, 15, v1")
    A(f"v_lshrrev_b32 v{VG}, 4, v1")
    if STAMP: A(f"v_mov_b32 v{VST}, 0")
    A(f"v_mov_b32 v{VZ}, 0")
    A(f"v_mov_b32 v{VONE}, 1")
    for k in range(4):
        A(f"v_mov_b32 v{8+k}, 0")
    A(f"s_movk_i32 s{T0}, {ZERO_B//16}")
    A(f"v_cmp_gt_u32 vcc, s{T0}, v0")
    A(f"s_mul_i32 s{SN40}, s2, {NPB}")
    A(f"s_lshr_b32 s{SN80}, s2, 1")
    A(f"s_mul_i32 s{SN80}, s{SN80}, 80")
    A(f"s_and_b32 s{SCB}, s2, 1")
    A(f"s_and_saveexec_b64 {sr(SEX,2)}, vcc")
    A("s_cbranch_execz K_Z1")
    A(f"ds_write_b128 v{VT16}, v[8:11]")
    L("K_Z1")
    A(f"s_mov_b64 exec, {sr(SEX,2)}")
    A(f"s_mov_b32 s{P0}, 0x05040100")
    A(f"s_mov_b32 s{P1}, 0x07060302")
    A(f"s_mov_b32 s{SC}, {hex(C_NLOG2E)}")
    A(f"s_mov_b32 s{SC+1}, {hex(C_NLOG2E)}")
    A(f"s_mul_i32 s{SW2}, s{SWV}, {PRIV_B}")
    A(f"s_add_u32 s{SW2}, s{SW2}, {L_PRIV}")
    A(f"v_add_u32 v30, s{SW2}, v2")
    A(f"v_mov_b32 v31, {hex(DUMMY)}")
    A("ds_write_b32 v30, v31")
    A(f"ds_write_b32 v30, v31 offset:{(PRIV_N-64)*4}")
    A(f"s_cmp_lt_u32 s{SWV}, 8")
    A("s_cbranch_scc1 K_AUX")
    def common_setup():
        if WSB:
            A(f"s_add_u32 s{PWS}, s{PWS}, {hex(WSB)}")
            A(f"s_addc_u32 s{PWS+1}, s{PWS+1}, 0")
        srd(SW, PWS, WS_BYTES - WSB)
        A(f"s_lshl_b32 s{SSIDE}, s{SWV}, 10")
        A(f"s_add_u32 s{SSIDE}, s{SSIDE}, {L_SIDE}")
        A(f"s_mov_b32 s{SMODE}, 0")
        A(f"s_sub_u32 s{ST}, s{PWS}, {hex(FBASE)}")
        A(f"s_subb_u32 s{ST+1}, s{PWS+1}, 0")
        A(f"s_and_b32 s{ST+1}, s{ST+1}, 0xffff")
        A(f"s_mov_b32 s{ST+2}, {hex(FBASE + N*512)}")
        A(f"s_mov_b32 s{ST+3}, 0x20000")
        A(f"s_lshl_b32 s{SB8}, s2, 3")
        A(f"s_add_u32 s{SB8}, s{SB8}, {hex(WS_OFS)}")
        A(f"v_cvt_f32_u32 v{VLF}, v2")
        A(f"v_lshlrev_b32 v{VH8}, 3, v1")
        A(f"v_add_u32 v{VH8}, {L_H}, v{VH8}")
        A(f"v_add_u32 v{VQ16}, {L_Q}, v{VL16}")
        A(f"v_cmp_gt_u32 {sr(SQM,2)}, 8, v{VC}")
        A(f"s_lshl_b32 s{SOUT}, s{SN40}, 8")
        A(f"s_lshl_b32 s{T2}, s{SWV}, 5")
        A(f"s_add_u32 s{SOUT}, s{SOUT}, s{T2}")
        A(f"s_mov_b32 s{SFIRST}, 1")
    uid = [0]
    def arrive(c):
        A("s_mov_b64 exec, 1")
        A(f"ds_add_u32 v{VZ}, v{VONE} offset:{L_GC + 4*c}")
        A("s_mov_b64 exec, -1")
    def await_lds(off, n, vt, sdst, nonzero=False, slp=1):
        uid[0] += 1; u = uid[0]
        A(f"s_mov_b32 s{SSP}, {SPIN*16}")
        L(f"K_AW{u}")
        A(f"ds_read_b32 v{vt}, v{VZ} offset:{off}")
        A("s_waitcnt lgkmcnt(0)")
        A(f"v_readfirstlane_b32 s{sdst}, v{vt}")
        A(f"s_cmp_lg_u32 s{sdst}, 0" if nonzero else f"s_cmp_ge_u32 s{sdst}, {n}")
        A(f"s_cbranch_scc1 K_AWD{u}")
        A(f"s_sub_u32 s{SSP}, s{SSP}, 1")
        A("s_cbranch_scc1 K_END")
        A(f"s_sleep {slp}")
        A(f"s_branch K_AW{u}")
        L(f"K_AWD{u}")
    def perm4(dst, col, src=WL):
        for pr in range(4):
            a, b = src + 8*pr + (col >> 1), src + 8*pr + 4 + (col >> 1)
            A(f"v_perm_b32 v{dst+pr}, v{b}, v{a}, s{P1 if col & 1 else P0}")
    def franks(srdn):
        pass
    VPA, VQA, VB1A, VSW, VWO = 41, 38, 43, 44, 39
    A(f"v_lshlrev_b32 v{VWO}, 12, v{VG}")
    A(f"v_lshl_add_u32 v{VWO}, v{VC}, 4, v{VWO}")
    A(f"s_and_b32 s{T0}, s{SWV}, 3")
    A(f"s_bfe_u32 s{T3}, s{SWV}, 0x10002")
    A(f"s_lshl_b32 s{SWO}, s{T0}, 14")
    A(f"s_lshl_b32 s{T1}, s{T3}, 11")
    A(f"s_add_u32 s{T1}, s{T1}, s{SWO}")
    A(f"s_lshl_b32 s{T2}, s{SCB}, 8")
    A(f"s_add_u32 s{T1}, s{T1}, s{T2}")
    A(f"s_lshl_b32 s{T2}, s{T3}, 8")
    A(f"s_add_u32 s{SWO}, s{SWO}, s{T2}")
    A(f"s_add_u32 s{SWO}, s{SWO}, {128*512}")
    A("s_waitcnt lgkmcnt(0)")
    srd(SY, PW1, 257 * 512)
    if not WB0: A("s_barrier")
    for j in range(4):
        A(f"buffer_load_dwordx4 {vr(64+4*j,4)}, v{VWO}, {sr(SY,4)}, s{T1} offen offset:{512*j}")
    if WB0: A("s_barrier")
    if GPR: A(f"s_setprio {GPR}")
    if W1B_EARLY:
        for j in range(8):
            A(f"buffer_load_dwordx4 {vr(WL+4*j,4)}, v{VWO}, {sr(SY,4)}, s{SWO} offen offset:{512*j}")
    if W1B_H == 3:
        A(f"s_cmp_ge_u32 s{SWV}, 12")
        A("s_cbranch_scc1 K_NOH3")
        for j in range(8):
            A(f"buffer_load_dwordx4 {vr(WL+4*j,4)}, v{VWO}, {sr(SY,4)}, s{SWO} offen offset:{512*j}")
        L("K_NOH3")
    common_setup()
    A(f"s_lshl_b32 s{T0}, s{T0}, 10")
    A(f"s_add_u32 s{T0}, s{T0}, {L_S}")
    A(f"s_lshl_b32 s{T1}, s{T3}, 3")
    A(f"s_add_u32 s{T1}, s{T1}, s{T0}")
    A(f"v_add_u32 v12, s{T1}, v{VL16}")
    A(f"s_lshl_b32 s{T1}, s{T3}, 15")
    A(f"s_add_u32 s{T1}, s{T1}, s{T0}")
    A(f"v_add_u32 v{VSW}, s{T1}, v{VL16}")
    XA = 8
    A(f"v_xor_b32 v13, v{VG}, v{VC}")
    A("v_lshlrev_b32 v13, 4, v13")
    A(f"v_lshl_add_u32 v13, v{VC}, 8, v13")
    for s_ in range(4):
        A(f"v_xor_b32 v{XA+s_}, {64*s_}, v13")
    A(f"s_sub_u32 s{T0}, s{SWV}, 8")
    A(f"s_lshl_b32 s{T1}, s{T0}, 12")
    A(f"s_add_u32 s{T1}, s{T1}, {L_S}")
    A(f"v_add_u32 v{VA}, s{T1}, v{VL16}")
    A(f"s_lshr_b32 s{T1}, s{T0}, 2")
    A(f"s_lshl_b32 s{T1}, s{T1}, 4")
    A(f"s_and_b32 s{T2}, s{T0}, 3")
    A(f"s_add_u32 s{T1}, s{T1}, s{T2}")
    A(f"v_lshl_add_u32 v13, v{VG}, 2, s{T1}")
    A(f"s_movk_i32 s{T1}, {PROW}")
    A(f"v_lshlrev_b32 v{VPA}, 2, v13")
    A(f"v_mad_u32_u24 v{VPA}, v{VC}, s{T1}, v{VPA}")
    A(f"v_add_u32 v{VPA}, {L_PT}, v{VPA}")
    A(f"s_mov_b32 s{T2}, 0x8000")
    if W1B_H == 3:
        A(f"s_cmp_lt_u32 s{SWV}, 12")
        A("s_cbranch_scc1 K_NOH3B")
        A("s_waitcnt vmcnt(0)")
        L("K_NOH3B")
        A("s_waitcnt vmcnt(8)")
    else:
        A("s_waitcnt vmcnt(0)")
    stamp(1)
    for pr in range(2):
        for dw in range(4):
            a_, b_ = 64 + 8*pr + dw, 64 + 8*pr + 4 + dw
            A(f"v_perm_b32 v{48+(2*dw)*2+pr}, v{b_}, v{a_}, s{P0}")
            A(f"v_perm_b32 v{48+(2*dw+1)*2+pr}, v{b_}, v{a_}, s{P1}")
    for col in range(8):
        A(f"ds_write_b64 v12, {vr(48+2*col,2)} offset:{col*4096}")
    def w1b_loads():
        for j in range(8):
            A(f"buffer_load_dwordx4 {vr(WL+4*j,4)}, v{VWO}, {sr(SY,4)}, s{SWO} offen offset:{512*j}")
    if W1B_AT == 0: w1b_loads()
    A("s_waitcnt lgkmcnt(0)")
    arrive(0)
    if W1B_H == 4: w1b_loads()
    if W1B_H == 2:
        A(f"s_cmp_ge_u32 s{SWV}, 12")
        A("s_cbranch_scc1 K_NOH2")
        w1b_loads()
        L("K_NOH2")
    await_lds(L_GC, 13, 12, T0)
    stamp(3)
    if W1B_H == 1:
        A(f"s_cmp_ge_u32 s{SWV}, 12")
        A("s_cbranch_scc1 K_NOH1")
        w1b_loads()
        L("K_NOH1")
    AF, XR = 48, [64 + 4*k for k in range(8)]
    ACP = lambda mt: 16 + 4*mt
    for s_ in range(4):
        A(f"ds_read_b128 {vr(AF+4*s_,4)}, v{VA} offset:{s_*1024}")
    seq = [(mt, s_) for mt in range(5) for s_ in range(4)]
    PRE = 7
    def rdx(k):
        mt, s_ = seq[k]
        A(f"ds_read_b128 {vr(XR[k%8],4)}, v{XA+s_} offset:{L_XT + 4096*mt}")
    for k in range(PRE): rdx(k)
    def pack(mt):
        f = [ACP(mt) + r for r in range(4)]
        o = []
        o += [f"v_add_f32 v{f[r]}, 0, v{f[r]}" for r in range(4)]
        o += [f"v_add_u32 v{f[r]}, s{T2}, v{f[r]}" for r in range(4)]
        o += [f"v_sub_u32_sdwa v{f[r]}, v{f[r]}, v{f[r-1]} clamp dst_sel:DWORD dst_unused:UNUSED_PAD src0_sel:DWORD src1_sel:WORD_1" for r in range(1, 4)]
        o += [f"v_perm_b32 v{f[0]}, v{f[1]}, v{f[0]}, s{P1}", f"v_perm_b32 v{f[2]}, v{f[3]}, v{f[2]}, s{P1}"]
        return o
    pend = []
    for k, (mt, s_) in enumerate(seq):
        if k + PRE < 20: rdx(k + PRE)
        A(f"s_waitcnt lgkmcnt({min(PRE, 19-k)})")
        c = "0" if s_ == 0 else vr(ACP(mt), 4)
        A(f"v_mfma_f32_16x16x32_bf16 {vr(ACP(mt),4)}, {vr(AF+4*s_,4)}, {vr(XR[k%8],4)}, {c}")
        if s_ == 3 and mt >= 1: pend += pack(mt - 1)
        for x in pend[:4]: A(x)
        pend = pend[4:]
    for x in pend: A(x)
    A("s_nop 1")
    for x in pack(4): A(x)
    for mt in range(5):
        A(f"ds_write_b32 v{VPA}, v{ACP(mt)} offset:{16*mt*PROW}")
        A(f"ds_write_b32 v{VPA}, v{ACP(mt)+2} offset:{16*mt*PROW + 128}")
    A("v_bfe_u32 v12, v0, 4, 4")
    A(f"s_movk_i32 s{T1}, {PROW}")
    A(f"v_lshlrev_b32 v13, 4, v{VC}")
    A(f"v_mad_u32_u24 v14, v12, s{T1}, v13")
    A(f"v_add_u32 v14, {L_PT}, v14")
    A("v_and_b32 v15, 0x70, v13")
    A("v_lshl_add_u32 v15, v12, 9, v15")
    A("v_and_b32 v13, 0x80, v13")
    A("v_lshl_add_u32 v15, v13, 1, v15")
    A(f"s_lshl_b32 s{T0}, s{SN80}, 9")
    A(f"s_lshl_b32 s{T1}, s{SCB}, 7")
    A(f"s_add_u32 s{T0}, s{T0}, s{T1}")
    A("s_waitcnt lgkmcnt(0)")
    arrive(1)
    await_lds(L_GC + 4, 9, 12, T3)
    stamp(4)
    A(f"s_cmp_lt_u32 s{SWV}, 12")
    A("s_cbranch_scc1 K_GW")
    for k in range(5):
        A(f"ds_read_b128 {vr(48+4*k,4)}, v14 offset:{16*k*PROW}")
    for k in range(5):
        A(f"s_waitcnt lgkmcnt({4-k})")
        A(f"buffer_store_dwordx4 {vr(48+4*k,4)}, v15, {sr(SW,4)}, s{T0} offen sc1")
        A(f"s_add_u32 s{T0}, s{T0}, 8192")
    if W1B_H == 4:
        A("s_waitcnt vmcnt(5)")
        for col in range(8):
            d = 16 + 4 * (col % 5)
            perm4(d, col)
            A(f"ds_write_b128 v{VSW}, {vr(d,4)} offset:{col*4096}")
        A("s_waitcnt lgkmcnt(0)")
    arrive(2)
    await_lds(L_TOK, 0, 14, STOK, nonzero=True)
    A("s_waitcnt vmcnt(0)")
    A("s_mov_b64 exec, 1")
    A(f"ds_add_rtn_u32 v15, v{VZ}, v{VONE} offset:{L_GC+12}")
    A(f"s_lshl_b32 s{T0}, s2, 4")
    A(f"s_add_u32 s{T0}, s{T0}, {hex(WS_PF)}")
    A("s_waitcnt lgkmcnt(0)")
    A(f"v_readfirstlane_b32 s{T1}, v15")
    A(f"s_cmp_lg_u32 s{T1}, 3")
    A("s_cbranch_scc1 K_NOPF")
    A(f"buffer_store_dword v14, v{VZ}, {sr(SW,4)}, s{T0} offen sc1")
    L("K_NOPF")
    A("s_mov_b64 exec, -1")
    stamp(2)
    A("s_branch K_GQ")
    L("K_GW")
    def st1():
        for col in range(8):
            d = 16 + 4 * (col % 5)
            perm4(d, col)
            A(f"ds_write_b128 v{VSW}, {vr(d,4)} offset:{col*4096}")
    if W1B_H:
        A("s_waitcnt vmcnt(0)")
        st1()
    if W1B_H != 4:
        if GWD == 99: await_lds(L_GC + 12, 4, 12, T3, slp=2)
        elif GWD: A(f"s_sleep {GWD}")
        if not W1B_H:
            w1b_loads()
        A(f"s_add_u32 s{T0}, s{SWO}, 256")
        for j in range(8):
            A(f"buffer_load_dwordx4 {vr(64+4*j,4)}, v{VWO}, {sr(SY,4)}, s{T0} offen offset:{512*j}")
        if not W1B_H:
            A("s_waitcnt vmcnt(8)")
            st1()
        A("s_waitcnt vmcnt(0)")
        for col in range(8):
            d = 16 + 4 * ((col + 3) % 5)
            perm4(d, col, 64)
            A(f"ds_write_b128 v{VSW}, {vr(d,4)} offset:{32768 + col*4096}")
    A("s_waitcnt lgkmcnt(0)")
    arrive(2)
    await_lds(L_TOK, 0, 14, STOK, nonzero=True)
    L("K_GQ")
    A(f"s_sub_u32 s{T0}, s{SWV}, 8")
    A(f"s_lshl_b32 s{T1}, s{T0}, 13")
    A(f"s_add_u32 s{T1}, s{T1}, {L_S}")
    A(f"v_add_u32 v{VA}, s{T1}, v{VL16}")
    A(f"s_lshr_b32 s{T1}, s{T0}, 1")
    A(f"s_lshl_b32 s{T1}, s{T1}, 4")
    A(f"s_and_b32 s{T0}, s{T0}, 1")
    A(f"s_lshl_b32 s{T0}, s{T0}, 1")
    A(f"s_add_u32 s{T0}, s{T0}, s{T1}")
    A(f"v_lshl_add_u32 v12, v{VG}, 2, s{T0}")
    A(f"v_lshlrev_b32 v{VB1A}, 4, v12")
    A(f"s_movk_i32 s{T1}, {QROW}")
    A(f"v_mad_u32_u24 v{VPA}, v{VC}, s{T1}, v{VB1A}")
    A(f"v_add_u32 v{VPA}, {L_Q}, v{VPA}")
    A(f"s_mul_i32 s{T0}, s{SCB}, 40")
    A(f"v_add_u32 v12, s{T0}, v{VC}")
    A(f"v_xor_b32 v13, v{VG}, v12")
    A("v_and_b32 v13, 15, v13")
    A("v_lshlrev_b32 v13, 4, v13")
    A("v_lshl_add_u32 v13, v12, 8, v13")
    for s_ in range(4):
        A(f"v_xor_b32 v{XA+s_}, {64*s_}, v13")
    stamp(5)
    for s_ in range(4):
        for mt in range(3):
            A(f"ds_read_b128 {vr(XF+(mt*4+s_)*4,4)}, v{XA+s_} offset:{L_XT + 4096*mt}")
    await_lds(L_GC + 8, 12, 12, T0)
    AC = lambda t, mt: 16 + (t*3 + mt) * 4
    A(f"ds_read_b128 v[8:11], v{VB1A} offset:{L_CV+1024}")
    A(f"ds_read_b128 v[12:15], v{VB1A} offset:{L_CV+1024+16}")
    for k in range(8):
        A(f"ds_read_b128 {vr(WL+4*k,4)}, v{VA} offset:{((k&1)*4 + (k>>1))*1024}")
    for k in range(8):
        s_, t = k >> 1, k & 1
        A(f"s_waitcnt lgkmcnt({7-k})")
        for mt in range(3):
            c = vr(8 + 4*t, 4) if s_ == 0 else vr(AC(t, mt), 4)
            A(f"v_mfma_f32_16x16x32_bf16 {vr(AC(t,mt),4)}, {vr(WL+4*k,4)}, {vr(XF+(mt*4+s_)*4,4)}, {c}")
    A(f"s_mov_b32 s{T1}, {hex(WS_PF - 8192)}")
    A(f"s_cmp_lt_u32 s{SWV}, 12")
    A(f"s_cselect_b32 s{SRND}, s{T1}, 0x7ff00000")
    if not PLATE: A(f"buffer_load_dword v{VA}, v{VT16}, {sr(SW,4)}, s{SRND} offen sc1")
    for k in range(8):
        A(f"s_mov_b64 {sr(MK[k],2)}, 0")
    for mt in range(3):
        for t in range(2):
            d = 48 + (mt*2 + t) * 4
            for i in range(4):
                A(f"v_mul_f32 v{d+i}, s{SC}, v{AC(t,mt)+PI[i]}")
            if mt == 2:
                A(f"s_mov_b64 exec, {sr(SQM,2)}")
            A(f"ds_write_b128 v{VPA}, {vr(d,4)} offset:{16*mt*QROW + 16*t}")
            if mt == 2:
                A("s_mov_b64 exec, -1")
    stamp(6)
    A(f"v_and_b32 v{VC}, 15, v1")
    A(f"v_lshrrev_b32 v{VG}, 4, v1")
    A(f"v_mov_b32 v{PZ}, 0")
    A(f"v_mov_b32 v{PZ+1}, 0")
    A(f"v_mov_b32 v{VP}, s{SW2}")
    A(f"v_mov_b32 v{VDEG}, 0")
    A(f"v_mov_b32 v{OUTA}, 0")
    A(f"s_cmp_ge_u32 s{SWV}, 12")
    A("s_cbranch_scc1 K_B3")
    A(f"s_movk_i32 s{T0}, {512 + NB}")
    A(f"v_cmp_gt_u32 {sr(TP,2)}, s{T0}, v0")
    if PLATE:
        await_lds(L_GC + 12, 4, 12, T3, slp=2)
        await_lds(L_GC + (20 if PLATE == 2 else 16), 8, 12, T3, slp=2)
        if PLATE > 2: A(f"s_sleep {PLATE}")
        A(f"buffer_load_dword v{VA}, v{VT16}, {sr(SW,4)}, s{SRND} offen sc1")
    A(f"s_mov_b32 s{SSP}, {SPIN}")
    L("K_PFL")
    A("s_waitcnt vmcnt(0)")
    A(f"v_cmp_ne_u32 vcc, s{STOK}, v{VA}")
    A(f"s_and_b64 vcc, vcc, {sr(TP,2)}")
    A("s_cbranch_scc0 K_B3")
    A(f"s_sub_u32 s{SSP}, s{SSP}, 1")
    A("s_cbranch_scc1 K_B3")
    A("s_mov_b64 exec, vcc")
    if SLP_F: A(f"s_sleep {SLP_F}")
    A(f"buffer_load_dword v{VA}, v{VT16}, {sr(SW,4)}, s{SRND} offen sc1")
    A("s_mov_b64 exec, -1")
    A("s_branch K_PFL")

    L("K_AUX")
    A(f"s_cmp_lg_u32 s{SWV}, 0")
    A("s_cbranch_scc1 K_AUX1")
    ED, ES, EE, RKB, BN4, RCB = 48, 58, 68, 74, 84, 96
    A("v_lshlrev_b32 v12, 3, v1")
    A(f"s_mul_i32 s{T0}, s2, {CH*4}")
    A(f"s_mul_i32 s{T1}, s2, {CH*2}")
    A("s_waitcnt lgkmcnt(0)")
    srd(SX, PDST, CH * 4, f"s{T0}")
    for k in range(5):
        A(f"buffer_load_dwordx2 {vr(ED+2*k,2)}, v12, {sr(SX,4)}, 0 offen offset:{512*k}")
    srd(SY, PSRC, CH * 4, f"s{T0}")
    for k in range(5):
        A(f"buffer_load_dwordx2 {vr(ES+2*k,2)}, v12, {sr(SY,4)}, 0 offen offset:{512*k}")
    srd(SZ, PE, CH * 2, f"s{T1}")
    for k in range(5):
        A(f"buffer_load_dword v{EE+k}, v2, {sr(SZ,4)}, 0 offen offset:{256*k}")
    A("s_barrier")
    A("s_setprio 3")
    common_setup()
    srd(SO, PDBG, 256)
    A(f"s_movk_i32 s{T1}, {-NPB}")
    for j in range(10):
        if j % 2 == 0:
            A(f"s_waitcnt vmcnt({14 - j//2})")
            if j == 0:
                A(f"buffer_load_dword v33, v{VZ}, {sr(SO,4)}, 0 offen sc1")
        A(f"v_mul_u32_u24 v14, 0xcccd, v{ED+j}")
        A("v_lshrrev_b32 v14, 21, v14")
        A(f"v_lshlrev_b32 v{BN4+j}, 2, v14")
        A(f"ds_add_rtn_u32 v{RKB+j}, v{BN4+j}, v{VONE} offset:{L_HIST}")
        A(f"v_mad_i32_i24 v{ED+j}, v14, s{T1}, v{ED+j}")
    HC_, HB_ = 16, 20
    A(f"ds_read_b128 {vr(HC_,4)}, v{VL16} offset:{L_HIST}")
    A("s_waitcnt vmcnt(1)")
    stamp(1)
    for j in range(10):
        if j % 2 == 0:
            A(f"v_lshlrev_b32 v14, 16, v{EE+j//2}")
        else:
            A(f"v_and_b32 v14, 0xffff0000, v{EE+j//2}")
        A(f"v_lshl_or_b32 v{RCB+2*j+1}, v{ED+j}, 2, v14")
    A("s_waitcnt lgkmcnt(0)")
    A(f"v_add_u32 v{HB_+2}, v{HC_}, v{HC_+1}")
    A(f"v_add_u32 v{HB_+3}, v{HB_+2}, v{HC_+2}")
    A(f"v_add_u32 v15, v{HB_+3}, v{HC_+3}")
    A("s_nop 1")
    A(f"v_add_u32_dpp v{HB_}, v15, v15 row_shr:1 row_mask:0xf bank_mask:0xf bound_ctrl:0")
    for ctl in SCAN:
        A("s_nop 1")
        A(f"v_add_u32_dpp v{HB_}, v{HB_}, v{HB_} {ctl}")
    A(f"v_sub_u32 v{HB_}, v{HB_}, v15")
    A(f"v_add_u32 v{HB_+1}, v{HB_}, v{HC_}")
    A(f"v_add_u32 v{HB_+2}, v{HB_}, v{HB_+2}")
    A(f"v_add_u32 v{HB_+3}, v{HB_}, v{HB_+3}")
    A(f"ds_write_b128 v{VL16}, {vr(HB_,4)} offset:{L_HIST}")
    for j in range(10):
        A(f"ds_read_b32 v{ED+j}, v{BN4+j} offset:{L_HIST}")
    for k in range(4):
        A(f"v_lshl_or_b32 v{25+2*k}, v{HC_+k}, 16, v{HB_+k}")
    A(f"v_lshlrev_b32 v32, 1, v{VL16}")
    A(f"s_mov_b32 s{SSP}, {SPIN}")
    A("s_waitcnt vmcnt(0)")
    L("K_TOK")
    A(f"v_readfirstlane_b32 s{STOK}, v33")
    A(f"s_cmp_lg_u32 s{STOK}, 0")
    A("s_cbranch_scc1 K_TOKOK")
    A(f"s_sub_u32 s{SSP}, s{SSP}, 1")
    A("s_cbranch_scc1 K_END")
    A(f"buffer_load_dword v33, v{VZ}, {sr(SO,4)}, 0 offen sc1")
    A("s_waitcnt vmcnt(0)")
    A("s_branch K_TOK")
    L("K_TOKOK")
    A(f"s_lshl_b32 s{T0}, s{STOK}, 13")
    A(f"s_and_b32 s{T0}, s{T0}, 0xffffc000")
    A(f"s_lshl_b32 s{T3}, s2, 11")
    A(f"s_add_u32 s{T3}, s{T3}, {hex(WS_OFS)}")
    for k in range(4):
        A(f"v_mov_b32 v{24+2*k}, s{STOK}")
    A(f"buffer_store_dwordx4 v[24:27], v32, {sr(SW,4)}, s{T3} offen sc1")
    A(f"buffer_store_dwordx4 v[28:31], v32, {sr(SW,4)}, s{T3} offen offset:16 sc1")
    A("s_waitcnt lgkmcnt(0)")
    for j in range(10):
        A(f"v_or_b32 v{RCB+2*j}, s{T0}, v{ES+j}")
        A(f"v_add_lshl_u32 v{ED+j}, v{ED+j}, v{RKB+j}, 3")
        A(f"ds_write_b64 v{ED+j}, {vr(RCB+2*j,2)} offset:{L_SB}")
    for k in range(5):
        A(f"ds_read_b128 {vr(60+4*k,4)}, v{VL16} offset:{L_SB + 1024*k}")
    A(f"s_mul_i32 s{T0}, s2, {CH*8}")
    A(f"s_add_u32 s{T0}, s{T0}, {hex(WS_REC)}")
    A(f"s_add_u32 s{T1}, s{T0}, 4096")
    for k in range(5):
        A(f"s_waitcnt lgkmcnt({4-k})")
        A(f"buffer_store_dwordx4 {vr(60+4*k,4)}, v{VL16}, {sr(SW,4)}, s{T0 + k//4} offen offset:{1024*(k%4)} sc1")
    A(f"ds_write_b32 v{VZ}, v33 offset:{L_TOK}")
    A("s_setprio 0")
    stamp(2)
    A("s_branch K_AUXP")
    L("K_AUX1")
    for k in range(4):
        A(f"v_xor_b32 v{51+k}, v{VG}, v{VC}")
        if k: A(f"v_xor_b32 v{51+k}, {4*k}, v{51+k}")
        A(f"v_lshlrev_b32 v{51+k}, 4, v{51+k}")
        A(f"v_lshl_add_u32 v{51+k}, v{VG}, 8, v{51+k}")
    A(f"s_sub_u32 s{T0}, s{SWV}, 1")
    A(f"s_lshl_b32 s{T0}, s{T0}, 12")
    A(f"s_lshl_b32 s{T2}, s{SN80}, 8")
    A(f"s_add_u32 s{T2}, s{T2}, s{T0}")
    A(f"s_add_u32 s{T0}, s{T0}, {L_XT}")
    A(f"s_mov_b32 m0, s{T0}")
    A("s_waitcnt lgkmcnt(0)")
    A(f"s_cmp_ge_u32 s{SWV}, 6")
    A("s_cbranch_scc1 K_NOX")
    srd(SX, PX, N * 256)
    for k in range(4):
        A(f"buffer_load_dwordx4 v{51+k}, {sr(SX,4)}, s{T2} offen offset:{1024*k} lds")
    L("K_NOX")
    if TCH:
        A(f"s_cmp_lg_u32 s{SWV}, 6")
        A("s_cbranch_scc1 K_NOTCH")
        CM("address translations of the pages that are written and read later")
        srd(SX, PWS, 0x800000)
        A(f"v_lshlrev_b32 v60, {TCH}, v1")
        A(f"buffer_load_dword v61, v60, {sr(SX,4)}, 0 offen sc1")
        srd(SX, POUT, N * D * 2)
        A(f"s_lshl_b32 s{T0}, s{SN40}, 8")
        A(f"buffer_load_dword v62, v{VZ}, {sr(SX,4)}, s{T0} offen")
        L("K_NOTCH")
    A(f"s_xor_b32 s{T0}, s{SWV}, 7")
    A(f"s_or_b32 s{T0}, s{T0}, s2")
    A("s_cbranch_scc1 K_NOTOK")
    srd(SO, PDBG, 256)
    A("s_or_b32 s26, s26, 1")
    A("v_mov_b32 v59, s26")
    A(f"buffer_store_dword v59, v2, {sr(SO,4)}, 0 offen sc1")
    L("K_NOTOK")
    A("s_barrier")
    common_setup()
    A(f"s_cmp_lt_u32 s{SWV}, 4")
    A("s_cbranch_scc1 K_NOCV")
    A("v_and_b32 v63, 3, v0")
    A("v_lshlrev_b32 v63, 2, v63")
    A("v_mov_b32 v64, 0x2031")
    A("v_bfe_u32 v65, v64, v63, 4")
    A("v_bfe_u32 v64, v0, 2, 2")
    A(f"v_lshl_add_u32 v64, v{VG}, 5, v64")
    A("v_bfe_u32 v66, v0, 6, 1")
    A("v_lshl_add_u32 v64, v66, 2, v64")
    A("v_bfe_u32 v66, v0, 7, 1")
    A("v_lshl_add_u32 v64, v66, 7, v64")
    A("v_lshl_add_u32 v65, v65, 3, v64")
    A("v_lshl_add_u32 v64, v63, 1, v64")
    A("v_lshlrev_b32 v65, 1, v65")
    A("v_lshlrev_b32 v64, 1, v64")
    A("v_and_b32 v66, 0xff, v0")
    A("v_lshlrev_b32 v67, 1, v66")
    A("v_lshlrev_b32 v66, 2, v66")
    srd(SY, PW1, 257 * 512)
    A(f"s_mov_b32 s{T0}, {256*512}")
    A(f"buffer_load_ushort v20, v65, {sr(SY,4)}, s{T0} offen")
    srd(SX, PB1, 512)
    A(f"buffer_load_ushort v21, v64, {sr(SX,4)}, 0 offen")
    srd(SX, PB2, 256)
    A(f"buffer_load_ushort v22, v67, {sr(SX,4)}, 0 offen")
    A(f"s_cmp_ge_u32 s{SWV}, 6")
    A("s_cbranch_scc1 K_CV1")
    A("s_waitcnt vmcnt(3)")
    arrive(0)
    L("K_CV1")
    A(f"s_cmp_lg_u32 s{SWV}, 7")
    A("s_cbranch_scc1 K_CV1B")
    A("s_cmp_ge_u32 s2, 64")
    A("s_cbranch_scc1 K_CV1B")
    A(f"s_bfe_u32 s{T0}, s2, 0x10002")
    A(f"s_lshl_b32 s{T0}, s{T0}, 15")
    A(f"s_and_b32 s{T1}, s2, 1")
    A(f"s_lshl_b32 s{T1}, s{T1}, 14")
    A(f"s_add_u32 s{T0}, s{T0}, s{T1}")
    A(f"s_bfe_u32 s{T1}, s2, 0x10001")
    A(f"s_lshl_b32 s{T1}, s{T1}, 10")
    A(f"s_add_u32 s{T0}, s{T0}, s{T1}")
    A(f"s_lshr_b32 s{T1}, s2, 3")
    A(f"s_lshl_b32 s{T1}, s{T1}, 5")
    A(f"s_add_u32 s{T0}, s{T0}, s{T1}")
    A(f"s_add_u32 s{T1}, s{T0}, 4096")
    A(f"v_lshrrev_b32 v24, 1, v{VG}")
    A("v_lshlrev_b32 v24, 13, v24")
    A(f"v_and_b32 v25, 1, v{VG}")
    A("v_lshl_add_u32 v24, v25, 9, v24")
    A(f"v_lshl_add_u32 v24, v{VC}, 1, v24")
    srd(SX, PW2, 256 * 256)
    for jj in range(8):
        p = PI[jj & 3]
        A(f"buffer_load_ushort v{72+jj}, v24, {sr(SX,4)}, s{T0 if p < 2 else T1} offen offset:{(p&1)*2048 + (jj>>2)*256}")
    A(f"s_lshl_b32 s{T0}, s2, 10")
    A(f"s_add_u32 s{T0}, s{T0}, {hex(WS_W2F)}")
    A("s_waitcnt vmcnt(0)")
    for k in range(4):
        A(f"v_lshl_or_b32 v{80+k}, v{73+2*k}, 16, v{72+2*k}")
    A(f"buffer_store_dwordx4 v[80:83], v{VL16}, {sr(SW,4)}, s{T0} offen sc1")
    L("K_CV1B")
    A("s_waitcnt vmcnt(0)")
    for k in range(3):
        A(f"v_lshlrev_b32 v{20+k}, 16, v{20+k}")
    A(f"v_mul_f32 v20, s{SC}, v20")
    A(f"ds_write_b32 v66, v21 offset:{L_CV+1024}")
    A(f"ds_write_b32 v66, v20 offset:{L_CV}")
    A(f"s_cmp_ge_u32 s{SWV}, 6")
    A("s_cbranch_scc1 K_CV2")
    A(f"ds_write_b32 v66, v22 offset:{L_CV+2048}")
    L("K_CV2")
    A("s_waitcnt lgkmcnt(0)")
    arrive(2)
    A(f"s_cmp_lg_u32 s{SWV}, 7")
    A("s_cbranch_scc1 K_AUXT")
    arrive(1)
    A("s_branch K_AUXT")
    L("K_NOCV")
    A("s_waitcnt vmcnt(0)")
    arrive(0)
    L("K_AUXT")
    L("K_AUXP")
    A("v_lshrrev_b32 v31, 1, v0")
    A("v_lshlrev_b32 v31, 11, v31")
    A(f"s_movk_i32 s{T3}, {2*NB}")
    A(f"v_cmp_gt_u32 {sr(SOWN,2)}, s{T3}, v0")
    A(f"v_cvt_f32_u32 v30, v1")
    A(f"v_rcp_f32 v30, v30")
    A(f"v_mov_b32 v{VP}, s{SW2}")
    A(f"v_mul_f32 v30, 0x47800000, v30")
    A(f"v_cvt_u32_f32 v30, v30")
    A(f"v_add_u32 v30, 1, v30")
    await_lds(L_TOK, 0, 33, STOK, nonzero=True, slp=4)
    A(f"s_bfe_u32 s{STAG}, s{STOK}, 0x120001")
    if PD0: A(f"s_sleep {PD0}")
    L("K_REC0")
    A(f"s_mov_b32 s{SSP}, {SPIN}")
    A(f"s_mov_b64 vcc, {sr(SOWN,2)}")
    L("K_OFS")
    A("s_mov_b64 exec, vcc")
    A(f"buffer_load_dwordx2 {vr(GRT,2)}, v31, {sr(SW,4)}, s{SB8} offen sc1")
    A("s_mov_b64 exec, -1")
    L("K_OFS1")
    A("s_waitcnt vmcnt(0)")
    A(f"v_cmp_ne_u32 vcc, s{STOK}, v{GRT}")
    A(f"s_and_b64 vcc, vcc, {sr(SOWN,2)}")
    A("s_cbranch_scc0 K_OFSOK")
    A(f"s_sub_u32 s{SSP}, s{SSP}, 1")
    A("s_cbranch_scc1 K_END")
    A(f"s_sleep {SLP_N}")
    A("s_branch K_OFS")
    L("K_OFSOK")
    stamp(5)
    A(f"v_lshrrev_b32 v{GRT}, 16, v{GRT+1}")
    A(f"v_and_b32 v{GRT+1}, 0xffff, v{GRT+1}")
    A(f"v_cndmask_b32 v{GRT}, 0, v{GRT}, {sr(SOWN,2)}")
    A("v_lshrrev_b32 v32, 1, v0")
    A(f"s_movk_i32 s{T0}, {CH}")
    A(f"v_mad_u32_u24 v{GRT+1}, v32, s{T0}, v{GRT+1}")
    A("v_and_b32 v32, 1, v0")
    A("v_lshlrev_b32 v32, 1, v32")
    A(f"v_add_lshl_u32 v{PZ+1}, v{GRT+1}, v32, 3")
    A(f"v_sub_i32 v{PZ}, v{GRT}, v32")
    A(f"v_mov_b32 v{VDEG}, 0")
    A(f"v_mov_b32 v{OUTA}, 0")
    L("K_RECS")
    A(f"s_mov_b32 s{T0}, {hex(WS_REC)}")
    for k in range(8):
        A(f"v_cmp_lt_i32 {sr(MK[k],2)}, {4*(k>>1) + (k&1)}, v{PZ}")
    A(f"v_cmp_lt_i32 vcc, 16, v{PZ}")
    A("v_mov_b32 v88, 4")
    A("v_mov_b32 v89, 0")
    A("v_mov_b32 v90, 1")
    A("s_cbranch_vccz K_RM")
    A(f"ds_write_b32 v89, v90 offset:{L_FLAG}")
    L("K_RM")
    A(f"s_mov_b32 s{SSP}, {SPIN}")
    L("K_RLD")
    for k in range(4):
        A(f"s_mov_b64 exec, {sr(MK[2*k],2)}")
        A("s_cbranch_execz K_RL")
        A(f"buffer_load_dwordx4 {vr(RC+4*k,4)}, v{PZ+1}, {sr(SW,4)}, s{T0} offen offset:{32*k} sc1")
    L("K_RL")
    A("s_mov_b64 exec, -1")
    L("K_NOU")
    A(f"s_mov_b64 {sr(TP,2)}, 0")
    A("s_waitcnt vmcnt(0)")
    for k in range(8):
        A(f"s_mov_b64 exec, {sr(MK[k],2)}")
        A("s_cbranch_execz K_RV")
        A(f"v_lshrrev_b32 v91, 14, v{RC+2*k}")
        A(f"v_cmp_ne_u32 vcc, s{STAG}, v91")
        A(f"s_or_b64 {sr(TP,2)}, {sr(TP,2)}, vcc")
    L("K_RV")
    A("s_mov_b64 exec, -1")
    A(f"s_cmp_eq_u64 {sr(TP,2)}, 0")
    A("s_cbranch_scc1 K_RVOK")
    A(f"s_sub_u32 s{SSP}, s{SSP}, 1")
    A("s_cbranch_scc1 K_END")
    A(f"s_sleep {SLP_N}")
    A("s_branch K_RLD")
    L("K_RVOK")
    stamp(6)
    NL, RK, PS = 64, 72, 80
    A(f"s_mov_b32 s{T1}, {hex(FBASE)}")
    for k in range(8):
        A(f"s_mov_b64 exec, {sr(MK[k],2)}")
        A("s_cbranch_execz K_R1")
        A(f"v_and_b32 v{NL+k}, 0xfc, v{RC+2*k+1}")
        A(f"ds_add_rtn_u32 v{RK+k}, v{NL+k}, v88")
        A(f"v_and_b32 v{RC+2*k}, 0x3fff, v{RC+2*k}")
        A(f"v_lshl_or_b32 v{RC+2*k}, v{RC+2*k}, 9, s{T1}")
    L("K_R1")
    A("s_mov_b64 exec, 1")
    A("s_waitcnt lgkmcnt(0)")
    A(f"ds_add_u32 v89, v90 offset:{L_GC+16}")
    A("s_mov_b64 exec, -1")
    A(f"v_mov_b32 v{VZ}, 0")
    await_lds(L_GC + 16, 8, 91, T0)
    stamp(7)
    def scan_and_decide(tag, with_perm):
        A(f"ds_read_b32 v{VCNT}, v2")
        A(f"ds_read_b32 v91, v89 offset:{L_FLAG}")
        A("s_waitcnt lgkmcnt(1)")
        A(f"v_add_u32_dpp v{VEND}, v{VCNT}, v{VCNT} row_shr:1 row_mask:0xf bank_mask:0xf bound_ctrl:0")
        A(f"v_add_u32 v{VDEG}, v{VDEG}, v{VCNT}")
        for k, ctl in enumerate(SCAN):
            A("s_nop 0" if k == 0 else "s_nop 1")
            A(f"v_add_u32_dpp v{VEND}, v{VEND}, v{VEND} {ctl}")
        A(f"v_sub_u32 v{VB4}, v{VEND}, v{VCNT}")
        A("s_waitcnt lgkmcnt(0)")
        A(f"v_readlane_b32 s{STOT}, v{VEND}, 63")
        if with_perm:
            for k in range(8):
                A(f"s_cmp_eq_u64 {sr(MK[k],2)}, 0")
                A(f"s_cbranch_scc1 K_R2{tag}")
                A(f"ds_bpermute_b32 v{PS+k}, v{NL+k}, v{VB4}")
            L(f"K_R2{tag}")
        A(f"v_readfirstlane_b32 s{SLP}, v91")
        A(f"s_add_u32 s{T1}, s{STOT}, 60")
        A(f"s_lshr_b32 s{SLEN}, s{T1}, 6")
        A(f"s_lshl_b32 s{T1}, s{SLEN}, 2")
        A(f"s_add_u32 s{T2}, s{T1}, 4")
        A(f"v_cmp_lt_u32 vcc, s{T2}, v{VCNT}")
        A(f"s_and_b32 s{T3}, s{SLEN}, 63")
        if with_perm:
            A(f"v_readlane_b32 s{T0}, v30, s{T3}")
        A(f"s_andn2_b32 s{SFAST}, s{SFIRST}, s{SMODE}")
        A(f"s_andn2_b32 s{SFAST}, s{SFAST}, s{SLP}")
        A(f"s_cmp_gt_u32 s{STOT}, {4*WIN}")
        A(f"s_cselect_b32 s{SFAST}, 0, s{SFAST}")
        A(f"s_sub_u32 s{T1}, {PRIV_B}, s{T1}")
        A("s_cmp_lg_u64 vcc, 0")
        A(f"s_cselect_b32 s{SFAST}, 0, s{SFAST}")
    scan_and_decide("a", True)
    A(f"v_mov_b32 v92, s{SFAST}")
    A(f"ds_write_b32 v89, v92 offset:{L_FLAG+12}")
    A(f"s_cmp_eq_u32 s{SFAST}, 0")
    A("s_waitcnt lgkmcnt(0)")
    A("s_cbranch_scc1 K_WL")
    for k in range(8):
        A(f"s_mov_b64 exec, {sr(MK[k],2)}")
        A("s_cbranch_execz K_WB")
        A(f"v_add_u32 v{PS+k}, v{PS+k}, v{RK+k}")
        A(f"v_mul_u32_u24 v{RK+k}, s{T0}, v{PS+k}")
        A(f"v_lshrrev_b32 v{RK+k}, 18, v{RK+k}")
        A(f"v_mad_u32_u24 v{PS+k}, v{RK+k}, s{T1}, v{PS+k}")
        A(f"ds_write_b32 v{PS+k}, v{RC+2*k} offset:{L_PRIV}")
        A(f"ds_write_b32 v{PS+k}, v{RC+2*k+1} offset:{L_PRIV + PRIV_N*4}")
    L("K_WB")
    A("s_mov_b64 exec, 1")
    A(f"ds_add_u32 v89, v90 offset:{L_GC+20}")
    A("s_mov_b64 exec, -1")
    L("K_B3")
    A(f"s_mov_b32 s{SW2}, 1")
    A("v_mov_b32 v89, 0")
    A("s_waitcnt vmcnt(0) lgkmcnt(0)")
    A("s_barrier")
    stamp(8)
    def row_load(d, p, pair=False):
        if not pair:
            A(f"v_add_u32 v{p}, v{p}, v2")
        A(f"buffer_load_dword v{d}, v{p}, {sr(ST,4)}, 0 offen sc1")
        A(f"buffer_load_dword v{d+1}, v{p}, {sr(ST,4)}, 0 offen offset:256 sc1")
    TI = 16
    A(f"ds_read_b32 v92, v89 offset:{L_FLAG+12}")
    for k in range(R // 4):
        A(f"ds_read_b128 {vr(TI+4*k,4)}, v{VP} offset:{16*k}")
    A(f"ds_read_b128 {vr(W,4)}, v{VL16} offset:{L_CV}")
    A("s_waitcnt lgkmcnt(2)")
    A(f"v_readfirstlane_b32 s{T0}, v92")
    A(f"s_cmp_eq_u32 s{T0}, 0")
    A("s_cbranch_scc1 K_R3")
    for k in range(F1):
        if k == 4: A("s_waitcnt lgkmcnt(1)")
        row_load(DAT + 2*k, TI + k)
    L("K_R3")
    A(f"s_cmp_lt_u32 s{SWV}, 8")
    A("s_cbranch_scc1 K_R4")
    scan_and_decide("g", False)
    L("K_R4")
    A(f"s_cmp_eq_u32 s{SFAST}, 0")
    A("s_cbranch_scc1 K_SLOW")
    A(f"v_add_u32 v{Q+3}, v{VP}, v2")
    A(f"ds_read_b32 v{Q}, v{Q+3} offset:{PRIV_N*4}")
    for k in range(R // 4):
        A(f"ds_read_b128 {vr(EV+4*k,4)}, v{VP} offset:{PRIV_N*4 + 16*k}")
    A(f"ds_read_b128 {vr(OG[0],4)}, v{VP} offset:{R*4}")
    A(f"s_mul_i32 s{T0}, s{SLEN}, s{SWV}")
    A(f"s_add_u32 s{T3}, s{T0}, s{SLEN}")
    A(f"s_lshl_b32 s{T0}, s{T0}, 2")
    A(f"s_lshl_b32 s{T3}, s{T3}, 2")
    A(f"s_min_u32 s{T0}, s{T0}, s{STOT}")
    A(f"s_min_u32 s{T3}, s{T3}, s{STOT}")
    A(f"s_sub_u32 s{SNN}, s{T3}, s{T0}")
    A(f"s_lshr_b32 s{SNN}, s{SNN}, 2")
    A(f"v_cmp_gt_u32 vcc, s{T0}, v{VB4}")
    A(f"v_cmp_lt_u32 {sr(TP,2)}, s{T0}, v{VEND}")
    A(f"s_and_b64 vcc, vcc, {sr(TP,2)}")
    A(f"s_cselect_b32 s{SLP}, 1, 0")
    A(f"v_cmp_gt_u32 vcc, s{T3}, v{VB4}")
    A(f"v_cmp_lt_u32 {sr(TP,2)}, s{T3}, v{VEND}")
    A(f"s_and_b64 vcc, vcc, {sr(TP,2)}")
    A(f"s_cselect_b32 s{STAIL}, 1, 0")
    A(f"v_cmp_le_u32 vcc, s{SNN}, v1")
    A(f"s_movk_i32 s{T2}, {QROW//4}")
    A(f"s_movk_i32 s{T3}, {HROW//4}")
    A(f"s_mov_b32 s{SREM}, s{SNN}")
    A("s_waitcnt lgkmcnt(0)")
    A(f"v_and_b32 v{Z2}, 0xfc, v{EV}")
    A(f"v_and_b32 v{Q+1}, 0xfc, v{Q}")
    A(f"v_mad_u32_u24 v{Z2+1}, v{Z2}, s{T2}, v{VQ16}")
    A("s_setprio 3")
    A(f"v_mov_b32_dpp v{Q+2}, v{Q+1} wave_shr:1 row_mask:0xf bank_mask:0xf")
    A(f"v_cmp_ne_u32 {sr(SM,2)}, v{Q+1}, v{Q+2}")
    A(f"ds_read_b128 {vr(Q,4)}, v{Z2+1}")
    A(f"s_or_b64 {sr(SM,2)}, {sr(SM,2)}, vcc")
    for k in range(4):
        A(f"v_add_u32 v{OG[0]+k}, v{OG[0]+k}, v2")
    def tail_prep():
        A(f"v_lshlrev_b32 v{Z+1}, 2, v{VC}")
        A(f"v_lshlrev_b32 v{Z+2}, 4, v{VG}")
        for mt in range(3):
            A(f"v_add_u32 v{T+3}, {64*mt}, v{Z+1}")
            A(f"ds_bpermute_b32 v{T+mt}, v{T+3}, v{VDEG}")
        A(f"s_lshl_b32 s{T0}, s{SWV}, 6")
        A(f"v_add_u32 v{Z+3}, s{T0}, v{Z+2}")
        A(f"ds_read_b128 {vr(B2F,4)}, v{Z+3} offset:{L_CV+2048}")
        A(f"s_movk_i32 s{T1}, {HROW}")
        A(f"v_mad_u32_u24 v{AD}, v{VC}, s{T1}, v{Z+2}")
        A(f"v_lshlrev_b32 v{OUTA}, 8, v{VC}")
        A(f"v_lshl_add_u32 v{OUTA}, v{VG}, 3, v{OUTA}")
        A(f"v_add_u32 v{Z+2}, {L_ZROW}, v{Z+2}")
        A(f"v_add_u32 v{AD+2}, {L_H + 32*HROW}, v{AD}")
        A(f"v_add_u32 v{AD+1}, {L_H + 16*HROW}, v{AD}")
        A(f"v_add_u32 v{AD}, {L_H}, v{AD}")
        A("s_waitcnt lgkmcnt(0)")
        for mt in range(3):
            A(f"v_cmp_eq_u32 vcc, 0, v{T+mt}")
            A(f"v_cvt_f32_u32 v{T+mt}, v{T+mt}")
            A(f"v_mul_f32 v{T+mt}, 0x3e800000, v{T+mt}")
            A(f"v_cndmask_b32 v{AD+mt}, v{AD+mt}, v{Z+2}, vcc")
            sel = "op_sel_hi:[1,0]" if mt % 2 == 0 else "op_sel:[0,1]"
            A(f"v_pk_mul_f32 {vr(OV+4*mt,2)}, {vr(B2F,2)}, {vr(T+(mt&2),2)} {sel}")
            A(f"v_pk_mul_f32 {vr(OV+4*mt+2,2)}, {vr(B2F+2,2)}, {vr(T+(mt&2),2)} {sel}")
    def w2_load():
        A(f"s_mov_b32 s{SW2}, 0")
        A(f"s_lshl_b32 s{T0}, s{SWV}, 13")
        A(f"s_add_u32 s{T0}, s{T0}, {hex(WS_W2F)}")
        A(f"s_add_u32 s{T1}, s{T0}, 4096")
        for k in range(8):
            A(f"buffer_load_dwordx4 {vr(W2R+4*k,4)}, v{VL16}, {sr(SW,4)}, s{T0 + k//4} offen offset:{(k%4)*1024} sc1")
    A(f"s_cmp_ge_u32 s{SWV}, 8")
    A("s_cbranch_scc1 K_NOTP")
    tail_prep()
    L("K_NOTP")
    for k in range(F1, R):
        row_load(DAT + 2*k, TI + k)
    A(f"v_mov_b32 v{LO}, v{Z2}")
    A(f"v_mov_b32 v{PZ}, 0")
    A(f"v_mov_b32 v{PZ+1}, 0")
    VW = 2 * (R - 1)
    if STAMP:
        A(f"s_waitcnt vmcnt({VW})")
        stamp(9)
    A(f"s_cmp_eq_u32 s{SNN}, 0")
    A("s_cbranch_scc1 K_WDONE")
    A("s_branch K_HC0")

    def e_sel(s):
        base = EV + (s & ~1)
        return (vr(base, 2), "op_sel_hi:[1,0,1]") if s % 2 == 0 else (vr(base, 2), "op_sel:[0,1,0]")
    def part_z1(s, z):
        ep, es = e_sel(s)
        return [f"v_pk_fma_f32 {vr(z,2)}, {vr(W,2)}, {ep}, {vr(Q,2)} {es}",
                f"v_pk_fma_f32 {vr(z+2,2)}, {vr(W+2,2)}, {ep}, {vr(Q+2,2)} {es}"]
    def part_z2(s, z, zo=None, lo=LO):
        d = DAT + 2*s
        zo = z if zo is None else zo
        return [f"v_lshlrev_b64 {vr(lo,2)}, 16, {vr(d,2)}",
                f"v_pk_fma_f32 {vr(zo,2)}, {vr(d,2)}, {C2}, {vr(z,2)}",
                f"v_pk_fma_f32 {vr(zo+2,2)}, {vr(lo,2)}, {C2}, {vr(z+2,2)}"]
    def part_exp(z): return [f"v_exp_f32 v{T+k}, v{z+k}" for k in range(4)]
    def part_nd(z):
        return [f"v_pk_fma_f32 {vr(NN,2)}, {vr(NN,2)}, {vr(T,2)}, {vr(NN,2)}",
                f"v_pk_fma_f32 {vr(NN+2,2)}, {vr(NN+2,2)}, {vr(T+2,2)}, {vr(NN+2,2)}",
                f"v_pk_fma_f32 {vr(NN,2)}, {vr(z,2)}, {vr(DD,2)}, {vr(NN,2)}",
                f"v_pk_fma_f32 {vr(NN+2,2)}, {vr(z+2,2)}, {vr(DD+2,2)}, {vr(NN+2,2)}",
                f"v_pk_fma_f32 {vr(DD,2)}, {vr(DD,2)}, {vr(T,2)}, {vr(DD,2)}",
                f"v_pk_fma_f32 {vr(DD+2,2)}, {vr(DD+2,2)}, {vr(T+2,2)}, {vr(DD+2,2)}"]
    def addr_prep(k):
        A("s_waitcnt lgkmcnt(0)")
        A(f"v_pk_add_f32 {vr(OG[k],2)}, {vr(OG[k],2)}, v[2:3] op_sel:[0,1]")
        A(f"v_pk_add_f32 {vr(OG[k]+2,2)}, {vr(OG[k]+2,2)}, v[2:3] op_sel:[0,1]")
    def refill(s):
        og = OG[(s // 4) % 2]
        if s % 4 == 0:
            A(f"ds_read_b128 {vr(OG[(s//4+1)%2],4)}, v{VP} offset:{(R+s+4)*4}")
        row_load(DAT + 2*s, og + s % 4, pair=True)
        if s % 4 == 3:
            addr_prep((s // 4 + 1) % 2)
            A(f"ds_read_b128 {vr(EV+s-3,4)}, v{VP} offset:{PRIV_N*4 + (R+s-3)*4}")
    L("K_LOOP")
    for g in range(R // 4):
        L(f"K_G{g}")
        A(f"s_and_b32 s{T0}, s{SM}, {hex(0xF << (4*g))}")
        A(f"s_cbranch_scc1 K_S{4*g}")
        zz = [Z, Z2]
        s0 = 4*g
        for x in part_z1(s0, zz[0]): A(x)
        A(f"s_waitcnt vmcnt({VW})")
        for x in part_z2(s0, zz[0]): A(x)
        refill(s0)
        for k in range(4):
            s = s0 + k
            z, zn = zz[k % 2], zz[(k + 1) % 2]
            ex, nd = part_exp(z), part_nd(z)
            if k < 3:
                a, b = part_z1(s + 1, zn), part_z2(s + 1, zn)
                A(ex[0]); A(a[0]); A(ex[1]); A(a[1]); A(ex[2])
                A(f"s_waitcnt vmcnt({VW})")
                A(b[0]); A(ex[3]); A(nd[0]); A(b[1]); A(nd[1]); A(nd[2]); A(b[2]); A(nd[3])
                refill(s + 1)
                A(nd[4]); A(nd[5])
            else:
                for x in ex + nd: A(x)
    L("K_PEND")
    A(f"v_add_u32 v{VP}, {R*4}, v{VP}")
    A(f"s_lshr_b64 {sr(SM,2)}, {sr(SM,2)}, {R}")
    A(f"s_sub_u32 s{SREM}, s{SREM}, {R}")
    for thr, p in PRIO_T:
        A(f"s_cmp_gt_u32 s{SREM}, {thr}")
        A("s_cbranch_scc1 K_LOOP")
        A(f"s_setprio {p}")
    A(f"s_cmp_ge_u32 s{SWV}, 8")
    A("s_cbranch_scc1 K_LOOP")
    A(f"s_cmp_eq_u32 s{SW2}, 0")
    A("s_cbranch_scc1 K_LOOP")
    w2_load()
    A("s_branch K_LOOP")
    for s in range(R):
        L(f"K_S{s}")
        A(f"s_bitcmp1_b32 s{SM}, {s}")
        A(f"s_cbranch_scc1 K_H{s}")
        for x in part_z1(s, Z): A(x)
        A(f"s_waitcnt vmcnt({VW})")
        for x in part_z2(s, Z) + part_exp(Z) + part_nd(Z): A(x)
        L(f"K_J{s}")
        refill(s)
        if s % 4 == 3:
            A(f"s_branch K_G{s//4+1}" if s + 1 < R else "s_branch K_PEND")
    def fold():
        for k in range(4):
            A(f"v_rcp_f32 v{T+k}, v{DD+k}")
        A(f"v_pk_fma_f32 {vr(PZ,2)}, {vr(DD,2)}, {vr(NN,2)}, {vr(PZ,2)}")
        A(f"v_pk_fma_f32 {vr(PZ,2)}, {vr(DD+2,2)}, {vr(NN+2,2)}, {vr(PZ,2)}")
        A(f"v_pk_mul_f32 {vr(Z,2)}, {vr(NN,2)}, {vr(T,2)}")
        A(f"v_pk_mul_f32 {vr(Z+2,2)}, {vr(NN+2,2)}, {vr(T+2,2)}")
    def lead_flush():
        A(f"v_add_u32 v{Z2}, s{SSIDE}, v{VL16}")
        A(f"s_lshl_b32 s{T0}, s{SWV}, 2")
        A(f"v_mov_b32 v{Z2+1}, s{T0}")
        A(f"v_mov_b32 v{Z2+2}, 1")
        A(f"ds_write_b128 v{Z2}, {vr(Z,4)}")
        A(f"ds_write_b32 v{Z2+1}, v{Z2+2} offset:{L_SFL}")
        A(f"s_mov_b32 s{SLP}, 0")
    for s in range(R):
        L(f"K_H{s}")
        A(f"s_cmp_eq_u32 s{SREM}, {s}")
        A("s_cbranch_scc1 K_LAST")
        A(f"v_and_b32 v{LO}, 0xfc, v{EV+s}")
        A(f"v_mad_u32_u24 v{LO+1}, v{LO}, s{T2}, v{VQ16}")
        A(f"ds_read_b128 {vr(Q,4)}, v{LO+1}")
        fold()
        A(f"s_cmp_lg_u32 s{SLP}, 0")
        A(f"s_cbranch_scc1 K_LS{s}")
        A(f"v_cvt_pk_bf16_f32 v{Z}, v{Z}, v{Z+1}")
        A(f"v_cvt_pk_bf16_f32 v{Z+1}, v{Z+2}, v{Z+3}")
        A(f"ds_write_b64 v{VA}, {vr(Z,2)}")
        L(f"K_HC{s}")
        A(f"v_mad_u32_u24 v{VA}, v{LO}, s{T3}, v{VH8}")
        A(f"s_waitcnt vmcnt({VW}) lgkmcnt(0)")
        for x in part_z1(s, Z) + part_z2(s, Z, NN) + part_exp(NN): A(x)
        A(f"v_pk_add_f32 {vr(DD,2)}, {vr(T,2)}, 1.0 op_sel_hi:[1,0]")
        A(f"v_pk_add_f32 {vr(DD+2,2)}, {vr(T+2,2)}, 1.0 op_sel_hi:[1,0]")
        A(f"s_branch K_J{s}")
        L(f"K_LS{s}")
        lead_flush()
        A(f"s_branch K_HC{s}")
    L("K_LAST")
    A(f"s_lshl_b32 s{T0}, s{SWV}, 2")
    A(f"v_mov_b32 v{LO}, s{T0}")
    A(f"v_add_u32 v{LO+1}, s{SSIDE}, v{VL16}")
    A(f"ds_read_b32 v{Z2}, v{LO} offset:{L_SFL+4}")
    A(f"ds_read_b128 {vr(Q,4)}, v{LO+1} offset:1024")
    fold()
    A(f"s_cmp_eq_u32 s{SLP}, 0")
    A("s_cbranch_scc1 K_L1")
    A("s_waitcnt lgkmcnt(0)")
    lead_flush()
    A("s_branch K_WDONE")
    L("K_L1")
    A(f"s_cmp_eq_u32 s{STAIL}, 0")
    A("s_cbranch_scc1 K_L3")
    A(f"s_mov_b32 s{SSP}, {SPIN}")
    L("K_L2")
    A("s_waitcnt lgkmcnt(0)")
    A(f"v_readfirstlane_b32 s{T0}, v{Z2}")
    A(f"s_cmp_lg_u32 s{T0}, 0")
    A("s_cbranch_scc1 K_L2B")
    A(f"s_sub_u32 s{SSP}, s{SSP}, 1")
    A("s_cbranch_scc1 K_L2B")
    A("s_sleep 2")
    A(f"ds_read_b32 v{Z2}, v{LO} offset:{L_SFL+4}")
    A(f"ds_read_b128 {vr(Q,4)}, v{LO+1} offset:1024")
    A("s_branch K_L2")
    L("K_L2B")
    A(f"v_pk_add_f32 {vr(Z,2)}, {vr(Z,2)}, {vr(Q,2)}")
    A(f"v_pk_add_f32 {vr(Z+2,2)}, {vr(Z+2,2)}, {vr(Q+2,2)}")
    L("K_L3")
    A(f"v_cvt_pk_bf16_f32 v{Z}, v{Z}, v{Z+1}")
    A(f"v_cvt_pk_bf16_f32 v{Z+1}, v{Z+2}, v{Z+3}")
    A(f"ds_write_b64 v{VA}, {vr(Z,2)}")
    L("K_WDONE")
    stamp(10)
    A(f"v_add_f32 v{T}, v{PZ}, v{PZ+1}")
    A(f"v_mov_b32 v{Z2+1}, 0x207")
    A(f"v_cmp_class_f32 vcc, v{T}, v{Z2+1}")
    A(f"v_mov_b32 v{Z2+2}, 0")
    A(f"s_mov_b32 s{TP}, {hex(C_NLN2)}")
    A(f"s_xor_b32 s{T0}, s{SWV}, 15")
    A(f"s_or_b32 s{T0}, s{T0}, s2")
    A("s_cbranch_scc1 K_NOCLR")
    srd(SO, PDBG, 256)
    A(f"buffer_store_dword v{Z2+2}, v2, {sr(SO,4)}, 0 offen sc1")
    L("K_NOCLR")
    srd(SO, POUT, N * D * 2)
    A("s_cbranch_vccz K_NOG")
    A(f"ds_write_b32 v{Z2+2}, v{Z2+1} offset:{L_FLAG+8}")
    L("K_NOG")
    A(f"s_cmp_ge_u32 s{SWV}, 8")
    A("s_cbranch_scc1 K_B4")
    A(f"s_cmp_eq_u32 s{SW2}, 0")
    A("s_cbranch_scc1 K_B4")
    w2_load()
    L("K_B4")
    A("s_waitcnt vmcnt(0) lgkmcnt(0)")
    A("s_barrier")
    stamp(11)
    A(f"ds_read_b32 v{Z2+3}, v{Z2+2} offset:{L_FLAG+8}")
    A(f"s_cmp_ge_u32 s{SWV}, 8")
    A("s_cbranch_scc1 K_CHK")
    HB = [48 + 4*k for k in range(8)]
    ACC = [12, 16, 20]
    seq = [(mt, s) for mt in range(3) for s in range(8)]
    PRE = 7
    for k in range(PRE):
        mt, s = seq[k]
        A(f"ds_read_b128 {vr(HB[k%8],4)}, v{AD+mt} offset:{s*64}")
    def epi(mt):
        for r in range(4):
            A(f"v_fma_f32 v{OV+4*mt+r}, v{ACC[mt]+r}, s{TP}, v{OV+4*mt+r}")
        A(f"v_cvt_pk_bf16_f32 v{32+2*mt}, v{OV+4*mt}, v{OV+4*mt+1}")
        A(f"v_cvt_pk_bf16_f32 v{33+2*mt}, v{OV+4*mt+2}, v{OV+4*mt+3}")
    for k, (mt, s) in enumerate(seq):
        if k + PRE < 24:
            m2, s2 = seq[k+PRE]
            A(f"ds_read_b128 {vr(HB[(k+PRE)%8],4)}, v{AD+m2} offset:{s2*64}")
        A(f"s_waitcnt lgkmcnt({min(PRE, 23-k)})")
        c = "0" if s == 0 else vr(ACC[mt], 4)
        A(f"v_mfma_f32_16x16x32_bf16 {vr(ACC[mt],4)}, {vr(W2R+4*s,4)}, {vr(HB[k%8],4)}, {c}")
        if s == 4 and mt > 0:
            epi(mt - 1)
    A("s_nop 7")
    epi(2)
    L("K_CHK")
    A("s_waitcnt lgkmcnt(0)")
    A(f"v_readfirstlane_b32 s{T2}, v{Z2+3}")
    A(f"s_lshl_b32 s{T1}, s{SMODE}, 31")
    A(f"s_or_b32 s{T2}, s{T2}, s{T1}")
    A(f"s_cmp_gt_i32 s{T2}, 0")
    A("s_cbranch_scc1 K_REDO")
    A(f"s_cmp_ge_u32 s{SWV}, 8")
    A("s_cbranch_scc1 K_END2")
    A(f"s_add_u32 s{T2}, s{SOUT}, 4096")
    A(f"s_add_u32 s{T1}, s{SOUT}, 8192")
    A(f"buffer_store_dwordx2 v[32:33], v{OUTA}, {sr(SO,4)}, s{SOUT} offen")
    A(f"buffer_store_dwordx2 v[34:35], v{OUTA}, {sr(SO,4)}, s{T2} offen")
    A(f"s_mov_b64 exec, {sr(SQM,2)}")
    A(f"buffer_store_dwordx2 v[36:37], v{OUTA}, {sr(SO,4)}, s{T1} offen")
    A("s_mov_b64 exec, -1")
    L("K_END2")
    if STAMP:
        stamp(12)
        A("s_waitcnt vmcnt(0)")
        stamp(13)
        A(f"v_writelane_b32 v{VST}, s26, 14")
        A(f"s_lshl_b32 s{T0}, s2, 4")
        A(f"s_add_u32 s{T0}, s{T0}, s{SWV}")
        A(f"s_lshl_b32 s{T0}, s{T0}, 8")
        A(f"s_add_u32 s{T0}, s{T0}, {hex(WS_DBG)}")
        A(f"buffer_store_dword v{VST}, v2, {sr(SW,4)}, s{T0} offen")
    L("K_END")
    A("s_endpgm")

    L("K_WL")
    for k in range(8):
        A(f"s_mov_b64 exec, {sr(MK[k],2)}")
        A("s_cbranch_execz K_WB")
        A(f"v_add_lshl_u32 v{PS+k}, v{PS+k}, v{RK+k}, 1")
        A(f"ds_write_b64 v{PS+k}, {vr(RC+2*k,2)} offset:{L_LIST}")
    A("s_branch K_WB")
    L("K_REDO")
    A(f"s_mov_b32 s{SMODE}, 1")
    A("s_setprio 0")
    A(f"v_and_b32 v{VC}, 15, v1")
    A(f"v_lshrrev_b32 v{VG}, 4, v1")
    A(f"v_mov_b32 v{VDEG}, 0")
    A(f"v_mov_b32 v{PZ}, 0")
    A(f"s_mov_b32 s{SFIRST}, 1")
    A("v_lshrrev_b32 v31, 1, v0")
    A("v_lshlrev_b32 v31, 11, v31")
    def reset_round():
        A("s_barrier")
        A(f"s_cmp_lg_u32 s{SWV}, 0")
        uid[0] += 1
        A(f"s_cbranch_scc1 K_RR{uid[0]}")
        A("v_mov_b32 v89, 0")
        A("ds_write_b32 v2, v89")
        A(f"ds_write_b32 v89, v89 offset:{L_FLAG}")
        A(f"ds_write_b32 v89, v89 offset:{L_GC+16}")
        A("s_waitcnt lgkmcnt(0)")
        L(f"K_RR{uid[0]}")
        A("s_barrier")
    reset_round()
    A(f"s_cmp_ge_u32 s{SWV}, 8")
    A("s_cbranch_scc1 K_B3")
    A("s_branch K_REC0")
    L("K_SLOW")
    A(f"s_cmp_eq_u32 s{SFIRST}, 0")
    A("s_cbranch_scc1 K_SL0")
    for k in range(12):
        A(f"v_mov_b32 v{SACC+k}, 0")
    L("K_SL0")
    for i in range(3):
        A(f"s_add_u32 s{T0}, s{SWV}, {16*i}")
        A(f"v_readlane_b32 s{T1}, v{VB4}, s{T0}")
        A(f"v_readlane_b32 s{T2}, v{VCNT}, s{T0}")
        A(f"s_mul_i32 s{T3}, s{T0}, {QROW}")
        A(f"s_cmp_eq_u32 s{T2}, 0")
        A(f"s_cbranch_scc1 K_SLN{i}")
        A(f"v_add_u32 v{Z2}, s{T3}, v{VQ16}")
        A(f"ds_read_b128 {vr(Q,4)}, v{Z2}")
        A(f"s_lshl_b32 s{T1}, s{T1}, 1")
        A(f"v_mov_b32 v{VA}, s{T1}")
        L(f"K_SLL{i}")
        A(f"ds_read_b64 {vr(EV,2)}, v{VA} offset:{L_LIST}")
        A(f"v_add_u32 v{VA}, 8, v{VA}")
        A("s_waitcnt lgkmcnt(0)")
        row_load(DAT + 2, EV)
        for x in part_z1(1, Z): A(x)
        A("s_waitcnt vmcnt(0)")
        for x in part_z2(1, Z, lo=NN) + part_exp(Z): A(x)
        A("s_nop 0")
        for k in range(4):
            A(f"v_add_f32 v{T+k}, 1.0, v{T+k}")
        for k in range(4):
            A(f"v_rcp_f32 v{T+k}, v{T+k}")
        A(f"s_sub_u32 s{T2}, s{T2}, 4")
        for k in range(4):
            A(f"v_fmac_f32 v{SACC+4*i+k}, v{Z+k}, v{T+k}")
        A(f"s_cmp_lg_u32 s{T2}, 0")
        A(f"s_cbranch_scc1 K_SLL{i}")
        L(f"K_SLN{i}")
    A(f"s_mov_b32 s{SFIRST}, 0")
    A("s_waitcnt lgkmcnt(0)")
    reset_round()
    A(f"s_cmp_eq_u32 s{SLP}, 0")
    A("s_cbranch_scc1 K_SLFIN")
    A(f"s_cmp_ge_u32 s{SWV}, 8")
    A("s_cbranch_scc1 K_B3")
    A(f"v_add_u32 v{PZ}, -16, v{PZ}")
    A(f"v_add_u32 v{PZ+1}, 128, v{PZ+1}")
    A("s_branch K_RECS")
    L("K_SLFIN")
    A(f"v_mov_b32 v{PZ}, 0")
    A(f"v_mov_b32 v{PZ+1}, 0")
    for i in range(3):
        if i == 2:
            A(f"s_cmp_ge_u32 s{SWV}, {NPB-32}")
            A("s_cbranch_scc1 K_WDONE")
        A(f"s_add_u32 s{T0}, s{SWV}, {16*i}")
        A(f"s_mul_i32 s{T0}, s{T0}, {HROW}")
        A(f"v_add_u32 v{Z2}, s{T0}, v{VH8}")
        A(f"v_cvt_pk_bf16_f32 v{Z}, v{SACC+4*i}, v{SACC+4*i+1}")
        A(f"v_cvt_pk_bf16_f32 v{Z+1}, v{SACC+4*i+2}, v{SACC+4*i+3}")
        A(f"ds_write_b64 v{Z2}, {vr(Z,2)}")
    tail_prep()
    A("s_branch K_WDONE")
    L("K_CODE_END")

hdr = f"""; Kernarg layout for this problem (88 bytes, ptrs only, base s[0:1]):
; @launch grid=({NB},1,1) block=(1024,1,1) lds={LDS}
.amdgcn_target "amdgcn-amd-amdhsa--gfx950"
"""
gen()
vg = 128
out.extend(['.section .rodata,"a"', ".p2align 6", f".amdhsa_kernel {KN}",
    f"  .amdhsa_next_free_vgpr {vg}", f"  .amdhsa_next_free_sgpr 102", f"  .amdhsa_accum_offset {vg}",
    "  .amdhsa_group_segment_fixed_size 0", "  .amdhsa_kernarg_size 88", "  .amdhsa_user_sgpr_count 2",
    "  .amdhsa_user_sgpr_kernarg_segment_ptr 1", "  .amdhsa_system_sgpr_workgroup_id_x 1", ".end_amdhsa_kernel"])
txt = hdr + "\n".join(out) + "\n"
dst = sys.argv[1] if len(sys.argv) > 1 else f"fused.s"
open(dst, "w").write(txt)
print("wrote", dst, "LDS", LDS)
```

```python
import sys, struct, os

NAME = "standalone__edge_featured_mpnn_mpnn__graph"
KN = NAME + "_kernel"
N, E, D, H = 10000, 160000, 128, 256
NB, NPB, CH = 250, 40, 640
WS_REC = 0x500000
WS_OFS = 0x680000
WS_PF = 0x700000
WS_W2F = 0x710000
WS_DBG = 0x2000000
WS_BYTES = 0x10000000
R = 8
PRIO_T = eval(os.environ.get("PRIO_T", "((32, 2), (21, 1), (10, 0))"))
STAMP = os.environ.get("STAMP", "0") == "1"
PI = [1, 3, 0, 2]
FBASE = 0x4B000000
SPIN = 1 << 16
PSF = os.environ.get('PSF', 'sc1')
WIL = int(os.environ.get('WIL', '0'))
WST = int(os.environ.get('WST', '1'))
CPW = int(os.environ.get('CPW', '0'))
WSB = int(os.environ.get('WSB', '0')) << 20
TCH = int(os.environ.get('TCH', '0'))
PLATE = int(os.environ.get('PLATE', '2'))
F1 = int(os.environ.get('F1', '4'))
SLP_F = int(os.environ.get('SLPF', '0'))
SLP_N = int(os.environ.get('SLP', '2'))

def f32bits(x): return struct.unpack("<I", struct.pack("<f", x))[0]
C_NLOG2E = f32bits(-1.4426950408889634)
C_NLN2 = f32bits(-0.6931471805599453)

out = []
def A(s): out.append("    " + s)
def L(s): out.append(s + ":")
def CM(s): out.append("    ; " + s)
def vr(a, n): return f"v[{a}:{a+n-1}]"
def sr(a, n): return f"s[{a}:{a+n-1}]"

PX, PE, PSRC, PDST, PW1, PB1, PW2, PB2 = 4, 6, 8, 10, 12, 14, 16, 18
POUT, PDBG, PWS = 20, 22, 24

def srd(dst, base, nrec, off=None):
    if off is not None:
        A(f"s_add_u32 s{dst}, s{base}, {off}")
        A(f"s_addc_u32 s{dst+1}, s{base+1}, 0")
        src1 = dst + 1
    else:
        A(f"s_mov_b32 s{dst}, s{base}")
        src1 = base + 1
    A(f"s_and_b32 s{dst+1}, s{src1}, 0xffff")
    A(f"s_mov_b32 s{dst+2}, {hex(nrec)}")
    A(f"s_mov_b32 s{dst+3}, 0x20000")

NST = 0
def stamp(k):
    if STAMP: A(f"s_memrealtime s[100:101]"); A("s_waitcnt lgkmcnt(0)"); A(f"v_writelane_b32 v{VST}, s100, {k}")

QROW, HROW, PROW = 1040, 528, 272
L_CNT, L_FLAG, L_SFL, L_ZROW, L_GC, L_TOK = 0, 256, 272, 352, 864, 892
L_CV = 896
L_HIST = L_CV + 2560
L_PRIV = L_HIST + 1024
ZERO_B = L_PRIV
PRIV_N = 64 + R + 8
PRIV_B = PRIV_N * 8
L_H = L_PRIV + 16 * PRIV_B
L_XT = L_H + NPB * HROW
L_SIDE = L_XT
L_Q = L_XT + 20480
L_S = L_Q + NPB * QROW
L_SB = L_H + 10240
L_PT = L_Q
LDS = L_S + 65536
L_LIST = L_HIST
assert LDS <= 163840 and L_XT - L_LIST >= 32000 and L_H % 16 == 0 and L_Q % 16 == 0 and L_S % 16 == 0 and L_XT % 16 == 0
W1B_EARLY = 0
W1B_AT = 2
W1B_H = int(os.environ.get("W1BH", "4"))
GPR = int(os.environ.get("GPR", "2"))
WB0 = int(os.environ.get("WB0", "1"))
GWD = int(os.environ.get("GWD", "99"))
PD0 = int(os.environ.get("PD0", "0"))
WIN = 16 * 63
DUMMY = FBASE + 0x7FF000

VLF, VH8, VL16, VT16, VQ16 = 3, 4, 5, 6, 7
W, Q, NN, DD, Z, Z2, T, LO, PZ = 8, 12, 16, 20, 24, 28, 32, 36, 38
VA, VP, VDEG, VB4, VCNT, VPL, VM, VEND = 40, 41, 42, 43, 44, 45, 46, 47
EV, OG, DAT = 48, [56, 60], 64
AD, OUTA, OV, B2F = 80, 83, 84, 92
XF = 48
WL, PT = 96, 112
W2R = 96
RC = 96
VST = 45
SACC = 112

def gen():
    out.extend([".text", f".globl {KN}", ".p2align 8", f".type {KN},@function"])
    L(KN)
    ST, SW, SO, SX, SY, SZ = 28, 32, 36, 40, 44, 48
    MK = [4 + 2*k for k in range(8)]
    SC = 60
    SMODE, SFIRST, SRND, SFAST, STOK, SSP = 62, 63, 64, 65, 66, 67
    SM = 68
    SREM, STOT, SLP, SNN, SWV = 70, 71, 72, 73, 3
    SN40, SEX = 74, 76
    T0, T1, T2, T3, TP = 78, 79, 80, 81, 82
    STAIL, SSIDE, SLEN, SOUT, SWO = 84, 85, 86, 87, 88
    SQM, P0, P1 = 90, 92, 93
    SB8, SW2, SOWN, STAG, SN80, SCB = 75, 89, 52, 54, 55, 56
    C2 = sr(SC, 2)
    SCAN = ("row_shr:2 row_mask:0xf bank_mask:0xf bound_ctrl:0", "row_shr:4 row_mask:0xf bank_mask:0xf bound_ctrl:0",
            "row_shr:8 row_mask:0xf bank_mask:0xf bound_ctrl:0", "row_bcast:15 row_mask:0xa bank_mask:0xf", "row_bcast:31 row_mask:0xc bank_mask:0xf")
    VC, VG = 36, 37
    GRT = 34
    VZ, VONE = VEND, VM

    A("s_load_dwordx16 s[4:19], s[0:1], 0")
    A("s_load_dwordx4 s[20:23], s[0:1], 64")
    A("s_load_dwordx2 s[24:25], s[0:1], 80")
    A("s_memrealtime s[26:27]")
    CM("pull the code towards the L2 right away (one load per 128-B line; lanes past the code are out of range)")
    A(f"s_getpc_b64 {sr(SX,2)}")
    L("K_PC0")
    A("v_lshlrev_b32 v126, 7, v0")
    A(f"s_and_b32 s{SX+1}, s{SX+1}, 0xffff")
    if CPW:
        A(f"s_cmp_lt_u32 s2, {CPW}")
        A(f"s_cselect_b32 s{SX+2}, K_CODE_END-K_PC0, 0")
    else:
        A(f"s_mov_b32 s{SX+2}, K_CODE_END-K_PC0")
    A(f"s_mov_b32 s{SX+3}, 0x20000")
    A(f"buffer_load_dword v{VDEG}, v126, {sr(SX,4)}, 0 offen")
    A(f"s_cmp_ge_u32 s2, {NB}")
    A("s_cbranch_scc1 K_END")
    A("v_and_b32 v1, 63, v0")
    A("v_lshrrev_b32 v48, 6, v0")
    A(f"v_lshlrev_b32 v{VT16}, 4, v0")
    A(f"v_readfirstlane_b32 s{SWV}, v48")
    A("v_lshlrev_b32 v2, 2, v1")
    A(f"v_lshlrev_b32 v{VL16}, 4, v1")
    A(f"v_and_b32 v{VC}, 15, v1")
    A(f"v_lshrrev_b32 v{VG}, 4, v1")
    if STAMP: A(f"v_mov_b32 v{VST}, 0")
    A(f"v_mov_b32 v{VZ}, 0")
    A(f"v_mov_b32 v{VONE}, 1")
    for k in range(4):
        A(f"v_mov_b32 v{8+k}, 0")
    A(f"s_movk_i32 s{T0}, {ZERO_B//16}")
    A(f"v_cmp_gt_u32 vcc, s{T0}, v0")
    A(f"s_mul_i32 s{SN40}, s2, {NPB}")
    A(f"s_lshr_b32 s{SN80}, s2, 1")
    A(f"s_mul_i32 s{SN80}, s{SN80}, 80")
    A(f"s_and_b32 s{SCB}, s2, 1")
    A(f"s_and_saveexec_b64 {sr(SEX,2)}, vcc")
    A("s_cbranch_execz K_Z1")
    A(f"ds_write_b128 v{VT16}, v[8:11]")
    L("K_Z1")
    A(f"s_mov_b64 exec, {sr(SEX,2)}")
    A(f"s_mov_b32 s{P0}, 0x05040100")
    A(f"s_mov_b32 s{P1}, 0x07060302")
    A(f"s_mov_b32 s{SC}, {hex(C_NLOG2E)}")
    A(f"s_mov_b32 s{SC+1}, {hex(C_NLOG2E)}")
    A(f"s_mul_i32 s{SW2}, s{SWV}, {PRIV_B}")
    A(f"s_add_u32 s{SW2}, s{SW2}, {L_PRIV}")
    A(f"v_add_u32 v30, s{SW2}, v2")
    A(f"v_mov_b32 v31, {hex(DUMMY)}")
    A("ds_write_b32 v30, v31")
    A(f"ds_write_b32 v30, v31 offset:{(PRIV_N-64)*4}")
    A(f"s_cmp_lt_u32 s{SWV}, 8")
    A("s_cbranch_scc1 K_AUX")
    def common_setup():
        if WSB:
            A(f"s_add_u32 s{PWS}, s{PWS}, {hex(WSB)}")
            A(f"s_addc_u32 s{PWS+1}, s{PWS+1}, 0")
        srd(SW, PWS, WS_BYTES - WSB)
        A(f"s_lshl_b32 s{SSIDE}, s{SWV}, 10")
        A(f"s_add_u32 s{SSIDE}, s{SSIDE}, {L_SIDE}")
        A(f"s_mov_b32 s{SMODE}, 0")
        A(f"s_sub_u32 s{ST}, s{PWS}, {hex(FBASE)}")
        A(f"s_subb_u32 s{ST+1}, s{PWS+1}, 0")
        A(f"s_and_b32 s{ST+1}, s{ST+1}, 0xffff")
        A(f"s_mov_b32 s{ST+2}, {hex(FBASE + N*512)}")
        A(f"s_mov_b32 s{ST+3}, 0x20000")
        A(f"s_lshl_b32 s{SB8}, s2, 3")
        A(f"s_add_u32 s{SB8}, s{SB8}, {hex(WS_OFS)}")
        A(f"v_cvt_f32_u32 v{VLF}, v2")
        A(f"v_lshlrev_b32 v{VH8}, 3, v1")
        A(f"v_add_u32 v{VH8}, {L_H}, v{VH8}")
        A(f"v_add_u32 v{VQ16}, {L_Q}, v{VL16}")
        A(f"v_cmp_gt_u32 {sr(SQM,2)}, 8, v{VC}")
        A(f"s_lshl_b32 s{SOUT}, s{SN40}, 8")
        A(f"s_lshl_b32 s{T2}, s{SWV}, 5")
        A(f"s_add_u32 s{SOUT}, s{SOUT}, s{T2}")
        A(f"s_mov_b32 s{SFIRST}, 1")
    uid = [0]
    def arrive(c):
        A("s_mov_b64 exec, 1")
        A(f"ds_add_u32 v{VZ}, v{VONE} offset:{L_GC + 4*c}")
        A("s_mov_b64 exec, -1")
    def await_lds(off, n, vt, sdst, nonzero=False, slp=1):
        uid[0] += 1; u = uid[0]
        A(f"s_mov_b32 s{SSP}, {SPIN*16}")
        L(f"K_AW{u}")
        A(f"ds_read_b32 v{vt}, v{VZ} offset:{off}")
        A("s_waitcnt lgkmcnt(0)")
        A(f"v_readfirstlane_b32 s{sdst}, v{vt}")
        A(f"s_cmp_lg_u32 s{sdst}, 0" if nonzero else f"s_cmp_ge_u32 s{sdst}, {n}")
        A(f"s_cbranch_scc1 K_AWD{u}")
        A(f"s_sub_u32 s{SSP}, s{SSP}, 1")
        A("s_cbranch_scc1 K_END")
        A(f"s_sleep {slp}")
        A(f"s_branch K_AW{u}")
        L(f"K_AWD{u}")
    def perm4(dst, col, src=WL):
        for pr in range(4):
            a, b = src + 8*pr + (col >> 1), src + 8*pr + 4 + (col >> 1)
            A(f"v_perm_b32 v{dst+pr}, v{b}, v{a}, s{P1 if col & 1 else P0}")
    def franks(srdn):
        pass
    VPA, VQA, VB1A, VSW, VWO = 41, 38, 43, 44, 39
    A(f"v_lshlrev_b32 v{VWO}, 12, v{VG}")
    A(f"v_lshl_add_u32 v{VWO}, v{VC}, 4, v{VWO}")
    A(f"s_and_b32 s{T0}, s{SWV}, 3")
    A(f"s_bfe_u32 s{T3}, s{SWV}, 0x10002")
    A(f"s_lshl_b32 s{SWO}, s{T0}, 14")
    A(f"s_lshl_b32 s{T1}, s{T3}, 11")
    A(f"s_add_u32 s{T1}, s{T1}, s{SWO}")
    A(f"s_lshl_b32 s{T2}, s{SCB}, 8")
    A(f"s_add_u32 s{T1}, s{T1}, s{T2}")
    A(f"s_lshl_b32 s{T2}, s{T3}, 8")
    A(f"s_add_u32 s{SWO}, s{SWO}, s{T2}")
    A(f"s_add_u32 s{SWO}, s{SWO}, {128*512}")
    A("s_waitcnt lgkmcnt(0)")
    srd(SY, PW1, 257 * 512)
    if not WB0: A("s_barrier")
    for j in range(4):
        A(f"buffer_load_dwordx4 {vr(64+4*j,4)}, v{VWO}, {sr(SY,4)}, s{T1} offen offset:{512*j}")
    if WB0: A("s_barrier")
    if GPR: A(f"s_setprio {GPR}")
    if W1B_EARLY:
        for j in range(8):
            A(f"buffer_load_dwordx4 {vr(WL+4*j,4)}, v{VWO}, {sr(SY,4)}, s{SWO} offen offset:{512*j}")
    if W1B_H == 3:
        A(f"s_cmp_ge_u32 s{SWV}, 12")
        A("s_cbranch_scc1 K_NOH3")
        for j in range(8):
            A(f"buffer_load_dwordx4 {vr(WL+4*j,4)}, v{VWO}, {sr(SY,4)}, s{SWO} offen offset:{512*j}")
        L("K_NOH3")
    common_setup()
    A(f"s_lshl_b32 s{T0}, s{T0}, 10")
    A(f"s_add_u32 s{T0}, s{T0}, {L_S}")
    A(f"s_lshl_b32 s{T1}, s{T3}, 3")
    A(f"s_add_u32 s{T1}, s{T1}, s{T0}")
    A(f"v_add_u32 v12, s{T1}, v{VL16}")
    A(f"s_lshl_b32 s{T1}, s{T3}, 15")
    A(f"s_add_u32 s{T1}, s{T1}, s{T0}")
    A(f"v_add_u32 v{VSW}, s{T1}, v{VL16}")
    XA = 8
    A(f"v_xor_b32 v13, v{VG}, v{VC}")
    A("v_lshlrev_b32 v13, 4, v13")
    A(f"v_lshl_add_u32 v13, v{VC}, 8, v13")
    for s_ in range(4):
        A(f"v_xor_b32 v{XA+s_}, {64*s_}, v13")
    A(f"s_sub_u32 s{T0}, s{SWV}, 8")
    A(f"s_lshl_b32 s{T1}, s{T0}, 12")
    A(f"s_add_u32 s{T1}, s{T1}, {L_S}")
    A(f"v_add_u32 v{VA}, s{T1}, v{VL16}")
    A(f"s_lshr_b32 s{T1}, s{T0}, 2")
    A(f"s_lshl_b32 s{T1}, s{T1}, 4")
    A(f"s_and_b32 s{T2}, s{T0}, 3")
    A(f"s_add_u32 s{T1}, s{T1}, s{T2}")
    A(f"v_lshl_add_u32 v13, v{VG}, 2, s{T1}")
    A(f"s_movk_i32 s{T1}, {PROW}")
    A(f"v_lshlrev_b32 v{VPA}, 2, v13")
    A(f"v_mad_u32_u24 v{VPA}, v{VC}, s{T1}, v{VPA}")
    A(f"v_add_u32 v{VPA}, {L_PT}, v{VPA}")
    A(f"s_mov_b32 s{T2}, 0x8000")
    if W1B_H == 3:
        A(f"s_cmp_lt_u32 s{SWV}, 12")
        A("s_cbranch_scc1 K_NOH3B")
        A("s_waitcnt vmcnt(0)")
        L("K_NOH3B")
        A("s_waitcnt vmcnt(8)")
    else:
        A("s_waitcnt vmcnt(0)")
    stamp(1)
    for pr in range(2):
        for dw in range(4):
            a_, b_ = 64 + 8*pr + dw, 64 + 8*pr + 4 + dw
            A(f"v_perm_b32 v{48+(2*dw)*2+pr}, v{b_}, v{a_}, s{P0}")
            A(f"v_perm_b32 v{48+(2*dw+1)*2+pr}, v{b_}, v{a_}, s{P1}")
    for col in range(8):
        A(f"ds_write_b64 v12, {vr(48+2*col,2)} offset:{col*4096}")
    def w1b_loads():
        for j in range(8):
            A(f"buffer_load_dwordx4 {vr(WL+4*j,4)}, v{VWO}, {sr(SY,4)}, s{SWO} offen offset:{512*j}")
    if W1B_AT == 0: w1b_loads()
    A("s_waitcnt lgkmcnt(0)")
    arrive(0)
    if W1B_H == 4 and not WIL: w1b_loads()
    if W1B_H == 2:
        A(f"s_cmp_ge_u32 s{SWV}, 12")
        A("s_cbranch_scc1 K_NOH2")
        w1b_loads()
        L("K_NOH2")
    await_lds(L_GC, 13, 12, T0)
    stamp(3)
    if W1B_H == 1:
        A(f"s_cmp_ge_u32 s{SWV}, 12")
        A("s_cbranch_scc1 K_NOH1")
        w1b_loads()
        L("K_NOH1")
    AF, XR = 48, [64 + 4*k for k in range(8)]
    ACP = lambda mt: 16 + 4*mt
    for s_ in range(4):
        A(f"ds_read_b128 {vr(AF+4*s_,4)}, v{VA} offset:{s_*1024}")
    seq = [(mt, s_) for mt in range(5) for s_ in range(4)]
    PRE = 7
    def rdx(k):
        mt, s_ = seq[k]
        A(f"ds_read_b128 {vr(XR[k%8],4)}, v{XA+s_} offset:{L_XT + 4096*mt}")
    for k in range(PRE): rdx(k)
    def pack(mt):
        f = [ACP(mt) + r for r in range(4)]
        o = []
        o += [f"v_add_f32 v{f[r]}, 0, v{f[r]}" for r in range(4)]
        o += [f"v_add_u32 v{f[r]}, s{T2}, v{f[r]}" for r in range(4)]
        o += [f"v_sub_u32_sdwa v{f[r]}, v{f[r]}, v{f[r-1]} clamp dst_sel:DWORD dst_unused:UNUSED_PAD src0_sel:DWORD src1_sel:WORD_1" for r in range(1, 4)]
        o += [f"v_perm_b32 v{f[0]}, v{f[1]}, v{f[0]}, s{P1}", f"v_perm_b32 v{f[2]}, v{f[3]}, v{f[2]}, s{P1}"]
        return o
    pend = []
    for k, (mt, s_) in enumerate(seq):
        if k + PRE < 20: rdx(k + PRE)
        A(f"s_waitcnt lgkmcnt({min(PRE, 19-k)})")
        c = "0" if s_ == 0 else vr(ACP(mt), 4)
        A(f"v_mfma_f32_16x16x32_bf16 {vr(ACP(mt),4)}, {vr(AF+4*s_,4)}, {vr(XR[k%8],4)}, {c}")
        if WIL and WIL <= k < WIL + 8 * WST and (k - WIL) % WST == 0:
            j = (k - WIL) // WST
            A(f"buffer_load_dwordx4 {vr(WL+4*j,4)}, v{VWO}, {sr(SY,4)}, s{SWO} offen offset:{512*j}")
        if s_ == 3 and mt >= 1: pend += pack(mt - 1)
        for x in pend[:4]: A(x)
        pend = pend[4:]
    for x in pend: A(x)
    A("s_nop 1")
    for x in pack(4): A(x)
    for mt in range(5):
        A(f"ds_write_b32 v{VPA}, v{ACP(mt)} offset:{16*mt*PROW}")
        A(f"ds_write_b32 v{VPA}, v{ACP(mt)+2} offset:{16*mt*PROW + 128}")
    A("v_bfe_u32 v12, v0, 4, 4")
    A(f"s_movk_i32 s{T1}, {PROW}")
    A(f"v_lshlrev_b32 v13, 4, v{VC}")
    A(f"v_mad_u32_u24 v14, v12, s{T1}, v13")
    A(f"v_add_u32 v14, {L_PT}, v14")
    A("v_and_b32 v15, 0x70, v13")
    A("v_lshl_add_u32 v15, v12, 9, v15")
    A("v_and_b32 v13, 0x80, v13")
    A("v_lshl_add_u32 v15, v13, 1, v15")
    A(f"s_lshl_b32 s{T0}, s{SN80}, 9")
    A(f"s_lshl_b32 s{T1}, s{SCB}, 7")
    A(f"s_add_u32 s{T0}, s{T0}, s{T1}")
    A("s_waitcnt lgkmcnt(0)")
    arrive(1)
    await_lds(L_GC + 4, 9, 12, T3)
    stamp(4)
    A(f"s_cmp_lt_u32 s{SWV}, 12")
    A("s_cbranch_scc1 K_GW")
    for k in range(5):
        A(f"ds_read_b128 {vr(48+4*k,4)}, v14 offset:{16*k*PROW}")
    for k in range(5):
        A(f"s_waitcnt lgkmcnt({4-k})")
        A(f"buffer_store_dwordx4 {vr(48+4*k,4)}, v15, {sr(SW,4)}, s{T0} offen {PSF}")
        A(f"s_add_u32 s{T0}, s{T0}, 8192")
    if W1B_H == 4:
        A("s_waitcnt vmcnt(5)")
        for col in range(8):
            d = 16 + 4 * (col % 5)
            perm4(d, col)
            A(f"ds_write_b128 v{VSW}, {vr(d,4)} offset:{col*4096}")
        A("s_waitcnt lgkmcnt(0)")
    arrive(2)
    await_lds(L_TOK, 0, 14, STOK, nonzero=True)
    A("s_waitcnt vmcnt(0)")
    A("s_mov_b64 exec, 1")
    A(f"ds_add_rtn_u32 v15, v{VZ}, v{VONE} offset:{L_GC+12}")
    A(f"s_lshl_b32 s{T0}, s2, 4")
    A(f"s_add_u32 s{T0}, s{T0}, {hex(WS_PF)}")
    A("s_waitcnt lgkmcnt(0)")
    A(f"v_readfirstlane_b32 s{T1}, v15")
    A(f"s_cmp_lg_u32 s{T1}, 3")
    A("s_cbranch_scc1 K_NOPF")
    A(f"buffer_store_dword v14, v{VZ}, {sr(SW,4)}, s{T0} offen sc1")
    L("K_NOPF")
    A("s_mov_b64 exec, -1")
    stamp(2)
    A("s_branch K_GQ")
    L("K_GW")
    def st1():
        for col in range(8):
            d = 16 + 4 * (col % 5)
            perm4(d, col)
            A(f"ds_write_b128 v{VSW}, {vr(d,4)} offset:{col*4096}")
    if W1B_H:
        A("s_waitcnt vmcnt(0)")
        st1()
    if W1B_H != 4:
        if GWD == 99: await_lds(L_GC + 12, 4, 12, T3, slp=2)
        elif GWD: A(f"s_sleep {GWD}")
        if not W1B_H:
            w1b_loads()
        A(f"s_add_u32 s{T0}, s{SWO}, 256")
        for j in range(8):
            A(f"buffer_load_dwordx4 {vr(64+4*j,4)}, v{VWO}, {sr(SY,4)}, s{T0} offen offset:{512*j}")
        if not W1B_H:
            A("s_waitcnt vmcnt(8)")
            st1()
        A("s_waitcnt vmcnt(0)")
        for col in range(8):
            d = 16 + 4 * ((col + 3) % 5)
            perm4(d, col, 64)
            A(f"ds_write_b128 v{VSW}, {vr(d,4)} offset:{32768 + col*4096}")
    A("s_waitcnt lgkmcnt(0)")
    arrive(2)
    await_lds(L_TOK, 0, 14, STOK, nonzero=True)
    L("K_GQ")
    A(f"s_sub_u32 s{T0}, s{SWV}, 8")
    A(f"s_lshl_b32 s{T1}, s{T0}, 13")
    A(f"s_add_u32 s{T1}, s{T1}, {L_S}")
    A(f"v_add_u32 v{VA}, s{T1}, v{VL16}")
    A(f"s_lshr_b32 s{T1}, s{T0}, 1")
    A(f"s_lshl_b32 s{T1}, s{T1}, 4")
    A(f"s_and_b32 s{T0}, s{T0}, 1")
    A(f"s_lshl_b32 s{T0}, s{T0}, 1")
    A(f"s_add_u32 s{T0}, s{T0}, s{T1}")
    A(f"v_lshl_add_u32 v12, v{VG}, 2, s{T0}")
    A(f"v_lshlrev_b32 v{VB1A}, 4, v12")
    A(f"s_movk_i32 s{T1}, {QROW}")
    A(f"v_mad_u32_u24 v{VPA}, v{VC}, s{T1}, v{VB1A}")
    A(f"v_add_u32 v{VPA}, {L_Q}, v{VPA}")
    A(f"s_mul_i32 s{T0}, s{SCB}, 40")
    A(f"v_add_u32 v12, s{T0}, v{VC}")
    A(f"v_xor_b32 v13, v{VG}, v12")
    A("v_and_b32 v13, 15, v13")
    A("v_lshlrev_b32 v13, 4, v13")
    A("v_lshl_add_u32 v13, v12, 8, v13")
    for s_ in range(4):
        A(f"v_xor_b32 v{XA+s_}, {64*s_}, v13")
    stamp(5)
    for s_ in range(4):
        for mt in range(3):
            A(f"ds_read_b128 {vr(XF+(mt*4+s_)*4,4)}, v{XA+s_} offset:{L_XT + 4096*mt}")
    await_lds(L_GC + 8, 12, 12, T0)
    AC = lambda t, mt: 16 + (t*3 + mt) * 4
    A(f"ds_read_b128 v[8:11], v{VB1A} offset:{L_CV+1024}")
    A(f"ds_read_b128 v[12:15], v{VB1A} offset:{L_CV+1024+16}")
    for k in range(8):
        A(f"ds_read_b128 {vr(WL+4*k,4)}, v{VA} offset:{((k&1)*4 + (k>>1))*1024}")
    for k in range(8):
        s_, t = k >> 1, k & 1
        A(f"s_waitcnt lgkmcnt({7-k})")
        for mt in range(3):
            c = vr(8 + 4*t, 4) if s_ == 0 else vr(AC(t, mt), 4)
            A(f"v_mfma_f32_16x16x32_bf16 {vr(AC(t,mt),4)}, {vr(WL+4*k,4)}, {vr(XF+(mt*4+s_)*4,4)}, {c}")
    A(f"s_mov_b32 s{T1}, {hex(WS_PF - 8192)}")
    A(f"s_cmp_lt_u32 s{SWV}, 12")
    A(f"s_cselect_b32 s{SRND}, s{T1}, 0x7ff00000")
    if not PLATE: A(f"buffer_load_dword v{VA}, v{VT16}, {sr(SW,4)}, s{SRND} offen sc1")
    for k in range(8):
        A(f"s_mov_b64 {sr(MK[k],2)}, 0")
    for mt in range(3):
        for t in range(2):
            d = 48 + (mt*2 + t) * 4
            for i in range(4):
                A(f"v_mul_f32 v{d+i}, s{SC}, v{AC(t,mt)+PI[i]}")
            if mt == 2:
                A(f"s_mov_b64 exec, {sr(SQM,2)}")
            A(f"ds_write_b128 v{VPA}, {vr(d,4)} offset:{16*mt*QROW + 16*t}")
            if mt == 2:
                A("s_mov_b64 exec, -1")
    stamp(6)
    A(f"v_and_b32 v{VC}, 15, v1")
    A(f"v_lshrrev_b32 v{VG}, 4, v1")
    A(f"v_mov_b32 v{PZ}, 0")
    A(f"v_mov_b32 v{PZ+1}, 0")
    A(f"v_mov_b32 v{VP}, s{SW2}")
    A(f"v_mov_b32 v{VDEG}, 0")
    A(f"v_mov_b32 v{OUTA}, 0")
    A(f"s_cmp_ge_u32 s{SWV}, 12")
    A("s_cbranch_scc1 K_B3")
    A(f"s_movk_i32 s{T0}, {512 + NB}")
    A(f"v_cmp_gt_u32 {sr(TP,2)}, s{T0}, v0")
    if PLATE:
        await_lds(L_GC + 12, 4, 12, T3, slp=2)
        await_lds(L_GC + (20 if PLATE == 2 else 16), 8, 12, T3, slp=2)
        if PLATE > 2: A(f"s_sleep {PLATE}")
        A(f"buffer_load_dword v{VA}, v{VT16}, {sr(SW,4)}, s{SRND} offen sc1")
    A(f"s_mov_b32 s{SSP}, {SPIN}")
    L("K_PFL")
    A("s_waitcnt vmcnt(0)")
    A(f"v_cmp_ne_u32 vcc, s{STOK}, v{VA}")
    A(f"s_and_b64 vcc, vcc, {sr(TP,2)}")
    A("s_cbranch_scc0 K_B3")
    A(f"s_sub_u32 s{SSP}, s{SSP}, 1")
    A("s_cbranch_scc1 K_B3")
    A("s_mov_b64 exec, vcc")
    if SLP_F: A(f"s_sleep {SLP_F}")
    A(f"buffer_load_dword v{VA}, v{VT16}, {sr(SW,4)}, s{SRND} offen sc1")
    A("s_mov_b64 exec, -1")
    A("s_branch K_PFL")

    L("K_AUX")
    A(f"s_cmp_lg_u32 s{SWV}, 0")
    A("s_cbranch_scc1 K_AUX1")
    ED, ES, EE, RKB, BN4, RCB = 48, 58, 68, 74, 84, 96
    A("v_lshlrev_b32 v12, 3, v1")
    A(f"s_mul_i32 s{T0}, s2, {CH*4}")
    A(f"s_mul_i32 s{T1}, s2, {CH*2}")
    A("s_waitcnt lgkmcnt(0)")
    srd(SX, PDST, CH * 4, f"s{T0}")
    for k in range(5):
        A(f"buffer_load_dwordx2 {vr(ED+2*k,2)}, v12, {sr(SX,4)}, 0 offen offset:{512*k}")
    srd(SY, PSRC, CH * 4, f"s{T0}")
    for k in range(5):
        A(f"buffer_load_dwordx2 {vr(ES+2*k,2)}, v12, {sr(SY,4)}, 0 offen offset:{512*k}")
    srd(SZ, PE, CH * 2, f"s{T1}")
    for k in range(5):
        A(f"buffer_load_dword v{EE+k}, v2, {sr(SZ,4)}, 0 offen offset:{256*k}")
    A("s_barrier")
    A("s_setprio 3")
    common_setup()
    srd(SO, PDBG, 256)
    A(f"s_movk_i32 s{T1}, {-NPB}")
    for j in range(10):
        if j % 2 == 0:
            A(f"s_waitcnt vmcnt({14 - j//2})")
            if j == 0:
                A(f"buffer_load_dword v33, v{VZ}, {sr(SO,4)}, 0 offen sc1")
        A(f"v_mul_u32_u24 v14, 0xcccd, v{ED+j}")
        A("v_lshrrev_b32 v14, 21, v14")
        A(f"v_lshlrev_b32 v{BN4+j}, 2, v14")
        A(f"ds_add_rtn_u32 v{RKB+j}, v{BN4+j}, v{VONE} offset:{L_HIST}")
        A(f"v_mad_i32_i24 v{ED+j}, v14, s{T1}, v{ED+j}")
    HC_, HB_ = 16, 20
    A(f"ds_read_b128 {vr(HC_,4)}, v{VL16} offset:{L_HIST}")
    A("s_waitcnt vmcnt(1)")
    stamp(1)
    for j in range(10):
        if j % 2 == 0:
            A(f"v_lshlrev_b32 v14, 16, v{EE+j//2}")
        else:
            A(f"v_and_b32 v14, 0xffff0000, v{EE+j//2}")
        A(f"v_lshl_or_b32 v{RCB+2*j+1}, v{ED+j}, 2, v14")
    A("s_waitcnt lgkmcnt(0)")
    A(f"v_add_u32 v{HB_+2}, v{HC_}, v{HC_+1}")
    A(f"v_add_u32 v{HB_+3}, v{HB_+2}, v{HC_+2}")
    A(f"v_add_u32 v15, v{HB_+3}, v{HC_+3}")
    A("s_nop 1")
    A(f"v_add_u32_dpp v{HB_}, v15, v15 row_shr:1 row_mask:0xf bank_mask:0xf bound_ctrl:0")
    for ctl in SCAN:
        A("s_nop 1")
        A(f"v_add_u32_dpp v{HB_}, v{HB_}, v{HB_} {ctl}")
    A(f"v_sub_u32 v{HB_}, v{HB_}, v15")
    A(f"v_add_u32 v{HB_+1}, v{HB_}, v{HC_}")
    A(f"v_add_u32 v{HB_+2}, v{HB_}, v{HB_+2}")
    A(f"v_add_u32 v{HB_+3}, v{HB_}, v{HB_+3}")
    A(f"ds_write_b128 v{VL16}, {vr(HB_,4)} offset:{L_HIST}")
    for j in range(10):
        A(f"ds_read_b32 v{ED+j}, v{BN4+j} offset:{L_HIST}")
    for k in range(4):
        A(f"v_lshl_or_b32 v{25+2*k}, v{HC_+k}, 16, v{HB_+k}")
    A(f"v_lshlrev_b32 v32, 1, v{VL16}")
    A(f"s_mov_b32 s{SSP}, {SPIN}")
    A("s_waitcnt vmcnt(0)")
    L("K_TOK")
    A(f"v_readfirstlane_b32 s{STOK}, v33")
    A(f"s_cmp_lg_u32 s{STOK}, 0")
    A("s_cbranch_scc1 K_TOKOK")
    A(f"s_sub_u32 s{SSP}, s{SSP}, 1")
    A("s_cbranch_scc1 K_END")
    A(f"buffer_load_dword v33, v{VZ}, {sr(SO,4)}, 0 offen sc1")
    A("s_waitcnt vmcnt(0)")
    A("s_branch K_TOK")
    L("K_TOKOK")
    A(f"s_lshl_b32 s{T0}, s{STOK}, 13")
    A(f"s_and_b32 s{T0}, s{T0}, 0xffffc000")
    A(f"s_lshl_b32 s{T3}, s2, 11")
    A(f"s_add_u32 s{T3}, s{T3}, {hex(WS_OFS)}")
    for k in range(4):
        A(f"v_mov_b32 v{24+2*k}, s{STOK}")
    A(f"buffer_store_dwordx4 v[24:27], v32, {sr(SW,4)}, s{T3} offen sc1")
    A(f"buffer_store_dwordx4 v[28:31], v32, {sr(SW,4)}, s{T3} offen offset:16 sc1")
    A("s_waitcnt lgkmcnt(0)")
    for j in range(10):
        A(f"v_or_b32 v{RCB+2*j}, s{T0}, v{ES+j}")
        A(f"v_add_lshl_u32 v{ED+j}, v{ED+j}, v{RKB+j}, 3")
        A(f"ds_write_b64 v{ED+j}, {vr(RCB+2*j,2)} offset:{L_SB}")
    for k in range(5):
        A(f"ds_read_b128 {vr(60+4*k,4)}, v{VL16} offset:{L_SB + 1024*k}")
    A(f"s_mul_i32 s{T0}, s2, {CH*8}")
    A(f"s_add_u32 s{T0}, s{T0}, {hex(WS_REC)}")
    A(f"s_add_u32 s{T1}, s{T0}, 4096")
    for k in range(5):
        A(f"s_waitcnt lgkmcnt({4-k})")
        A(f"buffer_store_dwordx4 {vr(60+4*k,4)}, v{VL16}, {sr(SW,4)}, s{T0 + k//4} offen offset:{1024*(k%4)} sc1")
    A(f"ds_write_b32 v{VZ}, v33 offset:{L_TOK}")
    A("s_setprio 0")
    stamp(2)
    A("s_branch K_AUXP")
    L("K_AUX1")
    for k in range(4):
        A(f"v_xor_b32 v{51+k}, v{VG}, v{VC}")
        if k: A(f"v_xor_b32 v{51+k}, {4*k}, v{51+k}")
        A(f"v_lshlrev_b32 v{51+k}, 4, v{51+k}")
        A(f"v_lshl_add_u32 v{51+k}, v{VG}, 8, v{51+k}")
    A(f"s_sub_u32 s{T0}, s{SWV}, 1")
    A(f"s_lshl_b32 s{T0}, s{T0}, 12")
    A(f"s_lshl_b32 s{T2}, s{SN80}, 8")
    A(f"s_add_u32 s{T2}, s{T2}, s{T0}")
    A(f"s_add_u32 s{T0}, s{T0}, {L_XT}")
    A(f"s_mov_b32 m0, s{T0}")
    A("s_waitcnt lgkmcnt(0)")
    A(f"s_cmp_ge_u32 s{SWV}, 6")
    A("s_cbranch_scc1 K_NOX")
    srd(SX, PX, N * 256)
    for k in range(4):
        A(f"buffer_load_dwordx4 v{51+k}, {sr(SX,4)}, s{T2} offen offset:{1024*k} lds")
    L("K_NOX")
    if TCH:
        A(f"s_cmp_lg_u32 s{SWV}, 6")
        A("s_cbranch_scc1 K_NOTCH")
        CM("address translations of the pages that are written and read later")
        srd(SX, PWS, 0x800000)
        A(f"v_lshlrev_b32 v60, {TCH}, v1")
        A(f"buffer_load_dword v61, v60, {sr(SX,4)}, 0 offen sc1")
        srd(SX, POUT, N * D * 2)
        A(f"s_lshl_b32 s{T0}, s{SN40}, 8")
        A(f"buffer_load_dword v62, v{VZ}, {sr(SX,4)}, s{T0} offen")
        L("K_NOTCH")
    A(f"s_xor_b32 s{T0}, s{SWV}, 7")
    A(f"s_or_b32 s{T0}, s{T0}, s2")
    A("s_cbranch_scc1 K_NOTOK")
    srd(SO, PDBG, 256)
    A("s_or_b32 s26, s26, 1")
    A("v_mov_b32 v59, s26")
    A(f"buffer_store_dword v59, v2, {sr(SO,4)}, 0 offen sc1")
    L("K_NOTOK")
    A("s_barrier")
    common_setup()
    A(f"s_cmp_lt_u32 s{SWV}, 4")
    A("s_cbranch_scc1 K_NOCV")
    A("v_and_b32 v63, 3, v0")
    A("v_lshlrev_b32 v63, 2, v63")
    A("v_mov_b32 v64, 0x2031")
    A("v_bfe_u32 v65, v64, v63, 4")
    A("v_bfe_u32 v64, v0, 2, 2")
    A(f"v_lshl_add_u32 v64, v{VG}, 5, v64")
    A("v_bfe_u32 v66, v0, 6, 1")
    A("v_lshl_add_u32 v64, v66, 2, v64")
    A("v_bfe_u32 v66, v0, 7, 1")
    A("v_lshl_add_u32 v64, v66, 7, v64")
    A("v_lshl_add_u32 v65, v65, 3, v64")
    A("v_lshl_add_u32 v64, v63, 1, v64")
    A("v_lshlrev_b32 v65, 1, v65")
    A("v_lshlrev_b32 v64, 1, v64")
    A("v_and_b32 v66, 0xff, v0")
    A("v_lshlrev_b32 v67, 1, v66")
    A("v_lshlrev_b32 v66, 2, v66")
    srd(SY, PW1, 257 * 512)
    A(f"s_mov_b32 s{T0}, {256*512}")
    A(f"buffer_load_ushort v20, v65, {sr(SY,4)}, s{T0} offen")
    srd(SX, PB1, 512)
    A(f"buffer_load_ushort v21, v64, {sr(SX,4)}, 0 offen")
    srd(SX, PB2, 256)
    A(f"buffer_load_ushort v22, v67, {sr(SX,4)}, 0 offen")
    A(f"s_cmp_ge_u32 s{SWV}, 6")
    A("s_cbranch_scc1 K_CV1")
    A("s_waitcnt vmcnt(3)")
    arrive(0)
    L("K_CV1")
    A(f"s_cmp_lg_u32 s{SWV}, 7")
    A("s_cbranch_scc1 K_CV1B")
    A("s_cmp_ge_u32 s2, 64")
    A("s_cbranch_scc1 K_CV1B")
    A(f"s_bfe_u32 s{T0}, s2, 0x10002")
    A(f"s_lshl_b32 s{T0}, s{T0}, 15")
    A(f"s_and_b32 s{T1}, s2, 1")
    A(f"s_lshl_b32 s{T1}, s{T1}, 14")
    A(f"s_add_u32 s{T0}, s{T0}, s{T1}")
    A(f"s_bfe_u32 s{T1}, s2, 0x10001")
    A(f"s_lshl_b32 s{T1}, s{T1}, 10")
    A(f"s_add_u32 s{T0}, s{T0}, s{T1}")
    A(f"s_lshr_b32 s{T1}, s2, 3")
    A(f"s_lshl_b32 s{T1}, s{T1}, 5")
    A(f"s_add_u32 s{T0}, s{T0}, s{T1}")
    A(f"s_add_u32 s{T1}, s{T0}, 4096")
    A(f"v_lshrrev_b32 v24, 1, v{VG}")
    A("v_lshlrev_b32 v24, 13, v24")
    A(f"v_and_b32 v25, 1, v{VG}")
    A("v_lshl_add_u32 v24, v25, 9, v24")
    A(f"v_lshl_add_u32 v24, v{VC}, 1, v24")
    srd(SX, PW2, 256 * 256)
    for jj in range(8):
        p = PI[jj & 3]
        A(f"buffer_load_ushort v{72+jj}, v24, {sr(SX,4)}, s{T0 if p < 2 else T1} offen offset:{(p&1)*2048 + (jj>>2)*256}")
    A(f"s_lshl_b32 s{T0}, s2, 10")
    A(f"s_add_u32 s{T0}, s{T0}, {hex(WS_W2F)}")
    A("s_waitcnt vmcnt(0)")
    for k in range(4):
        A(f"v_lshl_or_b32 v{80+k}, v{73+2*k}, 16, v{72+2*k}")
    A(f"buffer_store_dwordx4 v[80:83], v{VL16}, {sr(SW,4)}, s{T0} offen sc1")
    L("K_CV1B")
    A("s_waitcnt vmcnt(0)")
    for k in range(3):
        A(f"v_lshlrev_b32 v{20+k}, 16, v{20+k}")
    A(f"v_mul_f32 v20, s{SC}, v20")
    A(f"ds_write_b32 v66, v21 offset:{L_CV+1024}")
    A(f"ds_write_b32 v66, v20 offset:{L_CV}")
    A(f"s_cmp_ge_u32 s{SWV}, 6")
    A("s_cbranch_scc1 K_CV2")
    A(f"ds_write_b32 v66, v22 offset:{L_CV+2048}")
    L("K_CV2")
    A("s_waitcnt lgkmcnt(0)")
    arrive(2)
    A(f"s_cmp_lg_u32 s{SWV}, 7")
    A("s_cbranch_scc1 K_AUXT")
    arrive(1)
    A("s_branch K_AUXT")
    L("K_NOCV")
    A("s_waitcnt vmcnt(0)")
    arrive(0)
    L("K_AUXT")
    L("K_AUXP")
    A("v_lshrrev_b32 v31, 1, v0")
    A("v_lshlrev_b32 v31, 11, v31")
    A(f"s_movk_i32 s{T3}, {2*NB}")
    A(f"v_cmp_gt_u32 {sr(SOWN,2)}, s{T3}, v0")
    A(f"v_cvt_f32_u32 v30, v1")
    A(f"v_rcp_f32 v30, v30")
    A(f"v_mov_b32 v{VP}, s{SW2}")
    A(f"v_mul_f32 v30, 0x47800000, v30")
    A(f"v_cvt_u32_f32 v30, v30")
    A(f"v_add_u32 v30, 1, v30")
    await_lds(L_TOK, 0, 33, STOK, nonzero=True, slp=4)
    A(f"s_bfe_u32 s{STAG}, s{STOK}, 0x120001")
    if PD0: A(f"s_sleep {PD0}")
    L("K_REC0")
    A(f"s_mov_b32 s{SSP}, {SPIN}")
    A(f"s_mov_b64 vcc, {sr(SOWN,2)}")
    L("K_OFS")
    A("s_mov_b64 exec, vcc")
    A(f"buffer_load_dwordx2 {vr(GRT,2)}, v31, {sr(SW,4)}, s{SB8} offen sc1")
    A("s_mov_b64 exec, -1")
    L("K_OFS1")
    A("s_waitcnt vmcnt(0)")
    A(f"v_cmp_ne_u32 vcc, s{STOK}, v{GRT}")
    A(f"s_and_b64 vcc, vcc, {sr(SOWN,2)}")
    A("s_cbranch_scc0 K_OFSOK")
    A(f"s_sub_u32 s{SSP}, s{SSP}, 1")
    A("s_cbranch_scc1 K_END")
    A(f"s_sleep {SLP_N}")
    A("s_branch K_OFS")
    L("K_OFSOK")
    stamp(5)
    A(f"v_lshrrev_b32 v{GRT}, 16, v{GRT+1}")
    A(f"v_and_b32 v{GRT+1}, 0xffff, v{GRT+1}")
    A(f"v_cndmask_b32 v{GRT}, 0, v{GRT}, {sr(SOWN,2)}")
    A("v_lshrrev_b32 v32, 1, v0")
    A(f"s_movk_i32 s{T0}, {CH}")
    A(f"v_mad_u32_u24 v{GRT+1}, v32, s{T0}, v{GRT+1}")
    A("v_and_b32 v32, 1, v0")
    A("v_lshlrev_b32 v32, 1, v32")
    A(f"v_add_lshl_u32 v{PZ+1}, v{GRT+1}, v32, 3")
    A(f"v_sub_i32 v{PZ}, v{GRT}, v32")
    A(f"v_mov_b32 v{VDEG}, 0")
    A(f"v_mov_b32 v{OUTA}, 0")
    L("K_RECS")
    A(f"s_mov_b32 s{T0}, {hex(WS_REC)}")
    for k in range(8):
        A(f"v_cmp_lt_i32 {sr(MK[k],2)}, {4*(k>>1) + (k&1)}, v{PZ}")
    A(f"v_cmp_lt_i32 vcc, 16, v{PZ}")
    A("v_mov_b32 v88, 4")
    A("v_mov_b32 v89, 0")
    A("v_mov_b32 v90, 1")
    A("s_cbranch_vccz K_RM")
    A(f"ds_write_b32 v89, v90 offset:{L_FLAG}")
    L("K_RM")
    A(f"s_mov_b32 s{SSP}, {SPIN}")
    L("K_RLD")
    for k in range(4):
        A(f"s_mov_b64 exec, {sr(MK[2*k],2)}")
        A("s_cbranch_execz K_RL")
        A(f"buffer_load_dwordx4 {vr(RC+4*k,4)}, v{PZ+1}, {sr(SW,4)}, s{T0} offen offset:{32*k} sc1")
    L("K_RL")
    A("s_mov_b64 exec, -1")
    L("K_NOU")
    A(f"s_mov_b64 {sr(TP,2)}, 0")
    A("s_waitcnt vmcnt(0)")
    for k in range(8):
        A(f"s_mov_b64 exec, {sr(MK[k],2)}")
        A("s_cbranch_execz K_RV")
        A(f"v_lshrrev_b32 v91, 14, v{RC+2*k}")
        A(f"v_cmp_ne_u32 vcc, s{STAG}, v91")
        A(f"s_or_b64 {sr(TP,2)}, {sr(TP,2)}, vcc")
    L("K_RV")
    A("s_mov_b64 exec, -1")
    A(f"s_cmp_eq_u64 {sr(TP,2)}, 0")
    A("s_cbranch_scc1 K_RVOK")
    A(f"s_sub_u32 s{SSP}, s{SSP}, 1")
    A("s_cbranch_scc1 K_END")
    A(f"s_sleep {SLP_N}")
    A("s_branch K_RLD")
    L("K_RVOK")
    stamp(6)
    NL, RK, PS = 64, 72, 80
    A(f"s_mov_b32 s{T1}, {hex(FBASE)}")
    for k in range(8):
        A(f"s_mov_b64 exec, {sr(MK[k],2)}")
        A("s_cbranch_execz K_R1")
        A(f"v_and_b32 v{NL+k}, 0xfc, v{RC+2*k+1}")
        A(f"ds_add_rtn_u32 v{RK+k}, v{NL+k}, v88")
        A(f"v_and_b32 v{RC+2*k}, 0x3fff, v{RC+2*k}")
        A(f"v_lshl_or_b32 v{RC+2*k}, v{RC+2*k}, 9, s{T1}")
    L("K_R1")
    A("s_mov_b64 exec, 1")
    A("s_waitcnt lgkmcnt(0)")
    A(f"ds_add_u32 v89, v90 offset:{L_GC+16}")
    A("s_mov_b64 exec, -1")
    A(f"v_mov_b32 v{VZ}, 0")
    await_lds(L_GC + 16, 8, 91, T0)
    stamp(7)
    def scan_and_decide(tag, with_perm):
        A(f"ds_read_b32 v{VCNT}, v2")
        A(f"ds_read_b32 v91, v89 offset:{L_FLAG}")
        A("s_waitcnt lgkmcnt(1)")
        A(f"v_add_u32_dpp v{VEND}, v{VCNT}, v{VCNT} row_shr:1 row_mask:0xf bank_mask:0xf bound_ctrl:0")
        A(f"v_add_u32 v{VDEG}, v{VDEG}, v{VCNT}")
        for k, ctl in enumerate(SCAN):
            A("s_nop 0" if k == 0 else "s_nop 1")
            A(f"v_add_u32_dpp v{VEND}, v{VEND}, v{VEND} {ctl}")
        A(f"v_sub_u32 v{VB4}, v{VEND}, v{VCNT}")
        A("s_waitcnt lgkmcnt(0)")
        A(f"v_readlane_b32 s{STOT}, v{VEND}, 63")
        if with_perm:
            for k in range(8):
                A(f"s_cmp_eq_u64 {sr(MK[k],2)}, 0")
                A(f"s_cbranch_scc1 K_R2{tag}")
                A(f"ds_bpermute_b32 v{PS+k}, v{NL+k}, v{VB4}")
            L(f"K_R2{tag}")
        A(f"v_readfirstlane_b32 s{SLP}, v91")
        A(f"s_add_u32 s{T1}, s{STOT}, 60")
        A(f"s_lshr_b32 s{SLEN}, s{T1}, 6")
        A(f"s_lshl_b32 s{T1}, s{SLEN}, 2")
        A(f"s_add_u32 s{T2}, s{T1}, 4")
        A(f"v_cmp_lt_u32 vcc, s{T2}, v{VCNT}")
        A(f"s_and_b32 s{T3}, s{SLEN}, 63")
        if with_perm:
            A(f"v_readlane_b32 s{T0}, v30, s{T3}")
        A(f"s_andn2_b32 s{SFAST}, s{SFIRST}, s{SMODE}")
        A(f"s_andn2_b32 s{SFAST}, s{SFAST}, s{SLP}")
        A(f"s_cmp_gt_u32 s{STOT}, {4*WIN}")
        A(f"s_cselect_b32 s{SFAST}, 0, s{SFAST}")
        A(f"s_sub_u32 s{T1}, {PRIV_B}, s{T1}")
        A("s_cmp_lg_u64 vcc, 0")
        A(f"s_cselect_b32 s{SFAST}, 0, s{SFAST}")
    scan_and_decide("a", True)
    A(f"v_mov_b32 v92, s{SFAST}")
    A(f"ds_write_b32 v89, v92 offset:{L_FLAG+12}")
    A(f"s_cmp_eq_u32 s{SFAST}, 0")
    A("s_waitcnt lgkmcnt(0)")
    A("s_cbranch_scc1 K_WL")
    for k in range(8):
        A(f"s_mov_b64 exec, {sr(MK[k],2)}")
        A("s_cbranch_execz K_WB")
        A(f"v_add_u32 v{PS+k}, v{PS+k}, v{RK+k}")
        A(f"v_mul_u32_u24 v{RK+k}, s{T0}, v{PS+k}")
        A(f"v_lshrrev_b32 v{RK+k}, 18, v{RK+k}")
        A(f"v_mad_u32_u24 v{PS+k}, v{RK+k}, s{T1}, v{PS+k}")
        A(f"ds_write_b32 v{PS+k}, v{RC+2*k} offset:{L_PRIV}")
        A(f"ds_write_b32 v{PS+k}, v{RC+2*k+1} offset:{L_PRIV + PRIV_N*4}")
    L("K_WB")
    A("s_mov_b64 exec, 1")
    A(f"ds_add_u32 v89, v90 offset:{L_GC+20}")
    A("s_mov_b64 exec, -1")
    L("K_B3")
    A(f"s_mov_b32 s{SW2}, 1")
    A("v_mov_b32 v89, 0")
    A("s_waitcnt vmcnt(0) lgkmcnt(0)")
    A("s_barrier")
    stamp(8)
    def row_load(d, p, pair=False):
        if not pair:
            A(f"v_add_u32 v{p}, v{p}, v2")
        A(f"buffer_load_dword v{d}, v{p}, {sr(ST,4)}, 0 offen sc1")
        A(f"buffer_load_dword v{d+1}, v{p}, {sr(ST,4)}, 0 offen offset:256 sc1")
    TI = 16
    A(f"ds_read_b32 v92, v89 offset:{L_FLAG+12}")
    for k in range(R // 4):
        A(f"ds_read_b128 {vr(TI+4*k,4)}, v{VP} offset:{16*k}")
    A(f"ds_read_b128 {vr(W,4)}, v{VL16} offset:{L_CV}")
    A("s_waitcnt lgkmcnt(2)")
    A(f"v_readfirstlane_b32 s{T0}, v92")
    A(f"s_cmp_eq_u32 s{T0}, 0")
    A("s_cbranch_scc1 K_R3")
    for k in range(F1):
        if k == 4: A("s_waitcnt lgkmcnt(1)")
        row_load(DAT + 2*k, TI + k)
    L("K_R3")
    A(f"s_cmp_lt_u32 s{SWV}, 8")
    A("s_cbranch_scc1 K_R4")
    scan_and_decide("g", False)
    L("K_R4")
    A(f"s_cmp_eq_u32 s{SFAST}, 0")
    A("s_cbranch_scc1 K_SLOW")
    A(f"v_add_u32 v{Q+3}, v{VP}, v2")
    A(f"ds_read_b32 v{Q}, v{Q+3} offset:{PRIV_N*4}")
    for k in range(R // 4):
        A(f"ds_read_b128 {vr(EV+4*k,4)}, v{VP} offset:{PRIV_N*4 + 16*k}")
    A(f"ds_read_b128 {vr(OG[0],4)}, v{VP} offset:{R*4}")
    A(f"s_mul_i32 s{T0}, s{SLEN}, s{SWV}")
    A(f"s_add_u32 s{T3}, s{T0}, s{SLEN}")
    A(f"s_lshl_b32 s{T0}, s{T0}, 2")
    A(f"s_lshl_b32 s{T3}, s{T3}, 2")
    A(f"s_min_u32 s{T0}, s{T0}, s{STOT}")
    A(f"s_min_u32 s{T3}, s{T3}, s{STOT}")
    A(f"s_sub_u32 s{SNN}, s{T3}, s{T0}")
    A(f"s_lshr_b32 s{SNN}, s{SNN}, 2")
    A(f"v_cmp_gt_u32 vcc, s{T0}, v{VB4}")
    A(f"v_cmp_lt_u32 {sr(TP,2)}, s{T0}, v{VEND}")
    A(f"s_and_b64 vcc, vcc, {sr(TP,2)}")
    A(f"s_cselect_b32 s{SLP}, 1, 0")
    A(f"v_cmp_gt_u32 vcc, s{T3}, v{VB4}")
    A(f"v_cmp_lt_u32 {sr(TP,2)}, s{T3}, v{VEND}")
    A(f"s_and_b64 vcc, vcc, {sr(TP,2)}")
    A(f"s_cselect_b32 s{STAIL}, 1, 0")
    A(f"v_cmp_le_u32 vcc, s{SNN}, v1")
    A(f"s_movk_i32 s{T2}, {QROW//4}")
    A(f"s_movk_i32 s{T3}, {HROW//4}")
    A(f"s_mov_b32 s{SREM}, s{SNN}")
    A("s_waitcnt lgkmcnt(0)")
    A(f"v_and_b32 v{Z2}, 0xfc, v{EV}")
    A(f"v_and_b32 v{Q+1}, 0xfc, v{Q}")
    A(f"v_mad_u32_u24 v{Z2+1}, v{Z2}, s{T2}, v{VQ16}")
    A("s_setprio 3")
    A(f"v_mov_b32_dpp v{Q+2}, v{Q+1} wave_shr:1 row_mask:0xf bank_mask:0xf")
    A(f"v_cmp_ne_u32 {sr(SM,2)}, v{Q+1}, v{Q+2}")
    A(f"ds_read_b128 {vr(Q,4)}, v{Z2+1}")
    A(f"s_or_b64 {sr(SM,2)}, {sr(SM,2)}, vcc")
    for k in range(4):
        A(f"v_add_u32 v{OG[0]+k}, v{OG[0]+k}, v2")
    def tail_prep():
        A(f"v_lshlrev_b32 v{Z+1}, 2, v{VC}")
        A(f"v_lshlrev_b32 v{Z+2}, 4, v{VG}")
        for mt in range(3):
            A(f"v_add_u32 v{T+3}, {64*mt}, v{Z+1}")
            A(f"ds_bpermute_b32 v{T+mt}, v{T+3}, v{VDEG}")
        A(f"s_lshl_b32 s{T0}, s{SWV}, 6")
        A(f"v_add_u32 v{Z+3}, s{T0}, v{Z+2}")
        A(f"ds_read_b128 {vr(B2F,4)}, v{Z+3} offset:{L_CV+2048}")
        A(f"s_movk_i32 s{T1}, {HROW}")
        A(f"v_mad_u32_u24 v{AD}, v{VC}, s{T1}, v{Z+2}")
        A(f"v_lshlrev_b32 v{OUTA}, 8, v{VC}")
        A(f"v_lshl_add_u32 v{OUTA}, v{VG}, 3, v{OUTA}")
        A(f"v_add_u32 v{Z+2}, {L_ZROW}, v{Z+2}")
        A(f"v_add_u32 v{AD+2}, {L_H + 32*HROW}, v{AD}")
        A(f"v_add_u32 v{AD+1}, {L_H + 16*HROW}, v{AD}")
        A(f"v_add_u32 v{AD}, {L_H}, v{AD}")
        A("s_waitcnt lgkmcnt(0)")
        for mt in range(3):
            A(f"v_cmp_eq_u32 vcc, 0, v{T+mt}")
            A(f"v_cvt_f32_u32 v{T+mt}, v{T+mt}")
            A(f"v_mul_f32 v{T+mt}, 0x3e800000, v{T+mt}")
            A(f"v_cndmask_b32 v{AD+mt}, v{AD+mt}, v{Z+2}, vcc")
            sel = "op_sel_hi:[1,0]" if mt % 2 == 0 else "op_sel:[0,1]"
            A(f"v_pk_mul_f32 {vr(OV+4*mt,2)}, {vr(B2F,2)}, {vr(T+(mt&2),2)} {sel}")
            A(f"v_pk_mul_f32 {vr(OV+4*mt+2,2)}, {vr(B2F+2,2)}, {vr(T+(mt&2),2)} {sel}")
    def w2_load():
        A(f"s_mov_b32 s{SW2}, 0")
        A(f"s_lshl_b32 s{T0}, s{SWV}, 13")
        A(f"s_add_u32 s{T0}, s{T0}, {hex(WS_W2F)}")
        A(f"s_add_u32 s{T1}, s{T0}, 4096")
        for k in range(8):
            A(f"buffer_load_dwordx4 {vr(W2R+4*k,4)}, v{VL16}, {sr(SW,4)}, s{T0 + k//4} offen offset:{(k%4)*1024} sc1")
    A(f"s_cmp_ge_u32 s{SWV}, 8")
    A("s_cbranch_scc1 K_NOTP")
    tail_prep()
    L("K_NOTP")
    for k in range(F1, R):
        row_load(DAT + 2*k, TI + k)
    A(f"v_mov_b32 v{LO}, v{Z2}")
    A(f"v_mov_b32 v{PZ}, 0")
    A(f"v_mov_b32 v{PZ+1}, 0")
    VW = 2 * (R - 1)
    if STAMP:
        A(f"s_waitcnt vmcnt({VW})")
        stamp(9)
    A(f"s_cmp_eq_u32 s{SNN}, 0")
    A("s_cbranch_scc1 K_WDONE")
    A("s_branch K_HC0")

    def e_sel(s):
        base = EV + (s & ~1)
        return (vr(base, 2), "op_sel_hi:[1,0,1]") if s % 2 == 0 else (vr(base, 2), "op_sel:[0,1,0]")
    def part_z1(s, z):
        ep, es = e_sel(s)
        return [f"v_pk_fma_f32 {vr(z,2)}, {vr(W,2)}, {ep}, {vr(Q,2)} {es}",
                f"v_pk_fma_f32 {vr(z+2,2)}, {vr(W+2,2)}, {ep}, {vr(Q+2,2)} {es}"]
    def part_z2(s, z, zo=None, lo=LO):
        d = DAT + 2*s
        zo = z if zo is None else zo
        return [f"v_lshlrev_b64 {vr(lo,2)}, 16, {vr(d,2)}",
                f"v_pk_fma_f32 {vr(zo,2)}, {vr(d,2)}, {C2}, {vr(z,2)}",
                f"v_pk_fma_f32 {vr(zo+2,2)}, {vr(lo,2)}, {C2}, {vr(z+2,2)}"]
    def part_exp(z): return [f"v_exp_f32 v{T+k}, v{z+k}" for k in range(4)]
    def part_nd(z):
        return [f"v_pk_fma_f32 {vr(NN,2)}, {vr(NN,2)}, {vr(T,2)}, {vr(NN,2)}",
                f"v_pk_fma_f32 {vr(NN+2,2)}, {vr(NN+2,2)}, {vr(T+2,2)}, {vr(NN+2,2)}",
                f"v_pk_fma_f32 {vr(NN,2)}, {vr(z,2)}, {vr(DD,2)}, {vr(NN,2)}",
                f"v_pk_fma_f32 {vr(NN+2,2)}, {vr(z+2,2)}, {vr(DD+2,2)}, {vr(NN+2,2)}",
                f"v_pk_fma_f32 {vr(DD,2)}, {vr(DD,2)}, {vr(T,2)}, {vr(DD,2)}",
                f"v_pk_fma_f32 {vr(DD+2,2)}, {vr(DD+2,2)}, {vr(T+2,2)}, {vr(DD+2,2)}"]
    def addr_prep(k):
        A("s_waitcnt lgkmcnt(0)")
        A(f"v_pk_add_f32 {vr(OG[k],2)}, {vr(OG[k],2)}, v[2:3] op_sel:[0,1]")
        A(f"v_pk_add_f32 {vr(OG[k]+2,2)}, {vr(OG[k]+2,2)}, v[2:3] op_sel:[0,1]")
    def refill(s):
        og = OG[(s // 4) % 2]
        if s % 4 == 0:
            A(f"ds_read_b128 {vr(OG[(s//4+1)%2],4)}, v{VP} offset:{(R+s+4)*4}")
        row_load(DAT + 2*s, og + s % 4, pair=True)
        if s % 4 == 3:
            addr_prep((s // 4 + 1) % 2)
            A(f"ds_read_b128 {vr(EV+s-3,4)}, v{VP} offset:{PRIV_N*4 + (R+s-3)*4}")
    L("K_LOOP")
    for g in range(R // 4):
        L(f"K_G{g}")
        A(f"s_and_b32 s{T0}, s{SM}, {hex(0xF << (4*g))}")
        A(f"s_cbranch_scc1 K_S{4*g}")
        zz = [Z, Z2]
        s0 = 4*g
        for x in part_z1(s0, zz[0]): A(x)
        A(f"s_waitcnt vmcnt({VW})")
        for x in part_z2(s0, zz[0]): A(x)
        refill(s0)
        for k in range(4):
            s = s0 + k
            z, zn = zz[k % 2], zz[(k + 1) % 2]
            ex, nd = part_exp(z), part_nd(z)
            if k < 3:
                a, b = part_z1(s + 1, zn), part_z2(s + 1, zn)
                A(ex[0]); A(a[0]); A(ex[1]); A(a[1]); A(ex[2])
                A(f"s_waitcnt vmcnt({VW})")
                A(b[0]); A(ex[3]); A(nd[0]); A(b[1]); A(nd[1]); A(nd[2]); A(b[2]); A(nd[3])
                refill(s + 1)
                A(nd[4]); A(nd[5])
            else:
                for x in ex + nd: A(x)
    L("K_PEND")
    A(f"v_add_u32 v{VP}, {R*4}, v{VP}")
    A(f"s_lshr_b64 {sr(SM,2)}, {sr(SM,2)}, {R}")
    A(f"s_sub_u32 s{SREM}, s{SREM}, {R}")
    for thr, p in PRIO_T:
        A(f"s_cmp_gt_u32 s{SREM}, {thr}")
        A("s_cbranch_scc1 K_LOOP")
        A(f"s_setprio {p}")
    A(f"s_cmp_ge_u32 s{SWV}, 8")
    A("s_cbranch_scc1 K_LOOP")
    A(f"s_cmp_eq_u32 s{SW2}, 0")
    A("s_cbranch_scc1 K_LOOP")
    w2_load()
    A("s_branch K_LOOP")
    for s in range(R):
        L(f"K_S{s}")
        A(f"s_bitcmp1_b32 s{SM}, {s}")
        A(f"s_cbranch_scc1 K_H{s}")
        for x in part_z1(s, Z): A(x)
        A(f"s_waitcnt vmcnt({VW})")
        for x in part_z2(s, Z) + part_exp(Z) + part_nd(Z): A(x)
        L(f"K_J{s}")
        refill(s)
        if s % 4 == 3:
            A(f"s_branch K_G{s//4+1}" if s + 1 < R else "s_branch K_PEND")
    def fold():
        for k in range(4):
            A(f"v_rcp_f32 v{T+k}, v{DD+k}")
        A(f"v_pk_fma_f32 {vr(PZ,2)}, {vr(DD,2)}, {vr(NN,2)}, {vr(PZ,2)}")
        A(f"v_pk_fma_f32 {vr(PZ,2)}, {vr(DD+2,2)}, {vr(NN+2,2)}, {vr(PZ,2)}")
        A(f"v_pk_mul_f32 {vr(Z,2)}, {vr(NN,2)}, {vr(T,2)}")
        A(f"v_pk_mul_f32 {vr(Z+2,2)}, {vr(NN+2,2)}, {vr(T+2,2)}")
    def lead_flush():
        A(f"v_add_u32 v{Z2}, s{SSIDE}, v{VL16}")
        A(f"s_lshl_b32 s{T0}, s{SWV}, 2")
        A(f"v_mov_b32 v{Z2+1}, s{T0}")
        A(f"v_mov_b32 v{Z2+2}, 1")
        A(f"ds_write_b128 v{Z2}, {vr(Z,4)}")
        A(f"ds_write_b32 v{Z2+1}, v{Z2+2} offset:{L_SFL}")
        A(f"s_mov_b32 s{SLP}, 0")
    for s in range(R):
        L(f"K_H{s}")
        A(f"s_cmp_eq_u32 s{SREM}, {s}")
        A("s_cbranch_scc1 K_LAST")
        A(f"v_and_b32 v{LO}, 0xfc, v{EV+s}")
        A(f"v_mad_u32_u24 v{LO+1}, v{LO}, s{T2}, v{VQ16}")
        A(f"ds_read_b128 {vr(Q,4)}, v{LO+1}")
        fold()
        A(f"s_cmp_lg_u32 s{SLP}, 0")
        A(f"s_cbranch_scc1 K_LS{s}")
        A(f"v_cvt_pk_bf16_f32 v{Z}, v{Z}, v{Z+1}")
        A(f"v_cvt_pk_bf16_f32 v{Z+1}, v{Z+2}, v{Z+3}")
        A(f"ds_write_b64 v{VA}, {vr(Z,2)}")
        L(f"K_HC{s}")
        A(f"v_mad_u32_u24 v{VA}, v{LO}, s{T3}, v{VH8}")
        A(f"s_waitcnt vmcnt({VW}) lgkmcnt(0)")
        for x in part_z1(s, Z) + part_z2(s, Z, NN) + part_exp(NN): A(x)
        A(f"v_pk_add_f32 {vr(DD,2)}, {vr(T,2)}, 1.0 op_sel_hi:[1,0]")
        A(f"v_pk_add_f32 {vr(DD+2,2)}, {vr(T+2,2)}, 1.0 op_sel_hi:[1,0]")
        A(f"s_branch K_J{s}")
        L(f"K_LS{s}")
        lead_flush()
        A(f"s_branch K_HC{s}")
    L("K_LAST")
    A(f"s_lshl_b32 s{T0}, s{SWV}, 2")
    A(f"v_mov_b32 v{LO}, s{T0}")
    A(f"v_add_u32 v{LO+1}, s{SSIDE}, v{VL16}")
    A(f"ds_read_b32 v{Z2}, v{LO} offset:{L_SFL+4}")
    A(f"ds_read_b128 {vr(Q,4)}, v{LO+1} offset:1024")
    fold()
    A(f"s_cmp_eq_u32 s{SLP}, 0")
    A("s_cbranch_scc1 K_L1")
    A("s_waitcnt lgkmcnt(0)")
    lead_flush()
    A("s_branch K_WDONE")
    L("K_L1")
    A(f"s_cmp_eq_u32 s{STAIL}, 0")
    A("s_cbranch_scc1 K_L3")
    A(f"s_mov_b32 s{SSP}, {SPIN}")
    L("K_L2")
    A("s_waitcnt lgkmcnt(0)")
    A(f"v_readfirstlane_b32 s{T0}, v{Z2}")
    A(f"s_cmp_lg_u32 s{T0}, 0")
    A("s_cbranch_scc1 K_L2B")
    A(f"s_sub_u32 s{SSP}, s{SSP}, 1")
    A("s_cbranch_scc1 K_L2B")
    A("s_sleep 2")
    A(f"ds_read_b32 v{Z2}, v{LO} offset:{L_SFL+4}")
    A(f"ds_read_b128 {vr(Q,4)}, v{LO+1} offset:1024")
    A("s_branch K_L2")
    L("K_L2B")
    A(f"v_pk_add_f32 {vr(Z,2)}, {vr(Z,2)}, {vr(Q,2)}")
    A(f"v_pk_add_f32 {vr(Z+2,2)}, {vr(Z+2,2)}, {vr(Q+2,2)}")
    L("K_L3")
    A(f"v_cvt_pk_bf16_f32 v{Z}, v{Z}, v{Z+1}")
    A(f"v_cvt_pk_bf16_f32 v{Z+1}, v{Z+2}, v{Z+3}")
    A(f"ds_write_b64 v{VA}, {vr(Z,2)}")
    L("K_WDONE")
    stamp(10)
    A(f"v_add_f32 v{T}, v{PZ}, v{PZ+1}")
    A(f"v_mov_b32 v{Z2+1}, 0x207")
    A(f"v_cmp_class_f32 vcc, v{T}, v{Z2+1}")
    A(f"v_mov_b32 v{Z2+2}, 0")
    A(f"s_mov_b32 s{TP}, {hex(C_NLN2)}")
    A(f"s_xor_b32 s{T0}, s{SWV}, 15")
    A(f"s_or_b32 s{T0}, s{T0}, s2")
    A("s_cbranch_scc1 K_NOCLR")
    srd(SO, PDBG, 256)
    A(f"buffer_store_dword v{Z2+2}, v2, {sr(SO,4)}, 0 offen sc1")
    L("K_NOCLR")
    srd(SO, POUT, N * D * 2)
    A("s_cbranch_vccz K_NOG")
    A(f"ds_write_b32 v{Z2+2}, v{Z2+1} offset:{L_FLAG+8}")
    L("K_NOG")
    A(f"s_cmp_ge_u32 s{SWV}, 8")
    A("s_cbranch_scc1 K_B4")
    A(f"s_cmp_eq_u32 s{SW2}, 0")
    A("s_cbranch_scc1 K_B4")
    w2_load()
    L("K_B4")
    A("s_waitcnt vmcnt(0) lgkmcnt(0)")
    A("s_barrier")
    stamp(11)
    A(f"ds_read_b32 v{Z2+3}, v{Z2+2} offset:{L_FLAG+8}")
    A(f"s_cmp_ge_u32 s{SWV}, 8")
    A("s_cbranch_scc1 K_CHK")
    HB = [48 + 4*k for k in range(8)]
    ACC = [12, 16, 20]
    seq = [(mt, s) for mt in range(3) for s in range(8)]
    PRE = 7
    for k in range(PRE):
        mt, s = seq[k]
        A(f"ds_read_b128 {vr(HB[k%8],4)}, v{AD+mt} offset:{s*64}")
    def epi(mt):
        for r in range(4):
            A(f"v_fma_f32 v{OV+4*mt+r}, v{ACC[mt]+r}, s{TP}, v{OV+4*mt+r}")
        A(f"v_cvt_pk_bf16_f32 v{32+2*mt}, v{OV+4*mt}, v{OV+4*mt+1}")
        A(f"v_cvt_pk_bf16_f32 v{33+2*mt}, v{OV+4*mt+2}, v{OV+4*mt+3}")
    for k, (mt, s) in enumerate(seq):
        if k + PRE < 24:
            m2, s2 = seq[k+PRE]
            A(f"ds_read_b128 {vr(HB[(k+PRE)%8],4)}, v{AD+m2} offset:{s2*64}")
        A(f"s_waitcnt lgkmcnt({min(PRE, 23-k)})")
        c = "0" if s == 0 else vr(ACC[mt], 4)
        A(f"v_mfma_f32_16x16x32_bf16 {vr(ACC[mt],4)}, {vr(W2R+4*s,4)}, {vr(HB[k%8],4)}, {c}")
        if s == 4 and mt > 0:
            epi(mt - 1)
    A("s_nop 7")
    epi(2)
    L("K_CHK")
    A("s_waitcnt lgkmcnt(0)")
    A(f"v_readfirstlane_b32 s{T2}, v{Z2+3}")
    A(f"s_lshl_b32 s{T1}, s{SMODE}, 31")
    A(f"s_or_b32 s{T2}, s{T2}, s{T1}")
    A(f"s_cmp_gt_i32 s{T2}, 0")
    A("s_cbranch_scc1 K_REDO")
    A(f"s_cmp_ge_u32 s{SWV}, 8")
    A("s_cbranch_scc1 K_END2")
    A(f"s_add_u32 s{T2}, s{SOUT}, 4096")
    A(f"s_add_u32 s{T1}, s{SOUT}, 8192")
    A(f"buffer_store_dwordx2 v[32:33], v{OUTA}, {sr(SO,4)}, s{SOUT} offen")
    A(f"buffer_store_dwordx2 v[34:35], v{OUTA}, {sr(SO,4)}, s{T2} offen")
    A(f"s_mov_b64 exec, {sr(SQM,2)}")
    A(f"buffer_store_dwordx2 v[36:37], v{OUTA}, {sr(SO,4)}, s{T1} offen")
    A("s_mov_b64 exec, -1")
    L("K_END2")
    if STAMP:
        stamp(12)
        A("s_waitcnt vmcnt(0)")
        stamp(13)
        A(f"v_writelane_b32 v{VST}, s26, 14")
        A(f"s_lshl_b32 s{T0}, s2, 4")
        A(f"s_add_u32 s{T0}, s{T0}, s{SWV}")
        A(f"s_lshl_b32 s{T0}, s{T0}, 8")
        A(f"s_add_u32 s{T0}, s{T0}, {hex(WS_DBG)}")
        A(f"buffer_store_dword v{VST}, v2, {sr(SW,4)}, s{T0} offen")
    L("K_END")
    A("s_endpgm")

    L("K_WL")
    for k in range(8):
        A(f"s_mov_b64 exec, {sr(MK[k],2)}")
        A("s_cbranch_execz K_WB")
        A(f"v_add_lshl_u32 v{PS+k}, v{PS+k}, v{RK+k}, 1")
        A(f"ds_write_b64 v{PS+k}, {vr(RC+2*k,2)} offset:{L_LIST}")
    A("s_branch K_WB")
    L("K_REDO")
    A(f"s_mov_b32 s{SMODE}, 1")
    A("s_setprio 0")
    A(f"v_and_b32 v{VC}, 15, v1")
    A(f"v_lshrrev_b32 v{VG}, 4, v1")
    A(f"v_mov_b32 v{VDEG}, 0")
    A(f"v_mov_b32 v{PZ}, 0")
    A(f"s_mov_b32 s{SFIRST}, 1")
    A("v_lshrrev_b32 v31, 1, v0")
    A("v_lshlrev_b32 v31, 11, v31")
    def reset_round():
        A("s_barrier")
        A(f"s_cmp_lg_u32 s{SWV}, 0")
        uid[0] += 1
        A(f"s_cbranch_scc1 K_RR{uid[0]}")
        A("v_mov_b32 v89, 0")
        A("ds_write_b32 v2, v89")
        A(f"ds_write_b32 v89, v89 offset:{L_FLAG}")
        A(f"ds_write_b32 v89, v89 offset:{L_GC+16}")
        A("s_waitcnt lgkmcnt(0)")
        L(f"K_RR{uid[0]}")
        A("s_barrier")
    reset_round()
    A(f"s_cmp_ge_u32 s{SWV}, 8")
    A("s_cbranch_scc1 K_B3")
    A("s_branch K_REC0")
    L("K_SLOW")
    A(f"s_cmp_eq_u32 s{SFIRST}, 0")
    A("s_cbranch_scc1 K_SL0")
    for k in range(12):
        A(f"v_mov_b32 v{SACC+k}, 0")
    L("K_SL0")
    for i in range(3):
        A(f"s_add_u32 s{T0}, s{SWV}, {16*i}")
        A(f"v_readlane_b32 s{T1}, v{VB4}, s{T0}")
        A(f"v_readlane_b32 s{T2}, v{VCNT}, s{T0}")
        A(f"s_mul_i32 s{T3}, s{T0}, {QROW}")
        A(f"s_cmp_eq_u32 s{T2}, 0")
        A(f"s_cbranch_scc1 K_SLN{i}")
        A(f"v_add_u32 v{Z2}, s{T3}, v{VQ16}")
        A(f"ds_read_b128 {vr(Q,4)}, v{Z2}")
        A(f"s_lshl_b32 s{T1}, s{T1}, 1")
        A(f"v_mov_b32 v{VA}, s{T1}")
        L(f"K_SLL{i}")
        A(f"ds_read_b64 {vr(EV,2)}, v{VA} offset:{L_LIST}")
        A(f"v_add_u32 v{VA}, 8, v{VA}")
        A("s_waitcnt lgkmcnt(0)")
        row_load(DAT + 2, EV)
        for x in part_z1(1, Z): A(x)
        A("s_waitcnt vmcnt(0)")
        for x in part_z2(1, Z, lo=NN) + part_exp(Z): A(x)
        A("s_nop 0")
        for k in range(4):
            A(f"v_add_f32 v{T+k}, 1.0, v{T+k}")
        for k in range(4):
            A(f"v_rcp_f32 v{T+k}, v{T+k}")
        A(f"s_sub_u32 s{T2}, s{T2}, 4")
        for k in range(4):
            A(f"v_fmac_f32 v{SACC+4*i+k}, v{Z+k}, v{T+k}")
        A(f"s_cmp_lg_u32 s{T2}, 0")
        A(f"s_cbranch_scc1 K_SLL{i}")
        L(f"K_SLN{i}")
    A(f"s_mov_b32 s{SFIRST}, 0")
    A("s_waitcnt lgkmcnt(0)")
    reset_round()
    A(f"s_cmp_eq_u32 s{SLP}, 0")
    A("s_cbranch_scc1 K_SLFIN")
    A(f"s_cmp_ge_u32 s{SWV}, 8")
    A("s_cbranch_scc1 K_B3")
    A(f"v_add_u32 v{PZ}, -16, v{PZ}")
    A(f"v_add_u32 v{PZ+1}, 128, v{PZ+1}")
    A("s_branch K_RECS")
    L("K_SLFIN")
    A(f"v_mov_b32 v{PZ}, 0")
    A(f"v_mov_b32 v{PZ+1}, 0")
    for i in range(3):
        if i == 2:
            A(f"s_cmp_ge_u32 s{SWV}, {NPB-32}")
            A("s_cbranch_scc1 K_WDONE")
        A(f"s_add_u32 s{T0}, s{SWV}, {16*i}")
        A(f"s_mul_i32 s{T0}, s{T0}, {HROW}")
        A(f"v_add_u32 v{Z2}, s{T0}, v{VH8}")
        A(f"v_cvt_pk_bf16_f32 v{Z}, v{SACC+4*i}, v{SACC+4*i+1}")
        A(f"v_cvt_pk_bf16_f32 v{Z+1}, v{SACC+4*i+2}, v{SACC+4*i+3}")
        A(f"ds_write_b64 v{Z2}, {vr(Z,2)}")
    tail_prep()
    A("s_branch K_WDONE")
    L("K_CODE_END")

hdr = f"""; Kernarg layout for this problem (88 bytes, ptrs only, base s[0:1]):
; @launch grid=({NB},1,1) block=(1024,1,1) lds={LDS}
.amdgcn_target "amdgcn-amd-amdhsa--gfx950"
"""
gen()
vg = 128
out.extend(['.section .rodata,"a"', ".p2align 6", f".amdhsa_kernel {KN}",
    f"  .amdhsa_next_free_vgpr {vg}", f"  .amdhsa_next_free_sgpr 102", f"  .amdhsa_accum_offset {vg}",
    "  .amdhsa_group_segment_fixed_size 0", "  .amdhsa_kernarg_size 88", "  .amdhsa_user_sgpr_count 2",
    "  .amdhsa_user_sgpr_kernarg_segment_ptr 1", "  .amdhsa_system_sgpr_workgroup_id_x 1", ".end_amdhsa_kernel"])
txt = hdr + "\n".join(out) + "\n"
dst = sys.argv[1] if len(sys.argv) > 1 else f"fused.s"
open(dst, "w").write(txt)
print("wrote", dst, "LDS", LDS)
```

```python
import sys, struct, os

NAME = "standalone__edge_featured_mpnn_mpnn__graph"
KN = NAME + "_kernel"
N, E, D, H = 10000, 160000, 128, 256
NB, NPB, CH = 250, 40, 640
WS_REC = 0x500000
WS_OFS = 0x680000
WS_PF = 0x700000
WS_W2F = 0x710000
WS_DBG = 0x2000000
WS_BYTES = 0x10000000
R = 8
PRIO_T = eval(os.environ.get("PRIO_T", "((32, 2), (21, 1), (10, 0))"))
STAMP = os.environ.get("STAMP", "0") == "1"
PI = [1, 3, 0, 2]
FBASE = 0x4B000000
SPIN = 1 << 16
PRD = os.environ.get('PRD', '')
PSF = os.environ.get('PSF', 'sc1')
WIL = int(os.environ.get('WIL', '0'))
WST = int(os.environ.get('WST', '1'))
CPW = int(os.environ.get('CPW', '0'))
WSB = int(os.environ.get('WSB', '0')) << 20
TCH = int(os.environ.get('TCH', '0'))
PLATE = int(os.environ.get('PLATE', '2'))
F1 = int(os.environ.get('F1', '4'))
SLP_F = int(os.environ.get('SLPF', '0'))
SLP_N = int(os.environ.get('SLP', '2'))

def f32bits(x): return struct.unpack("<I", struct.pack("<f", x))[0]
C_NLOG2E = f32bits(-1.4426950408889634)
C_NLN2 = f32bits(-0.6931471805599453)

out = []
def A(s): out.append("    " + s)
def L(s): out.append(s + ":")
def CM(s): out.append("    ; " + s)
def vr(a, n): return f"v[{a}:{a+n-1}]"
def sr(a, n): return f"s[{a}:{a+n-1}]"

PX, PE, PSRC, PDST, PW1, PB1, PW2, PB2 = 4, 6, 8, 10, 12, 14, 16, 18
POUT, PDBG, PWS = 20, 22, 24

def srd(dst, base, nrec, off=None):
    if off is not None:
        A(f"s_add_u32 s{dst}, s{base}, {off}")
        A(f"s_addc_u32 s{dst+1}, s{base+1}, 0")
        src1 = dst + 1
    else:
        A(f"s_mov_b32 s{dst}, s{base}")
        src1 = base + 1
    A(f"s_and_b32 s{dst+1}, s{src1}, 0xffff")
    A(f"s_mov_b32 s{dst+2}, {hex(nrec)}")
    A(f"s_mov_b32 s{dst+3}, 0x20000")

NST = 0
def stamp(k):
    if STAMP: A(f"s_memrealtime s[100:101]"); A("s_waitcnt lgkmcnt(0)"); A(f"v_writelane_b32 v{VST}, s100, {k}")

QROW, HROW, PROW = 1040, 528, 272
L_CNT, L_FLAG, L_SFL, L_ZROW, L_GC, L_TOK = 0, 256, 272, 352, 864, 892
L_CV = 896
L_HIST = L_CV + 2560
L_PRIV = L_HIST + 1024
ZERO_B = L_PRIV
PRIV_N = 64 + R + 8
PRIV_B = PRIV_N * 8
L_H = L_PRIV + 16 * PRIV_B
L_XT = L_H + NPB * HROW
L_SIDE = L_XT
L_Q = L_XT + 20480
L_S = L_Q + NPB * QROW
L_SB = L_H + 10240
L_PT = L_Q
LDS = L_S + 65536
L_LIST = L_HIST
assert LDS <= 163840 and L_XT - L_LIST >= 32000 and L_H % 16 == 0 and L_Q % 16 == 0 and L_S % 16 == 0 and L_XT % 16 == 0
W1B_EARLY = 0
W1B_AT = 2
W1B_H = int(os.environ.get("W1BH", "4"))
GPR = int(os.environ.get("GPR", "2"))
WB0 = int(os.environ.get("WB0", "1"))
GWD = int(os.environ.get("GWD", "99"))
PD0 = int(os.environ.get("PD0", "0"))
WIN = 16 * 63
DUMMY = FBASE + 0x7FF000

VLF, VH8, VL16, VT16, VQ16 = 3, 4, 5, 6, 7
W, Q, NN, DD, Z, Z2, T, LO, PZ = 8, 12, 16, 20, 24, 28, 32, 36, 38
VA, VP, VDEG, VB4, VCNT, VPL, VM, VEND = 40, 41, 42, 43, 44, 45, 46, 47
EV, OG, DAT = 48, [56, 60], 64
AD, OUTA, OV, B2F = 80, 83, 84, 92
XF = 48
WL, PT = 96, 112
W2R = 96
RC = 96
VST = 45
SACC = 112

def gen():
    out.extend([".text", f".globl {KN}", ".p2align 8", f".type {KN},@function"])
    L(KN)
    ST, SW, SO, SX, SY, SZ = 28, 32, 36, 40, 44, 48
    MK = [4 + 2*k for k in range(8)]
    SC = 60
    SMODE, SFIRST, SRND, SFAST, STOK, SSP = 62, 63, 64, 65, 66, 67
    SM = 68
    SREM, STOT, SLP, SNN, SWV = 70, 71, 72, 73, 3
    SN40, SEX = 74, 76
    T0, T1, T2, T3, TP = 78, 79, 80, 81, 82
    STAIL, SSIDE, SLEN, SOUT, SWO = 84, 85, 86, 87, 88
    SQM, P0, P1 = 90, 92, 93
    SB8, SW2, SOWN, STAG, SN80, SCB = 75, 89, 52, 54, 55, 56
    C2 = sr(SC, 2)
    SCAN = ("row_shr:2 row_mask:0xf bank_mask:0xf bound_ctrl:0", "row_shr:4 row_mask:0xf bank_mask:0xf bound_ctrl:0",
            "row_shr:8 row_mask:0xf bank_mask:0xf bound_ctrl:0", "row_bcast:15 row_mask:0xa bank_mask:0xf", "row_bcast:31 row_mask:0xc bank_mask:0xf")
    VC, VG = 36, 37
    GRT = 34
    VZ, VONE = VEND, VM

    A("s_load_dwordx16 s[4:19], s[0:1], 0")
    A("s_load_dwordx4 s[20:23], s[0:1], 64")
    A("s_load_dwordx2 s[24:25], s[0:1], 80")
    A("s_memrealtime s[26:27]")
    CM("pull the code towards the L2 right away (one load per 128-B line; lanes past the code are out of range)")
    A(f"s_getpc_b64 {sr(SX,2)}")
    L("K_PC0")
    A("v_lshlrev_b32 v126, 7, v0")
    A(f"s_and_b32 s{SX+1}, s{SX+1}, 0xffff")
    if CPW:
        A(f"s_cmp_lt_u32 s2, {CPW}")
        A(f"s_cselect_b32 s{SX+2}, K_CODE_END-K_PC0, 0")
    else:
        A(f"s_mov_b32 s{SX+2}, K_CODE_END-K_PC0")
    A(f"s_mov_b32 s{SX+3}, 0x20000")
    A(f"buffer_load_dword v{VDEG}, v126, {sr(SX,4)}, 0 offen")
    A(f"s_cmp_ge_u32 s2, {NB}")
    A("s_cbranch_scc1 K_END")
    A("v_and_b32 v1, 63, v0")
    A("v_lshrrev_b32 v48, 6, v0")
    A(f"v_lshlrev_b32 v{VT16}, 4, v0")
    A(f"v_readfirstlane_b32 s{SWV}, v48")
    A("v_lshlrev_b32 v2, 2, v1")
    A(f"v_lshlrev_b32 v{VL16}, 4, v1")
    A(f"v_and_b32 v{VC}, 15, v1")
    A(f"v_lshrrev_b32 v{VG}, 4, v1")
    if STAMP: A(f"v_mov_b32 v{VST}, 0")
    A(f"v_mov_b32 v{VZ}, 0")
    A(f"v_mov_b32 v{VONE}, 1")
    for k in range(4):
        A(f"v_mov_b32 v{8+k}, 0")
    A(f"s_movk_i32 s{T0}, {ZERO_B//16}")
    A(f"v_cmp_gt_u32 vcc, s{T0}, v0")
    A(f"s_mul_i32 s{SN40}, s2, {NPB}")
    A(f"s_lshr_b32 s{SN80}, s2, 1")
    A(f"s_mul_i32 s{SN80}, s{SN80}, 80")
    A(f"s_and_b32 s{SCB}, s2, 1")
    A(f"s_and_saveexec_b64 {sr(SEX,2)}, vcc")
    A("s_cbranch_execz K_Z1")
    A(f"ds_write_b128 v{VT16}, v[8:11]")
    L("K_Z1")
    A(f"s_mov_b64 exec, {sr(SEX,2)}")
    A(f"s_mov_b32 s{P0}, 0x05040100")
    A(f"s_mov_b32 s{P1}, 0x07060302")
    A(f"s_mov_b32 s{SC}, {hex(C_NLOG2E)}")
    A(f"s_mov_b32 s{SC+1}, {hex(C_NLOG2E)}")
    A(f"s_mul_i32 s{SW2}, s{SWV}, {PRIV_B}")
    A(f"s_add_u32 s{SW2}, s{SW2}, {L_PRIV}")
    A(f"v_add_u32 v30, s{SW2}, v2")
    A(f"v_mov_b32 v31, {hex(DUMMY)}")
    A("ds_write_b32 v30, v31")
    A(f"ds_write_b32 v30, v31 offset:{(PRIV_N-64)*4}")
    A(f"s_cmp_lt_u32 s{SWV}, 8")
    A("s_cbranch_scc1 K_AUX")
    def common_setup():
        if WSB:
            A(f"s_add_u32 s{PWS}, s{PWS}, {hex(WSB)}")
            A(f"s_addc_u32 s{PWS+1}, s{PWS+1}, 0")
        srd(SW, PWS, WS_BYTES - WSB)
        A(f"s_lshl_b32 s{SSIDE}, s{SWV}, 10")
        A(f"s_add_u32 s{SSIDE}, s{SSIDE}, {L_SIDE}")
        A(f"s_mov_b32 s{SMODE}, 0")
        A(f"s_sub_u32 s{ST}, s{PWS}, {hex(FBASE)}")
        A(f"s_subb_u32 s{ST+1}, s{PWS+1}, 0")
        A(f"s_and_b32 s{ST+1}, s{ST+1}, 0xffff")
        A(f"s_mov_b32 s{ST+2}, {hex(FBASE + N*512)}")
        A(f"s_mov_b32 s{ST+3}, 0x20000")
        A(f"s_lshl_b32 s{SB8}, s2, 3")
        A(f"s_add_u32 s{SB8}, s{SB8}, {hex(WS_OFS)}")
        A(f"v_cvt_f32_u32 v{VLF}, v2")
        A(f"v_lshlrev_b32 v{VH8}, 3, v1")
        A(f"v_add_u32 v{VH8}, {L_H}, v{VH8}")
        A(f"v_add_u32 v{VQ16}, {L_Q}, v{VL16}")
        A(f"v_cmp_gt_u32 {sr(SQM,2)}, 8, v{VC}")
        A(f"s_lshl_b32 s{SOUT}, s{SN40}, 8")
        A(f"s_lshl_b32 s{T2}, s{SWV}, 5")
        A(f"s_add_u32 s{SOUT}, s{SOUT}, s{T2}")
        A(f"s_mov_b32 s{SFIRST}, 1")
    uid = [0]
    def arrive(c):
        A("s_mov_b64 exec, 1")
        A(f"ds_add_u32 v{VZ}, v{VONE} offset:{L_GC + 4*c}")
        A("s_mov_b64 exec, -1")
    def await_lds(off, n, vt, sdst, nonzero=False, slp=1):
        uid[0] += 1; u = uid[0]
        A(f"s_mov_b32 s{SSP}, {SPIN*16}")
        L(f"K_AW{u}")
        A(f"ds_read_b32 v{vt}, v{VZ} offset:{off}")
        A("s_waitcnt lgkmcnt(0)")
        A(f"v_readfirstlane_b32 s{sdst}, v{vt}")
        A(f"s_cmp_lg_u32 s{sdst}, 0" if nonzero else f"s_cmp_ge_u32 s{sdst}, {n}")
        A(f"s_cbranch_scc1 K_AWD{u}")
        A(f"s_sub_u32 s{SSP}, s{SSP}, 1")
        A("s_cbranch_scc1 K_END")
        A(f"s_sleep {slp}")
        A(f"s_branch K_AW{u}")
        L(f"K_AWD{u}")
    def perm4(dst, col, src=WL):
        for pr in range(4):
            a, b = src + 8*pr + (col >> 1), src + 8*pr + 4 + (col >> 1)
            A(f"v_perm_b32 v{dst+pr}, v{b}, v{a}, s{P1 if col & 1 else P0}")
    def franks(srdn):
        pass
    VPA, VQA, VB1A, VSW, VWO = 41, 38, 43, 44, 39
    A(f"v_lshlrev_b32 v{VWO}, 12, v{VG}")
    A(f"v_lshl_add_u32 v{VWO}, v{VC}, 4, v{VWO}")
    A(f"s_and_b32 s{T0}, s{SWV}, 3")
    A(f"s_bfe_u32 s{T3}, s{SWV}, 0x10002")
    A(f"s_lshl_b32 s{SWO}, s{T0}, 14")
    A(f"s_lshl_b32 s{T1}, s{T3}, 11")
    A(f"s_add_u32 s{T1}, s{T1}, s{SWO}")
    A(f"s_lshl_b32 s{T2}, s{SCB}, 8")
    A(f"s_add_u32 s{T1}, s{T1}, s{T2}")
    A(f"s_lshl_b32 s{T2}, s{T3}, 8")
    A(f"s_add_u32 s{SWO}, s{SWO}, s{T2}")
    A(f"s_add_u32 s{SWO}, s{SWO}, {128*512}")
    A("s_waitcnt lgkmcnt(0)")
    srd(SY, PW1, 257 * 512)
    if not WB0: A("s_barrier")
    for j in range(4):
        A(f"buffer_load_dwordx4 {vr(64+4*j,4)}, v{VWO}, {sr(SY,4)}, s{T1} offen offset:{512*j}")
    if WB0: A("s_barrier")
    if GPR: A(f"s_setprio {GPR}")
    if W1B_EARLY:
        for j in range(8):
            A(f"buffer_load_dwordx4 {vr(WL+4*j,4)}, v{VWO}, {sr(SY,4)}, s{SWO} offen offset:{512*j}")
    if W1B_H == 3:
        A(f"s_cmp_ge_u32 s{SWV}, 12")
        A("s_cbranch_scc1 K_NOH3")
        for j in range(8):
            A(f"buffer_load_dwordx4 {vr(WL+4*j,4)}, v{VWO}, {sr(SY,4)}, s{SWO} offen offset:{512*j}")
        L("K_NOH3")
    common_setup()
    A(f"s_lshl_b32 s{T0}, s{T0}, 10")
    A(f"s_add_u32 s{T0}, s{T0}, {L_S}")
    A(f"s_lshl_b32 s{T1}, s{T3}, 3")
    A(f"s_add_u32 s{T1}, s{T1}, s{T0}")
    A(f"v_add_u32 v12, s{T1}, v{VL16}")
    A(f"s_lshl_b32 s{T1}, s{T3}, 15")
    A(f"s_add_u32 s{T1}, s{T1}, s{T0}")
    A(f"v_add_u32 v{VSW}, s{T1}, v{VL16}")
    XA = 8
    A(f"v_xor_b32 v13, v{VG}, v{VC}")
    A("v_lshlrev_b32 v13, 4, v13")
    A(f"v_lshl_add_u32 v13, v{VC}, 8, v13")
    for s_ in range(4):
        A(f"v_xor_b32 v{XA+s_}, {64*s_}, v13")
    A(f"s_sub_u32 s{T0}, s{SWV}, 8")
    A(f"s_lshl_b32 s{T1}, s{T0}, 12")
    A(f"s_add_u32 s{T1}, s{T1}, {L_S}")
    A(f"v_add_u32 v{VA}, s{T1}, v{VL16}")
    A(f"s_lshr_b32 s{T1}, s{T0}, 2")
    A(f"s_lshl_b32 s{T1}, s{T1}, 4")
    A(f"s_and_b32 s{T2}, s{T0}, 3")
    A(f"s_add_u32 s{T1}, s{T1}, s{T2}")
    A(f"v_lshl_add_u32 v13, v{VG}, 2, s{T1}")
    A(f"s_movk_i32 s{T1}, {PROW}")
    A(f"v_lshlrev_b32 v{VPA}, 2, v13")
    A(f"v_mad_u32_u24 v{VPA}, v{VC}, s{T1}, v{VPA}")
    A(f"v_add_u32 v{VPA}, {L_PT}, v{VPA}")
    A(f"s_mov_b32 s{T2}, 0x8000")
    if W1B_H == 3:
        A(f"s_cmp_lt_u32 s{SWV}, 12")
        A("s_cbranch_scc1 K_NOH3B")
        A("s_waitcnt vmcnt(0)")
        L("K_NOH3B")
        A("s_waitcnt vmcnt(8)")
    else:
        A("s_waitcnt vmcnt(0)")
    stamp(1)
    for pr in range(2):
        for dw in range(4):
            a_, b_ = 64 + 8*pr + dw, 64 + 8*pr + 4 + dw
            A(f"v_perm_b32 v{48+(2*dw)*2+pr}, v{b_}, v{a_}, s{P0}")
            A(f"v_perm_b32 v{48+(2*dw+1)*2+pr}, v{b_}, v{a_}, s{P1}")
    for col in range(8):
        A(f"ds_write_b64 v12, {vr(48+2*col,2)} offset:{col*4096}")
    def w1b_loads():
        for j in range(8):
            A(f"buffer_load_dwordx4 {vr(WL+4*j,4)}, v{VWO}, {sr(SY,4)}, s{SWO} offen offset:{512*j}")
    if W1B_AT == 0: w1b_loads()
    A("s_waitcnt lgkmcnt(0)")
    arrive(0)
    if W1B_H == 4 and not WIL: w1b_loads()
    if W1B_H == 2:
        A(f"s_cmp_ge_u32 s{SWV}, 12")
        A("s_cbranch_scc1 K_NOH2")
        w1b_loads()
        L("K_NOH2")
    await_lds(L_GC, 13, 12, T0)
    stamp(3)
    if W1B_H == 1:
        A(f"s_cmp_ge_u32 s{SWV}, 12")
        A("s_cbranch_scc1 K_NOH1")
        w1b_loads()
        L("K_NOH1")
    AF, XR = 48, [64 + 4*k for k in range(8)]
    ACP = lambda mt: 16 + 4*mt
    for s_ in range(4):
        A(f"ds_read_b128 {vr(AF+4*s_,4)}, v{VA} offset:{s_*1024}")
    seq = [(mt, s_) for mt in range(5) for s_ in range(4)]
    PRE = 7
    def rdx(k):
        mt, s_ = seq[k]
        A(f"ds_read_b128 {vr(XR[k%8],4)}, v{XA+s_} offset:{L_XT + 4096*mt}")
    for k in range(PRE): rdx(k)
    def pack(mt):
        f = [ACP(mt) + r for r in range(4)]
        o = []
        o += [f"v_add_f32 v{f[r]}, 0, v{f[r]}" for r in range(4)]
        o += [f"v_add_u32 v{f[r]}, s{T2}, v{f[r]}" for r in range(4)]
        o += [f"v_sub_u32_sdwa v{f[r]}, v{f[r]}, v{f[r-1]} clamp dst_sel:DWORD dst_unused:UNUSED_PAD src0_sel:DWORD src1_sel:WORD_1" for r in range(1, 4)]
        o += [f"v_perm_b32 v{f[0]}, v{f[1]}, v{f[0]}, s{P1}", f"v_perm_b32 v{f[2]}, v{f[3]}, v{f[2]}, s{P1}"]
        return o
    pend = []
    for k, (mt, s_) in enumerate(seq):
        if k + PRE < 20: rdx(k + PRE)
        A(f"s_waitcnt lgkmcnt({min(PRE, 19-k)})")
        c = "0" if s_ == 0 else vr(ACP(mt), 4)
        A(f"v_mfma_f32_16x16x32_bf16 {vr(ACP(mt),4)}, {vr(AF+4*s_,4)}, {vr(XR[k%8],4)}, {c}")
        if WIL and WIL <= k < WIL + 8 * WST and (k - WIL) % WST == 0:
            j = (k - WIL) // WST
            A(f"buffer_load_dwordx4 {vr(WL+4*j,4)}, v{VWO}, {sr(SY,4)}, s{SWO} offen offset:{512*j}")
        if s_ == 3 and mt >= 1: pend += pack(mt - 1)
        for x in pend[:4]: A(x)
        pend = pend[4:]
    for x in pend: A(x)
    A("s_nop 1")
    for x in pack(4): A(x)
    for mt in range(5):
        A(f"ds_write_b32 v{VPA}, v{ACP(mt)} offset:{16*mt*PROW}")
        A(f"ds_write_b32 v{VPA}, v{ACP(mt)+2} offset:{16*mt*PROW + 128}")
    A("v_bfe_u32 v12, v0, 4, 4")
    A(f"s_movk_i32 s{T1}, {PROW}")
    A(f"v_lshlrev_b32 v13, 4, v{VC}")
    A(f"v_mad_u32_u24 v14, v12, s{T1}, v13")
    A(f"v_add_u32 v14, {L_PT}, v14")
    A("v_and_b32 v15, 0x70, v13")
    A("v_lshl_add_u32 v15, v12, 9, v15")
    A("v_and_b32 v13, 0x80, v13")
    A("v_lshl_add_u32 v15, v13, 1, v15")
    A(f"s_lshl_b32 s{T0}, s{SN80}, 9")
    A(f"s_lshl_b32 s{T1}, s{SCB}, 7")
    A(f"s_add_u32 s{T0}, s{T0}, s{T1}")
    A("s_waitcnt lgkmcnt(0)")
    arrive(1)
    await_lds(L_GC + 4, 9, 12, T3)
    stamp(4)
    A(f"s_cmp_lt_u32 s{SWV}, 12")
    A("s_cbranch_scc1 K_GW")
    for k in range(5):
        A(f"ds_read_b128 {vr(48+4*k,4)}, v14 offset:{16*k*PROW}")
    for k in range(5):
        A(f"s_waitcnt lgkmcnt({4-k})")
        A(f"buffer_store_dwordx4 {vr(48+4*k,4)}, v15, {sr(SW,4)}, s{T0} offen {PSF}")
        A(f"s_add_u32 s{T0}, s{T0}, 8192")
    if W1B_H == 4:
        A("s_waitcnt vmcnt(5)")
        for col in range(8):
            d = 16 + 4 * (col % 5)
            perm4(d, col)
            A(f"ds_write_b128 v{VSW}, {vr(d,4)} offset:{col*4096}")
        A("s_waitcnt lgkmcnt(0)")
    arrive(2)
    await_lds(L_TOK, 0, 14, STOK, nonzero=True)
    A("s_waitcnt vmcnt(0)")
    A("s_mov_b64 exec, 1")
    A(f"ds_add_rtn_u32 v15, v{VZ}, v{VONE} offset:{L_GC+12}")
    A(f"s_lshl_b32 s{T0}, s2, 4")
    A(f"s_add_u32 s{T0}, s{T0}, {hex(WS_PF)}")
    A("s_waitcnt lgkmcnt(0)")
    A(f"v_readfirstlane_b32 s{T1}, v15")
    A(f"s_cmp_lg_u32 s{T1}, 3")
    A("s_cbranch_scc1 K_NOPF")
    A(f"buffer_store_dword v14, v{VZ}, {sr(SW,4)}, s{T0} offen sc1")
    L("K_NOPF")
    A("s_mov_b64 exec, -1")
    stamp(2)
    A("s_branch K_GQ")
    L("K_GW")
    def st1():
        for col in range(8):
            d = 16 + 4 * (col % 5)
            perm4(d, col)
            A(f"ds_write_b128 v{VSW}, {vr(d,4)} offset:{col*4096}")
    if W1B_H:
        A("s_waitcnt vmcnt(0)")
        st1()
    if W1B_H != 4:
        if GWD == 99: await_lds(L_GC + 12, 4, 12, T3, slp=2)
        elif GWD: A(f"s_sleep {GWD}")
        if not W1B_H:
            w1b_loads()
        A(f"s_add_u32 s{T0}, s{SWO}, 256")
        for j in range(8):
            A(f"buffer_load_dwordx4 {vr(64+4*j,4)}, v{VWO}, {sr(SY,4)}, s{T0} offen offset:{512*j}")
        if not W1B_H:
            A("s_waitcnt vmcnt(8)")
            st1()
        A("s_waitcnt vmcnt(0)")
        for col in range(8):
            d = 16 + 4 * ((col + 3) % 5)
            perm4(d, col, 64)
            A(f"ds_write_b128 v{VSW}, {vr(d,4)} offset:{32768 + col*4096}")
    A("s_waitcnt lgkmcnt(0)")
    arrive(2)
    await_lds(L_TOK, 0, 14, STOK, nonzero=True)
    L("K_GQ")
    A(f"s_sub_u32 s{T0}, s{SWV}, 8")
    A(f"s_lshl_b32 s{T1}, s{T0}, 13")
    A(f"s_add_u32 s{T1}, s{T1}, {L_S}")
    A(f"v_add_u32 v{VA}, s{T1}, v{VL16}")
    A(f"s_lshr_b32 s{T1}, s{T0}, 1")
    A(f"s_lshl_b32 s{T1}, s{T1}, 4")
    A(f"s_and_b32 s{T0}, s{T0}, 1")
    A(f"s_lshl_b32 s{T0}, s{T0}, 1")
    A(f"s_add_u32 s{T0}, s{T0}, s{T1}")
    A(f"v_lshl_add_u32 v12, v{VG}, 2, s{T0}")
    A(f"v_lshlrev_b32 v{VB1A}, 4, v12")
    A(f"s_movk_i32 s{T1}, {QROW}")
    A(f"v_mad_u32_u24 v{VPA}, v{VC}, s{T1}, v{VB1A}")
    A(f"v_add_u32 v{VPA}, {L_Q}, v{VPA}")
    A(f"s_mul_i32 s{T0}, s{SCB}, 40")
    A(f"v_add_u32 v12, s{T0}, v{VC}")
    A(f"v_xor_b32 v13, v{VG}, v12")
    A("v_and_b32 v13, 15, v13")
    A("v_lshlrev_b32 v13, 4, v13")
    A("v_lshl_add_u32 v13, v12, 8, v13")
    for s_ in range(4):
        A(f"v_xor_b32 v{XA+s_}, {64*s_}, v13")
    stamp(5)
    for s_ in range(4):
        for mt in range(3):
            A(f"ds_read_b128 {vr(XF+(mt*4+s_)*4,4)}, v{XA+s_} offset:{L_XT + 4096*mt}")
    await_lds(L_GC + 8, 12, 12, T0)
    AC = lambda t, mt: 16 + (t*3 + mt) * 4
    A(f"ds_read_b128 v[8:11], v{VB1A} offset:{L_CV+1024}")
    A(f"ds_read_b128 v[12:15], v{VB1A} offset:{L_CV+1024+16}")
    for k in range(8):
        A(f"ds_read_b128 {vr(WL+4*k,4)}, v{VA} offset:{((k&1)*4 + (k>>1))*1024}")
    for k in range(8):
        s_, t = k >> 1, k & 1
        A(f"s_waitcnt lgkmcnt({7-k})")
        for mt in range(3):
            c = vr(8 + 4*t, 4) if s_ == 0 else vr(AC(t, mt), 4)
            A(f"v_mfma_f32_16x16x32_bf16 {vr(AC(t,mt),4)}, {vr(WL+4*k,4)}, {vr(XF+(mt*4+s_)*4,4)}, {c}")
    A(f"s_mov_b32 s{T1}, {hex(WS_PF - 8192)}")
    A(f"s_cmp_lt_u32 s{SWV}, 12")
    A(f"s_cselect_b32 s{SRND}, s{T1}, 0x7ff00000")
    if not PLATE: A(f"buffer_load_dword v{VA}, v{VT16}, {sr(SW,4)}, s{SRND} offen sc1")
    for k in range(8):
        A(f"s_mov_b64 {sr(MK[k],2)}, 0")
    for mt in range(3):
        for t in range(2):
            d = 48 + (mt*2 + t) * 4
            for i in range(4):
                A(f"v_mul_f32 v{d+i}, s{SC}, v{AC(t,mt)+PI[i]}")
            if mt == 2:
                A(f"s_mov_b64 exec, {sr(SQM,2)}")
            A(f"ds_write_b128 v{VPA}, {vr(d,4)} offset:{16*mt*QROW + 16*t}")
            if mt == 2:
                A("s_mov_b64 exec, -1")
    stamp(6)
    A(f"v_and_b32 v{VC}, 15, v1")
    A(f"v_lshrrev_b32 v{VG}, 4, v1")
    A(f"v_mov_b32 v{PZ}, 0")
    A(f"v_mov_b32 v{PZ+1}, 0")
    A(f"v_mov_b32 v{VP}, s{SW2}")
    A(f"v_mov_b32 v{VDEG}, 0")
    A(f"v_mov_b32 v{OUTA}, 0")
    A(f"s_cmp_ge_u32 s{SWV}, 12")
    A("s_cbranch_scc1 K_B3")
    A(f"s_movk_i32 s{T0}, {512 + NB}")
    A(f"v_cmp_gt_u32 {sr(TP,2)}, s{T0}, v0")
    if PLATE:
        await_lds(L_GC + 12, 4, 12, T3, slp=2)
        await_lds(L_GC + (20 if PLATE == 2 else 16), 8, 12, T3, slp=2)
        if PLATE > 2: A(f"s_sleep {PLATE}")
        A(f"buffer_load_dword v{VA}, v{VT16}, {sr(SW,4)}, s{SRND} offen sc1")
    A(f"s_mov_b32 s{SSP}, {SPIN}")
    L("K_PFL")
    A("s_waitcnt vmcnt(0)")
    A(f"v_cmp_ne_u32 vcc, s{STOK}, v{VA}")
    A(f"s_and_b64 vcc, vcc, {sr(TP,2)}")
    A("s_cbranch_scc0 K_B3")
    A(f"s_sub_u32 s{SSP}, s{SSP}, 1")
    A("s_cbranch_scc1 K_B3")
    A("s_mov_b64 exec, vcc")
    if SLP_F: A(f"s_sleep {SLP_F}")
    A(f"buffer_load_dword v{VA}, v{VT16}, {sr(SW,4)}, s{SRND} offen sc1")
    A("s_mov_b64 exec, -1")
    A("s_branch K_PFL")

    L("K_AUX")
    A(f"s_cmp_lg_u32 s{SWV}, 0")
    A("s_cbranch_scc1 K_AUX1")
    ED, ES, EE, RKB, BN4, RCB = 48, 58, 68, 74, 84, 96
    A("v_lshlrev_b32 v12, 3, v1")
    A(f"s_mul_i32 s{T0}, s2, {CH*4}")
    A(f"s_mul_i32 s{T1}, s2, {CH*2}")
    A("s_waitcnt lgkmcnt(0)")
    srd(SX, PDST, CH * 4, f"s{T0}")
    for k in range(5):
        A(f"buffer_load_dwordx2 {vr(ED+2*k,2)}, v12, {sr(SX,4)}, 0 offen offset:{512*k}")
    srd(SY, PSRC, CH * 4, f"s{T0}")
    for k in range(5):
        A(f"buffer_load_dwordx2 {vr(ES+2*k,2)}, v12, {sr(SY,4)}, 0 offen offset:{512*k}")
    srd(SZ, PE, CH * 2, f"s{T1}")
    for k in range(5):
        A(f"buffer_load_dword v{EE+k}, v2, {sr(SZ,4)}, 0 offen offset:{256*k}")
    A("s_barrier")
    A("s_setprio 3")
    common_setup()
    srd(SO, PDBG, 256)
    A(f"s_movk_i32 s{T1}, {-NPB}")
    for j in range(10):
        if j % 2 == 0:
            A(f"s_waitcnt vmcnt({14 - j//2})")
            if j == 0:
                A(f"buffer_load_dword v33, v{VZ}, {sr(SO,4)}, 0 offen sc1")
        A(f"v_mul_u32_u24 v14, 0xcccd, v{ED+j}")
        A("v_lshrrev_b32 v14, 21, v14")
        A(f"v_lshlrev_b32 v{BN4+j}, 2, v14")
        A(f"ds_add_rtn_u32 v{RKB+j}, v{BN4+j}, v{VONE} offset:{L_HIST}")
        A(f"v_mad_i32_i24 v{ED+j}, v14, s{T1}, v{ED+j}")
    HC_, HB_ = 16, 20
    A(f"ds_read_b128 {vr(HC_,4)}, v{VL16} offset:{L_HIST}")
    A("s_waitcnt vmcnt(1)")
    stamp(1)
    for j in range(10):
        if j % 2 == 0:
            A(f"v_lshlrev_b32 v14, 16, v{EE+j//2}")
        else:
            A(f"v_and_b32 v14, 0xffff0000, v{EE+j//2}")
        A(f"v_lshl_or_b32 v{RCB+2*j+1}, v{ED+j}, 2, v14")
    A("s_waitcnt lgkmcnt(0)")
    A(f"v_add_u32 v{HB_+2}, v{HC_}, v{HC_+1}")
    A(f"v_add_u32 v{HB_+3}, v{HB_+2}, v{HC_+2}")
    A(f"v_add_u32 v15, v{HB_+3}, v{HC_+3}")
    A("s_nop 1")
    A(f"v_add_u32_dpp v{HB_}, v15, v15 row_shr:1 row_mask:0xf bank_mask:0xf bound_ctrl:0")
    for ctl in SCAN:
        A("s_nop 1")
        A(f"v_add_u32_dpp v{HB_}, v{HB_}, v{HB_} {ctl}")
    A(f"v_sub_u32 v{HB_}, v{HB_}, v15")
    A(f"v_add_u32 v{HB_+1}, v{HB_}, v{HC_}")
    A(f"v_add_u32 v{HB_+2}, v{HB_}, v{HB_+2}")
    A(f"v_add_u32 v{HB_+3}, v{HB_}, v{HB_+3}")
    A(f"ds_write_b128 v{VL16}, {vr(HB_,4)} offset:{L_HIST}")
    for j in range(10):
        A(f"ds_read_b32 v{ED+j}, v{BN4+j} offset:{L_HIST}")
    for k in range(4):
        A(f"v_lshl_or_b32 v{25+2*k}, v{HC_+k}, 16, v{HB_+k}")
    A(f"v_lshlrev_b32 v32, 1, v{VL16}")
    A(f"s_mov_b32 s{SSP}, {SPIN}")
    A("s_waitcnt vmcnt(0)")
    L("K_TOK")
    A(f"v_readfirstlane_b32 s{STOK}, v33")
    A(f"s_cmp_lg_u32 s{STOK}, 0")
    A("s_cbranch_scc1 K_TOKOK")
    A(f"s_sub_u32 s{SSP}, s{SSP}, 1")
    A("s_cbranch_scc1 K_END")
    A(f"buffer_load_dword v33, v{VZ}, {sr(SO,4)}, 0 offen sc1")
    A("s_waitcnt vmcnt(0)")
    A("s_branch K_TOK")
    L("K_TOKOK")
    A(f"s_lshl_b32 s{T0}, s{STOK}, 13")
    A(f"s_and_b32 s{T0}, s{T0}, 0xffffc000")
    A(f"s_lshl_b32 s{T3}, s2, 11")
    A(f"s_add_u32 s{T3}, s{T3}, {hex(WS_OFS)}")
    for k in range(4):
        A(f"v_mov_b32 v{24+2*k}, s{STOK}")
    A(f"buffer_store_dwordx4 v[24:27], v32, {sr(SW,4)}, s{T3} offen sc1")
    A(f"buffer_store_dwordx4 v[28:31], v32, {sr(SW,4)}, s{T3} offen offset:16 sc1")
    A("s_waitcnt lgkmcnt(0)")
    for j in range(10):
        A(f"v_or_b32 v{RCB+2*j}, s{T0}, v{ES+j}")
        A(f"v_add_lshl_u32 v{ED+j}, v{ED+j}, v{RKB+j}, 3")
        A(f"ds_write_b64 v{ED+j}, {vr(RCB+2*j,2)} offset:{L_SB}")
    for k in range(5):
        A(f"ds_read_b128 {vr(60+4*k,4)}, v{VL16} offset:{L_SB + 1024*k}")
    A(f"s_mul_i32 s{T0}, s2, {CH*8}")
    A(f"s_add_u32 s{T0}, s{T0}, {hex(WS_REC)}")
    A(f"s_add_u32 s{T1}, s{T0}, 4096")
    for k in range(5):
        A(f"s_waitcnt lgkmcnt({4-k})")
        A(f"buffer_store_dwordx4 {vr(60+4*k,4)}, v{VL16}, {sr(SW,4)}, s{T0 + k//4} offen offset:{1024*(k%4)} sc1")
    A(f"ds_write_b32 v{VZ}, v33 offset:{L_TOK}")
    A("s_setprio 0")
    stamp(2)
    A("s_branch K_AUXP")
    L("K_AUX1")
    for k in range(4):
        A(f"v_xor_b32 v{51+k}, v{VG}, v{VC}")
        if k: A(f"v_xor_b32 v{51+k}, {4*k}, v{51+k}")
        A(f"v_lshlrev_b32 v{51+k}, 4, v{51+k}")
        A(f"v_lshl_add_u32 v{51+k}, v{VG}, 8, v{51+k}")
    A(f"s_sub_u32 s{T0}, s{SWV}, 1")
    A(f"s_lshl_b32 s{T0}, s{T0}, 12")
    A(f"s_lshl_b32 s{T2}, s{SN80}, 8")
    A(f"s_add_u32 s{T2}, s{T2}, s{T0}")
    A(f"s_add_u32 s{T0}, s{T0}, {L_XT}")
    A(f"s_mov_b32 m0, s{T0}")
    A("s_waitcnt lgkmcnt(0)")
    A(f"s_cmp_ge_u32 s{SWV}, 6")
    A("s_cbranch_scc1 K_NOX")
    srd(SX, PX, N * 256)
    for k in range(4):
        A(f"buffer_load_dwordx4 v{51+k}, {sr(SX,4)}, s{T2} offen offset:{1024*k} lds")
    L("K_NOX")
    if PRD:
        A(f"s_cmp_lg_u32 s{SWV}, 6")
        A("s_cbranch_scc1 K_NOPRD")
        CM("early read of the lines this workgroup will write")
        srd(SX, PWS, WS_BYTES)
        A("v_lshlrev_b32 v60, 8, v1")
        A(f"s_lshl_b32 s{T0}, s{SN80}, 9")
        A(f"s_lshl_b32 s{T1}, s{SCB}, 7")
        A(f"s_add_u32 s{T0}, s{T0}, s{T1}")
        for k in range(3):
            if k == 2: A("s_mov_b32 exec_hi, 0")
            A(f"buffer_load_dword v{84+k}, v60, {sr(SX,4)}, s{T0} offen {PRD}")
            A(f"s_add_u32 s{T0}, s{T0}, 16384")
        A("s_mov_b64 exec, -1")
        A("v_lshlrev_b32 v60, 7, v1")
        A(f"s_mul_i32 s{T0}, s2, {CH*8}")
        A(f"s_add_u32 s{T0}, s{T0}, {hex(WS_REC)}")
        A("v_cmp_gt_u32 vcc, 40, v1")
        A("s_mov_b64 exec, vcc")
        A(f"buffer_load_dword v87, v60, {sr(SX,4)}, s{T0} offen {PRD}")
        A(f"s_lshl_b32 s{T0}, s2, 11")
        A(f"s_add_u32 s{T0}, s{T0}, {hex(WS_OFS)}")
        A("s_mov_b64 exec, 0xffff")
        A(f"buffer_load_dword v88, v60, {sr(SX,4)}, s{T0} offen {PRD}")
        A("s_mov_b64 exec, -1")
        L("K_NOPRD")
    if TCH:
        A(f"s_cmp_lg_u32 s{SWV}, 6")
        A("s_cbranch_scc1 K_NOTCH")
        CM("address translations of the pages that are written and read later")
        srd(SX, PWS, 0x800000)
        A(f"v_lshlrev_b32 v60, {TCH}, v1")
        A(f"buffer_load_dword v61, v60, {sr(SX,4)}, 0 offen sc1")
        srd(SX, POUT, N * D * 2)
        A(f"s_lshl_b32 s{T0}, s{SN40}, 8")
        A(f"buffer_load_dword v62, v{VZ}, {sr(SX,4)}, s{T0} offen")
        L("K_NOTCH")
    A(f"s_xor_b32 s{T0}, s{SWV}, 7")
    A(f"s_or_b32 s{T0}, s{T0}, s2")
    A("s_cbranch_scc1 K_NOTOK")
    srd(SO, PDBG, 256)
    A("s_or_b32 s26, s26, 1")
    A("v_mov_b32 v59, s26")
    A(f"buffer_store_dword v59, v2, {sr(SO,4)}, 0 offen sc1")
    L("K_NOTOK")
    A("s_barrier")
    common_setup()
    A(f"s_cmp_lt_u32 s{SWV}, 4")
    A("s_cbranch_scc1 K_NOCV")
    A("v_and_b32 v63, 3, v0")
    A("v_lshlrev_b32 v63, 2, v63")
    A("v_mov_b32 v64, 0x2031")
    A("v_bfe_u32 v65, v64, v63, 4")
    A("v_bfe_u32 v64, v0, 2, 2")
    A(f"v_lshl_add_u32 v64, v{VG}, 5, v64")
    A("v_bfe_u32 v66, v0, 6, 1")
    A("v_lshl_add_u32 v64, v66, 2, v64")
    A("v_bfe_u32 v66, v0, 7, 1")
    A("v_lshl_add_u32 v64, v66, 7, v64")
    A("v_lshl_add_u32 v65, v65, 3, v64")
    A("v_lshl_add_u32 v64, v63, 1, v64")
    A("v_lshlrev_b32 v65, 1, v65")
    A("v_lshlrev_b32 v64, 1, v64")
    A("v_and_b32 v66, 0xff, v0")
    A("v_lshlrev_b32 v67, 1, v66")
    A("v_lshlrev_b32 v66, 2, v66")
    srd(SY, PW1, 257 * 512)
    A(f"s_mov_b32 s{T0}, {256*512}")
    A(f"buffer_load_ushort v20, v65, {sr(SY,4)}, s{T0} offen")
    srd(SX, PB1, 512)
    A(f"buffer_load_ushort v21, v64, {sr(SX,4)}, 0 offen")
    srd(SX, PB2, 256)
    A(f"buffer_load_ushort v22, v67, {sr(SX,4)}, 0 offen")
    A(f"s_cmp_ge_u32 s{SWV}, 6")
    A("s_cbranch_scc1 K_CV1")
    A("s_waitcnt vmcnt(3)")
    arrive(0)
    L("K_CV1")
    A(f"s_cmp_lg_u32 s{SWV}, 7")
    A("s_cbranch_scc1 K_CV1B")
    A("s_cmp_ge_u32 s2, 64")
    A("s_cbranch_scc1 K_CV1B")
    A(f"s_bfe_u32 s{T0}, s2, 0x10002")
    A(f"s_lshl_b32 s{T0}, s{T0}, 15")
    A(f"s_and_b32 s{T1}, s2, 1")
    A(f"s_lshl_b32 s{T1}, s{T1}, 14")
    A(f"s_add_u32 s{T0}, s{T0}, s{T1}")
    A(f"s_bfe_u32 s{T1}, s2, 0x10001")
    A(f"s_lshl_b32 s{T1}, s{T1}, 10")
    A(f"s_add_u32 s{T0}, s{T0}, s{T1}")
    A(f"s_lshr_b32 s{T1}, s2, 3")
    A(f"s_lshl_b32 s{T1}, s{T1}, 5")
    A(f"s_add_u32 s{T0}, s{T0}, s{T1}")
    A(f"s_add_u32 s{T1}, s{T0}, 4096")
    A(f"v_lshrrev_b32 v24, 1, v{VG}")
    A("v_lshlrev_b32 v24, 13, v24")
    A(f"v_and_b32 v25, 1, v{VG}")
    A("v_lshl_add_u32 v24, v25, 9, v24")
    A(f"v_lshl_add_u32 v24, v{VC}, 1, v24")
    srd(SX, PW2, 256 * 256)
    for jj in range(8):
        p = PI[jj & 3]
        A(f"buffer_load_ushort v{72+jj}, v24, {sr(SX,4)}, s{T0 if p < 2 else T1} offen offset:{(p&1)*2048 + (jj>>2)*256}")
    A(f"s_lshl_b32 s{T0}, s2, 10")
    A(f"s_add_u32 s{T0}, s{T0}, {hex(WS_W2F)}")
    A("s_waitcnt vmcnt(0)")
    for k in range(4):
        A(f"v_lshl_or_b32 v{80+k}, v{73+2*k}, 16, v{72+2*k}")
    A(f"buffer_store_dwordx4 v[80:83], v{VL16}, {sr(SW,4)}, s{T0} offen sc1")
    L("K_CV1B")
    A("s_waitcnt vmcnt(0)")
    for k in range(3):
        A(f"v_lshlrev_b32 v{20+k}, 16, v{20+k}")
    A(f"v_mul_f32 v20, s{SC}, v20")
    A(f"ds_write_b32 v66, v21 offset:{L_CV+1024}")
    A(f"ds_write_b32 v66, v20 offset:{L_CV}")
    A(f"s_cmp_ge_u32 s{SWV}, 6")
    A("s_cbranch_scc1 K_CV2")
    A(f"ds_write_b32 v66, v22 offset:{L_CV+2048}")
    L("K_CV2")
    A("s_waitcnt lgkmcnt(0)")
    arrive(2)
    A(f"s_cmp_lg_u32 s{SWV}, 7")
    A("s_cbranch_scc1 K_AUXT")
    arrive(1)
    A("s_branch K_AUXT")
    L("K_NOCV")
    A("s_waitcnt vmcnt(0)")
    arrive(0)
    L("K_AUXT")
    L("K_AUXP")
    A("v_lshrrev_b32 v31, 1, v0")
    A("v_lshlrev_b32 v31, 11, v31")
    A(f"s_movk_i32 s{T3}, {2*NB}")
    A(f"v_cmp_gt_u32 {sr(SOWN,2)}, s{T3}, v0")
    A(f"v_cvt_f32_u32 v30, v1")
    A(f"v_rcp_f32 v30, v30")
    A(f"v_mov_b32 v{VP}, s{SW2}")
    A(f"v_mul_f32 v30, 0x47800000, v30")
    A(f"v_cvt_u32_f32 v30, v30")
    A(f"v_add_u32 v30, 1, v30")
    await_lds(L_TOK, 0, 33, STOK, nonzero=True, slp=4)
    A(f"s_bfe_u32 s{STAG}, s{STOK}, 0x120001")
    if PD0: A(f"s_sleep {PD0}")
    L("K_REC0")
    A(f"s_mov_b32 s{SSP}, {SPIN}")
    A(f"s_mov_b64 vcc, {sr(SOWN,2)}")
    L("K_OFS")
    A("s_mov_b64 exec, vcc")
    A(f"buffer_load_dwordx2 {vr(GRT,2)}, v31, {sr(SW,4)}, s{SB8} offen sc1")
    A("s_mov_b64 exec, -1")
    L("K_OFS1")
    A("s_waitcnt vmcnt(0)")
    A(f"v_cmp_ne_u32 vcc, s{STOK}, v{GRT}")
    A(f"s_and_b64 vcc, vcc, {sr(SOWN,2)}")
    A("s_cbranch_scc0 K_OFSOK")
    A(f"s_sub_u32 s{SSP}, s{SSP}, 1")
    A("s_cbranch_scc1 K_END")
    A(f"s_sleep {SLP_N}")
    A("s_branch K_OFS")
    L("K_OFSOK")
    stamp(5)
    A(f"v_lshrrev_b32 v{GRT}, 16, v{GRT+1}")
    A(f"v_and_b32 v{GRT+1}, 0xffff, v{GRT+1}")
    A(f"v_cndmask_b32 v{GRT}, 0, v{GRT}, {sr(SOWN,2)}")
    A("v_lshrrev_b32 v32, 1, v0")
    A(f"s_movk_i32 s{T0}, {CH}")
    A(f"v_mad_u32_u24 v{GRT+1}, v32, s{T0}, v{GRT+1}")
    A("v_and_b32 v32, 1, v0")
    A("v_lshlrev_b32 v32, 1, v32")
    A(f"v_add_lshl_u32 v{PZ+1}, v{GRT+1}, v32, 3")
    A(f"v_sub_i32 v{PZ}, v{GRT}, v32")
    A(f"v_mov_b32 v{VDEG}, 0")
    A(f"v_mov_b32 v{OUTA}, 0")
    L("K_RECS")
    A(f"s_mov_b32 s{T0}, {hex(WS_REC)}")
    for k in range(8):
        A(f"v_cmp_lt_i32 {sr(MK[k],2)}, {4*(k>>1) + (k&1)}, v{PZ}")
    A(f"v_cmp_lt_i32 vcc, 16, v{PZ}")
    A("v_mov_b32 v88, 4")
    A("v_mov_b32 v89, 0")
    A("v_mov_b32 v90, 1")
    A("s_cbranch_vccz K_RM")
    A(f"ds_write_b32 v89, v90 offset:{L_FLAG}")
    L("K_RM")
    A(f"s_mov_b32 s{SSP}, {SPIN}")
    L("K_RLD")
    for k in range(4):
        A(f"s_mov_b64 exec, {sr(MK[2*k],2)}")
        A("s_cbranch_execz K_RL")
        A(f"buffer_load_dwordx4 {vr(RC+4*k,4)}, v{PZ+1}, {sr(SW,4)}, s{T0} offen offset:{32*k} sc1")
    L("K_RL")
    A("s_mov_b64 exec, -1")
    L("K_NOU")
    A(f"s_mov_b64 {sr(TP,2)}, 0")
    A("s_waitcnt vmcnt(0)")
    for k in range(8):
        A(f"s_mov_b64 exec, {sr(MK[k],2)}")
        A("s_cbranch_execz K_RV")
        A(f"v_lshrrev_b32 v91, 14, v{RC+2*k}")
        A(f"v_cmp_ne_u32 vcc, s{STAG}, v91")
        A(f"s_or_b64 {sr(TP,2)}, {sr(TP,2)}, vcc")
    L("K_RV")
    A("s_mov_b64 exec, -1")
    A(f"s_cmp_eq_u64 {sr(TP,2)}, 0")
    A("s_cbranch_scc1 K_RVOK")
    A(f"s_sub_u32 s{SSP}, s{SSP}, 1")
    A("s_cbranch_scc1 K_END")
    A(f"s_sleep {SLP_N}")
    A("s_branch K_RLD")
    L("K_RVOK")
    stamp(6)
    NL, RK, PS = 64, 72, 80
    A(f"s_mov_b32 s{T1}, {hex(FBASE)}")
    for k in range(8):
        A(f"s_mov_b64 exec, {sr(MK[k],2)}")
        A("s_cbranch_execz K_R1")
        A(f"v_and_b32 v{NL+k}, 0xfc, v{RC+2*k+1}")
        A(f"ds_add_rtn_u32 v{RK+k}, v{NL+k}, v88")
        A(f"v_and_b32 v{RC+2*k}, 0x3fff, v{RC+2*k}")
        A(f"v_lshl_or_b32 v{RC+2*k}, v{RC+2*k}, 9, s{T1}")
    L("K_R1")
    A("s_mov_b64 exec, 1")
    A("s_waitcnt lgkmcnt(0)")
    A(f"ds_add_u32 v89, v90 offset:{L_GC+16}")
    A("s_mov_b64 exec, -1")
    A(f"v_mov_b32 v{VZ}, 0")
    await_lds(L_GC + 16, 8, 91, T0)
    stamp(7)
    def scan_and_decide(tag, with_perm):
        A(f"ds_read_b32 v{VCNT}, v2")
        A(f"ds_read_b32 v91, v89 offset:{L_FLAG}")
        A("s_waitcnt lgkmcnt(1)")
        A(f"v_add_u32_dpp v{VEND}, v{VCNT}, v{VCNT} row_shr:1 row_mask:0xf bank_mask:0xf bound_ctrl:0")
        A(f"v_add_u32 v{VDEG}, v{VDEG}, v{VCNT}")
        for k, ctl in enumerate(SCAN):
            A("s_nop 0" if k == 0 else "s_nop 1")
            A(f"v_add_u32_dpp v{VEND}, v{VEND}, v{VEND} {ctl}")
        A(f"v_sub_u32 v{VB4}, v{VEND}, v{VCNT}")
        A("s_waitcnt lgkmcnt(0)")
        A(f"v_readlane_b32 s{STOT}, v{VEND}, 63")
        if with_perm:
            for k in range(8):
                A(f"s_cmp_eq_u64 {sr(MK[k],2)}, 0")
                A(f"s_cbranch_scc1 K_R2{tag}")
                A(f"ds_bpermute_b32 v{PS+k}, v{NL+k}, v{VB4}")
            L(f"K_R2{tag}")
        A(f"v_readfirstlane_b32 s{SLP}, v91")
        A(f"s_add_u32 s{T1}, s{STOT}, 60")
        A(f"s_lshr_b32 s{SLEN}, s{T1}, 6")
        A(f"s_lshl_b32 s{T1}, s{SLEN}, 2")
        A(f"s_add_u32 s{T2}, s{T1}, 4")
        A(f"v_cmp_lt_u32 vcc, s{T2}, v{VCNT}")
        A(f"s_and_b32 s{T3}, s{SLEN}, 63")
        if with_perm:
            A(f"v_readlane_b32 s{T0}, v30, s{T3}")
        A(f"s_andn2_b32 s{SFAST}, s{SFIRST}, s{SMODE}")
        A(f"s_andn2_b32 s{SFAST}, s{SFAST}, s{SLP}")
        A(f"s_cmp_gt_u32 s{STOT}, {4*WIN}")
        A(f"s_cselect_b32 s{SFAST}, 0, s{SFAST}")
        A(f"s_sub_u32 s{T1}, {PRIV_B}, s{T1}")
        A("s_cmp_lg_u64 vcc, 0")
        A(f"s_cselect_b32 s{SFAST}, 0, s{SFAST}")
    scan_and_decide("a", True)
    A(f"v_mov_b32 v92, s{SFAST}")
    A(f"ds_write_b32 v89, v92 offset:{L_FLAG+12}")
    A(f"s_cmp_eq_u32 s{SFAST}, 0")
    A("s_waitcnt lgkmcnt(0)")
    A("s_cbranch_scc1 K_WL")
    for k in range(8):
        A(f"s_mov_b64 exec, {sr(MK[k],2)}")
        A("s_cbranch_execz K_WB")
        A(f"v_add_u32 v{PS+k}, v{PS+k}, v{RK+k}")
        A(f"v_mul_u32_u24 v{RK+k}, s{T0}, v{PS+k}")
        A(f"v_lshrrev_b32 v{RK+k}, 18, v{RK+k}")
        A(f"v_mad_u32_u24 v{PS+k}, v{RK+k}, s{T1}, v{PS+k}")
        A(f"ds_write_b32 v{PS+k}, v{RC+2*k} offset:{L_PRIV}")
        A(f"ds_write_b32 v{PS+k}, v{RC+2*k+1} offset:{L_PRIV + PRIV_N*4}")
    L("K_WB")
    A("s_mov_b64 exec, 1")
    A(f"ds_add_u32 v89, v90 offset:{L_GC+20}")
    A("s_mov_b64 exec, -1")
    L("K_B3")
    A(f"s_mov_b32 s{SW2}, 1")
    A("v_mov_b32 v89, 0")
    A("s_waitcnt vmcnt(0) lgkmcnt(0)")
    A("s_barrier")
    stamp(8)
    def row_load(d, p, pair=False):
        if not pair:
            A(f"v_add_u32 v{p}, v{p}, v2")
        A(f"buffer_load_dword v{d}, v{p}, {sr(ST,4)}, 0 offen sc1")
        A(f"buffer_load_dword v{d+1}, v{p}, {sr(ST,4)}, 0 offen offset:256 sc1")
    TI = 16
    A(f"ds_read_b32 v92, v89 offset:{L_FLAG+12}")
    for k in range(R // 4):
        A(f"ds_read_b128 {vr(TI+4*k,4)}, v{VP} offset:{16*k}")
    A(f"ds_read_b128 {vr(W,4)}, v{VL16} offset:{L_CV}")
    A("s_waitcnt lgkmcnt(2)")
    A(f"v_readfirstlane_b32 s{T0}, v92")
    A(f"s_cmp_eq_u32 s{T0}, 0")
    A("s_cbranch_scc1 K_R3")
    for k in range(F1):
        if k == 4: A("s_waitcnt lgkmcnt(1)")
        row_load(DAT + 2*k, TI + k)
    L("K_R3")
    A(f"s_cmp_lt_u32 s{SWV}, 8")
    A("s_cbranch_scc1 K_R4")
    scan_and_decide("g", False)
    L("K_R4")
    A(f"s_cmp_eq_u32 s{SFAST}, 0")
    A("s_cbranch_scc1 K_SLOW")
    A(f"v_add_u32 v{Q+3}, v{VP}, v2")
    A(f"ds_read_b32 v{Q}, v{Q+3} offset:{PRIV_N*4}")
    for k in range(R // 4):
        A(f"ds_read_b128 {vr(EV+4*k,4)}, v{VP} offset:{PRIV_N*4 + 16*k}")
    A(f"ds_read_b128 {vr(OG[0],4)}, v{VP} offset:{R*4}")
    A(f"s_mul_i32 s{T0}, s{SLEN}, s{SWV}")
    A(f"s_add_u32 s{T3}, s{T0}, s{SLEN}")
    A(f"s_lshl_b32 s{T0}, s{T0}, 2")
    A(f"s_lshl_b32 s{T3}, s{T3}, 2")
    A(f"s_min_u32 s{T0}, s{T0}, s{STOT}")
    A(f"s_min_u32 s{T3}, s{T3}, s{STOT}")
    A(f"s_sub_u32 s{SNN}, s{T3}, s{T0}")
    A(f"s_lshr_b32 s{SNN}, s{SNN}, 2")
    A(f"v_cmp_gt_u32 vcc, s{T0}, v{VB4}")
    A(f"v_cmp_lt_u32 {sr(TP,2)}, s{T0}, v{VEND}")
    A(f"s_and_b64 vcc, vcc, {sr(TP,2)}")
    A(f"s_cselect_b32 s{SLP}, 1, 0")
    A(f"v_cmp_gt_u32 vcc, s{T3}, v{VB4}")
    A(f"v_cmp_lt_u32 {sr(TP,2)}, s{T3}, v{VEND}")
    A(f"s_and_b64 vcc, vcc, {sr(TP,2)}")
    A(f"s_cselect_b32 s{STAIL}, 1, 0")
    A(f"v_cmp_le_u32 vcc, s{SNN}, v1")
    A(f"s_movk_i32 s{T2}, {QROW//4}")
    A(f"s_movk_i32 s{T3}, {HROW//4}")
    A(f"s_mov_b32 s{SREM}, s{SNN}")
    A("s_waitcnt lgkmcnt(0)")
    A(f"v_and_b32 v{Z2}, 0xfc, v{EV}")
    A(f"v_and_b32 v{Q+1}, 0xfc, v{Q}")
    A(f"v_mad_u32_u24 v{Z2+1}, v{Z2}, s{T2}, v{VQ16}")
    A("s_setprio 3")
    A(f"v_mov_b32_dpp v{Q+2}, v{Q+1} wave_shr:1 row_mask:0xf bank_mask:0xf")
    A(f"v_cmp_ne_u32 {sr(SM,2)}, v{Q+1}, v{Q+2}")
    A(f"ds_read_b128 {vr(Q,4)}, v{Z2+1}")
    A(f"s_or_b64 {sr(SM,2)}, {sr(SM,2)}, vcc")
    for k in range(4):
        A(f"v_add_u32 v{OG[0]+k}, v{OG[0]+k}, v2")
    def tail_prep():
        A(f"v_lshlrev_b32 v{Z+1}, 2, v{VC}")
        A(f"v_lshlrev_b32 v{Z+2}, 4, v{VG}")
        for mt in range(3):
            A(f"v_add_u32 v{T+3}, {64*mt}, v{Z+1}")
            A(f"ds_bpermute_b32 v{T+mt}, v{T+3}, v{VDEG}")
        A(f"s_lshl_b32 s{T0}, s{SWV}, 6")
        A(f"v_add_u32 v{Z+3}, s{T0}, v{Z+2}")
        A(f"ds_read_b128 {vr(B2F,4)}, v{Z+3} offset:{L_CV+2048}")
        A(f"s_movk_i32 s{T1}, {HROW}")
        A(f"v_mad_u32_u24 v{AD}, v{VC}, s{T1}, v{Z+2}")
        A(f"v_lshlrev_b32 v{OUTA}, 8, v{VC}")
        A(f"v_lshl_add_u32 v{OUTA}, v{VG}, 3, v{OUTA}")
        A(f"v_add_u32 v{Z+2}, {L_ZROW}, v{Z+2}")
        A(f"v_add_u32 v{AD+2}, {L_H + 32*HROW}, v{AD}")
        A(f"v_add_u32 v{AD+1}, {L_H + 16*HROW}, v{AD}")
        A(f"v_add_u32 v{AD}, {L_H}, v{AD}")
        A("s_waitcnt lgkmcnt(0)")
        for mt in range(3):
            A(f"v_cmp_eq_u32 vcc, 0, v{T+mt}")
            A(f"v_cvt_f32_u32 v{T+mt}, v{T+mt}")
            A(f"v_mul_f32 v{T+mt}, 0x3e800000, v{T+mt}")
            A(f"v_cndmask_b32 v{AD+mt}, v{AD+mt}, v{Z+2}, vcc")
            sel = "op_sel_hi:[1,0]" if mt % 2 == 0 else "op_sel:[0,1]"
            A(f"v_pk_mul_f32 {vr(OV+4*mt,2)}, {vr(B2F,2)}, {vr(T+(mt&2),2)} {sel}")
            A(f"v_pk_mul_f32 {vr(OV+4*mt+2,2)}, {vr(B2F+2,2)}, {vr(T+(mt&2),2)} {sel}")
    def w2_load():
        A(f"s_mov_b32 s{SW2}, 0")
        A(f"s_lshl_b32 s{T0}, s{SWV}, 13")
        A(f"s_add_u32 s{T0}, s{T0}, {hex(WS_W2F)}")
        A(f"s_add_u32 s{T1}, s{T0}, 4096")
        for k in range(8):
            A(f"buffer_load_dwordx4 {vr(W2R+4*k,4)}, v{VL16}, {sr(SW,4)}, s{T0 + k//4} offen offset:{(k%4)*1024} sc1")
    A(f"s_cmp_ge_u32 s{SWV}, 8")
    A("s_cbranch_scc1 K_NOTP")
    tail_prep()
    L("K_NOTP")
    for k in range(F1, R):
        row_load(DAT + 2*k, TI + k)
    A(f"v_mov_b32 v{LO}, v{Z2}")
    A(f"v_mov_b32 v{PZ}, 0")
    A(f"v_mov_b32 v{PZ+1}, 0")
    VW = 2 * (R - 1)
    if STAMP:
        A(f"s_waitcnt vmcnt({VW})")
        stamp(9)
    A(f"s_cmp_eq_u32 s{SNN}, 0")
    A("s_cbranch_scc1 K_WDONE")
    A("s_branch K_HC0")

    def e_sel(s):
        base = EV + (s & ~1)
        return (vr(base, 2), "op_sel_hi:[1,0,1]") if s % 2 == 0 else (vr(base, 2), "op_sel:[0,1,0]")
    def part_z1(s, z):
        ep, es = e_sel(s)
        return [f"v_pk_fma_f32 {vr(z,2)}, {vr(W,2)}, {ep}, {vr(Q,2)} {es}",
                f"v_pk_fma_f32 {vr(z+2,2)}, {vr(W+2,2)}, {ep}, {vr(Q+2,2)} {es}"]
    def part_z2(s, z, zo=None, lo=LO):
        d = DAT + 2*s
        zo = z if zo is None else zo
        return [f"v_lshlrev_b64 {vr(lo,2)}, 16, {vr(d,2)}",
                f"v_pk_fma_f32 {vr(zo,2)}, {vr(d,2)}, {C2}, {vr(z,2)}",
                f"v_pk_fma_f32 {vr(zo+2,2)}, {vr(lo,2)}, {C2}, {vr(z+2,2)}"]
    def part_exp(z): return [f"v_exp_f32 v{T+k}, v{z+k}" for k in range(4)]
    def part_nd(z):
        return [f"v_pk_fma_f32 {vr(NN,2)}, {vr(NN,2)}, {vr(T,2)}, {vr(NN,2)}",
                f"v_pk_fma_f32 {vr(NN+2,2)}, {vr(NN+2,2)}, {vr(T+2,2)}, {vr(NN+2,2)}",
                f"v_pk_fma_f32 {vr(NN,2)}, {vr(z,2)}, {vr(DD,2)}, {vr(NN,2)}",
                f"v_pk_fma_f32 {vr(NN+2,2)}, {vr(z+2,2)}, {vr(DD+2,2)}, {vr(NN+2,2)}",
                f"v_pk_fma_f32 {vr(DD,2)}, {vr(DD,2)}, {vr(T,2)}, {vr(DD,2)}",
                f"v_pk_fma_f32 {vr(DD+2,2)}, {vr(DD+2,2)}, {vr(T+2,2)}, {vr(DD+2,2)}"]
    def addr_prep(k):
        A("s_waitcnt lgkmcnt(0)")
        A(f"v_pk_add_f32 {vr(OG[k],2)}, {vr(OG[k],2)}, v[2:3] op_sel:[0,1]")
        A(f"v_pk_add_f32 {vr(OG[k]+2,2)}, {vr(OG[k]+2,2)}, v[2:3] op_sel:[0,1]")
    def refill(s):
        og = OG[(s // 4) % 2]
        if s % 4 == 0:
            A(f"ds_read_b128 {vr(OG[(s//4+1)%2],4)}, v{VP} offset:{(R+s+4)*4}")
        row_load(DAT + 2*s, og + s % 4, pair=True)
        if s % 4 == 3:
            addr_prep((s // 4 + 1) % 2)
            A(f"ds_read_b128 {vr(EV+s-3,4)}, v{VP} offset:{PRIV_N*4 + (R+s-3)*4}")
    L("K_LOOP")
    for g in range(R // 4):
        L(f"K_G{g}")
        A(f"s_and_b32 s{T0}, s{SM}, {hex(0xF << (4*g))}")
        A(f"s_cbranch_scc1 K_S{4*g}")
        zz = [Z, Z2]
        s0 = 4*g
        for x in part_z1(s0, zz[0]): A(x)
        A(f"s_waitcnt vmcnt({VW})")
        for x in part_z2(s0, zz[0]): A(x)
        refill(s0)
        for k in range(4):
            s = s0 + k
            z, zn = zz[k % 2], zz[(k + 1) % 2]
            ex, nd = part_exp(z), part_nd(z)
            if k < 3:
                a, b = part_z1(s + 1, zn), part_z2(s + 1, zn)
                A(ex[0]); A(a[0]); A(ex[1]); A(a[1]); A(ex[2])
                A(f"s_waitcnt vmcnt({VW})")
                A(b[0]); A(ex[3]); A(nd[0]); A(b[1]); A(nd[1]); A(nd[2]); A(b[2]); A(nd[3])
                refill(s + 1)
                A(nd[4]); A(nd[5])
            else:
                for x in ex + nd: A(x)
    L("K_PEND")
    A(f"v_add_u32 v{VP}, {R*4}, v{VP}")
    A(f"s_lshr_b64 {sr(SM,2)}, {sr(SM,2)}, {R}")
    A(f"s_sub_u32 s{SREM}, s{SREM}, {R}")
    for thr, p in PRIO_T:
        A(f"s_cmp_gt_u32 s{SREM}, {thr}")
        A("s_cbranch_scc1 K_LOOP")
        A(f"s_setprio {p}")
    A(f"s_cmp_ge_u32 s{SWV}, 8")
    A("s_cbranch_scc1 K_LOOP")
    A(f"s_cmp_eq_u32 s{SW2}, 0")
    A("s_cbranch_scc1 K_LOOP")
    w2_load()
    A("s_branch K_LOOP")
    for s in range(R):
        L(f"K_S{s}")
        A(f"s_bitcmp1_b32 s{SM}, {s}")
        A(f"s_cbranch_scc1 K_H{s}")
        for x in part_z1(s, Z): A(x)
        A(f"s_waitcnt vmcnt({VW})")
        for x in part_z2(s, Z) + part_exp(Z) + part_nd(Z): A(x)
        L(f"K_J{s}")
        refill(s)
        if s % 4 == 3:
            A(f"s_branch K_G{s//4+1}" if s + 1 < R else "s_branch K_PEND")
    def fold():
        for k in range(4):
            A(f"v_rcp_f32 v{T+k}, v{DD+k}")
        A(f"v_pk_fma_f32 {vr(PZ,2)}, {vr(DD,2)}, {vr(NN,2)}, {vr(PZ,2)}")
        A(f"v_pk_fma_f32 {vr(PZ,2)}, {vr(DD+2,2)}, {vr(NN+2,2)}, {vr(PZ,2)}")
        A(f"v_pk_mul_f32 {vr(Z,2)}, {vr(NN,2)}, {vr(T,2)}")
        A(f"v_pk_mul_f32 {vr(Z+2,2)}, {vr(NN+2,2)}, {vr(T+2,2)}")
    def lead_flush():
        A(f"v_add_u32 v{Z2}, s{SSIDE}, v{VL16}")
        A(f"s_lshl_b32 s{T0}, s{SWV}, 2")
        A(f"v_mov_b32 v{Z2+1}, s{T0}")
        A(f"v_mov_b32 v{Z2+2}, 1")
        A(f"ds_write_b128 v{Z2}, {vr(Z,4)}")
        A(f"ds_write_b32 v{Z2+1}, v{Z2+2} offset:{L_SFL}")
        A(f"s_mov_b32 s{SLP}, 0")
    for s in range(R):
        L(f"K_H{s}")
        A(f"s_cmp_eq_u32 s{SREM}, {s}")
        A("s_cbranch_scc1 K_LAST")
        A(f"v_and_b32 v{LO}, 0xfc, v{EV+s}")
        A(f"v_mad_u32_u24 v{LO+1}, v{LO}, s{T2}, v{VQ16}")
        A(f"ds_read_b128 {vr(Q,4)}, v{LO+1}")
        fold()
        A(f"s_cmp_lg_u32 s{SLP}, 0")
        A(f"s_cbranch_scc1 K_LS{s}")
        A(f"v_cvt_pk_bf16_f32 v{Z}, v{Z}, v{Z+1}")
        A(f"v_cvt_pk_bf16_f32 v{Z+1}, v{Z+2}, v{Z+3}")
        A(f"ds_write_b64 v{VA}, {vr(Z,2)}")
        L(f"K_HC{s}")
        A(f"v_mad_u32_u24 v{VA}, v{LO}, s{T3}, v{VH8}")
        A(f"s_waitcnt vmcnt({VW}) lgkmcnt(0)")
        for x in part_z1(s, Z) + part_z2(s, Z, NN) + part_exp(NN): A(x)
        A(f"v_pk_add_f32 {vr(DD,2)}, {vr(T,2)}, 1.0 op_sel_hi:[1,0]")
        A(f"v_pk_add_f32 {vr(DD+2,2)}, {vr(T+2,2)}, 1.0 op_sel_hi:[1,0]")
        A(f"s_branch K_J{s}")
        L(f"K_LS{s}")
        lead_flush()
        A(f"s_branch K_HC{s}")
    L("K_LAST")
    A(f"s_lshl_b32 s{T0}, s{SWV}, 2")
    A(f"v_mov_b32 v{LO}, s{T0}")
    A(f"v_add_u32 v{LO+1}, s{SSIDE}, v{VL16}")
    A(f"ds_read_b32 v{Z2}, v{LO} offset:{L_SFL+4}")
    A(f"ds_read_b128 {vr(Q,4)}, v{LO+1} offset:1024")
    fold()
    A(f"s_cmp_eq_u32 s{SLP}, 0")
    A("s_cbranch_scc1 K_L1")
    A("s_waitcnt lgkmcnt(0)")
    lead_flush()
    A("s_branch K_WDONE")
    L("K_L1")
    A(f"s_cmp_eq_u32 s{STAIL}, 0")
    A("s_cbranch_scc1 K_L3")
    A(f"s_mov_b32 s{SSP}, {SPIN}")
    L("K_L2")
    A("s_waitcnt lgkmcnt(0)")
    A(f"v_readfirstlane_b32 s{T0}, v{Z2}")
    A(f"s_cmp_lg_u32 s{T0}, 0")
    A("s_cbranch_scc1 K_L2B")
    A(f"s_sub_u32 s{SSP}, s{SSP}, 1")
    A("s_cbranch_scc1 K_L2B")
    A("s_sleep 2")
    A(f"ds_read_b32 v{Z2}, v{LO} offset:{L_SFL+4}")
    A(f"ds_read_b128 {vr(Q,4)}, v{LO+1} offset:1024")
    A("s_branch K_L2")
    L("K_L2B")
    A(f"v_pk_add_f32 {vr(Z,2)}, {vr(Z,2)}, {vr(Q,2)}")
    A(f"v_pk_add_f32 {vr(Z+2,2)}, {vr(Z+2,2)}, {vr(Q+2,2)}")
    L("K_L3")
    A(f"v_cvt_pk_bf16_f32 v{Z}, v{Z}, v{Z+1}")
    A(f"v_cvt_pk_bf16_f32 v{Z+1}, v{Z+2}, v{Z+3}")
    A(f"ds_write_b64 v{VA}, {vr(Z,2)}")
    L("K_WDONE")
    stamp(10)
    A(f"v_add_f32 v{T}, v{PZ}, v{PZ+1}")
    A(f"v_mov_b32 v{Z2+1}, 0x207")
    A(f"v_cmp_class_f32 vcc, v{T}, v{Z2+1}")
    A(f"v_mov_b32 v{Z2+2}, 0")
    A(f"s_mov_b32 s{TP}, {hex(C_NLN2)}")
    A(f"s_xor_b32 s{T0}, s{SWV}, 15")
    A(f"s_or_b32 s{T0}, s{T0}, s2")
    A("s_cbranch_scc1 K_NOCLR")
    srd(SO, PDBG, 256)
    A(f"buffer_store_dword v{Z2+2}, v2, {sr(SO,4)}, 0 offen sc1")
    L("K_NOCLR")
    srd(SO, POUT, N * D * 2)
    A("s_cbranch_vccz K_NOG")
    A(f"ds_write_b32 v{Z2+2}, v{Z2+1} offset:{L_FLAG+8}")
    L("K_NOG")
    A(f"s_cmp_ge_u32 s{SWV}, 8")
    A("s_cbranch_scc1 K_B4")
    A(f"s_cmp_eq_u32 s{SW2}, 0")
    A("s_cbranch_scc1 K_B4")
    w2_load()
    L("K_B4")
    A("s_waitcnt vmcnt(0) lgkmcnt(0)")
    A("s_barrier")
    stamp(11)
    A(f"ds_read_b32 v{Z2+3}, v{Z2+2} offset:{L_FLAG+8}")
    A(f"s_cmp_ge_u32 s{SWV}, 8")
    A("s_cbranch_scc1 K_CHK")
    HB = [48 + 4*k for k in range(8)]
    ACC = [12, 16, 20]
    seq = [(mt, s) for mt in range(3) for s in range(8)]
    PRE = 7
    for k in range(PRE):
        mt, s = seq[k]
        A(f"ds_read_b128 {vr(HB[k%8],4)}, v{AD+mt} offset:{s*64}")
    def epi(mt):
        for r in range(4):
            A(f"v_fma_f32 v{OV+4*mt+r}, v{ACC[mt]+r}, s{TP}, v{OV+4*mt+r}")
        A(f"v_cvt_pk_bf16_f32 v{32+2*mt}, v{OV+4*mt}, v{OV+4*mt+1}")
        A(f"v_cvt_pk_bf16_f32 v{33+2*mt}, v{OV+4*mt+2}, v{OV+4*mt+3}")
    for k, (mt, s) in enumerate(seq):
        if k + PRE < 24:
            m2, s2 = seq[k+PRE]
            A(f"ds_read_b128 {vr(HB[(k+PRE)%8],4)}, v{AD+m2} offset:{s2*64}")
        A(f"s_waitcnt lgkmcnt({min(PRE, 23-k)})")
        c = "0" if s == 0 else vr(ACC[mt], 4)
        A(f"v_mfma_f32_16x16x32_bf16 {vr(ACC[mt],4)}, {vr(W2R+4*s,4)}, {vr(HB[k%8],4)}, {c}")
        if s == 4 and mt > 0:
            epi(mt - 1)
    A("s_nop 7")
    epi(2)
    L("K_CHK")
    A("s_waitcnt lgkmcnt(0)")
    A(f"v_readfirstlane_b32 s{T2}, v{Z2+3}")
    A(f"s_lshl_b32 s{T1}, s{SMODE}, 31")
    A(f"s_or_b32 s{T2}, s{T2}, s{T1}")
    A(f"s_cmp_gt_i32 s{T2}, 0")
    A("s_cbranch_scc1 K_REDO")
    A(f"s_cmp_ge_u32 s{SWV}, 8")
    A("s_cbranch_scc1 K_END2")
    A(f"s_add_u32 s{T2}, s{SOUT}, 4096")
    A(f"s_add_u32 s{T1}, s{SOUT}, 8192")
    A(f"buffer_store_dwordx2 v[32:33], v{OUTA}, {sr(SO,4)}, s{SOUT} offen")
    A(f"buffer_store_dwordx2 v[34:35], v{OUTA}, {sr(SO,4)}, s{T2} offen")
    A(f"s_mov_b64 exec, {sr(SQM,2)}")
    A(f"buffer_store_dwordx2 v[36:37], v{OUTA}, {sr(SO,4)}, s{T1} offen")
    A("s_mov_b64 exec, -1")
    L("K_END2")
    if STAMP:
        stamp(12)
        A("s_waitcnt vmcnt(0)")
        stamp(13)
        A(f"v_writelane_b32 v{VST}, s26, 14")
        A(f"s_lshl_b32 s{T0}, s2, 4")
        A(f"s_add_u32 s{T0}, s{T0}, s{SWV}")
        A(f"s_lshl_b32 s{T0}, s{T0}, 8")
        A(f"s_add_u32 s{T0}, s{T0}, {hex(WS_DBG)}")
        A(f"buffer_store_dword v{VST}, v2, {sr(SW,4)}, s{T0} offen")
    L("K_END")
    A("s_endpgm")

    L("K_WL")
    for k in range(8):
        A(f"s_mov_b64 exec, {sr(MK[k],2)}")
        A("s_cbranch_execz K_WB")
        A(f"v_add_lshl_u32 v{PS+k}, v{PS+k}, v{RK+k}, 1")
        A(f"ds_write_b64 v{PS+k}, {vr(RC+2*k,2)} offset:{L_LIST}")
    A("s_branch K_WB")
    L("K_REDO")
    A(f"s_mov_b32 s{SMODE}, 1")
    A("s_setprio 0")
    A(f"v_and_b32 v{VC}, 15, v1")
    A(f"v_lshrrev_b32 v{VG}, 4, v1")
    A(f"v_mov_b32 v{VDEG}, 0")
    A(f"v_mov_b32 v{PZ}, 0")
    A(f"s_mov_b32 s{SFIRST}, 1")
    A("v_lshrrev_b32 v31, 1, v0")
    A("v_lshlrev_b32 v31, 11, v31")
    def reset_round():
        A("s_barrier")
        A(f"s_cmp_lg_u32 s{SWV}, 0")
        uid[0] += 1
        A(f"s_cbranch_scc1 K_RR{uid[0]}")
        A("v_mov_b32 v89, 0")
        A("ds_write_b32 v2, v89")
        A(f"ds_write_b32 v89, v89 offset:{L_FLAG}")
        A(f"ds_write_b32 v89, v89 offset:{L_GC+16}")
        A("s_waitcnt lgkmcnt(0)")
        L(f"K_RR{uid[0]}")
        A("s_barrier")
    reset_round()
    A(f"s_cmp_ge_u32 s{SWV}, 8")
    A("s_cbranch_scc1 K_B3")
    A("s_branch K_REC0")
    L("K_SLOW")
    A(f"s_cmp_eq_u32 s{SFIRST}, 0")
    A("s_cbranch_scc1 K_SL0")
    for k in range(12):
        A(f"v_mov_b32 v{SACC+k}, 0")
    L("K_SL0")
    for i in range(3):
        A(f"s_add_u32 s{T0}, s{SWV}, {16*i}")
        A(f"v_readlane_b32 s{T1}, v{VB4}, s{T0}")
        A(f"v_readlane_b32 s{T2}, v{VCNT}, s{T0}")
        A(f"s_mul_i32 s{T3}, s{T0}, {QROW}")
        A(f"s_cmp_eq_u32 s{T2}, 0")
        A(f"s_cbranch_scc1 K_SLN{i}")
        A(f"v_add_u32 v{Z2}, s{T3}, v{VQ16}")
        A(f"ds_read_b128 {vr(Q,4)}, v{Z2}")
        A(f"s_lshl_b32 s{T1}, s{T1}, 1")
        A(f"v_mov_b32 v{VA}, s{T1}")
        L(f"K_SLL{i}")
        A(f"ds_read_b64 {vr(EV,2)}, v{VA} offset:{L_LIST}")
        A(f"v_add_u32 v{VA}, 8, v{VA}")
        A("s_waitcnt lgkmcnt(0)")
        row_load(DAT + 2, EV)
        for x in part_z1(1, Z): A(x)
        A("s_waitcnt vmcnt(0)")
        for x in part_z2(1, Z, lo=NN) + part_exp(Z): A(x)
        A("s_nop 0")
        for k in range(4):
            A(f"v_add_f32 v{T+k}, 1.0, v{T+k}")
        for k in range(4):
            A(f"v_rcp_f32 v{T+k}, v{T+k}")
        A(f"s_sub_u32 s{T2}, s{T2}, 4")
        for k in range(4):
            A(f"v_fmac_f32 v{SACC+4*i+k}, v{Z+k}, v{T+k}")
        A(f"s_cmp_lg_u32 s{T2}, 0")
        A(f"s_cbranch_scc1 K_SLL{i}")
        L(f"K_SLN{i}")
    A(f"s_mov_b32 s{SFIRST}, 0")
    A("s_waitcnt lgkmcnt(0)")
    reset_round()
    A(f"s_cmp_eq_u32 s{SLP}, 0")
    A("s_cbranch_scc1 K_SLFIN")
    A(f"s_cmp_ge_u32 s{SWV}, 8")
    A("s_cbranch_scc1 K_B3")
    A(f"v_add_u32 v{PZ}, -16, v{PZ}")
    A(f"v_add_u32 v{PZ+1}, 128, v{PZ+1}")
    A("s_branch K_RECS")
    L("K_SLFIN")
    A(f"v_mov_b32 v{PZ}, 0")
    A(f"v_mov_b32 v{PZ+1}, 0")
    for i in range(3):
        if i == 2:
            A(f"s_cmp_ge_u32 s{SWV}, {NPB-32}")
            A("s_cbranch_scc1 K_WDONE")
        A(f"s_add_u32 s{T0}, s{SWV}, {16*i}")
        A(f"s_mul_i32 s{T0}, s{T0}, {HROW}")
        A(f"v_add_u32 v{Z2}, s{T0}, v{VH8}")
        A(f"v_cvt_pk_bf16_f32 v{Z}, v{SACC+4*i}, v{SACC+4*i+1}")
        A(f"v_cvt_pk_bf16_f32 v{Z+1}, v{SACC+4*i+2}, v{SACC+4*i+3}")
        A(f"ds_write_b64 v{Z2}, {vr(Z,2)}")
    tail_prep()
    A("s_branch K_WDONE")
    L("K_CODE_END")

hdr = f"""; Kernarg layout for this problem (88 bytes, ptrs only, base s[0:1]):
; @launch grid=({NB},1,1) block=(1024,1,1) lds={LDS}
.amdgcn_target "amdgcn-amd-amdhsa--gfx950"
"""
gen()
vg = 128
out.extend(['.section .rodata,"a"', ".p2align 6", f".amdhsa_kernel {KN}",
    f"  .amdhsa_next_free_vgpr {vg}", f"  .amdhsa_next_free_sgpr 102", f"  .amdhsa_accum_offset {vg}",
    "  .amdhsa_group_segment_fixed_size 0", "  .amdhsa_kernarg_size 88", "  .amdhsa_user_sgpr_count 2",
    "  .amdhsa_user_sgpr_kernarg_segment_ptr 1", "  .amdhsa_system_sgpr_workgroup_id_x 1", ".end_amdhsa_kernel"])
txt = hdr + "\n".join(out) + "\n"
dst = sys.argv[1] if len(sys.argv) > 1 else f"fused.s"
open(dst, "w").write(txt)
print("wrote", dst, "LDS", LDS)
```
